```python
import torch

def _softmax(x, axis=-1):
    return torch.softmax(x, dim=axis)
def _gelu(x):
    return torch.nn.functional.gelu(x, approximate="tanh")
def _silu(x):
    return torch.nn.functional.silu(x)
def _sigmoid(x):
    return torch.sigmoid(x)
def _layernorm(x, axis=-1, eps=1e-5):
    m = x.mean(dim=axis, keepdim=True)
    v = x.var(dim=axis, keepdim=True, unbiased=False)
    return (x - m) / torch.sqrt(v + eps)
def _scatter_add(tgt, idx, src, axis=0):
    return tgt.clone().index_add_(axis, idx, src)
def _segment_sum(src, seg, n):
    out = torch.zeros((n,) + src.shape[1:], dtype=src.dtype)
    return out.index_add_(0, seg, src)
def _pad(x, pw):
    flat = tuple(v for pair in reversed(pw) for v in pair)
    return torch.nn.functional.pad(x, flat)

kernel_name = 'sequential_preLN__sliding_block__dense_activation_silu__prompt'

def setup_inputs():

    _w = (lambda a: (lambda t: t.to(torch.bfloat16) if t.is_floating_point() else t)(torch.as_tensor(a)))
    def _A_setup():
        B, S, D = 1, 2048, 640
        return {
            "x": _w((lambda *s: torch.randn(*s, dtype=torch.bfloat16) * 0.05)(B, S, D)),
            "wqkv": _w((lambda *s: torch.randn(*s, dtype=torch.bfloat16) * 0.05)(D, 3 * D)),
            "wo": _w((lambda *s: torch.randn(*s, dtype=torch.bfloat16) * 0.05)(D, D)),
        }
    _A_in = _A_setup()

    def _B_setup():
        B, S, D, F = 1, 2048, 640, 1728
        return {
            "x": _w((lambda *s: torch.randn(*s, dtype=torch.bfloat16) * 0.05)(B, S, D)),
            "w1": _w((lambda *s: torch.randn(*s, dtype=torch.bfloat16) * 3.2)(D, F) * (D ** -0.5)),
            "w2": _w((lambda *s: torch.randn(*s, dtype=torch.bfloat16) * 0.4)(F, D) * (F ** -0.5)),
        }
    _B_in = _B_setup()

    return {
        "A_x": _A_in["x"],
        "A_wqkv": _A_in["wqkv"],
        "A_wo": _A_in["wo"],
        "B_x": _B_in["x"],
        "B_w1": _B_in["w1"],
        "B_w2": _B_in["w2"],
    }

def reference(A_x, A_wqkv, A_wo, B_x, B_w1, B_w2):
    def _A_ref(x, wqkv, wo):
        B, S, D = x.shape
        H = 32; Dh = D // H; W = 256
        qkv = (lambda x, *d: x.permute(*d))((x @ wqkv).reshape(B, S, 3, H, Dh), 2, 0, 3, 1, 4)
        q, k, v = qkv[0], qkv[1], qkv[2]
        scores = torch.einsum("bhqd,bhkd->bhqk", q, k) * (Dh ** -0.5)
        idx = torch.arange(S)
        mask = (idx[:, None] - idx[None, :] >= 0) & (idx[:, None] - idx[None, :] < W)
        scores = torch.where(mask[None, None], scores, -1e9)
        p = _softmax(scores, axis=-1)
        o = torch.einsum("bhqk,bhkd->bhqd", p, v)
        return (lambda x, *d: x.permute(*d))(o, 0, 2, 1, 3).reshape(B, S, D) @ wo

    def _B_ref(x, w1, w2):
        h = torch.einsum("bsd,df->bsf", x, w1)
        h = _silu(h)
        out = torch.einsum("bsf,fd->bsd", h, w2)
        return out

    x = A_x
    h = x + _A_ref(_layernorm(x, axis=-1), A_wqkv, A_wo)
    h2 = h + _B_ref(_layernorm(h, axis=-1), B_w1, B_w2)
    return h2
```

```python
import re

_REG = re.compile(r'^(-|\|)?(abs\()?([vas])(\d+|\[(\d+):(\d+)\])\)?\|?$')
TRANS = ('v_exp_', 'v_log_', 'v_rcp_', 'v_rsq_', 'v_sqrt_', 'v_sin_', 'v_cos_')


def regs_of(tok):
    tok = tok.strip()
    if tok == 'vcc':
        return [('s', 'vcc')]
    if tok == 'exec':
        return [('s', 'exec')]
    if tok == 'm0':
        return [('s', 'm0')]
    m = _REG.match(tok)
    if not m:
        return []
    f = m.group(3)
    if m.group(5) is not None:
        return [(f, i) for i in range(int(m.group(5)), int(m.group(6)) + 1)]
    return [(f, int(m.group(4)))]


def split_ops(s):
    out, depth, cur = [], 0, ''
    for ch in s:
        if ch in '[(':
            depth += 1
        if ch in '])':
            depth -= 1
        if ch == ',' and depth == 0:
            out.append(cur.strip())
            cur = ''
        else:
            cur += ch
    if cur.strip():
        out.append(cur.strip())
    return out


class Ins:
    __slots__ = ('text', 'op', 'kind', 'rd', 'wr', 'mf', 'wide', 'waits', 'cond', 'seq', 'lds_dma', 'cost')

    def __init__(self, text, waits=None, cond=False):
        self.text = text
        self.waits = waits or []
        self.cond = cond
        self.seq = None
        self.mf = None
        self.wide = False
        self.lds_dma = False
        self.parse()

    def parse(self):
        t = self.text.split(';')[0].strip()
        self.rd, self.wr = [], []
        if not t or t.startswith('.'):
            self.op, self.kind = t, 'dir'
            return
        if t.endswith(':'):
            self.op, self.kind = t, 'label'
            return
        parts = t.split(None, 1)
        op = parts[0]
        self.op = op
        ops = split_ops(parts[1]) if len(parts) > 1 else []
        mods = ''
        if ops:
            last = ops[-1].split(None, 1)
            ops[-1] = last[0]
            mods = last[1] if len(last) > 1 else ''
        R = [regs_of(o) for o in ops]
        fl = lambda xs: [r for x in xs for r in x]
        if op.startswith('v_mfma'):
            self.kind = 'mfma'
            self.wr = R[0]
            self.rd = fl(R[1:])
            self.mf = dict(d=R[0], a=R[1], b=R[2], c=R[3], p=(8 if '32x32' in op else 4))
        elif op.startswith('v_'):
            self.kind = 'valu'
            if op.startswith(('v_swap', 'v_permlane16_swap', 'v_permlane32_swap')):
                self.wr = fl(R[:2]); self.rd = fl(R[:2])
            elif op.startswith(('v_add_co', 'v_sub_co', 'v_addc_co', 'v_subb_co', 'v_subrev_co')):
                self.wr = fl(R[:2]); self.rd = fl(R[2:])
            elif op == 'v_nop':
                pass
            else:
                self.wr = R[0]; self.rd = fl(R[1:])
                if op.startswith(('v_fmac', 'v_dot2c', 'v_pk_fmac', 'v_writelane')) or '_dpp' in op or '_sdwa' in op:
                    self.rd = self.rd + R[0]
                if op.startswith('v_cmpx'):
                    self.wr = self.wr + [('s', 'exec')]
        elif op.startswith('ds_'):
            self.kind = 'ds'
            if op.startswith(('ds_read', 'ds_bpermute', 'ds_permute', 'ds_swizzle')) or '_rtn' in op:
                self.wr = R[0]; self.rd = fl(R[1:])
            else:
                self.rd = fl(R)
        elif op.startswith(('buffer_load', 'global_load')):
            self.kind = 'vmem'
            if ' lds' in (' ' + mods) or op.startswith('global_load_lds'):
                self.lds_dma = True
                self.rd = fl(R) + [('s', 'm0')]
            else:
                self.wr = R[0]; self.rd = fl(R[1:])
        elif op.startswith(('buffer_store', 'global_store', 'buffer_atomic', 'global_atomic')):
            self.kind = 'vmem'
            self.rd = fl(R)
            if op.endswith(('x3', 'x4')):
                self.wide = R[0] if op.startswith('buffer') else R[1]
        elif op.startswith(('buffer_inv', 'buffer_wbl2')):
            self.kind = 'vmem'
        elif op.startswith(('s_load', 's_memtime', 's_memrealtime', 's_buffer_load')):
            self.kind = 'smem'
            self.wr = R[0]; self.rd = fl(R[1:])
        elif op in ('s_waitcnt',):
            self.kind = 'wait'
        elif op == 's_nop':
            self.kind = 'nop'
        elif op.startswith(('s_branch', 's_cbranch', 's_setpc', 's_endpgm')):
            self.kind = 'branch'
            if 'vcc' in op:
                self.rd = [('s', 'vcc')]
            self.rd += fl(R)
        elif op in ('s_barrier', 's_setprio', 's_sleep'):
            self.kind = 'misc'
        elif op.startswith('s_'):
            self.kind = 'salu'
            if op.startswith(('s_cmp', 's_bitcmp')):
                self.rd = fl(R)
            else:
                self.wr = R[0]; self.rd = fl(R[1:])
                if op.startswith(('s_addk', 's_mulk', 's_cmov')):
                    self.rd = self.rd + R[0]
                if 'saveexec' in op:
                    self.wr = self.wr + [('s', 'exec')]
        else:
            raise ValueError("unknown instruction: " + t)


class Code:
    def __init__(self):
        self.ins = []
        self._cond = False

    def __call__(self, text, waits=None):
        last = None
        for line in text.split('\n'):
            if line.strip():
                last = Ins(line.strip(), waits, self._cond)
                waits = None
                self.ins.append(last)
        return last

    def add(self, ins):
        if isinstance(ins, Ins):
            self.ins.append(ins)
        else:
            for i in ins:
                self.add(i)

    def cond(self, on):
        self._cond = on

    def wait(self, *handles):
        i = Ins('.wait', list(handles), self._cond)
        self.ins.append(i)
        return i


def I(text, waits=None):
    return Ins(text, waits)


def W(*handles):
    return Ins('.wait', list(handles))


def interleave(main, fill, start=0, end=None, lead=0):
    n = len(main)
    end = n if end is None else end
    slots = end - start
    out = []
    k = 0
    for i, m in enumerate(main):
        out.append(m)
        if start <= i < end:
            tgt = ((i - start + 1) * len(fill) + slots - 1) // slots
            while k < min(tgt + lead, len(fill)):
                out.append(fill[k]); k += 1
    out.extend(fill[k:])
    return out


def flat(x):
    if isinstance(x, Ins):
        return [x]
    o = []
    for i in x:
        o.extend(flat(i))
    return o


def insert_waits(ins):
    out = []
    vm_n = 0; vm_done = 0
    lg_n = 0; lg_done = 0
    smem_pending = False
    pend = {}
    saved = None
    snaps = {}
    for i in ins:
        if i.kind == 'dir' and i.text.startswith('.save'):
            snaps[i.text.split()[1]] = (vm_done, lg_done, smem_pending, dict(pend), vm_n, lg_n)
            continue
        if i.kind == 'dir' and i.text.startswith('.restore'):
            vm_done, lg_done, smem_pending, pend, vm_n, lg_n = snaps[i.text.split()[1]]
            pend = dict(pend)
            continue
        if i.cond and saved is None:
            saved = (vm_done, lg_done, smem_pending, dict(pend), vm_n, lg_n)
        if not i.cond and saved is not None:
            for r, (c, s) in pend.items():
                if r not in saved[3] or saved[3][r] != (c, s):
                    done = (c == 'vm' and s <= vm_done) or (c == 'lg' and s <= lg_done)
                    assert done, f"conditional region leaves pending load on {r}"
            vm_done, lg_done, smem_pending, pend, vm_n, lg_n = saved
            saved = None
        need_vm = need_lg = None
        need_sm = False
        if i.kind not in ('label',):
            for r in list(i.rd) + list(i.wr):
                if r in pend:
                    c, s = pend[r]
                    if c == 'vm' and s > vm_done:
                        need_vm = max(need_vm or 0, s)
                    elif c == 'lg' and s > lg_done:
                        need_lg = max(need_lg or 0, s)
                    elif c == 'sm':
                        need_sm = True
            for h in i.waits:
                assert h.seq is not None, f"wait on un-issued op {h.text}"
                if h.kind == 'vmem' and h.seq > vm_done:
                    need_vm = max(need_vm or 0, h.seq)
                elif h.kind == 'ds' and h.seq > lg_done:
                    need_lg = max(need_lg or 0, h.seq)
        w = []
        if need_vm is not None:
            n = min(vm_n - need_vm, 63)
            w.append(f"vmcnt({n})"); vm_done = max(vm_done, vm_n - n)
        if need_sm or (need_lg is not None and smem_pending):
            w.append("lgkmcnt(0)"); lg_done = lg_n; smem_pending = False
            pend = {r: v for r, v in pend.items() if v[0] != 'sm'}
        elif need_lg is not None:
            n = min(lg_n - need_lg, 15)
            w.append(f"lgkmcnt({n})"); lg_done = max(lg_done, lg_n - n)
        if w:
            out.append(Ins("s_waitcnt " + " ".join(w), cond=i.cond))
        if i.op == '.wait':
            continue
        if i.kind == 'wait':
            m = re.search(r'vmcnt\((\d+)\)', i.text)
            if m:
                vm_done = max(vm_done, vm_n - int(m.group(1)))
            m = re.search(r'lgkmcnt\((\d+)\)', i.text)
            if m:
                n = int(m.group(1))
                if n == 0:
                    lg_done = lg_n; smem_pending = False
                    pend = {r: v for r, v in pend.items() if v[0] != 'sm'}
                elif not smem_pending:
                    lg_done = max(lg_done, lg_n - n)
        for r in i.wr:
            pend.pop(r, None)
        if i.kind == 'vmem':
            vm_n += 1; i.seq = vm_n
            for r in i.wr: pend[r] = ('vm', vm_n)
        elif i.kind == 'ds':
            lg_n += 1; i.seq = lg_n
            for r in i.wr: pend[r] = ('lg', lg_n)
        elif i.kind == 'smem':
            smem_pending = True
            for r in i.wr: pend[r] = ('sm', 0)
        out.append(i)
    return out


def _need(p, c):
    n = 0
    pw, cr, cw = set(p.wr), set(c.rd), set(c.wr)
    if p.kind == 'mfma':
        P = p.mf['p']
        if c.kind == 'mfma':
            if pw & set(c.mf['c']):
                if not (c.mf['c'] == p.mf['d'] and c.mf['p'] == P):
                    n = max(n, P + 2)
            if pw & (set(c.mf['a']) | set(c.mf['b'])):
                n = max(n, P + 4)
            if pw & cw and not (c.mf['c'] == p.mf['d'] and c.mf['p'] == P):
                n = max(n, P + 2)
        elif c.kind in ('valu', 'vmem', 'ds'):
            if pw & (cr | cw):
                n = max(n, P + 4)
            if c.kind == 'valu' and set(p.mf['c']) & cw:
                n = max(n, P - 1)
    elif p.kind == 'valu':
        vw = {r for r in pw if r[0] != 's'}
        sw = {r for r in pw if r[0] == 's'}
        if c.kind == 'mfma' and vw & cr:
            n = max(n, 2)
        if c.kind == 'mfma' and ('s', 'exec') in sw:
            n = max(n, 4)
        if c.kind == 'valu':
            if vw & cr:
                if c.op.startswith('v_permlane') or '_dpp' in c.op:
                    n = max(n, 2)
                if c.op.startswith(('v_readlane', 'v_readfirstlane')):
                    n = max(n, 1)
                if p.op.startswith(TRANS):
                    n = max(n, 1)
                if '_sdwa' in p.op or 'op_sel:' in p.text and not p.op.startswith('v_pk'):
                    n = max(n, 1)
            if sw & cr:
                n = max(n, 4 if c.op.startswith(('v_readlane', 'v_writelane')) else 2)
        if c.kind == 'vmem' and sw & cr:
            n = max(n, 5)
        if c.kind in ('salu', 'branch', 'smem') and sw & cr:
            n = max(n, 1)
        if c.kind in ('vmem', 'ds') and p.op.startswith(TRANS) and vw & cr:
            n = max(n, 1)
    elif p.kind == 'salu':
        if ('s', 'm0') in pw and c.lds_dma:
            n = max(n, 1)
    elif p.kind == 'vmem':
        if p.wide and set(p.wide) & cw:
            n = max(n, 2 if c.kind == 'valu' else 1)
    return n


def _worst(p):
    if p.kind == 'mfma':
        return p.mf['p'] + 4
    if p.kind == 'valu':
        return 5 if any(r[0] == 's' for r in p.wr) else 2
    if p.kind == 'salu' and ('s', 'm0') in p.wr:
        return 1
    if p.kind == 'vmem' and p.wide:
        return 2
    return 0


def insert_nops(ins):
    out = []
    hist = []
    pos = 0
    for i in ins:
        if i.kind == 'dir':
            out.append(i); continue
        pad = 0
        if i.kind in ('label', 'branch'):
            own = 1 if i.kind == 'branch' else 0
            for q, p in hist:
                pad = max(pad, _worst(p) - (pos - q - 1) - own)
        if i.kind != 'label':
            for q, p in hist:
                pad = max(pad, _need(p, i) - (pos - q - 1))
        while pad > 0:
            k = min(pad, 16)
            out.append(Ins(f"s_nop {k-1}"))
            pos += k; pad -= k
        out.append(i)
        if i.kind == 'label':
            continue
        if i.kind == 'nop':
            pos += int(i.text.split()[1]) + 1
        else:
            hist.append((pos, i))
            pos += 1
        hist = [(q, p) for q, p in hist if pos - q <= 24]
    return out


def finalize(code):
    ins = flat(code.ins)
    ins = insert_waits(ins)
    ins = insert_nops(ins)
    return "\n".join(("" if i.kind in ('label',) else "  ") + i.text for i in ins)


def vr(a, n=1, f='v'):
    return f"{f}{a}" if n == 1 else f"{f}[{a}:{a+n-1}]"


def ar(a, n=1):
    return vr(a, n, 'a')


def sr(a, n=1):
    return vr(a, n, 's')
```

```python
import sys, struct
from dsl import *

NAME = "sequential_preLN__sliding_block__dense_activation_silu__prompt"

QK_OFF = 0
V_OFF = QK_OFF + 32 * 163840
O_OFF = V_OFF + 64 * 40960
H_OFF = O_OFF + 32 * 81920
HST_OFF = H_OFF + 128 * 20480
H1_OFF = HST_OFF + 128 * 1024
WO_OFF = H1_OFF + 128 * 57344
W1_OFF = WO_OFF + 8 * 102400
W2_OFF = W1_OFF + 16 * 143360
FL_OFF = W2_OFF + 8 * 286720
F1_OFF = FL_OFF
F2_OFF = FL_OFF + 4096
F3_OFF = FL_OFF + 3 * 4096
F4_OFF = FL_OFF + 5 * 4096
FW_OFF = FL_OFF + 7 * 4096
EP_OFF = FL_OFF + 8 * 4096
ST_OFF = FL_OFF + 16 * 4096
WS_SIZE = ST_OFF + 256 * 4 * 128

TAGC = 0x9E3779B8
SPIN_MAX = 200000


def f2u(x):
    return struct.unpack('<I', struct.pack('<f', x))[0]


sX, sWQ, sWS, sKV, sOUT, sRP = 4, 8, 12, 16, 20, 24
sDBG, sWO, sW1, sW2 = 28, 30, 32, 34
sW, sTAG, sRB1, sCT, sU, sNB, sRB, sFB = 36, 37, 38, 39, 40, 41, 42, 43
sHI = 44
sMASK = 46
sT = 48
sST = 64
sTM = 96


class Gen:
    def __init__(self, opt):
        self.o = opt
        self.c = Code()
        self.nst = 0
        self.stamp_names = []
        self.lab = 0

    def label(self, base):
        self.lab += 1
        return f"L{base}_{self.lab}"

    def stamp(self, name, idx=None):
        if not self.o.get('stamps'):
            return
        if name in self.stamp_names:
            idx = self.stamp_names.index(name)
        else:
            idx = len(self.stamp_names)
            self.stamp_names.append(name)
        assert idx < 24
        c = self.c
        c(f"{'s_memtime' if self.o.get('cyc') else 's_memrealtime'} s[{sTM}:{sTM+1}]")
        c("s_waitcnt lgkmcnt(0)")
        c(f"s_mov_b32 s{sST+idx}, s{sTM}")

    def dump_stamps(self):
        if not self.o.get('stamps'):
            return
        c = self.c
        c(f"s_lshl_b32 s{sT}, s2, 2")
        c(f"s_add_u32 s{sT}, s{sT}, s{sW}")
        c(f"s_lshl_b32 s{sT}, s{sT}, 7")
        c(f"s_add_u32 s{sT}, s{sT}, {ST_OFF}")
        c("v_mov_b32 v2, 0")
        c("s_mov_b64 exec, 1")
        for i in range(0, 32, 4):
            if i >= len(self.stamp_names):
                break
            for j in range(4):
                c(f"v_mov_b32 v{4+j}, s{sST+i+j}")
            c(f"buffer_store_dwordx4 v[4:7], v2, s[{sWS}:{sWS+3}], s{sT} offen offset:{i*4}")
        c("s_mov_b64 exec, -1")

    def prologue(self):
        c, o = self.c, self.o
        if o.get('stamps'):
            for i in range(24):
                c(f"s_mov_b32 s{sST+i}, 0")
        c("s_cmp_ge_u32 s2, 256")
        c("s_cbranch_scc1 Lend")
        c(f"s_load_dwordx2 s[{sX}:{sX+1}], s[0:1], 0")
        c(f"s_load_dwordx2 s[{sWQ}:{sWQ+1}], s[0:1], 8")
        c(f"s_load_dwordx2 s[{sWS}:{sWS+1}], s[0:1], 64")
        c(f"s_load_dwordx2 s[{sWO}:{sWO+1}], s[0:1], 16")
        c(f"s_load_dwordx4 s[{sW1}:{sW1+3}], s[0:1], 32")
        c(f"s_load_dwordx2 s[{sOUT}:{sOUT+1}], s[0:1], 48")
        c(f"s_load_dwordx2 s[{sDBG}:{sDBG+1}], s[0:1], 56")
        c(f"s_getpc_b64 s[{sT}:{sT+1}]")
        c(f"s_lshr_b32 s{sT+2}, s2, 3")
        c(f"s_lshl_b32 s{sT+2}, s{sT+2}, 11")
        c("v_and_b32 v2, 15, v0")
        c(f"v_lshl_add_u32 v2, v2, 7, s{sT+2}")
        c("v_min_u32 v2, Lcode_end-Lpc0-256, v2")
        c("v_cmp_gt_u32 vcc, 16, v0")
        c(f"s_and_saveexec_b64 s[{sT+4}:{sT+5}], vcc")
        c("s_cbranch_execz Lpc0")
        c.cond(True)
        c(f"global_load_dword v255, v2, s[{sT}:{sT+1}]")
        c.ins[-1].wr = []
        c.cond(False)
        c("Lpc0:")
        c("s_mov_b64 exec, -1")
        c("v_and_b32 v1, 63, v0")
        c("v_lshrrev_b32 v2, 6, v0")
        c(f"v_readfirstlane_b32 s{sW}, v2")
        c(f"s_mov_b32 s{sHI}, 0")
        c(f"s_mov_b32 s{sHI+1}, -1")
        c(f"s_mov_b32 s{sMASK}, 0xffff0000")
        c(f"s_and_b32 s{sT}, s2, 7")
        c(f"s_lshr_b32 s{sT+1}, s2, 3")
        if o.get('p1map', 'B') == 'A':
            c(f"s_lshr_b32 s{sRB1}, s{sT+1}, 4")
            c(f"s_lshl1_add_u32 s{sRB1}, s{sT}, s{sRB1}")
            c(f"s_and_b32 s{sCT}, s{sT+1}, 15")
        else:
            c(f"s_and_b32 s{sRB1}, s{sT}, 1")
            c(f"s_and_b32 s{sT+2}, s{sT+1}, 7")
            c(f"s_lshl3_add_u32 s{sRB1}, s{sRB1}, s{sT+2}")
            c(f"s_lshr_b32 s{sCT}, s{sT}, 1")
            c(f"s_lshr_b32 s{sT+2}, s{sT+1}, 3")
            c(f"s_lshl2_add_u32 s{sCT}, s{sCT}, s{sT+2}")
        c(f"s_lshr_b32 s{sU}, s{sT+1}, 3")
        c(f"s_lshl2_add_u32 s{sU}, s{sT}, s{sU}")
        c(f"s_and_b32 s{sNB}, s{sT+1}, 7")
        c(f"s_lshr_b32 s{sRB}, s{sU}, 1")
        c(f"s_and_b32 s{sFB}, s{sT+1}, 15")
        for r, size in ((sX, 2048 * 1280), (sWQ, 640 * 3840), (sWS, WS_SIZE), (sOUT, 2048 * 1280)):
            c(f"s_mov_b32 s{r+2}, {size}")
            c(f"s_mov_b32 s{r+3}, 0x20000")

    NS = 3
    P1_WB = 3 * 16384
    P1_EX = 6 * 16384
    vXD, vWD, vXA, vWA, vSEL, vSQ, vTMP, vRS, vCS, vACC, vFR = 2, 6, 10, 14, 22, 26, 28, 36, 44, 64, 128
    sKC, sKX, sKW, sW4 = sT + 8, sT + 9, sT + 10, sT + 11

    def p1_setup(self):
        c, o = self.c, self.o
        t = self.vTMP
        if o.get('p1map', 'B') == 'A':
            c(f"s_and_b32 s{sT}, s{sRB1}, 1")
            c(f"s_mul_i32 s{sT}, s{sT}, 5")
            c(f"s_mul_i32 s{sT+1}, s{sCT}, 43")
            c(f"s_lshr_b32 s{sT+1}, s{sT+1}, 6")
            c(f"s_add_u32 s{self.sKC}, s{sT}, s{sT+1}")
        else:
            c(f"s_and_b32 s{sT}, s{sRB1}, 7")
            c(f"s_and_b32 s{sT+1}, s{sCT}, 3")
            c(f"s_lshl1_add_u32 s{sT}, s{sT+1}, s{sT}")
            c(f"s_mul_i32 s{sT}, s{sT}, 5")
            c(f"s_lshr_b32 s{self.sKC}, s{sT}, 2")
        if o.get('norot'):
            c(f"s_mov_b32 s{self.sKC}, 0")
        c(f"s_cmp_ge_u32 s{self.sKC}, 10")
        c(f"s_cselect_b32 s{sT}, 10, 0")
        c(f"s_sub_u32 s{self.sKC}, s{self.sKC}, s{sT}")
        c(f"s_lshl_b32 s{self.sW4}, s{sW}, 12")
        c(f"s_lshl_b32 s{sT}, s{sRB1}, 7")
        c(f"s_lshl_b32 s{sT+1}, s{sW}, 5")
        c(f"s_add_u32 s{sT}, s{sT}, s{sT+1}")
        c(f"v_lshrrev_b32 v{t}, 3, v1")
        c(f"v_add_u32 v{t}, s{sT}, v{t}")
        c(f"v_mul_u32_u24 v{t}, 1280, v{t}")
        c(f"v_lshrrev_b32 v{t+1}, 4, v1")
        c(f"v_and_b32 v{t+2}, 7, v1")
        c(f"v_xor_b32 v{t+2}, v{t+2}, v{t+1}")
        c(f"v_lshl_add_u32 v{self.vXD}, v{t+2}, 4, v{t}")
        c(f"v_xor_b32 v{t+3}, 64, v{self.vXD}")
        c(f"v_add_u32 v{self.vXD+1}, {10240-1024}, v{t+3}")
        c(f"v_add_u32 v{self.vXD+2}, {2*(10240-1024)}, v{self.vXD}")
        c(f"v_add_u32 v{self.vXD+3}, {3*(10240-1024)}, v{t+3}")
        c(f"s_lshl_b32 s{sT}, s{sW}, 4")
        c(f"v_add_u32 v{t}, s{sT}, v{t+1}")
        c(f"v_mul_u32_u24 v{t}, 3840, v{t}")
        c(f"s_lshl_b32 s{sT}, s{sCT}, 8")
        c(f"v_add_u32 v{t}, s{sT}, v{t}")
        c(f"v_and_b32 v{t+2}, 15, v1")
        c(f"v_lshlrev_b32 v{t+3}, 2, v{t+1}")
        c(f"v_xor_b32 v{t+2}, v{t+2}, v{t+3}")
        c(f"v_lshl_add_u32 v{self.vWD}, v{t+2}, 4, v{t}")
        for j in range(1, 4):
            c(f"v_add_u32 v{self.vWD+j}, {j*(4*3840-1024)}, v{self.vWD}")

    def p1_dma(self, s):
        ld = self.o.get('p1ld', '')
        slot = s % self.NS
        items = []
        pre = []
        if s > 0:
            pre += [I(f"s_add_u32 s{self.sKC}, s{self.sKC}, 1"),
                    I(f"s_cmp_eq_u32 s{self.sKC}, 10"),
                    I(f"s_cselect_b32 s{self.sKC}, 0, s{self.sKC}")]
        pre += [I(f"s_lshl_b32 s{self.sKX}, s{self.sKC}, 7"),
                I(f"s_add_u32 m0, s{self.sW4}, {slot*16384}")]
        for j in range(4):
            d = I(f"buffer_load_dwordx4 v{self.vXD+j}, s[{sX}:{sX+3}], s{self.sKX} offen offset:{j*1024} {ld} lds")
            items.append((pre if j == 0 else []) + [d])
        pre = [I(f"s_mul_i32 s{self.sKW}, s{self.sKC}, {64*3840}"),
               I(f"s_add_u32 m0, s{self.sW4}, {self.P1_WB + slot*16384}")]
        for j in range(4):
            d = I(f"buffer_load_dwordx4 v{self.vWD+j}, s[{sWQ}:{sWQ+3}], s{self.sKW} offen offset:{j*1024} {ld} lds")
            items.append((pre if j == 0 else []) + [d])
        return items, d

    def p1_setup2(self):
        c = self.c
        t = self.vTMP
        c(f"s_lshr_b32 s{sT}, s{sW}, 1")
        c(f"s_and_b32 s{sT+1}, s{sW}, 1")
        c(f"v_and_b32 v{t}, 31, v1")
        c(f"v_lshlrev_b32 v{t}, 7, v{t}")
        c(f"s_lshl_b32 s{sT+2}, s{sT}, 13")
        c(f"v_add_u32 v{t}, s{sT+2}, v{t}")
        c(f"v_lshrrev_b32 v{t+1}, 5, v1")
        c(f"v_bfe_u32 v{t+2}, v1, 1, 3")
        c(f"v_xor_b32 v{t+2}, v{t+2}, v{t+1}")
        c(f"s_lshl_b32 s{sT+2}, s{sW}, 1")
        c(f"v_xor_b32 v{t+2}, s{sT+2}, v{t+2}")
        c(f"v_lshl_add_u32 v{self.vXA}, v{t+2}, 4, v{t}")
        for p in range(1, 4):
            c(f"v_xor_b32 v{self.vXA+p}, {p*32}, v{self.vXA}")
        c(f"v_bfe_u32 v{t+2}, v1, 2, 2")
        c(f"v_lshl_add_u32 v{t}, v{t+1}, 3, v{t+2}")
        c(f"v_lshlrev_b32 v{t}, 8, v{t}")
        c(f"s_lshl_b32 s{sT+2}, s{sT+1}, 1")
        c(f"v_xor_b32 v{t+2}, s{sT+2}, v{t+2}")
        c(f"v_lshl_add_u32 v{t}, v{t+2}, 6, v{t}")
        c(f"v_bfe_u32 v{t+2}, v1, 4, 1")
        c(f"v_lshl_add_u32 v{t}, v{t+2}, 5, v{t}")
        c(f"v_and_b32 v{t+2}, 3, v1")
        c(f"v_lshl_add_u32 v{t}, v{t+2}, 3, v{t}")
        c(f"v_add_u32 v{t}, s{self.sW4}, v{t}")
        for b in range(2):
            for p in range(4):
                c(f"v_xor_b32 v{self.vWA+4*b+p}, {p*4096 + b*64}, v{t}")
                c(f"v_add_u32 v{self.vWA+4*b+p}, {self.P1_WB}, v{self.vWA+4*b+p}")
        c(f"v_lshrrev_b32 v{t}, 2, v1")
        c(f"v_xor_b32 v{t}, v{t}, v1")
        c(f"v_and_b32 v{t}, 4, v{t}")
        c(f"v_cmp_eq_u32 vcc, 0, v{t}")
        c(f"v_mov_b32 v{t}, 0x3f803f80")
        for j in range(4):
            c(f"v_cndmask_b32 v{self.vSEL+j}, 0, v{t}, vcc")
        c(f"v_mov_b32 v{self.vSQ}, 0")
        c(f"v_mov_b32 v{self.vSQ+1}, 0")

    def p1_reads(self, s, p):
        slot = s % self.NS
        fr = self.vFR + 16 * p
        X = lambda a: I(f"ds_read_b128 {vr(fr+4*a, 4)}, v{self.vXA+p} offset:{slot*16384 + a*4096}")
        Wt = lambda b, t: I(f"ds_read_b64_tr_b16 {vr(fr+8+4*b+2*t, 2)}, v{self.vWA+4*b+p} offset:{slot*16384 + t*1024}")
        return [X(0), Wt(0, 0), Wt(0, 1), Wt(1, 0), Wt(1, 1), X(1)]

    def p1_loop(self, isv, h0, h1):
        c = self.c
        hd = {0: h0, 1: h1}
        c.wait(h0)
        c("s_barrier")
        self.stamp("b0")
        c.add(self.p1_reads(0, 0))
        dma = []
        if True:
            dma, hd[2] = self.p1_dma(2)
            c.add(dma[:2]); dma = dma[2:]
        t = self.vTMP
        for s in range(10):
            if self.o.get('stagestamps'):
                self.stamp(f"s{s}")
            for p in range(4):
                fr = self.vFR + 16 * p
                first = (s == 0 and p == 0)
                M = []
                for a, b in ((0, 0), (0, 1), (1, 1), (1, 0)):
                    d = vr(self.vACC + 32 * a + 16 * b, 16)
                    xa, wb = vr(fr + 4 * a, 4), vr(fr + 8 + 4 * b, 4)
                    A, B = (xa, wb) if isv else (wb, xa)
                    M.append(I(f"v_mfma_f32_32x32x16_bf16 {d}, {A}, {B}, {0 if first else d}"))
                k = p & 1
                xs = self.vFR + 16 * (p & 2) + 4 * k
                ws = self.vFR + 16 * (p >> 1) + 8 + 4 * k
                d = vr(self.vRS + 4 * k, 4)
                M.append(I(f"v_mfma_f32_16x16x32_bf16 {d}, {vr(self.vSEL,4)}, {vr(xs,4)}, {0 if (s == 0 and p < 2) else d}"))
                d = vr(self.vCS + 4 * k, 4)
                M.append(I(f"v_mfma_f32_16x16x32_bf16 {d}, {vr(self.vSEL,4)}, {vr(ws,4)}, {0 if (s == 0 and p < 2) else d}"))
                V = []
                for j in range(4):
                    V += [I(f"v_lshlrev_b32 v{t+2*(j&1)}, 16, v{xs+j}"),
                          I(f"v_and_b32 v{t+1+2*(j&1)}, s{sMASK}, v{xs+j}"),
                          I(f"v_fmac_f32 v{self.vSQ+k}, v{t+2*(j&1)}, v{t+2*(j&1)}"),
                          I(f"v_fmac_f32 v{self.vSQ+k}, v{t+1+2*(j&1)}, v{t+1+2*(j&1)}")]
                if self.o.get('nov') and s > 0:
                    V = [[] for _ in V]
                if self.o.get('nom') and s > 0:
                    M[4] = []; M[5] = []
                bar = []
                if p < 3:
                    R = self.p1_reads(s, p + 1)
                elif s < 9:
                    R = self.p1_reads(s + 1, 0)
                    bar = [W(hd[s + 1]), I("s_waitcnt lgkmcnt(0)"), I("s_barrier")]
                    if s + 3 < 10:
                        dma, hd[s + 3] = self.p1_dma(s + 3)
                    else:
                        dma = self.p1_tail_fill(s)
                else:
                    R = []
                D = dma[:2]; dma = dma[2:]
                D = D + [[]] * (2 - len(D))
                gaps = [bar + R[:4] + V[:1], R[4:] + V[1:4], V[4:8] + [D[0]], V[8:12] + [D[1]], V[12:14], V[14:16]]
                for m, g in zip(M, gaps):
                    c.add(m); c.add(g)

    def p1_tail_fill(self, s):
        return self.rp_dma() if s == 7 else []

    def p1_epilogue(self, isv):
        c, o = self.c, self.o
        t = self.vTMP
        st = o.get('st', 'sc1')
        EX = self.P1_EX
        c(f"s_lshr_b32 s{sT}, s{sW}, 1")
        c(f"s_and_b32 s{sT+1}, s{sW}, 1")
        c(f"s_lshl_b32 s{sT+2}, s{sW}, 10")
        c(f"s_add_u32 s{sT+2}, s{sT+2}, {EX}")
        c(f"v_lshl_add_u32 v{t}, v1, 3, s{sT+2}")
        c(f"v_lshl_add_u32 v{t+1}, v1, 2, s{sT+2}")
        c(f"v_permlane32_swap_b32 v{self.vSQ}, v{self.vSQ+1}")
        c(f"v_add_f32 v{self.vSQ+1}, v{self.vSQ}, v{self.vSQ+1}")
        c(f"v_cndmask_b32 v{self.vSQ}, v{self.vRS}, v{self.vRS+4}, s[{sHI}:{sHI+1}]")
        c(f"ds_write_b64 v{t}, v[{self.vSQ}:{self.vSQ+1}]")
        c(f"v_cndmask_b32 v{self.vCS}, v{self.vCS}, v{self.vCS+4}, s[{sHI}:{sHI+1}]")
        c(f"ds_write_b32 v{t+1}, v{self.vCS} offset:512")
        c(f"v_xor_b32 v{t}, 1024, v{t}")
        c(f"v_xor_b32 v{t+1}, 2048, v{t+1}")
        c(f"v_lshrrev_b32 v{t+4}, 5, v1")
        c(f"s_lshl_b32 s{sT+4}, s{sW}, 9")
        c(f"s_add_u32 s{sT+4}, s{sT+4}, {EX+4096}")
        c(f"v_lshl_add_u32 v{t+6}, v1, 2, s{sT+4}")
        c(f"v_lshl_add_u32 v{t+5}, v{t+4}, 4, s{sT+4}")
        c("s_waitcnt lgkmcnt(0)")
        c("s_barrier")
        self.stamp("e_bar")
        c(f"ds_read_b32 v{self.vCS+1}, v{t+1} offset:512")
        c(f"ds_read_b64 v[{t+2}:{t+3}], v{t}")
        fr = self.vFR
        c(f"v_add_f32 v{self.vCS}, v{self.vCS}, v{self.vCS+1}")
        if not isv:
            c(f"ds_write_b32 v{t+6}, v{self.vCS}")
            for b in range(2):
                for j in range(4):
                    c(f"ds_read_b128 {vr(fr+16*b+4*j, 4)}, v{t+5} offset:{(32*b+8*j)*4}")
        else:
            c(f"v_mov_b32 v{self.vCS+1}, v{self.vCS}")
            c(f"v_permlane32_swap_b32 v{self.vCS}, v{self.vCS+1}")
        c(f"v_pk_add_f32 v[{t+2}:{t+3}], v[{t+2}:{t+3}], v[{self.vSQ}:{self.vSQ+1}]")
        c(f"v_mul_f32 v{t+2}, {hex(f2u(-1.0/640))}, v{t+2}")
        c(f"v_mul_f32 v{t+3}, {hex(f2u(1.0/640))}, v{t+3}")
        c(f"v_fma_f32 v{t+3}, -v{t+2}, v{t+2}, v{t+3}")
        c(f"v_max_f32 v{t+3}, 0, v{t+3}")
        c(f"v_add_f32 v{t+3}, {hex(f2u(1e-5))}, v{t+3}")
        c(f"v_rsq_f32 v{t+3}, v{t+3}")
        stores = []
        self.stamp("e_rs")
        if not isv:
            qs = (20 ** -0.5) * 1.4426950408889634
            c(f"s_cmp_lt_u32 s{sCT}, 5")
            c(f"s_cselect_b32 s{sT+4}, {hex(f2u(qs))}, 1.0")
            c(f"v_mul_f32 v{t+3}, s{sT+4}, v{t+3}")
            c(f"v_mov_b32 v{t}, v{t+2}")
            c(f"v_mov_b32 v{t+1}, v{t+3}")
            c(f"v_permlane32_swap_b32 v{t}, v{t+2}")
            c(f"v_permlane32_swap_b32 v{t+1}, v{t+3}")
            c(f"s_lshl1_add_u32 s{sT+4}, s{sRB1}, s{sT}")
            c(f"s_mul_i32 s{sT+4}, s{sT+4}, 163840")
            c(f"s_lshl1_add_u32 s{sT+5}, s{sCT}, s{sT+1}")
            c(f"s_lshl_b32 s{sT+5}, s{sT+5}, 13")
            c(f"s_add_u32 s{sT+4}, s{sT+4}, s{sT+5}")
            c(f"s_add_u32 s{sT+5}, s{sT+4}, 4096")
            c(f"v_lshlrev_b32 v{t+4}, 4, v1")
            ob = fr + 32
            for b in range(2):
                for j in range(4):
                    out = ob + 16 * b + 4 * j
                    for a in range(2):
                        for q in range(2):
                            r = self.vACC + 32 * a + 16 * b + 4 * j + 2 * q
                            cs = fr + 16 * b + 4 * j + 2 * q
                            c(f"v_pk_fma_f32 {vr(r,2)}, {vr(cs,2)}, {vr(t+2*a,2)}, {vr(r,2)} op_sel_hi:[1,0,1]")
                    for a in range(2):
                        for q in range(2):
                            r = self.vACC + 32 * a + 16 * b + 4 * j + 2 * q
                            c(f"v_pk_mul_f32 {vr(r,2)}, {vr(r,2)}, {vr(t+2*a,2)} op_sel:[0,1] op_sel_hi:[1,1]")
                    for a in range(2):
                        for q in range(2):
                            r = self.vACC + 32 * a + 16 * b + 4 * j + 2 * q
                            c(f"v_cvt_pk_bf16_f32 v{out+2*a+q}, v{r}, v{r+1}")
                    stores.append(c(f"buffer_store_dwordx4 {vr(out,4)}, v{t+4}, s[{sWS}:{sWS+3}], s{sT+4+b} offen offset:{j*1024} {st}"))
        else:
            c(f"ds_write_b32 v{t+6}, v{t+2}")
            c(f"ds_write_b32 v{t+6}, v{t+3} offset:256")
            nm, rs = fr, fr + 32
            for a in range(2):
                for j in range(4):
                    c(f"ds_read_b128 {vr(nm+16*a+4*j, 4)}, v{t+5} offset:{(32*a+8*j)*4}")
                    c(f"ds_read_b128 {vr(rs+16*a+4*j, 4)}, v{t+5} offset:{256+(32*a+8*j)*4}")
            c(f"s_lshl1_add_u32 s{sT+4}, s{sRB1}, s{sT}")
            c(f"s_mul_i32 s{sT+4}, s{sT+4}, 81920")
            c(f"s_lshl1_add_u32 s{sT+5}, s{sCT}, s{sT+1}")
            c(f"s_lshl_b32 s{sT+5}, s{sT+5}, 10")
            c(f"s_add_u32 s{sT+4}, s{sT+4}, s{sT+5}")
            c(f"s_add_u32 s{sT+4}, s{sT+4}, {V_OFF - 10*2048}")
            for q in range(1, 4):
                c(f"s_add_u32 s{sT+4+q}, s{sT+4}, {q*20480}")
            c(f"v_mul_u32_u24 v{t+4}, {10240-512}, v{t+4}")
            c(f"v_lshl_add_u32 v{t+4}, v1, 4, v{t+4}")
            ob = 192
            k = 0
            for a in range(2):
                for s in range(2):
                    for b in range(2):
                        out = ob + 4 * k; k += 1
                        sel = "op_sel_hi:[1,0,1]" if b == 0 else "op_sel:[0,1,0] op_sel_hi:[1,1,1]"
                        for q in range(4):
                            r = self.vACC + 32 * a + 16 * b + 8 * s + 2 * q
                            c(f"v_pk_fma_f32 {vr(r,2)}, {vr(nm+16*a+8*s+2*q,2)}, {vr(self.vCS,2)}, {vr(r,2)} {sel}")
                        for q in range(4):
                            r = self.vACC + 32 * a + 16 * b + 8 * s + 2 * q
                            c(f"v_pk_mul_f32 {vr(r,2)}, {vr(r,2)}, {vr(rs+16*a+8*s+2*q,2)}")
                        for q in range(4):
                            r = self.vACC + 32 * a + 16 * b + 8 * s + 2 * q
                            c(f"v_cvt_pk_bf16_f32 v{out+q}, v{r}, v{r+1}")
                        stores.append(c(f"buffer_store_dwordx4 {vr(out,4)}, v{t+4}, s[{sWS}:{sWS+3}], s{sT+4+2*a+s} offen offset:{b*512} {st}"))
        return stores

    def phase1(self):
        c = self.c
        self.p1_setup()
        c(f"s_cmp_eq_u32 s{sCT}, 15")
        c("s_waitcnt lgkmcnt(0)")
        c("s_cbranch_scc1 Lp1_idle")
        c(".save p0")
        self.stamp("start")
        d0, h0 = self.p1_dma(0)
        c.add(d0)
        d1, h1 = self.p1_dma(1)
        c.add(d1[:4])
        self.tag_load()
        self.p1_setup2()
        c.add(d1[4:])
        self.rp_setup()
        c(f"s_cmp_ge_u32 s{sCT}, 10")
        c("s_cbranch_scc1 Lp1_v")
        c(".save p1")
        self.p1_loop(False, h0, h1)
        self.stamp("p1loop")
        self.p1_epilogue(False)
        c("s_branch Lp1_done")
        c("Lp1_v:")
        c(".restore p1")
        self.p1_loop(True, h0, h1)
        self.stamp("p1loop")
        self.p1_epilogue(True)
        c("s_branch Lp1_done")
        c("Lp1_idle:")
        c(".restore p0")
        self.tag_load()
        self.rp_setup()
        c.add(self.rp_dma())
        c("Lp1_done:")
        self.stamp("p1epi")
        c("s_waitcnt vmcnt(0) lgkmcnt(0)")
        self.stamp("p1drain")
        c("s_barrier")
        c(f"s_lshl_b32 s{sT}, s{sRB1}, 7")
        c(f"s_lshl2_add_u32 s{sT}, s{sCT}, s{sT}")
        c(f"s_add_u32 s{sT}, s{sT}, {F1_OFF}")
        self.flag_store(sT, fast=False)

    def tag_load(self):
        c = self.c
        c(f"s_add_u32 s90, s{sWS}, {EP_OFF}")
        c(f"s_addc_u32 s91, s{sWS+1}, 0")
        c(f"s_load_dword s{sTAG}, s[90:91], 0")

    def flag_store(self, so, fast=True, wave=0):
        c = self.c
        lab = self.label("fs")
        c(f"s_cmp_lg_u32 s{sW}, {wave}")
        c(f"s_cbranch_scc1 {lab}")
        c.cond(True)
        c(f"v_mov_b32 v254, s{sTAG}")
        c("s_mov_b64 exec, 1")
        if fast:
            c(f"buffer_store_dword v254, off, s[{sWS}:{sWS+3}], s{so}")
            c(f"s_add_u32 s{so}, s{so}, 4096")
        c(f"buffer_store_dword v254, off, s[{sWS}:{sWS+3}], s{so} sc1")
        c("s_mov_b64 exec, -1")
        c.cond(False)
        c(f"{lab}:")

    def poll_loop(self, va, so, fast, lab_done):
        c = self.c
        L = self.label("pl")
        a, n, g = sT + 12, sT + 13, sT + 14
        c(f"s_mov_b32 s{n}, 0")
        c(f"s_mov_b64 s[{g}:{g+1}], 0")
        c(f"{L}:")
        if fast:
            c(f"s_and_b32 s{a}, s{n}, 7")
            c(f"s_cmp_eq_u32 s{a}, 7")
            c(f"s_cselect_b32 s{a}, 4096, 0")
            c(f"s_add_u32 s{a}, s{a}, s{so}")
        c(f"buffer_load_dword v254, v{va}, s[{sWS}:{sWS+3}], s{a if fast else so} offen sc1")
        c(f"s_add_u32 s{n}, s{n}, 1")
        c("s_waitcnt vmcnt(0)")
        c(f"v_cmp_eq_u32 vcc, s{sTAG}, v254")
        c(f"s_or_b64 s[{g}:{g+1}], s[{g}:{g+1}], vcc")
        c(f"s_cmp_eq_u64 s[{g}:{g+1}], -1")
        c(f"s_cbranch_scc1 {lab_done}")
        c(f"s_cmp_lt_u32 s{n}, {SPIN_MAX}")
        c(f"s_cbranch_scc1 {L}")

    def flag_wait(self, va, so, fast=True, wave=1):
        c = self.c
        lab = self.label("fw")
        c(f"s_cmp_lg_u32 s{sW}, {wave}")
        c(f"s_cbranch_scc1 {lab}")
        c.cond(True)
        self.poll_loop(va, so, fast, lab)
        c.cond(False)
        c(f"{lab}:")
        c("s_barrier")

    def flag_check(self, vd, va, so):
        lab = self.label("fc")
        k = Code()
        old, self.c = self.c, k
        k(f"v_cmp_eq_u32 vcc, s{sTAG}, v{vd}")
        k("s_cmp_eq_u64 vcc, -1")
        k(f"s_cbranch_scc1 {lab}")
        k.cond(True)
        self.poll_loop(va, so, False, lab)
        k.cond(False)
        k(f"{lab}:")
        self.c = old
        return k.ins

    vRP = 52
    RP_LDS = 6 * 16384 + 8192
    sRPD, sRPF, sRPT = 98, 99, 100

    def rp_setup(self):
        c = self.c
        t = self.vTMP
        pitch, col, nch, mch, v0_, dm, dd, aa, lim, r0 = [sT + i for i in range(0, 8)] + [sT + 12, sT + 13]
        u = sT + 14
        Lw1, Lw2, Lno, Lgo = self.label("rp1"), self.label("rp2"), self.label("rpn"), self.label("rpg")
        c(f"s_mov_b32 s{sRP+3}, 0x20000")
        c(f"s_mov_b32 s{pitch}, 1280")
        c(f"s_mov_b32 s{nch}, 10")
        c(f"s_mov_b32 s{mch}, 6554")
        c(f"s_mov_b32 s{self.sRPT}, 1")
        c("s_cmp_ge_u32 s2, 120")
        c(f"s_cbranch_scc1 {Lw2}")
        c("s_cmp_ge_u32 s2, 40")
        c(f"s_cbranch_scc1 {Lw1}")
        c(f"s_mov_b32 s{sRP}, s{sWO}")
        c(f"s_mov_b32 s{sRP+1}, s{sWO+1}")
        c(f"s_mov_b32 s{sRP+2}, {640*1280}")
        c(f"s_lshr_b32 s{u}, s2, 1")
        c(f"s_and_b32 s{u+1}, s2, 1")
        c(f"s_mul_i32 s{r0}, s{u}, 52")
        c(f"s_lshr_b32 s{r0}, s{r0}, 8")
        c(f"s_mul_i32 s{dd}, s{r0}, 5")
        c(f"s_sub_u32 s{dd}, s{u}, s{dd}")
        c(f"s_mul_i32 s{r0}, s{r0}, 160")
        c(f"s_mul_i32 s{aa}, s{dd}, 40")
        c(f"s_cmp_eq_u32 s{dd}, 4")
        c(f"s_cselect_b32 s{aa}, 16, s{aa}")
        c(f"s_cselect_b32 s{dm}, 4, 1")
        c(f"s_cselect_b32 s{dd}, 4, 16")
        c(f"s_lshl_b32 s{dm}, s{dm}, 12")
        c(f"s_add_u32 s{r0}, s{r0}, s{aa}")
        c(f"s_mov_b32 s{aa}, 20")
        c(f"s_mov_b32 s{v0_}, 0")
        c(f"s_mov_b32 s{lim}, 64")
        c(f"s_lshl2_add_u32 s{col}, s{u+1}, s{sW}")
        c(f"s_mul_i32 s{self.sRPD}, s{col}, 20")
        c(f"s_add_u32 s{self.sRPD}, s{self.sRPD}, s{u}")
        c(f"s_mul_i32 s{self.sRPD}, s{self.sRPD}, 5120")
        c(f"s_add_u32 s{self.sRPD}, s{self.sRPD}, {WO_OFF}")
        c(f"s_mul_i32 s{col}, s{col}, 160")
        c(f"s_branch {Lgo}")
        c(f"{Lw1}:")
        c(f"s_mov_b32 s{sRP}, s{sW1}")
        c(f"s_mov_b32 s{sRP+1}, s{sW1+1}")
        c(f"s_mov_b32 s{sRP+2}, {640*3456}")
        c(f"s_mov_b32 s{pitch}, 3456")
        c(f"s_mov_b32 s{nch}, 14")
        c(f"s_mov_b32 s{mch}, 4682")
        c(f"s_mov_b32 s{self.sRPT}, 2")
        c(f"s_sub_u32 s{u}, s2, 40")
        c(f"s_and_b32 s{u+1}, s{u}, 3")
        c(f"s_lshr_b32 s{u}, s{u}, 2")
        c(f"s_lshl_b32 s{r0}, s{u}, 5")
        c(f"s_mov_b32 s{dm}, 0")
        c(f"s_mov_b32 s{dd}, 0")
        c(f"s_mov_b32 s{aa}, 0")
        c(f"s_mov_b32 s{v0_}, 0")
        c(f"s_mov_b32 s{lim}, 64")
        c(f"s_lshl2_add_u32 s{col}, s{u+1}, s{sW}")
        c(f"s_mul_i32 s{self.sRPD}, s{col}, 20")
        c(f"s_add_u32 s{self.sRPD}, s{self.sRPD}, s{u}")
        c(f"s_mul_i32 s{self.sRPD}, s{self.sRPD}, 7168")
        c(f"s_add_u32 s{self.sRPD}, s{self.sRPD}, {W1_OFF}")
        c(f"s_mul_i32 s{col}, s{col}, 216")
        c(f"s_and_b32 s{col}, s{col}, -16")
        c(f"s_add_u32 s{u+1}, s{u+1}, 2")
        c(f"s_branch {Lgo}")
        c(f"{Lw2}:")
        c(f"s_mov_b32 s{sRP}, s{sW2}")
        c(f"s_mov_b32 s{sRP+1}, s{sW2+1}")
        c("s_cmp_ge_u32 s2, 232")
        c(f"s_cselect_b32 s{sRP+2}, 0, {1728*1280}")
        c(f"s_cselect_b32 s{self.sRPT}, 0, 1")
        c(f"s_sub_u32 s{u}, s2, 120")
        c(f"s_and_b32 s{u+1}, s{u}, 1")
        c(f"s_lshr_b32 s{u}, s{u}, 1")
        c(f"s_mul_i32 s{r0}, s{u}, 18726")
        c(f"s_lshr_b32 s{r0}, s{r0}, 16")
        c(f"s_mul_i32 s{dm}, s{r0}, 112")
        c(f"s_lshl_b32 s{v0_}, s{u}, 5")
        c(f"s_sub_u32 s{v0_}, s{v0_}, s{dm}")
        c(f"s_mul_i32 s{r0}, s{r0}, 108")
        c(f"s_mov_b32 s{dm}, 586")
        c(f"s_mov_b32 s{dd}, 112")
        c(f"s_mov_b32 s{aa}, 108")
        c(f"s_mov_b32 s{lim}, 108")
        c(f"s_lshl2_add_u32 s{col}, s{u+1}, s{sW}")
        c(f"s_mul_i32 s{self.sRPD}, s{col}, 56")
        c(f"s_add_u32 s{self.sRPD}, s{self.sRPD}, s{u}")
        c(f"s_mul_i32 s{self.sRPD}, s{self.sRPD}, 5120")
        c(f"s_add_u32 s{self.sRPD}, s{self.sRPD}, {W2_OFF}")
        c(f"s_mul_i32 s{col}, s{col}, 160")
        c(f"s_add_u32 s{u+1}, s{u+1}, 6")
        c(f"{Lgo}:")
        c(f"s_lshl_b32 s{self.sRPF}, s{u+1}, 8")
        c(f"s_lshl2_add_u32 s{self.sRPF}, s{u}, s{self.sRPF}")
        c(f"s_add_u32 s{self.sRPF}, s{self.sRPF}, {FW_OFF}")
        assert all((v * 6554) >> 16 == v // 10 for v in range(448)) and all((v * 4682) >> 16 == v // 14 for v in range(448))
        assert all((v * 52) >> 8 == v // 5 for v in range(20))
        c(f"v_mov_b32 v{t+4}, 0x7fff0000")
        for j in range(7):
            d = self.vRP + j
            c(f"v_add_u32 v{t}, {64*j}, v1")
            c(f"v_mul_u32_u24 v{t+1}, s{mch}, v{t}")
            c(f"v_lshrrev_b32 v{t+1}, 16, v{t+1}")
            c(f"v_mul_u32_u24 v{t+2}, s{nch}, v{t+1}")
            c(f"v_sub_u32 v{t}, v{t}, v{t+2}")
            c(f"v_lshl_add_u32 v{t}, v{t}, 4, s{col}")
            c(f"v_cmp_gt_u32 s[{u}:{u+1}], 32, v{t+1}")
            c(f"v_add_u32 v{t+1}, s{v0_}, v{t+1}")
            if True:
                c(f"v_mul_u32_u24 v{t+2}, s{dm}, v{t+1}")
                c(f"v_lshrrev_b32 v{t+2}, 16, v{t+2}")
            c(f"v_mul_u32_u24 v{t+3}, s{dd}, v{t+2}")
            c(f"v_sub_u32 v{t+1}, v{t+1}, v{t+3}")
            c(f"v_cmp_gt_u32 vcc, s{lim}, v{t+1}")
            c(f"v_mad_u32_u24 v{t+1}, v{t+2}, s{aa}, v{t+1}")
            c(f"s_and_b64 vcc, vcc, s[{u}:{u+1}]")
            c(f"v_add_u32 v{t+1}, s{r0}, v{t+1}")
            c(f"v_mad_u32_u24 v{t}, v{t+1}, s{pitch}, v{t}")
            c(f"v_cndmask_b32 v{d}, v{t+4}, v{t}, vcc")
        c(f"s_add_u32 s{sTAG}, s{sTAG}, {TAGC}")

    def rp_dma(self):
        items = []
        for j in range(7):
            pre = [I(f"s_mul_i32 s{sT+12}, s{sW}, 7168")] if j == 0 else []
            items.append(pre + [I(f"s_add_u32 m0, s{sT+12}, {self.RP_LDS + 1024*j}"),
                                I(f"buffer_load_dwordx4 v{self.vRP+j}, s[{sRP}:{sRP+3}], 0 offen lds")])
        return items

    def rp_process(self):
        c = self.c
        st = self.o.get('st', 'sc1')
        Lend, L7 = self.label("rpe"), self.label("rp7")
        t, fr = 2, 64
        c(f"s_cmp_eq_u32 s{self.sRPT}, 0")
        c(f"s_cbranch_scc1 {Lend}")
        c(f"s_cmp_eq_u32 s{self.sRPT}, 2")
        c(f"s_cselect_b32 s{sT}, 14, 10")
        c(f"s_cselect_b32 s{sT+1}, 8, 0")
        c(f"s_lshl_b32 s{sT}, s{sT}, 4")
        c(f"s_lshl_b32 s{sT+2}, s{sW}, 3")
        c(f"s_and_b32 s{sT+1}, s{sT+1}, s{sT+2}")
        c(f"s_mul_i32 s{sT+2}, s{sW}, 7168")
        c(f"s_add_u32 s{sT+1}, s{sT+1}, s{sT+2}")
        c(f"s_add_u32 s{sT+1}, s{sT+1}, {self.RP_LDS}")
        c(f"v_lshrrev_b32 v{t}, 4, v1")
        c(f"v_bfe_u32 v{t+1}, v1, 2, 2")
        c(f"v_lshl_add_u32 v{t}, v{t}, 3, v{t+1}")
        c(f"v_mul_u32_u24 v{t}, s{sT}, v{t}")
        c(f"v_add_u32 v{t}, s{sT+1}, v{t}")
        c(f"s_lshl_b32 s{sT}, s{sT}, 2")
        c(f"v_and_b32 v{t+1}, 3, v1")
        c(f"v_lshl_add_u32 v{t+2}, v{t+1}, 4, v{t}")
        c(f"v_add_u32 v{t+3}, s{sT}, v{t+2}")
        c(f"v_lshl_add_u32 v{t+4}, v{t+1}, 3, v{t}")
        c(f"v_add_u32 v{t+5}, s{sT}, v{t+4}")
        c(f"v_lshlrev_b32 v{t+6}, 4, v1")
        c(f"s_add_u32 s{sT+3}, s{self.sRPD}, 4096")
        c(f"s_cmp_eq_u32 s{self.sRPT}, 2")
        c(f"s_cbranch_scc1 {L7}")
        c(".save rp")
        for nt in (5, 7):
            if nt == 7:
                c(f"{L7}:")
                c(".restore rp")
            for tl in range(nt):
                for q in range(2):
                    if tl < nt - 1:
                        c(f"ds_read_b64_tr_b16 {vr(fr+4*tl+2*q,2)}, v{t+2+q} offset:{(tl>>1)*64 + (tl&1)*8}")
                    else:
                        c(f"ds_read_b64_tr_b16 {vr(fr+4*tl+2*q,2)}, v{t+4+q} offset:{tl*32}")
            if nt == 7:
                c(f"v_and_b32 v{t}, 15, v1")
                c(f"v_cmp_gt_u32 vcc, 12, v{t}")
            for tl in range(nt):
                if tl == 6:
                    for q in range(4):
                        c(f"v_cndmask_b32 v{fr+24+q}, 0, v{fr+24+q}, vcc")
                so = self.sRPD if tl < 4 else sT + 3
                c(f"buffer_store_dwordx4 {vr(fr+4*tl,4)}, v{t+6}, s[{sWS}:{sWS+3}], s{so} offen offset:{(tl&3)*1024} {st}")
            if nt == 5:
                c(f"s_branch {Lend}")
        c(f"{Lend}:")

    def rp_flag(self):
        c = self.c
        lab = self.label("rpf")
        c(f"s_cmp_eq_u32 s{self.sRPT}, 0")
        c(f"s_cbranch_scc1 {lab}")
        self.flag_store(self.sRPF, fast=False, wave=2)
        c(f"{lab}:")

    vO, vK, vQ, vQ4, vZ, vCO, vCD, vS, vP = 32, 64, 124, 132, 136, 146, 162, 178, 226
    vL16, vL16m, vVA, vFWA, vFWD = 2, 3, 4, 5, 6
    aV, aWO = 0, 156
    sHEAD, sVM = 47, 88
    sKO, sVO = sT + 8, sT + 9
    sWOO, sW1O = sT + 10, sT + 11
    UNITS = sorted([(kt, 0) for kt in range(9)] + [(kt, 1) for kt in range(1, 10)])

    def attn_init(self):
        c = self.c
        t = 8
        c(f"s_lshl2_add_u32 s{self.sHEAD}, s{sNB}, s{sW}")
        c(f"s_mov_b32 s{self.sVM}, 0x000fffff")
        c(f"s_mov_b32 s{self.sVM+1}, 0x000fffff")
        c(f"s_mov_b32 s{sKV}, s{sWS}")
        c(f"s_mov_b32 s{sKV+1}, s{sWS+1}")
        c(f"s_mov_b32 s{sKV+2}, 0")
        c(f"s_mov_b32 s{sKV+3}, 0x20000")
        c(f"v_lshlrev_b32 v{self.vL16}, 4, v1")
        c(f"v_and_b32 v{self.vL16m}, 0x1f0, v{self.vL16}")
        c(f"v_lshrrev_b32 v{t}, 1, v1")
        c(f"v_xor_b32 v{t}, v{t}, v1")
        c(f"v_and_b32 v{t}, 4, v{t}")
        c(f"v_mul_u32_u24 v{t}, 48, v{t}")
        c(f"v_xor_b32 v{t}, v{t}, v{self.vL16m}")
        c(f"v_lshrrev_b32 v{t+1}, 5, v1")
        c(f"v_mul_u32_u24 v{t+2}, 10240, v{t+1}")
        c(f"v_add_u32 v{self.vVA}, v{t}, v{t+2}")
        for pi in range(5):
            c(f"s_cmp_ge_u32 s{sU}, {4-pi}")
            c(f"s_cselect_b32 s{sT}, 0x3f803f80, 0")
            c(f"v_mov_b32 v{t}, s{sT}")
            for j in range(16):
                c(f"v_accvgpr_write_b32 a{self.aV+16*pi+j}, v{t}")
        c(f"v_and_b32 v{t}, 31, v1")
        c(f"v_lshlrev_b32 v{t+1}, 2, v{t+1}")
        c(f"v_sub_u32 v{t}, v{t}, v{t+1}")
        c(f"v_mov_b32 v{t+2}, 0xff800000")
        for r in range(16):
            c(f"v_cmp_gt_i32 vcc, {8*(r>>2) + (r&3)}, v{t}")
            c(f"v_cndmask_b32 v{self.vCD+r}, 0, v{t+2}, vcc")
            c(f"v_xor_b32 v{self.vCO+r}, v{self.vCD+r}, v{t+2}")
        for r in (0, 1, 4, 5, 8, 9):
            c(f"v_mov_b32 v{self.vZ+r}, 0")
        c(f"v_and_b32 v{t}, 31, v1")
        c(f"v_min_u32 v{t}, 19, v{t}")
        c(f"s_lshr_b32 s{sT}, s{sNB}, 2")
        c(f"s_lshr_b32 s{sT+1}, s{sFB}, 2")
        c(f"s_add_u32 s{sT+1}, s{sT+1}, 2")
        c(f"v_mov_b32 v{t+1}, s{sT}")
        c(f"v_mov_b32 v{t+2}, s{sT+1}")
        c(f"v_cndmask_b32 v{t+1}, v{t+1}, v{t+2}, s[{sHI}:{sHI+1}]")
        c(f"v_lshlrev_b32 v{t+1}, 8, v{t+1}")
        c(f"v_lshl_add_u32 v{self.vFWA}, v{t}, 2, v{t+1}")
        c(f"v_lshrrev_b32 v{t}, 4, v1")
        c(f"v_min_u32 v{t}, 2, v{t}")
        c(f"v_sub_u32 v{t}, s{sRB}, v{t}")
        c(f"v_max_i32 v{t}, 0, v{t}")
        c(f"v_and_b32 v{t+1}, 15, v1")
        c(f"v_min_u32 v{t+1}, 14, v{t+1}")
        c(f"v_lshlrev_b32 v{t}, 7, v{t}")
        c(f"v_lshl_add_u32 v7, v{t+1}, 2, v{t}")

    def attn_kv_loads(self, pi):
        ld = self.o.get('ld', 'sc1')
        k = self.vK + 12 * pi
        R = f"s[{sKV}:{sKV+3}]"
        pre = [I(f"s_sub_u32 s{sT}, s{sU}, {4-pi}"),
               I(f"s_cselect_b32 s{sKV+2}, 0, {WS_SIZE}"),
               I(f"s_cselect_b32 s{sT}, 0, s{sT}"),
               I(f"s_mul_i32 s{self.sKO}, s{sT}, 163840"),
               I(f"s_mul_i32 s{self.sVO}, s{sT}, 81920"),
               I(f"s_add_u32 s{self.sKO}, s{self.sKO}, s{sT+6}"),
               I(f"s_add_u32 s{self.sVO}, s{self.sVO}, s{sT+7}")]
        K = [pre + [I(f"buffer_load_dwordx4 {vr(k,4)}, v{self.vL16}, {R}, s{self.sKO} offen {ld}")],
             [I(f"buffer_load_dwordx4 {vr(k+4,4)}, v{self.vL16}, {R}, s{self.sKO} offen offset:1024 {ld}")],
             [I(f"buffer_load_dwordx4 {vr(k+8,4)}, v{self.vL16m}, {R}, s{self.sKO} offen offset:2048 {ld}")]]
        V = []
        for T in range(2):
            g = [I(f"s_mov_b64 exec, s[{self.sVM}:{self.sVM+1}]")]
            for s in range(2):
                g.append(I(f"buffer_load_dwordx4 {ar(self.aV+16*pi+8*T+4*s,4)}, v{self.vVA}, {R}, s{self.sVO} offen {ld}"))
                g.append(I(f"s_add_u32 s{self.sVO}, s{self.sVO}, 20480"))
            g.append(I("s_mov_b64 exec, -1"))
            V.append(g)
        return K, V

    def attn_qk(self, u, dst):
        kt, T = self.UNITS[u]
        k = self.vK + 12 * (kt >> 1)
        cin = '0'
        if kt == T:
            cin = vr(self.vCO, 16)
        elif kt == 8 + T:
            cin = vr(self.vCD, 16)
        d = vr(dst, 16)
        z = self.vZ + 4 * T + (0 if kt & 1 else 2)
        return [I(f"v_mfma_f32_32x32x16_bf16 {d}, {vr(k+4*(kt&1),4)}, {vr(self.vQ+4*T,4)}, {cin}"),
                I(f"v_mfma_f32_32x32x16_bf16 {d}, {vr(k+8,4)}, {vr(z,4)}, {d}")]

    def attn_loop(self, fill, swaps):
        c = self.c
        n = len(self.UNITS)
        S = lambda u: self.vS + 16 * (u & 1)
        P = lambda u: self.vP + 8 * (u & 1)
        seen = set()

        def qk(u):
            kt = self.UNITS[u][0]
            pre = []
            if swaps and (kt >> 1) not in seen:
                seen.add(kt >> 1)
                k = self.vK + 12 * (kt >> 1)
                pre = [I(f"v_swap_b32 v{k+2}, v{k+4}"), I(f"v_swap_b32 v{k+3}, v{k+5}")]
            return pre, self.attn_qk(u, S(u))

        def pv(u, s):
            kt, T = self.UNITS[u]
            d = vr(self.vO + 16 * T, 16)
            first = (kt == T and s == 0)
            return I(f"v_mfma_f32_32x32x16_bf16 {d}, {ar(self.aV+8*kt+4*s,4)}, {vr(P(u)+4*s,4)}, {0 if first else d}")

        ex = lambda u, g: [I(f"v_exp_f32 v{S(u)+4*g+i}, v{S(u)+4*g+i}") for i in range(4)]
        cv = lambda u, g: [I(f"v_cvt_pk_bf16_f32 v{P(u)+2*g+i}, v{S(u)+4*g+2*i}, v{S(u)+4*g+2*i+1}") for i in range(2)]
        pre, m = qk(0)
        c.add(pre); c.add(m)
        for u in range(n + 1):
            f = list(fill.get(u, [])) + [[]] * 4
            pre, m = qk(u + 1) if u + 1 < n else ([], [[], []])
            if u > 0: c.add(pv(u - 1, 0))
            if u > 0: c.add(cv(u - 1, 3))
            c.add(pre)
            if u < n: c.add(ex(u, 0))
            c.add(f[0])
            c.add(m[0])
            if u < n: c.add(ex(u, 1)); c.add(cv(u, 0))
            c.add(f[1])
            c.add(m[1])
            if u < n: c.add(ex(u, 2)); c.add(cv(u, 1))
            c.add(f[2])
            if u > 0: c.add(pv(u - 1, 1))
            if u < n: c.add(ex(u, 3)); c.add(cv(u, 2))
            c.add(f[3])

    def wo_loads(self):
        ld = self.o.get('ld', 'sc1')
        items = []
        for i in range(25):
            pre = [I(f"s_add_u32 s{self.sWOO}, s{self.sWOO}, 4096")] if i and i % 4 == 0 else []
            items.append(pre + [I(f"buffer_load_dwordx4 {ar(self.aWO+4*i,4)}, v{self.vL16}, s[{sWS}:{sWS+3}], s{self.sWOO} offen offset:{(i&3)*1024} {ld}")])
        return items

    def w1_dma(self):
        ld = self.o.get('ld', 'sc1')
        items = []
        for i in range(35):
            pre = []
            if i == 0:
                pre = [I(f"s_mul_i32 m0, s{sW}, {35*1024}")]
            elif i % 4 == 0:
                pre = [I(f"s_add_u32 s{self.sW1O}, s{self.sW1O}, 4096"), I("s_add_u32 m0, m0, 4096")]
            items.append(pre + [I(f"buffer_load_dwordx4 v{self.vL16}, s[{sWS}:{sWS+3}], s{self.sW1O} offen offset:{(i&3)*1024} {ld} lds")])
        return items

    def attention(self):
        c, o = self.c, self.o
        ld, st = o.get('ld', 'sc1'), o.get('st', 'sc1')
        t = 8
        c(f"s_mul_i32 s{sT+5}, s{self.sHEAD}, 2560")
        c(f"s_add_u32 s{sT+6}, s{sT+5}, {QK_OFF + 160*512}")
        c(f"s_mul_i32 s{sT+7}, s{self.sHEAD}, 320")
        c(f"s_add_u32 s{sT+7}, s{sT+7}, {V_OFF}")
        c(f"s_mul_i32 s{sT+4}, s{sU}, 163840")
        c(f"s_add_u32 s{sT+5}, s{sT+5}, s{sT+4}")
        c(f"s_lshl2_add_u32 s{self.sWOO}, s{sNB}, s{sW}")
        c(f"s_mul_i32 s{self.sWOO}, s{self.sWOO}, 25600")
        c(f"s_add_u32 s{self.sWOO}, s{self.sWOO}, {WO_OFF}")
        c(f"s_lshl2_add_u32 s{self.sW1O}, s{sFB}, s{sW}")
        c(f"s_mul_i32 s{self.sW1O}, s{self.sW1O}, {35*1024}")
        c(f"s_add_u32 s{self.sW1O}, s{self.sW1O}, {W1_OFF}")
        c(f"s_mov_b32 s{sT+3}, {F1_OFF}")
        c("s_waitcnt vmcnt(0)")
        self.flag_wait(7, sT + 3, fast=False)
        self.stamp("s1")
        R = f"s[{sWS}:{sWS+3}]"
        q = self.vQ
        c(f"buffer_load_dwordx4 {vr(q,4)}, v{self.vL16}, {R}, s{sT+5} offen {ld}")
        c(f"buffer_load_dwordx4 {vr(q+4,4)}, v{self.vL16}, {R}, s{sT+5} offen offset:1024 {ld}")
        c(f"buffer_load_dwordx4 {vr(self.vQ4,4)}, v{self.vL16m}, {R}, s{sT+5} offen offset:2048 {ld}")
        kv = [self.attn_kv_loads(pi) for pi in range(5)]
        c.add(kv[0][0]); c.add(kv[0][1]); c.add(kv[1][0])
        self.rp_flag()
        c(f"s_mov_b32 s{sT+3}, {FW_OFF}")
        rest = kv[1][1] + kv[2][0] + kv[2][1] + kv[3][0] + kv[3][1] + kv[4][0] + kv[4][1]
        rest.append([I(f"buffer_load_dword v{self.vFWD}, v{self.vFWA}, {R}, s{sT+3} offen sc1")])
        fill = {}
        u = 0
        while rest:
            fill[u] = rest[:3]; rest = rest[3:]; u += 1
        u += 1
        fill[u] = [self.flag_check(self.vFWD, self.vFWA, sT + 3)]
        u += 1
        rest = self.wo_loads() + self.w1_dma()
        per = -(-len(rest) // ((18 - u) * 4))
        while rest:
            fill[u] = [rest[i * per:(i + 1) * per] for i in range(4)]; rest = rest[4 * per:]; u += 1
        c(f"v_swap_b32 v{q+2}, v{q+4}")
        c(f"v_swap_b32 v{q+3}, v{q+5}")
        for T in range(2):
            for i in range(2):
                c(f"v_cndmask_b32 v{self.vZ+2+4*T+i}, v{self.vQ4+2*T+i}, 0, s[{sHI}:{sHI+1}]")
        self.attn_loop(fill, True)
        self.stamp("attn")
        Lok = self.label("aok")
        lo, hi = f2u(2.0 ** -40), f2u(2.0 ** 40)
        O = self.vO
        c(f"v_sub_u32 v{t}, v{O+12}, v{O+12}")
        c(f"v_subrev_u32 v{t}, {hex(lo)}, v{O+12}")
        c(f"v_subrev_u32 v{t+1}, {hex(lo)}, v{O+28}")
        c(f"v_max_u32 v{t}, v{t}, v{t+1}")
        c(f"v_cmp_lt_u32 vcc, {hex(hi-lo)}, v{t}")
        if o.get('forceslow'):
            c("s_mov_b64 vcc, -1")
        c(f"s_cbranch_vccnz Lattn_slow")
        c("Lattn_fin:")
        c(f"v_rcp_f32 v{t}, v{O+12}")
        c(f"v_rcp_f32 v{t+1}, v{O+28}")
        c(f"v_bfe_u32 v{t+2}, v1, 4, 1")
        c(f"v_and_b32 v{t+3}, 15, v1")
        c(f"v_lshlrev_b32 v{t+3}, 4, v{t+3}")
        c(f"v_lshl_add_u32 v{t+4}, v{t+2}, 13, v{t+3}")
        c(f"v_lshl_add_u32 v{t+3}, v{t+2}, 14, v{t+3}")
        c(f"v_lshrrev_b32 v{t+2}, 5, v1")
        c(f"v_lshl_add_u32 v{t+3}, v{t+2}, 8, v{t+3}")
        c(f"s_mul_i32 s{sT}, s{sU}, 81920")
        c(f"s_add_u32 s{sT}, s{sT}, {O_OFF}")
        c(f"s_lshl_b32 s{sT+1}, s{self.sHEAD}, 9")
        c(f"s_add_u32 s{sT+1}, s{sT+1}, s{sT}")
        c(f"s_add_u32 s{sT+2}, s{sT+1}, 32768")
        c(f"s_lshr_b32 s{sT+4}, s{self.sHEAD}, 3")
        c(f"s_and_b32 s{sT+5}, s{self.sHEAD}, 1")
        c(f"s_lshl1_add_u32 s{sT+4}, s{sT+4}, s{sT+5}")
        c(f"s_bfe_u32 s{sT+5}, s{self.sHEAD}, 0x20001")
        c(f"s_lshl2_add_u32 s{sT+4}, s{sT+4}, s{sT+5}")
        c(f"s_lshl_b32 s{sT+4}, s{sT+4}, 8")
        c(f"s_add_u32 s{sT+4}, s{sT+4}, s{sT}")
        c(f"s_add_u32 s{sT+4}, s{sT+4}, 65536")
        ob = 16
        for T in range(2):
            sel = "op_sel_hi:[1,0]" if T == 0 else "op_sel:[0,1] op_sel_hi:[1,1]"
            for i in range(6):
                r = O + 16 * T + 2 * i
                c(f"v_pk_mul_f32 {vr(r,2)}, {vr(r,2)}, {vr(t,2)} {sel}")
            for i in range(6):
                r = O + 16 * T + 2 * i
                d = ob + 4 * T + i if i < 4 else ob + 8 + 2 * T + (i - 4)
                c(f"v_cvt_pk_bf16_f32 v{d}, v{r}, v{r+1}")
            c(f"buffer_store_dwordx4 {vr(ob+4*T,4)}, v{t+3}, {R}, s{sT+1+T} offen {st}")
        c(f"s_not_b64 exec, s[{sHI}:{sHI+1}]")
        c(f"buffer_store_dwordx4 {vr(ob+8,4)}, v{t+4}, {R}, s{sT+4} offen {st}")
        c("s_mov_b64 exec, -1")

    def attn_slow(self):
        c = self.c
        t = 8
        c("Lattn_slow:")
        c("s_waitcnt vmcnt(0) lgkmcnt(0)")
        c(f"v_mov_b32 v{t}, 0xff800000")
        c(f"v_mov_b32 v{t+1}, 0xff800000")
        for pi in range(5):
            lab = self.label("sl")
            c(f"s_cmp_ge_u32 s{sU}, {4-pi}")
            c(f"s_cselect_b32 s{sT}, 0x3f803f80, 0")
            c(f"v_mov_b32 v{t+2}, s{sT}")
            for i in range(4):
                r = self.vK + 12 * pi + 8 + i
                c(f"v_cndmask_b32 v{r}, v{r}, v{t+2}, s[{sHI}:{sHI+1}]")
            c(f"s_cbranch_scc0 {lab}")
            for u, (kt, T) in enumerate(self.UNITS):
                if kt >> 1 != pi:
                    continue
                c.add(self.attn_qk(u, self.vS))
                for i in range(8):
                    c(f"v_max3_f32 v{t+T}, v{self.vS+2*i}, v{self.vS+2*i+1}, v{t+T}")
            c(f"{lab}:")
        for T in range(2):
            c(f"v_mov_b32 v{t+2}, v{t+T}")
            c(f"v_permlane32_swap_b32 v{t+2}, v{t+T}")
            c(f"v_max_f32 v{t+2}, v{t+2}, v{t+T}")
            c(f"v_xor_b32 v{t+2}, 0x80000000, v{t+2}")
            c(f"v_and_b32 v{t+3}, s{sMASK}, v{t+2}")
            c(f"v_sub_f32 v{t+2}, v{t+2}, v{t+3}")
            c(f"v_and_b32 v{t+4}, s{sMASK}, v{t+2}")
            c(f"v_sub_f32 v{t+2}, v{t+2}, v{t+4}")
            c(f"v_lshrrev_b32 v{t+3}, 16, v{t+3}")
            c(f"v_or_b32 v{t+3}, v{t+3}, v{t+4}")
            c(f"v_lshrrev_b32 v{t+2}, 16, v{t+2}")
            z = self.vZ + 2 + 4 * T
            c(f"v_cndmask_b32 v{z}, v{z}, v{t+3}, s[{sHI}:{sHI+1}]")
            c(f"v_cndmask_b32 v{z+1}, v{z+1}, v{t+2}, s[{sHI}:{sHI+1}]")
        self.attn_loop({}, False)
        c("s_branch Lattn_fin")

    RED = 143360
    vRES = 234
    CORD = (1, 2, 3, 0)

    def w2_loads(self, lo, hi):
        ld = self.o.get('ld', 'sc1')
        items = []
        for i in range(lo, hi):
            pre = []
            if i == lo or i % 4 == 0:
                pre = [I(f"s_add_u32 s93, s92, {(i >> 2) * 4096}")]
            items.append(pre + [I(f"buffer_load_dwordx4 {self.w2reg(i)}, v{self.vL16}, s[{sWS}:{sWS+3}], s93 offen offset:{(i&3)*1024} {ld}")])
        return items

    def w2reg(self, i):
        return ar(4 * i, 4) if i < 64 else vr(184 + 4 * (i - 64), 4)

    def phase3(self):
        c, o = self.c, self.o
        ld, st = o.get('ld', 'sc1'), o.get('st', 'sc1')
        R = f"s[{sWS}:{sWS+3}]"
        vA, vL, vAC, vPB, vSUM, vX = 64, 128, 144, 184, 204, 224
        t = 8
        c(f"s_lshl2_add_u32 s{sT}, s{sU}, s{sW}")
        c(f"s_mul_i32 s{sT+1}, s{sT}, {16*1280}")
        c(f"s_mul_i32 s{sT+2}, s{sNB}, 160")
        c(f"s_add_u32 s{sT+1}, s{sT+1}, s{sT+2}")
        c(f"v_and_b32 v{t}, 15, v1")
        c(f"v_mul_u32_u24 v{t}, 1280, v{t}")
        c(f"v_lshrrev_b32 v{t+1}, 4, v1")
        c(f"v_lshl_add_u32 v{t+2}, v{t+1}, 4, v{t}")
        c(f"v_lshl_add_u32 v{t+3}, v{t+1}, 3, v{t}")
        c("s_waitcnt vmcnt(0)")
        self.stamp("odrain")
        c("s_barrier")
        c(f"s_lshl_b32 s{sT+3}, s{sU}, 7")
        c(f"s_add_u32 s{sT+3}, s{sT+3}, {F2_OFF}")
        c(f"s_lshl2_add_u32 s{sT+4}, s{sNB}, s{sT+3}")
        self.flag_store(sT + 4)
        c(f"buffer_load_dwordx4 {vr(vX,4)}, v{t+2}, s[{sX}:{sX+3}], s{sT+1} offen")
        c(f"buffer_load_dwordx4 {vr(vX+4,4)}, v{t+2}, s[{sX}:{sX+3}], s{sT+1} offen offset:64")
        c(f"buffer_load_dwordx2 {vr(vX+8,2)}, v{t+3}, s[{sX}:{sX+3}], s{sT+1} offen offset:128")
        c(f"v_min_u32 v{t}, 55, v1")
        c(f"s_lshr_b32 s{sT+4}, s{sNB}, 2")
        c(f"s_lshl_b32 s{sT+4}, s{sT+4}, 8")
        c(f"s_add_u32 s{sT+4}, s{sT+4}, {6*256}")
        c(f"v_lshl_add_u32 v{self.vFWA}, v{t}, 2, s{sT+4}")
        c(f"s_mov_b32 s{sT+4}, {FW_OFF}")
        c(f"buffer_load_dword v{self.vFWD}, v{self.vFWA}, {R}, s{sT+4} offen sc1")
        c(f"s_lshl2_add_u32 s92, s{sNB}, s{sW}")
        c(f"s_mul_i32 s92, s92, {70*1024}")
        c(f"s_add_u32 s92, s92, {W2_OFF}")
        c(f"s_mul_i32 s{sT+5}, s{sU}, 81920")
        c(f"s_add_u32 s{sT+5}, s{sT+5}, {O_OFF}")
        c(f"s_lshl_b32 s{sT+6}, s{sW}, 12")
        c(f"s_add_u32 s{sT+6}, s{sT+6}, s{sT+5}")
        for i, cc in enumerate(self.CORD):
            c(f"s_xor_b32 s{sT+8+i}, s{sW}, {cc}")
            c(f"s_lshl_b32 s{sT+8+i}, s{sT+8+i}, 14")
            c(f"s_add_u32 s{sT+8+i}, s{sT+8+i}, s{sT+6}")
        c(f"s_lshl_b32 s{sT+6}, s{sW}, 11")
        c(f"s_add_u32 s{sT+5}, s{sT+5}, s{sT+6}")
        c(f"s_add_u32 s{sT+5}, s{sT+5}, 65536")
        c(f"s_and_b32 s{sT+7}, s{sW}, 1")
        c(f"s_lshl_b32 s{sT+7}, s{sT+7}, 13")
        c(f"s_xor_b32 s{sT+6}, s{sT+7}, 8192")
        c(f"s_add_u32 s{sT+6}, s{sT+6}, s{sT+5}")
        c(f"s_add_u32 s{sT+7}, s{sT+7}, s{sT+5}")
        c(f"s_lshr_b32 s{sT+5}, s{sW}, 1")
        c(f"s_lshl_b32 s{sT+5}, s{sT+5}, 10")
        c(f"v_xor_b32 v{t+4}, s{sT+5}, v{self.vL16}")
        c(f"v_xor_b32 v{t+5}, 1024, v{t+4}")
        for i, cc in enumerate(self.CORD):
            c(f"s_xor_b32 s{sT+5}, s{sW}, {cc}")
            c(f"s_mul_i32 s{sT+5}, s{sT+5}, 5120")
            c(f"s_add_u32 s{sT+5}, s{sT+5}, {self.RED}")
            c(f"v_add_u32 v{t+6+i}, s{sT+5}, v{self.vL16}")
        c(f"v_and_b32 v7, 7, v1")
        c(f"v_lshlrev_b32 v7, 2, v7")
        for j in range(10):
            c(f"v_lshlrev_b32 v{vSUM+2*j}, 16, v{vX+j}")
            c(f"v_and_b32 v{vSUM+2*j+1}, s{sMASK}, v{vX+j}")
        c.add(self.flag_check(self.vFWD, self.vFWA, sT + 4))
        self.flag_wait(7, sT + 3)
        self.stamp("s2")
        for i in range(4):
            for s in range(4):
                c(f"buffer_load_dwordx4 {vr(vA+16*i+4*s,4)}, v{self.vL16}, {R}, s{sT+8+i} offen offset:{s*1024} {ld}")
            if i < 2:
                c(f"buffer_load_dwordx4 {vr(vL+8*i,4)}, v{t+4}, {R}, s{sT+6+i} offen {ld}")
                c(f"buffer_load_dwordx4 {vr(vL+8*i+4,4)}, v{t+5}, {R}, s{sT+6+i} offen {ld}")

        def swaps(g):
            k = Code()
            la, lb = self.label("sw"), self.label("sw")
            L = vL + 8 * g
            k(f"v_mov_b32 v{L+7}, v{L+7}")
            k(f"s_cmp_ge_u32 s{sW}, 2")
            k(f"s_cbranch_scc1 {la}")
            k(f"v_swap_b32 v{L+2}, v{L+4}")
            k(f"v_swap_b32 v{L+3}, v{L+5}")
            k(f"s_branch {lb}")
            k(f"{la}:")
            k(f"v_swap_b32 v{L}, v{L+6}")
            k(f"v_swap_b32 v{L+1}, v{L+7}")
            k(f"{lb}:")
            return k.ins
        left = {0: vL, 1: vL + 12, 2: vL + 4, 3: vL + 8}
        for i in range(4):
            ac = vAC + 20 * (i & 1)
            M = []
            for s in range(5):
                b = vA + 16 * i + 4 * s if s < 4 else left[i]
                for tl in range(5):
                    d = vr(ac + 4 * tl, 4)
                    m = I(f"v_mfma_f32_16x16x32_bf16 {d}, {ar(self.aWO+4*(5*s+tl),4)}, {vr(b,4)}, {0 if s == 0 else d}")
                    if s == 4 and tl == 0 and i < 2:
                        m = [swaps(i), m]
                    M.append(m)
            F = []
            if i > 0:
                pa = vAC + 20 * ((i - 1) & 1)
                F += [[]] * 3
                if i > 1:
                    F[2] = [I("s_barrier")]
                F += [I(f"ds_write_b128 v{t+6+i-1}, {vr(pa+4*tl,4)} offset:{tl*1024}") for tl in range(5)]
                F += [[], [I("s_waitcnt lgkmcnt(0)"), I("s_barrier")]]
                F += [[I(f"ds_read_b128 {vr(vPB+4*tl,4)}, v{t+9} offset:{tl*1024}") for tl in range(5)]]
                F += [[]] * 4
                F += [[I(f"v_add_f32 v{vSUM+2*j}, v{vSUM+2*j}, v{vPB+2*j}"), I(f"v_add_f32 v{vSUM+2*j+1}, v{vSUM+2*j+1}, v{vPB+2*j+1}")] for j in range(10)]
            for k in range(25):
                c.add(M[k])
                if k < len(F):
                    c.add(F[k])
        self.stamp("p3")
        ac = vAC + 20
        c(f"s_mul_i32 s{sT+1}, s{sT}, 20480")
        c(f"s_mul_i32 s{sT+2}, s{sNB}, 2560")
        c(f"s_add_u32 s{sT+1}, s{sT+1}, s{sT+2}")
        c(f"s_add_u32 s{sT+1}, s{sT+1}, {H_OFF}")
        c(f"s_lshl3_add_u32 s{sT+2}, s{sT}, s{sNB}")
        c(f"s_lshl_b32 s{sT+2}, s{sT+2}, 7")
        c(f"s_add_u32 s{sT+2}, s{sT+2}, {HST_OFF}")
        c(f"v_and_b32 v{t}, 15, v1")
        c(f"v_lshrrev_b32 v{t+1}, 5, v1")
        c(f"v_lshl_add_u32 v{t}, v{t+1}, 4, v{t}")
        c(f"v_lshlrev_b32 v{t+1}, 4, v{t}")
        c(f"v_lshlrev_b32 v{t}, 2, v{t}")
        c(f"s_mov_b32 s{sT+4}, 0xffff")
        c(f"s_mov_b32 s{sT+5}, 0xffff")
        rs = self.vRES
        for P in range(3):
            for j in range(4 * P, min(4 * P + 4, 10)):
                c(f"v_pk_add_f32 {vr(vSUM+2*j,2)}, {vr(vSUM+2*j,2)}, {vr(ac+2*j,2)}")
            for j in range(4 * P, min(4 * P + 4, 10)):
                c(f"v_cvt_pk_bf16_f32 v{rs+j}, v{vSUM+2*j}, v{vSUM+2*j+1}")
            if P < 2:
                c(f"buffer_store_dwordx4 {vr(rs+4*P,4)}, v{self.vL16}, {R}, s{sT+1} offen offset:{P*1024} {st}")
        for j in range(4):
            c(f"v_mov_b32 v{vPB+j}, v{rs+8+(j&1)}")
        c(f"v_permlane16_swap_b32 v{vPB}, v{vPB+2}")
        c(f"v_permlane16_swap_b32 v{vPB+1}, v{vPB+3}")
        c(f"s_mov_b64 exec, s[{sT+4}:{sT+5}]")
        c(f"buffer_store_dwordx4 {vr(vPB,4)}, v{t+1}, {R}, s{sT+1} offen offset:2048 {st}")
        c("s_mov_b64 exec, -1")
        a1, a2 = t + 2, t + 4
        c(f"v_pk_add_f32 {vr(a1,2)}, {vr(vSUM,2)}, {vr(vSUM+2,2)}")
        c(f"v_pk_mul_f32 {vr(a2,2)}, {vr(vSUM,2)}, {vr(vSUM,2)}")
        for j in range(1, 10):
            if j > 1:
                c(f"v_pk_add_f32 {vr(a1,2)}, {vr(a1,2)}, {vr(vSUM+2*j,2)}")
            c(f"v_pk_fma_f32 {vr(a2,2)}, {vr(vSUM+2*j,2)}, {vr(vSUM+2*j,2)}, {vr(a2,2)}")
        c(f"v_add_f32 v{a1}, v{a1}, v{a1+1}")
        c(f"v_add_f32 v{a2}, v{a2}, v{a2+1}")
        c(f"v_permlane32_swap_b32 v{a1}, v{a2}")
        c(f"v_add_f32 v{a1}, v{a1}, v{a2}")
        c(f"v_mov_b32 v{a2}, v{a1}")
        c(f"v_permlane16_swap_b32 v{a1}, v{a2}")
        c(f"v_add_f32 v{a1}, v{a1}, v{a2}")
        c(f"s_mov_b64 exec, s[{sT+4}:{sT+5}]")
        c(f"buffer_store_dword v{a1}, v{t}, {R}, s{sT+2} offen {st}")
        c("s_mov_b64 exec, -1")
        self.stamp("p3epi")
        vW, vC, vONE = 64, 144, 152
        c(f"s_lshl_b32 s{sT+6}, s{sW}, 10")
        c(f"v_add_u32 v{t}, s{sT+6}, v{self.vL16}")
        c(f"v_add_u32 v{t+1}, {9*7168}, v{t}")
        c(f"v_add_u32 v{t+2}, {18*7168}, v{t}")
        for j in range(4):
            c(f"v_mov_b32 v{vONE+j}, 0x3f803f80")
        rd = lambda k: I(f"ds_read_b128 {vr(vW+4*(k%16),4)}, v{t+(k>>1)//9} offset:{((k>>1)%9)*7168 + (k&1)*4096}")
        for k in range(12):
            c.add(rd(k))
        for k in range(40):
            d = vr(vC + 4 * (k & 1), 4)
            c(f"v_mfma_f32_16x16x32_bf16 {d}, {vr(vW+4*(k%16),4)}, {vr(vONE,4)}, {0 if k < 2 else d}")
            if k + 12 < 40:
                c.add(rd(k + 12))
        c(f"v_and_b32 v{t}, 48, v1")
        c(f"s_mul_i32 s{sT+6}, s{sW}, 5120")
        c(f"s_add_u32 s{sT+6}, s{sT+6}, {self.RED}")
        c(f"v_add_u32 v{t}, s{sT+6}, v{t}")
        c(f"ds_write_b128 v{t}, {vr(vC,4)}")
        c(f"ds_write_b128 v{t}, {vr(vC+4,4)} offset:64")
        c("s_waitcnt vmcnt(0) lgkmcnt(0)")
        self.stamp("hdrain")
        c("s_barrier")
        c(f"s_lshl_b32 s{sT+3}, s{sRB}, 7")
        c(f"s_add_u32 s{sT+3}, s{sT+3}, {F3_OFF}")
        c(f"s_lshl2_add_u32 s{sT+4}, s{sFB}, s{sT+3}")
        self.flag_store(sT + 4)

    def phase4(self):
        c, o = self.c, self.o
        ld, st = o.get('ld', 'sc1'), o.get('st', 'sc1')
        R = f"s[{sWS}:{sWS+3}]"
        vAC, vW, vA, NR = 64, 120, 176, 7
        vST, vCS = 16, 24
        t = 8
        c(f"s_lshl2_add_u32 s{sT}, s{sRB}, s{sW}")
        c(f"s_mul_i32 s{sT+1}, s{sT}, 40960")
        c(f"s_add_u32 s{sT+1}, s{sT+1}, {H_OFF}")
        c(f"s_add_u32 s{sT+2}, s{sT+1}, 20480")
        c(f"s_lshl_b32 s{sT+5}, s{sT}, 11")
        c(f"s_add_u32 s{sT+5}, s{sT+5}, {HST_OFF}")
        c(f"v_and_b32 v{t}, 31, v1")
        c(f"v_lshrrev_b32 v{t+1}, 5, v1")
        c(f"v_lshlrev_b32 v{t}, 2, v{t}")
        c(f"v_lshl_add_u32 v{t}, v{t+1}, 10, v{t}")
        c(f"v_add_u32 v{t+2}, {9*7168}, v{self.vL16}")
        c(f"v_add_u32 v{t+3}, {18*7168}, v{self.vL16}")
        c(f"v_and_b32 v{t+4}, 48, v1")
        c(f"v_add_u32 v{t+4}, {self.RED}, v{t+4}")
        c(f"v_and_b32 v7, 15, v1")
        c(f"v_lshlrev_b32 v7, 2, v7")
        wa = [self.vL16, t + 2, t + 3]
        rdw = lambda s: [I(f"ds_read_b128 {vr(vW+28*(s&1)+4*tl,4)}, v{wa[s//9]} offset:{(s%9)*7168 + tl*1024}") for tl in range(7)]
        for tl in range(7):
            c(f"ds_read_b128 {vr(vCS+4*tl,4)}, v{t+4} offset:{(tl&3)*5120 + (tl>>2)*64}")
        c.add(rdw(0))
        self.flag_wait(7, sT + 3)
        self.stamp("s3")

        def lda(s):
            g = []
            for a in range(2):
                pre = [I(f"s_add_u32 s{sT+1+a}, s{sT+1+a}, 4096")] if s and s % 4 == 0 else []
                g.append(pre + [I(f"buffer_load_dwordx4 {vr(vA+8*(s%NR)+4*a,4)}, v{self.vL16}, {R}, s{sT+1+a} offen offset:{(s&3)*1024} {ld}")])
            return g
        for s in range(NR - 1):
            c.add(lda(s))
        extra = [[I(f"buffer_load_dword v{vST+j}, v{t}, {R}, s{sT+5} offen offset:{j*128} {ld}")] for j in range(8)]
        extra += self.w2_loads(0, 64)
        for s in range(20):
            M = []
            for tl in range(7):
                for a in range(2):
                    d = vr(vAC + 28 * a + 4 * tl, 4)
                    M.append(I(f"v_mfma_f32_16x16x32_bf16 {d}, {vr(vW+28*(s&1)+4*tl,4)}, {vr(vA+8*(s%NR)+4*a,4)}, {0 if s == 0 else d}"))
            F = rdw(s + 1) if s < 19 else [[]] * 7
            F = F + (lda(s + NR - 1) if s + NR - 1 < 20 else [])
            ne = o.get('p4x', 2) if s + NR - 1 < 20 else 5
            F += extra[:ne]; extra = extra[ne:]
            for k in range(14):
                c.add(M[k])
                if k < len(F):
                    c.add(F[k])
        self.stamp("p4")
        extra += self.w2_loads(64, 70)
        for j in range(1, 8):
            c(f"v_add_f32 v{vST}, v{vST}, v{vST+j}")
        c(f"v_mov_b32 v{vST+1}, v{vST}")
        c(f"v_permlane16_swap_b32 v{vST}, v{vST+1}")
        c(f"v_mul_f32 v{vST}, {hex(f2u(-1.0/640))}, v{vST}")
        c(f"v_mul_f32 v{vST+1}, {hex(f2u(1.0/640))}, v{vST+1}")
        c(f"v_fma_f32 v{vST+1}, -v{vST}, v{vST}, v{vST+1}")
        c(f"v_max_f32 v{vST+1}, 0, v{vST+1}")
        c(f"v_add_f32 v{vST+1}, {hex(f2u(1e-5))}, v{vST+1}")
        c(f"v_rsq_f32 v{vST+1}, v{vST+1}")
        nl = hex(f2u(-1.4426950408889634))
        c(f"v_mov_b32 v{vST+4}, {nl}")
        c(f"v_mov_b32 v{vST+5}, {nl}")
        c(f"v_mul_f32 v{vST+1}, v{vST+4}, v{vST+1}")
        c(f"v_mov_b32 v{vST+2}, v{vST}")
        c(f"v_mov_b32 v{vST+3}, v{vST+1}")
        c(f"v_permlane32_swap_b32 v{vST}, v{vST+2}")
        c(f"v_permlane32_swap_b32 v{vST+1}, v{vST+3}")
        c(f"s_mul_i32 s{sT+1}, s{sT}, {2*57344}")
        c(f"s_mul_i32 s{sT+2}, s{sFB}, 3584")
        c(f"s_add_u32 s{sT+1}, s{sT+1}, s{sT+2}")
        c(f"s_add_u32 s{sT+1}, s{sT+1}, {H1_OFF}")
        c(f"s_add_u32 s{sT+2}, s{sT+1}, 57344")
        c(f"v_bfe_u32 v{t}, v1, 4, 1")
        c(f"v_mul_u32_u24 v{t}, 57344, v{t}")
        c(f"v_and_b32 v{t+2}, 15, v1")
        c(f"v_lshl_add_u32 v{t}, v{t+2}, 4, v{t}")
        c(f"v_lshl_add_u32 v{t}, v{t+1}, 8, v{t}")
        vE, vOUT = 52, vW
        groups = [[(a, 2 * P), (a, 2 * P + 1)] for P in range(3) for a in range(2)] + [[(0, 6), (1, 6)]]
        for gi, g in enumerate(groups):
            pairs = [(vAC + 28 * a + 4 * tl + 2 * q, vCS + 4 * tl + 2 * q, vST + 2 * a) for a, tl in g for q in range(2)]
            for r, cs, sv in pairs:
                c(f"v_pk_fma_f32 {vr(r,2)}, {vr(cs,2)}, {vr(sv,2)}, {vr(r,2)} op_sel_hi:[1,0,1]")
            for r, cs, sv in pairs:
                c(f"v_pk_mul_f32 {vr(r,2)}, {vr(r,2)}, {vr(sv,2)} op_sel:[0,1] op_sel_hi:[1,1]")
            for k, (r, cs, sv) in enumerate(pairs):
                c(f"v_exp_f32 v{vE+2*k}, v{r}")
                c(f"v_exp_f32 v{vE+2*k+1}, v{r+1}")
            for k in range(4):
                c(f"v_pk_fma_f32 {vr(vE+2*k,2)}, {vr(vE+2*k,2)}, {vr(vST+4,2)}, {vr(vST+4,2)}")
            for k in range(8):
                c(f"v_rcp_f32 v{vE+k}, v{vE+k}")
            for k, (r, cs, sv) in enumerate(pairs):
                c(f"v_pk_mul_f32 {vr(r,2)}, {vr(r,2)}, {vr(vE+2*k,2)}")
            out = vOUT + 4 * gi
            for k, (r, cs, sv) in enumerate(pairs):
                c(f"v_cvt_pk_bf16_f32 v{out+k}, v{r}, v{r+1}")
            if gi < 6:
                c(f"buffer_store_dwordx4 {vr(out,4)}, v{self.vL16}, {R}, s{sT+1+(gi&1)} offen offset:{(gi>>1)*1024} {st}")
                ne = -(-len(extra) // (6 - gi))
                c.add(extra[:ne]); extra = extra[ne:]
            else:
                c(f"v_permlane16_swap_b32 v{out}, v{out+2}")
                c(f"v_permlane16_swap_b32 v{out+1}, v{out+3}")
                c(f"buffer_store_dwordx4 {vr(out,4)}, v{t}, {R}, s{sT+1} offen offset:3072 {st}")
        self.stamp("p4epi")
        c("s_waitcnt vmcnt(0) lgkmcnt(0)")
        self.stamp("h1drain")
        c("s_barrier")
        c(f"s_lshl_b32 s{sT+3}, s{sRB}, 7")
        c(f"s_add_u32 s{sT+3}, s{sT+3}, {F4_OFF}")
        c(f"s_lshl2_add_u32 s{sT+4}, s{sFB}, s{sT+3}")
        self.flag_store(sT + 4)

    def phase5(self):
        c, o = self.c, self.o
        ld = o.get('ld', 'sc1')
        R = f"s[{sWS}:{sWS+3}]"
        vA, NR, vAC, vPB, vSUM = 64, 20, 144, 208, 32
        t = 8
        rs = self.vRES
        c(f"s_mul_i32 s{sT+5}, s{sU}, {4*57344}")
        c(f"s_mul_i32 s{sT+6}, s{sW}, 14336")
        c(f"s_add_u32 s{sT+5}, s{sT+5}, s{sT+6}")
        c(f"s_add_u32 s{sT+5}, s{sT+5}, {H1_OFF}")
        for i, cc in enumerate(self.CORD):
            c(f"s_xor_b32 s{sT+6}, s{sW}, {cc}")
            c(f"s_mul_i32 s{sT+8+i}, s{sT+6}, 57344")
            c(f"s_add_u32 s{sT+8+i}, s{sT+8+i}, s{sT+5}")
            c(f"s_mul_i32 s{sT+6}, s{sT+6}, 15360")
            if 0 < i < 3:
                c(f"s_add_u32 s{sT+6}, s{sT+6}, {i*5120}")
            c(f"v_add_u32 v{t+6+i}, s{sT+6}, v{self.vL16}")
        for j in range(10):
            c(f"v_lshlrev_b32 v{vSUM+2*j}, 16, v{rs+j}")
            c(f"v_and_b32 v{vSUM+2*j+1}, s{sMASK}, v{rs+j}")
        c(f"s_lshl_b32 s{sT+6}, s{sW}, 12")
        c(f"s_add_u32 s{sT+6}, s{sT+6}, 65536")
        c(f"v_and_b32 v{t}, 15, v1")
        c(f"v_mul_u32_u24 v{t}, 160, v{t}")
        c(f"v_add_u32 v{t}, s{sT+6}, v{t}")
        c(f"v_lshrrev_b32 v{t+1}, 4, v1")
        c(f"v_lshl_add_u32 v{t+2}, v{t+1}, 3, v{t}")
        c(f"v_lshl_add_u32 v{t+1}, v{t+1}, 4, v{t}")
        c(f"v_add_u32 v{t}, s{sT+6}, v{self.vL16}")
        for j in range(3):
            c(f"v_add_u32 v{t+10}, {64*j}, v1")
            c(f"v_mul_u32_u24 v{t+11}, 6554, v{t+10}")
            c(f"v_lshrrev_b32 v{t+11}, 16, v{t+11}")
            c(f"v_mul_u32_u24 v{t+11}, {1280-160}, v{t+11}")
            c(f"v_lshl_add_u32 v{t+3+j}, v{t+10}, 4, v{t+11}")
        c(f"s_lshl2_add_u32 s{sT}, s{sU}, s{sW}")
        c(f"s_mul_i32 s{sT}, s{sT}, {16*1280}")
        c(f"s_mul_i32 s{sT+1}, s{sNB}, 160")
        c(f"s_add_u32 s{sT}, s{sT}, s{sT+1}")
        self.flag_wait(7, sT + 3)
        self.stamp("s4")

        def lda(k):
            i, s = divmod(k, 14)
            pre = [I(f"s_add_u32 s{sT+8+i}, s{sT+8+i}, 4096")] if s and s % 4 == 0 else []
            return pre + [I(f"buffer_load_dwordx4 {vr(vA+4*(k%NR),4)}, v{self.vL16}, {R}, s{sT+8+i} offen offset:{(s&3)*1024} {ld}")]
        LA = o.get('p5la', 12)
        for k in range(LA):
            c.add(lda(k))
        lab = self.label("ep")
        c("v_mov_b32 v253, 0")
        c(f"s_or_b32 s{sT+1}, s{sFB}, s{sW}")
        c(f"s_cbranch_scc1 {lab}")
        c.cond(True)
        c("v_mov_b32 v252, 0")
        c("v_mov_b32 v253, 1")
        c("s_mov_b64 exec, 1")
        c(f"global_atomic_add v253, v252, v253, s[{sDBG}:{sDBG+1}] sc0 sc1")
        c("s_mov_b64 exec, -1")
        c.cond(False)
        c(f"{lab}:")
        for i in range(4):
            ac = vAC + 20 * (i & 1)
            F = [[] for _ in range(70)]
            if i > 0:
                pa = vAC + 20 * ((i - 1) & 1)
                for tl in range(5):
                    F[3 + 5 * tl].append(I(f"ds_write_b128 v{t+6+i-1}, {vr(pa+4*tl,4)} offset:{tl*1024}"))
            if i == 3:
                F[27] += [I("s_waitcnt lgkmcnt(0)"), I("s_barrier")]
                k = 28
                for r in range(3):
                    F[k] += [I(f"ds_read_b128 {vr(vPB+4*tl,4)}, v{t+9} offset:{r*5120 + tl*1024}") for tl in range(5)]
                    for j in range(10):
                        F[k + 4 + j] += [I(f"v_add_f32 v{vSUM+2*j}, v{vSUM+2*j}, v{vPB+2*j}"), I(f"v_add_f32 v{vSUM+2*j+1}, v{vSUM+2*j+1}, v{vPB+2*j+1}")]
                    k += 14
            for s in range(14):
                k = 14 * i + s
                for tl in range(5):
                    d = vr(ac + 4 * tl, 4)
                    c(f"v_mfma_f32_16x16x32_bf16 {d}, {self.w2reg(5*s+tl)}, {vr(vA+4*(k%NR),4)}, {0 if s == 0 else d}")
                    if tl == 0 and k + LA < 56:
                        c.add(lda(k + LA))
                    c.add(F[5 * s + tl])
        self.stamp("p5")
        ac = vAC + 20
        for j in range(10):
            c(f"v_pk_add_f32 {vr(vSUM+2*j,2)}, {vr(vSUM+2*j,2)}, {vr(ac+2*j,2)}")
        for j in range(10):
            c(f"v_cvt_pk_bf16_f32 v{rs+j}, v{vSUM+2*j}, v{vSUM+2*j+1}")
        c(f"ds_write_b128 v{t+1}, {vr(rs,4)}")
        c(f"ds_write_b128 v{t+1}, {vr(rs+4,4)} offset:64")
        c(f"ds_write_b64 v{t+2}, {vr(rs+8,2)} offset:128")
        for j in range(3):
            c(f"ds_read_b128 {vr(vPB+4*j,4)}, v{t} offset:{j*1024}")
        for j in range(3):
            if j == 2:
                c(f"s_not_b64 exec, s[{sHI}:{sHI+1}]")
            c(f"buffer_store_dwordx4 {vr(vPB+4*j,4)}, v{t+3+j}, s[{sOUT}:{sOUT+3}], s{sT} offen")
        c("s_mov_b64 exec, -1")
        lab = self.label("ep")
        c("s_waitcnt vmcnt(3)")
        c(f"v_readfirstlane_b32 s{sT+1}, v253")
        c(f"s_cmp_lg_u32 s{sT+1}, 15")
        c(f"s_cbranch_scc1 {lab}")
        c(f"s_mov_b32 s{sT+1}, {EP_OFF}")
        self.flag_store(sT + 1, fast=False)
        c(f"{lab}:")

    def build(self):
        c = self.c
        self.prologue()
        upto = self.o.get('upto', 5)
        self.phase1()
        if upto >= 2:
            self.rp_process()
            self.attn_init()
            self.attention()
        if upto >= 3:
            self.phase3()
        if upto >= 4:
            self.phase4()
        if upto >= 5:
            self.phase5()
        c("s_waitcnt vmcnt(0) lgkmcnt(0)")
        self.stamp("end")
        self.dump_stamps()
        c("s_endpgm")
        if upto >= 2:
            self.attn_slow()
        c("Lend:")
        body = finalize(c)
        return f"""; Fused pre-LN sliding-window attention block + SiLU FFN (generated by work/gen.py)
; @launch grid=(256,1,1) block=(256,1,1) lds=163840
.amdgcn_target "amdgcn-amd-amdhsa--gfx950"
.text
.globl {NAME}_kernel
.p2align 8
.type {NAME}_kernel,@function
{NAME}_kernel:
{body}
  s_endpgm
Lcode_end:
.section .rodata,"a"
.p2align 6
.amdhsa_kernel {NAME}_kernel
  .amdhsa_next_free_vgpr 512
  .amdhsa_next_free_sgpr 102
  .amdhsa_accum_offset 256
  .amdhsa_group_segment_fixed_size 0
  .amdhsa_kernarg_size 72
  .amdhsa_user_sgpr_count 2
  .amdhsa_user_sgpr_kernarg_segment_ptr 1
  .amdhsa_system_sgpr_workgroup_id_x 1
.end_amdhsa_kernel
"""


def generate(**opt):
    g = Gen(opt)
    return g.build(), g


if __name__ == "__main__":
    opt = {}
    out = None
    for a in sys.argv[1:]:
        if '=' in a:
            k, v = a.split('=', 1)
            opt[k] = int(v) if v.lstrip('-').isdigit() else v
        else:
            out = a
    asm, g = generate(**opt)
    open(out or f"cdna_kernels/{NAME}.s", "w").write(asm)
    print(len(asm.splitlines()), "lines")
```

```python
import re

_REG = re.compile(r'^(-|\|)?(abs\()?([vas])(\d+|\[(\d+):(\d+)\])\)?\|?$')
TRANS = ('v_exp_', 'v_log_', 'v_rcp_', 'v_rsq_', 'v_sqrt_', 'v_sin_', 'v_cos_')


def regs_of(tok):
    tok = tok.strip()
    if tok == 'vcc':
        return [('s', 'vcc')]
    if tok == 'exec':
        return [('s', 'exec')]
    if tok == 'm0':
        return [('s', 'm0')]
    m = _REG.match(tok)
    if not m:
        return []
    f = m.group(3)
    if m.group(5) is not None:
        return [(f, i) for i in range(int(m.group(5)), int(m.group(6)) + 1)]
    return [(f, int(m.group(4)))]


def split_ops(s):
    out, depth, cur = [], 0, ''
    for ch in s:
        if ch in '[(':
            depth += 1
        if ch in '])':
            depth -= 1
        if ch == ',' and depth == 0:
            out.append(cur.strip())
            cur = ''
        else:
            cur += ch
    if cur.strip():
        out.append(cur.strip())
    return out


class Ins:
    __slots__ = ('text', 'op', 'kind', 'rd', 'wr', 'mf', 'wide', 'waits', 'cond', 'seq', 'lds_dma', 'cost')

    def __init__(self, text, waits=None, cond=False):
        self.text = text
        self.waits = waits or []
        self.cond = cond
        self.seq = None
        self.mf = None
        self.wide = False
        self.lds_dma = False
        self.parse()

    def parse(self):
        t = self.text.split(';')[0].strip()
        self.rd, self.wr = [], []
        if not t or t.startswith('.'):
            self.op, self.kind = t, 'dir'
            return
        if t.endswith(':'):
            self.op, self.kind = t, 'label'
            return
        parts = t.split(None, 1)
        op = parts[0]
        self.op = op
        ops = split_ops(parts[1]) if len(parts) > 1 else []
        mods = ''
        if ops:
            last = ops[-1].split(None, 1)
            ops[-1] = last[0]
            mods = last[1] if len(last) > 1 else ''
        R = [regs_of(o) for o in ops]
        fl = lambda xs: [r for x in xs for r in x]
        if op.startswith('v_mfma'):
            self.kind = 'mfma'
            self.wr = R[0]
            self.rd = fl(R[1:])
            self.mf = dict(d=R[0], a=R[1], b=R[2], c=R[3], p=(8 if '32x32' in op else 4))
        elif op.startswith('v_'):
            self.kind = 'valu'
            if op.startswith(('v_swap', 'v_permlane16_swap', 'v_permlane32_swap')):
                self.wr = fl(R[:2]); self.rd = fl(R[:2])
            elif op.startswith(('v_add_co', 'v_sub_co', 'v_addc_co', 'v_subb_co', 'v_subrev_co')):
                self.wr = fl(R[:2]); self.rd = fl(R[2:])
            elif op == 'v_nop':
                pass
            else:
                self.wr = R[0]; self.rd = fl(R[1:])
                if op.startswith(('v_fmac', 'v_dot2c', 'v_pk_fmac', 'v_writelane')) or '_dpp' in op or '_sdwa' in op:
                    self.rd = self.rd + R[0]
                if op.startswith('v_cmpx'):
                    self.wr = self.wr + [('s', 'exec')]
        elif op.startswith('ds_'):
            self.kind = 'ds'
            if op.startswith(('ds_read', 'ds_bpermute', 'ds_permute', 'ds_swizzle')) or '_rtn' in op:
                self.wr = R[0]; self.rd = fl(R[1:])
            else:
                self.rd = fl(R)
        elif op.startswith(('buffer_load', 'global_load')):
            self.kind = 'vmem'
            if ' lds' in (' ' + mods) or op.startswith('global_load_lds'):
                self.lds_dma = True
                self.rd = fl(R) + [('s', 'm0')]
            else:
                self.wr = R[0]; self.rd = fl(R[1:])
        elif op.startswith(('buffer_store', 'global_store', 'buffer_atomic', 'global_atomic')):
            self.kind = 'vmem'
            self.rd = fl(R)
            if op.endswith(('x3', 'x4')):
                self.wide = R[0] if op.startswith('buffer') else R[1]
        elif op.startswith(('buffer_inv', 'buffer_wbl2')):
            self.kind = 'vmem'
        elif op.startswith(('s_load', 's_memtime', 's_memrealtime', 's_buffer_load')):
            self.kind = 'smem'
            self.wr = R[0]; self.rd = fl(R[1:])
        elif op in ('s_waitcnt',):
            self.kind = 'wait'
        elif op == 's_nop':
            self.kind = 'nop'
        elif op.startswith(('s_branch', 's_cbranch', 's_setpc', 's_endpgm')):
            self.kind = 'branch'
            if 'vcc' in op:
                self.rd = [('s', 'vcc')]
            self.rd += fl(R)
        elif op in ('s_barrier', 's_setprio', 's_sleep'):
            self.kind = 'misc'
        elif op.startswith('s_'):
            self.kind = 'salu'
            if op.startswith(('s_cmp', 's_bitcmp')):
                self.rd = fl(R)
            else:
                self.wr = R[0]; self.rd = fl(R[1:])
                if op.startswith(('s_addk', 's_mulk', 's_cmov')):
                    self.rd = self.rd + R[0]
                if 'saveexec' in op:
                    self.wr = self.wr + [('s', 'exec')]
        else:
            raise ValueError("unknown instruction: " + t)


class Code:
    def __init__(self):
        self.ins = []
        self._cond = False

    def __call__(self, text, waits=None):
        last = None
        for line in text.split('\n'):
            if line.strip():
                last = Ins(line.strip(), waits, self._cond)
                waits = None
                self.ins.append(last)
        return last

    def add(self, ins):
        if isinstance(ins, Ins):
            self.ins.append(ins)
        else:
            for i in ins:
                self.add(i)

    def cond(self, on):
        self._cond = on

    def wait(self, *handles):
        i = Ins('.wait', list(handles), self._cond)
        self.ins.append(i)
        return i


def I(text, waits=None):
    return Ins(text, waits)


def W(*handles):
    return Ins('.wait', list(handles))


def interleave(main, fill, start=0, end=None, lead=0):
    n = len(main)
    end = n if end is None else end
    slots = end - start
    out = []
    k = 0
    for i, m in enumerate(main):
        out.append(m)
        if start <= i < end:
            tgt = ((i - start + 1) * len(fill) + slots - 1) // slots
            while k < min(tgt + lead, len(fill)):
                out.append(fill[k]); k += 1
    out.extend(fill[k:])
    return out


def glue(lst):
    out = []
    for i in lst:
        if out and isinstance(i, Ins) and i.op.startswith(('s_cselect', 's_addc', 's_subb', 's_cbranch_scc')):
            out[-1] = flat(out[-1]) + [i]
        else:
            out.append(i)
    return out


def flat(x):
    if isinstance(x, Ins):
        return [x]
    o = []
    for i in x:
        o.extend(flat(i))
    return o


def insert_waits(ins):
    out = []
    vm_n = 0; vm_done = 0
    lg_n = 0; lg_done = 0
    smem_pending = False
    pend = {}
    saved = None
    snaps = {}
    for i in ins:
        if i.kind == 'dir' and i.text.startswith('.save'):
            snaps[i.text.split()[1]] = (vm_done, lg_done, smem_pending, dict(pend), vm_n, lg_n)
            continue
        if i.kind == 'dir' and i.text.startswith('.restore'):
            vm_done, lg_done, smem_pending, pend, vm_n, lg_n = snaps[i.text.split()[1]]
            pend = dict(pend)
            continue
        if i.cond and saved is None:
            saved = (vm_done, lg_done, smem_pending, dict(pend), vm_n, lg_n)
        if not i.cond and saved is not None:
            for r, (c, s) in pend.items():
                if r not in saved[3] or saved[3][r] != (c, s):
                    done = (c == 'vm' and s <= vm_done) or (c == 'lg' and s <= lg_done)
                    assert done, f"conditional region leaves pending load on {r}"
            vm_done, lg_done, smem_pending, pend, vm_n, lg_n = saved
            saved = None
        need_vm = need_lg = None
        need_sm = False
        if i.kind not in ('label',):
            for r in list(i.rd) + list(i.wr):
                if r in pend:
                    c, s = pend[r]
                    if c == 'vm' and s > vm_done:
                        need_vm = max(need_vm or 0, s)
                    elif c == 'lg' and s > lg_done:
                        need_lg = max(need_lg or 0, s)
                    elif c == 'sm':
                        need_sm = True
            for h in i.waits:
                assert h.seq is not None, f"wait on un-issued op {h.text}"
                if h.kind == 'vmem' and h.seq > vm_done:
                    need_vm = max(need_vm or 0, h.seq)
                elif h.kind == 'ds' and h.seq > lg_done:
                    need_lg = max(need_lg or 0, h.seq)
        w = []
        if need_vm is not None:
            n = min(vm_n - need_vm, 63)
            w.append(f"vmcnt({n})"); vm_done = max(vm_done, vm_n - n)
        if need_sm or (need_lg is not None and smem_pending):
            w.append("lgkmcnt(0)"); lg_done = lg_n; smem_pending = False
            pend = {r: v for r, v in pend.items() if v[0] != 'sm'}
        elif need_lg is not None:
            n = min(lg_n - need_lg, 15)
            w.append(f"lgkmcnt({n})"); lg_done = max(lg_done, lg_n - n)
        if w:
            out.append(Ins("s_waitcnt " + " ".join(w), cond=i.cond))
        if i.op == '.wait':
            continue
        if i.kind == 'wait':
            m = re.search(r'vmcnt\((\d+)\)', i.text)
            if m:
                vm_done = max(vm_done, vm_n - int(m.group(1)))
            m = re.search(r'lgkmcnt\((\d+)\)', i.text)
            if m:
                n = int(m.group(1))
                if n == 0:
                    lg_done = lg_n; smem_pending = False
                    pend = {r: v for r, v in pend.items() if v[0] != 'sm'}
                elif not smem_pending:
                    lg_done = max(lg_done, lg_n - n)
        for r in i.wr:
            pend.pop(r, None)
        if i.kind == 'vmem':
            vm_n += 1; i.seq = vm_n
            for r in i.wr: pend[r] = ('vm', vm_n)
        elif i.kind == 'ds':
            lg_n += 1; i.seq = lg_n
            for r in i.wr: pend[r] = ('lg', lg_n)
        elif i.kind == 'smem':
            smem_pending = True
            for r in i.wr: pend[r] = ('sm', 0)
        out.append(i)
    return out


def _need(p, c):
    n = 0
    pw, cr, cw = set(p.wr), set(c.rd), set(c.wr)
    if p.kind == 'mfma':
        P = p.mf['p']
        if c.kind == 'mfma':
            if pw & set(c.mf['c']):
                if not (c.mf['c'] == p.mf['d'] and c.mf['p'] == P):
                    n = max(n, P + 2)
            if pw & (set(c.mf['a']) | set(c.mf['b'])):
                n = max(n, P + 4)
            if pw & cw and not (c.mf['c'] == p.mf['d'] and c.mf['p'] == P):
                n = max(n, P + 2)
        elif c.kind in ('valu', 'vmem', 'ds'):
            if pw & (cr | cw):
                n = max(n, P + 4)
            if c.kind == 'valu' and set(p.mf['c']) & cw:
                n = max(n, P - 1)
    elif p.kind == 'valu':
        vw = {r for r in pw if r[0] != 's'}
        sw = {r for r in pw if r[0] == 's'}
        if c.kind == 'mfma' and vw & cr:
            n = max(n, 2)
        if c.kind == 'mfma' and ('s', 'exec') in sw:
            n = max(n, 4)
        if c.kind == 'valu':
            if vw & cr:
                if c.op.startswith('v_permlane') or '_dpp' in c.op:
                    n = max(n, 2)
                if c.op.startswith(('v_readlane', 'v_readfirstlane')):
                    n = max(n, 1)
                if p.op.startswith(TRANS):
                    n = max(n, 1)
                if '_sdwa' in p.op or 'op_sel:' in p.text and not p.op.startswith('v_pk'):
                    n = max(n, 1)
            if sw & cr:
                n = max(n, 4 if c.op.startswith(('v_readlane', 'v_writelane')) else 2)
        if c.kind == 'vmem' and sw & cr:
            n = max(n, 5)
        if c.kind in ('salu', 'branch', 'smem') and sw & cr:
            n = max(n, 1)
        if c.kind in ('vmem', 'ds') and p.op.startswith(TRANS) and vw & cr:
            n = max(n, 1)
    elif p.kind == 'salu':
        if ('s', 'm0') in pw and c.lds_dma:
            n = max(n, 1)
    elif p.kind == 'vmem':
        if p.wide and set(p.wide) & cw:
            n = max(n, 2 if c.kind == 'valu' else 1)
    return n


def _worst(p):
    if p.kind == 'mfma':
        return p.mf['p'] + 4
    if p.kind == 'valu':
        return 5 if any(r[0] == 's' for r in p.wr) else 2
    if p.kind == 'salu' and ('s', 'm0') in p.wr:
        return 1
    if p.kind == 'vmem' and p.wide:
        return 2
    return 0


def insert_nops(ins):
    out = []
    hist = []
    region = 0
    prev_cond = False
    for i in ins:
        if i.kind == 'dir':
            out.append(i); continue
        if i.cond and not prev_cond:
            region += 1
        prev_cond = i.cond
        reg = region if i.cond else 0
        flush = i.kind in ('label', 'branch') and 'noflush' not in i.text
        own = 1 if i.kind == 'branch' else 0
        pad = 0
        for k in range(len(hist) - 1, -1, -1):
            p, _, pr = hist[k]
            if p is None:
                continue
            need = _need(p, i) if i.kind != 'label' else 0
            if flush:
                need = max(need, _worst(p) - own)
            if need <= 0:
                continue
            dist = sum(n for (_, n, r) in hist[k + 1:] if r == 0 or r == pr or r == reg)
            pad = max(pad, need - dist)
        while pad > 0:
            k = min(pad, 16)
            out.append(Ins(f"s_nop {k-1}"))
            hist.append((None, k, reg)); pad -= k
        out.append(i)
        if i.kind == 'label':
            continue
        if i.kind == 'nop':
            hist.append((None, int(i.text.split()[1]) + 1, reg))
        else:
            hist.append((i, 1, reg))
        tot = 0
        for k in range(len(hist) - 1, -1, -1):
            if hist[k][2] == 0:
                tot += hist[k][1]
            if tot > 24:
                hist = hist[k:]
                break
    return out


def finalize(code):
    ins = flat(code.ins)
    ins = insert_waits(ins)
    ins = insert_nops(ins)
    return "\n".join(("" if i.kind in ('label',) else "  ") + i.text for i in ins)


def vr(a, n=1, f='v'):
    return f"{f}{a}" if n == 1 else f"{f}[{a}:{a+n-1}]"


def ar(a, n=1):
    return vr(a, n, 'a')


def sr(a, n=1):
    return vr(a, n, 's')
```

```python
import sys, struct
from dsl import *

NAME = "sequential_preLN__sliding_block__dense_activation_silu__prompt"

QK_OFF = 0
V_OFF = QK_OFF + 32 * 163840
O_OFF = V_OFF + 64 * 40960
H_OFF = O_OFF + 32 * 81920
HST_OFF = H_OFF + 128 * 20480
H1_OFF = HST_OFF + 128 * 1024
WO_OFF = H1_OFF + 128 * 57344
W1_OFF = WO_OFF + 8 * 102400
W2_OFF = W1_OFF + 16 * 143360
RST_OFF = W2_OFF + 8 * 286720
CST_OFF = RST_OFF + 16 * 10240
FL_OFF = CST_OFF + 16 * 5120
F1_OFF = FL_OFF
F2_OFF = FL_OFF + 4096
F3_OFF = FL_OFF + 2 * 4096
F4_OFF = FL_OFF + 4 * 4096
FR_OFF = FL_OFF + 5 * 4096
FC_OFF = FR_OFF + 2048
FX_OFF = FL_OFF + 6 * 4096
FWO_OFF = FX_OFF + 2048
FW1_OFF = FL_OFF + 7 * 4096
FW2_OFF = FW1_OFF + 2048
EP_OFF = FL_OFF + 8 * 4096
ST_OFF = FL_OFF + 16 * 4096
WS_SIZE = ST_OFF + 256 * 4 * 128

TAGC = 0x9E3779B8
SPIN_MAX = 200000
OOB = 0x7fff0000


def f2u(x):
    return struct.unpack('<I', struct.pack('<f', x))[0]


sX, sWQ, sWS, sKV, sOUT, sRP = 4, 8, 12, 16, 20, 24
sDBG, sWO, sW1, sW2 = 28, 30, 32, 34
sW, sTAG, sRB1, sCT, sU, sNB, sRB, sFB = 36, 37, 38, 39, 40, 41, 42, 43
sHI = 44
sMASK = 46
sHEAD = 47
sT = 48
sST = 64
sSAME, sXCC = 86, 87
sVM = 88
sWOO, sW1O, sW2B, sW2O = 90, 91, 92, 93
sFLB = 94
sW1M = 95
sTM = 96
sRPD, sRPF, sRPT = 98, 99, 100
WSR = f"s[{sWS}:{sWS+3}]"

vL16 = 2
vFLG = 254


class Gen:
    def __init__(self, opt):
        self.o = opt
        self.c = Code()
        self.ool = Code()
        self.stamp_names = []
        self.lab = 0
        self.ld = opt.get('ld', 'sc1')

    def label(self, base):
        self.lab += 1
        return f"L{base}_{self.lab}"

    def sub(self, fn, *a):
        k = Code()
        old, self.c = self.c, k
        fn(*a)
        self.c = old
        return k.ins

    def stamp(self, name, group='main'):
        if not self.o.get('stamps'):
            return
        if self.o.get('zoom', 'main') not in group.split() and name != 't0':
            return
        if name in self.stamp_names:
            idx = self.stamp_names.index(name)
        else:
            idx = len(self.stamp_names)
            self.stamp_names.append(name)
        assert idx < 22, name
        c = self.c
        c(f"{'s_memtime' if self.o.get('cyc') else 's_memrealtime'} s[{sTM}:{sTM+1}]")
        c("s_waitcnt lgkmcnt(0)")
        c(f"s_mov_b32 s{sST+idx}, s{sTM}")

    def dump_stamps(self):
        if not self.o.get('stamps'):
            return
        c = self.c
        c(f"s_lshl_b32 s{sT}, s2, 2")
        c(f"s_add_u32 s{sT}, s{sT}, s{sW}")
        c(f"s_lshl_b32 s{sT}, s{sT}, 7")
        c(f"s_add_u32 s{sT}, s{sT}, {ST_OFF}")
        c("v_mov_b32 v3, 0")
        c("s_mov_b64 exec, 1")
        for i in range(0, 24, 4):
            for j in range(4):
                c(f"v_mov_b32 v{4+j}, s{sST+i+j}")
            c(f"buffer_store_dwordx4 v[4:7], v3, {WSR}, s{sT} offen offset:{i*4}")
        c("s_mov_b64 exec, -1")

    def prologue(self):
        c, o = self.c, self.o
        if o.get('stamps'):
            for i in range(24):
                c(f"s_mov_b32 s{sST+i}, 0")
            self.stamp("t0")
        c("s_cmp_ge_u32 s2, 256")
        c("s_cbranch_scc1 Lend")
        c(f"s_load_dwordx2 s[{sX}:{sX+1}], s[0:1], 0")
        c(f"s_load_dwordx2 s[{sWQ}:{sWQ+1}], s[0:1], 8")
        c(f"s_load_dwordx2 s[{sWS}:{sWS+1}], s[0:1], 64")
        c(f"s_load_dwordx2 s[{sWO}:{sWO+1}], s[0:1], 16")
        c(f"s_load_dwordx4 s[{sW1}:{sW1+3}], s[0:1], 32")
        c(f"s_load_dwordx2 s[{sOUT}:{sOUT+1}], s[0:1], 48")
        c(f"s_getpc_b64 s[{sT}:{sT+1}]")
        c(f"s_lshr_b32 s{sT+3}, s2, 3")
        c(f"s_lshl_b32 s{sT+2}, s{sT+3}, 11")
        c(f"v_lshl_add_u32 v2, v0, 7, s{sT+2}")
        c("v_min_u32 v2, Lcode_end-Lpc0-256, v2")
        c("v_cmp_gt_u32 vcc, 16, v0")
        c(f"s_and_saveexec_b64 s[{sT+4}:{sT+5}], vcc")
        c("s_cbranch_execz Lpc0")
        c.cond(True)
        c(f"global_load_dword v255, v2, s[{sT}:{sT+1}]")
        c.ins[-1].wr = []
        c.cond(False)
        c("Lpc0:")
        c("s_mov_b64 exec, -1")
        c("v_lshrrev_b32 v2, 6, v0")
        c("v_and_b32 v1, 63, v0")
        c(f"v_readfirstlane_b32 s{sW}, v2")
        c(f"s_and_b32 s{sT}, s2, 7")
        if o.get('p1map', 'C') == 'C':
            c(f"s_lshr_b32 s{sRB1}, s{sT}, 1")
            c(f"s_and_b32 s{sT+2}, s{sT+3}, 3")
            c(f"s_lshl2_add_u32 s{sRB1}, s{sRB1}, s{sT+2}")
            c(f"s_lshr_b32 s{sT+2}, s{sT+2}, 1")
            c(f"s_lshr_b32 s{sCT}, s{sT+3}, 2")
            c(f"s_cmp_eq_u32 s{sCT}, 7")
            c(f"s_cselect_b32 s{sT+2}, s{sT+2}, 0")
            c(f"s_xor_b32 s{sT+2}, s{sT+2}, s{sT}")
            c(f"s_and_b32 s{sT+2}, s{sT+2}, 1")
            c(f"s_lshl3_add_u32 s{sCT}, s{sT+2}, s{sCT}")
        elif o.get('p1map') == 'A':
            c(f"s_lshr_b32 s{sRB1}, s{sT+3}, 4")
            c(f"s_lshl1_add_u32 s{sRB1}, s{sT}, s{sRB1}")
            c(f"s_and_b32 s{sCT}, s{sT+3}, 15")
        else:
            c(f"s_and_b32 s{sRB1}, s{sT}, 1")
            c(f"s_and_b32 s{sT+2}, s{sT+3}, 7")
            c(f"s_lshl3_add_u32 s{sRB1}, s{sRB1}, s{sT+2}")
            c(f"s_lshr_b32 s{sCT}, s{sT}, 1")
            c(f"s_lshr_b32 s{sT+2}, s{sT+3}, 3")
            c(f"s_lshl2_add_u32 s{sCT}, s{sCT}, s{sT+2}")
        for r, size in ((sX, 2048 * 1280), (sWQ, 640 * 3840)):
            c(f"s_mov_b32 s{r+2}, {size}")
            c(f"s_mov_b32 s{r+3}, 0x20000")

    def base_setup(self):
        c = self.c
        c(f"s_add_u32 s{sTM}, s{sWS}, {EP_OFF}")
        c(f"s_addc_u32 s{sTM+1}, s{sWS+1}, 0")
        c(f"s_load_dword s{sTAG}, s[{sTM}:{sTM+1}], 0")
        for r, size in ((sWS, WS_SIZE), (sOUT, 2048 * 1280)):
            c(f"s_mov_b32 s{r+2}, {size}")
            c(f"s_mov_b32 s{r+3}, 0x20000")
        c(f"s_mov_b32 s{sHI}, 0")
        c(f"s_mov_b32 s{sHI+1}, -1")
        c(f"s_mov_b32 s{sMASK}, 0xffff0000")
        c(f"s_mov_b32 s{sFLB}, {FL_OFF}")

    def common_setup(self):
        c = self.c
        c(f"s_and_b32 s{sT}, s2, 7")
        c(f"s_lshr_b32 s{sT+1}, s2, 3")
        c(f"s_lshr_b32 s{sU}, s{sT+1}, 3")
        c(f"s_lshl2_add_u32 s{sU}, s{sT}, s{sU}")
        c(f"s_and_b32 s{sNB}, s{sT+1}, 7")
        c(f"s_lshr_b32 s{sRB}, s{sU}, 1")
        c(f"s_and_b32 s{sFB}, s{sT+1}, 15")
        c(f"s_lshl2_add_u32 s{sHEAD}, s{sNB}, s{sW}")
        c(f"s_getreg_b32 s{sXCC}, hwreg(HW_REG_XCC_ID, 0, 4)")
        c(f"v_lshlrev_b32 v{vL16}, 4, v1")
        c(f"s_mul_i32 s{sWOO}, s{sHEAD}, 25600")
        c(f"s_add_u32 s{sWOO}, s{sWOO}, {WO_OFF}")
        c(f"s_mul_i32 s{sW1O}, s{sFB}, 216")
        c(f"s_and_b32 s{sW1O}, s{sW1O}, -16")
        c(f"s_mul_i32 s{sW1M}, s{sW}, {160*3456}")
        c(f"s_add_u32 s{sW1O}, s{sW1O}, s{sW1M}")
        c(f"s_mul_i32 s{sW1M}, s{sW}, {35*1024}")
        c(f"s_mul_i32 s{sW2B}, s{sHEAD}, {70*1024}")
        c(f"s_add_u32 s{sW2B}, s{sW2B}, {W2_OFF}")
        c(f"s_mul_i32 s{sT}, s{sW}, 20")
        c(f"s_lshl_b32 s{sT+1}, s{sNB}, 7")
        c(f"s_add_u32 s{sT}, s{sT}, s{sT+1}")
        c(f"s_add_u32 s{sT}, s{sT}, {FWO_OFF - FL_OFF}")
        c(f"v_min_u32 v{self.vWOF}, 4, v1")
        c(f"v_lshl_add_u32 v{self.vWOF}, v{self.vWOF}, 2, s{sT}")

    def tag_ready(self):
        self.c(f"s_add_u32 s{sTAG}, s{sTAG}, {TAGC}")

    def flag_store(self, so, st='sc1'):
        c = self.c
        c(f"v_mov_b32 v{vFLG}, s{sTAG}")
        c("s_mov_b64 exec, 1")
        h = c(f"buffer_store_dword v{vFLG}, off, {WSR}, s{so} {st}")
        c("s_mov_b64 exec, -1")
        return h

    def poll(self, va, vd=vFLG, span=False, sleep=0):
        c = self.c
        L, Ld = self.label("pl"), self.label("pd")
        n = sT + 12
        c(f"s_mov_b32 s{n}, {SPIN_MAX}")
        c(f"{L}:")
        c(f"buffer_load_dword v{vd}, v{va}, {WSR}, s{sFLB} offen sc1")
        c(f"s_sub_u32 s{n}, s{n}, 1")
        c(f"s_cbranch_scc1 {Ld}")
        c("s_waitcnt vmcnt(0)")
        self.tag_cmp(vd, span)
        if sleep:
            c(f"s_cbranch_vccz {Ld}")
            c(f"s_sleep {sleep}")
            c(f"s_branch {L}")
        else:
            c(f"s_cbranch_vccnz {L}")
        c(f"{Ld}:")
        c("s_waitcnt vmcnt(0)")

    def tag_cmp(self, vd, span):
        c = self.c
        if span:
            c(f"v_subrev_u32 v253, s{sTAG}, v{vd}")
            c(f"v_cmp_le_u32 vcc, 16, v253")
        else:
            c(f"v_cmp_ne_u32 vcc, s{sTAG}, v{vd}")

    def flag_check(self, vd, va, span=False):
        c = self.c
        Ls, Lb = self.label("fs"), self.label("fb")
        self.tag_cmp(vd, span)
        c("s_nop 3")
        c(f"s_cbranch_vccnz {Ls} ; noflush")
        c(f"{Lb}: ; noflush")
        old, self.c = self.c, self.ool
        self.c(f"{Ls}:")
        self.c("s_nop 15")
        self.poll(va, vd, span, sleep=4)
        self.c(f"s_branch {Lb}")
        self.c = old

    def flag_store_near(self, so):
        c = self.c
        Lf, Lb = self.label("far"), self.label("near")
        c(f"v_mov_b32 v{vFLG}, s{sTAG}")
        c(f"s_cmp_eq_u32 s{sSAME}, 0")
        c("s_mov_b64 exec, 1")
        c(f"s_cbranch_scc1 {Lf} ; noflush")
        c(f"buffer_store_dword v{vFLG}, off, {WSR}, s{so}")
        c(f"{Lb}: ; noflush")
        c("s_mov_b64 exec, -1")
        k = self.ool
        k(f"{Lf}:")
        k(f"buffer_store_dword v{vFLG}, off, {WSR}, s{so} sc1")
        k(f"s_branch {Lb}")

    NS = 3
    P1_WB = 3 * 16384
    P1_EX = 6 * 16384
    vXD, vWD, vXA, vWA, vXS, vWS_, vSEL, vSQ, vTMP, vRS, vCS = 4, 8, 12, 16, 18, 22, 24, 23, 28, 36, 40
    vPA = 44
    vRP = 52
    vWOF, vWOD = 59, 60
    vW1D = 246
    vACC, vFR, vSF, vEP = 64, 128, 160, 176
    sKC, sKX, sKW, sW4 = sT + 8, sT + 9, sT + 10, sT + 11

    def p1_setup(self):
        c, o = self.c, self.o
        t = self.vTMP
        big, small = (sCT, sRB1) if o.get('p1map', 'C') == 'B' else (sRB1, sCT)
        c(f"s_mul_i32 s{sT}, s{big}, 3")
        c(f"s_add_u32 s{sT}, s{sT}, s{small}")
        c(f"s_mul_i32 s{sT+1}, s{sT}, 205")
        c(f"s_lshr_b32 s{sT+1}, s{sT+1}, 11")
        c(f"s_mul_i32 s{sT+1}, s{sT+1}, 10")
        c(f"s_sub_u32 s{self.sKC}, s{sT}, s{sT+1}")
        assert all((v * 205) >> 11 == v // 10 for v in range(64))
        c(f"s_lshl_b32 s{self.sW4}, s{sW}, 12")
        c(f"s_lshl2_add_u32 s{sT}, s{sRB1}, s{sW}")
        c(f"s_mul_i32 s{sT}, s{sT}, {32*1280}")
        c(f"v_lshrrev_b32 v{t}, 3, v1")
        c(f"v_mul_u32_u24 v{t}, 1280, v{t}")
        c(f"v_lshrrev_b32 v{t+1}, 4, v1")
        c(f"v_and_b32 v{t+2}, 7, v1")
        c(f"v_xor_b32 v{t+2}, v{t+2}, v{t+1}")
        c(f"v_lshlrev_b32 v{t+2}, 4, v{t+2}")
        c(f"v_add3_u32 v{self.vXD}, v{t+2}, v{t}, s{sT}")
        c(f"v_xor_b32 v{t+3}, 64, v{self.vXD}")
        c(f"v_add_u32 v{self.vXD+1}, {10240-1024}, v{t+3}")
        c(f"v_add_u32 v{self.vXD+2}, {2*(10240-1024)}, v{self.vXD}")
        c(f"v_add_u32 v{self.vXD+3}, {3*(10240-1024)}, v{t+3}")
        c(f"s_mul_i32 s{sT}, s{sW}, {16*3840}")
        c(f"s_lshl_b32 s{sT+1}, s{sCT}, 8")
        c(f"s_add_u32 s{sT}, s{sT}, s{sT+1}")
        c(f"v_mul_u32_u24 v{t}, 3840, v{t+1}")
        c(f"v_and_b32 v{t+2}, 15, v1")
        c(f"v_lshlrev_b32 v{t+3}, 2, v{t+1}")
        c(f"v_xor_b32 v{t+2}, v{t+2}, v{t+3}")
        c(f"v_lshlrev_b32 v{t+2}, 4, v{t+2}")
        c(f"v_add3_u32 v{self.vWD}, v{t+2}, v{t}, s{sT}")
        for j in range(1, 4):
            c(f"v_add_u32 v{self.vWD+j}, {j*(4*3840-1024)}, v{self.vWD}")

    def p1_dma(self, s):
        slot = s % self.NS
        pre = []
        if s > 0:
            pre += [I(f"s_add_u32 s{self.sKC}, s{self.sKC}, 1"),
                    I(f"s_cmp_eq_u32 s{self.sKC}, 10"),
                    I(f"s_cselect_b32 s{self.sKC}, 0, s{self.sKC}")]
        items = []
        for j in range(4):
            d = I(f"buffer_load_dwordx4 v{self.vXD+j}, s[{sX}:{sX+3}], s{self.sKX} offen offset:{j*1024} lds")
            items.append(([I(f"s_add_u32 m0, s{self.sW4}, {slot*16384}"), I(f"s_lshl_b32 s{self.sKX}, s{self.sKC}, 7")] if j == 0 else []) + [d])
        for j in range(4):
            d = I(f"buffer_load_dwordx4 v{self.vWD+j}, s[{sWQ}:{sWQ+3}], s{self.sKW} offen offset:{j*1024} lds")
            items.append(([I(f"s_add_u32 m0, s{self.sW4}, {self.P1_WB + slot*16384}"), I(f"s_mul_i32 s{self.sKW}, s{self.sKC}, {64*3840}")] if j == 0 else []) + [d])
        return pre, items, d

    def p1_setup2(self):
        c = self.c
        t = self.vTMP
        c(f"s_lshr_b32 s{sT}, s{sW}, 1")
        c(f"s_and_b32 s{sT+1}, s{sW}, 1")
        c(f"v_and_b32 v{t+4}, 31, v1")
        c(f"s_lshl_b32 s{sT+2}, s{sT}, 13")
        c(f"v_lshl_add_u32 v{t}, v{t+4}, 7, s{sT+2}")
        c(f"v_lshrrev_b32 v{t+1}, 5, v1")
        c(f"v_bfe_u32 v{t+2}, v1, 1, 3")
        c(f"v_xor_b32 v{t+2}, v{t+2}, v{t+1}")
        c(f"v_lshl_add_u32 v{self.vXA}, v{t+2}, 4, v{t}")
        c(f"s_lshl_b32 s{sT+2}, s{sT+1}, 12")
        for p in range(4):
            if p:
                c(f"v_xor_b32 v{self.vXA+p}, {p*32}, v{self.vXA}")
            c(f"v_add_u32 v{self.vXS+p}, s{sT+2}, v{self.vXA+p}")
        c(f"v_bfe_u32 v{t+2}, v1, 2, 2")
        c(f"v_lshl_add_u32 v{t}, v{t+1}, 3, v{t+2}")
        c(f"v_lshlrev_b32 v{t}, 8, v{t}")
        c(f"v_lshl_add_u32 v{t}, v{t+2}, 6, v{t}")
        c(f"v_bfe_u32 v{t+2}, v1, 4, 1")
        c(f"v_lshl_add_u32 v{t}, v{t+2}, 5, v{t}")
        c(f"v_and_b32 v{t+2}, 3, v1")
        c(f"v_lshl_add_u32 v{t}, v{t+2}, 3, v{t}")
        c(f"v_add_u32 v{t}, {self.P1_WB}, v{t}")
        c(f"s_lshl_b32 s{sT+2}, s{sT+1}, 7")
        c(f"v_xor_b32 v{self.vWA}, s{sT+2}, v{t}")
        c(f"v_xor_b32 v{self.vWA+1}, 64, v{self.vWA}")
        c(f"s_lshl_b32 s{sT+2}, s{sW}, 6")
        c(f"v_xor_b32 v{self.vWS_}, s{sT+2}, v{t}")
        c(f"v_lshrrev_b32 v{t}, 2, v1")
        c(f"v_xor_b32 v{t}, v{t}, v1")
        c(f"v_and_b32 v{t}, 4, v{t}")
        c(f"v_cmp_eq_u32 vcc, 0, v{t}")
        c(f"v_mov_b32 v{t}, 0x3f803f80")
        for j in range(4):
            c(f"v_cndmask_b32 v{self.vSEL+j}, 0, v{t}, vcc")
        c(f"v_mov_b32 v{self.vSQ}, 0")

    def p1_setup3(self, k0):
        c = self.c
        t = self.vTMP
        pa = self.vPA
        c(f"s_lshl2_add_u32 s{sT+2}, s{sRB1}, s{sW}")
        c(f"s_mul_i32 s{sT+2}, s{sT+2}, 2560")
        c(f"s_add_u32 s{sT+2}, s{sT+2}, {RST_OFF}")
        c(f"v_lshl_add_u32 v{t}, v{t+4}, 3, s{sT+2}")
        c(f"v_mul_u32_u24 v{t+2}, 1280, v{t+1}")
        c(f"v_add_u32 v{pa+2}, v{t}, v{t+2}")
        c(f"s_lshl_b32 s{sT+2}, s{k0}, 8")
        c(f"v_add_u32 v{t}, s{sT+2}, v{t}")
        c(f"v_mov_b32 v{t+3}, {OOB}")
        c(f"v_cndmask_b32 v{pa}, v{t}, v{t+3}, s[{sHI}:{sHI+1}]")
        c(f"s_lshl2_add_u32 s{sT+2}, s{sCT}, s{sW}")
        c(f"s_mul_i32 s{sT+2}, s{sT+2}, 1280")
        c(f"s_add_u32 s{sT+2}, s{sT+2}, {CST_OFF}")
        c(f"v_lshl_add_u32 v{t}, v{t+4}, 2, s{sT+2}")
        c(f"v_mul_u32_u24 v{t+2}, 640, v{t+1}")
        c(f"v_add_u32 v{pa+3}, v{t}, v{t+2}")
        c(f"s_lshl_b32 s{sT+2}, s{k0}, 7")
        c(f"v_add_u32 v{t}, s{sT+2}, v{t}")
        c(f"v_cndmask_b32 v{pa+1}, v{t}, v{t+3}, s[{sHI}:{sHI+1}]")
        c(f"s_lshl_b32 s{sT+2}, s{sRB1}, 7")
        c(f"s_add_u32 s{sT+2}, s{sT+2}, {FR_OFF - FL_OFF}")
        c(f"s_lshl_b32 s{sT+3}, s{sCT}, 7")
        c(f"s_add_u32 s{sT+3}, s{sT+3}, {FC_OFF - FL_OFF}")
        c(f"v_mov_b32 v{t}, s{sT+2}")
        c(f"v_mov_b32 v{t+2}, s{sT+3}")
        c(f"v_cndmask_b32 v{t}, v{t}, v{t+2}, s[{sHI}:{sHI+1}]")
        c(f"v_min_u32 v{t+2}, 9, v{t+4}")
        c(f"v_lshl_add_u32 v{pa+5}, v{t+2}, 2, v{t}")
        c(f"s_lshl_b32 s{sT+2}, s{k0}, 2")
        c(f"v_add_u32 v{t}, s{sT+2}, v{t}")
        c(f"s_cmp_lt_u32 s{sCT}, 10")
        c(f"s_cselect_b32 s{sT+2}, 1, 0")
        c(f"s_cmp_lt_u32 s{sRB1}, 10")
        c(f"s_cselect_b32 s{sT+3}, 1, 0")
        c(f"s_cmp_eq_u32 s{sW}, 0")
        c(f"s_cselect_b64 s[{sT+2}:{sT+3}], s[{sT+2}:{sT+3}], 0")
        c(f"v_cndmask_b32 v{pa+4}, v{t+3}, v{t}, s[{sT+2}:{sT+3}]")
        c(f"s_lshl_b32 s{sT+2}, s{sW}, 7")
        c(f"s_add_u32 s{sT+2}, s{sT+2}, {self.P1_EX}")
        c(f"v_lshl_add_u32 v{pa+6}, v{t+4}, 2, s{sT+2}")

    def fx_publish(self):
        return [I(f"s_lshl_b32 s{sT}, s{sRB}, 7"),
                I(f"s_lshl2_add_u32 s{sT}, s{sFB}, s{sT}"),
                I(f"s_add_u32 s{sT}, s{sT}, {FX_OFF}"),
                I(f"s_add_u32 s{sT+1}, s{sTAG}, s{sXCC}"),
                I(f"v_mov_b32 v61, s{sT+1}"),
                I(f"v_min_u32 v62, 1, v0"),
                I(f"v_lshlrev_b32 v62, 30, v62"),
                I(f"buffer_store_dword v61, v62, {WSR}, s{sT} offen sc1")]

    def p1_reads(self, s, p):
        slot = s % self.NS
        fr = self.vFR + 16 * (p & 1)
        X = lambda a: I(f"ds_read_b128 {vr(fr+4*a, 4)}, v{self.vXA+p} offset:{slot*16384 + a*4096}")
        Wt = lambda b, t: I(f"ds_read_b64_tr_b16 {vr(fr+8+4*b+2*t, 2)}, v{self.vWA+b} offset:{slot*16384 + p*4096 + t*1024}")
        r = [X(0), Wt(0, 0), Wt(0, 1), Wt(1, 0), Wt(1, 1), X(1)]
        if s == 0:
            sf = self.vSF + 8 * (p & 1)
            r += [I(f"ds_read_b128 {vr(sf, 4)}, v{self.vXS+p}")]
            r += [I(f"ds_read_b64_tr_b16 {vr(sf+4+2*t, 2)}, v{self.vWS_} offset:{p*4096 + t*1024}") for t in range(2)]
        return r

    def p1_stats_finish(self, isv):
        c = self.c
        b, pa = self.vSF, self.vPA
        for i in range(1, 5):
            c(f"v_add_f32 v{b}, v{b}, v{b+2*i}")
            c(f"v_add_f32 v{b+1}, v{b+1}, v{b+2*i+1}")
        c(f"v_mov_b32 v{b+2}, v{b}")
        c(f"v_mov_b32 v{b+3}, v{b+1}")
        for i in range(1, 5):
            c(f"v_add_f32 v{b+10}, v{b+10}, v{b+10+i}")
        c(f"v_permlane32_swap_b32 v{b}, v{b+2}")
        c(f"v_permlane32_swap_b32 v{b+1}, v{b+3}")
        c(f"v_mov_b32 v{b+11}, v{b+10}")
        c(f"v_add_f32 v{b}, v{b}, v{b+2}")
        c(f"v_add_f32 v{b+1}, v{b+1}, v{b+3}")
        c(f"v_permlane32_swap_b32 v{b+10}, v{b+11}")
        c(f"v_mul_f32 v{b}, {hex(f2u(-1.0/640))}, v{b}")
        c(f"v_mul_f32 v{b+1}, {hex(f2u(1.0/640))}, v{b+1}")
        c(f"v_add_f32 v{b+10}, v{b+10}, v{b+11}")
        c(f"v_fma_f32 v{b+1}, -v{b}, v{b}, v{b+1}")
        c(f"ds_write_b32 v{pa+6}, v{b}")
        c(f"v_max_f32 v{b+1}, 0, v{b+1}")
        c(f"v_add_f32 v{b+1}, {hex(f2u(1e-5))}, v{b+1}")
        c(f"v_rsq_f32 v{b+1}, v{b+1}")
        c(f"ds_write_b32 v{pa+6}, v{b+10} offset:1024")
        if not isv:
            c(f"v_mul_f32 v{b+1}, s{sT+7}, v{b+1}")
        c(f"ds_write_b32 v{pa+6}, v{b+1} offset:512")

    def p1_ep_prep(self, isv):
        c = self.c
        t = self.vTMP
        EX = self.P1_EX
        c(f"s_lshr_b32 s{sT}, s{sW}, 1")
        c(f"s_and_b32 s{sT+1}, s{sW}, 1")
        c(f"s_lshl1_add_u32 s{sT+2}, s{sRB1}, s{sT}")
        c(f"s_lshl1_add_u32 s{sT+3}, s{sCT}, s{sT+1}")
        c(f"s_lshl_b32 s{sT}, s{sT}, 8")
        c(f"s_add_u32 s{sT}, s{sT}, {EX}")
        c(f"s_lshl_b32 s{sT+1}, s{sT+1}, 8")
        c(f"s_add_u32 s{sT+1}, s{sT+1}, {EX+1024}")
        c(f"v_lshrrev_b32 v{t+4}, 5, v1")
        c(f"v_and_b32 v{t+5}, 31, v1")
        c(f"v_lshl_add_u32 v{t}, v{t+5}, 2, s{sT+(1 if isv else 0)}")
        c(f"v_lshl_add_u32 v{t+1}, v{t+4}, 4, s{sT+(0 if isv else 1)}")
        c(f"s_lshl_b32 s{sT+13}, s{sRB1}, 7")
        c(f"s_lshl2_add_u32 s{sT+13}, s{sCT}, s{sT+13}")
        c(f"s_add_u32 s{sT+13}, s{sT+13}, {F1_OFF}")
        if not isv:
            qs = (20 ** -0.5) * 1.4426950408889634
            c(f"s_mul_i32 s{sT+4}, s{sT+2}, 163840")
            c(f"s_lshl_b32 s{sT+5}, s{sT+3}, 13")
            c(f"s_add_u32 s{sT+4}, s{sT+4}, s{sT+5}")
            c(f"s_add_u32 s{sT+5}, s{sT+4}, 4096")
            c(f"s_cmp_lt_u32 s{sCT}, 5")
            c(f"s_cselect_b32 s{sT+7}, {hex(f2u(qs))}, 1.0")
        else:
            c(f"s_mul_i32 s{sT+4}, s{sT+2}, 81920")
            c(f"s_lshl_b32 s{sT+5}, s{sT+3}, 10")
            c(f"s_add_u32 s{sT+4}, s{sT+4}, s{sT+5}")
            c(f"s_add_u32 s{sT+4}, s{sT+4}, {V_OFF - 10*2048}")
            for q in range(1, 4):
                c(f"s_add_u32 s{sT+4+q}, s{sT+4}, {q*20480}")
            c(f"v_mul_u32_u24 v{t+4}, {10240-512}, v{t+4}")
            c(f"v_add_u32 v{t+4}, v{vL16}, v{t+4}")

    def p1_ep_reads(self, isv):
        t, e = self.vTMP, self.vEP
        r = []
        if not isv:
            for a in range(2):
                r.append(I(f"ds_read2st64_b32 {vr(t+2+4*a,2)}, v{t} offset0:0 offset1:2") if a == 0 else
                         I(f"ds_read2_b32 {vr(t+6,2)}, v{t} offset0:32 offset1:160"))
            for b in range(2):
                for j in range(4):
                    r.append(I(f"ds_read_b128 {vr(e+16*b+4*j, 4)}, v{t+1} offset:{(32*b+8*j)*4}"))
        else:
            r.append(I(f"ds_read2_b32 {vr(t+2,2)}, v{t} offset0:0 offset1:32"))
            for a in range(2):
                for j in range(4):
                    r.append(I(f"ds_read_b128 {vr(e+16*a+4*j, 4)}, v{t+1} offset:{(32*a+8*j)*4}"))
                    r.append(I(f"ds_read_b128 {vr(e+32+16*a+4*j, 4)}, v{t+1} offset:{512+(32*a+8*j)*4}"))
        return r

    def p1_loop(self, isv, h0, h1):
        c, o = self.c, self.o
        hd = {0: h0, 1: h1}
        pa, b = self.vPA, self.vSF
        c.wait(h0)
        c("s_barrier")
        self.stamp("b0", "main p1")
        R = self.p1_reads(0, 0)
        c.add(R)
        pre, dma, hd[2] = self.p1_dma(2)
        c.add(pre); c.add(dma[:2]); dma = dma[2:]
        t = self.vTMP
        extra = {}
        pub = [I(f"v_mov_b32 v{self.vRS+1}, v{self.vSQ}"), I("s_nop 0"),
               I(f"v_permlane32_swap_b32 v{self.vRS+1}, v{self.vSQ}"),
               I(f"v_add_f32 v{self.vRS+1}, v{self.vRS+1}, v{self.vSQ}"),
               I(f"buffer_store_dwordx2 {vr(self.vRS,2)}, v{pa}, {WSR}, 0 offen sc1"),
               I(f"buffer_store_dword v{self.vCS}, v{pa+1}, {WSR}, 0 offen sc1")]
        extra[(1, 0)] = pub
        cs = glue(self.sub(self.common_setup) + self.sub(self.tag_ready) + self.fx_publish())
        for k in range(3):
            extra[(1, 1 + k)] = cs[k * 13:(k + 1) * 13]
        assert len(cs) <= 39
        cs = glue(self.sub(self.rp_setup_unit))
        sps = [(q, p) for q in range(2, 6) for p in range(4) if (q, p) != (2, 3)]
        for k, sp in enumerate(sps):
            extra[sp] = cs[k * 12:(k + 1) * 12]
        assert len(cs) <= 12 * len(sps), len(cs)
        extra[(2, 3)] = [I(f"v_mov_b32 v{vFLG}, s{sTAG}"),
                         I(f"buffer_store_dword v{vFLG}, v{pa+4}, {WSR}, s{sFLB} offen sc1", waits=[pub[-1]])]
        extra[(6, 2)] = [[], [], [I(f"buffer_load_dword v{pa+7}, v{pa+5}, {WSR}, s{sFLB} offen sc1"),
                                  I(f"buffer_load_dword v{self.vWOD}, v{self.vWOF}, {WSR}, s{sFLB} offen sc1")]]
        ep = glue(self.sub(self.p1_ep_prep, isv))
        extra[(6, 0)] = ep[:12]; extra[(6, 1)] = ep[12:]
        stl = [I(f"buffer_load_dwordx2 {vr(b+2*i,2)}, v{pa+2}, {WSR}, 0 offen offset:{i*256} sc1") for i in range(5)]
        stl += [I(f"buffer_load_dword v{b+10+i}, v{pa+3}, {WSR}, 0 offen offset:{i*128} sc1") for i in range(5)]
        extra[(7, 3)] = [self.sub(self.flag_check, pa + 7, pa + 5)] + stl[:3]
        extra[(8, 0)] = stl[3:]
        fin = self.sub(self.p1_stats_finish, isv)
        extra[(9, 1)] = fin[:16]; extra[(9, 2)] = fin[16:]
        wo = self.wo_loads()[:o.get('wot', 25)]
        if wo:
            wo[0] = [self.sub(self.flag_check, self.vWOD, self.vWOF), wo[0]]
        sps = [(8, 1), (8, 2), (8, 3), (9, 0), (9, 1), (9, 2), (9, 3)]
        per = -(-len(wo) // len(sps))
        for k, sp in enumerate(sps):
            extra[sp] = interleave(extra.get(sp, []), wo[k * per:(k + 1) * per]) if sp in extra else wo[k * per:(k + 1) * per]
        for s in range(10):
            for p in range(4):
                fr = self.vFR + 16 * (p & 1)
                first = (s == 0 and p == 0)
                M = []
                for a, bb in ((0, 0), (0, 1), (1, 1), (1, 0)):
                    d = vr(self.vACC + 32 * a + 16 * bb, 16)
                    xa, wb = vr(fr + 4 * a, 4), vr(fr + 8 + 4 * bb, 4)
                    A, B = (xa, wb) if isv else (wb, xa)
                    M.append(I(f"v_mfma_f32_32x32x16_bf16 {d}, {A}, {B}, {0 if first else d}"))
                if not first and o.get('onewait', 1):
                    M[0].waits = [R[5]]
                bar, pre = [], []
                if p < 3:
                    R = self.p1_reads(s, p + 1)
                elif s < 9:
                    R = self.p1_reads(s + 1, 0)
                    bar = [W(hd[s + 1]), I("s_barrier")]
                    if s == 0:
                        bar = [I("s_waitcnt lgkmcnt(0)")] + bar
                else:
                    R = self.p1_ep_reads(isv)
                    bar = [I("s_waitcnt lgkmcnt(0)"), I("s_barrier")]
                if p == 2 and s + 3 < 10:
                    pre, nxt, hd[s + 3] = self.p1_dma(s + 3)
                if p == 3 and s + 3 < 10:
                    dma = nxt
                D = dma[:2]; dma = dma[2:]
                D = D + [[]] * (2 - len(D))
                X = extra.get((s, p), [])
                n3 = -(-len(X) // 3)
                gaps = [bar + R[:6], R[6:12] + [D[0]] + X[:n3], R[12:] + [D[1]] + X[n3:2 * n3], pre + X[2 * n3:]]
                if s == 0:
                    sf = self.vSF + 8 * (p & 1)
                    d = vr(self.vRS, 4)
                    M.append(I(f"v_mfma_f32_16x16x32_bf16 {d}, {vr(self.vSEL,4)}, {vr(sf,4)}, {0 if p == 0 else d}"))
                    d = vr(self.vCS, 4)
                    M.append(I(f"v_mfma_f32_16x16x32_bf16 {d}, {vr(self.vSEL,4)}, {vr(sf+4,4)}, {0 if p == 0 else d}"))
                    V = []
                    for j in range(4):
                        V += [I(f"v_lshlrev_b32 v{t+2*(j&1)}, 16, v{sf+j}"),
                              I(f"v_and_b32 v{t+1+2*(j&1)}, s{sMASK}, v{sf+j}"),
                              I(f"v_fmac_f32 v{self.vSQ}, v{t+2*(j&1)}, v{t+2*(j&1)}"),
                              I(f"v_fmac_f32 v{self.vSQ}, v{t+1+2*(j&1)}, v{t+1+2*(j&1)}")]
                    gaps = [gaps[0], gaps[1] + V[:2], gaps[2] + V[2:7], gaps[3] + V[7:12], V[12:14], V[14:]]
                for m, g in zip(M, gaps):
                    c.add(m); c.add(g)
                if p == 3 or (s >= 7 and p == 1):
                    self.stamp(f"e{s}{p}", "p1")

    def p1_epilogue(self, isv):
        c = self.c
        t, e = self.vTMP, self.vEP
        ob = self.vFR
        if not isv:
            for b in range(2):
                for j in range(4):
                    out = ob + 16 * b + 4 * j
                    rr = [(self.vACC + 32 * a + 16 * b + 4 * j + 2 * q, e + 16 * b + 4 * j + 2 * q, t + 2 + 4 * a) for a in range(2) for q in range(2)]
                    for r, cs, sv in rr:
                        c(f"v_pk_fma_f32 {vr(r,2)}, {vr(cs,2)}, {vr(sv,2)}, {vr(r,2)} op_sel_hi:[1,0,1]")
                    for r, cs, sv in rr:
                        c(f"v_pk_mul_f32 {vr(r,2)}, {vr(r,2)}, {vr(sv,2)} op_sel:[0,1] op_sel_hi:[1,1]")
                    for k, (r, cs, sv) in enumerate(rr):
                        c(f"v_cvt_pk_bf16_f32 v{out+k}, v{r}, v{r+1}")
                    h = c(f"buffer_store_dwordx4 {vr(out,4)}, v{vL16}, {WSR}, s{sT+4+b} offen offset:{j*1024} sc1")
        else:
            k = 0
            for a in range(2):
                for s in range(2):
                    for b in range(2):
                        out = ob + 4 * k; k += 1
                        sel = "op_sel_hi:[1,0,1]" if b == 0 else "op_sel:[0,1,0] op_sel_hi:[1,1,1]"
                        rr = [(self.vACC + 32 * a + 16 * b + 8 * s + 2 * q, e + 16 * a + 8 * s + 2 * q) for q in range(4)]
                        for r, nm in rr:
                            c(f"v_pk_fma_f32 {vr(r,2)}, {vr(nm,2)}, {vr(t+2,2)}, {vr(r,2)} {sel}")
                        for r, nm in rr:
                            c(f"v_pk_mul_f32 {vr(r,2)}, {vr(r,2)}, {vr(nm+32,2)}")
                        for q, (r, nm) in enumerate(rr):
                            c(f"v_cvt_pk_bf16_f32 v{out+q}, v{r}, v{r+1}")
                        h = c(f"buffer_store_dwordx4 {vr(out,4)}, v{t+4}, {WSR}, s{sT+4+2*a+s} offen offset:{b*512} sc1")
        return h

    def phase1(self):
        c, o = self.c, self.o
        self.p1_setup()
        c(f"s_cmp_eq_u32 s{sCT}, 15")
        c("s_waitcnt lgkmcnt(0)")
        c("s_cbranch_scc1 Lp1_idle")
        c(".save p0")
        self.stamp("start")
        pre, d0, h0 = self.p1_dma(0)
        c.add(d0)
        c(f"s_mov_b32 s{sT+14}, s{self.sKC}")
        pre, d1, h1 = self.p1_dma(1)
        c.add(pre); c.add(d1[:4])
        self.base_setup()
        self.p1_setup2()
        c.add(d1[4:])
        self.p1_setup3(sT + 14)
        c(f"s_cmp_ge_u32 s{sCT}, 10")
        c("s_cbranch_scc1 Lp1_v")
        c(".save p1")
        for isv in (False, True):
            if isv:
                c("Lp1_v:")
                c(".restore p1")
            self.p1_loop(isv, h0, h1)
            self.stamp("p1loop")
            h = self.p1_epilogue(isv)
            if not isv:
                c("s_branch Lp1_done")
        c("Lp1_done:")
        self.stamp("p1epi")
        n0 = o.get('wot', 25)
        self.woq = self.wo_loads()[n0:]
        self.w1q, self.w2q = list(range(35)), list(range(70))
        self.attn_init()
        self.stamp("ainit")
        c.wait(h)
        self.stamp("p1drain")
        c("s_barrier")
        lab = self.label("f1")
        c(f"s_cmp_lg_u32 s{sW}, 0")
        c(f"s_cbranch_scc1 {lab}")
        c.cond(True)
        self.flag_store(sT + 13)
        c.cond(False)
        c(f"{lab}:")
        if not n0:
            self.flag_check(self.vWOD, self.vWOF)
        c("Lp1_join:")
        if o.get('w2src', 0) == 0:
            c.add(self.only_waves(False, self.rp_dma(5, self.RED, 5120)))
        c(f"s_mov_b32 s{sWQ}, s{sW1}")
        c(f"s_mov_b32 s{sWQ+1}, s{sW1+1}")
        c(f"s_mov_b32 s{sWQ+2}, {640*3456}")
        c.add(self.w1_take(o.get('w1s', 14)))
        self.stamp("join")
        old, self.c = self.c, self.ool
        self.idle_path(n0)
        self.c = old

    def idle_path(self, n0):
        c = self.c
        P = self.RPP
        gw = sT + 8
        KV = f"s[{sKV}:{sKV+3}]"
        c("Lp1_idle:")
        c(".restore p0")
        self.base_setup()
        self.common_setup()
        c(f"s_lshl2_add_u32 s{gw}, s{sRB1}, s{sW}")
        c(f"s_mov_b32 s{sKV}, s{sWS}")
        c(f"s_mov_b32 s{sKV+1}, s{sWS+1}")
        c(f"s_mov_b32 s{sKV+3}, 0x20000")
        hd = {}
        for r in range(3):
            self.rp_setup_wo(gw, r)
            d = self.rp_dma(5, r * 5120, 40960, fl='')
            c.add(d); hd['o', r] = d[-1][-1]
        c(f"s_mov_b32 s{sRP}, s{sW1}")
        c(f"s_mov_b32 s{sRP+1}, s{sW1+1}")
        c(f"s_mov_b32 s{sRP+2}, {640*3456}")
        c(f"s_lshl_b32 s{sT+9}, s{gw}, 13")
        c(f"v_lshlrev_b32 v8, 7, v1")

        def touch(j):
            c(f"buffer_load_dword v255, v8, s[{sRP}:{sRP+3}], s{sT+9} offen")
            c.ins[-1].wr = []
            c(f"s_add_u32 s{sT+9}, s{sT+9}, {64*8192}")
        self.tag_ready()
        c.add(self.fx_publish())
        c(f"v_mov_b32 v{vFLG}, s{sTAG}")
        self.rp_addr(16, 160, 0, 40960, False)

        def params(kind, r):
            if kind == 'o':
                self.rp_params_wo(gw, r)
                c(f"s_cmp_lg_u32 s{sRPT}, 0")
                c(f"s_cselect_b32 s{sKV+2}, {WS_SIZE}, 0")
            else:
                c(f"s_mov_b32 s{sKV+2}, {WS_SIZE}")
                c(f"s_and_b32 s{sT}, s{gw}, 15")
                c(f"s_lshr_b32 s{sT+1}, s{gw}, 4")
                c(f"s_add_u32 s{sT+1}, s{sT+1}, {4*r}")
                c(f"s_mul_i32 s{sRPD}, s{sT}, 20")
                c(f"s_add_u32 s{sRPD}, s{sRPD}, s{sT+1}")
                c(f"s_mul_i32 s{sRPD}, s{sRPD}, 7168")
                c(f"s_add_u32 s{sRPD}, s{sRPD}, {W1_OFF}")
                c(f"s_lshl_b32 s{sRPF}, s{sT}, 7")
                c(f"s_lshl2_add_u32 s{sRPF}, s{sT+1}, s{sRPF}")
                c(f"s_add_u32 s{sRPF}, s{sRPF}, {FW1_OFF}")
        hs = {}

        def proc(kind, r, n):
            params(kind, r)
            c.wait(hd[kind, r])
            it = self.rp_items(5, 16, r * 5120, 64 + 20 * n, KV)
            c.add(it); hs[kind, r] = flat(it)[-1]

        def flag(kind, r):
            params(kind, r)
            c.wait(hs[kind, r])
            c("s_mov_b64 exec, 1")
            c(f"buffer_store_dword v{vFLG}, off, {KV}, s{sRPF} sc1")
            c("s_mov_b64 exec, -1")
        nt0 = self.o.get('touch0', 0)
        dbg = self.o.get('idledbg')
        if dbg: self.stamp("start")
        for j in range(nt0):
            touch(j)
        if dbg: c.wait(hd['o', 0]); self.stamp("b0")
        for r in range(3):
            proc('o', r, r)
        if dbg: self.stamp("p1epi")
        for r in range(3):
            flag('o', r)
        if dbg: self.stamp("ainit")
        for j in range(nt0, self.o.get('touchn', 5)):
            touch(j)
        self.stamp("p1loop")
        lab = self.label("ep")
        c(f"s_cmp_lg_u32 s{gw}, 63")
        c(f"s_cbranch_scc1 {lab}")
        c(f"v_lshrrev_b32 v8, 4, v1")
        c(f"v_and_b32 v9, 15, v1")
        c(f"v_lshlrev_b32 v8, 7, v8")
        c(f"v_lshl_add_u32 v8, v9, 2, v8")
        for j in range(4):
            c(f"v_add_u32 v9, {FX_OFF - FL_OFF + j*512}, v8")
            self.poll(9, span=True, sleep=16)
        c(f"s_mov_b32 s{sT}, {EP_OFF}")
        self.flag_store(sT)
        c(f"{lab}:")
        self.rp_setup_unit()
        self.attn_init()
        self.poll(self.vWOF, self.vWOD, sleep=8)
        c("s_barrier")
        c.add(self.wo_loads()[:n0])
        c("s_branch Lp1_join")

    RPP = dict(pitch=sT, col=sT + 1, nch=sT + 2, mch=sT + 3, v0=sT + 4, dm=sT + 5, dd=sT + 6, aa=sT + 7, lim=sT + 12, r0=sT + 13, u=sT + 14)

    def rp_params_wo(self, gw, r):
        c = self.c
        u = self.RPP['u']
        c(f"s_add_u32 s{u}, s{gw}, {64*r}")
        c(f"s_cmp_lt_u32 s{u}, 160")
        c(f"s_cselect_b32 s{sRPT}, 1, 0")
        c(f"s_and_b32 s{u+1}, s{u}, 7")
        c(f"s_lshr_b32 s{u}, s{u}, 3")
        c(f"s_mul_i32 s{sRPD}, s{u+1}, 20")
        c(f"s_add_u32 s{sRPD}, s{sRPD}, s{u}")
        c(f"s_mul_i32 s{sRPD}, s{sRPD}, 5120")
        c(f"s_add_u32 s{sRPD}, s{sRPD}, {WO_OFF}")
        c(f"s_lshl_b32 s{sRPF}, s{u+1}, 7")
        c(f"s_lshl2_add_u32 s{sRPF}, s{u}, s{sRPF}")
        c(f"s_add_u32 s{sRPF}, s{sRPF}, {FWO_OFF}")

    def rp_setup_wo(self, gw, r):
        c = self.c
        P = self.RPP
        u = P['u']
        c(f"s_mov_b32 s{sRP}, s{sWO}")
        c(f"s_mov_b32 s{sRP+1}, s{sWO+1}")
        c(f"s_mov_b32 s{sRP+2}, {640*1280}")
        c(f"s_mov_b32 s{sRP+3}, 0x20000")
        self.rp_params_wo(gw, r)
        c(f"s_mov_b32 s{P['pitch']}, 1280")
        c(f"s_mov_b32 s{P['nch']}, 10")
        c(f"s_mov_b32 s{P['mch']}, 6554")
        c(f"s_mul_i32 s{P['r0']}, s{u}, 52")
        c(f"s_lshr_b32 s{P['r0']}, s{P['r0']}, 8")
        c(f"s_mul_i32 s{P['dd']}, s{P['r0']}, 5")
        c(f"s_sub_u32 s{P['dd']}, s{u}, s{P['dd']}")
        c(f"s_mul_i32 s{P['r0']}, s{P['r0']}, 160")
        c(f"s_mul_i32 s{P['aa']}, s{P['dd']}, 40")
        c(f"s_cmp_eq_u32 s{P['dd']}, 4")
        c(f"s_cselect_b32 s{P['aa']}, 16, s{P['aa']}")
        c(f"s_cselect_b32 s{P['dm']}, 4, 1")
        c(f"s_cselect_b32 s{P['dd']}, 4, 16")
        c(f"s_lshl_b32 s{P['dm']}, s{P['dm']}, 12")
        c(f"s_add_u32 s{P['r0']}, s{P['r0']}, s{P['aa']}")
        c(f"s_mov_b32 s{P['aa']}, 20")
        c(f"s_mov_b32 s{P['v0']}, 0")
        c(f"s_mov_b32 s{P['lim']}, 64")
        c(f"s_mul_i32 s{P['col']}, s{u+1}, 160")
        assert all((v * 52) >> 8 == v // 5 for v in range(24))
        self.rp_offsets(5)

    def rp_setup_unit(self):
        c = self.c
        t = self.vTMP
        u, sl, r0, p0, col = [sT + i for i in range(5)]
        c(f"s_mov_b32 s{sRP}, s{sW2}")
        c(f"s_mov_b32 s{sRP+1}, s{sW2+1}")
        c(f"s_mov_b32 s{sRP+3}, 0x20000")
        c(f"s_lshl1_add_u32 s{u}, s2, s{sW}")
        c(f"s_lshr_b32 s{sl}, s{sW}, 1")
        c(f"s_lshl_b32 s{sl}, s{sl}, 10")
        c(f"s_add_u32 s{sl}, s{sl}, s{u}")
        c(f"s_cmp_lt_u32 s{sl}, 448")
        c(f"s_cselect_b32 s{sRP+2}, {1728*1280}, 0")
        c(f"s_cselect_b32 s{sRPT}, {WS_SIZE}, 0")
        c(f"s_and_b32 s{sl}, s{u}, 7")
        c(f"s_lshr_b32 s{u}, s{u}, 3")
        c(f"s_mul_i32 s{r0}, s{u}, 18726")
        c(f"s_lshr_b32 s{r0}, s{r0}, 16")
        c(f"s_mul_i32 s{col}, s{r0}, 14")
        c(f"s_lshl_b32 s{p0}, s{u}, 2")
        c(f"s_sub_u32 s{p0}, s{p0}, s{col}")
        c(f"s_mul_i32 s{r0}, s{r0}, {108*1280}")
        c(f"s_mul_i32 s{col}, s{sl}, 160")
        c(f"s_add_u32 s{col}, s{col}, s{r0}")
        c(f"s_mul_i32 s{sRPD}, s{sl}, 56")
        c(f"s_add_u32 s{sRPD}, s{sRPD}, s{u}")
        c(f"s_mul_i32 s{sRPD}, s{sRPD}, 5120")
        c(f"s_add_u32 s{sRPD}, s{sRPD}, {W2_OFF}")
        c(f"s_lshl_b32 s{sRPF}, s{sl}, 8")
        c(f"s_lshl2_add_u32 s{sRPF}, s{u}, s{sRPF}")
        c(f"s_add_u32 s{sRPF}, s{sRPF}, {FW2_OFF}")
        assert all((S * 18726) >> 16 == (4 * S) // 14 for S in range(80))
        c(f"v_bfe_u32 v{t}, v1, 3, 2")
        c(f"v_add_u32 v{t}, s{p0}, v{t}")
        c(f"v_and_b32 v{t+1}, 4, v1")
        c(f"v_lshl_add_u32 v{t+2}, v{t}, 3, v{t+1}")
        c(f"v_and_b32 v{t+3}, 12, v{t}")
        c(f"v_add_u32 v{t+3}, v{t+3}, v{t}")
        c(f"v_cmp_lt_u32 vcc, 13, v{t}")
        c(f"v_add_u32 v{t+4}, {27-14}, v{t}")
        c(f"v_cndmask_b32 v{t+3}, v{t+3}, v{t+4}, vcc")
        c(f"v_add_lshl_u32 v{t+3}, v{t+3}, v{t+1}, 2")
        c(f"v_and_b32 v{t+4}, 30, v{t}")
        c(f"v_cmp_eq_u32 vcc, 12, v{t+4}")
        c(f"v_and_b32 v{t+4}, 3, v1")
        c(f"v_cndmask_b32 v{t+3}, v{t+3}, v{t+2}, vcc")
        c(f"v_cmp_eq_u32 vcc, 108, v{t+2}")
        c(f"v_add_u32 v{t+3}, v{t+3}, v{t+4}")
        c(f"v_mul_u32_u24 v{t+3}, 1280, v{t+3}")
        c(f"v_add_u32 v{t+3}, s{col}, v{t+3}")
        c(f"v_mov_b32 v{t+4}, {OOB}")
        c(f"v_cndmask_b32 v{t+5}, v{t+3}, v{t+4}, vcc")
        for j in range(5):
            c(f"v_add_u32 v{t}, {64*j}, v1")
            c(f"v_mul_u32_u24 v{t+1}, 6554, v{t}")
            c(f"v_lshrrev_b32 v{t+1}, 16, v{t+1}")
            c(f"v_lshlrev_b32 v{t+2}, 2, v{t+1}")
            c(f"ds_bpermute_b32 v{self.vRP+j}, v{t+2}, v{t+5}")
            c(f"v_mul_u32_u24 v{t+1}, 10, v{t+1}")
            c(f"v_sub_u32 v{self.vW1D+j}, v{t}, v{t+1}")
        for j in range(5):
            c(f"v_lshl_add_u32 v{self.vRP+j}, v{self.vW1D+j}, 4, v{self.vRP+j}")
        for j in range(7):
            c(f"v_add_u32 v{t}, {64*j}, v1")
            c(f"v_mul_u32_u24 v{t+1}, 4682, v{t}")
            c(f"v_lshrrev_b32 v{t+1}, 16, v{t+1}")
            c(f"v_mul_u32_u24 v{t+2}, 14, v{t+1}")
            c(f"v_sub_u32 v{t}, v{t}, v{t+2}")
            c(f"v_lshrrev_b32 v{t+2}, 1, v{t+1}")
            c(f"v_xor_b32 v{t+2}, v{t+2}, v{t+1}")
            c(f"v_and_b32 v{t+2}, 4, v{t+2}")
            c(f"v_mul_u32_u24 v{t+2}, 3, v{t+2}")
            c(f"v_xor_b32 v{t+1}, v{t+1}, v{t+2}")
            c(f"v_mul_u32_u24 v{t+1}, 3456, v{t+1}")
            c(f"v_lshl_add_u32 v{t}, v{t}, 4, v{t+1}")
            c(f"v_subrev_u32 v{self.vW1D+j}, {1024*(j&3)}, v{t}")

    def only_waves(self, hi, items):
        lab = self.label("ow")
        out = [I(f"s_cmp_ge_u32 s{sW}, 2"), I(f"s_cbranch_scc{0 if hi else 1} {lab} ; noflush")]
        for i in flat(items):
            i.cond = True
            out.append(i)
        out.append(I(f"{lab}: ; noflush"))
        return out

    def rp_offsets(self, n):
        c = self.c
        P = self.RPP
        t, u = self.vTMP, P['u']
        assert all((v * 6554) >> 16 == v // 10 for v in range(448)) and all((v * 4682) >> 16 == v // 14 for v in range(448))
        for j in range(n):
            c(f"v_add_u32 v{t}, {64*j}, v1")
            c(f"v_mul_u32_u24 v{t+1}, s{P['mch']}, v{t}")
            c(f"v_lshrrev_b32 v{t+1}, 16, v{t+1}")
            c(f"v_mul_u32_u24 v{t+2}, s{P['nch']}, v{t+1}")
            c(f"v_sub_u32 v{t}, v{t}, v{t+2}")
            c(f"v_lshl_add_u32 v{t}, v{t}, 4, s{P['col']}")
            c(f"v_mul_u32_u24 v{t+2}, s{P['dm']}, v{t+1}")
            c(f"v_lshrrev_b32 v{t+2}, 16, v{t+2}")
            c(f"v_mul_u32_u24 v{t+3}, s{P['dd']}, v{t+2}")
            c(f"v_sub_u32 v{t+1}, v{t+1}, v{t+3}")
            c(f"v_mad_u32_u24 v{t+1}, v{t+2}, s{P['aa']}, v{t+1}")
            c(f"v_add_u32 v{t+1}, s{P['r0']}, v{t+1}")
            c(f"v_mad_u32_u24 v{self.vRP+j}, v{t+1}, s{P['pitch']}, v{t}")

    RP1_LDS = 6 * 16384

    def rp_dma(self, n, base, wstride, so="0", fl=None):
        items = []
        fl = self.o.get('rpld', 'nt') if fl is None else fl
        for j in range(n):
            pre = [I(f"s_mul_i32 s{sT+12}, s{sW}, {wstride}")] if j == 0 else []
            items.append(pre + [I(f"s_add_u32 m0, s{sT+12}, {base + 1024*j}"),
                                I(f"buffer_load_dwordx4 v{self.vRP+j}, s[{sRP}:{sRP+3}], {so} offen {fl} lds")])
        return items

    def rp_addr(self, t, pitch, base, wstride, oddshift):
        c = self.c
        c(f"s_mul_i32 s{sT+1}, s{sW}, {wstride}")
        if oddshift:
            c(f"s_and_b32 s{sT+2}, s{sW}, 1")
            c(f"s_lshl3_add_u32 s{sT+1}, s{sT+2}, s{sT+1}")
        c(f"s_add_u32 s{sT+1}, s{sT+1}, {base}")
        c(f"v_lshrrev_b32 v{t}, 4, v1")
        c(f"v_bfe_u32 v{t+1}, v1, 2, 2")
        c(f"v_lshl_add_u32 v{t}, v{t}, 3, v{t+1}")
        c(f"v_mul_u32_u24 v{t}, {pitch}, v{t}")
        c(f"v_add_u32 v{t}, s{sT+1}, v{t}")
        c(f"v_and_b32 v{t+1}, 3, v1")
        c(f"v_lshl_add_u32 v{t+2}, v{t+1}, 4, v{t}")
        c(f"v_lshl_add_u32 v{t+3}, v{t+1}, 3, v{t}")

    def rp_items(self, nt, t, off, fr, R):
        pitch = 160 if nt == 5 else 224
        fb = fr if isinstance(fr, list) else [fr + 4 * tl for tl in range(nt)]
        rd, stv = [], []
        for tl in range(nt):
            for q in range(2):
                if tl < nt - 1:
                    rd.append(I(f"ds_read_b64_tr_b16 {vr(fb[tl]+2*q,2)}, v{t+2} offset:{off + q*4*pitch + (tl>>1)*64 + (tl&1)*8}"))
                else:
                    rd.append(I(f"ds_read_b64_tr_b16 {vr(fb[tl]+2*q,2)}, v{t+3} offset:{off + q*4*pitch + tl*32}"))
        for tl in range(nt):
            g = []
            if tl == 4:
                g.append(I(f"s_add_u32 s{sRPD}, s{sRPD}, 4096"))
            if tl == 6:
                g += [I(f"v_and_b32 v{t}, 15, v1"), I(f"v_cmp_gt_u32 vcc, 12, v{t}")]
                g += [I(f"v_cndmask_b32 v{fr+24+q}, 0, v{fr+24+q}, vcc") for q in range(4)]
            g.append(I(f"buffer_store_dwordx4 {vr(fb[tl],4)}, v{vL16}, {R}, s{sRPD} offen offset:{(tl&3)*1024} sc1"))
            stv.append(g)
        return rd + stv

    aV, aWO = 0, 156

    def wo_loads(self):
        items = []
        for i in range(25):
            pre = [I(f"s_add_u32 s{sWOO}, s{sWOO}, 4096")] if i and i % 4 == 0 else []
            items.append(pre + [I(f"buffer_load_dwordx4 {ar(self.aWO+4*i,4)}, v{vL16}, {WSR}, s{sWOO} offen offset:{(i&3)*1024} {self.ld}")])
        return items

    def w1_take(self, n):
        items = []
        first = True
        for i in self.w1q[:n]:
            st, j = divmod(i, 7)
            pre = []
            if j in (0, 4) or first:
                pre.append(I(f"s_add_u32 m0, s{sW1M}, {st * 7168 + (j >> 2) * 4096}"))
            if j == 0 and st:
                pre.append(I(f"s_add_u32 s{sW1O}, s{sW1O}, {32*3456}"))
            first = False
            items.append(pre + [I(f"buffer_load_dwordx4 v{self.vW1D+j}, s[{sWQ}:{sWQ+3}], s{sW1O} offen offset:{(j&3)*1024} lds")])
        self.w1q = self.w1q[n:]
        return items

    def w2_take(self, n, below=70):
        items = []
        while n and self.w2q and self.w2q[0] < below:
            i = self.w2q.pop(0); n -= 1
            pre = [I(f"s_add_u32 s{sW2O}, s{sW2B}, {(i >> 2) * 4096}")] if i % 4 == 0 else []
            items.append(pre + [I(f"buffer_load_dwordx4 {self.w2reg(i)}, v{vL16}, {WSR}, s{sW2O} offen offset:{(i&3)*1024} {self.ld}")])
        return items

    def w2reg(self, i):
        return ar(4 * i, 4) if i < 64 else vr(184 + 4 * (i - 64), 4)

    vO, vK, vQ, vQ4, vZ, vS, vCO, vCD, vP = 32, 64, 124, 132, 136, 146, 178, 194, 210
    vX = 226
    vL16m, vVA, vFWA, vFWD, vPOL = 3, 4, 5, 6, 7
    sKO, sVO = sT + 8, sT + 9
    UNITS = sorted([(kt, 0) for kt in range(9)] + [(kt, 1) for kt in range(1, 10)])

    def attn_init(self):
        c = self.c
        t = 8
        c(f"s_mov_b32 s{sVM}, 0x000fffff")
        c(f"s_mov_b32 s{sVM+1}, 0x000fffff")
        c(f"s_mov_b32 s{sKV}, s{sWS}")
        c(f"s_mov_b32 s{sKV+1}, s{sWS+1}")
        c(f"s_mov_b32 s{sKV+2}, 0")
        c(f"s_mov_b32 s{sKV+3}, 0x20000")
        c(f"v_and_b32 v{self.vL16m}, 0x1f0, v{vL16}")
        c(f"v_lshrrev_b32 v{t}, 1, v1")
        c(f"v_xor_b32 v{t}, v{t}, v1")
        c(f"v_and_b32 v{t}, 4, v{t}")
        c(f"v_mul_u32_u24 v{t}, 48, v{t}")
        c(f"v_xor_b32 v{t}, v{t}, v{self.vL16m}")
        c(f"v_lshrrev_b32 v{t+1}, 5, v1")
        c(f"v_mul_u32_u24 v{t+2}, 10240, v{t+1}")
        c(f"v_add_u32 v{self.vVA}, v{t}, v{t+2}")
        for pi in range(5):
            c(f"s_cmp_ge_u32 s{sU}, {4-pi}")
            c(f"s_cselect_b32 s{sT}, 0x3f803f80, 0")
            c(f"v_mov_b32 v{t}, s{sT}")
            for j in range(16):
                c(f"v_accvgpr_write_b32 a{self.aV+16*pi+j}, v{t}")
        c(f"v_and_b32 v{t}, 31, v1")
        c(f"v_lshlrev_b32 v{t+1}, 2, v{t+1}")
        c(f"v_sub_u32 v{t}, v{t}, v{t+1}")
        c(f"v_mov_b32 v{t+2}, 0xff800000")
        for r in range(0, 16, 4):
            for i in range(4):
                c(f"v_cmp_gt_i32 s[{sT+2*i}:{sT+2*i+1}], {8*(r>>2) + i}, v{t}")
            for i in range(4):
                c(f"v_cndmask_b32 v{self.vCD+r+i}, 0, v{t+2}, s[{sT+2*i}:{sT+2*i+1}]")
            for i in range(4):
                c(f"v_xor_b32 v{self.vCO+r+i}, v{self.vCD+r+i}, v{t+2}")
        c(f"s_lshl_b32 s{sT+2}, s{sRB}, 7")
        c(f"s_add_u32 s{sT+2}, s{sT+2}, {FX_OFF - FL_OFF}")
        c(f"v_and_b32 v{t}, 15, v1")
        c(f"v_lshl_add_u32 v{self.vFWA}, v{t}, 2, s{sT+2}")
        self.rp_addr(12, 160, self.RED, 5120, False)
        c(f"s_mul_i32 s{sT}, s{sNB}, 80")
        c(f"s_add_u32 s{sT+1}, s{sT}, 79")
        c(f"s_lshr_b32 s{sT}, s{sT}, 7")
        c(f"s_lshr_b32 s{sT+1}, s{sT+1}, 7")
        c(f"s_sub_u32 s{sT+1}, s{sT+1}, s{sT}")
        c(f"v_lshrrev_b32 v{t}, 2, v1")
        c(f"v_min_u32 v{t}, 2, v{t}")
        c(f"v_bfe_u32 v{t+1}, v1, 1, 1")
        c(f"v_add_u32 v{t+1}, 1, v{t+1}")
        c(f"v_cmp_lt_u32 vcc, 11, v1")
        c(f"v_and_b32 v{t+2}, s{sT+1}, v1")
        c(f"v_cndmask_b32 v{t+1}, v{t+1}, 0, vcc")
        c(f"v_mad_u32_u24 v{t+1}, v{t+1}, 5, v{t+2}")
        c(f"v_add_u32 v{t+1}, s{sT}, v{t+1}")
        c(f"s_sub_u32 s{sT}, s{sRB}, 2")
        c(f"v_add_u32 v{t}, s{sT}, v{t}")
        c(f"v_max_i32 v{t}, 0, v{t}")
        c(f"v_lshlrev_b32 v{t}, 7, v{t}")
        c(f"v_lshl_add_u32 v{self.vPOL}, v{t+1}, 2, v{t}")
        c(f"v_and_b32 v{t+4}, 15, v1")
        c(f"v_mul_u32_u24 v{t}, 1280, v{t+4}")
        c(f"v_lshrrev_b32 v{t+1}, 4, v1")
        c(f"v_lshl_add_u32 v{t+2}, v{t+1}, 4, v{t}")
        c(f"v_lshl_add_u32 v{t+3}, v{t+1}, 3, v{t}")
        c(f"v_bfe_u32 v{t}, v1, 4, 1")
        c(f"v_lshlrev_b32 v{t+4}, 4, v{t+4}")
        c(f"v_lshl_add_u32 v{t+5}, v{t}, 13, v{t+4}")
        c(f"v_lshl_add_u32 v{t+4}, v{t}, 14, v{t+4}")
        c(f"v_lshrrev_b32 v{t}, 5, v1")
        c(f"v_lshl_add_u32 v{t+4}, v{t}, 8, v{t+4}")

    def attn_kv_loads(self, pi):
        ld = self.ld
        k = self.vK + 12 * pi
        R = f"s[{sKV}:{sKV+3}]"
        pre = [I(f"s_sub_u32 s{sT}, s{sU}, {4-pi}"),
               I(f"s_cselect_b32 s{sKV+2}, 0, {WS_SIZE}"),
               I(f"s_cselect_b32 s{sT}, 0, s{sT}"),
               I(f"s_mul_i32 s{self.sVO}, s{sT}, 81920"),
               I(f"s_lshl1_add_u32 s{self.sKO}, s{self.sVO}, s{sT+6}"),
               I(f"s_add_u32 s{self.sVO}, s{self.sVO}, s{sT+7}")]
        K = [pre + [I(f"buffer_load_dwordx4 {vr(k,4)}, v{vL16}, {R}, s{self.sKO} offen {ld}")],
             [I(f"buffer_load_dwordx4 {vr(k+4,4)}, v{vL16}, {R}, s{self.sKO} offen offset:1024 {ld}")],
             [I(f"buffer_load_dwordx4 {vr(k+8,4)}, v{self.vL16m}, {R}, s{self.sKO} offen offset:2048 {ld}")]]
        V = []
        for T in range(2):
            g = [I(f"s_mov_b64 exec, s[{sVM}:{sVM+1}]")]
            for s in range(2):
                g.append(I(f"buffer_load_dwordx4 {ar(self.aV+16*pi+8*T+4*s,4)}, v{self.vVA}, {R}, s{self.sVO} offen {ld}"))
                if not (T == 1 and s == 1):
                    g.append(I(f"s_add_u32 s{self.sVO}, s{self.sVO}, 20480"))
            g.append(I("s_mov_b64 exec, -1"))
            V.append(g)
        return K, V

    def attn_qk(self, u, dst):
        kt, T = self.UNITS[u]
        k = self.vK + 12 * (kt >> 1)
        cin = '0'
        if kt == T:
            cin = vr(self.vCO, 16)
        elif kt == 8 + T:
            cin = vr(self.vCD, 16)
        d = vr(dst, 16)
        z = self.vZ + 4 * T + (0 if kt & 1 else 2)
        return [I(f"v_mfma_f32_32x32x16_bf16 {d}, {vr(k+4*(kt&1),4)}, {vr(self.vQ+4*T,4)}, {cin}"),
                I(f"v_mfma_f32_32x32x16_bf16 {d}, {vr(k+8,4)}, {vr(z,4)}, {d}")]

    def attn_loop(self, fill, swaps):
        c = self.c
        n = len(self.UNITS)
        S = lambda u: self.vS + 16 * (u & 1)
        P = lambda u: self.vP + 8 * (u & 1)
        seen = set()

        def qk(u):
            kt = self.UNITS[u][0]
            pre = []
            if swaps and (kt >> 1) not in seen:
                seen.add(kt >> 1)
                k = self.vK + 12 * (kt >> 1)
                pre = [I(f"v_swap_b32 v{k+2}, v{k+4}"), I(f"v_swap_b32 v{k+3}, v{k+5}")]
            return pre, self.attn_qk(u, S(u))

        def pv(u, s):
            kt, T = self.UNITS[u]
            d = vr(self.vO + 16 * T, 16)
            first = (kt == T and s == 0)
            return I(f"v_mfma_f32_32x32x16_bf16 {d}, {ar(self.aV+8*kt+4*s,4)}, {vr(P(u)+4*s,4)}, {0 if first else d}")

        ex = lambda u, g: [I(f"v_exp_f32 v{S(u)+4*g+i}, v{S(u)+4*g+i}") for i in range(4)]
        cv = lambda u, g: [I(f"v_cvt_pk_bf16_f32 v{P(u)+2*g+i}, v{S(u)+4*g+2*i}, v{S(u)+4*g+2*i+1}") for i in range(2)]
        pre, m = qk(0)
        c.add(pre); c.add(m)
        if fill:
            self.stamp("qk0", "attn")
        c.add(fill.get(-1, []))
        for u in range(n + 1):
            f = list(fill.get(u, [])) + [[]] * 4
            pre, m = qk(u + 1) if u + 1 < n else ([], [[], []])
            if u > 0: c.add(pv(u - 1, 0))
            if u > 0: c.add(cv(u - 1, 3))
            c.add(pre)
            if u < n: c.add(ex(u, 0))
            c.add(f[0])
            c.add(m[0])
            if u < n: c.add(ex(u, 1)); c.add(cv(u, 0))
            c.add(f[1])
            c.add(m[1])
            if u < n: c.add(ex(u, 2)); c.add(cv(u, 1))
            c.add(f[2])
            if u > 0: c.add(pv(u - 1, 1))
            if u < n: c.add(ex(u, 3)); c.add(cv(u, 2))
            c.add(f[3])
            if fill:
                self.stamp(f"u{u}", "attn")

    def same_check(self):
        c = self.c
        self.flag_check(self.vFWD, self.vFWA, span=True)
        c(f"s_add_u32 s{sT+1}, s{sTAG}, s{sXCC}")
        c(f"v_cmp_ne_u32 vcc, s{sT+1}, v{self.vFWD}")
        c(f"s_cmp_lg_u64 vcc, 0")
        c(f"s_cselect_b32 s{sSAME}, 0, 1")
        if self.o.get('nosame'):
            c(f"s_mov_b32 s{sSAME}, 0")

    def attention(self):
        c, o = self.c, self.o
        ld = self.ld
        t = 8
        c(f"s_mul_i32 s{sT+5}, s{sHEAD}, 2560")
        c(f"s_add_u32 s{sT+6}, s{sT+5}, {QK_OFF + 160*512}")
        c(f"s_mul_i32 s{sT+7}, s{sHEAD}, 320")
        c(f"s_add_u32 s{sT+7}, s{sT+7}, {V_OFF}")
        c(f"s_mul_i32 s{sT+4}, s{sU}, 163840")
        c(f"s_add_u32 s{sT+5}, s{sT+5}, s{sT+4}")
        c(f"s_lshl2_add_u32 s{sT+3}, s{sU}, s{sW}")
        c(f"s_mul_i32 s{sT+3}, s{sT+3}, {16*1280}")
        c(f"s_mul_i32 s{sT+2}, s{sNB}, 160")
        c(f"s_add_u32 s{sT+3}, s{sT+3}, s{sT+2}")
        for r in (0, 1, 4, 5, 8, 9):
            c(f"v_mov_b32 v{self.vZ+r}, 0")
        kv = [self.attn_kv_loads(pi) for pi in range(5)]
        c.add(kv[0][0][0][:-1])
        lab = self.label("w1")
        c(f"s_cmp_lg_u32 s{sW}, 1")
        c(f"s_cbranch_scc1 {lab}")
        c.cond(True)
        self.poll(self.vPOL, sleep=o.get('s1sleep', 2))
        c.cond(False)
        c(f"{lab}:")
        c("s_barrier")
        self.stamp("s1", "main attn")
        q = self.vQ
        c(f"buffer_load_dwordx4 {vr(q,4)}, v{vL16}, {WSR}, s{sT+5} offen {ld}")
        c(f"buffer_load_dwordx4 {vr(q+4,4)}, v{vL16}, {WSR}, s{sT+5} offen offset:1024 {ld}")
        c.add(kv[0][0][0][-1]); c.add(kv[0][0][1])
        c(f"buffer_load_dwordx4 {vr(self.vQ4,4)}, v{self.vL16m}, {WSR}, s{sT+5} offen offset:2048 {ld}")
        c.add(kv[0][0][2]); c.add(kv[0][1]); c.add(kv[1][0])
        rest = kv[1][1] + kv[2][0] + kv[2][1] + kv[3][0] + kv[3][1] + kv[4][0] + kv[4][1]
        if o.get('w2src', 0) == 1:
            pass
        fl = I(f"buffer_load_dword v{self.vFWD}, v{self.vFWA}, {WSR}, s{sFLB} offen sc1")
        XR = f"s[{sX}:{sX+3}]"
        xl = [[I(f"buffer_load_dwordx4 {vr(self.vX,4)}, v{t+2}, {XR}, s{sT+3} offen")],
              [I(f"buffer_load_dwordx4 {vr(self.vX+4,4)}, v{t+2}, {XR}, s{sT+3} offen offset:64")],
              [I(f"buffer_load_dwordx2 {vr(self.vX+8,2)}, v{t+3}, {XR}, s{sT+3} offen offset:128")]]
        fill = {u: [[], [], [], []] for u in range(19)}
        fill[-1] = rest[:2]; rest = rest[2:]

        def place(items, g0, step):
            g = g0
            for it in items:
                assert g < 72
                fill[int(g) // 4][int(g) % 4].append(it); g += step
            return int(g + 0.999)
        g = place(rest + [fl], 0, o.get('kvstep', 20) / 10)
        KV = f"s[{sKV}:{sKV+3}]"
        it = self.rp_items(5, 12, 0, [16, 20, 24, 28, 240], KV)
        it[0].waits = [kv[0][0][1][0]]
        it[10] = [I(f"s_mov_b32 s{sKV+2}, s{sRPT}")] + it[10]
        place([it[:4], it[4:7], it[7:10]], g - 4, 1)
        g = place(it[10:] + xl + self.woq, g, o.get('wostep', 10) / 10)
        place([self.sub(self.same_check)], 60, 1)
        w1 = self.w1_take(o.get('w1a', 8))
        place(w1, g, (70 - g) / max(len(w1), 1))
        place([[I(f"v_mov_b32 v{vFLG}, s{sTAG}"), I("s_mov_b64 exec, 1", waits=[it[-1][-1]]),
                I(f"buffer_store_dword v{vFLG}, off, {KV}, s{sRPF} sc1"), I("s_mov_b64 exec, -1")]], 64, 1)
        sb = [I(f"s_mul_i32 s{sT}, s{sU}, 81920"), I(f"s_add_u32 s{sT}, s{sT}, {O_OFF}"),
              I(f"s_lshl_b32 s{sT+1}, s{sHEAD}, 9"), I(f"s_add_u32 s{sT+1}, s{sT+1}, s{sT}"),
              I(f"s_add_u32 s{sT+2}, s{sT+1}, 32768"), I(f"s_lshr_b32 s{sT+4}, s{sHEAD}, 3"),
              I(f"s_and_b32 s{sT+5}, s{sHEAD}, 1"), I(f"s_lshl1_add_u32 s{sT+4}, s{sT+4}, s{sT+5}"),
              I(f"s_bfe_u32 s{sT+5}, s{sHEAD}, 0x20001"), I(f"s_lshl2_add_u32 s{sT+4}, s{sT+4}, s{sT+5}"),
              I(f"s_lshl_b32 s{sT+4}, s{sT+4}, 8"), I(f"s_add_u32 s{sT+4}, s{sT+4}, s{sT}"),
              I(f"s_add_u32 s{sT+4}, s{sT+4}, 65536")]
        fill[18] = [sb[:4], [], [], sb[4:]]
        c(f"v_swap_b32 v{q+2}, v{q+4}")
        c(f"v_swap_b32 v{q+3}, v{q+5}")
        for T in range(2):
            for i in range(2):
                c(f"v_cndmask_b32 v{self.vZ+2+4*T+i}, v{self.vQ4+2*T+i}, 0, s[{sHI}:{sHI+1}]")
        self.attn_loop(fill, True)
        self.stamp("attn")
        lo, hi = f2u(2.0 ** -40), f2u(2.0 ** 40)
        O = self.vO
        c(f"v_subrev_u32 v{t}, {hex(lo)}, v{O+12}")
        c(f"v_subrev_u32 v{t+1}, {hex(lo)}, v{O+28}")
        c(f"v_max_u32 v{t}, v{t}, v{t+1}")
        c(f"v_cmp_lt_u32 vcc, {hex(hi-lo)}, v{t}")
        if o.get('forceslow'):
            c("s_mov_b64 vcc, -1")
        c(f"s_cbranch_vccnz Lattn_slow")
        c("Lattn_fin:")
        self.attn_slow()
        self.attn_epilogue('sc1')

    def attn_epilogue(self, st):
        c, o = self.c, self.o
        t, O, ob = 8, self.vO, 16
        c(f"v_rcp_f32 v{t}, v{O+12}")
        c(f"v_rcp_f32 v{t+1}, v{O+28}")
        for T in range(2):
            sel = "op_sel_hi:[1,0]" if T == 0 else "op_sel:[0,1] op_sel_hi:[1,1]"
            for i in range(6):
                r = O + 16 * T + 2 * i
                c(f"v_pk_mul_f32 {vr(r,2)}, {vr(r,2)}, {vr(t,2)} {sel}")
            for i in range(6):
                r = O + 16 * T + 2 * i
                d = ob + 4 * T + i if i < 4 else ob + 8 + 2 * T + (i - 4)
                c(f"v_cvt_pk_bf16_f32 v{d}, v{r}, v{r+1}")
            c(f"buffer_store_dwordx4 {vr(ob+4*T,4)}, v{t+4}, {WSR}, s{sT+1+T} offen {st}")
        c(f"s_not_b64 exec, s[{sHI}:{sHI+1}]")
        h = c(f"buffer_store_dwordx4 {vr(ob+8,4)}, v{t+5}, {WSR}, s{sT+4} offen {st}")
        c("s_mov_b64 exec, -1")
        c.add(self.w1_take(o.get('w1b', 3)))
        self.p3_prep()
        c.wait(h)
        self.stamp("odrain")
        self.flag_store_near(sT + 13)

    def attn_slow(self):
        old, self.c = self.c, self.ool
        c = self.c
        t = 16
        c("Lattn_slow:")
        c("s_waitcnt vmcnt(0) lgkmcnt(0)")
        c(f"v_mov_b32 v{t}, 0xff800000")
        c(f"v_mov_b32 v{t+1}, 0xff800000")
        for pi in range(5):
            lab = self.label("sl")
            c(f"s_cmp_ge_u32 s{sU}, {4-pi}")
            c(f"s_cselect_b32 s{sT+12}, 0x3f803f80, 0")
            c(f"v_mov_b32 v{t+2}, s{sT+12}")
            for i in range(4):
                r = self.vK + 12 * pi + 8 + i
                c(f"v_cndmask_b32 v{r}, v{r}, v{t+2}, s[{sHI}:{sHI+1}]")
            c(f"s_cbranch_scc0 {lab}")
            for u, (kt, T) in enumerate(self.UNITS):
                if kt >> 1 != pi:
                    continue
                c.add(self.attn_qk(u, self.vS))
                for i in range(8):
                    c(f"v_max3_f32 v{t+T}, v{self.vS+2*i}, v{self.vS+2*i+1}, v{t+T}")
            c(f"{lab}:")
        for T in range(2):
            c(f"v_mov_b32 v{t+2}, v{t+T}")
            c(f"v_permlane32_swap_b32 v{t+2}, v{t+T}")
            c(f"v_max_f32 v{t+2}, v{t+2}, v{t+T}")
            c(f"v_xor_b32 v{t+2}, 0x80000000, v{t+2}")
            c(f"v_and_b32 v{t+3}, s{sMASK}, v{t+2}")
            c(f"v_sub_f32 v{t+2}, v{t+2}, v{t+3}")
            c(f"v_and_b32 v{t+4}, s{sMASK}, v{t+2}")
            c(f"v_sub_f32 v{t+2}, v{t+2}, v{t+4}")
            c(f"v_lshrrev_b32 v{t+3}, 16, v{t+3}")
            c(f"v_or_b32 v{t+3}, v{t+3}, v{t+4}")
            c(f"v_lshrrev_b32 v{t+2}, 16, v{t+2}")
            z = self.vZ + 2 + 4 * T
            c(f"v_cndmask_b32 v{z}, v{z}, v{t+3}, s[{sHI}:{sHI+1}]")
            c(f"v_cndmask_b32 v{z+1}, v{z+1}, v{t+2}, s[{sHI}:{sHI+1}]")
        self.attn_loop({}, False)
        c("s_branch Lattn_fin")
        self.c = old

    RED = 143360
    vRES = 236
    CORD = (1, 2, 3, 0)
    p3A, p3L, p3AC, p3PB, p3SUM = 64, 128, 144, 184, 204

    def p3_prep(self):
        c = self.c
        t = 32
        c(f"s_lshl_b32 s{sT+13}, s{sU}, 7")
        c(f"s_lshl_b32 s{sT+3}, s{sW}, 5")
        c(f"s_add_u32 s{sT+3}, s{sT+3}, s{sT+13}")
        c(f"s_add_u32 s{sT+3}, s{sT+3}, {F2_OFF - FL_OFF}")
        c(f"s_lshl2_add_u32 s{sT+13}, s{sHEAD}, s{sT+13}")
        c(f"s_add_u32 s{sT+13}, s{sT+13}, {F2_OFF}")
        c(f"v_and_b32 v{self.vPOL}, 7, v1")
        c(f"v_lshl_add_u32 v{self.vPOL}, v{self.vPOL}, 2, s{sT+3}")
        c(f"s_mul_i32 s{sT+5}, s{sW}, 56")
        c(f"s_lshl_b32 s{sT+6}, s{sNB}, 8")
        c(f"s_add_u32 s{sT+5}, s{sT+5}, s{sT+6}")
        c(f"s_add_u32 s{sT+5}, s{sT+5}, {FW2_OFF - FL_OFF}")
        c(f"v_min_u32 v{self.vFWA}, 13, v1")
        c(f"v_lshl_add_u32 v{self.vFWA}, v{self.vFWA}, 2, s{sT+5}")
        c(f"s_lshl_b32 s{sT+6}, s{sW}, 12")
        c(f"s_add_u32 s{sT+6}, s{sT+6}, s{sT}")
        for i, cc in enumerate(self.CORD):
            c(f"s_xor_b32 s{sT+5}, s{sW}, {cc}")
            c(f"s_lshl_b32 s{sT+8+i}, s{sT+5}, 14")
            c(f"s_add_u32 s{sT+8+i}, s{sT+8+i}, s{sT+6}")
            c(f"s_mul_i32 s{sT+5}, s{sT+5}, 5120")
            c(f"s_add_u32 s{sT+5}, s{sT+5}, {self.RED}")
            c(f"v_add_u32 v{t+2+i}, s{sT+5}, v{vL16}")
        c(f"s_lshl_b32 s{sT+6}, s{sW}, 11")
        c(f"s_add_u32 s{sT+5}, s{sT}, s{sT+6}")
        c(f"s_add_u32 s{sT+5}, s{sT+5}, 65536")
        c(f"s_and_b32 s{sT+7}, s{sW}, 1")
        c(f"s_lshl_b32 s{sT+7}, s{sT+7}, 13")
        c(f"s_xor_b32 s{sT+6}, s{sT+7}, 8192")
        c(f"s_add_u32 s{sT+6}, s{sT+6}, s{sT+5}")
        c(f"s_add_u32 s{sT+7}, s{sT+7}, s{sT+5}")
        c(f"s_lshr_b32 s{sT+5}, s{sW}, 1")
        c(f"s_cselect_b64 s[{sT+14}:{sT+15}], -1, 0")
        c(f"s_lshl_b32 s{sT+5}, s{sT+5}, 10")
        c(f"v_xor_b32 v{t}, s{sT+5}, v{vL16}")
        c(f"v_xor_b32 v{t+1}, 1024, v{t}")
        for j in range(10):
            c(f"v_lshlrev_b32 v{self.p3SUM+2*j}, 16, v{self.vX+j}")
            c(f"v_and_b32 v{self.p3SUM+2*j+1}, s{sMASK}, v{self.vX+j}")

    def phase3(self):
        c, o = self.c, self.o
        ld = o.get('la', 'sc1')
        vA, vL, vAC, vPB, vSUM = self.p3A, self.p3L, self.p3AC, self.p3PB, self.p3SUM
        t = 32
        self.poll(self.vPOL)
        self.stamp("s2", "main p3")
        L = []
        for i in range(4):
            for s in range(4):
                L.append(I(f"buffer_load_dwordx4 {vr(vA+16*i+4*s,4)}, v{vL16}, {WSR}, s{sT+8+i} offen offset:{s*1024} {ld}"))
            if i < 2:
                L.append(I(f"buffer_load_dwordx4 {vr(vL+8*i,4)}, v{t}, {WSR}, s{sT+6+i} offen {ld}"))
                L.append(I(f"buffer_load_dwordx4 {vr(vL+8*i+4,4)}, v{t+1}, {WSR}, s{sT+6+i} offen {ld}"))
        n0 = o.get('p3n0', 12)
        c.add(L[:n0])
        L = L[n0:] + self.w1_take(o.get('w1c', 35))
        L.append(I(f"buffer_load_dword v{self.vFWD}, v{self.vFWA}, {WSR}, s{sFLB} offen sc1"))
        c(f"s_lshl2_add_u32 s{sT}, s{sU}, s{sW}")
        c(f"s_mul_i32 s{sT+1}, s{sT}, 20480")
        c(f"s_mul_i32 s{sT+2}, s{sNB}, 2560")
        c(f"s_add_u32 s{sT+1}, s{sT+1}, s{sT+2}")
        c(f"s_add_u32 s{sT+1}, s{sT+1}, {H_OFF}")
        c(f"s_lshl3_add_u32 s{sT+2}, s{sT}, s{sNB}")
        c(f"s_and_b32 s{sT+13}, s{sT+2}, 15")
        c(f"s_lshr_b32 s{sT+3}, s{sT}, 1")
        c(f"s_lshl_b32 s{sT+3}, s{sT+3}, 7")
        c(f"s_lshl2_add_u32 s{sT+13}, s{sT+13}, s{sT+3}")
        c(f"s_add_u32 s{sT+13}, s{sT+13}, {F3_OFF}")
        c(f"s_lshl_b32 s{sT+2}, s{sT+2}, 7")
        c(f"s_add_u32 s{sT+2}, s{sT+2}, {HST_OFF}")
        c(f"v_and_b32 v{t+6}, 15, v1")
        c(f"v_lshrrev_b32 v{t+7}, 5, v1")
        c(f"v_lshl_add_u32 v{t+6}, v{t+7}, 4, v{t+6}")
        c(f"v_lshlrev_b32 v{t+7}, 4, v{t+6}")
        c(f"v_lshlrev_b32 v{t+6}, 2, v{t+6}")
        c(f"s_mov_b32 s{sT+4}, 0xffff")
        c(f"s_mov_b32 s{sT+5}, 0xffff")

        def swaps(g):
            q = vL + 8 * g
            return [I(f"s_not_b64 exec, s[{sT+14}:{sT+15}]"), I(f"v_swap_b32 v{q+2}, v{q+4}"), I(f"v_swap_b32 v{q+3}, v{q+5}"),
                    I(f"s_mov_b64 exec, s[{sT+14}:{sT+15}]"), I(f"v_swap_b32 v{q}, v{q+6}"), I(f"v_swap_b32 v{q+1}, v{q+7}"),
                    I("s_mov_b64 exec, -1")]
        left = {0: vL, 1: vL + 12, 2: vL + 4, 3: vL + 8}
        lper = o.get('p3lp', 3)
        for i in range(4):
            ac = vAC + 20 * (i & 1)
            M = []
            for s in range(5):
                b = vA + 16 * i + 4 * s if s < 4 else left[i]
                for tl in range(5):
                    d = vr(ac + 4 * tl, 4)
                    M.append(I(f"v_mfma_f32_16x16x32_bf16 {d}, {ar(self.aWO+4*(5*s+tl),4)}, {vr(b,4)}, {0 if s == 0 else d}"))
            F = [[] for _ in range(25)]
            if i < 2:
                F[17] += swaps(i)
            if i > 0:
                pa = vAC + 20 * ((i - 1) & 1)
                F[2] += [I("s_barrier")]
                for tl in range(5):
                    F[3 + tl] += [I(f"ds_write_b128 v{t+2+i-1}, {vr(pa+4*tl,4)} offset:{tl*1024}")]
                F[9] += [I("s_waitcnt lgkmcnt(0)"), I("s_barrier")]
                for tl in range(5):
                    F[10 + tl // 2] += [I(f"ds_read_b128 {vr(vPB+4*tl,4)}, v{t+5} offset:{tl*1024}")]
                for j in range(10):
                    F[15 + j] += [I(f"v_add_f32 v{vSUM+2*j}, v{vSUM+2*j}, v{vPB+2*j}"), I(f"v_add_f32 v{vSUM+2*j+1}, v{vSUM+2*j+1}, v{vPB+2*j+1}")]
            for k in range(25):
                c.add(M[k])
                if L and (25 * i + k) % lper == 0:
                    c.add(L.pop(0))
                c.add(F[k])
                if k in (0, 8, 12, 24):
                    self.stamp(f"i{i}k{k}", "p3")
        c.add(L)
        self.stamp("p3")
        self.p3_epilogue('sc1')

    def p3_epilogue(self, st):
        c, o = self.c, self.o
        vAC, vPB, vSUM = self.p3AC, self.p3PB, self.p3SUM
        t = 32
        ac = vAC + 20
        rs = self.vRES
        for P in range(3):
            for j in range(4 * P, min(4 * P + 4, 10)):
                c(f"v_pk_add_f32 {vr(vSUM+2*j,2)}, {vr(vSUM+2*j,2)}, {vr(ac+2*j,2)}")
            for j in range(4 * P, min(4 * P + 4, 10)):
                c(f"v_cvt_pk_bf16_f32 v{rs+j}, v{vSUM+2*j}, v{vSUM+2*j+1}")
            if P < 2:
                c(f"buffer_store_dwordx4 {vr(rs+4*P,4)}, v{vL16}, {WSR}, s{sT+1} offen offset:{P*1024} {st}")
        for j in range(4):
            c(f"v_mov_b32 v{vPB+j}, v{rs+8+(j&1)}")
        a1, a2 = t + 8, t + 10
        c(f"v_pk_add_f32 {vr(a1,2)}, {vr(vSUM,2)}, {vr(vSUM+2,2)}")
        c(f"v_pk_mul_f32 {vr(a2,2)}, {vr(vSUM,2)}, {vr(vSUM,2)}")
        c(f"v_permlane16_swap_b32 v{vPB}, v{vPB+2}")
        c(f"v_permlane16_swap_b32 v{vPB+1}, v{vPB+3}")
        c(f"s_mov_b64 exec, s[{sT+4}:{sT+5}]")
        c(f"buffer_store_dwordx4 {vr(vPB,4)}, v{t+7}, {WSR}, s{sT+1} offen offset:2048 {st}")
        c("s_mov_b64 exec, -1")
        for j in range(1, 10):
            if j > 1:
                c(f"v_pk_add_f32 {vr(a1,2)}, {vr(a1,2)}, {vr(vSUM+2*j,2)}")
            c(f"v_pk_fma_f32 {vr(a2,2)}, {vr(vSUM+2*j,2)}, {vr(vSUM+2*j,2)}, {vr(a2,2)}")
        c(f"v_add_f32 v{a1}, v{a1}, v{a1+1}")
        c(f"v_add_f32 v{a2}, v{a2}, v{a2+1}")
        c(f"v_permlane32_swap_b32 v{a1}, v{a2}")
        c(f"v_add_f32 v{a1}, v{a1}, v{a2}")
        c(f"v_mov_b32 v{a2}, v{a1}")
        c(f"v_permlane16_swap_b32 v{a1}, v{a2}")
        c(f"v_add_f32 v{a1}, v{a1}, v{a2}")
        c(f"s_mov_b64 exec, s[{sT+4}:{sT+5}]")
        h = c(f"buffer_store_dword v{a1}, v{t+6}, {WSR}, s{sT+2} offen {st}")
        c("s_mov_b64 exec, -1")
        rest = self.w1_take(35)
        c.add(rest)
        self.p4_prep()
        c.wait(h)
        self.stamp("hdrain")
        self.flag_store_near(sT + 13)
        if rest:
            c("s_waitcnt vmcnt(1)")

    p4AC, p4W, p4A, p4NR, p4ST, p4CS = 64, 120, 176, 7, 16, 24

    def p4_prep(self):
        c = self.c
        t = 8
        c(f"s_lshl2_add_u32 s{sT}, s{sRB}, s{sW}")
        c(f"s_mul_i32 s{sT+6}, s{sT}, 40960")
        c(f"s_add_u32 s{sT+6}, s{sT+6}, {H_OFF}")
        c(f"s_add_u32 s{sT+7}, s{sT+6}, 20480")
        c(f"s_lshl_b32 s{sT+8}, s{sT}, 11")
        c(f"s_add_u32 s{sT+8}, s{sT+8}, {HST_OFF}")
        c(f"v_and_b32 v{t}, 31, v1")
        c(f"v_lshrrev_b32 v{t+1}, 5, v1")
        c(f"v_lshlrev_b32 v{t}, 2, v{t}")
        c(f"v_lshl_add_u32 v{t}, v{t+1}, 10, v{t}")
        c(f"v_bfe_u32 v{t+2}, v1, 2, 3")
        c(f"v_lshl_add_u32 v{t+2}, v{t+1}, 4, v{t+2}")
        c(f"v_mul_u32_u24 v{t+2}, 224, v{t+2}")
        c(f"s_and_b32 s{sT+9}, s{sFB}, 1")
        c(f"v_and_b32 v{t+3}, 3, v1")
        c(f"v_add_u32 v{t+3}, s{sT+9}, v{t+3}")
        c(f"v_lshl_add_u32 v60, v{t+3}, 3, v{t+2}")
        c(f"v_add_u32 v{t+2}, {9*7168}, v60")
        c(f"v_add_u32 v{t+3}, {18*7168}, v60")
        c(f"v_and_b32 v{t+4}, 48, v1")
        c(f"v_add_u32 v{t+4}, {self.RED}, v{t+4}")
        c(f"s_mul_i32 s{sT+9}, s{sW}, 5120")
        c(f"v_add_u32 v{t+5}, s{sT+9}, v{t+4}")
        c(f"s_lshl_b32 s{sT+9}, s{sT}, 7")
        c(f"s_add_u32 s{sT+9}, s{sT+9}, {F3_OFF - FL_OFF}")
        c(f"v_and_b32 v{self.vPOL}, 15, v1")
        c(f"v_lshl_add_u32 v{self.vPOL}, v{self.vPOL}, 2, s{sT+9}")
        c(f"s_lshl_b32 s{sT+9}, s{sW}, 5")
        c(f"v_add_u32 v52, s{sT+9}, v60")
        c(f"v_add_u32 v53, {9*7168}, v52")
        c(f"v_add_u32 v54, {18*7168}, v52")
        for j in range(4):
            c(f"v_mov_b32 v{56+j}, 0x3f803f80")

    def phase4(self):
        c, o = self.c, self.o
        ld = o.get('la', 'sc1')
        vAC, vW, vA, NR, vST, vCS = self.p4AC, self.p4W, self.p4A, self.p4NR, self.p4ST, self.p4CS
        t = 8
        c("s_barrier")
        wa = [60, t + 2, t + 3]
        rdw = lambda s: [I(f"ds_read_b64_tr_b16 {vr(vW+28*(s&1)+4*tl+2*q,2)}, v{wa[s//9]} offset:{(s%9)*7168 + q*1792 + tl*32}") for tl in range(7) for q in range(2)]
        vC, vONE, NB = vCS, 56, 14
        rd = lambda k: [I(f"ds_read_b64_tr_b16 {vr(vAC+4*(k%NB)+2*q,2)}, v{52+(k>>1)//9} offset:{((k>>1)%9)*7168 + q*1792 + (k&1)*128}") for q in range(2)]
        for k in range(7):
            c.add(rd(k))
        self.poll(self.vPOL)
        self.stamp("s3", "main p4")

        def lda(s):
            g = []
            for a in range(2):
                pre = [I(f"s_add_u32 s{sT+6+a}, s{sT+6+a}, 4096")] if s and s % 4 == 0 else []
                g.append(pre + [I(f"buffer_load_dwordx4 {vr(vA+8*(s%NR)+4*a,4)}, v{vL16}, {WSR}, s{sT+6+a} offen offset:{(s&3)*1024} {ld}")])
            return g
        for s in range(NR - 1):
            c.add(lda(s))
        self.flag_check(self.vFWD, self.vFWA)
        r0 = rdw(0)
        for k in range(40):
            d = vr(vC + 4 * (k & 1), 4)
            c(f"v_mfma_f32_16x16x32_bf16 {d}, {vr(vAC+4*(k%NB),4)}, {vr(vONE,4)}, {0 if k < 2 else d}")
            if k + 7 < 40:
                c.add(rd(k + 7))
            else:
                c.add(r0[:2]); r0 = r0[2:]
        self.stamp("csum", "p4")
        extra = [[I(f"buffer_load_dword v{vST+j}, v{t}, {WSR}, s{sT+8} offen offset:{j*128} {ld}")] for j in range(8)]
        misc = {0: [[I(f"ds_write_b128 v{t+5}, {vr(vC,4)}")], [I(f"ds_write_b128 v{t+5}, {vr(vC+4,4)} offset:64")]],
                2: [[I("s_barrier")]],
                3: [[I(f"ds_read_b128 {vr(vCS+4*tl,4)}, v{t+4} offset:{(tl&3)*5120 + (tl>>2)*64}")] for tl in range(3)],
                4: [[I(f"ds_read_b128 {vr(vCS+4*tl,4)}, v{t+4} offset:{(tl&3)*5120 + (tl>>2)*64}")] for tl in range(3, 5)],
                5: [[I(f"ds_read_b128 {vr(vCS+4*tl,4)}, v{t+4} offset:{(tl&3)*5120 + (tl>>2)*64}")] for tl in range(5, 7)]}
        misc[2][0].insert(0, W(misc[0][1][0]))
        fin = self.sub(self.p4_stats)
        for s in range(12, 20):
            n = -(-len(fin) // (20 - s))
            misc[s] = [fin[:n][i::3] and fin[:n][(i * n) // 3:((i + 1) * n) // 3] for i in range(3)]
            fin = fin[n:]
        for s in range(20):
            M = []
            for tl in range(7):
                for a in range(2):
                    d = vr(vAC + 28 * a + 4 * tl, 4)
                    M.append(I(f"v_mfma_f32_16x16x32_bf16 {d}, {vr(vW+28*(s&1)+4*tl,4)}, {vr(vA+8*(s%NR)+4*a,4)}, {0 if s == 0 else d}"))
            Rn = rdw(s + 1) if s < 19 else [[]] * 14
            F = (lda(s + NR - 1) if s + NR - 1 < 20 else [])
            ne = o.get('p4x', 2) if s + NR - 1 < 20 else o.get('p4y', 4)
            X = extra[:ne]; extra = extra[ne:]
            X += self.w2_take(ne - len(X), 64)
            F += X + misc.get(s, [])
            assert len(F) <= 7
            for k in range(14):
                c.add(M[k])
                c.add(Rn[k])
                if k % 2 and k // 2 < len(F):
                    c.add(F[k // 2])
            if s < 8 or s % 2:
                self.stamp(f"k{s}", "p4")
        self.stamp("p4")
        self.p4_epilogue('sc1')

    def p4_stats(self):
        c = self.c
        vST, t = self.p4ST, 8
        for j in range(1, 8):
            c(f"v_add_f32 v{vST}, v{vST}, v{vST+j}")
        c(f"v_mov_b32 v{vST+1}, v{vST}")
        c(f"v_permlane16_swap_b32 v{vST}, v{vST+1}")
        c(f"v_mul_f32 v{vST}, {hex(f2u(-1.0/640))}, v{vST}")
        c(f"v_mul_f32 v{vST+1}, {hex(f2u(1.0/640))}, v{vST+1}")
        c(f"v_fma_f32 v{vST+1}, -v{vST}, v{vST}, v{vST+1}")
        c(f"v_max_f32 v{vST+1}, 0, v{vST+1}")
        c(f"v_add_f32 v{vST+1}, {hex(f2u(1e-5))}, v{vST+1}")
        c(f"v_rsq_f32 v{vST+1}, v{vST+1}")
        nl = hex(f2u(-1.4426950408889634))
        c(f"v_mov_b32 v{vST+4}, {nl}")
        c(f"v_mov_b32 v{vST+5}, {nl}")
        c(f"v_mul_f32 v{vST+1}, v{vST+4}, v{vST+1}")
        c(f"v_mov_b32 v{vST+2}, v{vST}")
        c(f"v_mov_b32 v{vST+3}, v{vST+1}")
        c(f"v_permlane32_swap_b32 v{vST}, v{vST+2}")
        c(f"v_permlane32_swap_b32 v{vST+1}, v{vST+3}")
        c(f"s_mul_i32 s{sT+1}, s{sT}, {2*57344}")
        c(f"s_mul_i32 s{sT+2}, s{sFB}, 3584")
        c(f"s_add_u32 s{sT+1}, s{sT+1}, s{sT+2}")
        c(f"s_add_u32 s{sT+1}, s{sT+1}, {H1_OFF}")
        c(f"s_add_u32 s{sT+2}, s{sT+1}, 57344")
        c(f"v_bfe_u32 v{t+6}, v1, 4, 1")
        c(f"v_mul_u32_u24 v{t+6}, 57344, v{t+6}")
        c(f"v_and_b32 v{t+7}, 15, v1")
        c(f"v_lshl_add_u32 v{t+6}, v{t+7}, 4, v{t+6}")
        c(f"v_lshl_add_u32 v{t+6}, v{t+1}, 8, v{t+6}")
        c(f"s_lshr_b32 s{sT+13}, s{sT}, 1")
        c(f"s_lshl_b32 s{sT+13}, s{sT+13}, 7")
        c(f"s_and_b32 s{sT+3}, s{sW}, 1")
        c(f"s_lshl1_add_u32 s{sT+3}, s{sFB}, s{sT+3}")
        c(f"s_lshl2_add_u32 s{sT+13}, s{sT+3}, s{sT+13}")
        c(f"s_add_u32 s{sT+13}, s{sT+13}, {F4_OFF}")

    def p4_epilogue(self, st):
        c, o = self.c, self.o
        vAC, vW, vST, vCS = self.p4AC, self.p4W, self.p4ST, self.p4CS
        t = 8
        vE, vOUT = 52, vW
        groups = [[(a, 2 * P), (a, 2 * P + 1)] for P in range(3) for a in range(2)] + [[(0, 6), (1, 6)]]
        for gi, g in enumerate(groups):
            if gi < 5:
                c.add(self.w2_take(o.get('p4e', 3)))
            pairs = [(vAC + 28 * a + 4 * tl + 2 * q, vCS + 4 * tl + 2 * q, vST + 2 * a) for a, tl in g for q in range(2)]
            for r, cs, sv in pairs:
                c(f"v_pk_fma_f32 {vr(r,2)}, {vr(cs,2)}, {vr(sv,2)}, {vr(r,2)} op_sel_hi:[1,0,1]")
            for r, cs, sv in pairs:
                c(f"v_pk_mul_f32 {vr(r,2)}, {vr(r,2)}, {vr(sv,2)} op_sel:[0,1] op_sel_hi:[1,1]")
            for k, (r, cs, sv) in enumerate(pairs):
                c(f"v_exp_f32 v{vE+2*k}, v{r}")
                c(f"v_exp_f32 v{vE+2*k+1}, v{r+1}")
            for k in range(4):
                c(f"v_pk_fma_f32 {vr(vE+2*k,2)}, {vr(vE+2*k,2)}, {vr(vST+4,2)}, {vr(vST+4,2)}")
            for k in range(8):
                c(f"v_rcp_f32 v{vE+k}, v{vE+k}")
            for k, (r, cs, sv) in enumerate(pairs):
                c(f"v_pk_mul_f32 {vr(r,2)}, {vr(r,2)}, {vr(vE+2*k,2)}")
            out = vOUT + 4 * gi
            for k, (r, cs, sv) in enumerate(pairs):
                c(f"v_cvt_pk_bf16_f32 v{out+k}, v{r}, v{r+1}")
            if gi < 6:
                c(f"buffer_store_dwordx4 {vr(out,4)}, v{vL16}, {WSR}, s{sT+1+(gi&1)} offen offset:{(gi>>1)*1024} {st}")
            else:
                c(f"v_cmp_gt_u32 vcc, 48, v1")
                for k in range(4):
                    c(f"v_cndmask_b32 v{out+k}, 0, v{out+k}, vcc")
                c(f"v_permlane16_swap_b32 v{out}, v{out+2}")
                c(f"v_permlane16_swap_b32 v{out+1}, v{out+3}")
                h = c(f"buffer_store_dwordx4 {vr(out,4)}, v{t+6}, {WSR}, s{sT+1} offen offset:3072 {st}")
        self.stamp("p4epi")
        c.add(self.w2_take(70))
        self.p5_prep()
        c.wait(h)
        self.stamp("h1drain")
        self.flag_store_near(sT + 13)

    p5A, p5NR, p5AC, p5PB, p5SUM = 64, 20, 144, 208, 32

    def p5_prep(self):
        c = self.c
        t, rs, vSUM = 16, self.vRES, self.p5SUM
        c(f"s_mul_i32 s{sT+5}, s{sU}, {4*57344}")
        c(f"s_mul_i32 s{sT+6}, s{sW}, 14336")
        c(f"s_add_u32 s{sT+5}, s{sT+5}, s{sT+6}")
        c(f"s_add_u32 s{sT+5}, s{sT+5}, {H1_OFF}")
        for i, cc in enumerate(self.CORD):
            c(f"s_xor_b32 s{sT+6}, s{sW}, {cc}")
            c(f"s_mul_i32 s{sT+8+i}, s{sT+6}, 57344")
            c(f"s_add_u32 s{sT+8+i}, s{sT+8+i}, s{sT+5}")
        c(f"s_lshl_b32 s{sT+3}, s{sU}, 7")
        c(f"s_lshl_b32 s{sT+6}, s{sW}, 5")
        c(f"s_add_u32 s{sT+3}, s{sT+3}, s{sT+6}")
        c(f"s_add_u32 s{sT+3}, s{sT+3}, {F4_OFF - FL_OFF}")
        c(f"v_and_b32 v{self.vPOL}, 7, v1")
        c(f"v_lshl_add_u32 v{self.vPOL}, v{self.vPOL}, 2, s{sT+3}")

    def p5_prep2(self):
        c = self.c
        t, rs, vSUM = 16, self.vRES, self.p5SUM
        for i, cc in enumerate(self.CORD):
            c(f"s_xor_b32 s{sT+6}, s{sW}, {cc}")
            c(f"s_mul_i32 s{sT+6}, s{sT+6}, 15360")
            if 0 < i < 3:
                c(f"s_add_u32 s{sT+6}, s{sT+6}, {i*5120}")
            c(f"v_add_u32 v{t+6+i}, s{sT+6}, v{vL16}")
        for j in range(10):
            c(f"v_lshlrev_b32 v{vSUM+2*j}, 16, v{rs+j}")
            c(f"v_and_b32 v{vSUM+2*j+1}, s{sMASK}, v{rs+j}")
        c(f"s_lshl_b32 s{sT+6}, s{sW}, 12")
        c(f"s_add_u32 s{sT+6}, s{sT+6}, 65536")
        c(f"v_and_b32 v{t}, 15, v1")
        c(f"v_mul_u32_u24 v{t}, 160, v{t}")
        c(f"v_add_u32 v{t}, s{sT+6}, v{t}")
        c(f"v_lshrrev_b32 v{t+1}, 4, v1")
        c(f"v_lshl_add_u32 v{t+2}, v{t+1}, 3, v{t}")
        c(f"v_lshl_add_u32 v{t+1}, v{t+1}, 4, v{t}")
        c(f"v_add_u32 v{t}, s{sT+6}, v{vL16}")
        for j in range(3):
            c(f"v_add_u32 v{t+10}, {64*j}, v1")
            c(f"v_mul_u32_u24 v{t+11}, 6554, v{t+10}")
            c(f"v_lshrrev_b32 v{t+11}, 16, v{t+11}")
            c(f"v_mul_u32_u24 v{t+11}, {1280-160}, v{t+11}")
            c(f"v_lshl_add_u32 v{t+3+j}, v{t+10}, 4, v{t+11}")
        c(f"s_lshl2_add_u32 s{sT}, s{sU}, s{sW}")
        c(f"s_mul_i32 s{sT}, s{sT}, {16*1280}")
        c(f"s_mul_i32 s{sT+1}, s{sNB}, 160")
        c(f"s_add_u32 s{sT}, s{sT}, s{sT+1}")

    def phase5(self):
        c, o = self.c, self.o
        ld = o.get('la', 'sc1')
        vA, NR, vAC, vPB, vSUM = self.p5A, self.p5NR, self.p5AC, self.p5PB, self.p5SUM
        t = 16
        rs = self.vRES
        c("s_barrier")
        self.poll(self.vPOL)
        self.stamp("s4", "main p5")

        def lda(k):
            i, s = divmod(k, 14)
            pre = [I(f"s_add_u32 s{sT+8+i}, s{sT+8+i}, 4096")] if s and s % 4 == 0 else []
            return pre + [I(f"buffer_load_dwordx4 {vr(vA+4*(k%NR),4)}, v{vL16}, {WSR}, s{sT+8+i} offen offset:{(s&3)*1024} {ld}")]
        LA = o.get('p5la', 12)
        for k in range(LA):
            c.add(lda(k))
        self.p5_prep2()
        for i in range(4):
            ac = vAC + 20 * (i & 1)
            F = [[] for _ in range(70)]
            if i > 0:
                pa = vAC + 20 * ((i - 1) & 1)
                for tl in range(5):
                    F[3 + 5 * tl].append(I(f"ds_write_b128 v{t+6+i-1}, {vr(pa+4*tl,4)} offset:{tl*1024}"))
            if i == 3:
                F[27] += [I("s_waitcnt lgkmcnt(0)"), I("s_barrier")]
                k = 28
                for r in range(3):
                    for tl in range(5):
                        F[k + tl // 2] += [I(f"ds_read_b128 {vr(vPB+4*tl,4)}, v{t+9} offset:{r*5120 + tl*1024}")]
                    for j in range(10):
                        F[k + 4 + j] += [I(f"v_add_f32 v{vSUM+2*j}, v{vSUM+2*j}, v{vPB+2*j}"), I(f"v_add_f32 v{vSUM+2*j+1}, v{vSUM+2*j+1}, v{vPB+2*j+1}")]
                    k += 14
            for s in range(14):
                k = 14 * i + s
                for tl in range(5):
                    d = vr(ac + 4 * tl, 4)
                    c(f"v_mfma_f32_16x16x32_bf16 {d}, {self.w2reg(5*s+tl)}, {vr(vA+4*(k%NR),4)}, {0 if s == 0 else d}")
                    if tl == 0 and k + LA < 56:
                        c.add(lda(k + LA))
                    c.add(F[5 * s + tl])
                if s in (0, 4, 9, 13):
                    self.stamp(f"i{i}s{s}", "p5")
        self.stamp("p5")
        ac = vAC + 20
        for P in range(3):
            for j in range(4 * P, min(4 * P + 4, 10)):
                c(f"v_pk_add_f32 {vr(vSUM+2*j,2)}, {vr(vSUM+2*j,2)}, {vr(ac+2*j,2)}")
            for j in range(4 * P, min(4 * P + 4, 10)):
                c(f"v_cvt_pk_bf16_f32 v{rs+j}, v{vSUM+2*j}, v{vSUM+2*j+1}")
            if P < 2:
                c(f"ds_write_b128 v{t+1}, {vr(rs+4*P,4)} offset:{64*P}")
            else:
                c(f"ds_write_b64 v{t+2}, {vr(rs+8,2)} offset:128")
        for j in range(3):
            c(f"ds_read_b128 {vr(vPB+4*j,4)}, v{t} offset:{j*1024}")
        for j in range(3):
            if j == 2:
                c(f"s_not_b64 exec, s[{sHI}:{sHI+1}]")
            c(f"buffer_store_dwordx4 {vr(vPB+4*j,4)}, v{t+3+j}, s[{sOUT}:{sOUT+3}], s{sT} offen")
        c("s_mov_b64 exec, -1")

    def build(self):
        c = self.c
        self.prologue()
        self.phase1()
        self.attention()
        self.phase3()
        self.phase4()
        self.phase5()
        if self.o.get('stamps'):
            c("s_waitcnt vmcnt(0) lgkmcnt(0)")
            self.stamp("end")
            self.dump_stamps()
        c("s_endpgm")
        c.add(self.ool.ins)
        c("Lend:")
        body = finalize(c)
        return f"""; Fused pre-LN sliding-window attention block + SiLU FFN (generated by work/gen.py)
; @launch grid=(256,1,1) block=(256,1,1) lds=163840
.amdgcn_target "amdgcn-amd-amdhsa--gfx950"
.text
.globl {NAME}_kernel
.p2align 8
.type {NAME}_kernel,@function
{NAME}_kernel:
{body}
  s_endpgm
Lcode_end:
.section .rodata,"a"
.p2align 6
.amdhsa_kernel {NAME}_kernel
  .amdhsa_next_free_vgpr 512
  .amdhsa_next_free_sgpr 102
  .amdhsa_accum_offset 256
  .amdhsa_group_segment_fixed_size 0
  .amdhsa_kernarg_size 72
  .amdhsa_user_sgpr_count 2
  .amdhsa_user_sgpr_kernarg_segment_ptr 1
  .amdhsa_system_sgpr_workgroup_id_x 1
.end_amdhsa_kernel
"""


def generate(**opt):
    g = Gen(opt)
    return g.build(), g


if __name__ == "__main__":
    opt = {}
    out = None
    for a in sys.argv[1:]:
        if '=' in a:
            k, v = a.split('=', 1)
            opt[k] = int(v) if v.lstrip('-').isdigit() else v
        else:
            out = a
    asm, g = generate(**opt)
    open(out or f"cdna_kernels/{NAME}.s", "w").write(asm)
    print(len(asm.splitlines()), "lines")
```

```python
import sys, struct
from dsl import *

NAME = "sequential_preLN__sliding_block__dense_activation_silu__prompt"

QK_OFF = 0
V_OFF = QK_OFF + 32 * 163840
O_OFF = V_OFF + 64 * 40960
H_OFF = O_OFF + 32 * 81920
HST_OFF = H_OFF + 128 * 20480
H1_OFF = HST_OFF + 128 * 1024
WO_OFF = H1_OFF + 128 * 57344
W1_OFF = WO_OFF + 8 * 102400
W2_OFF = W1_OFF + 16 * 143360
RST_OFF = W2_OFF + 8 * 286720
CST_OFF = RST_OFF + 16 * 10240
FL_OFF = CST_OFF + 16 * 5120
F1_OFF = FL_OFF
F2_OFF = FL_OFF + 4096
F3_OFF = FL_OFF + 2 * 4096
F4_OFF = FL_OFF + 4 * 4096
FR_OFF = FL_OFF + 5 * 4096
FC_OFF = FR_OFF + 2048
FX_OFF = FL_OFF + 6 * 4096
FWO_OFF = FX_OFF + 2048
FW1_OFF = FL_OFF + 7 * 4096
FW2_OFF = FW1_OFF + 2048
EP_OFF = FL_OFF + 8 * 4096
ST_OFF = FL_OFF + 16 * 4096
WS_SIZE = ST_OFF + 256 * 4 * 128

TAGC = 0x9E3779B8
SPIN_MAX = 200000
OOB = 0x7fff0000


def f2u(x):
    return struct.unpack('<I', struct.pack('<f', x))[0]


sX, sWQ, sWS, sKV, sOUT, sRP = 4, 8, 12, 16, 20, 24
sDBG, sWO, sW1, sW2 = 28, 30, 32, 34
sW, sTAG, sRB1, sCT, sU, sNB, sRB, sFB = 36, 37, 38, 39, 40, 41, 42, 43
sHI = 44
sMASK = 46
sHEAD = 47
sT = 48
sST = 64
sSAME, sXCC = 86, 87
sVM = 88
sWOO, sW1O, sW2B, sW2O = 90, 91, 92, 93
sFLB = 94
sW1M = 95
sTM = 96
sRPD, sRPF, sRPT = 98, 99, 100
WSR = f"s[{sWS}:{sWS+3}]"

vL16 = 2
vFLG = 254


class Gen:
    def __init__(self, opt):
        self.o = opt
        self.c = Code()
        self.ool = Code()
        self.stamp_names = []
        self.lab = 0
        self.ld = opt.get('ld', 'sc1')

    def label(self, base):
        self.lab += 1
        return f"L{base}_{self.lab}"

    def sub(self, fn, *a):
        k = Code()
        old, self.c = self.c, k
        fn(*a)
        self.c = old
        return k.ins

    def stamp(self, name, group='main'):
        if self.o.get('probe') and name in ('t0', self.o['probe']):
            self.c(f"s_memrealtime s[{sTM}:{sTM+1}]")
            self.c("s_waitcnt lgkmcnt(0)")
            self.c(f"s_add_u32 s{sST}, s{sTM}, 6000")
        if not self.o.get('stamps'):
            return
        if self.o.get('zoom', 'main') not in group.split() and name != 't0':
            return
        if name in self.stamp_names:
            idx = self.stamp_names.index(name)
        else:
            idx = len(self.stamp_names)
            self.stamp_names.append(name)
        assert idx < 22, name
        c = self.c
        c(f"{'s_memtime' if self.o.get('cyc') else 's_memrealtime'} s[{sTM}:{sTM+1}]")
        c("s_waitcnt lgkmcnt(0)")
        c(f"s_mov_b32 s{sST+idx}, s{sTM}")

    def dump_stamps(self):
        if not self.o.get('stamps'):
            return
        c = self.c
        c(f"s_lshl_b32 s{sT}, s2, 2")
        c(f"s_add_u32 s{sT}, s{sT}, s{sW}")
        c(f"s_lshl_b32 s{sT}, s{sT}, 7")
        c(f"s_add_u32 s{sT}, s{sT}, {ST_OFF}")
        c("v_mov_b32 v3, 0")
        c("s_mov_b64 exec, 1")
        for i in range(0, 24, 4):
            for j in range(4):
                c(f"v_mov_b32 v{4+j}, s{sST+i+j}")
            c(f"buffer_store_dwordx4 v[4:7], v3, {WSR}, s{sT} offen offset:{i*4}")
        c("s_mov_b64 exec, -1")

    def prologue(self):
        c, o = self.c, self.o
        if o.get('stamps'):
            for i in range(24):
                c(f"s_mov_b32 s{sST+i}, 0")
        self.stamp("t0")
        c("s_cmp_ge_u32 s2, 256")
        c("s_cbranch_scc1 Lend")
        c(f"s_load_dwordx2 s[{sX}:{sX+1}], s[0:1], 0")
        c(f"s_load_dwordx2 s[{sWQ}:{sWQ+1}], s[0:1], 8")
        c(f"s_load_dwordx2 s[{sWS}:{sWS+1}], s[0:1], 64")
        c(f"s_load_dwordx2 s[{sWO}:{sWO+1}], s[0:1], 16")
        c(f"s_load_dwordx4 s[{sW1}:{sW1+3}], s[0:1], 32")
        c(f"s_load_dwordx2 s[{sOUT}:{sOUT+1}], s[0:1], 48")
        c(f"s_getpc_b64 s[{sT}:{sT+1}]")
        c(f"s_lshr_b32 s{sT+3}, s2, 3")
        c(f"s_lshl_b32 s{sT+2}, s{sT+3}, 11")
        c(f"v_lshl_add_u32 v2, v0, 7, s{sT+2}")
        c("v_min_u32 v2, Lcode_end-Lpc0-256, v2")
        c("v_cmp_gt_u32 vcc, 16, v0")
        c(f"s_and_saveexec_b64 s[{sT+4}:{sT+5}], vcc")
        c("s_cbranch_execz Lpc0")
        c.cond(True)
        c(f"global_load_dword v255, v2, s[{sT}:{sT+1}]")
        c.ins[-1].wr = []
        c.cond(False)
        c("Lpc0:")
        c("s_mov_b64 exec, -1")
        c("v_lshrrev_b32 v2, 6, v0")
        c("v_and_b32 v1, 63, v0")
        c(f"v_readfirstlane_b32 s{sW}, v2")
        c(f"s_and_b32 s{sT}, s2, 7")
        if o.get('p1map', 'C') == 'C':
            c(f"s_lshr_b32 s{sRB1}, s{sT}, 1")
            c(f"s_and_b32 s{sT+2}, s{sT+3}, 3")
            c(f"s_lshl2_add_u32 s{sRB1}, s{sRB1}, s{sT+2}")
            c(f"s_lshr_b32 s{sT+2}, s{sT+2}, 1")
            c(f"s_lshr_b32 s{sCT}, s{sT+3}, 2")
            c(f"s_cmp_eq_u32 s{sCT}, 7")
            c(f"s_cselect_b32 s{sT+2}, s{sT+2}, 0")
            c(f"s_xor_b32 s{sT+2}, s{sT+2}, s{sT}")
            c(f"s_and_b32 s{sT+2}, s{sT+2}, 1")
            c(f"s_lshl3_add_u32 s{sCT}, s{sT+2}, s{sCT}")
        elif o.get('p1map') == 'A':
            c(f"s_lshr_b32 s{sRB1}, s{sT+3}, 4")
            c(f"s_lshl1_add_u32 s{sRB1}, s{sT}, s{sRB1}")
            c(f"s_and_b32 s{sCT}, s{sT+3}, 15")
        else:
            c(f"s_and_b32 s{sRB1}, s{sT}, 1")
            c(f"s_and_b32 s{sT+2}, s{sT+3}, 7")
            c(f"s_lshl3_add_u32 s{sRB1}, s{sRB1}, s{sT+2}")
            c(f"s_lshr_b32 s{sCT}, s{sT}, 1")
            c(f"s_lshr_b32 s{sT+2}, s{sT+3}, 3")
            c(f"s_lshl2_add_u32 s{sCT}, s{sCT}, s{sT+2}")
        for r, size in ((sX, 2048 * 1280), (sWQ, 640 * 3840)):
            c(f"s_mov_b32 s{r+2}, {size}")
            c(f"s_mov_b32 s{r+3}, 0x20000")

    def base_setup(self):
        c = self.c
        c(f"s_add_u32 s{sTM}, s{sWS}, {EP_OFF}")
        c(f"s_addc_u32 s{sTM+1}, s{sWS+1}, 0")
        c(f"s_load_dword s{sTAG}, s[{sTM}:{sTM+1}], 0")
        for r, size in ((sWS, WS_SIZE), (sOUT, 2048 * 1280)):
            c(f"s_mov_b32 s{r+2}, {size}")
            c(f"s_mov_b32 s{r+3}, 0x20000")
        c(f"s_mov_b32 s{sHI}, 0")
        c(f"s_mov_b32 s{sHI+1}, -1")
        c(f"s_mov_b32 s{sMASK}, 0xffff0000")
        c(f"s_mov_b32 s{sFLB}, {FL_OFF}")

    def common_setup(self):
        c = self.c
        c(f"s_and_b32 s{sT}, s2, 7")
        c(f"s_lshr_b32 s{sT+1}, s2, 3")
        c(f"s_lshr_b32 s{sU}, s{sT+1}, 3")
        c(f"s_lshl2_add_u32 s{sU}, s{sT}, s{sU}")
        c(f"s_and_b32 s{sNB}, s{sT+1}, 7")
        c(f"s_lshr_b32 s{sRB}, s{sU}, 1")
        c(f"s_and_b32 s{sFB}, s{sT+1}, 15")
        c(f"s_lshl2_add_u32 s{sHEAD}, s{sNB}, s{sW}")
        c(f"s_getreg_b32 s{sXCC}, hwreg(HW_REG_XCC_ID, 0, 4)")
        c(f"v_lshlrev_b32 v{vL16}, 4, v1")
        c(f"s_mul_i32 s{sWOO}, s{sHEAD}, 25600")
        c(f"s_add_u32 s{sWOO}, s{sWOO}, {WO_OFF}")
        c(f"s_mul_i32 s{sW1O}, s{sFB}, 216")
        c(f"s_and_b32 s{sW1O}, s{sW1O}, -16")
        c(f"s_mul_i32 s{sW1M}, s{sW}, {160*3456}")
        c(f"s_add_u32 s{sW1O}, s{sW1O}, s{sW1M}")
        c(f"s_mul_i32 s{sW1M}, s{sW}, {35*1024}")
        c(f"s_mul_i32 s{sW2B}, s{sHEAD}, {70*1024}")
        c(f"s_add_u32 s{sW2B}, s{sW2B}, {W2_OFF}")
        c(f"s_mul_i32 s{sT}, s{sW}, 20")
        c(f"s_lshl_b32 s{sT+1}, s{sNB}, 7")
        c(f"s_add_u32 s{sT}, s{sT}, s{sT+1}")
        c(f"s_add_u32 s{sT}, s{sT}, {FWO_OFF - FL_OFF}")
        c(f"v_min_u32 v{self.vWOF}, 4, v1")
        c(f"v_lshl_add_u32 v{self.vWOF}, v{self.vWOF}, 2, s{sT}")

    def tag_ready(self):
        self.c(f"s_add_u32 s{sTAG}, s{sTAG}, {TAGC}")

    def flag_store(self, so, st='sc1'):
        c = self.c
        c(f"v_mov_b32 v{vFLG}, s{sTAG}")
        c("s_mov_b64 exec, 1")
        h = c(f"buffer_store_dword v{vFLG}, off, {WSR}, s{so} {st}")
        c("s_mov_b64 exec, -1")
        return h

    def poll(self, va, vd=vFLG, span=False, sleep=0):
        c = self.c
        L, Ld = self.label("pl"), self.label("pd")
        n = sT + 12
        c(f"s_mov_b32 s{n}, {SPIN_MAX}")
        c(f"{L}:")
        c(f"buffer_load_dword v{vd}, v{va}, {WSR}, s{sFLB} offen sc1")
        c(f"s_sub_u32 s{n}, s{n}, 1")
        c(f"s_cbranch_scc1 {Ld}")
        c("s_waitcnt vmcnt(0)")
        self.tag_cmp(vd, span)
        if sleep:
            c(f"s_cbranch_vccz {Ld}")
            c(f"s_sleep {sleep}")
            c(f"s_branch {L}")
        else:
            c(f"s_cbranch_vccnz {L}")
        c(f"{Ld}:")
        c("s_waitcnt vmcnt(0)")

    def tag_cmp(self, vd, span):
        c = self.c
        if span:
            c(f"v_subrev_u32 v253, s{sTAG}, v{vd}")
            c(f"v_cmp_le_u32 vcc, 16, v253")
        else:
            c(f"v_cmp_ne_u32 vcc, s{sTAG}, v{vd}")

    def flag_check(self, vd, va, span=False):
        c = self.c
        Ls, Lb = self.label("fs"), self.label("fb")
        self.tag_cmp(vd, span)
        c("s_nop 3")
        c(f"s_cbranch_vccnz {Ls} ; noflush")
        c(f"{Lb}: ; noflush")
        old, self.c = self.c, self.ool
        self.c(f"{Ls}:")
        self.c("s_nop 15")
        self.poll(va, vd, span, sleep=4)
        self.c(f"s_branch {Lb}")
        self.c = old

    def flag_store_near(self, so):
        c = self.c
        Lf, Lb = self.label("far"), self.label("near")
        c(f"v_mov_b32 v{vFLG}, s{sTAG}")
        c(f"s_cmp_eq_u32 s{sSAME}, 0")
        c("s_mov_b64 exec, 1")
        c(f"s_cbranch_scc1 {Lf} ; noflush")
        c(f"buffer_store_dword v{vFLG}, off, {WSR}, s{so}")
        c(f"{Lb}: ; noflush")
        c("s_mov_b64 exec, -1")
        k = self.ool
        k(f"{Lf}:")
        k(f"buffer_store_dword v{vFLG}, off, {WSR}, s{so} sc1")
        k(f"s_branch {Lb}")

    NS = 3
    P1_WB = 3 * 16384
    P1_EX = 6 * 16384
    vXD, vWD, vXA, vWA, vXS, vWS_, vSEL, vSQ, vTMP, vRS, vCS = 4, 8, 12, 16, 18, 22, 24, 23, 28, 36, 40
    vPA = 44
    vRP = 52
    vWOF, vWOD = 59, 60
    vW1D = 246
    vACC, vFR, vSF, vEP = 64, 128, 160, 176
    sKC, sKX, sKW, sW4 = sT + 8, sT + 9, sT + 10, sT + 11

    def p1_setup(self):
        c, o = self.c, self.o
        t = self.vTMP
        big, small = (sCT, sRB1) if o.get('p1map', 'C') == 'B' else (sRB1, sCT)
        c(f"s_mul_i32 s{sT}, s{big}, 3")
        c(f"s_add_u32 s{sT}, s{sT}, s{small}")
        c(f"s_mul_i32 s{sT+1}, s{sT}, 205")
        c(f"s_lshr_b32 s{sT+1}, s{sT+1}, 11")
        c(f"s_mul_i32 s{sT+1}, s{sT+1}, 10")
        c(f"s_sub_u32 s{self.sKC}, s{sT}, s{sT+1}")
        assert all((v * 205) >> 11 == v // 10 for v in range(64))
        c(f"s_lshl_b32 s{self.sW4}, s{sW}, 12")
        c(f"s_lshl2_add_u32 s{sT}, s{sRB1}, s{sW}")
        c(f"s_mul_i32 s{sT}, s{sT}, {32*1280}")
        c(f"v_lshrrev_b32 v{t}, 3, v1")
        c(f"v_mul_u32_u24 v{t}, 1280, v{t}")
        c(f"v_lshrrev_b32 v{t+1}, 4, v1")
        c(f"v_and_b32 v{t+2}, 7, v1")
        c(f"v_xor_b32 v{t+2}, v{t+2}, v{t+1}")
        c(f"v_lshlrev_b32 v{t+2}, 4, v{t+2}")
        c(f"v_add3_u32 v{self.vXD}, v{t+2}, v{t}, s{sT}")
        c(f"v_xor_b32 v{t+3}, 64, v{self.vXD}")
        c(f"v_add_u32 v{self.vXD+1}, {10240-1024}, v{t+3}")
        c(f"v_add_u32 v{self.vXD+2}, {2*(10240-1024)}, v{self.vXD}")
        c(f"v_add_u32 v{self.vXD+3}, {3*(10240-1024)}, v{t+3}")
        c(f"s_mul_i32 s{sT}, s{sW}, {16*3840}")
        c(f"s_lshl_b32 s{sT+1}, s{sCT}, 8")
        c(f"s_add_u32 s{sT}, s{sT}, s{sT+1}")
        c(f"v_mul_u32_u24 v{t}, 3840, v{t+1}")
        c(f"v_and_b32 v{t+2}, 15, v1")
        c(f"v_lshlrev_b32 v{t+3}, 2, v{t+1}")
        c(f"v_xor_b32 v{t+2}, v{t+2}, v{t+3}")
        c(f"v_lshlrev_b32 v{t+2}, 4, v{t+2}")
        c(f"v_add3_u32 v{self.vWD}, v{t+2}, v{t}, s{sT}")
        for j in range(1, 4):
            c(f"v_add_u32 v{self.vWD+j}, {j*(4*3840-1024)}, v{self.vWD}")

    def p1_dma(self, s):
        slot = s % self.NS
        pre = []
        if s > 0:
            pre += [I(f"s_add_u32 s{self.sKC}, s{self.sKC}, 1"),
                    I(f"s_cmp_eq_u32 s{self.sKC}, 10"),
                    I(f"s_cselect_b32 s{self.sKC}, 0, s{self.sKC}")]
        items = []
        for j in range(4):
            d = I(f"buffer_load_dwordx4 v{self.vXD+j}, s[{sX}:{sX+3}], s{self.sKX} offen offset:{j*1024} lds")
            items.append(([I(f"s_add_u32 m0, s{self.sW4}, {slot*16384}"), I(f"s_lshl_b32 s{self.sKX}, s{self.sKC}, 7")] if j == 0 else []) + [d])
        for j in range(4):
            d = I(f"buffer_load_dwordx4 v{self.vWD+j}, s[{sWQ}:{sWQ+3}], s{self.sKW} offen offset:{j*1024} lds")
            items.append(([I(f"s_add_u32 m0, s{self.sW4}, {self.P1_WB + slot*16384}"), I(f"s_mul_i32 s{self.sKW}, s{self.sKC}, {64*3840}")] if j == 0 else []) + [d])
        return pre, items, d

    def p1_setup2(self):
        c = self.c
        t = self.vTMP
        c(f"s_lshr_b32 s{sT}, s{sW}, 1")
        c(f"s_and_b32 s{sT+1}, s{sW}, 1")
        c(f"v_and_b32 v{t+4}, 31, v1")
        c(f"s_lshl_b32 s{sT+2}, s{sT}, 13")
        c(f"v_lshl_add_u32 v{t}, v{t+4}, 7, s{sT+2}")
        c(f"v_lshrrev_b32 v{t+1}, 5, v1")
        c(f"v_bfe_u32 v{t+2}, v1, 1, 3")
        c(f"v_xor_b32 v{t+2}, v{t+2}, v{t+1}")
        c(f"v_lshl_add_u32 v{self.vXA}, v{t+2}, 4, v{t}")
        c(f"s_lshl_b32 s{sT+2}, s{sT+1}, 12")
        for p in range(4):
            if p:
                c(f"v_xor_b32 v{self.vXA+p}, {p*32}, v{self.vXA}")
            c(f"v_add_u32 v{self.vXS+p}, s{sT+2}, v{self.vXA+p}")
        c(f"v_bfe_u32 v{t+2}, v1, 2, 2")
        c(f"v_lshl_add_u32 v{t}, v{t+1}, 3, v{t+2}")
        c(f"v_lshlrev_b32 v{t}, 8, v{t}")
        c(f"v_lshl_add_u32 v{t}, v{t+2}, 6, v{t}")
        c(f"v_bfe_u32 v{t+2}, v1, 4, 1")
        c(f"v_lshl_add_u32 v{t}, v{t+2}, 5, v{t}")
        c(f"v_and_b32 v{t+2}, 3, v1")
        c(f"v_lshl_add_u32 v{t}, v{t+2}, 3, v{t}")
        c(f"v_add_u32 v{t}, {self.P1_WB}, v{t}")
        c(f"s_lshl_b32 s{sT+2}, s{sT+1}, 7")
        c(f"v_xor_b32 v{self.vWA}, s{sT+2}, v{t}")
        c(f"v_xor_b32 v{self.vWA+1}, 64, v{self.vWA}")
        c(f"s_lshl_b32 s{sT+2}, s{sW}, 6")
        c(f"v_xor_b32 v{self.vWS_}, s{sT+2}, v{t}")
        c(f"v_lshrrev_b32 v{t}, 2, v1")
        c(f"v_xor_b32 v{t}, v{t}, v1")
        c(f"v_and_b32 v{t}, 4, v{t}")
        c(f"v_cmp_eq_u32 vcc, 0, v{t}")
        c(f"v_mov_b32 v{t}, 0x3f803f80")
        for j in range(4):
            c(f"v_cndmask_b32 v{self.vSEL+j}, 0, v{t}, vcc")
        c(f"v_mov_b32 v{self.vSQ}, 0")

    def p1_setup3(self, k0):
        c = self.c
        t = self.vTMP
        pa = self.vPA
        c(f"s_lshl2_add_u32 s{sT+2}, s{sRB1}, s{sW}")
        c(f"s_mul_i32 s{sT+2}, s{sT+2}, 2560")
        c(f"s_add_u32 s{sT+2}, s{sT+2}, {RST_OFF}")
        c(f"v_lshl_add_u32 v{t}, v{t+4}, 3, s{sT+2}")
        c(f"v_mul_u32_u24 v{t+2}, 1280, v{t+1}")
        c(f"v_add_u32 v{pa+2}, v{t}, v{t+2}")
        c(f"s_lshl_b32 s{sT+2}, s{k0}, 8")
        c(f"v_add_u32 v{t}, s{sT+2}, v{t}")
        c(f"v_mov_b32 v{t+3}, {OOB}")
        c(f"v_cndmask_b32 v{pa}, v{t}, v{t+3}, s[{sHI}:{sHI+1}]")
        c(f"s_lshl2_add_u32 s{sT+2}, s{sCT}, s{sW}")
        c(f"s_mul_i32 s{sT+2}, s{sT+2}, 1280")
        c(f"s_add_u32 s{sT+2}, s{sT+2}, {CST_OFF}")
        c(f"v_lshl_add_u32 v{t}, v{t+4}, 2, s{sT+2}")
        c(f"v_mul_u32_u24 v{t+2}, 640, v{t+1}")
        c(f"v_add_u32 v{pa+3}, v{t}, v{t+2}")
        c(f"s_lshl_b32 s{sT+2}, s{k0}, 7")
        c(f"v_add_u32 v{t}, s{sT+2}, v{t}")
        c(f"v_cndmask_b32 v{pa+1}, v{t}, v{t+3}, s[{sHI}:{sHI+1}]")
        c(f"s_lshl_b32 s{sT+2}, s{sRB1}, 7")
        c(f"s_add_u32 s{sT+2}, s{sT+2}, {FR_OFF - FL_OFF}")
        c(f"s_lshl_b32 s{sT+3}, s{sCT}, 7")
        c(f"s_add_u32 s{sT+3}, s{sT+3}, {FC_OFF - FL_OFF}")
        c(f"v_mov_b32 v{t}, s{sT+2}")
        c(f"v_mov_b32 v{t+2}, s{sT+3}")
        c(f"v_cndmask_b32 v{t}, v{t}, v{t+2}, s[{sHI}:{sHI+1}]")
        c(f"v_min_u32 v{t+2}, 9, v{t+4}")
        c(f"v_lshl_add_u32 v{pa+5}, v{t+2}, 2, v{t}")
        c(f"s_lshl_b32 s{sT+2}, s{k0}, 2")
        c(f"v_add_u32 v{t}, s{sT+2}, v{t}")
        c(f"s_cmp_lt_u32 s{sCT}, 10")
        c(f"s_cselect_b32 s{sT+2}, 1, 0")
        c(f"s_cmp_lt_u32 s{sRB1}, 10")
        c(f"s_cselect_b32 s{sT+3}, 1, 0")
        c(f"s_cmp_eq_u32 s{sW}, 0")
        c(f"s_cselect_b64 s[{sT+2}:{sT+3}], s[{sT+2}:{sT+3}], 0")
        c(f"v_cndmask_b32 v{pa+4}, v{t+3}, v{t}, s[{sT+2}:{sT+3}]")
        c(f"s_lshl_b32 s{sT+2}, s{sW}, 7")
        c(f"s_add_u32 s{sT+2}, s{sT+2}, {self.P1_EX}")
        c(f"v_lshl_add_u32 v{pa+6}, v{t+4}, 2, s{sT+2}")

    def fx_publish(self):
        return [I(f"s_lshl_b32 s{sT}, s{sRB}, 7"),
                I(f"s_lshl2_add_u32 s{sT}, s{sFB}, s{sT}"),
                I(f"s_add_u32 s{sT}, s{sT}, {FX_OFF}"),
                I(f"s_add_u32 s{sT+1}, s{sTAG}, s{sXCC}"),
                I(f"v_mov_b32 v61, s{sT+1}"),
                I(f"v_min_u32 v62, 1, v0"),
                I(f"v_lshlrev_b32 v62, 30, v62"),
                I(f"buffer_store_dword v61, v62, {WSR}, s{sT} offen sc1")]

    def p1_reads(self, s, p):
        slot = s % self.NS
        fr = self.vFR + 16 * (p & 1)
        X = lambda a: I(f"ds_read_b128 {vr(fr+4*a, 4)}, v{self.vXA+p} offset:{slot*16384 + a*4096}")
        Wt = lambda b, t: I(f"ds_read_b64_tr_b16 {vr(fr+8+4*b+2*t, 2)}, v{self.vWA+b} offset:{slot*16384 + p*4096 + t*1024}")
        r = [X(0), Wt(0, 0), Wt(0, 1), Wt(1, 0), Wt(1, 1), X(1)]
        if s == 0:
            sf = self.vSF + 8 * (p & 1)
            r += [I(f"ds_read_b128 {vr(sf, 4)}, v{self.vXS+p}")]
            r += [I(f"ds_read_b64_tr_b16 {vr(sf+4+2*t, 2)}, v{self.vWS_} offset:{p*4096 + t*1024}") for t in range(2)]
        return r

    def p1_stats_finish(self, isv):
        c = self.c
        b, pa = self.vSF, self.vPA
        for i in range(1, 5):
            c(f"v_add_f32 v{b}, v{b}, v{b+2*i}")
            c(f"v_add_f32 v{b+1}, v{b+1}, v{b+2*i+1}")
        c(f"v_mov_b32 v{b+2}, v{b}")
        c(f"v_mov_b32 v{b+3}, v{b+1}")
        for i in range(1, 5):
            c(f"v_add_f32 v{b+10}, v{b+10}, v{b+10+i}")
        c(f"v_permlane32_swap_b32 v{b}, v{b+2}")
        c(f"v_permlane32_swap_b32 v{b+1}, v{b+3}")
        c(f"v_mov_b32 v{b+11}, v{b+10}")
        c(f"v_add_f32 v{b}, v{b}, v{b+2}")
        c(f"v_add_f32 v{b+1}, v{b+1}, v{b+3}")
        c(f"v_permlane32_swap_b32 v{b+10}, v{b+11}")
        c(f"v_mul_f32 v{b}, {hex(f2u(-1.0/640))}, v{b}")
        c(f"v_mul_f32 v{b+1}, {hex(f2u(1.0/640))}, v{b+1}")
        c(f"v_add_f32 v{b+10}, v{b+10}, v{b+11}")
        c(f"v_fma_f32 v{b+1}, -v{b}, v{b}, v{b+1}")
        c(f"ds_write_b32 v{pa+6}, v{b}")
        c(f"v_max_f32 v{b+1}, 0, v{b+1}")
        c(f"v_add_f32 v{b+1}, {hex(f2u(1e-5))}, v{b+1}")
        c(f"v_rsq_f32 v{b+1}, v{b+1}")
        c(f"ds_write_b32 v{pa+6}, v{b+10} offset:1024")
        if not isv:
            c(f"v_mul_f32 v{b+1}, s{sT+7}, v{b+1}")
        c(f"ds_write_b32 v{pa+6}, v{b+1} offset:512")

    def p1_ep_prep(self, isv):
        c = self.c
        t = self.vTMP
        EX = self.P1_EX
        c(f"s_lshr_b32 s{sT}, s{sW}, 1")
        c(f"s_and_b32 s{sT+1}, s{sW}, 1")
        c(f"s_lshl1_add_u32 s{sT+2}, s{sRB1}, s{sT}")
        c(f"s_lshl1_add_u32 s{sT+3}, s{sCT}, s{sT+1}")
        c(f"s_lshl_b32 s{sT}, s{sT}, 8")
        c(f"s_add_u32 s{sT}, s{sT}, {EX}")
        c(f"s_lshl_b32 s{sT+1}, s{sT+1}, 8")
        c(f"s_add_u32 s{sT+1}, s{sT+1}, {EX+1024}")
        c(f"v_lshrrev_b32 v{t+4}, 5, v1")
        c(f"v_and_b32 v{t+5}, 31, v1")
        c(f"v_lshl_add_u32 v{t}, v{t+5}, 2, s{sT+(1 if isv else 0)}")
        c(f"v_lshl_add_u32 v{t+1}, v{t+4}, 4, s{sT+(0 if isv else 1)}")
        c(f"s_lshl_b32 s{sT+13}, s{sRB1}, 7")
        c(f"s_lshl2_add_u32 s{sT+13}, s{sCT}, s{sT+13}")
        c(f"s_add_u32 s{sT+13}, s{sT+13}, {F1_OFF}")
        if not isv:
            qs = (20 ** -0.5) * 1.4426950408889634
            c(f"s_mul_i32 s{sT+4}, s{sT+2}, 163840")
            c(f"s_lshl_b32 s{sT+5}, s{sT+3}, 13")
            c(f"s_add_u32 s{sT+4}, s{sT+4}, s{sT+5}")
            c(f"s_add_u32 s{sT+5}, s{sT+4}, 4096")
            c(f"s_cmp_lt_u32 s{sCT}, 5")
            c(f"s_cselect_b32 s{sT+7}, {hex(f2u(qs))}, 1.0")
        else:
            c(f"s_mul_i32 s{sT+4}, s{sT+2}, 81920")
            c(f"s_lshl_b32 s{sT+5}, s{sT+3}, 10")
            c(f"s_add_u32 s{sT+4}, s{sT+4}, s{sT+5}")
            c(f"s_add_u32 s{sT+4}, s{sT+4}, {V_OFF - 10*2048}")
            for q in range(1, 4):
                c(f"s_add_u32 s{sT+4+q}, s{sT+4}, {q*20480}")
            c(f"v_mul_u32_u24 v{t+4}, {10240-512}, v{t+4}")
            c(f"v_add_u32 v{t+4}, v{vL16}, v{t+4}")

    def p1_ep_reads(self, isv):
        t, e = self.vTMP, self.vEP
        r = []
        if not isv:
            for a in range(2):
                r.append(I(f"ds_read2st64_b32 {vr(t+2+4*a,2)}, v{t} offset0:0 offset1:2") if a == 0 else
                         I(f"ds_read2_b32 {vr(t+6,2)}, v{t} offset0:32 offset1:160"))
            for b in range(2):
                for j in range(4):
                    r.append(I(f"ds_read_b128 {vr(e+16*b+4*j, 4)}, v{t+1} offset:{(32*b+8*j)*4}"))
        else:
            r.append(I(f"ds_read2_b32 {vr(t+2,2)}, v{t} offset0:0 offset1:32"))
            for a in range(2):
                for j in range(4):
                    r.append(I(f"ds_read_b128 {vr(e+16*a+4*j, 4)}, v{t+1} offset:{(32*a+8*j)*4}"))
                    r.append(I(f"ds_read_b128 {vr(e+32+16*a+4*j, 4)}, v{t+1} offset:{512+(32*a+8*j)*4}"))
        return r

    def p1_loop(self, isv, h0, h1):
        c, o = self.c, self.o
        hd = {0: h0, 1: h1}
        pa, b = self.vPA, self.vSF
        c.wait(h0)
        c("s_barrier")
        self.stamp("b0", "main p1")
        R = self.p1_reads(0, 0)
        c.add(R)
        pre, dma, hd[2] = self.p1_dma(2)
        c.add(pre); c.add(dma[:2]); dma = dma[2:]
        t = self.vTMP
        extra = {}
        pub = [I(f"v_mov_b32 v{self.vRS+1}, v{self.vSQ}"), I("s_nop 0"),
               I(f"v_permlane32_swap_b32 v{self.vRS+1}, v{self.vSQ}"),
               I(f"v_add_f32 v{self.vRS+1}, v{self.vRS+1}, v{self.vSQ}"),
               I(f"buffer_store_dwordx2 {vr(self.vRS,2)}, v{pa}, {WSR}, 0 offen sc1"),
               I(f"buffer_store_dword v{self.vCS}, v{pa+1}, {WSR}, 0 offen sc1")]
        extra[(1, 0)] = pub
        cs = glue(self.sub(self.common_setup) + self.sub(self.tag_ready) + self.fx_publish())
        for k in range(3):
            extra[(1, 1 + k)] = cs[k * 13:(k + 1) * 13]
        assert len(cs) <= 39
        cs = glue(self.sub(self.rp_setup_unit))
        sps = [(q, p) for q in range(2, 6) for p in range(4) if (q, p) != (2, 3)]
        for k, sp in enumerate(sps):
            extra[sp] = cs[k * 12:(k + 1) * 12]
        assert len(cs) <= 12 * len(sps), len(cs)
        extra[(2, 3)] = [I(f"v_mov_b32 v{vFLG}, s{sTAG}"),
                         I(f"buffer_store_dword v{vFLG}, v{pa+4}, {WSR}, s{sFLB} offen sc1", waits=[pub[-1]])]
        extra[(6, 2)] = [[], [], [I(f"buffer_load_dword v{pa+7}, v{pa+5}, {WSR}, s{sFLB} offen sc1"),
                                  I(f"buffer_load_dword v{self.vWOD}, v{self.vWOF}, {WSR}, s{sFLB} offen sc1")]]
        ep = glue(self.sub(self.p1_ep_prep, isv))
        extra[(6, 0)] = ep[:12]; extra[(6, 1)] = ep[12:]
        stl = [I(f"buffer_load_dwordx2 {vr(b+2*i,2)}, v{pa+2}, {WSR}, 0 offen offset:{i*256} sc1") for i in range(5)]
        stl += [I(f"buffer_load_dword v{b+10+i}, v{pa+3}, {WSR}, 0 offen offset:{i*128} sc1") for i in range(5)]
        extra[(7, 3)] = [self.sub(self.flag_check, pa + 7, pa + 5)] + stl[:3]
        extra[(8, 0)] = stl[3:]
        fin = self.sub(self.p1_stats_finish, isv)
        extra[(9, 1)] = fin[:16]; extra[(9, 2)] = fin[16:]
        wo = self.wo_loads()[:o.get('wot', 25)]
        if wo:
            wo[0] = [self.sub(self.flag_check, self.vWOD, self.vWOF), wo[0]]
        sps = [(8, 1), (8, 2), (8, 3), (9, 0), (9, 1), (9, 2), (9, 3)]
        per = -(-len(wo) // len(sps))
        for k, sp in enumerate(sps):
            extra[sp] = interleave(extra.get(sp, []), wo[k * per:(k + 1) * per]) if sp in extra else wo[k * per:(k + 1) * per]
        for s in range(10):
            for p in range(4):
                fr = self.vFR + 16 * (p & 1)
                first = (s == 0 and p == 0)
                M = []
                for a, bb in ((0, 0), (0, 1), (1, 1), (1, 0)):
                    d = vr(self.vACC + 32 * a + 16 * bb, 16)
                    xa, wb = vr(fr + 4 * a, 4), vr(fr + 8 + 4 * bb, 4)
                    A, B = (xa, wb) if isv else (wb, xa)
                    M.append(I(f"v_mfma_f32_32x32x16_bf16 {d}, {A}, {B}, {0 if first else d}"))
                if not first and o.get('onewait', 1):
                    M[0].waits = [R[5]]
                bar, pre = [], []
                if p < 3:
                    R = self.p1_reads(s, p + 1)
                elif s < 9:
                    R = self.p1_reads(s + 1, 0)
                    bar = [W(hd[s + 1]), I("s_barrier")]
                    if s == 0:
                        bar = [I("s_waitcnt lgkmcnt(0)")] + bar
                else:
                    R = self.p1_ep_reads(isv)
                    bar = [I("s_waitcnt lgkmcnt(0)"), I("s_barrier")]
                if p == 2 and s + 3 < 10:
                    pre, nxt, hd[s + 3] = self.p1_dma(s + 3)
                if p == 3 and s + 3 < 10:
                    dma = nxt
                D = dma[:2]; dma = dma[2:]
                D = D + [[]] * (2 - len(D))
                X = extra.get((s, p), [])
                n3 = -(-len(X) // 3)
                gaps = [bar + R[:6], R[6:12] + [D[0]] + X[:n3], R[12:] + [D[1]] + X[n3:2 * n3], pre + X[2 * n3:]]
                if s == 0:
                    sf = self.vSF + 8 * (p & 1)
                    d = vr(self.vRS, 4)
                    M.append(I(f"v_mfma_f32_16x16x32_bf16 {d}, {vr(self.vSEL,4)}, {vr(sf,4)}, {0 if p == 0 else d}"))
                    d = vr(self.vCS, 4)
                    M.append(I(f"v_mfma_f32_16x16x32_bf16 {d}, {vr(self.vSEL,4)}, {vr(sf+4,4)}, {0 if p == 0 else d}"))
                    V = []
                    for j in range(4):
                        V += [I(f"v_lshlrev_b32 v{t+2*(j&1)}, 16, v{sf+j}"),
                              I(f"v_and_b32 v{t+1+2*(j&1)}, s{sMASK}, v{sf+j}"),
                              I(f"v_fmac_f32 v{self.vSQ}, v{t+2*(j&1)}, v{t+2*(j&1)}"),
                              I(f"v_fmac_f32 v{self.vSQ}, v{t+1+2*(j&1)}, v{t+1+2*(j&1)}")]
                    gaps = [gaps[0], gaps[1] + V[:2], gaps[2] + V[2:7], gaps[3] + V[7:12], V[12:14], V[14:]]
                for m, g in zip(M, gaps):
                    c.add(m); c.add(g)
                if p == 3 or (s >= 7 and p == 1):
                    self.stamp(f"e{s}{p}", "p1")

    def p1_epilogue(self, isv):
        c = self.c
        t, e = self.vTMP, self.vEP
        ob = self.vFR
        if not isv:
            for b in range(2):
                for j in range(4):
                    out = ob + 16 * b + 4 * j
                    rr = [(self.vACC + 32 * a + 16 * b + 4 * j + 2 * q, e + 16 * b + 4 * j + 2 * q, t + 2 + 4 * a) for a in range(2) for q in range(2)]
                    for r, cs, sv in rr:
                        c(f"v_pk_fma_f32 {vr(r,2)}, {vr(cs,2)}, {vr(sv,2)}, {vr(r,2)} op_sel_hi:[1,0,1]")
                    for r, cs, sv in rr:
                        c(f"v_pk_mul_f32 {vr(r,2)}, {vr(r,2)}, {vr(sv,2)} op_sel:[0,1] op_sel_hi:[1,1]")
                    for k, (r, cs, sv) in enumerate(rr):
                        c(f"v_cvt_pk_bf16_f32 v{out+k}, v{r}, v{r+1}")
                    h = c(f"buffer_store_dwordx4 {vr(out,4)}, v{vL16}, {WSR}, s{sT+4+b} offen offset:{j*1024} sc1")
        else:
            k = 0
            for a in range(2):
                for s in range(2):
                    for b in range(2):
                        out = ob + 4 * k; k += 1
                        sel = "op_sel_hi:[1,0,1]" if b == 0 else "op_sel:[0,1,0] op_sel_hi:[1,1,1]"
                        rr = [(self.vACC + 32 * a + 16 * b + 8 * s + 2 * q, e + 16 * a + 8 * s + 2 * q) for q in range(4)]
                        for r, nm in rr:
                            c(f"v_pk_fma_f32 {vr(r,2)}, {vr(nm,2)}, {vr(t+2,2)}, {vr(r,2)} {sel}")
                        for r, nm in rr:
                            c(f"v_pk_mul_f32 {vr(r,2)}, {vr(r,2)}, {vr(nm+32,2)}")
                        for q, (r, nm) in enumerate(rr):
                            c(f"v_cvt_pk_bf16_f32 v{out+q}, v{r}, v{r+1}")
                        h = c(f"buffer_store_dwordx4 {vr(out,4)}, v{t+4}, {WSR}, s{sT+4+2*a+s} offen offset:{b*512} sc1")
        return h

    def phase1(self):
        c, o = self.c, self.o
        self.p1_setup()
        c(f"s_cmp_eq_u32 s{sCT}, 15")
        c("s_waitcnt lgkmcnt(0)")
        c("s_cbranch_scc1 Lp1_idle")
        c(".save p0")
        self.stamp("start")
        pre, d0, h0 = self.p1_dma(0)
        c.add(d0)
        c(f"s_mov_b32 s{sT+14}, s{self.sKC}")
        pre, d1, h1 = self.p1_dma(1)
        c.add(pre); c.add(d1[:4])
        self.base_setup()
        self.p1_setup2()
        c.add(d1[4:])
        self.p1_setup3(sT + 14)
        c(f"s_cmp_ge_u32 s{sCT}, 10")
        c("s_cbranch_scc1 Lp1_v")
        c(".save p1")
        for isv in (False, True):
            if isv:
                c("Lp1_v:")
                c(".restore p1")
            self.p1_loop(isv, h0, h1)
            self.stamp("p1loop")
            h = self.p1_epilogue(isv)
            if not isv:
                c("s_branch Lp1_done")
        c("Lp1_done:")
        self.stamp("p1epi")
        n0 = o.get('wot', 25)
        self.woq = self.wo_loads()[n0:]
        self.w1q, self.w2q = list(range(35)), list(range(70))
        self.attn_init()
        self.stamp("ainit")
        c.wait(h)
        self.stamp("p1drain")
        c("s_barrier")
        lab = self.label("f1")
        c(f"s_cmp_lg_u32 s{sW}, 0")
        c(f"s_cbranch_scc1 {lab}")
        c.cond(True)
        self.flag_store(sT + 13)
        c.cond(False)
        c(f"{lab}:")
        if not n0:
            self.flag_check(self.vWOD, self.vWOF)
        c("Lp1_join:")
        if o.get('w2src', 0) == 0:
            c.add(self.only_waves(False, self.rp_dma(5, self.RED, 5120)))
        c(f"s_mov_b32 s{sWQ}, s{sW1}")
        c(f"s_mov_b32 s{sWQ+1}, s{sW1+1}")
        c(f"s_mov_b32 s{sWQ+2}, {640*3456}")
        c.add(self.w1_take(o.get('w1s', 14)))
        self.stamp("join")
        old, self.c = self.c, self.ool
        self.idle_path(n0)
        self.c = old

    def idle_path(self, n0):
        c = self.c
        P = self.RPP
        gw = sT + 8
        KV = f"s[{sKV}:{sKV+3}]"
        c("Lp1_idle:")
        c(".restore p0")
        self.base_setup()
        self.common_setup()
        c(f"s_lshl2_add_u32 s{gw}, s{sRB1}, s{sW}")
        c(f"s_mov_b32 s{sKV}, s{sWS}")
        c(f"s_mov_b32 s{sKV+1}, s{sWS+1}")
        c(f"s_mov_b32 s{sKV+3}, 0x20000")
        hd = {}
        for r in range(3):
            self.rp_setup_wo(gw, r)
            d = self.rp_dma(5, r * 5120, 40960, fl='')
            c.add(d); hd['o', r] = d[-1][-1]
        c(f"s_mov_b32 s{sRP}, s{sW1}")
        c(f"s_mov_b32 s{sRP+1}, s{sW1+1}")
        c(f"s_mov_b32 s{sRP+2}, {640*3456}")
        c(f"s_lshl_b32 s{sT+9}, s{gw}, 13")
        c(f"v_lshlrev_b32 v8, 7, v1")

        def touch(j):
            c(f"buffer_load_dword v255, v8, s[{sRP}:{sRP+3}], s{sT+9} offen")
            c.ins[-1].wr = []
            c(f"s_add_u32 s{sT+9}, s{sT+9}, {64*8192}")
        self.tag_ready()
        c.add(self.fx_publish())
        c(f"v_mov_b32 v{vFLG}, s{sTAG}")
        self.rp_addr(16, 160, 0, 40960, False)

        def params(kind, r):
            if kind == 'o':
                self.rp_params_wo(gw, r)
                c(f"s_cmp_lg_u32 s{sRPT}, 0")
                c(f"s_cselect_b32 s{sKV+2}, {WS_SIZE}, 0")
            else:
                c(f"s_mov_b32 s{sKV+2}, {WS_SIZE}")
                c(f"s_and_b32 s{sT}, s{gw}, 15")
                c(f"s_lshr_b32 s{sT+1}, s{gw}, 4")
                c(f"s_add_u32 s{sT+1}, s{sT+1}, {4*r}")
                c(f"s_mul_i32 s{sRPD}, s{sT}, 20")
                c(f"s_add_u32 s{sRPD}, s{sRPD}, s{sT+1}")
                c(f"s_mul_i32 s{sRPD}, s{sRPD}, 7168")
                c(f"s_add_u32 s{sRPD}, s{sRPD}, {W1_OFF}")
                c(f"s_lshl_b32 s{sRPF}, s{sT}, 7")
                c(f"s_lshl2_add_u32 s{sRPF}, s{sT+1}, s{sRPF}")
                c(f"s_add_u32 s{sRPF}, s{sRPF}, {FW1_OFF}")
        hs = {}

        def proc(kind, r, n):
            params(kind, r)
            c.wait(hd[kind, r])
            it = self.rp_items(5, 16, r * 5120, 64 + 20 * n, KV)
            c.add(it); hs[kind, r] = flat(it)[-1]

        def flag(kind, r):
            params(kind, r)
            c.wait(hs[kind, r])
            c("s_mov_b64 exec, 1")
            c(f"buffer_store_dword v{vFLG}, off, {KV}, s{sRPF} sc1")
            c("s_mov_b64 exec, -1")
        nt0 = self.o.get('touch0', 0)
        dbg = self.o.get('idledbg')
        if dbg: self.stamp("start")
        for j in range(nt0):
            touch(j)
        if dbg: c.wait(hd['o', 0]); self.stamp("b0")
        for r in range(3):
            proc('o', r, r)
        if dbg: self.stamp("p1epi")
        for r in range(3):
            flag('o', r)
        if dbg: self.stamp("ainit")
        for j in range(nt0, self.o.get('touchn', 5)):
            touch(j)
        self.stamp("p1loop")
        lab = self.label("ep")
        c(f"s_cmp_lg_u32 s{gw}, 63")
        c(f"s_cbranch_scc1 {lab}")
        c(f"v_lshrrev_b32 v8, 4, v1")
        c(f"v_and_b32 v9, 15, v1")
        c(f"v_lshlrev_b32 v8, 7, v8")
        c(f"v_lshl_add_u32 v8, v9, 2, v8")
        for j in range(4):
            c(f"v_add_u32 v9, {FX_OFF - FL_OFF + j*512}, v8")
            self.poll(9, span=True, sleep=16)
        c(f"s_mov_b32 s{sT}, {EP_OFF}")
        self.flag_store(sT)
        c(f"{lab}:")
        self.rp_setup_unit()
        self.attn_init()
        self.poll(self.vWOF, self.vWOD, sleep=8)
        c("s_barrier")
        c.add(self.wo_loads()[:n0])
        c("s_branch Lp1_join")

    RPP = dict(pitch=sT, col=sT + 1, nch=sT + 2, mch=sT + 3, v0=sT + 4, dm=sT + 5, dd=sT + 6, aa=sT + 7, lim=sT + 12, r0=sT + 13, u=sT + 14)

    def rp_params_wo(self, gw, r):
        c = self.c
        u = self.RPP['u']
        c(f"s_add_u32 s{u}, s{gw}, {64*r}")
        c(f"s_cmp_lt_u32 s{u}, 160")
        c(f"s_cselect_b32 s{sRPT}, 1, 0")
        c(f"s_and_b32 s{u+1}, s{u}, 7")
        c(f"s_lshr_b32 s{u}, s{u}, 3")
        c(f"s_mul_i32 s{sRPD}, s{u+1}, 20")
        c(f"s_add_u32 s{sRPD}, s{sRPD}, s{u}")
        c(f"s_mul_i32 s{sRPD}, s{sRPD}, 5120")
        c(f"s_add_u32 s{sRPD}, s{sRPD}, {WO_OFF}")
        c(f"s_lshl_b32 s{sRPF}, s{u+1}, 7")
        c(f"s_lshl2_add_u32 s{sRPF}, s{u}, s{sRPF}")
        c(f"s_add_u32 s{sRPF}, s{sRPF}, {FWO_OFF}")

    def rp_setup_wo(self, gw, r):
        c = self.c
        P = self.RPP
        u = P['u']
        c(f"s_mov_b32 s{sRP}, s{sWO}")
        c(f"s_mov_b32 s{sRP+1}, s{sWO+1}")
        c(f"s_mov_b32 s{sRP+2}, {640*1280}")
        c(f"s_mov_b32 s{sRP+3}, 0x20000")
        self.rp_params_wo(gw, r)
        c(f"s_mov_b32 s{P['pitch']}, 1280")
        c(f"s_mov_b32 s{P['nch']}, 10")
        c(f"s_mov_b32 s{P['mch']}, 6554")
        c(f"s_mul_i32 s{P['r0']}, s{u}, 52")
        c(f"s_lshr_b32 s{P['r0']}, s{P['r0']}, 8")
        c(f"s_mul_i32 s{P['dd']}, s{P['r0']}, 5")
        c(f"s_sub_u32 s{P['dd']}, s{u}, s{P['dd']}")
        c(f"s_mul_i32 s{P['r0']}, s{P['r0']}, 160")
        c(f"s_mul_i32 s{P['aa']}, s{P['dd']}, 40")
        c(f"s_cmp_eq_u32 s{P['dd']}, 4")
        c(f"s_cselect_b32 s{P['aa']}, 16, s{P['aa']}")
        c(f"s_cselect_b32 s{P['dm']}, 4, 1")
        c(f"s_cselect_b32 s{P['dd']}, 4, 16")
        c(f"s_lshl_b32 s{P['dm']}, s{P['dm']}, 12")
        c(f"s_add_u32 s{P['r0']}, s{P['r0']}, s{P['aa']}")
        c(f"s_mov_b32 s{P['aa']}, 20")
        c(f"s_mov_b32 s{P['v0']}, 0")
        c(f"s_mov_b32 s{P['lim']}, 64")
        c(f"s_mul_i32 s{P['col']}, s{u+1}, 160")
        assert all((v * 52) >> 8 == v // 5 for v in range(24))
        self.rp_offsets(5)

    def rp_setup_unit(self):
        c = self.c
        t = self.vTMP
        u, sl, r0, p0, col = [sT + i for i in range(5)]
        c(f"s_mov_b32 s{sRP}, s{sW2}")
        c(f"s_mov_b32 s{sRP+1}, s{sW2+1}")
        c(f"s_mov_b32 s{sRP+3}, 0x20000")
        c(f"s_lshl1_add_u32 s{u}, s2, s{sW}")
        c(f"s_lshr_b32 s{sl}, s{sW}, 1")
        c(f"s_lshl_b32 s{sl}, s{sl}, 10")
        c(f"s_add_u32 s{sl}, s{sl}, s{u}")
        c(f"s_cmp_lt_u32 s{sl}, 448")
        c(f"s_cselect_b32 s{sRP+2}, {1728*1280}, 0")
        c(f"s_cselect_b32 s{sRPT}, {WS_SIZE}, 0")
        c(f"s_and_b32 s{sl}, s{u}, 7")
        c(f"s_lshr_b32 s{u}, s{u}, 3")
        c(f"s_mul_i32 s{r0}, s{u}, 18726")
        c(f"s_lshr_b32 s{r0}, s{r0}, 16")
        c(f"s_mul_i32 s{col}, s{r0}, 14")
        c(f"s_lshl_b32 s{p0}, s{u}, 2")
        c(f"s_sub_u32 s{p0}, s{p0}, s{col}")
        c(f"s_mul_i32 s{r0}, s{r0}, {108*1280}")
        c(f"s_mul_i32 s{col}, s{sl}, 160")
        c(f"s_add_u32 s{col}, s{col}, s{r0}")
        c(f"s_mul_i32 s{sRPD}, s{sl}, 56")
        c(f"s_add_u32 s{sRPD}, s{sRPD}, s{u}")
        c(f"s_mul_i32 s{sRPD}, s{sRPD}, 5120")
        c(f"s_add_u32 s{sRPD}, s{sRPD}, {W2_OFF}")
        c(f"s_lshl_b32 s{sRPF}, s{sl}, 8")
        c(f"s_lshl2_add_u32 s{sRPF}, s{u}, s{sRPF}")
        c(f"s_add_u32 s{sRPF}, s{sRPF}, {FW2_OFF}")
        assert all((S * 18726) >> 16 == (4 * S) // 14 for S in range(80))
        c(f"v_bfe_u32 v{t}, v1, 3, 2")
        c(f"v_add_u32 v{t}, s{p0}, v{t}")
        c(f"v_and_b32 v{t+1}, 4, v1")
        c(f"v_lshl_add_u32 v{t+2}, v{t}, 3, v{t+1}")
        c(f"v_and_b32 v{t+3}, 12, v{t}")
        c(f"v_add_u32 v{t+3}, v{t+3}, v{t}")
        c(f"v_cmp_lt_u32 vcc, 13, v{t}")
        c(f"v_add_u32 v{t+4}, {27-14}, v{t}")
        c(f"v_cndmask_b32 v{t+3}, v{t+3}, v{t+4}, vcc")
        c(f"v_add_lshl_u32 v{t+3}, v{t+3}, v{t+1}, 2")
        c(f"v_and_b32 v{t+4}, 30, v{t}")
        c(f"v_cmp_eq_u32 vcc, 12, v{t+4}")
        c(f"v_and_b32 v{t+4}, 3, v1")
        c(f"v_cndmask_b32 v{t+3}, v{t+3}, v{t+2}, vcc")
        c(f"v_cmp_eq_u32 vcc, 108, v{t+2}")
        c(f"v_add_u32 v{t+3}, v{t+3}, v{t+4}")
        c(f"v_mul_u32_u24 v{t+3}, 1280, v{t+3}")
        c(f"v_add_u32 v{t+3}, s{col}, v{t+3}")
        c(f"v_mov_b32 v{t+4}, {OOB}")
        c(f"v_cndmask_b32 v{t+5}, v{t+3}, v{t+4}, vcc")
        for j in range(5):
            c(f"v_add_u32 v{t}, {64*j}, v1")
            c(f"v_mul_u32_u24 v{t+1}, 6554, v{t}")
            c(f"v_lshrrev_b32 v{t+1}, 16, v{t+1}")
            c(f"v_lshlrev_b32 v{t+2}, 2, v{t+1}")
            c(f"ds_bpermute_b32 v{self.vRP+j}, v{t+2}, v{t+5}")
            c(f"v_mul_u32_u24 v{t+1}, 10, v{t+1}")
            c(f"v_sub_u32 v{self.vW1D+j}, v{t}, v{t+1}")
        for j in range(5):
            c(f"v_lshl_add_u32 v{self.vRP+j}, v{self.vW1D+j}, 4, v{self.vRP+j}")
        for j in range(7):
            c(f"v_add_u32 v{t}, {64*j}, v1")
            c(f"v_mul_u32_u24 v{t+1}, 4682, v{t}")
            c(f"v_lshrrev_b32 v{t+1}, 16, v{t+1}")
            c(f"v_mul_u32_u24 v{t+2}, 14, v{t+1}")
            c(f"v_sub_u32 v{t}, v{t}, v{t+2}")
            c(f"v_lshrrev_b32 v{t+2}, 1, v{t+1}")
            c(f"v_xor_b32 v{t+2}, v{t+2}, v{t+1}")
            c(f"v_and_b32 v{t+2}, 4, v{t+2}")
            c(f"v_mul_u32_u24 v{t+2}, 3, v{t+2}")
            c(f"v_xor_b32 v{t+1}, v{t+1}, v{t+2}")
            c(f"v_mul_u32_u24 v{t+1}, 3456, v{t+1}")
            c(f"v_lshl_add_u32 v{t}, v{t}, 4, v{t+1}")
            c(f"v_subrev_u32 v{self.vW1D+j}, {1024*(j&3)}, v{t}")

    def only_waves(self, hi, items):
        lab = self.label("ow")
        out = [I(f"s_cmp_ge_u32 s{sW}, 2"), I(f"s_cbranch_scc{0 if hi else 1} {lab} ; noflush")]
        for i in flat(items):
            i.cond = True
            out.append(i)
        out.append(I(f"{lab}: ; noflush"))
        return out

    def rp_offsets(self, n):
        c = self.c
        P = self.RPP
        t, u = self.vTMP, P['u']
        assert all((v * 6554) >> 16 == v // 10 for v in range(448)) and all((v * 4682) >> 16 == v // 14 for v in range(448))
        for j in range(n):
            c(f"v_add_u32 v{t}, {64*j}, v1")
            c(f"v_mul_u32_u24 v{t+1}, s{P['mch']}, v{t}")
            c(f"v_lshrrev_b32 v{t+1}, 16, v{t+1}")
            c(f"v_mul_u32_u24 v{t+2}, s{P['nch']}, v{t+1}")
            c(f"v_sub_u32 v{t}, v{t}, v{t+2}")
            c(f"v_lshl_add_u32 v{t}, v{t}, 4, s{P['col']}")
            c(f"v_mul_u32_u24 v{t+2}, s{P['dm']}, v{t+1}")
            c(f"v_lshrrev_b32 v{t+2}, 16, v{t+2}")
            c(f"v_mul_u32_u24 v{t+3}, s{P['dd']}, v{t+2}")
            c(f"v_sub_u32 v{t+1}, v{t+1}, v{t+3}")
            c(f"v_mad_u32_u24 v{t+1}, v{t+2}, s{P['aa']}, v{t+1}")
            c(f"v_add_u32 v{t+1}, s{P['r0']}, v{t+1}")
            c(f"v_mad_u32_u24 v{self.vRP+j}, v{t+1}, s{P['pitch']}, v{t}")

    RP1_LDS = 6 * 16384

    def rp_dma(self, n, base, wstride, so="0", fl=None):
        items = []
        fl = self.o.get('rpld', 'nt') if fl is None else fl
        for j in range(n):
            pre = [I(f"s_mul_i32 s{sT+12}, s{sW}, {wstride}")] if j == 0 else []
            items.append(pre + [I(f"s_add_u32 m0, s{sT+12}, {base + 1024*j}"),
                                I(f"buffer_load_dwordx4 v{self.vRP+j}, s[{sRP}:{sRP+3}], {so} offen {fl} lds")])
        return items

    def rp_addr(self, t, pitch, base, wstride, oddshift):
        c = self.c
        c(f"s_mul_i32 s{sT+1}, s{sW}, {wstride}")
        if oddshift:
            c(f"s_and_b32 s{sT+2}, s{sW}, 1")
            c(f"s_lshl3_add_u32 s{sT+1}, s{sT+2}, s{sT+1}")
        c(f"s_add_u32 s{sT+1}, s{sT+1}, {base}")
        c(f"v_lshrrev_b32 v{t}, 4, v1")
        c(f"v_bfe_u32 v{t+1}, v1, 2, 2")
        c(f"v_lshl_add_u32 v{t}, v{t}, 3, v{t+1}")
        c(f"v_mul_u32_u24 v{t}, {pitch}, v{t}")
        c(f"v_add_u32 v{t}, s{sT+1}, v{t}")
        c(f"v_and_b32 v{t+1}, 3, v1")
        c(f"v_lshl_add_u32 v{t+2}, v{t+1}, 4, v{t}")
        c(f"v_lshl_add_u32 v{t+3}, v{t+1}, 3, v{t}")

    def rp_items(self, nt, t, off, fr, R):
        pitch = 160 if nt == 5 else 224
        fb = fr if isinstance(fr, list) else [fr + 4 * tl for tl in range(nt)]
        rd, stv = [], []
        for tl in range(nt):
            for q in range(2):
                if tl < nt - 1:
                    rd.append(I(f"ds_read_b64_tr_b16 {vr(fb[tl]+2*q,2)}, v{t+2} offset:{off + q*4*pitch + (tl>>1)*64 + (tl&1)*8}"))
                else:
                    rd.append(I(f"ds_read_b64_tr_b16 {vr(fb[tl]+2*q,2)}, v{t+3} offset:{off + q*4*pitch + tl*32}"))
        for tl in range(nt):
            g = []
            if tl == 4:
                g.append(I(f"s_add_u32 s{sRPD}, s{sRPD}, 4096"))
            if tl == 6:
                g += [I(f"v_and_b32 v{t}, 15, v1"), I(f"v_cmp_gt_u32 vcc, 12, v{t}")]
                g += [I(f"v_cndmask_b32 v{fr+24+q}, 0, v{fr+24+q}, vcc") for q in range(4)]
            g.append(I(f"buffer_store_dwordx4 {vr(fb[tl],4)}, v{vL16}, {R}, s{sRPD} offen offset:{(tl&3)*1024} sc1"))
            stv.append(g)
        return rd + stv

    aV, aWO = 0, 156

    def wo_loads(self):
        items = []
        for i in range(25):
            pre = [I(f"s_add_u32 s{sWOO}, s{sWOO}, 4096")] if i and i % 4 == 0 else []
            items.append(pre + [I(f"buffer_load_dwordx4 {ar(self.aWO+4*i,4)}, v{vL16}, {WSR}, s{sWOO} offen offset:{(i&3)*1024} {self.ld}")])
        return items

    def w1_take(self, n):
        items = []
        first = True
        for i in self.w1q[:n]:
            st, j = divmod(i, 7)
            pre = []
            if j in (0, 4) or first:
                pre.append(I(f"s_add_u32 m0, s{sW1M}, {st * 7168 + (j >> 2) * 4096}"))
            if j == 0 and st:
                pre.append(I(f"s_add_u32 s{sW1O}, s{sW1O}, {32*3456}"))
            first = False
            items.append(pre + [I(f"buffer_load_dwordx4 v{self.vW1D+j}, s[{sWQ}:{sWQ+3}], s{sW1O} offen offset:{(j&3)*1024} lds")])
        self.w1q = self.w1q[n:]
        return items

    def w2_take(self, n, below=70):
        items = []
        while n and self.w2q and self.w2q[0] < below:
            i = self.w2q.pop(0); n -= 1
            pre = [I(f"s_add_u32 s{sW2O}, s{sW2B}, {(i >> 2) * 4096}")] if i % 4 == 0 else []
            items.append(pre + [I(f"buffer_load_dwordx4 {self.w2reg(i)}, v{vL16}, {WSR}, s{sW2O} offen offset:{(i&3)*1024} {self.ld}")])
        return items

    def w2reg(self, i):
        return ar(4 * i, 4) if i < 64 else vr(184 + 4 * (i - 64), 4)

    vO, vK, vQ, vQ4, vZ, vS, vCO, vCD, vP = 32, 64, 124, 132, 136, 146, 178, 194, 210
    vX = 226
    vL16m, vVA, vFWA, vFWD, vPOL = 3, 4, 5, 6, 7
    sKO, sVO = sT + 8, sT + 9
    UNITS = sorted([(kt, 0) for kt in range(9)] + [(kt, 1) for kt in range(1, 10)])

    def attn_init(self):
        c = self.c
        t = 8
        c(f"s_mov_b32 s{sVM}, 0x000fffff")
        c(f"s_mov_b32 s{sVM+1}, 0x000fffff")
        c(f"s_mov_b32 s{sKV}, s{sWS}")
        c(f"s_mov_b32 s{sKV+1}, s{sWS+1}")
        c(f"s_mov_b32 s{sKV+2}, 0")
        c(f"s_mov_b32 s{sKV+3}, 0x20000")
        c(f"v_and_b32 v{self.vL16m}, 0x1f0, v{vL16}")
        c(f"v_lshrrev_b32 v{t}, 1, v1")
        c(f"v_xor_b32 v{t}, v{t}, v1")
        c(f"v_and_b32 v{t}, 4, v{t}")
        c(f"v_mul_u32_u24 v{t}, 48, v{t}")
        c(f"v_xor_b32 v{t}, v{t}, v{self.vL16m}")
        c(f"v_lshrrev_b32 v{t+1}, 5, v1")
        c(f"v_mul_u32_u24 v{t+2}, 10240, v{t+1}")
        c(f"v_add_u32 v{self.vVA}, v{t}, v{t+2}")
        for pi in range(5):
            c(f"s_cmp_ge_u32 s{sU}, {4-pi}")
            c(f"s_cselect_b32 s{sT}, 0x3f803f80, 0")
            c(f"v_mov_b32 v{t}, s{sT}")
            for j in range(16):
                c(f"v_accvgpr_write_b32 a{self.aV+16*pi+j}, v{t}")
        c(f"v_and_b32 v{t}, 31, v1")
        c(f"v_lshlrev_b32 v{t+1}, 2, v{t+1}")
        c(f"v_sub_u32 v{t}, v{t}, v{t+1}")
        c(f"v_mov_b32 v{t+2}, 0xff800000")
        for r in range(0, 16, 4):
            for i in range(4):
                c(f"v_cmp_gt_i32 s[{sT+2*i}:{sT+2*i+1}], {8*(r>>2) + i}, v{t}")
            for i in range(4):
                c(f"v_cndmask_b32 v{self.vCD+r+i}, 0, v{t+2}, s[{sT+2*i}:{sT+2*i+1}]")
            for i in range(4):
                c(f"v_xor_b32 v{self.vCO+r+i}, v{self.vCD+r+i}, v{t+2}")
        c(f"s_lshl_b32 s{sT+2}, s{sRB}, 7")
        c(f"s_add_u32 s{sT+2}, s{sT+2}, {FX_OFF - FL_OFF}")
        c(f"v_and_b32 v{t}, 15, v1")
        c(f"v_lshl_add_u32 v{self.vFWA}, v{t}, 2, s{sT+2}")
        self.rp_addr(12, 160, self.RED, 5120, False)
        c(f"s_mul_i32 s{sT}, s{sNB}, 80")
        c(f"s_add_u32 s{sT+1}, s{sT}, 79")
        c(f"s_lshr_b32 s{sT}, s{sT}, 7")
        c(f"s_lshr_b32 s{sT+1}, s{sT+1}, 7")
        c(f"s_sub_u32 s{sT+1}, s{sT+1}, s{sT}")
        c(f"v_lshrrev_b32 v{t}, 2, v1")
        c(f"v_min_u32 v{t}, 2, v{t}")
        c(f"v_bfe_u32 v{t+1}, v1, 1, 1")
        c(f"v_add_u32 v{t+1}, 1, v{t+1}")
        c(f"v_cmp_lt_u32 vcc, 11, v1")
        c(f"v_and_b32 v{t+2}, s{sT+1}, v1")
        c(f"v_cndmask_b32 v{t+1}, v{t+1}, 0, vcc")
        c(f"v_mad_u32_u24 v{t+1}, v{t+1}, 5, v{t+2}")
        c(f"v_add_u32 v{t+1}, s{sT}, v{t+1}")
        c(f"s_sub_u32 s{sT}, s{sRB}, 2")
        c(f"v_add_u32 v{t}, s{sT}, v{t}")
        c(f"v_max_i32 v{t}, 0, v{t}")
        c(f"v_lshlrev_b32 v{t}, 7, v{t}")
        c(f"v_lshl_add_u32 v{self.vPOL}, v{t+1}, 2, v{t}")
        c(f"v_and_b32 v{t+4}, 15, v1")
        c(f"v_mul_u32_u24 v{t}, 1280, v{t+4}")
        c(f"v_lshrrev_b32 v{t+1}, 4, v1")
        c(f"v_lshl_add_u32 v{t+2}, v{t+1}, 4, v{t}")
        c(f"v_lshl_add_u32 v{t+3}, v{t+1}, 3, v{t}")
        c(f"v_bfe_u32 v{t}, v1, 4, 1")
        c(f"v_lshlrev_b32 v{t+4}, 4, v{t+4}")
        c(f"v_lshl_add_u32 v{t+5}, v{t}, 13, v{t+4}")
        c(f"v_lshl_add_u32 v{t+4}, v{t}, 14, v{t+4}")
        c(f"v_lshrrev_b32 v{t}, 5, v1")
        c(f"v_lshl_add_u32 v{t+4}, v{t}, 8, v{t+4}")

    def attn_kv_loads(self, pi):
        ld = self.ld
        k = self.vK + 12 * pi
        R = f"s[{sKV}:{sKV+3}]"
        pre = [I(f"s_sub_u32 s{sT}, s{sU}, {4-pi}"),
               I(f"s_cselect_b32 s{sKV+2}, 0, {WS_SIZE}"),
               I(f"s_cselect_b32 s{sT}, 0, s{sT}"),
               I(f"s_mul_i32 s{self.sVO}, s{sT}, 81920"),
               I(f"s_lshl1_add_u32 s{self.sKO}, s{self.sVO}, s{sT+6}"),
               I(f"s_add_u32 s{self.sVO}, s{self.sVO}, s{sT+7}")]
        K = [pre + [I(f"buffer_load_dwordx4 {vr(k,4)}, v{vL16}, {R}, s{self.sKO} offen {ld}")],
             [I(f"buffer_load_dwordx4 {vr(k+4,4)}, v{vL16}, {R}, s{self.sKO} offen offset:1024 {ld}")],
             [I(f"buffer_load_dwordx4 {vr(k+8,4)}, v{self.vL16m}, {R}, s{self.sKO} offen offset:2048 {ld}")]]
        V = []
        for T in range(2):
            g = [I(f"s_mov_b64 exec, s[{sVM}:{sVM+1}]")]
            for s in range(2):
                g.append(I(f"buffer_load_dwordx4 {ar(self.aV+16*pi+8*T+4*s,4)}, v{self.vVA}, {R}, s{self.sVO} offen {ld}"))
                if not (T == 1 and s == 1):
                    g.append(I(f"s_add_u32 s{self.sVO}, s{self.sVO}, 20480"))
            g.append(I("s_mov_b64 exec, -1"))
            V.append(g)
        return K, V

    def attn_qk(self, u, dst):
        kt, T = self.UNITS[u]
        k = self.vK + 12 * (kt >> 1)
        cin = '0'
        if kt == T:
            cin = vr(self.vCO, 16)
        elif kt == 8 + T:
            cin = vr(self.vCD, 16)
        d = vr(dst, 16)
        z = self.vZ + 4 * T + (0 if kt & 1 else 2)
        return [I(f"v_mfma_f32_32x32x16_bf16 {d}, {vr(k+4*(kt&1),4)}, {vr(self.vQ+4*T,4)}, {cin}"),
                I(f"v_mfma_f32_32x32x16_bf16 {d}, {vr(k+8,4)}, {vr(z,4)}, {d}")]

    def attn_loop(self, fill, swaps):
        c = self.c
        n = len(self.UNITS)
        S = lambda u: self.vS + 16 * (u & 1)
        P = lambda u: self.vP + 8 * (u & 1)
        seen = set()

        def qk(u):
            kt = self.UNITS[u][0]
            pre = []
            if swaps and (kt >> 1) not in seen:
                seen.add(kt >> 1)
                k = self.vK + 12 * (kt >> 1)
                pre = [I(f"v_swap_b32 v{k+2}, v{k+4}"), I(f"v_swap_b32 v{k+3}, v{k+5}")]
            return pre, self.attn_qk(u, S(u))

        def pv(u, s):
            kt, T = self.UNITS[u]
            d = vr(self.vO + 16 * T, 16)
            first = (kt == T and s == 0)
            return I(f"v_mfma_f32_32x32x16_bf16 {d}, {ar(self.aV+8*kt+4*s,4)}, {vr(P(u)+4*s,4)}, {0 if first else d}")

        ex = lambda u, g: [I(f"v_exp_f32 v{S(u)+4*g+i}, v{S(u)+4*g+i}") for i in range(4)]
        cv = lambda u, g: [I(f"v_cvt_pk_bf16_f32 v{P(u)+2*g+i}, v{S(u)+4*g+2*i}, v{S(u)+4*g+2*i+1}") for i in range(2)]
        pre, m = qk(0)
        c.add(pre); c.add(m)
        if fill:
            self.stamp("qk0", "attn")
        c.add(fill.get(-1, []))
        for u in range(n + 1):
            f = list(fill.get(u, [])) + [[]] * 4
            pre, m = qk(u + 1) if u + 1 < n else ([], [[], []])
            if u > 0: c.add(pv(u - 1, 0))
            if u > 0: c.add(cv(u - 1, 3))
            c.add(pre)
            if u < n: c.add(ex(u, 0))
            c.add(f[0])
            c.add(m[0])
            if u < n: c.add(ex(u, 1)); c.add(cv(u, 0))
            c.add(f[1])
            c.add(m[1])
            if u < n: c.add(ex(u, 2)); c.add(cv(u, 1))
            c.add(f[2])
            if u > 0: c.add(pv(u - 1, 1))
            if u < n: c.add(ex(u, 3)); c.add(cv(u, 2))
            c.add(f[3])
            if fill:
                self.stamp(f"u{u}", "attn")

    def same_check(self):
        c = self.c
        self.flag_check(self.vFWD, self.vFWA, span=True)
        c(f"s_add_u32 s{sT+1}, s{sTAG}, s{sXCC}")
        c(f"v_cmp_ne_u32 vcc, s{sT+1}, v{self.vFWD}")
        c(f"s_cmp_lg_u64 vcc, 0")
        c(f"s_cselect_b32 s{sSAME}, 0, 1")
        if self.o.get('nosame'):
            c(f"s_mov_b32 s{sSAME}, 0")

    def attention(self):
        c, o = self.c, self.o
        ld = self.ld
        t = 8
        c(f"s_mul_i32 s{sT+5}, s{sHEAD}, 2560")
        c(f"s_add_u32 s{sT+6}, s{sT+5}, {QK_OFF + 160*512}")
        c(f"s_mul_i32 s{sT+7}, s{sHEAD}, 320")
        c(f"s_add_u32 s{sT+7}, s{sT+7}, {V_OFF}")
        c(f"s_mul_i32 s{sT+4}, s{sU}, 163840")
        c(f"s_add_u32 s{sT+5}, s{sT+5}, s{sT+4}")
        c(f"s_lshl2_add_u32 s{sT+3}, s{sU}, s{sW}")
        c(f"s_mul_i32 s{sT+3}, s{sT+3}, {16*1280}")
        c(f"s_mul_i32 s{sT+2}, s{sNB}, 160")
        c(f"s_add_u32 s{sT+3}, s{sT+3}, s{sT+2}")
        for r in (0, 1, 4, 5, 8, 9):
            c(f"v_mov_b32 v{self.vZ+r}, 0")
        kv = [self.attn_kv_loads(pi) for pi in range(5)]
        c.add(kv[0][0][0][:-1])
        lab = self.label("w1")
        c(f"s_cmp_lg_u32 s{sW}, 1")
        c(f"s_cbranch_scc1 {lab}")
        c.cond(True)
        self.poll(self.vPOL, sleep=o.get('s1sleep', 2))
        c.cond(False)
        c(f"{lab}:")
        c("s_barrier")
        self.stamp("s1", "main attn")
        q = self.vQ
        c(f"buffer_load_dwordx4 {vr(q,4)}, v{vL16}, {WSR}, s{sT+5} offen {ld}")
        c(f"buffer_load_dwordx4 {vr(q+4,4)}, v{vL16}, {WSR}, s{sT+5} offen offset:1024 {ld}")
        c.add(kv[0][0][0][-1]); c.add(kv[0][0][1])
        c(f"buffer_load_dwordx4 {vr(self.vQ4,4)}, v{self.vL16m}, {WSR}, s{sT+5} offen offset:2048 {ld}")
        c.add(kv[0][0][2]); c.add(kv[0][1]); c.add(kv[1][0])
        rest = kv[1][1] + kv[2][0] + kv[2][1] + kv[3][0] + kv[3][1] + kv[4][0] + kv[4][1]
        if o.get('w2src', 0) == 1:
            pass
        fl = I(f"buffer_load_dword v{self.vFWD}, v{self.vFWA}, {WSR}, s{sFLB} offen sc1")
        XR = f"s[{sX}:{sX+3}]"
        xl = [[I(f"buffer_load_dwordx4 {vr(self.vX,4)}, v{t+2}, {XR}, s{sT+3} offen")],
              [I(f"buffer_load_dwordx4 {vr(self.vX+4,4)}, v{t+2}, {XR}, s{sT+3} offen offset:64")],
              [I(f"buffer_load_dwordx2 {vr(self.vX+8,2)}, v{t+3}, {XR}, s{sT+3} offen offset:128")]]
        fill = {u: [[], [], [], []] for u in range(19)}
        fill[-1] = rest[:2]; rest = rest[2:]

        def place(items, g0, step):
            g = g0
            for it in items:
                assert g < 72
                fill[int(g) // 4][int(g) % 4].append(it); g += step
            return int(g + 0.999)
        g = place(rest + [fl], 0, o.get('kvstep', 20) / 10)
        KV = f"s[{sKV}:{sKV+3}]"
        it = self.rp_items(5, 12, 0, [16, 20, 24, 28, 240], KV)
        it[0].waits = [kv[0][0][1][0]]
        it[10] = [I(f"s_mov_b32 s{sKV+2}, s{sRPT}")] + it[10]
        place([it[:4], it[4:7], it[7:10]], g - 4, 1)
        g = place(it[10:] + xl + self.woq, g, o.get('wostep', 10) / 10)
        place([self.sub(self.same_check)], 60, 1)
        w1 = self.w1_take(o.get('w1a', 8))
        place(w1, g, (70 - g) / max(len(w1), 1))
        place([[I(f"v_mov_b32 v{vFLG}, s{sTAG}"), I("s_mov_b64 exec, 1", waits=[it[-1][-1]]),
                I(f"buffer_store_dword v{vFLG}, off, {KV}, s{sRPF} sc1"), I("s_mov_b64 exec, -1")]], 64, 1)
        sb = [I(f"s_mul_i32 s{sT}, s{sU}, 81920"), I(f"s_add_u32 s{sT}, s{sT}, {O_OFF}"),
              I(f"s_lshl_b32 s{sT+1}, s{sHEAD}, 9"), I(f"s_add_u32 s{sT+1}, s{sT+1}, s{sT}"),
              I(f"s_add_u32 s{sT+2}, s{sT+1}, 32768"), I(f"s_lshr_b32 s{sT+4}, s{sHEAD}, 3"),
              I(f"s_and_b32 s{sT+5}, s{sHEAD}, 1"), I(f"s_lshl1_add_u32 s{sT+4}, s{sT+4}, s{sT+5}"),
              I(f"s_bfe_u32 s{sT+5}, s{sHEAD}, 0x20001"), I(f"s_lshl2_add_u32 s{sT+4}, s{sT+4}, s{sT+5}"),
              I(f"s_lshl_b32 s{sT+4}, s{sT+4}, 8"), I(f"s_add_u32 s{sT+4}, s{sT+4}, s{sT}"),
              I(f"s_add_u32 s{sT+4}, s{sT+4}, 65536")]
        fill[18] = [sb[:4], [], [], sb[4:]]
        c(f"v_swap_b32 v{q+2}, v{q+4}")
        c(f"v_swap_b32 v{q+3}, v{q+5}")
        for T in range(2):
            for i in range(2):
                c(f"v_cndmask_b32 v{self.vZ+2+4*T+i}, v{self.vQ4+2*T+i}, 0, s[{sHI}:{sHI+1}]")
        self.attn_loop(fill, True)
        self.stamp("attn")
        lo, hi = f2u(2.0 ** -40), f2u(2.0 ** 40)
        O = self.vO
        c(f"v_subrev_u32 v{t}, {hex(lo)}, v{O+12}")
        c(f"v_subrev_u32 v{t+1}, {hex(lo)}, v{O+28}")
        c(f"v_max_u32 v{t}, v{t}, v{t+1}")
        c(f"v_cmp_lt_u32 vcc, {hex(hi-lo)}, v{t}")
        if o.get('forceslow'):
            c("s_mov_b64 vcc, -1")
        c(f"s_cbranch_vccnz Lattn_slow")
        c("Lattn_fin:")
        self.attn_slow()
        self.attn_epilogue('sc1')

    def attn_epilogue(self, st):
        c, o = self.c, self.o
        t, O, ob = 8, self.vO, 16
        c(f"v_rcp_f32 v{t}, v{O+12}")
        c(f"v_rcp_f32 v{t+1}, v{O+28}")
        for T in range(2):
            sel = "op_sel_hi:[1,0]" if T == 0 else "op_sel:[0,1] op_sel_hi:[1,1]"
            for i in range(6):
                r = O + 16 * T + 2 * i
                c(f"v_pk_mul_f32 {vr(r,2)}, {vr(r,2)}, {vr(t,2)} {sel}")
            for i in range(6):
                r = O + 16 * T + 2 * i
                d = ob + 4 * T + i if i < 4 else ob + 8 + 2 * T + (i - 4)
                c(f"v_cvt_pk_bf16_f32 v{d}, v{r}, v{r+1}")
            c(f"buffer_store_dwordx4 {vr(ob+4*T,4)}, v{t+4}, {WSR}, s{sT+1+T} offen {st}")
        c(f"s_not_b64 exec, s[{sHI}:{sHI+1}]")
        h = c(f"buffer_store_dwordx4 {vr(ob+8,4)}, v{t+5}, {WSR}, s{sT+4} offen {st}")
        c("s_mov_b64 exec, -1")
        c.add(self.w1_take(o.get('w1b', 3)))
        self.p3_prep()
        c.wait(h)
        self.stamp("odrain")
        self.flag_store_near(sT + 13)

    def attn_slow(self):
        old, self.c = self.c, self.ool
        c = self.c
        t = 16
        c("Lattn_slow:")
        c("s_waitcnt vmcnt(0) lgkmcnt(0)")
        c(f"v_mov_b32 v{t}, 0xff800000")
        c(f"v_mov_b32 v{t+1}, 0xff800000")
        for pi in range(5):
            lab = self.label("sl")
            c(f"s_cmp_ge_u32 s{sU}, {4-pi}")
            c(f"s_cselect_b32 s{sT+12}, 0x3f803f80, 0")
            c(f"v_mov_b32 v{t+2}, s{sT+12}")
            for i in range(4):
                r = self.vK + 12 * pi + 8 + i
                c(f"v_cndmask_b32 v{r}, v{r}, v{t+2}, s[{sHI}:{sHI+1}]")
            c(f"s_cbranch_scc0 {lab}")
            for u, (kt, T) in enumerate(self.UNITS):
                if kt >> 1 != pi:
                    continue
                c.add(self.attn_qk(u, self.vS))
                for i in range(8):
                    c(f"v_max3_f32 v{t+T}, v{self.vS+2*i}, v{self.vS+2*i+1}, v{t+T}")
            c(f"{lab}:")
        for T in range(2):
            c(f"v_mov_b32 v{t+2}, v{t+T}")
            c(f"v_permlane32_swap_b32 v{t+2}, v{t+T}")
            c(f"v_max_f32 v{t+2}, v{t+2}, v{t+T}")
            c(f"v_xor_b32 v{t+2}, 0x80000000, v{t+2}")
            c(f"v_and_b32 v{t+3}, s{sMASK}, v{t+2}")
            c(f"v_sub_f32 v{t+2}, v{t+2}, v{t+3}")
            c(f"v_and_b32 v{t+4}, s{sMASK}, v{t+2}")
            c(f"v_sub_f32 v{t+2}, v{t+2}, v{t+4}")
            c(f"v_lshrrev_b32 v{t+3}, 16, v{t+3}")
            c(f"v_or_b32 v{t+3}, v{t+3}, v{t+4}")
            c(f"v_lshrrev_b32 v{t+2}, 16, v{t+2}")
            z = self.vZ + 2 + 4 * T
            c(f"v_cndmask_b32 v{z}, v{z}, v{t+3}, s[{sHI}:{sHI+1}]")
            c(f"v_cndmask_b32 v{z+1}, v{z+1}, v{t+2}, s[{sHI}:{sHI+1}]")
        self.attn_loop({}, False)
        c("s_branch Lattn_fin")
        self.c = old

    RED = 143360
    vRES = 236
    CORD = (1, 2, 3, 0)
    p3A, p3L, p3AC, p3PB, p3SUM = 64, 128, 144, 184, 204

    def p3_prep(self):
        c = self.c
        t = 32
        c(f"s_lshl_b32 s{sT+13}, s{sU}, 7")
        c(f"s_lshl_b32 s{sT+3}, s{sW}, 5")
        c(f"s_add_u32 s{sT+3}, s{sT+3}, s{sT+13}")
        c(f"s_add_u32 s{sT+3}, s{sT+3}, {F2_OFF - FL_OFF}")
        c(f"s_lshl2_add_u32 s{sT+13}, s{sHEAD}, s{sT+13}")
        c(f"s_add_u32 s{sT+13}, s{sT+13}, {F2_OFF}")
        c(f"v_and_b32 v{self.vPOL}, 7, v1")
        c(f"v_lshl_add_u32 v{self.vPOL}, v{self.vPOL}, 2, s{sT+3}")
        c(f"s_mul_i32 s{sT+5}, s{sW}, 56")
        c(f"s_lshl_b32 s{sT+6}, s{sNB}, 8")
        c(f"s_add_u32 s{sT+5}, s{sT+5}, s{sT+6}")
        c(f"s_add_u32 s{sT+5}, s{sT+5}, {FW2_OFF - FL_OFF}")
        c(f"v_min_u32 v{self.vFWA}, 13, v1")
        c(f"v_lshl_add_u32 v{self.vFWA}, v{self.vFWA}, 2, s{sT+5}")
        c(f"s_lshl_b32 s{sT+6}, s{sW}, 12")
        c(f"s_add_u32 s{sT+6}, s{sT+6}, s{sT}")
        for i, cc in enumerate(self.CORD):
            c(f"s_xor_b32 s{sT+5}, s{sW}, {cc}")
            c(f"s_lshl_b32 s{sT+8+i}, s{sT+5}, 14")
            c(f"s_add_u32 s{sT+8+i}, s{sT+8+i}, s{sT+6}")
            c(f"s_mul_i32 s{sT+5}, s{sT+5}, 5120")
            c(f"s_add_u32 s{sT+5}, s{sT+5}, {self.RED}")
            c(f"v_add_u32 v{t+2+i}, s{sT+5}, v{vL16}")
        c(f"s_lshl_b32 s{sT+6}, s{sW}, 11")
        c(f"s_add_u32 s{sT+5}, s{sT}, s{sT+6}")
        c(f"s_add_u32 s{sT+5}, s{sT+5}, 65536")
        c(f"s_and_b32 s{sT+7}, s{sW}, 1")
        c(f"s_lshl_b32 s{sT+7}, s{sT+7}, 13")
        c(f"s_xor_b32 s{sT+6}, s{sT+7}, 8192")
        c(f"s_add_u32 s{sT+6}, s{sT+6}, s{sT+5}")
        c(f"s_add_u32 s{sT+7}, s{sT+7}, s{sT+5}")
        c(f"s_lshr_b32 s{sT+5}, s{sW}, 1")
        c(f"s_cselect_b64 s[{sT+14}:{sT+15}], -1, 0")
        c(f"s_lshl_b32 s{sT+5}, s{sT+5}, 10")
        c(f"v_xor_b32 v{t}, s{sT+5}, v{vL16}")
        c(f"v_xor_b32 v{t+1}, 1024, v{t}")
        for j in range(10):
            c(f"v_lshlrev_b32 v{self.p3SUM+2*j}, 16, v{self.vX+j}")
            c(f"v_and_b32 v{self.p3SUM+2*j+1}, s{sMASK}, v{self.vX+j}")

    def phase3(self):
        c, o = self.c, self.o
        ld = o.get('la', 'sc1')
        vA, vL, vAC, vPB, vSUM = self.p3A, self.p3L, self.p3AC, self.p3PB, self.p3SUM
        t = 32
        self.poll(self.vPOL)
        self.stamp("s2", "main p3")
        L = []
        for i in range(4):
            for s in range(4):
                L.append(I(f"buffer_load_dwordx4 {vr(vA+16*i+4*s,4)}, v{vL16}, {WSR}, s{sT+8+i} offen offset:{s*1024} {ld}"))
            if i < 2:
                L.append(I(f"buffer_load_dwordx4 {vr(vL+8*i,4)}, v{t}, {WSR}, s{sT+6+i} offen {ld}"))
                L.append(I(f"buffer_load_dwordx4 {vr(vL+8*i+4,4)}, v{t+1}, {WSR}, s{sT+6+i} offen {ld}"))
        n0 = o.get('p3n0', 12)
        c.add(L[:n0])
        L = L[n0:] + self.w1_take(o.get('w1c', 35))
        L.append(I(f"buffer_load_dword v{self.vFWD}, v{self.vFWA}, {WSR}, s{sFLB} offen sc1"))
        c(f"s_lshl2_add_u32 s{sT}, s{sU}, s{sW}")
        c(f"s_mul_i32 s{sT+1}, s{sT}, 20480")
        c(f"s_mul_i32 s{sT+2}, s{sNB}, 2560")
        c(f"s_add_u32 s{sT+1}, s{sT+1}, s{sT+2}")
        c(f"s_add_u32 s{sT+1}, s{sT+1}, {H_OFF}")
        c(f"s_lshl3_add_u32 s{sT+2}, s{sT}, s{sNB}")
        c(f"s_and_b32 s{sT+13}, s{sT+2}, 15")
        c(f"s_lshr_b32 s{sT+3}, s{sT}, 1")
        c(f"s_lshl_b32 s{sT+3}, s{sT+3}, 7")
        c(f"s_lshl2_add_u32 s{sT+13}, s{sT+13}, s{sT+3}")
        c(f"s_add_u32 s{sT+13}, s{sT+13}, {F3_OFF}")
        c(f"s_lshl_b32 s{sT+2}, s{sT+2}, 7")
        c(f"s_add_u32 s{sT+2}, s{sT+2}, {HST_OFF}")
        c(f"v_and_b32 v{t+6}, 15, v1")
        c(f"v_lshrrev_b32 v{t+7}, 5, v1")
        c(f"v_lshl_add_u32 v{t+6}, v{t+7}, 4, v{t+6}")
        c(f"v_lshlrev_b32 v{t+7}, 4, v{t+6}")
        c(f"v_lshlrev_b32 v{t+6}, 2, v{t+6}")
        c(f"s_mov_b32 s{sT+4}, 0xffff")
        c(f"s_mov_b32 s{sT+5}, 0xffff")

        def swaps(g):
            q = vL + 8 * g
            return [I(f"s_not_b64 exec, s[{sT+14}:{sT+15}]"), I(f"v_swap_b32 v{q+2}, v{q+4}"), I(f"v_swap_b32 v{q+3}, v{q+5}"),
                    I(f"s_mov_b64 exec, s[{sT+14}:{sT+15}]"), I(f"v_swap_b32 v{q}, v{q+6}"), I(f"v_swap_b32 v{q+1}, v{q+7}"),
                    I("s_mov_b64 exec, -1")]
        left = {0: vL, 1: vL + 12, 2: vL + 4, 3: vL + 8}
        lper = o.get('p3lp', 3)
        for i in range(4):
            ac = vAC + 20 * (i & 1)
            M = []
            for s in range(5):
                b = vA + 16 * i + 4 * s if s < 4 else left[i]
                for tl in range(5):
                    d = vr(ac + 4 * tl, 4)
                    M.append(I(f"v_mfma_f32_16x16x32_bf16 {d}, {ar(self.aWO+4*(5*s+tl),4)}, {vr(b,4)}, {0 if s == 0 else d}"))
            F = [[] for _ in range(25)]
            if i < 2:
                F[17] += swaps(i)
            if i > 0:
                pa = vAC + 20 * ((i - 1) & 1)
                F[2] += [I("s_barrier")]
                for tl in range(5):
                    F[3 + tl] += [I(f"ds_write_b128 v{t+2+i-1}, {vr(pa+4*tl,4)} offset:{tl*1024}")]
                F[9] += [I("s_waitcnt lgkmcnt(0)"), I("s_barrier")]
                for tl in range(5):
                    F[10 + tl // 2] += [I(f"ds_read_b128 {vr(vPB+4*tl,4)}, v{t+5} offset:{tl*1024}")]
                for j in range(10):
                    F[15 + j] += [I(f"v_add_f32 v{vSUM+2*j}, v{vSUM+2*j}, v{vPB+2*j}"), I(f"v_add_f32 v{vSUM+2*j+1}, v{vSUM+2*j+1}, v{vPB+2*j+1}")]
            for k in range(25):
                c.add(M[k])
                if L and (25 * i + k) % lper == 0:
                    c.add(L.pop(0))
                c.add(F[k])
                if k in (0, 8, 12, 24):
                    self.stamp(f"i{i}k{k}", "p3")
        c.add(L)
        self.stamp("p3")
        self.p3_epilogue('sc1')

    def p3_epilogue(self, st):
        c, o = self.c, self.o
        vAC, vPB, vSUM = self.p3AC, self.p3PB, self.p3SUM
        t = 32
        ac = vAC + 20
        rs = self.vRES
        for P in range(3):
            for j in range(4 * P, min(4 * P + 4, 10)):
                c(f"v_pk_add_f32 {vr(vSUM+2*j,2)}, {vr(vSUM+2*j,2)}, {vr(ac+2*j,2)}")
            for j in range(4 * P, min(4 * P + 4, 10)):
                c(f"v_cvt_pk_bf16_f32 v{rs+j}, v{vSUM+2*j}, v{vSUM+2*j+1}")
            if P < 2:
                c(f"buffer_store_dwordx4 {vr(rs+4*P,4)}, v{vL16}, {WSR}, s{sT+1} offen offset:{P*1024} {st}")
        for j in range(4):
            c(f"v_mov_b32 v{vPB+j}, v{rs+8+(j&1)}")
        a1, a2 = t + 8, t + 10
        c(f"v_pk_add_f32 {vr(a1,2)}, {vr(vSUM,2)}, {vr(vSUM+2,2)}")
        c(f"v_pk_mul_f32 {vr(a2,2)}, {vr(vSUM,2)}, {vr(vSUM,2)}")
        c(f"v_permlane16_swap_b32 v{vPB}, v{vPB+2}")
        c(f"v_permlane16_swap_b32 v{vPB+1}, v{vPB+3}")
        c(f"s_mov_b64 exec, s[{sT+4}:{sT+5}]")
        c(f"buffer_store_dwordx4 {vr(vPB,4)}, v{t+7}, {WSR}, s{sT+1} offen offset:2048 {st}")
        c("s_mov_b64 exec, -1")
        for j in range(1, 10):
            if j > 1:
                c(f"v_pk_add_f32 {vr(a1,2)}, {vr(a1,2)}, {vr(vSUM+2*j,2)}")
            c(f"v_pk_fma_f32 {vr(a2,2)}, {vr(vSUM+2*j,2)}, {vr(vSUM+2*j,2)}, {vr(a2,2)}")
        c(f"v_add_f32 v{a1}, v{a1}, v{a1+1}")
        c(f"v_add_f32 v{a2}, v{a2}, v{a2+1}")
        c(f"v_permlane32_swap_b32 v{a1}, v{a2}")
        c(f"v_add_f32 v{a1}, v{a1}, v{a2}")
        c(f"v_mov_b32 v{a2}, v{a1}")
        c(f"v_permlane16_swap_b32 v{a1}, v{a2}")
        c(f"v_add_f32 v{a1}, v{a1}, v{a2}")
        c(f"s_mov_b64 exec, s[{sT+4}:{sT+5}]")
        h = c(f"buffer_store_dword v{a1}, v{t+6}, {WSR}, s{sT+2} offen {st}")
        c("s_mov_b64 exec, -1")
        rest = self.w1_take(35)
        c.add(rest)
        self.p4_prep()
        c.wait(h)
        self.stamp("hdrain")
        self.flag_store_near(sT + 13)
        if rest:
            c("s_waitcnt vmcnt(1)")

    p4AC, p4W, p4A, p4NR, p4ST, p4CS = 64, 120, 176, 7, 16, 24

    def p4_prep(self):
        c = self.c
        t = 8
        c(f"s_lshl2_add_u32 s{sT}, s{sRB}, s{sW}")
        c(f"s_mul_i32 s{sT+6}, s{sT}, 40960")
        c(f"s_add_u32 s{sT+6}, s{sT+6}, {H_OFF}")
        c(f"s_add_u32 s{sT+7}, s{sT+6}, 20480")
        c(f"s_lshl_b32 s{sT+8}, s{sT}, 11")
        c(f"s_add_u32 s{sT+8}, s{sT+8}, {HST_OFF}")
        c(f"v_and_b32 v{t}, 31, v1")
        c(f"v_lshrrev_b32 v{t+1}, 5, v1")
        c(f"v_lshlrev_b32 v{t}, 2, v{t}")
        c(f"v_lshl_add_u32 v{t}, v{t+1}, 10, v{t}")
        c(f"v_bfe_u32 v{t+2}, v1, 2, 3")
        c(f"v_lshl_add_u32 v{t+2}, v{t+1}, 4, v{t+2}")
        c(f"v_mul_u32_u24 v{t+2}, 224, v{t+2}")
        c(f"s_and_b32 s{sT+9}, s{sFB}, 1")
        c(f"v_and_b32 v{t+3}, 3, v1")
        c(f"v_add_u32 v{t+3}, s{sT+9}, v{t+3}")
        c(f"v_lshl_add_u32 v60, v{t+3}, 3, v{t+2}")
        c(f"v_add_u32 v{t+2}, {9*7168}, v60")
        c(f"v_add_u32 v{t+3}, {18*7168}, v60")
        c(f"v_and_b32 v{t+4}, 48, v1")
        c(f"v_add_u32 v{t+4}, {self.RED}, v{t+4}")
        c(f"s_mul_i32 s{sT+9}, s{sW}, 5120")
        c(f"v_add_u32 v{t+5}, s{sT+9}, v{t+4}")
        c(f"s_lshl_b32 s{sT+9}, s{sT}, 7")
        c(f"s_add_u32 s{sT+9}, s{sT+9}, {F3_OFF - FL_OFF}")
        c(f"v_and_b32 v{self.vPOL}, 15, v1")
        c(f"v_lshl_add_u32 v{self.vPOL}, v{self.vPOL}, 2, s{sT+9}")
        c(f"s_lshl_b32 s{sT+9}, s{sW}, 5")
        c(f"v_add_u32 v52, s{sT+9}, v60")
        c(f"v_add_u32 v53, {9*7168}, v52")
        c(f"v_add_u32 v54, {18*7168}, v52")
        for j in range(4):
            c(f"v_mov_b32 v{56+j}, 0x3f803f80")

    def phase4(self):
        c, o = self.c, self.o
        ld = o.get('la', 'sc1')
        vAC, vW, vA, NR, vST, vCS = self.p4AC, self.p4W, self.p4A, self.p4NR, self.p4ST, self.p4CS
        t = 8
        c("s_barrier")
        wa = [60, t + 2, t + 3]
        rdw = lambda s: [I(f"ds_read_b64_tr_b16 {vr(vW+28*(s&1)+4*tl+2*q,2)}, v{wa[s//9]} offset:{(s%9)*7168 + q*1792 + tl*32}") for tl in range(7) for q in range(2)]
        vC, vONE, NB = vCS, 56, 14
        rd = lambda k: [I(f"ds_read_b64_tr_b16 {vr(vAC+4*(k%NB)+2*q,2)}, v{52+(k>>1)//9} offset:{((k>>1)%9)*7168 + q*1792 + (k&1)*128}") for q in range(2)]
        for k in range(7):
            c.add(rd(k))
        self.poll(self.vPOL)
        self.stamp("s3", "main p4")

        def lda(s):
            g = []
            for a in range(2):
                pre = [I(f"s_add_u32 s{sT+6+a}, s{sT+6+a}, 4096")] if s and s % 4 == 0 else []
                g.append(pre + [I(f"buffer_load_dwordx4 {vr(vA+8*(s%NR)+4*a,4)}, v{vL16}, {WSR}, s{sT+6+a} offen offset:{(s&3)*1024} {ld}")])
            return g
        for s in range(NR - 1):
            c.add(lda(s))
        self.flag_check(self.vFWD, self.vFWA)
        r0 = rdw(0)
        for k in range(40):
            d = vr(vC + 4 * (k & 1), 4)
            c(f"v_mfma_f32_16x16x32_bf16 {d}, {vr(vAC+4*(k%NB),4)}, {vr(vONE,4)}, {0 if k < 2 else d}")
            if k + 7 < 40:
                c.add(rd(k + 7))
            else:
                c.add(r0[:2]); r0 = r0[2:]
        self.stamp("csum", "p4")
        extra = [[I(f"buffer_load_dword v{vST+j}, v{t}, {WSR}, s{sT+8} offen offset:{j*128} {ld}")] for j in range(8)]
        misc = {0: [[I(f"ds_write_b128 v{t+5}, {vr(vC,4)}")], [I(f"ds_write_b128 v{t+5}, {vr(vC+4,4)} offset:64")]],
                2: [[I("s_barrier")]],
                3: [[I(f"ds_read_b128 {vr(vCS+4*tl,4)}, v{t+4} offset:{(tl&3)*5120 + (tl>>2)*64}")] for tl in range(3)],
                4: [[I(f"ds_read_b128 {vr(vCS+4*tl,4)}, v{t+4} offset:{(tl&3)*5120 + (tl>>2)*64}")] for tl in range(3, 5)],
                5: [[I(f"ds_read_b128 {vr(vCS+4*tl,4)}, v{t+4} offset:{(tl&3)*5120 + (tl>>2)*64}")] for tl in range(5, 7)]}
        misc[2][0].insert(0, W(misc[0][1][0]))
        fin = self.sub(self.p4_stats)
        for s in range(12, 20):
            n = -(-len(fin) // (20 - s))
            misc[s] = [fin[:n][i::3] and fin[:n][(i * n) // 3:((i + 1) * n) // 3] for i in range(3)]
            fin = fin[n:]
        for s in range(20):
            M = []
            for tl in range(7):
                for a in range(2):
                    d = vr(vAC + 28 * a + 4 * tl, 4)
                    M.append(I(f"v_mfma_f32_16x16x32_bf16 {d}, {vr(vW+28*(s&1)+4*tl,4)}, {vr(vA+8*(s%NR)+4*a,4)}, {0 if s == 0 else d}"))
            Rn = rdw(s + 1) if s < 19 else [[]] * 14
            F = (lda(s + NR - 1) if s + NR - 1 < 20 else [])
            ne = o.get('p4x', 2) if s + NR - 1 < 20 else o.get('p4y', 4)
            X = extra[:ne]; extra = extra[ne:]
            X += self.w2_take(ne - len(X), 64)
            F += X + misc.get(s, [])
            assert len(F) <= 7
            for k in range(14):
                c.add(M[k])
                c.add(Rn[k])
                if k % 2 and k // 2 < len(F):
                    c.add(F[k // 2])
            if s < 8 or s % 2:
                self.stamp(f"k{s}", "p4")
        self.stamp("p4")
        self.p4_epilogue('sc1')

    def p4_stats(self):
        c = self.c
        vST, t = self.p4ST, 8
        for j in range(1, 8):
            c(f"v_add_f32 v{vST}, v{vST}, v{vST+j}")
        c(f"v_mov_b32 v{vST+1}, v{vST}")
        c(f"v_permlane16_swap_b32 v{vST}, v{vST+1}")
        c(f"v_mul_f32 v{vST}, {hex(f2u(-1.0/640))}, v{vST}")
        c(f"v_mul_f32 v{vST+1}, {hex(f2u(1.0/640))}, v{vST+1}")
        c(f"v_fma_f32 v{vST+1}, -v{vST}, v{vST}, v{vST+1}")
        c(f"v_max_f32 v{vST+1}, 0, v{vST+1}")
        c(f"v_add_f32 v{vST+1}, {hex(f2u(1e-5))}, v{vST+1}")
        c(f"v_rsq_f32 v{vST+1}, v{vST+1}")
        nl = hex(f2u(-1.4426950408889634))
        c(f"v_mov_b32 v{vST+4}, {nl}")
        c(f"v_mov_b32 v{vST+5}, {nl}")
        c(f"v_mul_f32 v{vST+1}, v{vST+4}, v{vST+1}")
        c(f"v_mov_b32 v{vST+2}, v{vST}")
        c(f"v_mov_b32 v{vST+3}, v{vST+1}")
        c(f"v_permlane32_swap_b32 v{vST}, v{vST+2}")
        c(f"v_permlane32_swap_b32 v{vST+1}, v{vST+3}")
        c(f"s_mul_i32 s{sT+1}, s{sT}, {2*57344}")
        c(f"s_mul_i32 s{sT+2}, s{sFB}, 3584")
        c(f"s_add_u32 s{sT+1}, s{sT+1}, s{sT+2}")
        c(f"s_add_u32 s{sT+1}, s{sT+1}, {H1_OFF}")
        c(f"s_add_u32 s{sT+2}, s{sT+1}, 57344")
        c(f"v_bfe_u32 v{t+6}, v1, 4, 1")
        c(f"v_mul_u32_u24 v{t+6}, 57344, v{t+6}")
        c(f"v_and_b32 v{t+7}, 15, v1")
        c(f"v_lshl_add_u32 v{t+6}, v{t+7}, 4, v{t+6}")
        c(f"v_lshl_add_u32 v{t+6}, v{t+1}, 8, v{t+6}")
        c(f"s_lshr_b32 s{sT+13}, s{sT}, 1")
        c(f"s_lshl_b32 s{sT+13}, s{sT+13}, 7")
        c(f"s_and_b32 s{sT+3}, s{sW}, 1")
        c(f"s_lshl1_add_u32 s{sT+3}, s{sFB}, s{sT+3}")
        c(f"s_lshl2_add_u32 s{sT+13}, s{sT+3}, s{sT+13}")
        c(f"s_add_u32 s{sT+13}, s{sT+13}, {F4_OFF}")

    def p4_epilogue(self, st):
        c, o = self.c, self.o
        vAC, vW, vST, vCS = self.p4AC, self.p4W, self.p4ST, self.p4CS
        t = 8
        vE, vOUT = 52, vW
        groups = [[(a, 2 * P), (a, 2 * P + 1)] for P in range(3) for a in range(2)] + [[(0, 6), (1, 6)]]
        for gi, g in enumerate(groups):
            if gi < 5:
                c.add(self.w2_take(o.get('p4e', 3)))
            pairs = [(vAC + 28 * a + 4 * tl + 2 * q, vCS + 4 * tl + 2 * q, vST + 2 * a) for a, tl in g for q in range(2)]
            for r, cs, sv in pairs:
                c(f"v_pk_fma_f32 {vr(r,2)}, {vr(cs,2)}, {vr(sv,2)}, {vr(r,2)} op_sel_hi:[1,0,1]")
            for r, cs, sv in pairs:
                c(f"v_pk_mul_f32 {vr(r,2)}, {vr(r,2)}, {vr(sv,2)} op_sel:[0,1] op_sel_hi:[1,1]")
            for k, (r, cs, sv) in enumerate(pairs):
                c(f"v_exp_f32 v{vE+2*k}, v{r}")
                c(f"v_exp_f32 v{vE+2*k+1}, v{r+1}")
            for k in range(4):
                c(f"v_pk_fma_f32 {vr(vE+2*k,2)}, {vr(vE+2*k,2)}, {vr(vST+4,2)}, {vr(vST+4,2)}")
            for k in range(8):
                c(f"v_rcp_f32 v{vE+k}, v{vE+k}")
            for k, (r, cs, sv) in enumerate(pairs):
                c(f"v_pk_mul_f32 {vr(r,2)}, {vr(r,2)}, {vr(vE+2*k,2)}")
            out = vOUT + 4 * gi
            for k, (r, cs, sv) in enumerate(pairs):
                c(f"v_cvt_pk_bf16_f32 v{out+k}, v{r}, v{r+1}")
            if gi < 6:
                c(f"buffer_store_dwordx4 {vr(out,4)}, v{vL16}, {WSR}, s{sT+1+(gi&1)} offen offset:{(gi>>1)*1024} {st}")
            else:
                c(f"v_cmp_gt_u32 vcc, 48, v1")
                for k in range(4):
                    c(f"v_cndmask_b32 v{out+k}, 0, v{out+k}, vcc")
                c(f"v_permlane16_swap_b32 v{out}, v{out+2}")
                c(f"v_permlane16_swap_b32 v{out+1}, v{out+3}")
                h = c(f"buffer_store_dwordx4 {vr(out,4)}, v{t+6}, {WSR}, s{sT+1} offen offset:3072 {st}")
        self.stamp("p4epi")
        c.add(self.w2_take(70))
        self.p5_prep()
        c.wait(h)
        self.stamp("h1drain")
        self.flag_store_near(sT + 13)

    p5A, p5NR, p5AC, p5PB, p5SUM = 64, 20, 144, 208, 32

    def p5_prep(self):
        c = self.c
        t, rs, vSUM = 16, self.vRES, self.p5SUM
        c(f"s_mul_i32 s{sT+5}, s{sU}, {4*57344}")
        c(f"s_mul_i32 s{sT+6}, s{sW}, 14336")
        c(f"s_add_u32 s{sT+5}, s{sT+5}, s{sT+6}")
        c(f"s_add_u32 s{sT+5}, s{sT+5}, {H1_OFF}")
        for i, cc in enumerate(self.CORD):
            c(f"s_xor_b32 s{sT+6}, s{sW}, {cc}")
            c(f"s_mul_i32 s{sT+8+i}, s{sT+6}, 57344")
            c(f"s_add_u32 s{sT+8+i}, s{sT+8+i}, s{sT+5}")
        c(f"s_lshl_b32 s{sT+3}, s{sU}, 7")
        c(f"s_lshl_b32 s{sT+6}, s{sW}, 5")
        c(f"s_add_u32 s{sT+3}, s{sT+3}, s{sT+6}")
        c(f"s_add_u32 s{sT+3}, s{sT+3}, {F4_OFF - FL_OFF}")
        c(f"v_and_b32 v{self.vPOL}, 7, v1")
        c(f"v_lshl_add_u32 v{self.vPOL}, v{self.vPOL}, 2, s{sT+3}")

    def p5_prep2(self):
        c = self.c
        t, rs, vSUM = 16, self.vRES, self.p5SUM
        for i, cc in enumerate(self.CORD):
            c(f"s_xor_b32 s{sT+6}, s{sW}, {cc}")
            c(f"s_mul_i32 s{sT+6}, s{sT+6}, 15360")
            if 0 < i < 3:
                c(f"s_add_u32 s{sT+6}, s{sT+6}, {i*5120}")
            c(f"v_add_u32 v{t+6+i}, s{sT+6}, v{vL16}")
        for j in range(10):
            c(f"v_lshlrev_b32 v{vSUM+2*j}, 16, v{rs+j}")
            c(f"v_and_b32 v{vSUM+2*j+1}, s{sMASK}, v{rs+j}")
        c(f"s_lshl_b32 s{sT+6}, s{sW}, 12")
        c(f"s_add_u32 s{sT+6}, s{sT+6}, 65536")
        c(f"v_and_b32 v{t}, 15, v1")
        c(f"v_mul_u32_u24 v{t}, 160, v{t}")
        c(f"v_add_u32 v{t}, s{sT+6}, v{t}")
        c(f"v_lshrrev_b32 v{t+1}, 4, v1")
        c(f"v_lshl_add_u32 v{t+2}, v{t+1}, 3, v{t}")
        c(f"v_lshl_add_u32 v{t+1}, v{t+1}, 4, v{t}")
        c(f"v_add_u32 v{t}, s{sT+6}, v{vL16}")
        for j in range(3):
            c(f"v_add_u32 v{t+10}, {64*j}, v1")
            c(f"v_mul_u32_u24 v{t+11}, 6554, v{t+10}")
            c(f"v_lshrrev_b32 v{t+11}, 16, v{t+11}")
            c(f"v_mul_u32_u24 v{t+11}, {1280-160}, v{t+11}")
            c(f"v_lshl_add_u32 v{t+3+j}, v{t+10}, 4, v{t+11}")
        c(f"s_lshl2_add_u32 s{sT}, s{sU}, s{sW}")
        c(f"s_mul_i32 s{sT}, s{sT}, {16*1280}")
        c(f"s_mul_i32 s{sT+1}, s{sNB}, 160")
        c(f"s_add_u32 s{sT}, s{sT}, s{sT+1}")

    def phase5(self):
        c, o = self.c, self.o
        ld = o.get('la', 'sc1')
        vA, NR, vAC, vPB, vSUM = self.p5A, self.p5NR, self.p5AC, self.p5PB, self.p5SUM
        t = 16
        rs = self.vRES
        c("s_barrier")
        self.poll(self.vPOL)
        self.stamp("s4", "main p5")

        def lda(k):
            i, s = divmod(k, 14)
            pre = [I(f"s_add_u32 s{sT+8+i}, s{sT+8+i}, 4096")] if s and s % 4 == 0 else []
            return pre + [I(f"buffer_load_dwordx4 {vr(vA+4*(k%NR),4)}, v{vL16}, {WSR}, s{sT+8+i} offen offset:{(s&3)*1024} {ld}")]
        LA = o.get('p5la', 12)
        for k in range(LA):
            c.add(lda(k))
        self.p5_prep2()
        for i in range(4):
            ac = vAC + 20 * (i & 1)
            F = [[] for _ in range(70)]
            if i > 0:
                pa = vAC + 20 * ((i - 1) & 1)
                for tl in range(5):
                    F[3 + 5 * tl].append(I(f"ds_write_b128 v{t+6+i-1}, {vr(pa+4*tl,4)} offset:{tl*1024}"))
            if i == 3:
                F[27] += [I("s_waitcnt lgkmcnt(0)"), I("s_barrier")]
                k = 28
                for r in range(3):
                    for tl in range(5):
                        F[k + tl // 2] += [I(f"ds_read_b128 {vr(vPB+4*tl,4)}, v{t+9} offset:{r*5120 + tl*1024}")]
                    for j in range(10):
                        F[k + 4 + j] += [I(f"v_add_f32 v{vSUM+2*j}, v{vSUM+2*j}, v{vPB+2*j}"), I(f"v_add_f32 v{vSUM+2*j+1}, v{vSUM+2*j+1}, v{vPB+2*j+1}")]
                    k += 14
            for s in range(14):
                k = 14 * i + s
                for tl in range(5):
                    d = vr(ac + 4 * tl, 4)
                    c(f"v_mfma_f32_16x16x32_bf16 {d}, {self.w2reg(5*s+tl)}, {vr(vA+4*(k%NR),4)}, {0 if s == 0 else d}")
                    if tl == 0 and k + LA < 56:
                        c.add(lda(k + LA))
                    c.add(F[5 * s + tl])
                if s in (0, 4, 9, 13):
                    self.stamp(f"i{i}s{s}", "p5")
        self.stamp("p5")
        ac = vAC + 20
        for P in range(3):
            for j in range(4 * P, min(4 * P + 4, 10)):
                c(f"v_pk_add_f32 {vr(vSUM+2*j,2)}, {vr(vSUM+2*j,2)}, {vr(ac+2*j,2)}")
            for j in range(4 * P, min(4 * P + 4, 10)):
                c(f"v_cvt_pk_bf16_f32 v{rs+j}, v{vSUM+2*j}, v{vSUM+2*j+1}")
            if P < 2:
                c(f"ds_write_b128 v{t+1}, {vr(rs+4*P,4)} offset:{64*P}")
            else:
                c(f"ds_write_b64 v{t+2}, {vr(rs+8,2)} offset:128")
        for j in range(3):
            c(f"ds_read_b128 {vr(vPB+4*j,4)}, v{t} offset:{j*1024}")
        for j in range(3):
            if j == 2:
                c(f"s_not_b64 exec, s[{sHI}:{sHI+1}]")
            c(f"buffer_store_dwordx4 {vr(vPB+4*j,4)}, v{t+3+j}, s[{sOUT}:{sOUT+3}], s{sT} offen")
        c("s_mov_b64 exec, -1")

    def build(self):
        c = self.c
        self.prologue()
        self.phase1()
        self.attention()
        self.phase3()
        self.phase4()
        self.phase5()
        if self.o.get('stamps'):
            c("s_waitcnt vmcnt(0) lgkmcnt(0)")
            self.stamp("end")
            self.dump_stamps()
        if self.o.get('probe'):
            c("s_waitcnt vmcnt(0) lgkmcnt(0)")
            self.stamp("end")
            c("Lprobe:")
            c(f"s_memrealtime s[{sTM}:{sTM+1}]")
            c("s_waitcnt lgkmcnt(0)")
            c(f"s_sub_u32 s{sT}, s{sTM}, s{sST}")
            c(f"s_cmp_lt_i32 s{sT}, 0")
            c("s_cbranch_scc1 Lprobe")
        c("s_endpgm")
        c.add(self.ool.ins)
        c("Lend:")
        body = finalize(c)
        return f"""; Fused pre-LN sliding-window attention block + SiLU FFN (generated by work/gen.py)
; @launch grid=(256,1,1) block=(256,1,1) lds=163840
.amdgcn_target "amdgcn-amd-amdhsa--gfx950"
.text
.globl {NAME}_kernel
.p2align 8
.type {NAME}_kernel,@function
{NAME}_kernel:
{body}
  s_endpgm
Lcode_end:
.section .rodata,"a"
.p2align 6
.amdhsa_kernel {NAME}_kernel
  .amdhsa_next_free_vgpr 512
  .amdhsa_next_free_sgpr 102
  .amdhsa_accum_offset 256
  .amdhsa_group_segment_fixed_size 0
  .amdhsa_kernarg_size 72
  .amdhsa_user_sgpr_count 2
  .amdhsa_user_sgpr_kernarg_segment_ptr 1
  .amdhsa_system_sgpr_workgroup_id_x 1
.end_amdhsa_kernel
"""


def generate(**opt):
    g = Gen(opt)
    return g.build(), g


if __name__ == "__main__":
    opt = {}
    out = None
    for a in sys.argv[1:]:
        if '=' in a:
            k, v = a.split('=', 1)
            opt[k] = int(v) if v.lstrip('-').isdigit() else v
        else:
            out = a
    asm, g = generate(**opt)
    open(out or f"cdna_kernels/{NAME}.s", "w").write(asm)
    print(len(asm.splitlines()), "lines")
```

```python
import sys, struct
from dsl import *

NAME = "sequential_preLN__sliding_block__dense_activation_silu__prompt"

QK_OFF = 0
V_OFF = QK_OFF + 32 * 163840
O_OFF = V_OFF + 64 * 40960
H_OFF = O_OFF + 32 * 81920
HST_OFF = H_OFF + 128 * 20480
H1_OFF = HST_OFF + 128 * 1024
WO_OFF = H1_OFF + 128 * 57344
W1_OFF = WO_OFF + 8 * 102400
W2_OFF = W1_OFF + 16 * 143360
RST_OFF = W2_OFF + 8 * 286720
CST_OFF = RST_OFF + 16 * 10240
FL_OFF = CST_OFF + 16 * 5120
F1_OFF = FL_OFF
F2_OFF = FL_OFF + 4096
F3_OFF = FL_OFF + 2 * 4096
F4_OFF = FL_OFF + 4 * 4096
FR_OFF = FL_OFF + 5 * 4096
FC_OFF = FR_OFF + 2048
FX_OFF = FL_OFF + 6 * 4096
FWO_OFF = FX_OFF + 2048
FW1_OFF = FL_OFF + 7 * 4096
FW2_OFF = FW1_OFF + 2048
EP_OFF = FL_OFF + 8 * 4096
ST_OFF = FL_OFF + 16 * 4096
WS_SIZE = ST_OFF + 256 * 4 * 128

TAGC = 0x9E3779B8
SPIN_MAX = 200000
OOB = 0x7fff0000


def f2u(x):
    return struct.unpack('<I', struct.pack('<f', x))[0]


sX, sWQ, sWS, sKV, sOUT, sRP = 4, 8, 12, 16, 20, 24
sDBG, sWO, sW1, sW2 = 28, 30, 32, 34
sW, sTAG, sRB1, sCT, sU, sNB, sRB, sFB = 36, 37, 38, 39, 40, 41, 42, 43
sHI = 44
sMASK = 46
sHEAD = 47
sT = 48
sST = 64
sSAME, sXCC = 86, 87
sVM = 88
sWOO, sW1O, sW2B, sW2O = 90, 91, 92, 93
sFLB = 94
sW1M = 95
sTM = 96
sRPD, sRPF, sRPT = 98, 99, 100
WSR = f"s[{sWS}:{sWS+3}]"

vL16 = 2
vFLG = 254


class Gen:
    def __init__(self, opt):
        self.o = opt
        self.c = Code()
        self.ool = Code()
        self.stamp_names = []
        self.lab = 0
        self.ld = opt.get('ld', 'sc1')

    def label(self, base):
        self.lab += 1
        return f"L{base}_{self.lab}"

    def sub(self, fn, *a):
        k = Code()
        old, self.c = self.c, k
        fn(*a)
        self.c = old
        return k.ins

    def stamp(self, name, group='main'):
        if self.o.get('probe') and name in ('t0', self.o['probe']):
            self.c(f"s_memrealtime s[{sTM}:{sTM+1}]")
            self.c("s_waitcnt lgkmcnt(0)")
            self.c(f"s_add_u32 s{sST}, s{sTM}, 6000")
        if not self.o.get('stamps'):
            return
        if self.o.get('zoom', 'main') not in group.split() and name != 't0':
            return
        if name in self.stamp_names:
            idx = self.stamp_names.index(name)
        else:
            idx = len(self.stamp_names)
            self.stamp_names.append(name)
        assert idx < 22, name
        c = self.c
        c(f"{'s_memtime' if self.o.get('cyc') else 's_memrealtime'} s[{sTM}:{sTM+1}]")
        c("s_waitcnt lgkmcnt(0)")
        c(f"s_mov_b32 s{sST+idx}, s{sTM}")

    def dump_stamps(self):
        if not self.o.get('stamps'):
            return
        c = self.c
        c(f"s_lshl_b32 s{sT}, s2, 2")
        c(f"s_add_u32 s{sT}, s{sT}, s{sW}")
        c(f"s_lshl_b32 s{sT}, s{sT}, 7")
        c(f"s_add_u32 s{sT}, s{sT}, {ST_OFF}")
        c("v_mov_b32 v3, 0")
        c("s_mov_b64 exec, 1")
        for i in range(0, 24, 4):
            for j in range(4):
                c(f"v_mov_b32 v{4+j}, s{sST+i+j}")
            c(f"buffer_store_dwordx4 v[4:7], v3, {WSR}, s{sT} offen offset:{i*4}")
        c("s_mov_b64 exec, -1")

    def prologue(self):
        c, o = self.c, self.o
        if o.get('stamps'):
            for i in range(24):
                c(f"s_mov_b32 s{sST+i}, 0")
        self.stamp("t0")
        c("s_cmp_ge_u32 s2, 256")
        c("s_cbranch_scc1 Lend")
        c(f"s_load_dwordx2 s[{sX}:{sX+1}], s[0:1], 0")
        c(f"s_load_dwordx2 s[{sWQ}:{sWQ+1}], s[0:1], 8")
        c(f"s_load_dwordx2 s[{sWS}:{sWS+1}], s[0:1], 64")
        c(f"s_load_dwordx2 s[{sWO}:{sWO+1}], s[0:1], 16")
        c(f"s_load_dwordx4 s[{sW1}:{sW1+3}], s[0:1], 32")
        c(f"s_load_dwordx2 s[{sOUT}:{sOUT+1}], s[0:1], 48")
        c(f"s_getpc_b64 s[{sT}:{sT+1}]")
        c(f"s_lshr_b32 s{sT+3}, s2, 3")
        c(f"s_lshl_b32 s{sT+2}, s{sT+3}, 11")
        c(f"v_lshl_add_u32 v2, v0, 7, s{sT+2}")
        c("v_min_u32 v2, Lcode_end-Lpc0-256, v2")
        c("v_cmp_gt_u32 vcc, 16, v0")
        c(f"s_and_saveexec_b64 s[{sT+4}:{sT+5}], vcc")
        c("s_cbranch_execz Lpc0")
        c.cond(True)
        c(f"global_load_dword v255, v2, s[{sT}:{sT+1}]")
        c.ins[-1].wr = []
        c.cond(False)
        c("Lpc0:")
        c("s_mov_b64 exec, -1")
        c("v_lshrrev_b32 v2, 6, v0")
        c("v_and_b32 v1, 63, v0")
        c(f"v_readfirstlane_b32 s{sW}, v2")
        c(f"s_and_b32 s{sT}, s2, 7")
        if o.get('p1map', 'C') == 'C':
            c(f"s_lshr_b32 s{sRB1}, s{sT}, 1")
            c(f"s_and_b32 s{sT+2}, s{sT+3}, 3")
            c(f"s_lshl2_add_u32 s{sRB1}, s{sRB1}, s{sT+2}")
            c(f"s_lshr_b32 s{sT+2}, s{sT+2}, 1")
            c(f"s_lshr_b32 s{sCT}, s{sT+3}, 2")
            c(f"s_cmp_eq_u32 s{sCT}, 7")
            c(f"s_cselect_b32 s{sT+2}, s{sT+2}, 0")
            c(f"s_xor_b32 s{sT+2}, s{sT+2}, s{sT}")
            c(f"s_and_b32 s{sT+2}, s{sT+2}, 1")
            c(f"s_lshl3_add_u32 s{sCT}, s{sT+2}, s{sCT}")
        elif o.get('p1map') == 'A':
            c(f"s_lshr_b32 s{sRB1}, s{sT+3}, 4")
            c(f"s_lshl1_add_u32 s{sRB1}, s{sT}, s{sRB1}")
            c(f"s_and_b32 s{sCT}, s{sT+3}, 15")
        else:
            c(f"s_and_b32 s{sRB1}, s{sT}, 1")
            c(f"s_and_b32 s{sT+2}, s{sT+3}, 7")
            c(f"s_lshl3_add_u32 s{sRB1}, s{sRB1}, s{sT+2}")
            c(f"s_lshr_b32 s{sCT}, s{sT}, 1")
            c(f"s_lshr_b32 s{sT+2}, s{sT+3}, 3")
            c(f"s_lshl2_add_u32 s{sCT}, s{sCT}, s{sT+2}")
        for r, size in ((sX, 2048 * 1280), (sWQ, 640 * 3840)):
            c(f"s_mov_b32 s{r+2}, {size}")
            c(f"s_mov_b32 s{r+3}, 0x20000")

    def base_setup(self):
        c = self.c
        c(f"s_add_u32 s{sTM}, s{sWS}, {EP_OFF}")
        c(f"s_addc_u32 s{sTM+1}, s{sWS+1}, 0")
        c(f"s_load_dword s{sTAG}, s[{sTM}:{sTM+1}], 0")
        for r, size in ((sWS, WS_SIZE), (sOUT, 2048 * 1280)):
            c(f"s_mov_b32 s{r+2}, {size}")
            c(f"s_mov_b32 s{r+3}, 0x20000")
        c(f"s_mov_b32 s{sHI}, 0")
        c(f"s_mov_b32 s{sHI+1}, -1")
        c(f"s_mov_b32 s{sMASK}, 0xffff0000")
        c(f"s_mov_b32 s{sFLB}, {FL_OFF}")

    def common_setup(self):
        c = self.c
        c(f"s_and_b32 s{sT}, s2, 7")
        c(f"s_lshr_b32 s{sT+1}, s2, 3")
        c(f"s_lshr_b32 s{sU}, s{sT+1}, 3")
        c(f"s_lshl2_add_u32 s{sU}, s{sT}, s{sU}")
        c(f"s_and_b32 s{sNB}, s{sT+1}, 7")
        c(f"s_lshr_b32 s{sRB}, s{sU}, 1")
        c(f"s_and_b32 s{sFB}, s{sT+1}, 15")
        c(f"s_lshl2_add_u32 s{sHEAD}, s{sNB}, s{sW}")
        c(f"s_getreg_b32 s{sXCC}, hwreg(HW_REG_XCC_ID, 0, 4)")
        c(f"v_lshlrev_b32 v{vL16}, 4, v1")
        c(f"s_mul_i32 s{sWOO}, s{sHEAD}, 25600")
        c(f"s_add_u32 s{sWOO}, s{sWOO}, {WO_OFF}")
        c(f"s_mul_i32 s{sW1O}, s{sFB}, 216")
        c(f"s_and_b32 s{sW1O}, s{sW1O}, -16")
        c(f"s_mul_i32 s{sW1M}, s{sW}, {160*3456}")
        c(f"s_add_u32 s{sW1O}, s{sW1O}, s{sW1M}")
        c(f"s_mul_i32 s{sW1M}, s{sW}, {35*1024}")
        c(f"s_mul_i32 s{sW2B}, s{sHEAD}, {70*1024}")
        c(f"s_add_u32 s{sW2B}, s{sW2B}, {W2_OFF}")
        c(f"s_mul_i32 s{sT}, s{sW}, 20")
        c(f"s_lshl_b32 s{sT+1}, s{sNB}, 7")
        c(f"s_add_u32 s{sT}, s{sT}, s{sT+1}")
        c(f"s_add_u32 s{sT}, s{sT}, {FWO_OFF - FL_OFF}")
        c(f"v_min_u32 v{self.vWOF}, 4, v1")
        c(f"v_lshl_add_u32 v{self.vWOF}, v{self.vWOF}, 2, s{sT}")

    def tag_ready(self):
        self.c(f"s_add_u32 s{sTAG}, s{sTAG}, {TAGC}")

    def flag_store(self, so, st='sc1'):
        c = self.c
        c(f"v_mov_b32 v{vFLG}, s{sTAG}")
        c("s_mov_b64 exec, 1")
        h = c(f"buffer_store_dword v{vFLG}, off, {WSR}, s{so} {st}")
        c("s_mov_b64 exec, -1")
        return h

    def poll(self, va, vd=vFLG, span=False, sleep=0):
        c = self.c
        L, Ld = self.label("pl"), self.label("pd")
        n = sT + 12
        c(f"s_mov_b32 s{n}, {SPIN_MAX}")
        c(f"{L}:")
        c(f"buffer_load_dword v{vd}, v{va}, {WSR}, s{sFLB} offen sc1")
        c(f"s_sub_u32 s{n}, s{n}, 1")
        c(f"s_cbranch_scc1 {Ld}")
        c("s_waitcnt vmcnt(0)")
        self.tag_cmp(vd, span)
        if sleep:
            c(f"s_cbranch_vccz {Ld}")
            c(f"s_sleep {sleep}")
            c(f"s_branch {L}")
        else:
            c(f"s_cbranch_vccnz {L}")
        c(f"{Ld}:")
        c("s_waitcnt vmcnt(0)")

    def tag_cmp(self, vd, span):
        c = self.c
        if span:
            c(f"v_subrev_u32 v253, s{sTAG}, v{vd}")
            c(f"v_cmp_le_u32 vcc, 16, v253")
        else:
            c(f"v_cmp_ne_u32 vcc, s{sTAG}, v{vd}")

    def flag_check(self, vd, va, span=False):
        c = self.c
        Ls, Lb = self.label("fs"), self.label("fb")
        self.tag_cmp(vd, span)
        c("s_nop 3")
        c(f"s_cbranch_vccnz {Ls} ; noflush")
        c(f"{Lb}: ; noflush")
        old, self.c = self.c, self.ool
        self.c(f"{Ls}:")
        self.c("s_nop 15")
        self.poll(va, vd, span, sleep=4)
        self.c(f"s_branch {Lb}")
        self.c = old

    def flag_store_near(self, so):
        c = self.c
        Lf, Lb = self.label("far"), self.label("near")
        c(f"v_mov_b32 v{vFLG}, s{sTAG}")
        c(f"s_cmp_eq_u32 s{sSAME}, 0")
        c("s_mov_b64 exec, 1")
        c(f"s_cbranch_scc1 {Lf} ; noflush")
        c(f"buffer_store_dword v{vFLG}, off, {WSR}, s{so}")
        c(f"{Lb}: ; noflush")
        c("s_mov_b64 exec, -1")
        k = self.ool
        k(f"{Lf}:")
        k(f"buffer_store_dword v{vFLG}, off, {WSR}, s{so} sc1")
        k(f"s_branch {Lb}")

    NS = 3
    P1_WB = 3 * 16384
    P1_EX = 6 * 16384
    vXD, vWD, vXA, vWA, vXS, vWS_, vSEL, vSQ, vTMP, vRS, vCS = 4, 8, 12, 16, 18, 22, 24, 23, 28, 36, 40
    vPA = 44
    vRP = 52
    vWOF, vWOD = 59, 60
    vW1D = 246
    vACC, vFR, vSF, vEP = 64, 128, 160, 176
    sKC, sKX, sKW, sW4 = sT + 8, sT + 9, sT + 10, sT + 11

    def p1_setup(self):
        c, o = self.c, self.o
        t = self.vTMP
        big, small = (sCT, sRB1) if o.get('p1map', 'C') == 'B' else (sRB1, sCT)
        c(f"s_mul_i32 s{sT}, s{big}, 3")
        c(f"s_add_u32 s{sT}, s{sT}, s{small}")
        c(f"s_mul_i32 s{sT+1}, s{sT}, 205")
        c(f"s_lshr_b32 s{sT+1}, s{sT+1}, 11")
        c(f"s_mul_i32 s{sT+1}, s{sT+1}, 10")
        c(f"s_sub_u32 s{self.sKC}, s{sT}, s{sT+1}")
        assert all((v * 205) >> 11 == v // 10 for v in range(64))
        c(f"s_lshl_b32 s{self.sW4}, s{sW}, 12")
        c(f"s_lshl2_add_u32 s{sT}, s{sRB1}, s{sW}")
        c(f"s_mul_i32 s{sT}, s{sT}, {32*1280}")
        c(f"v_lshrrev_b32 v{t}, 3, v1")
        c(f"v_mul_u32_u24 v{t}, 1280, v{t}")
        c(f"v_lshrrev_b32 v{t+1}, 4, v1")
        c(f"v_and_b32 v{t+2}, 7, v1")
        c(f"v_xor_b32 v{t+2}, v{t+2}, v{t+1}")
        c(f"v_lshlrev_b32 v{t+2}, 4, v{t+2}")
        c(f"v_add3_u32 v{self.vXD}, v{t+2}, v{t}, s{sT}")
        c(f"v_xor_b32 v{t+3}, 64, v{self.vXD}")
        c(f"v_add_u32 v{self.vXD+1}, {10240-1024}, v{t+3}")
        c(f"v_add_u32 v{self.vXD+2}, {2*(10240-1024)}, v{self.vXD}")
        c(f"v_add_u32 v{self.vXD+3}, {3*(10240-1024)}, v{t+3}")
        c(f"s_mul_i32 s{sT}, s{sW}, {16*3840}")
        c(f"s_lshl_b32 s{sT+1}, s{sCT}, 8")
        c(f"s_add_u32 s{sT}, s{sT}, s{sT+1}")
        c(f"v_mul_u32_u24 v{t}, 3840, v{t+1}")
        c(f"v_and_b32 v{t+2}, 15, v1")
        c(f"v_lshlrev_b32 v{t+3}, 2, v{t+1}")
        c(f"v_xor_b32 v{t+2}, v{t+2}, v{t+3}")
        c(f"v_lshlrev_b32 v{t+2}, 4, v{t+2}")
        c(f"v_add3_u32 v{self.vWD}, v{t+2}, v{t}, s{sT}")
        for j in range(1, 4):
            c(f"v_add_u32 v{self.vWD+j}, {j*(4*3840-1024)}, v{self.vWD}")

    def p1_dma(self, s):
        slot = s % self.NS
        pre = []
        if s > 0:
            pre += [I(f"s_add_u32 s{self.sKC}, s{self.sKC}, 1"),
                    I(f"s_cmp_eq_u32 s{self.sKC}, 10"),
                    I(f"s_cselect_b32 s{self.sKC}, 0, s{self.sKC}")]
        items = []
        for j in range(4):
            d = I(f"buffer_load_dwordx4 v{self.vXD+j}, s[{sX}:{sX+3}], s{self.sKX} offen offset:{j*1024} lds")
            items.append(([I(f"s_add_u32 m0, s{self.sW4}, {slot*16384}"), I(f"s_lshl_b32 s{self.sKX}, s{self.sKC}, 7")] if j == 0 else []) + [d])
        for j in range(4):
            d = I(f"buffer_load_dwordx4 v{self.vWD+j}, s[{sWQ}:{sWQ+3}], s{self.sKW} offen offset:{j*1024} lds")
            items.append(([I(f"s_add_u32 m0, s{self.sW4}, {self.P1_WB + slot*16384}"), I(f"s_mul_i32 s{self.sKW}, s{self.sKC}, {64*3840}")] if j == 0 else []) + [d])
        return pre, items, d

    def p1_setup2(self):
        c = self.c
        t = self.vTMP
        c(f"s_lshr_b32 s{sT}, s{sW}, 1")
        c(f"s_and_b32 s{sT+1}, s{sW}, 1")
        c(f"v_and_b32 v{t+4}, 31, v1")
        c(f"s_lshl_b32 s{sT+2}, s{sT}, 13")
        c(f"v_lshl_add_u32 v{t}, v{t+4}, 7, s{sT+2}")
        c(f"v_lshrrev_b32 v{t+1}, 5, v1")
        c(f"v_bfe_u32 v{t+2}, v1, 1, 3")
        c(f"v_xor_b32 v{t+2}, v{t+2}, v{t+1}")
        c(f"v_lshl_add_u32 v{self.vXA}, v{t+2}, 4, v{t}")
        c(f"s_lshl_b32 s{sT+2}, s{sT+1}, 12")
        for p in range(4):
            if p:
                c(f"v_xor_b32 v{self.vXA+p}, {p*32}, v{self.vXA}")
            c(f"v_add_u32 v{self.vXS+p}, s{sT+2}, v{self.vXA+p}")
        c(f"v_bfe_u32 v{t+2}, v1, 2, 2")
        c(f"v_lshl_add_u32 v{t}, v{t+1}, 3, v{t+2}")
        c(f"v_lshlrev_b32 v{t}, 8, v{t}")
        c(f"v_lshl_add_u32 v{t}, v{t+2}, 6, v{t}")
        c(f"v_bfe_u32 v{t+2}, v1, 4, 1")
        c(f"v_lshl_add_u32 v{t}, v{t+2}, 5, v{t}")
        c(f"v_and_b32 v{t+2}, 3, v1")
        c(f"v_lshl_add_u32 v{t}, v{t+2}, 3, v{t}")
        c(f"v_add_u32 v{t}, {self.P1_WB}, v{t}")
        c(f"s_lshl_b32 s{sT+2}, s{sT+1}, 7")
        c(f"v_xor_b32 v{self.vWA}, s{sT+2}, v{t}")
        c(f"v_xor_b32 v{self.vWA+1}, 64, v{self.vWA}")
        c(f"s_lshl_b32 s{sT+2}, s{sW}, 6")
        c(f"v_xor_b32 v{self.vWS_}, s{sT+2}, v{t}")
        c(f"v_lshrrev_b32 v{t}, 2, v1")
        c(f"v_xor_b32 v{t}, v{t}, v1")
        c(f"v_and_b32 v{t}, 4, v{t}")
        c(f"v_cmp_eq_u32 vcc, 0, v{t}")
        c(f"v_mov_b32 v{t}, 0x3f803f80")
        for j in range(4):
            c(f"v_cndmask_b32 v{self.vSEL+j}, 0, v{t}, vcc")
        c(f"v_mov_b32 v{self.vSQ}, 0")

    def p1_setup3(self, k0):
        c = self.c
        t = self.vTMP
        pa = self.vPA
        c(f"s_lshl2_add_u32 s{sT+2}, s{sRB1}, s{sW}")
        c(f"s_mul_i32 s{sT+2}, s{sT+2}, 2560")
        c(f"s_add_u32 s{sT+2}, s{sT+2}, {RST_OFF}")
        c(f"v_lshl_add_u32 v{t}, v{t+4}, 3, s{sT+2}")
        c(f"v_mul_u32_u24 v{t+2}, 1280, v{t+1}")
        c(f"v_add_u32 v{pa+2}, v{t}, v{t+2}")
        c(f"s_lshl_b32 s{sT+2}, s{k0}, 8")
        c(f"v_add_u32 v{t}, s{sT+2}, v{t}")
        c(f"v_mov_b32 v{t+3}, {OOB}")
        c(f"v_cndmask_b32 v{pa}, v{t}, v{t+3}, s[{sHI}:{sHI+1}]")
        c(f"s_lshl2_add_u32 s{sT+2}, s{sCT}, s{sW}")
        c(f"s_mul_i32 s{sT+2}, s{sT+2}, 1280")
        c(f"s_add_u32 s{sT+2}, s{sT+2}, {CST_OFF}")
        c(f"v_lshl_add_u32 v{t}, v{t+4}, 2, s{sT+2}")
        c(f"v_mul_u32_u24 v{t+2}, 640, v{t+1}")
        c(f"v_add_u32 v{pa+3}, v{t}, v{t+2}")
        c(f"s_lshl_b32 s{sT+2}, s{k0}, 7")
        c(f"v_add_u32 v{t}, s{sT+2}, v{t}")
        c(f"v_cndmask_b32 v{pa+1}, v{t}, v{t+3}, s[{sHI}:{sHI+1}]")
        c(f"s_lshl_b32 s{sT+2}, s{sRB1}, 7")
        c(f"s_add_u32 s{sT+2}, s{sT+2}, {FR_OFF - FL_OFF}")
        c(f"s_lshl_b32 s{sT+3}, s{sCT}, 7")
        c(f"s_add_u32 s{sT+3}, s{sT+3}, {FC_OFF - FL_OFF}")
        c(f"v_mov_b32 v{t}, s{sT+2}")
        c(f"v_mov_b32 v{t+2}, s{sT+3}")
        c(f"v_cndmask_b32 v{t}, v{t}, v{t+2}, s[{sHI}:{sHI+1}]")
        c(f"v_min_u32 v{t+2}, 9, v{t+4}")
        c(f"v_lshl_add_u32 v{pa+5}, v{t+2}, 2, v{t}")
        c(f"s_lshl_b32 s{sT+2}, s{k0}, 2")
        c(f"v_add_u32 v{t}, s{sT+2}, v{t}")
        c(f"s_cmp_lt_u32 s{sCT}, 10")
        c(f"s_cselect_b32 s{sT+2}, 1, 0")
        c(f"s_cmp_lt_u32 s{sRB1}, 10")
        c(f"s_cselect_b32 s{sT+3}, 1, 0")
        c(f"s_cmp_eq_u32 s{sW}, 0")
        c(f"s_cselect_b64 s[{sT+2}:{sT+3}], s[{sT+2}:{sT+3}], 0")
        c(f"v_cndmask_b32 v{pa+4}, v{t+3}, v{t}, s[{sT+2}:{sT+3}]")
        c(f"s_lshl_b32 s{sT+2}, s{sW}, 7")
        c(f"s_add_u32 s{sT+2}, s{sT+2}, {self.P1_EX}")
        c(f"v_lshl_add_u32 v{pa+6}, v{t+4}, 2, s{sT+2}")

    def fx_publish(self):
        return [I(f"s_lshl_b32 s{sT}, s{sRB}, 7"),
                I(f"s_lshl2_add_u32 s{sT}, s{sFB}, s{sT}"),
                I(f"s_add_u32 s{sT}, s{sT}, {FX_OFF}"),
                I(f"s_add_u32 s{sT+1}, s{sTAG}, s{sXCC}"),
                I(f"v_mov_b32 v61, s{sT+1}"),
                I(f"v_min_u32 v62, 1, v0"),
                I(f"v_lshlrev_b32 v62, 30, v62"),
                I(f"buffer_store_dword v61, v62, {WSR}, s{sT} offen sc1")]

    def p1_reads(self, s, p):
        slot = s % self.NS
        fr = self.vFR + 16 * (p & 1)
        X = lambda a: I(f"ds_read_b128 {vr(fr+4*a, 4)}, v{self.vXA+p} offset:{slot*16384 + a*4096}")
        Wt = lambda b, t: I(f"ds_read_b64_tr_b16 {vr(fr+8+4*b+2*t, 2)}, v{self.vWA+b} offset:{slot*16384 + p*4096 + t*1024}")
        r = [X(0), Wt(0, 0), Wt(0, 1), Wt(1, 0), Wt(1, 1), X(1)]
        if s == 0:
            sf = self.vSF + 8 * (p & 1)
            r += [I(f"ds_read_b128 {vr(sf, 4)}, v{self.vXS+p}")]
            r += [I(f"ds_read_b64_tr_b16 {vr(sf+4+2*t, 2)}, v{self.vWS_} offset:{p*4096 + t*1024}") for t in range(2)]
        return r

    def p1_stats_finish(self, isv):
        c = self.c
        b, pa = self.vSF, self.vPA
        for i in range(1, 5):
            c(f"v_add_f32 v{b}, v{b}, v{b+2*i}")
            c(f"v_add_f32 v{b+1}, v{b+1}, v{b+2*i+1}")
        c(f"v_mov_b32 v{b+2}, v{b}")
        c(f"v_mov_b32 v{b+3}, v{b+1}")
        for i in range(1, 5):
            c(f"v_add_f32 v{b+10}, v{b+10}, v{b+10+i}")
        c(f"v_permlane32_swap_b32 v{b}, v{b+2}")
        c(f"v_permlane32_swap_b32 v{b+1}, v{b+3}")
        c(f"v_mov_b32 v{b+11}, v{b+10}")
        c(f"v_add_f32 v{b}, v{b}, v{b+2}")
        c(f"v_add_f32 v{b+1}, v{b+1}, v{b+3}")
        c(f"v_permlane32_swap_b32 v{b+10}, v{b+11}")
        c(f"v_mul_f32 v{b}, {hex(f2u(-1.0/640))}, v{b}")
        c(f"v_mul_f32 v{b+1}, {hex(f2u(1.0/640))}, v{b+1}")
        c(f"v_add_f32 v{b+10}, v{b+10}, v{b+11}")
        c(f"v_fma_f32 v{b+1}, -v{b}, v{b}, v{b+1}")
        c(f"ds_write_b32 v{pa+6}, v{b}")
        c(f"v_max_f32 v{b+1}, 0, v{b+1}")
        c(f"v_add_f32 v{b+1}, {hex(f2u(1e-5))}, v{b+1}")
        c(f"v_rsq_f32 v{b+1}, v{b+1}")
        c(f"ds_write_b32 v{pa+6}, v{b+10} offset:1024")
        if not isv:
            c(f"v_mul_f32 v{b+1}, s{sT+7}, v{b+1}")
        c(f"ds_write_b32 v{pa+6}, v{b+1} offset:512")

    def p1_ep_prep(self, isv):
        c = self.c
        t = self.vTMP
        EX = self.P1_EX
        c(f"s_lshr_b32 s{sT}, s{sW}, 1")
        c(f"s_and_b32 s{sT+1}, s{sW}, 1")
        c(f"s_lshl1_add_u32 s{sT+2}, s{sRB1}, s{sT}")
        c(f"s_lshl1_add_u32 s{sT+3}, s{sCT}, s{sT+1}")
        c(f"s_lshl_b32 s{sT}, s{sT}, 8")
        c(f"s_add_u32 s{sT}, s{sT}, {EX}")
        c(f"s_lshl_b32 s{sT+1}, s{sT+1}, 8")
        c(f"s_add_u32 s{sT+1}, s{sT+1}, {EX+1024}")
        c(f"v_lshrrev_b32 v{t+4}, 5, v1")
        c(f"v_and_b32 v{t+5}, 31, v1")
        c(f"v_lshl_add_u32 v{t}, v{t+5}, 2, s{sT+(1 if isv else 0)}")
        c(f"v_lshl_add_u32 v{t+1}, v{t+4}, 4, s{sT+(0 if isv else 1)}")
        c(f"s_lshl_b32 s{sT+13}, s{sRB1}, 7")
        c(f"s_lshl2_add_u32 s{sT+13}, s{sCT}, s{sT+13}")
        c(f"s_add_u32 s{sT+13}, s{sT+13}, {F1_OFF}")
        if not isv:
            qs = (20 ** -0.5) * 1.4426950408889634
            c(f"s_mul_i32 s{sT+4}, s{sT+2}, 163840")
            c(f"s_lshl_b32 s{sT+5}, s{sT+3}, 13")
            c(f"s_add_u32 s{sT+4}, s{sT+4}, s{sT+5}")
            c(f"s_add_u32 s{sT+5}, s{sT+4}, 4096")
            c(f"s_cmp_lt_u32 s{sCT}, 5")
            c(f"s_cselect_b32 s{sT+7}, {hex(f2u(qs))}, 1.0")
        else:
            c(f"s_mul_i32 s{sT+4}, s{sT+2}, 81920")
            c(f"s_lshl_b32 s{sT+5}, s{sT+3}, 10")
            c(f"s_add_u32 s{sT+4}, s{sT+4}, s{sT+5}")
            c(f"s_add_u32 s{sT+4}, s{sT+4}, {V_OFF - 10*2048}")
            for q in range(1, 4):
                c(f"s_add_u32 s{sT+4+q}, s{sT+4}, {q*20480}")
            c(f"v_mul_u32_u24 v{t+4}, {10240-512}, v{t+4}")
            c(f"v_add_u32 v{t+4}, v{vL16}, v{t+4}")

    def p1_ep_reads(self, isv):
        t, e = self.vTMP, self.vEP
        r = []
        if not isv:
            for a in range(2):
                r.append(I(f"ds_read2st64_b32 {vr(t+2+4*a,2)}, v{t} offset0:0 offset1:2") if a == 0 else
                         I(f"ds_read2_b32 {vr(t+6,2)}, v{t} offset0:32 offset1:160"))
            for b in range(2):
                for j in range(4):
                    r.append(I(f"ds_read_b128 {vr(e+16*b+4*j, 4)}, v{t+1} offset:{(32*b+8*j)*4}"))
        else:
            r.append(I(f"ds_read2_b32 {vr(t+2,2)}, v{t} offset0:0 offset1:32"))
            for a in range(2):
                for j in range(4):
                    r.append(I(f"ds_read_b128 {vr(e+16*a+4*j, 4)}, v{t+1} offset:{(32*a+8*j)*4}"))
                    r.append(I(f"ds_read_b128 {vr(e+32+16*a+4*j, 4)}, v{t+1} offset:{512+(32*a+8*j)*4}"))
        return r

    def p1_loop(self, isv, h0, h1):
        c, o = self.c, self.o
        hd = {0: h0, 1: h1}
        pa, b = self.vPA, self.vSF
        c.wait(h0)
        c("s_barrier")
        self.stamp("b0", "main p1")
        R = self.p1_reads(0, 0)
        c.add(R)
        pre, dma, hd[2] = self.p1_dma(2)
        c.add(pre); c.add(dma[:2]); dma = dma[2:]
        t = self.vTMP
        extra = {}
        pub = [I(f"v_mov_b32 v{self.vRS+1}, v{self.vSQ}"), I("s_nop 0"),
               I(f"v_permlane32_swap_b32 v{self.vRS+1}, v{self.vSQ}"),
               I(f"v_add_f32 v{self.vRS+1}, v{self.vRS+1}, v{self.vSQ}"),
               I(f"buffer_store_dwordx2 {vr(self.vRS,2)}, v{pa}, {WSR}, 0 offen sc1"),
               I(f"buffer_store_dword v{self.vCS}, v{pa+1}, {WSR}, 0 offen sc1")]
        extra[(1, 0)] = pub
        cs = glue(self.sub(self.common_setup) + self.sub(self.tag_ready) + self.fx_publish())
        for k in range(3):
            extra[(1, 1 + k)] = cs[k * 13:(k + 1) * 13]
        assert len(cs) <= 39
        cs = glue(self.sub(self.rp_setup_unit))
        sps = [(q, p) for q in range(2, 6) for p in range(4) if (q, p) != (2, 3)]
        for k, sp in enumerate(sps):
            extra[sp] = cs[k * 12:(k + 1) * 12]
        assert len(cs) <= 12 * len(sps), len(cs)
        extra[(2, 3)] = [I(f"v_mov_b32 v{vFLG}, s{sTAG}"),
                         I(f"buffer_store_dword v{vFLG}, v{pa+4}, {WSR}, s{sFLB} offen sc1", waits=[pub[-1]])]
        extra[(6, 2)] = [[], [], [I(f"buffer_load_dword v{pa+7}, v{pa+5}, {WSR}, s{sFLB} offen sc1"),
                                  I(f"buffer_load_dword v{self.vWOD}, v{self.vWOF}, {WSR}, s{sFLB} offen sc1")]]
        ep = glue(self.sub(self.p1_ep_prep, isv))
        extra[(6, 0)] = ep[:12]; extra[(6, 1)] = ep[12:]
        stl = [I(f"buffer_load_dwordx2 {vr(b+2*i,2)}, v{pa+2}, {WSR}, 0 offen offset:{i*256} sc1") for i in range(5)]
        stl += [I(f"buffer_load_dword v{b+10+i}, v{pa+3}, {WSR}, 0 offen offset:{i*128} sc1") for i in range(5)]
        extra[(7, 3)] = [self.sub(self.flag_check, pa + 7, pa + 5)] + stl[:3]
        extra[(8, 0)] = stl[3:]
        fin = self.sub(self.p1_stats_finish, isv)
        extra[(9, 1)] = fin[:16]; extra[(9, 2)] = fin[16:]
        wo = self.wo_loads()[:o.get('wot', 25)]
        if wo:
            wo[0] = [self.sub(self.flag_check, self.vWOD, self.vWOF), wo[0]]
        sps = [(8, 1), (8, 2), (8, 3), (9, 0), (9, 1), (9, 2), (9, 3)]
        per = -(-len(wo) // len(sps))
        for k, sp in enumerate(sps):
            extra[sp] = interleave(extra.get(sp, []), wo[k * per:(k + 1) * per]) if sp in extra else wo[k * per:(k + 1) * per]
        for s in range(10):
            for p in range(4):
                fr = self.vFR + 16 * (p & 1)
                first = (s == 0 and p == 0)
                M = []
                for a, bb in ((0, 0), (0, 1), (1, 1), (1, 0)):
                    d = vr(self.vACC + 32 * a + 16 * bb, 16)
                    xa, wb = vr(fr + 4 * a, 4), vr(fr + 8 + 4 * bb, 4)
                    A, B = (xa, wb) if isv else (wb, xa)
                    M.append(I(f"v_mfma_f32_32x32x16_bf16 {d}, {A}, {B}, {0 if first else d}"))
                if not first and o.get('onewait', 1):
                    M[0].waits = [R[5]]
                bar, pre = [], []
                if p < 3:
                    R = self.p1_reads(s, p + 1)
                elif s < 9:
                    R = self.p1_reads(s + 1, 0)
                    bar = [W(hd[s + 1]), I("s_barrier")]
                    if s == 0:
                        bar = [I("s_waitcnt lgkmcnt(0)")] + bar
                else:
                    R = self.p1_ep_reads(isv)
                    bar = [I("s_waitcnt lgkmcnt(0)"), I("s_barrier")]
                if p == 2 and s + 3 < 10:
                    pre, nxt, hd[s + 3] = self.p1_dma(s + 3)
                if p == 3 and s + 3 < 10:
                    dma = nxt
                D = dma[:2]; dma = dma[2:]
                D = D + [[]] * (2 - len(D))
                X = extra.get((s, p), [])
                n3 = -(-len(X) // 3)
                gaps = [bar + R[:6], R[6:12] + [D[0]] + X[:n3], R[12:] + [D[1]] + X[n3:2 * n3], pre + X[2 * n3:]]
                if s == 0:
                    sf = self.vSF + 8 * (p & 1)
                    d = vr(self.vRS, 4)
                    M.append(I(f"v_mfma_f32_16x16x32_bf16 {d}, {vr(self.vSEL,4)}, {vr(sf,4)}, {0 if p == 0 else d}"))
                    d = vr(self.vCS, 4)
                    M.append(I(f"v_mfma_f32_16x16x32_bf16 {d}, {vr(self.vSEL,4)}, {vr(sf+4,4)}, {0 if p == 0 else d}"))
                    V = []
                    for j in range(4):
                        V += [I(f"v_lshlrev_b32 v{t+2*(j&1)}, 16, v{sf+j}"),
                              I(f"v_and_b32 v{t+1+2*(j&1)}, s{sMASK}, v{sf+j}"),
                              I(f"v_fmac_f32 v{self.vSQ}, v{t+2*(j&1)}, v{t+2*(j&1)}"),
                              I(f"v_fmac_f32 v{self.vSQ}, v{t+1+2*(j&1)}, v{t+1+2*(j&1)}")]
                    gaps = [gaps[0], gaps[1] + V[:2], gaps[2] + V[2:7], gaps[3] + V[7:12], V[12:14], V[14:]]
                for m, g in zip(M, gaps):
                    c.add(m); c.add(g)
                if p == 3 or (s >= 7 and p == 1):
                    self.stamp(f"e{s}{p}", "p1")

    def p1_epilogue(self, isv):
        c = self.c
        t, e = self.vTMP, self.vEP
        ob = self.vFR
        if not isv:
            for b in range(2):
                for j in range(4):
                    out = ob + 16 * b + 4 * j
                    rr = [(self.vACC + 32 * a + 16 * b + 4 * j + 2 * q, e + 16 * b + 4 * j + 2 * q, t + 2 + 4 * a) for a in range(2) for q in range(2)]
                    for r, cs, sv in rr:
                        c(f"v_pk_fma_f32 {vr(r,2)}, {vr(cs,2)}, {vr(sv,2)}, {vr(r,2)} op_sel_hi:[1,0,1]")
                    for r, cs, sv in rr:
                        c(f"v_pk_mul_f32 {vr(r,2)}, {vr(r,2)}, {vr(sv,2)} op_sel:[0,1] op_sel_hi:[1,1]")
                    for k, (r, cs, sv) in enumerate(rr):
                        c(f"v_cvt_pk_bf16_f32 v{out+k}, v{r}, v{r+1}")
                    h = c(f"buffer_store_dwordx4 {vr(out,4)}, v{vL16}, {WSR}, s{sT+4+b} offen offset:{j*1024} sc1")
        else:
            k = 0
            for a in range(2):
                for s in range(2):
                    for b in range(2):
                        out = ob + 4 * k; k += 1
                        sel = "op_sel_hi:[1,0,1]" if b == 0 else "op_sel:[0,1,0] op_sel_hi:[1,1,1]"
                        rr = [(self.vACC + 32 * a + 16 * b + 8 * s + 2 * q, e + 16 * a + 8 * s + 2 * q) for q in range(4)]
                        for r, nm in rr:
                            c(f"v_pk_fma_f32 {vr(r,2)}, {vr(nm,2)}, {vr(t+2,2)}, {vr(r,2)} {sel}")
                        for r, nm in rr:
                            c(f"v_pk_mul_f32 {vr(r,2)}, {vr(r,2)}, {vr(nm+32,2)}")
                        for q, (r, nm) in enumerate(rr):
                            c(f"v_cvt_pk_bf16_f32 v{out+q}, v{r}, v{r+1}")
                        h = c(f"buffer_store_dwordx4 {vr(out,4)}, v{t+4}, {WSR}, s{sT+4+2*a+s} offen offset:{b*512} sc1")
        return h

    def phase1(self):
        c, o = self.c, self.o
        self.p1_setup()
        c(f"s_cmp_eq_u32 s{sCT}, 15")
        c("s_waitcnt lgkmcnt(0)")
        c("s_cbranch_scc1 Lp1_idle")
        c(".save p0")
        self.stamp("start")
        pre, d0, h0 = self.p1_dma(0)
        c.add(d0)
        c(f"s_mov_b32 s{sT+14}, s{self.sKC}")
        pre, d1, h1 = self.p1_dma(1)
        c.add(pre); c.add(d1[:4])
        self.base_setup()
        self.p1_setup2()
        c.add(d1[4:])
        self.p1_setup3(sT + 14)
        c(f"s_cmp_ge_u32 s{sCT}, 10")
        c("s_cbranch_scc1 Lp1_v")
        c(".save p1")
        for isv in (False, True):
            if isv:
                c("Lp1_v:")
                c(".restore p1")
            self.p1_loop(isv, h0, h1)
            self.stamp("p1loop")
            h = self.p1_epilogue(isv)
            if not isv:
                c("s_branch Lp1_done")
        c("Lp1_done:")
        self.stamp("p1epi")
        n0 = o.get('wot', 25)
        self.woq = self.wo_loads()[n0:]
        self.w1q, self.w2q = list(range(35)), list(range(70))
        self.attn_init()
        self.stamp("ainit")
        c.wait(h)
        self.stamp("p1drain")
        c("s_barrier")
        lab = self.label("f1")
        c(f"s_cmp_lg_u32 s{sW}, 0")
        c(f"s_cbranch_scc1 {lab}")
        c.cond(True)
        self.flag_store(sT + 13)
        c.cond(False)
        c(f"{lab}:")
        if not n0:
            self.flag_check(self.vWOD, self.vWOF)
        c("Lp1_join:")
        if o.get('w2src', 0) == 0:
            c.add(self.only_waves(False, self.rp_dma(5, self.RED, 5120)))
        c(f"s_mov_b32 s{sWQ}, s{sW1}")
        c(f"s_mov_b32 s{sWQ+1}, s{sW1+1}")
        c(f"s_mov_b32 s{sWQ+2}, {640*3456}")
        c.add(self.w1_take(o.get('w1s', 14)))
        self.stamp("join")
        old, self.c = self.c, self.ool
        self.idle_path(n0)
        self.c = old

    def idle_path(self, n0):
        c = self.c
        P = self.RPP
        gw = sT + 8
        KV = f"s[{sKV}:{sKV+3}]"
        c("Lp1_idle:")
        c(".restore p0")
        self.base_setup()
        self.common_setup()
        c(f"s_lshl2_add_u32 s{gw}, s{sRB1}, s{sW}")
        c(f"s_mov_b32 s{sKV}, s{sWS}")
        c(f"s_mov_b32 s{sKV+1}, s{sWS+1}")
        c(f"s_mov_b32 s{sKV+3}, 0x20000")
        hd = {}
        for r in range(3):
            self.rp_setup_wo(gw, r)
            d = self.rp_dma(5, r * 5120, 40960, fl='')
            c.add(d); hd['o', r] = d[-1][-1]
        c(f"s_mov_b32 s{sRP}, s{sW1}")
        c(f"s_mov_b32 s{sRP+1}, s{sW1+1}")
        c(f"s_mov_b32 s{sRP+2}, {640*3456}")
        c(f"s_lshl_b32 s{sT+9}, s{gw}, 13")
        c(f"v_lshlrev_b32 v8, 7, v1")

        def touch(j):
            c(f"buffer_load_dword v255, v8, s[{sRP}:{sRP+3}], s{sT+9} offen")
            c.ins[-1].wr = []
            c(f"s_add_u32 s{sT+9}, s{sT+9}, {64*8192}")
        self.tag_ready()
        c.add(self.fx_publish())
        c(f"v_mov_b32 v{vFLG}, s{sTAG}")
        self.rp_addr(16, 160, 0, 40960, False)

        def params(kind, r):
            if kind == 'o':
                self.rp_params_wo(gw, r)
                c(f"s_cmp_lg_u32 s{sRPT}, 0")
                c(f"s_cselect_b32 s{sKV+2}, {WS_SIZE}, 0")
            else:
                c(f"s_mov_b32 s{sKV+2}, {WS_SIZE}")
                c(f"s_and_b32 s{sT}, s{gw}, 15")
                c(f"s_lshr_b32 s{sT+1}, s{gw}, 4")
                c(f"s_add_u32 s{sT+1}, s{sT+1}, {4*r}")
                c(f"s_mul_i32 s{sRPD}, s{sT}, 20")
                c(f"s_add_u32 s{sRPD}, s{sRPD}, s{sT+1}")
                c(f"s_mul_i32 s{sRPD}, s{sRPD}, 7168")
                c(f"s_add_u32 s{sRPD}, s{sRPD}, {W1_OFF}")
                c(f"s_lshl_b32 s{sRPF}, s{sT}, 7")
                c(f"s_lshl2_add_u32 s{sRPF}, s{sT+1}, s{sRPF}")
                c(f"s_add_u32 s{sRPF}, s{sRPF}, {FW1_OFF}")
        hs = {}

        def proc(kind, r, n):
            params(kind, r)
            c.wait(hd[kind, r])
            it = self.rp_items(5, 16, r * 5120, 64 + 20 * n, KV)
            c.add(it); hs[kind, r] = flat(it)[-1]

        def flag(kind, r):
            params(kind, r)
            c.wait(hs[kind, r])
            c("s_mov_b64 exec, 1")
            c(f"buffer_store_dword v{vFLG}, off, {KV}, s{sRPF} sc1")
            c("s_mov_b64 exec, -1")
        nt0 = self.o.get('touch0', 0)
        dbg = self.o.get('idledbg')
        if dbg: self.stamp("start")
        for j in range(nt0):
            touch(j)
        if dbg: c.wait(hd['o', 0]); self.stamp("b0")
        for r in range(3):
            proc('o', r, r)
        if dbg: self.stamp("p1epi")
        for r in range(3):
            flag('o', r)
        if dbg: self.stamp("ainit")
        for j in range(nt0, self.o.get('touchn', 5)):
            touch(j)
        self.stamp("p1loop")
        lab = self.label("ep")
        c(f"s_cmp_lg_u32 s{gw}, 63")
        c(f"s_cbranch_scc1 {lab}")
        c(f"v_lshrrev_b32 v8, 4, v1")
        c(f"v_and_b32 v9, 15, v1")
        c(f"v_lshlrev_b32 v8, 7, v8")
        c(f"v_lshl_add_u32 v8, v9, 2, v8")
        for j in range(4):
            c(f"v_add_u32 v9, {FX_OFF - FL_OFF + j*512}, v8")
            self.poll(9, span=True, sleep=16)
        c(f"s_mov_b32 s{sT}, {EP_OFF}")
        self.flag_store(sT)
        c(f"{lab}:")
        self.rp_setup_unit()
        self.attn_init()
        self.poll(self.vWOF, self.vWOD, sleep=8)
        c("s_barrier")
        c.add(self.wo_loads()[:n0])
        c("s_branch Lp1_join")

    RPP = dict(pitch=sT, col=sT + 1, nch=sT + 2, mch=sT + 3, v0=sT + 4, dm=sT + 5, dd=sT + 6, aa=sT + 7, lim=sT + 12, r0=sT + 13, u=sT + 14)

    def rp_params_wo(self, gw, r):
        c = self.c
        u = self.RPP['u']
        c(f"s_add_u32 s{u}, s{gw}, {64*r}")
        c(f"s_cmp_lt_u32 s{u}, 160")
        c(f"s_cselect_b32 s{sRPT}, 1, 0")
        c(f"s_and_b32 s{u+1}, s{u}, 7")
        c(f"s_lshr_b32 s{u}, s{u}, 3")
        c(f"s_mul_i32 s{sRPD}, s{u+1}, 20")
        c(f"s_add_u32 s{sRPD}, s{sRPD}, s{u}")
        c(f"s_mul_i32 s{sRPD}, s{sRPD}, 5120")
        c(f"s_add_u32 s{sRPD}, s{sRPD}, {WO_OFF}")
        c(f"s_lshl_b32 s{sRPF}, s{u+1}, 7")
        c(f"s_lshl2_add_u32 s{sRPF}, s{u}, s{sRPF}")
        c(f"s_add_u32 s{sRPF}, s{sRPF}, {FWO_OFF}")

    def rp_setup_wo(self, gw, r):
        c = self.c
        P = self.RPP
        u = P['u']
        c(f"s_mov_b32 s{sRP}, s{sWO}")
        c(f"s_mov_b32 s{sRP+1}, s{sWO+1}")
        c(f"s_mov_b32 s{sRP+2}, {640*1280}")
        c(f"s_mov_b32 s{sRP+3}, 0x20000")
        self.rp_params_wo(gw, r)
        c(f"s_mov_b32 s{P['pitch']}, 1280")
        c(f"s_mov_b32 s{P['nch']}, 10")
        c(f"s_mov_b32 s{P['mch']}, 6554")
        c(f"s_mul_i32 s{P['r0']}, s{u}, 52")
        c(f"s_lshr_b32 s{P['r0']}, s{P['r0']}, 8")
        c(f"s_mul_i32 s{P['dd']}, s{P['r0']}, 5")
        c(f"s_sub_u32 s{P['dd']}, s{u}, s{P['dd']}")
        c(f"s_mul_i32 s{P['r0']}, s{P['r0']}, 160")
        c(f"s_mul_i32 s{P['aa']}, s{P['dd']}, 40")
        c(f"s_cmp_eq_u32 s{P['dd']}, 4")
        c(f"s_cselect_b32 s{P['aa']}, 16, s{P['aa']}")
        c(f"s_cselect_b32 s{P['dm']}, 4, 1")
        c(f"s_cselect_b32 s{P['dd']}, 4, 16")
        c(f"s_lshl_b32 s{P['dm']}, s{P['dm']}, 12")
        c(f"s_add_u32 s{P['r0']}, s{P['r0']}, s{P['aa']}")
        c(f"s_mov_b32 s{P['aa']}, 20")
        c(f"s_mov_b32 s{P['v0']}, 0")
        c(f"s_mov_b32 s{P['lim']}, 64")
        c(f"s_mul_i32 s{P['col']}, s{u+1}, 160")
        assert all((v * 52) >> 8 == v // 5 for v in range(24))
        self.rp_offsets(5)

    def rp_setup_unit(self):
        c = self.c
        t = self.vTMP
        u, sl, r0, p0, col = [sT + i for i in range(5)]
        c(f"s_mov_b32 s{sRP}, s{sW2}")
        c(f"s_mov_b32 s{sRP+1}, s{sW2+1}")
        c(f"s_mov_b32 s{sRP+3}, 0x20000")
        c(f"s_lshl1_add_u32 s{u}, s2, s{sW}")
        c(f"s_lshr_b32 s{sl}, s{sW}, 1")
        c(f"s_lshl_b32 s{sl}, s{sl}, 10")
        c(f"s_add_u32 s{sl}, s{sl}, s{u}")
        c(f"s_cmp_lt_u32 s{sl}, 448")
        c(f"s_cselect_b32 s{sRP+2}, {1728*1280}, 0")
        c(f"s_cselect_b32 s{sRPT}, {WS_SIZE}, 0")
        c(f"s_and_b32 s{sl}, s{u}, 7")
        c(f"s_lshr_b32 s{u}, s{u}, 3")
        c(f"s_mul_i32 s{r0}, s{u}, 18726")
        c(f"s_lshr_b32 s{r0}, s{r0}, 16")
        c(f"s_mul_i32 s{col}, s{r0}, 14")
        c(f"s_lshl_b32 s{p0}, s{u}, 2")
        c(f"s_sub_u32 s{p0}, s{p0}, s{col}")
        c(f"s_mul_i32 s{r0}, s{r0}, {108*1280}")
        c(f"s_mul_i32 s{col}, s{sl}, 160")
        c(f"s_add_u32 s{col}, s{col}, s{r0}")
        c(f"s_mul_i32 s{sRPD}, s{sl}, 56")
        c(f"s_add_u32 s{sRPD}, s{sRPD}, s{u}")
        c(f"s_mul_i32 s{sRPD}, s{sRPD}, 5120")
        c(f"s_add_u32 s{sRPD}, s{sRPD}, {W2_OFF}")
        c(f"s_lshl_b32 s{sRPF}, s{sl}, 8")
        c(f"s_lshl2_add_u32 s{sRPF}, s{u}, s{sRPF}")
        c(f"s_add_u32 s{sRPF}, s{sRPF}, {FW2_OFF}")
        assert all((S * 18726) >> 16 == (4 * S) // 14 for S in range(80))
        c(f"v_bfe_u32 v{t}, v1, 3, 2")
        c(f"v_add_u32 v{t}, s{p0}, v{t}")
        c(f"v_and_b32 v{t+1}, 4, v1")
        c(f"v_lshl_add_u32 v{t+2}, v{t}, 3, v{t+1}")
        c(f"v_and_b32 v{t+3}, 12, v{t}")
        c(f"v_add_u32 v{t+3}, v{t+3}, v{t}")
        c(f"v_cmp_lt_u32 vcc, 13, v{t}")
        c(f"v_add_u32 v{t+4}, {27-14}, v{t}")
        c(f"v_cndmask_b32 v{t+3}, v{t+3}, v{t+4}, vcc")
        c(f"v_add_lshl_u32 v{t+3}, v{t+3}, v{t+1}, 2")
        c(f"v_and_b32 v{t+4}, 30, v{t}")
        c(f"v_cmp_eq_u32 vcc, 12, v{t+4}")
        c(f"v_and_b32 v{t+4}, 3, v1")
        c(f"v_cndmask_b32 v{t+3}, v{t+3}, v{t+2}, vcc")
        c(f"v_cmp_eq_u32 vcc, 108, v{t+2}")
        c(f"v_add_u32 v{t+3}, v{t+3}, v{t+4}")
        c(f"v_mul_u32_u24 v{t+3}, 1280, v{t+3}")
        c(f"v_add_u32 v{t+3}, s{col}, v{t+3}")
        c(f"v_mov_b32 v{t+4}, {OOB}")
        c(f"v_cndmask_b32 v{t+5}, v{t+3}, v{t+4}, vcc")
        for j in range(5):
            c(f"v_add_u32 v{t}, {64*j}, v1")
            c(f"v_mul_u32_u24 v{t+1}, 6554, v{t}")
            c(f"v_lshrrev_b32 v{t+1}, 16, v{t+1}")
            c(f"v_lshlrev_b32 v{t+2}, 2, v{t+1}")
            c(f"ds_bpermute_b32 v{self.vRP+j}, v{t+2}, v{t+5}")
            c(f"v_mul_u32_u24 v{t+1}, 10, v{t+1}")
            c(f"v_sub_u32 v{self.vW1D+j}, v{t}, v{t+1}")
        for j in range(5):
            c(f"v_lshl_add_u32 v{self.vRP+j}, v{self.vW1D+j}, 4, v{self.vRP+j}")
        for j in range(7):
            c(f"v_add_u32 v{t}, {64*j}, v1")
            c(f"v_mul_u32_u24 v{t+1}, 4682, v{t}")
            c(f"v_lshrrev_b32 v{t+1}, 16, v{t+1}")
            c(f"v_mul_u32_u24 v{t+2}, 14, v{t+1}")
            c(f"v_sub_u32 v{t}, v{t}, v{t+2}")
            c(f"v_lshrrev_b32 v{t+2}, 1, v{t+1}")
            c(f"v_xor_b32 v{t+2}, v{t+2}, v{t+1}")
            c(f"v_and_b32 v{t+2}, 4, v{t+2}")
            c(f"v_mul_u32_u24 v{t+2}, 3, v{t+2}")
            c(f"v_xor_b32 v{t+1}, v{t+1}, v{t+2}")
            c(f"v_mul_u32_u24 v{t+1}, 3456, v{t+1}")
            c(f"v_lshl_add_u32 v{t}, v{t}, 4, v{t+1}")
            c(f"v_subrev_u32 v{self.vW1D+j}, {1024*(j&3)}, v{t}")

    def only_waves(self, hi, items):
        lab = self.label("ow")
        out = [I(f"s_cmp_ge_u32 s{sW}, 2"), I(f"s_cbranch_scc{0 if hi else 1} {lab} ; noflush")]
        for i in flat(items):
            i.cond = True
            out.append(i)
        out.append(I(f"{lab}: ; noflush"))
        return out

    def rp_offsets(self, n):
        c = self.c
        P = self.RPP
        t, u = self.vTMP, P['u']
        assert all((v * 6554) >> 16 == v // 10 for v in range(448)) and all((v * 4682) >> 16 == v // 14 for v in range(448))
        for j in range(n):
            c(f"v_add_u32 v{t}, {64*j}, v1")
            c(f"v_mul_u32_u24 v{t+1}, s{P['mch']}, v{t}")
            c(f"v_lshrrev_b32 v{t+1}, 16, v{t+1}")
            c(f"v_mul_u32_u24 v{t+2}, s{P['nch']}, v{t+1}")
            c(f"v_sub_u32 v{t}, v{t}, v{t+2}")
            c(f"v_lshl_add_u32 v{t}, v{t}, 4, s{P['col']}")
            c(f"v_mul_u32_u24 v{t+2}, s{P['dm']}, v{t+1}")
            c(f"v_lshrrev_b32 v{t+2}, 16, v{t+2}")
            c(f"v_mul_u32_u24 v{t+3}, s{P['dd']}, v{t+2}")
            c(f"v_sub_u32 v{t+1}, v{t+1}, v{t+3}")
            c(f"v_mad_u32_u24 v{t+1}, v{t+2}, s{P['aa']}, v{t+1}")
            c(f"v_add_u32 v{t+1}, s{P['r0']}, v{t+1}")
            c(f"v_mad_u32_u24 v{self.vRP+j}, v{t+1}, s{P['pitch']}, v{t}")

    RP1_LDS = 6 * 16384

    def rp_dma(self, n, base, wstride, so="0", fl=None):
        items = []
        fl = self.o.get('rpld', 'nt') if fl is None else fl
        for j in range(n):
            pre = [I(f"s_mul_i32 s{sT+12}, s{sW}, {wstride}")] if j == 0 else []
            items.append(pre + [I(f"s_add_u32 m0, s{sT+12}, {base + 1024*j}"),
                                I(f"buffer_load_dwordx4 v{self.vRP+j}, s[{sRP}:{sRP+3}], {so} offen {fl} lds")])
        return items

    def rp_addr(self, t, pitch, base, wstride, oddshift):
        c = self.c
        c(f"s_mul_i32 s{sT+1}, s{sW}, {wstride}")
        if oddshift:
            c(f"s_and_b32 s{sT+2}, s{sW}, 1")
            c(f"s_lshl3_add_u32 s{sT+1}, s{sT+2}, s{sT+1}")
        c(f"s_add_u32 s{sT+1}, s{sT+1}, {base}")
        c(f"v_lshrrev_b32 v{t}, 4, v1")
        c(f"v_bfe_u32 v{t+1}, v1, 2, 2")
        c(f"v_lshl_add_u32 v{t}, v{t}, 3, v{t+1}")
        c(f"v_mul_u32_u24 v{t}, {pitch}, v{t}")
        c(f"v_add_u32 v{t}, s{sT+1}, v{t}")
        c(f"v_and_b32 v{t+1}, 3, v1")
        c(f"v_lshl_add_u32 v{t+2}, v{t+1}, 4, v{t}")
        c(f"v_lshl_add_u32 v{t+3}, v{t+1}, 3, v{t}")

    def rp_items(self, nt, t, off, fr, R):
        pitch = 160 if nt == 5 else 224
        fb = fr if isinstance(fr, list) else [fr + 4 * tl for tl in range(nt)]
        rd, stv = [], []
        for tl in range(nt):
            for q in range(2):
                if tl < nt - 1:
                    rd.append(I(f"ds_read_b64_tr_b16 {vr(fb[tl]+2*q,2)}, v{t+2} offset:{off + q*4*pitch + (tl>>1)*64 + (tl&1)*8}"))
                else:
                    rd.append(I(f"ds_read_b64_tr_b16 {vr(fb[tl]+2*q,2)}, v{t+3} offset:{off + q*4*pitch + tl*32}"))
        for tl in range(nt):
            g = []
            if tl == 4:
                g.append(I(f"s_add_u32 s{sRPD}, s{sRPD}, 4096"))
            if tl == 6:
                g += [I(f"v_and_b32 v{t}, 15, v1"), I(f"v_cmp_gt_u32 vcc, 12, v{t}")]
                g += [I(f"v_cndmask_b32 v{fr+24+q}, 0, v{fr+24+q}, vcc") for q in range(4)]
            g.append(I(f"buffer_store_dwordx4 {vr(fb[tl],4)}, v{vL16}, {R}, s{sRPD} offen offset:{(tl&3)*1024} sc1"))
            stv.append(g)
        return rd + stv

    aV, aWO = 0, 156

    def wo_loads(self):
        items = []
        for i in range(25):
            pre = [I(f"s_add_u32 s{sWOO}, s{sWOO}, 4096")] if i and i % 4 == 0 else []
            items.append(pre + [I(f"buffer_load_dwordx4 {ar(self.aWO+4*i,4)}, v{vL16}, {WSR}, s{sWOO} offen offset:{(i&3)*1024} {self.ld}")])
        return items

    def w1_take(self, n):
        items = []
        first = True
        for i in self.w1q[:n]:
            st, j = divmod(i, 7)
            pre = []
            if j in (0, 4) or first:
                pre.append(I(f"s_add_u32 m0, s{sW1M}, {st * 7168 + (j >> 2) * 4096}"))
            if j == 0 and st:
                pre.append(I(f"s_add_u32 s{sW1O}, s{sW1O}, {32*3456}"))
            first = False
            items.append(pre + [I(f"buffer_load_dwordx4 v{self.vW1D+j}, s[{sWQ}:{sWQ+3}], s{sW1O} offen offset:{(j&3)*1024} lds")])
        self.w1q = self.w1q[n:]
        return items

    def w2_take(self, n, below=70):
        items = []
        while n and self.w2q and self.w2q[0] < below:
            i = self.w2q.pop(0); n -= 1
            pre = [I(f"s_add_u32 s{sW2O}, s{sW2B}, {(i >> 2) * 4096}")] if i % 4 == 0 else []
            items.append(pre + [I(f"buffer_load_dwordx4 {self.w2reg(i)}, v{vL16}, {WSR}, s{sW2O} offen offset:{(i&3)*1024} {self.ld}")])
        return items

    def w2reg(self, i):
        return ar(4 * i, 4) if i < 64 else vr(184 + 4 * (i - 64), 4)

    vO, vK, vQ, vQ4, vZ, vS, vCO, vCD, vP = 32, 64, 124, 132, 136, 146, 178, 194, 210
    vX = 226
    vL16m, vVA, vFWA, vFWD, vPOL = 3, 4, 5, 6, 7
    sKO, sVO = sT + 8, sT + 9
    UNITS = sorted([(kt, 0) for kt in range(9)] + [(kt, 1) for kt in range(1, 10)])

    def attn_init(self):
        c = self.c
        t = 8
        c(f"s_mov_b32 s{sVM}, 0x000fffff")
        c(f"s_mov_b32 s{sVM+1}, 0x000fffff")
        c(f"s_mov_b32 s{sKV}, s{sWS}")
        c(f"s_mov_b32 s{sKV+1}, s{sWS+1}")
        c(f"s_mov_b32 s{sKV+2}, 0")
        c(f"s_mov_b32 s{sKV+3}, 0x20000")
        c(f"v_and_b32 v{self.vL16m}, 0x1f0, v{vL16}")
        c(f"v_lshrrev_b32 v{t}, 1, v1")
        c(f"v_xor_b32 v{t}, v{t}, v1")
        c(f"v_and_b32 v{t}, 4, v{t}")
        c(f"v_mul_u32_u24 v{t}, 48, v{t}")
        c(f"v_xor_b32 v{t}, v{t}, v{self.vL16m}")
        c(f"v_lshrrev_b32 v{t+1}, 5, v1")
        c(f"v_mul_u32_u24 v{t+2}, 10240, v{t+1}")
        c(f"v_add_u32 v{self.vVA}, v{t}, v{t+2}")
        for pi in range(5):
            c(f"s_cmp_ge_u32 s{sU}, {4-pi}")
            c(f"s_cselect_b32 s{sT}, 0x3f803f80, 0")
            c(f"v_mov_b32 v{t}, s{sT}")
            for j in range(16):
                c(f"v_accvgpr_write_b32 a{self.aV+16*pi+j}, v{t}")
        c(f"v_and_b32 v{t}, 31, v1")
        c(f"v_lshlrev_b32 v{t+1}, 2, v{t+1}")
        c(f"v_sub_u32 v{t}, v{t}, v{t+1}")
        c(f"v_mov_b32 v{t+2}, 0xff800000")
        for r in range(0, 16, 4):
            for i in range(4):
                c(f"v_cmp_gt_i32 s[{sT+2*i}:{sT+2*i+1}], {8*(r>>2) + i}, v{t}")
            for i in range(4):
                c(f"v_cndmask_b32 v{self.vCD+r+i}, 0, v{t+2}, s[{sT+2*i}:{sT+2*i+1}]")
            for i in range(4):
                c(f"v_xor_b32 v{self.vCO+r+i}, v{self.vCD+r+i}, v{t+2}")
        c(f"s_lshl_b32 s{sT+2}, s{sRB}, 7")
        c(f"s_add_u32 s{sT+2}, s{sT+2}, {FX_OFF - FL_OFF}")
        c(f"v_and_b32 v{t}, 15, v1")
        c(f"v_lshl_add_u32 v{self.vFWA}, v{t}, 2, s{sT+2}")
        self.rp_addr(12, 160, self.RED, 5120, False)
        c(f"s_mul_i32 s{sT}, s{sNB}, 80")
        c(f"s_add_u32 s{sT+1}, s{sT}, 79")
        c(f"s_lshr_b32 s{sT}, s{sT}, 7")
        c(f"s_lshr_b32 s{sT+1}, s{sT+1}, 7")
        c(f"s_sub_u32 s{sT+1}, s{sT+1}, s{sT}")
        c(f"v_lshrrev_b32 v{t}, 2, v1")
        c(f"v_min_u32 v{t}, 2, v{t}")
        c(f"v_bfe_u32 v{t+1}, v1, 1, 1")
        c(f"v_add_u32 v{t+1}, 1, v{t+1}")
        c(f"v_cmp_lt_u32 vcc, 11, v1")
        c(f"v_and_b32 v{t+2}, s{sT+1}, v1")
        c(f"v_cndmask_b32 v{t+1}, v{t+1}, 0, vcc")
        c(f"v_mad_u32_u24 v{t+1}, v{t+1}, 5, v{t+2}")
        c(f"v_add_u32 v{t+1}, s{sT}, v{t+1}")
        c(f"s_sub_u32 s{sT}, s{sRB}, 2")
        c(f"v_add_u32 v{t}, s{sT}, v{t}")
        c(f"v_max_i32 v{t}, 0, v{t}")
        c(f"v_lshlrev_b32 v{t}, 7, v{t}")
        c(f"v_lshl_add_u32 v{self.vPOL}, v{t+1}, 2, v{t}")
        c(f"v_and_b32 v{t+4}, 15, v1")
        c(f"v_mul_u32_u24 v{t}, 1280, v{t+4}")
        c(f"v_lshrrev_b32 v{t+1}, 4, v1")
        c(f"v_lshl_add_u32 v{t+2}, v{t+1}, 4, v{t}")
        c(f"v_lshl_add_u32 v{t+3}, v{t+1}, 3, v{t}")
        c(f"v_bfe_u32 v{t}, v1, 4, 1")
        c(f"v_lshlrev_b32 v{t+4}, 4, v{t+4}")
        c(f"v_lshl_add_u32 v{t+5}, v{t}, 13, v{t+4}")
        c(f"v_lshl_add_u32 v{t+4}, v{t}, 14, v{t+4}")
        c(f"v_lshrrev_b32 v{t}, 5, v1")
        c(f"v_lshl_add_u32 v{t+4}, v{t}, 8, v{t+4}")

    def attn_kv_loads(self, pi):
        ld = self.ld
        k = self.vK + 12 * pi
        R = f"s[{sKV}:{sKV+3}]"
        pre = [I(f"s_sub_u32 s{sT}, s{sU}, {4-pi}"),
               I(f"s_cselect_b32 s{sKV+2}, 0, {WS_SIZE}"),
               I(f"s_cselect_b32 s{sT}, 0, s{sT}"),
               I(f"s_mul_i32 s{self.sVO}, s{sT}, 81920"),
               I(f"s_lshl1_add_u32 s{self.sKO}, s{self.sVO}, s{sT+6}"),
               I(f"s_add_u32 s{self.sVO}, s{self.sVO}, s{sT+7}")]
        K = [pre + [I(f"buffer_load_dwordx4 {vr(k,4)}, v{vL16}, {R}, s{self.sKO} offen {ld}")],
             [I(f"buffer_load_dwordx4 {vr(k+4,4)}, v{vL16}, {R}, s{self.sKO} offen offset:1024 {ld}")],
             [I(f"buffer_load_dwordx4 {vr(k+8,4)}, v{self.vL16m}, {R}, s{self.sKO} offen offset:2048 {ld}")]]
        V = []
        for T in range(2):
            g = [I(f"s_mov_b64 exec, s[{sVM}:{sVM+1}]")]
            for s in range(2):
                g.append(I(f"buffer_load_dwordx4 {ar(self.aV+16*pi+8*T+4*s,4)}, v{self.vVA}, {R}, s{self.sVO} offen {ld}"))
                if not (T == 1 and s == 1):
                    g.append(I(f"s_add_u32 s{self.sVO}, s{self.sVO}, 20480"))
            g.append(I("s_mov_b64 exec, -1"))
            V.append(g)
        return K, V

    def attn_qk(self, u, dst):
        kt, T = self.UNITS[u]
        k = self.vK + 12 * (kt >> 1)
        cin = '0'
        if kt == T:
            cin = vr(self.vCO, 16)
        elif kt == 8 + T:
            cin = vr(self.vCD, 16)
        d = vr(dst, 16)
        z = self.vZ + 4 * T + (0 if kt & 1 else 2)
        return [I(f"v_mfma_f32_32x32x16_bf16 {d}, {vr(k+4*(kt&1),4)}, {vr(self.vQ+4*T,4)}, {cin}"),
                I(f"v_mfma_f32_32x32x16_bf16 {d}, {vr(k+8,4)}, {vr(z,4)}, {d}")]

    def attn_loop(self, fill, swaps):
        c = self.c
        n = len(self.UNITS)
        S = lambda u: self.vS + 16 * (u & 1)
        P = lambda u: self.vP + 8 * (u & 1)
        seen = set()

        def qk(u):
            kt = self.UNITS[u][0]
            pre = []
            if swaps and (kt >> 1) not in seen:
                seen.add(kt >> 1)
                k = self.vK + 12 * (kt >> 1)
                pre = [I(f"v_swap_b32 v{k+2}, v{k+4}"), I(f"v_swap_b32 v{k+3}, v{k+5}")]
            return pre, self.attn_qk(u, S(u))

        def pv(u, s):
            kt, T = self.UNITS[u]
            d = vr(self.vO + 16 * T, 16)
            first = (kt == T and s == 0)
            return I(f"v_mfma_f32_32x32x16_bf16 {d}, {ar(self.aV+8*kt+4*s,4)}, {vr(P(u)+4*s,4)}, {0 if first else d}")

        ex = lambda u, g: [I(f"v_exp_f32 v{S(u)+4*g+i}, v{S(u)+4*g+i}") for i in range(4)]
        cv = lambda u, g: [I(f"v_cvt_pk_bf16_f32 v{P(u)+2*g+i}, v{S(u)+4*g+2*i}, v{S(u)+4*g+2*i+1}") for i in range(2)]
        pre, m = qk(0)
        c.add(pre); c.add(m)
        if fill:
            self.stamp("qk0", "attn")
        c.add(fill.get(-1, []))
        for u in range(n + 1):
            f = list(fill.get(u, [])) + [[]] * 4
            pre, m = qk(u + 1) if u + 1 < n else ([], [[], []])
            if u > 0: c.add(pv(u - 1, 0))
            if u > 0: c.add(cv(u - 1, 3))
            c.add(pre)
            if u < n: c.add(ex(u, 0))
            c.add(f[0])
            c.add(m[0])
            if u < n: c.add(ex(u, 1)); c.add(cv(u, 0))
            c.add(f[1])
            c.add(m[1])
            if u < n: c.add(ex(u, 2)); c.add(cv(u, 1))
            c.add(f[2])
            if u > 0: c.add(pv(u - 1, 1))
            if u < n: c.add(ex(u, 3)); c.add(cv(u, 2))
            c.add(f[3])
            if fill:
                self.stamp(f"u{u}", "attn")

    def same_check(self):
        c = self.c
        self.flag_check(self.vFWD, self.vFWA, span=True)
        c(f"s_add_u32 s{sT+1}, s{sTAG}, s{sXCC}")
        c(f"v_cmp_ne_u32 vcc, s{sT+1}, v{self.vFWD}")
        c(f"s_cmp_lg_u64 vcc, 0")
        c(f"s_cselect_b32 s{sSAME}, 0, 1")
        if self.o.get('nosame'):
            c(f"s_mov_b32 s{sSAME}, 0")

    def attention(self):
        c, o = self.c, self.o
        ld = self.ld
        t = 8
        c(f"s_mul_i32 s{sT+5}, s{sHEAD}, 2560")
        c(f"s_add_u32 s{sT+6}, s{sT+5}, {QK_OFF + 160*512}")
        c(f"s_mul_i32 s{sT+7}, s{sHEAD}, 320")
        c(f"s_add_u32 s{sT+7}, s{sT+7}, {V_OFF}")
        c(f"s_mul_i32 s{sT+4}, s{sU}, 163840")
        c(f"s_add_u32 s{sT+5}, s{sT+5}, s{sT+4}")
        c(f"s_lshl2_add_u32 s{sT+3}, s{sU}, s{sW}")
        c(f"s_mul_i32 s{sT+3}, s{sT+3}, {16*1280}")
        c(f"s_mul_i32 s{sT+2}, s{sNB}, 160")
        c(f"s_add_u32 s{sT+3}, s{sT+3}, s{sT+2}")
        for r in (0, 1, 4, 5, 8, 9):
            c(f"v_mov_b32 v{self.vZ+r}, 0")
        kv = [self.attn_kv_loads(pi) for pi in range(5)]
        c.add(kv[0][0][0][:-1])
        lab = self.label("w1")
        c(f"s_cmp_lg_u32 s{sW}, 1")
        c(f"s_cbranch_scc1 {lab}")
        c.cond(True)
        self.poll(self.vPOL, sleep=o.get('s1sleep', 2))
        c.cond(False)
        c(f"{lab}:")
        c("s_barrier")
        self.stamp("s1", "main attn")
        q = self.vQ
        c(f"buffer_load_dwordx4 {vr(q,4)}, v{vL16}, {WSR}, s{sT+5} offen {ld}")
        c(f"buffer_load_dwordx4 {vr(q+4,4)}, v{vL16}, {WSR}, s{sT+5} offen offset:1024 {ld}")
        c.add(kv[0][0][0][-1]); c.add(kv[0][0][1])
        c(f"buffer_load_dwordx4 {vr(self.vQ4,4)}, v{self.vL16m}, {WSR}, s{sT+5} offen offset:2048 {ld}")
        c.add(kv[0][0][2]); c.add(kv[0][1]); c.add(kv[1][0])
        rest = kv[1][1] + kv[2][0] + kv[2][1] + kv[3][0] + kv[3][1] + kv[4][0] + kv[4][1]
        if o.get('w2src', 0) == 1:
            pass
        fl = I(f"buffer_load_dword v{self.vFWD}, v{self.vFWA}, {WSR}, s{sFLB} offen sc1")
        XR = f"s[{sX}:{sX+3}]"
        xl = [[I(f"buffer_load_dwordx4 {vr(self.vX,4)}, v{t+2}, {XR}, s{sT+3} offen")],
              [I(f"buffer_load_dwordx4 {vr(self.vX+4,4)}, v{t+2}, {XR}, s{sT+3} offen offset:64")],
              [I(f"buffer_load_dwordx2 {vr(self.vX+8,2)}, v{t+3}, {XR}, s{sT+3} offen offset:128")]]
        fill = {u: [[], [], [], []] for u in range(19)}
        fill[-1] = rest[:2]; rest = rest[2:]

        def place(items, g0, step):
            g = g0
            for it in items:
                assert g < 72
                fill[int(g) // 4][int(g) % 4].append(it); g += step
            return int(g + 0.999)
        g = place(rest + [fl], 0, o.get('kvstep', 20) / 10)
        KV = f"s[{sKV}:{sKV+3}]"
        it = self.rp_items(5, 12, 0, [16, 20, 24, 28, 240], KV)
        it[0].waits = [kv[0][0][1][0]]
        it[10] = [I(f"s_mov_b32 s{sKV+2}, s{sRPT}")] + it[10]
        place([it[:4], it[4:7], it[7:10]], g - 4, 1)
        g = place(it[10:] + xl + self.woq, g, o.get('wostep', 10) / 10)
        place([self.sub(self.same_check)], 60, 1)
        w1 = self.w1_take(o.get('w1a', 8))
        place(w1, g, (70 - g) / max(len(w1), 1))
        place([[I(f"v_mov_b32 v{vFLG}, s{sTAG}"), I("s_mov_b64 exec, 1", waits=[it[-1][-1]]),
                I(f"buffer_store_dword v{vFLG}, off, {KV}, s{sRPF} sc1"), I("s_mov_b64 exec, -1")]], 64, 1)
        sb = [I(f"s_mul_i32 s{sT}, s{sU}, 81920"), I(f"s_add_u32 s{sT}, s{sT}, {O_OFF}"),
              I(f"s_lshl_b32 s{sT+1}, s{sHEAD}, 9"), I(f"s_add_u32 s{sT+1}, s{sT+1}, s{sT}"),
              I(f"s_add_u32 s{sT+2}, s{sT+1}, 32768"), I(f"s_lshr_b32 s{sT+4}, s{sHEAD}, 3"),
              I(f"s_and_b32 s{sT+5}, s{sHEAD}, 1"), I(f"s_lshl1_add_u32 s{sT+4}, s{sT+4}, s{sT+5}"),
              I(f"s_bfe_u32 s{sT+5}, s{sHEAD}, 0x20001"), I(f"s_lshl2_add_u32 s{sT+4}, s{sT+4}, s{sT+5}"),
              I(f"s_lshl_b32 s{sT+4}, s{sT+4}, 8"), I(f"s_add_u32 s{sT+4}, s{sT+4}, s{sT}"),
              I(f"s_add_u32 s{sT+4}, s{sT+4}, 65536")]
        fill[18] = [sb[:4], [], [], sb[4:]]
        c(f"v_swap_b32 v{q+2}, v{q+4}")
        c(f"v_swap_b32 v{q+3}, v{q+5}")
        for T in range(2):
            for i in range(2):
                c(f"v_cndmask_b32 v{self.vZ+2+4*T+i}, v{self.vQ4+2*T+i}, 0, s[{sHI}:{sHI+1}]")
        self.attn_loop(fill, True)
        self.stamp("attn")
        lo, hi = f2u(2.0 ** -40), f2u(2.0 ** 40)
        O = self.vO
        c(f"v_subrev_u32 v{t}, {hex(lo)}, v{O+12}")
        c(f"v_subrev_u32 v{t+1}, {hex(lo)}, v{O+28}")
        c(f"v_max_u32 v{t}, v{t}, v{t+1}")
        c(f"v_cmp_lt_u32 vcc, {hex(hi-lo)}, v{t}")
        if o.get('forceslow'):
            c("s_mov_b64 vcc, -1")
        c(f"s_cbranch_vccnz Lattn_slow")
        c("Lattn_fin:")
        self.attn_slow()
        self.attn_epilogue('sc1')

    def attn_epilogue(self, st):
        c, o = self.c, self.o
        t, O, ob = 8, self.vO, 16
        c(f"v_rcp_f32 v{t}, v{O+12}")
        c(f"v_rcp_f32 v{t+1}, v{O+28}")
        for T in range(2):
            sel = "op_sel_hi:[1,0]" if T == 0 else "op_sel:[0,1] op_sel_hi:[1,1]"
            for i in range(6):
                r = O + 16 * T + 2 * i
                c(f"v_pk_mul_f32 {vr(r,2)}, {vr(r,2)}, {vr(t,2)} {sel}")
            for i in range(6):
                r = O + 16 * T + 2 * i
                d = ob + 4 * T + i if i < 4 else ob + 8 + 2 * T + (i - 4)
                c(f"v_cvt_pk_bf16_f32 v{d}, v{r}, v{r+1}")
            c(f"buffer_store_dwordx4 {vr(ob+4*T,4)}, v{t+4}, {WSR}, s{sT+1+T} offen {st}")
        c(f"s_not_b64 exec, s[{sHI}:{sHI+1}]")
        h = c(f"buffer_store_dwordx4 {vr(ob+8,4)}, v{t+5}, {WSR}, s{sT+4} offen {st}")
        c("s_mov_b64 exec, -1")
        c.add(self.w1_take(o.get('w1b', 3)))
        self.p3_prep()
        c.wait(h)
        self.stamp("odrain")
        self.flag_store_near(sT + 13)

    def attn_slow(self):
        old, self.c = self.c, self.ool
        c = self.c
        t = 16
        c("Lattn_slow:")
        c("s_waitcnt vmcnt(0) lgkmcnt(0)")
        c(f"v_mov_b32 v{t}, 0xff800000")
        c(f"v_mov_b32 v{t+1}, 0xff800000")
        for pi in range(5):
            lab = self.label("sl")
            c(f"s_cmp_ge_u32 s{sU}, {4-pi}")
            c(f"s_cselect_b32 s{sT+12}, 0x3f803f80, 0")
            c(f"v_mov_b32 v{t+2}, s{sT+12}")
            for i in range(4):
                r = self.vK + 12 * pi + 8 + i
                c(f"v_cndmask_b32 v{r}, v{r}, v{t+2}, s[{sHI}:{sHI+1}]")
            c(f"s_cbranch_scc0 {lab}")
            for u, (kt, T) in enumerate(self.UNITS):
                if kt >> 1 != pi:
                    continue
                c.add(self.attn_qk(u, self.vS))
                for i in range(8):
                    c(f"v_max3_f32 v{t+T}, v{self.vS+2*i}, v{self.vS+2*i+1}, v{t+T}")
            c(f"{lab}:")
        for T in range(2):
            c(f"v_mov_b32 v{t+2}, v{t+T}")
            c(f"v_permlane32_swap_b32 v{t+2}, v{t+T}")
            c(f"v_max_f32 v{t+2}, v{t+2}, v{t+T}")
            c(f"v_xor_b32 v{t+2}, 0x80000000, v{t+2}")
            c(f"v_and_b32 v{t+3}, s{sMASK}, v{t+2}")
            c(f"v_sub_f32 v{t+2}, v{t+2}, v{t+3}")
            c(f"v_and_b32 v{t+4}, s{sMASK}, v{t+2}")
            c(f"v_sub_f32 v{t+2}, v{t+2}, v{t+4}")
            c(f"v_lshrrev_b32 v{t+3}, 16, v{t+3}")
            c(f"v_or_b32 v{t+3}, v{t+3}, v{t+4}")
            c(f"v_lshrrev_b32 v{t+2}, 16, v{t+2}")
            z = self.vZ + 2 + 4 * T
            c(f"v_cndmask_b32 v{z}, v{z}, v{t+3}, s[{sHI}:{sHI+1}]")
            c(f"v_cndmask_b32 v{z+1}, v{z+1}, v{t+2}, s[{sHI}:{sHI+1}]")
        self.attn_loop({}, False)
        c("s_branch Lattn_fin")
        self.c = old

    RED = 143360
    vRES = 236
    CORD = (1, 2, 3, 0)
    p3A, p3L, p3AC, p3PB, p3SUM = 64, 128, 144, 184, 204

    def p3_prep(self):
        c = self.c
        t = 32
        c(f"s_lshl_b32 s{sT+13}, s{sU}, 7")
        c(f"s_lshl_b32 s{sT+3}, s{sW}, 5")
        c(f"s_add_u32 s{sT+3}, s{sT+3}, s{sT+13}")
        c(f"s_add_u32 s{sT+3}, s{sT+3}, {F2_OFF - FL_OFF}")
        c(f"s_lshl2_add_u32 s{sT+13}, s{sHEAD}, s{sT+13}")
        c(f"s_add_u32 s{sT+13}, s{sT+13}, {F2_OFF}")
        c(f"v_and_b32 v{self.vPOL}, 7, v1")
        c(f"v_lshl_add_u32 v{self.vPOL}, v{self.vPOL}, 2, s{sT+3}")
        c(f"s_mul_i32 s{sT+5}, s{sW}, 56")
        c(f"s_lshl_b32 s{sT+6}, s{sNB}, 8")
        c(f"s_add_u32 s{sT+5}, s{sT+5}, s{sT+6}")
        c(f"s_add_u32 s{sT+5}, s{sT+5}, {FW2_OFF - FL_OFF}")
        c(f"v_min_u32 v{self.vFWA}, 13, v1")
        c(f"v_lshl_add_u32 v{self.vFWA}, v{self.vFWA}, 2, s{sT+5}")
        c(f"s_lshl_b32 s{sT+6}, s{sW}, 12")
        c(f"s_add_u32 s{sT+6}, s{sT+6}, s{sT}")
        for i, cc in enumerate(self.CORD):
            c(f"s_xor_b32 s{sT+5}, s{sW}, {cc}")
            c(f"s_lshl_b32 s{sT+8+i}, s{sT+5}, 14")
            c(f"s_add_u32 s{sT+8+i}, s{sT+8+i}, s{sT+6}")
            c(f"s_mul_i32 s{sT+5}, s{sT+5}, 5120")
            c(f"s_add_u32 s{sT+5}, s{sT+5}, {self.RED}")
            c(f"v_add_u32 v{t+2+i}, s{sT+5}, v{vL16}")
        c(f"s_lshl_b32 s{sT+6}, s{sW}, 11")
        c(f"s_add_u32 s{sT+5}, s{sT}, s{sT+6}")
        c(f"s_add_u32 s{sT+5}, s{sT+5}, 65536")
        c(f"s_and_b32 s{sT+7}, s{sW}, 1")
        c(f"s_lshl_b32 s{sT+7}, s{sT+7}, 13")
        c(f"s_xor_b32 s{sT+6}, s{sT+7}, 8192")
        c(f"s_add_u32 s{sT+6}, s{sT+6}, s{sT+5}")
        c(f"s_add_u32 s{sT+7}, s{sT+7}, s{sT+5}")
        c(f"s_lshr_b32 s{sT+5}, s{sW}, 1")
        c(f"s_cselect_b64 s[{sT+14}:{sT+15}], -1, 0")
        c(f"s_lshl_b32 s{sT+5}, s{sT+5}, 10")
        c(f"v_xor_b32 v{t}, s{sT+5}, v{vL16}")
        c(f"v_xor_b32 v{t+1}, 1024, v{t}")
        for j in range(10):
            c(f"v_lshlrev_b32 v{self.p3SUM+2*j}, 16, v{self.vX+j}")
            c(f"v_and_b32 v{self.p3SUM+2*j+1}, s{sMASK}, v{self.vX+j}")

    def phase3(self):
        c, o = self.c, self.o
        ld = o.get('la', 'sc1')
        vA, vL, vAC, vPB, vSUM = self.p3A, self.p3L, self.p3AC, self.p3PB, self.p3SUM
        t = 32
        self.poll(self.vPOL)
        self.stamp("s2", "main p3")
        L = []
        for i in range(4):
            for s in range(4):
                L.append(I(f"buffer_load_dwordx4 {vr(vA+16*i+4*s,4)}, v{vL16}, {WSR}, s{sT+8+i} offen offset:{s*1024} {ld}"))
            if i < 2:
                L.append(I(f"buffer_load_dwordx4 {vr(vL+8*i,4)}, v{t}, {WSR}, s{sT+6+i} offen {ld}"))
                L.append(I(f"buffer_load_dwordx4 {vr(vL+8*i+4,4)}, v{t+1}, {WSR}, s{sT+6+i} offen {ld}"))
        n0 = o.get('p3n0', 12)
        c.add(L[:n0])
        L = L[n0:] + self.w1_take(o.get('w1c', 35))
        L.append(I(f"buffer_load_dword v{self.vFWD}, v{self.vFWA}, {WSR}, s{sFLB} offen sc1"))
        c(f"s_lshl2_add_u32 s{sT}, s{sU}, s{sW}")
        c(f"s_mul_i32 s{sT+1}, s{sT}, 20480")
        c(f"s_mul_i32 s{sT+2}, s{sNB}, 2560")
        c(f"s_add_u32 s{sT+1}, s{sT+1}, s{sT+2}")
        c(f"s_add_u32 s{sT+1}, s{sT+1}, {H_OFF}")
        c(f"s_lshl3_add_u32 s{sT+2}, s{sT}, s{sNB}")
        c(f"s_and_b32 s{sT+13}, s{sT+2}, 15")
        c(f"s_lshr_b32 s{sT+3}, s{sT}, 1")
        c(f"s_lshl_b32 s{sT+3}, s{sT+3}, 7")
        c(f"s_lshl2_add_u32 s{sT+13}, s{sT+13}, s{sT+3}")
        c(f"s_add_u32 s{sT+13}, s{sT+13}, {F3_OFF}")
        c(f"s_lshl_b32 s{sT+2}, s{sT+2}, 7")
        c(f"s_add_u32 s{sT+2}, s{sT+2}, {HST_OFF}")
        c(f"v_and_b32 v{t+6}, 15, v1")
        c(f"v_lshrrev_b32 v{t+7}, 5, v1")
        c(f"v_lshl_add_u32 v{t+6}, v{t+7}, 4, v{t+6}")
        c(f"v_lshlrev_b32 v{t+7}, 4, v{t+6}")
        c(f"v_lshlrev_b32 v{t+6}, 2, v{t+6}")
        c(f"s_mov_b32 s{sT+4}, 0xffff")
        c(f"s_mov_b32 s{sT+5}, 0xffff")

        def swaps(g):
            q = vL + 8 * g
            return [I(f"s_not_b64 exec, s[{sT+14}:{sT+15}]"), I(f"v_swap_b32 v{q+2}, v{q+4}"), I(f"v_swap_b32 v{q+3}, v{q+5}"),
                    I(f"s_mov_b64 exec, s[{sT+14}:{sT+15}]"), I(f"v_swap_b32 v{q}, v{q+6}"), I(f"v_swap_b32 v{q+1}, v{q+7}"),
                    I("s_mov_b64 exec, -1")]
        left = {0: vL, 1: vL + 12, 2: vL + 4, 3: vL + 8}
        lper = o.get('p3lp', 3)
        for i in range(4):
            ac = vAC + 20 * (i & 1)
            M = []
            for s in range(5):
                b = vA + 16 * i + 4 * s if s < 4 else left[i]
                for tl in range(5):
                    d = vr(ac + 4 * tl, 4)
                    M.append(I(f"v_mfma_f32_16x16x32_bf16 {d}, {ar(self.aWO+4*(5*s+tl),4)}, {vr(b,4)}, {0 if s == 0 else d}"))
            F = [[] for _ in range(25)]
            if i < 2:
                F[17] += swaps(i)
            if i > 0:
                pa = vAC + 20 * ((i - 1) & 1)
                F[2] += [I("s_barrier")]
                for tl in range(5):
                    F[3 + tl] += [I(f"ds_write_b128 v{t+2+i-1}, {vr(pa+4*tl,4)} offset:{tl*1024}")]
                F[9] += [I("s_waitcnt lgkmcnt(0)"), I("s_barrier")]
                for tl in range(5):
                    F[10 + tl // 2] += [I(f"ds_read_b128 {vr(vPB+4*tl,4)}, v{t+5} offset:{tl*1024}")]
                for j in range(10):
                    F[15 + j] += [I(f"v_add_f32 v{vSUM+2*j}, v{vSUM+2*j}, v{vPB+2*j}"), I(f"v_add_f32 v{vSUM+2*j+1}, v{vSUM+2*j+1}, v{vPB+2*j+1}")]
            for k in range(25):
                c.add(M[k])
                if L and (25 * i + k) % lper == 0:
                    c.add(L.pop(0))
                c.add(F[k])
                if k in (0, 8, 12, 24):
                    self.stamp(f"i{i}k{k}", "p3")
        c.add(L)
        self.stamp("p3")
        self.p3_epilogue('sc1')

    def p3_epilogue(self, st):
        c, o = self.c, self.o
        vAC, vPB, vSUM = self.p3AC, self.p3PB, self.p3SUM
        t = 32
        ac = vAC + 20
        rs = self.vRES
        for P in range(3):
            for j in range(4 * P, min(4 * P + 4, 10)):
                c(f"v_pk_add_f32 {vr(vSUM+2*j,2)}, {vr(vSUM+2*j,2)}, {vr(ac+2*j,2)}")
            for j in range(4 * P, min(4 * P + 4, 10)):
                c(f"v_cvt_pk_bf16_f32 v{rs+j}, v{vSUM+2*j}, v{vSUM+2*j+1}")
            if P < 2:
                c(f"buffer_store_dwordx4 {vr(rs+4*P,4)}, v{vL16}, {WSR}, s{sT+1} offen offset:{P*1024} {st}")
        for j in range(4):
            c(f"v_mov_b32 v{vPB+j}, v{rs+8+(j&1)}")
        a1, a2 = t + 8, t + 10
        c(f"v_pk_add_f32 {vr(a1,2)}, {vr(vSUM,2)}, {vr(vSUM+2,2)}")
        c(f"v_pk_mul_f32 {vr(a2,2)}, {vr(vSUM,2)}, {vr(vSUM,2)}")
        c(f"v_permlane16_swap_b32 v{vPB}, v{vPB+2}")
        c(f"v_permlane16_swap_b32 v{vPB+1}, v{vPB+3}")
        c(f"s_mov_b64 exec, s[{sT+4}:{sT+5}]")
        c(f"buffer_store_dwordx4 {vr(vPB,4)}, v{t+7}, {WSR}, s{sT+1} offen offset:2048 {st}")
        c("s_mov_b64 exec, -1")
        for j in range(1, 10):
            if j > 1:
                c(f"v_pk_add_f32 {vr(a1,2)}, {vr(a1,2)}, {vr(vSUM+2*j,2)}")
            c(f"v_pk_fma_f32 {vr(a2,2)}, {vr(vSUM+2*j,2)}, {vr(vSUM+2*j,2)}, {vr(a2,2)}")
        c(f"v_add_f32 v{a1}, v{a1}, v{a1+1}")
        c(f"v_add_f32 v{a2}, v{a2}, v{a2+1}")
        c(f"v_permlane32_swap_b32 v{a1}, v{a2}")
        c(f"v_add_f32 v{a1}, v{a1}, v{a2}")
        c(f"v_mov_b32 v{a2}, v{a1}")
        c(f"v_permlane16_swap_b32 v{a1}, v{a2}")
        c(f"v_add_f32 v{a1}, v{a1}, v{a2}")
        c(f"s_mov_b64 exec, s[{sT+4}:{sT+5}]")
        h = c(f"buffer_store_dword v{a1}, v{t+6}, {WSR}, s{sT+2} offen {st}")
        c("s_mov_b64 exec, -1")
        rest = self.w1_take(35)
        c.add(rest)
        self.p4_prep()
        c.wait(h)
        self.stamp("hdrain")
        self.flag_store_near(sT + 13)
        if rest:
            c("s_waitcnt vmcnt(1)")

    p4AC, p4W, p4A, p4NR, p4ST, p4CS = 64, 120, 176, 7, 16, 24

    def p4_prep(self):
        c = self.c
        t = 8
        c(f"s_lshl2_add_u32 s{sT}, s{sRB}, s{sW}")
        c(f"s_mul_i32 s{sT+6}, s{sT}, 40960")
        c(f"s_add_u32 s{sT+6}, s{sT+6}, {H_OFF}")
        c(f"s_add_u32 s{sT+7}, s{sT+6}, 20480")
        c(f"s_lshl_b32 s{sT+8}, s{sT}, 11")
        c(f"s_add_u32 s{sT+8}, s{sT+8}, {HST_OFF}")
        c(f"v_and_b32 v{t}, 31, v1")
        c(f"v_lshrrev_b32 v{t+1}, 5, v1")
        c(f"v_lshlrev_b32 v{t}, 2, v{t}")
        c(f"v_lshl_add_u32 v{t}, v{t+1}, 10, v{t}")
        c(f"v_bfe_u32 v{t+2}, v1, 2, 3")
        c(f"v_lshl_add_u32 v{t+2}, v{t+1}, 4, v{t+2}")
        c(f"v_mul_u32_u24 v{t+2}, 224, v{t+2}")
        c(f"s_and_b32 s{sT+9}, s{sFB}, 1")
        c(f"v_and_b32 v{t+3}, 3, v1")
        c(f"v_add_u32 v{t+3}, s{sT+9}, v{t+3}")
        c(f"v_lshl_add_u32 v60, v{t+3}, 3, v{t+2}")
        c(f"v_add_u32 v{t+2}, {9*7168}, v60")
        c(f"v_add_u32 v{t+3}, {18*7168}, v60")
        c(f"v_and_b32 v{t+4}, 48, v1")
        c(f"v_add_u32 v{t+4}, {self.RED}, v{t+4}")
        c(f"s_mul_i32 s{sT+9}, s{sW}, 5120")
        c(f"v_add_u32 v{t+5}, s{sT+9}, v{t+4}")
        c(f"s_lshl_b32 s{sT+9}, s{sT}, 7")
        c(f"s_add_u32 s{sT+9}, s{sT+9}, {F3_OFF - FL_OFF}")
        c(f"v_and_b32 v{self.vPOL}, 15, v1")
        c(f"v_lshl_add_u32 v{self.vPOL}, v{self.vPOL}, 2, s{sT+9}")
        c(f"s_lshl_b32 s{sT+9}, s{sW}, 5")
        c(f"v_add_u32 v52, s{sT+9}, v60")
        c(f"v_add_u32 v53, {9*7168}, v52")
        c(f"v_add_u32 v54, {18*7168}, v52")
        for j in range(4):
            c(f"v_mov_b32 v{56+j}, 0x3f803f80")

    def phase4(self):
        c, o = self.c, self.o
        ld = o.get('la', 'sc1')
        vAC, vW, vA, NR, vST, vCS = self.p4AC, self.p4W, self.p4A, self.p4NR, self.p4ST, self.p4CS
        t = 8
        c("s_barrier")
        wa = [60, t + 2, t + 3]
        rdw = lambda s: [I(f"ds_read_b64_tr_b16 {vr(vW+28*(s&1)+4*tl+2*q,2)}, v{wa[s//9]} offset:{(s%9)*7168 + q*1792 + tl*32}") for tl in range(7) for q in range(2)]
        vC, vONE, NB = vCS, 56, 14
        rd = lambda k: [I(f"ds_read_b64_tr_b16 {vr(vAC+4*(k%NB)+2*q,2)}, v{52+(k>>1)//9} offset:{((k>>1)%9)*7168 + q*1792 + (k&1)*128}") for q in range(2)]
        for k in range(7):
            c.add(rd(k))
        self.poll(self.vPOL)
        self.stamp("s3", "main p4")

        def lda(s):
            g = []
            for a in range(2):
                pre = [I(f"s_add_u32 s{sT+6+a}, s{sT+6+a}, 4096")] if s and s % 4 == 0 else []
                g.append(pre + [I(f"buffer_load_dwordx4 {vr(vA+8*(s%NR)+4*a,4)}, v{vL16}, {WSR}, s{sT+6+a} offen offset:{(s&3)*1024} {ld}")])
            return g
        for s in range(NR - 1):
            c.add(lda(s))
        self.flag_check(self.vFWD, self.vFWA)
        r0 = rdw(0)
        for k in range(40):
            d = vr(vC + 4 * (k & 1), 4)
            c(f"v_mfma_f32_16x16x32_bf16 {d}, {vr(vAC+4*(k%NB),4)}, {vr(vONE,4)}, {0 if k < 2 else d}")
            if k + 7 < 40:
                c.add(rd(k + 7))
            else:
                c.add(r0[:2]); r0 = r0[2:]
        self.stamp("csum", "p4")
        extra = [[I(f"buffer_load_dword v{vST+j}, v{t}, {WSR}, s{sT+8} offen offset:{j*128} {ld}")] for j in range(8)]
        misc = {0: [[I(f"ds_write_b128 v{t+5}, {vr(vC,4)}")], [I(f"ds_write_b128 v{t+5}, {vr(vC+4,4)} offset:64")]],
                2: [[I("s_barrier")]],
                3: [[I(f"ds_read_b128 {vr(vCS+4*tl,4)}, v{t+4} offset:{(tl&3)*5120 + (tl>>2)*64}")] for tl in range(3)],
                4: [[I(f"ds_read_b128 {vr(vCS+4*tl,4)}, v{t+4} offset:{(tl&3)*5120 + (tl>>2)*64}")] for tl in range(3, 5)],
                5: [[I(f"ds_read_b128 {vr(vCS+4*tl,4)}, v{t+4} offset:{(tl&3)*5120 + (tl>>2)*64}")] for tl in range(5, 7)]}
        misc[2][0].insert(0, W(misc[0][1][0]))
        fin = self.sub(self.p4_stats)
        for s in range(12, 20):
            n = -(-len(fin) // (20 - s))
            misc[s] = [fin[:n][i::3] and fin[:n][(i * n) // 3:((i + 1) * n) // 3] for i in range(3)]
            fin = fin[n:]
        for s in range(20):
            M = []
            for tl in range(7):
                for a in range(2):
                    d = vr(vAC + 28 * a + 4 * tl, 4)
                    M.append(I(f"v_mfma_f32_16x16x32_bf16 {d}, {vr(vW+28*(s&1)+4*tl,4)}, {vr(vA+8*(s%NR)+4*a,4)}, {0 if s == 0 else d}"))
            Rn = rdw(s + 1) if s < 19 else [[]] * 14
            F = (lda(s + NR - 1) if s + NR - 1 < 20 else [])
            ne = o.get('p4x', 2) if s + NR - 1 < 20 else o.get('p4y', 4)
            X = extra[:ne]; extra = extra[ne:]
            X += self.w2_take(ne - len(X), 64)
            F += X + misc.get(s, [])
            assert len(F) <= 7
            for k in range(14):
                c.add(M[k])
                c.add(Rn[k])
                if k % 2 and k // 2 < len(F):
                    c.add(F[k // 2])
            if s < 8 or s % 2:
                self.stamp(f"k{s}", "p4")
        self.stamp("p4")
        self.p4_epilogue('sc1')

    def p4_stats(self):
        c = self.c
        vST, t = self.p4ST, 8
        for j in range(1, 8):
            c(f"v_add_f32 v{vST}, v{vST}, v{vST+j}")
        c(f"v_mov_b32 v{vST+1}, v{vST}")
        c(f"v_permlane16_swap_b32 v{vST}, v{vST+1}")
        c(f"v_mul_f32 v{vST}, {hex(f2u(-1.0/640))}, v{vST}")
        c(f"v_mul_f32 v{vST+1}, {hex(f2u(1.0/640))}, v{vST+1}")
        c(f"v_fma_f32 v{vST+1}, -v{vST}, v{vST}, v{vST+1}")
        c(f"v_max_f32 v{vST+1}, 0, v{vST+1}")
        c(f"v_add_f32 v{vST+1}, {hex(f2u(1e-5))}, v{vST+1}")
        c(f"v_rsq_f32 v{vST+1}, v{vST+1}")
        nl = hex(f2u(-1.4426950408889634))
        c(f"v_mov_b32 v{vST+4}, {nl}")
        c(f"v_mov_b32 v{vST+5}, {nl}")
        c(f"v_mul_f32 v{vST+1}, v{vST+4}, v{vST+1}")
        c(f"v_mov_b32 v{vST+2}, v{vST}")
        c(f"v_mov_b32 v{vST+3}, v{vST+1}")
        c(f"v_permlane32_swap_b32 v{vST}, v{vST+2}")
        c(f"v_permlane32_swap_b32 v{vST+1}, v{vST+3}")
        c(f"s_mul_i32 s{sT+1}, s{sT}, {2*57344}")
        c(f"s_mul_i32 s{sT+2}, s{sFB}, 3584")
        c(f"s_add_u32 s{sT+1}, s{sT+1}, s{sT+2}")
        c(f"s_add_u32 s{sT+1}, s{sT+1}, {H1_OFF}")
        c(f"s_add_u32 s{sT+2}, s{sT+1}, 57344")
        c(f"v_bfe_u32 v{t+6}, v1, 4, 1")
        c(f"v_mul_u32_u24 v{t+6}, 57344, v{t+6}")
        c(f"v_and_b32 v{t+7}, 15, v1")
        c(f"v_lshl_add_u32 v{t+6}, v{t+7}, 4, v{t+6}")
        c(f"v_lshl_add_u32 v{t+6}, v{t+1}, 8, v{t+6}")
        c(f"s_lshr_b32 s{sT+13}, s{sT}, 1")
        c(f"s_lshl_b32 s{sT+13}, s{sT+13}, 7")
        c(f"s_and_b32 s{sT+3}, s{sW}, 1")
        c(f"s_lshl1_add_u32 s{sT+3}, s{sFB}, s{sT+3}")
        c(f"s_lshl2_add_u32 s{sT+13}, s{sT+3}, s{sT+13}")
        c(f"s_add_u32 s{sT+13}, s{sT+13}, {F4_OFF}")

    def p4_epilogue(self, st):
        c, o = self.c, self.o
        vAC, vW, vST, vCS = self.p4AC, self.p4W, self.p4ST, self.p4CS
        t = 8
        vE, vOUT = 52, vW
        groups = [[(a, 2 * P), (a, 2 * P + 1)] for P in range(3) for a in range(2)] + [[(0, 6), (1, 6)]]
        for gi, g in enumerate(groups):
            if gi < 5:
                c.add(self.w2_take(o.get('p4e', 3)))
            pairs = [(vAC + 28 * a + 4 * tl + 2 * q, vCS + 4 * tl + 2 * q, vST + 2 * a) for a, tl in g for q in range(2)]
            for r, cs, sv in pairs:
                c(f"v_pk_fma_f32 {vr(r,2)}, {vr(cs,2)}, {vr(sv,2)}, {vr(r,2)} op_sel_hi:[1,0,1]")
            for r, cs, sv in pairs:
                c(f"v_pk_mul_f32 {vr(r,2)}, {vr(r,2)}, {vr(sv,2)} op_sel:[0,1] op_sel_hi:[1,1]")
            for k, (r, cs, sv) in enumerate(pairs):
                c(f"v_exp_f32 v{vE+2*k}, v{r}")
                c(f"v_exp_f32 v{vE+2*k+1}, v{r+1}")
            for k in range(4):
                c(f"v_pk_fma_f32 {vr(vE+2*k,2)}, {vr(vE+2*k,2)}, {vr(vST+4,2)}, {vr(vST+4,2)}")
            for k in range(8):
                c(f"v_rcp_f32 v{vE+k}, v{vE+k}")
            for k, (r, cs, sv) in enumerate(pairs):
                c(f"v_pk_mul_f32 {vr(r,2)}, {vr(r,2)}, {vr(vE+2*k,2)}")
            out = vOUT + 4 * gi
            for k, (r, cs, sv) in enumerate(pairs):
                c(f"v_cvt_pk_bf16_f32 v{out+k}, v{r}, v{r+1}")
            if gi < 6:
                c(f"buffer_store_dwordx4 {vr(out,4)}, v{vL16}, {WSR}, s{sT+1+(gi&1)} offen offset:{(gi>>1)*1024} {st}")
            else:
                c(f"v_cmp_gt_u32 vcc, 48, v1")
                for k in range(4):
                    c(f"v_cndmask_b32 v{out+k}, 0, v{out+k}, vcc")
                c(f"v_permlane16_swap_b32 v{out}, v{out+2}")
                c(f"v_permlane16_swap_b32 v{out+1}, v{out+3}")
                h = c(f"buffer_store_dwordx4 {vr(out,4)}, v{t+6}, {WSR}, s{sT+1} offen offset:3072 {st}")
        self.stamp("p4epi")
        c.add(self.w2_take(70))
        self.p5_prep()
        c.wait(h)
        self.stamp("h1drain")
        self.flag_store_near(sT + 13)

    p5A, p5NR, p5AC, p5PB, p5SUM = 64, 20, 144, 208, 32

    def p5_prep(self):
        c = self.c
        t, rs, vSUM = 16, self.vRES, self.p5SUM
        c(f"s_mul_i32 s{sT+5}, s{sU}, {4*57344}")
        c(f"s_mul_i32 s{sT+6}, s{sW}, 14336")
        c(f"s_add_u32 s{sT+5}, s{sT+5}, s{sT+6}")
        c(f"s_add_u32 s{sT+5}, s{sT+5}, {H1_OFF}")
        for i, cc in enumerate(self.CORD):
            c(f"s_xor_b32 s{sT+6}, s{sW}, {cc}")
            c(f"s_mul_i32 s{sT+8+i}, s{sT+6}, 57344")
            c(f"s_add_u32 s{sT+8+i}, s{sT+8+i}, s{sT+5}")
        c(f"s_lshl_b32 s{sT+3}, s{sU}, 7")
        c(f"s_lshl_b32 s{sT+6}, s{sW}, 5")
        c(f"s_add_u32 s{sT+3}, s{sT+3}, s{sT+6}")
        c(f"s_add_u32 s{sT+3}, s{sT+3}, {F4_OFF - FL_OFF}")
        c(f"v_and_b32 v{self.vPOL}, 7, v1")
        c(f"v_lshl_add_u32 v{self.vPOL}, v{self.vPOL}, 2, s{sT+3}")

    def p5_prep2(self):
        c = self.c
        t, rs, vSUM = 16, self.vRES, self.p5SUM
        for i, cc in enumerate(self.CORD):
            c(f"s_xor_b32 s{sT+6}, s{sW}, {cc}")
            c(f"s_mul_i32 s{sT+6}, s{sT+6}, 15360")
            if 0 < i < 3:
                c(f"s_add_u32 s{sT+6}, s{sT+6}, {i*5120}")
            c(f"v_add_u32 v{t+6+i}, s{sT+6}, v{vL16}")
        for j in range(10):
            c(f"v_lshlrev_b32 v{vSUM+2*j}, 16, v{rs+j}")
            c(f"v_and_b32 v{vSUM+2*j+1}, s{sMASK}, v{rs+j}")
        c(f"s_lshl_b32 s{sT+6}, s{sW}, 12")
        c(f"s_add_u32 s{sT+6}, s{sT+6}, 65536")
        c(f"v_and_b32 v{t}, 15, v1")
        c(f"v_mul_u32_u24 v{t}, 160, v{t}")
        c(f"v_add_u32 v{t}, s{sT+6}, v{t}")
        c(f"v_lshrrev_b32 v{t+1}, 4, v1")
        c(f"v_lshl_add_u32 v{t+2}, v{t+1}, 3, v{t}")
        c(f"v_lshl_add_u32 v{t+1}, v{t+1}, 4, v{t}")
        c(f"v_add_u32 v{t}, s{sT+6}, v{vL16}")
        for j in range(3):
            c(f"v_add_u32 v{t+10}, {64*j}, v1")
            c(f"v_mul_u32_u24 v{t+11}, 6554, v{t+10}")
            c(f"v_lshrrev_b32 v{t+11}, 16, v{t+11}")
            c(f"v_mul_u32_u24 v{t+11}, {1280-160}, v{t+11}")
            c(f"v_lshl_add_u32 v{t+3+j}, v{t+10}, 4, v{t+11}")
        c(f"s_lshl2_add_u32 s{sT}, s{sU}, s{sW}")
        c(f"s_mul_i32 s{sT}, s{sT}, {16*1280}")
        c(f"s_mul_i32 s{sT+1}, s{sNB}, 160")
        c(f"s_add_u32 s{sT}, s{sT}, s{sT+1}")

    def phase5(self):
        c, o = self.c, self.o
        ld = o.get('la', 'sc1')
        vA, NR, vAC, vPB, vSUM = self.p5A, self.p5NR, self.p5AC, self.p5PB, self.p5SUM
        t = 16
        rs = self.vRES
        c("s_barrier")
        self.poll(self.vPOL)
        self.stamp("s4", "main p5")

        def lda(k):
            i, s = divmod(k, 14)
            pre = [I(f"s_add_u32 s{sT+8+i}, s{sT+8+i}, 4096")] if s and s % 4 == 0 else []
            return pre + [I(f"buffer_load_dwordx4 {vr(vA+4*(k%NR),4)}, v{vL16}, {WSR}, s{sT+8+i} offen offset:{(s&3)*1024} {ld}")]
        LA = o.get('p5la', 12)
        for k in range(LA):
            c.add(lda(k))
        self.p5_prep2()
        for i in range(4):
            ac = vAC + 20 * (i & 1)
            F = [[] for _ in range(70)]
            if i > 0:
                pa = vAC + 20 * ((i - 1) & 1)
                for tl in range(5):
                    F[3 + 5 * tl].append(I(f"ds_write_b128 v{t+6+i-1}, {vr(pa+4*tl,4)} offset:{tl*1024}"))
            if i == 3:
                F[27] += [I("s_waitcnt lgkmcnt(0)"), I("s_barrier")]
                k = 28
                for r in range(3):
                    for tl in range(5):
                        F[k + tl // 2] += [I(f"ds_read_b128 {vr(vPB+4*tl,4)}, v{t+9} offset:{r*5120 + tl*1024}")]
                    for j in range(10):
                        F[k + 4 + j] += [I(f"v_add_f32 v{vSUM+2*j}, v{vSUM+2*j}, v{vPB+2*j}"), I(f"v_add_f32 v{vSUM+2*j+1}, v{vSUM+2*j+1}, v{vPB+2*j+1}")]
                    k += 14
            for s in range(14):
                k = 14 * i + s
                for tl in range(5):
                    d = vr(ac + 4 * tl, 4)
                    c(f"v_mfma_f32_16x16x32_bf16 {d}, {self.w2reg(5*s+tl)}, {vr(vA+4*(k%NR),4)}, {0 if s == 0 else d}")
                    if tl == 0 and k + LA < 56:
                        c.add(lda(k + LA))
                    c.add(F[5 * s + tl])
                if s in (0, 4, 9, 13):
                    self.stamp(f"i{i}s{s}", "p5")
        self.stamp("p5")
        ac = vAC + 20
        for P in range(3):
            for j in range(4 * P, min(4 * P + 4, 10)):
                c(f"v_pk_add_f32 {vr(vSUM+2*j,2)}, {vr(vSUM+2*j,2)}, {vr(ac+2*j,2)}")
            for j in range(4 * P, min(4 * P + 4, 10)):
                c(f"v_cvt_pk_bf16_f32 v{rs+j}, v{vSUM+2*j}, v{vSUM+2*j+1}")
            if P < 2:
                c(f"ds_write_b128 v{t+1}, {vr(rs+4*P,4)} offset:{64*P}")
            else:
                c(f"ds_write_b64 v{t+2}, {vr(rs+8,2)} offset:128")
        for j in range(3):
            c(f"ds_read_b128 {vr(vPB+4*j,4)}, v{t} offset:{j*1024}")
        for j in range(3):
            if j == 2:
                c(f"s_not_b64 exec, s[{sHI}:{sHI+1}]")
            c(f"buffer_store_dwordx4 {vr(vPB+4*j,4)}, v{t+3+j}, s[{sOUT}:{sOUT+3}], s{sT} offen")
        c("s_mov_b64 exec, -1")

    def build(self):
        c = self.c
        self.prologue()
        self.phase1()
        self.attention()
        self.phase3()
        self.phase4()
        self.phase5()
        if self.o.get('stamps'):
            c("s_waitcnt vmcnt(0) lgkmcnt(0)")
            self.stamp("end")
            self.dump_stamps()
        if self.o.get('probe'):
            c("s_waitcnt vmcnt(0) lgkmcnt(0)")
            self.stamp("end")
            if 'pmask' in self.o:
                c(f"s_and_b32 s{sT}, s2, {self.o['pmask']}")
                c(f"s_cmp_lg_u32 s{sT}, {self.o['pval']}")
                c("s_cbranch_scc1 Lend")
            if self.o.get('pmin'):
                c(f"s_load_dwordx2 s[{sDBG}:{sDBG+1}], s[0:1], 56")
                c(f"s_not_b32 s{sT}, s{sST}")
                c(f"v_mov_b32 v2, s{sT}")
                c("v_mov_b32 v3, 0")
                c("s_mov_b64 exec, 1")
                c(f"global_atomic_umax v3, v2, s[{sDBG}:{sDBG+1}] sc1")
                c(f"s_sub_u32 s{sST}, s{sST}, 1000")
                c("Lprobe0:")
                c(f"s_memrealtime s[{sTM}:{sTM+1}]")
                c("s_waitcnt lgkmcnt(0)")
                c(f"s_sub_u32 s{sT}, s{sTM}, s{sST}")
                c(f"s_cmp_lt_i32 s{sT}, 0")
                c("s_cbranch_scc1 Lprobe0")
                c(f"global_load_dword v2, v3, s[{sDBG}:{sDBG+1}] sc1")
                c(f"v_readfirstlane_b32 s{sT}, v2")
                c(f"s_not_b32 s{sST}, s{sT}")
                c(f"s_add_u32 s{sST}, s{sST}, 1000")
            c("Lprobe:")
            c(f"s_memrealtime s[{sTM}:{sTM+1}]")
            c("s_waitcnt lgkmcnt(0)")
            c(f"s_sub_u32 s{sT}, s{sTM}, s{sST}")
            c(f"s_cmp_lt_i32 s{sT}, 0")
            c("s_cbranch_scc1 Lprobe")
        c("s_endpgm")
        c.add(self.ool.ins)
        c("Lend:")
        body = finalize(c)
        return f"""; Fused pre-LN sliding-window attention block + SiLU FFN (generated by work/gen.py)
; @launch grid=(256,1,1) block=(256,1,1) lds=163840
.amdgcn_target "amdgcn-amd-amdhsa--gfx950"
.text
.globl {NAME}_kernel
.p2align 8
.type {NAME}_kernel,@function
{NAME}_kernel:
{body}
  s_endpgm
Lcode_end:
.section .rodata,"a"
.p2align 6
.amdhsa_kernel {NAME}_kernel
  .amdhsa_next_free_vgpr 512
  .amdhsa_next_free_sgpr 102
  .amdhsa_accum_offset 256
  .amdhsa_group_segment_fixed_size 0
  .amdhsa_kernarg_size 72
  .amdhsa_user_sgpr_count 2
  .amdhsa_user_sgpr_kernarg_segment_ptr 1
  .amdhsa_system_sgpr_workgroup_id_x 1
.end_amdhsa_kernel
"""


def generate(**opt):
    g = Gen(opt)
    return g.build(), g


if __name__ == "__main__":
    opt = {}
    out = None
    for a in sys.argv[1:]:
        if '=' in a:
            k, v = a.split('=', 1)
            opt[k] = int(v) if v.lstrip('-').isdigit() else v
        else:
            out = a
    asm, g = generate(**opt)
    open(out or f"cdna_kernels/{NAME}.s", "w").write(asm)
    print(len(asm.splitlines()), "lines")
```

```python
import re

_REG = re.compile(r'^(-|\|)?(abs\()?([vas])(\d+|\[(\d+):(\d+)\])\)?\|?$')
TRANS = ('v_exp_', 'v_log_', 'v_rcp_', 'v_rsq_', 'v_sqrt_', 'v_sin_', 'v_cos_')


def regs_of(tok):
    tok = tok.strip()
    if tok == 'vcc':
        return [('s', 'vcc')]
    if tok == 'exec':
        return [('s', 'exec')]
    if tok == 'm0':
        return [('s', 'm0')]
    m = _REG.match(tok)
    if not m:
        return []
    f = m.group(3)
    if m.group(5) is not None:
        return [(f, i) for i in range(int(m.group(5)), int(m.group(6)) + 1)]
    return [(f, int(m.group(4)))]


def split_ops(s):
    out, depth, cur = [], 0, ''
    for ch in s:
        if ch in '[(':
            depth += 1
        if ch in '])':
            depth -= 1
        if ch == ',' and depth == 0:
            out.append(cur.strip())
            cur = ''
        else:
            cur += ch
    if cur.strip():
        out.append(cur.strip())
    return out


class Ins:
    __slots__ = ('text', 'op', 'kind', 'rd', 'wr', 'mf', 'wide', 'waits', 'cond', 'seq', 'lds_dma', 'cost')

    def __init__(self, text, waits=None, cond=False):
        self.text = text
        self.waits = waits or []
        self.cond = cond
        self.seq = None
        self.mf = None
        self.wide = False
        self.lds_dma = False
        self.cost = None
        self.parse()

    def parse(self):
        t = self.text.split(';')[0].strip()
        self.rd, self.wr = [], []
        if not t or t.startswith('.'):
            self.op, self.kind = t, 'dir'
            return
        if t.endswith(':'):
            self.op, self.kind = t, 'label'
            return
        parts = t.split(None, 1)
        op = parts[0]
        self.op = op
        ops = split_ops(parts[1]) if len(parts) > 1 else []
        mods = ''
        if ops:
            last = ops[-1].split(None, 1)
            ops[-1] = last[0]
            mods = last[1] if len(last) > 1 else ''
        R = [regs_of(o) for o in ops]
        fl = lambda xs: [r for x in xs for r in x]
        if op.startswith('v_mfma'):
            self.kind = 'mfma'
            self.wr = R[0]
            self.rd = fl(R[1:])
            self.mf = dict(d=R[0], a=R[1], b=R[2], c=R[3], p=(8 if '32x32' in op else 4))
        elif op.startswith('v_'):
            self.kind = 'valu'
            if op.startswith(('v_swap', 'v_permlane16_swap', 'v_permlane32_swap')):
                self.wr = fl(R[:2]); self.rd = fl(R[:2])
            elif op.startswith(('v_add_co', 'v_sub_co', 'v_addc_co', 'v_subb_co', 'v_subrev_co')):
                self.wr = fl(R[:2]); self.rd = fl(R[2:])
            elif op == 'v_nop':
                pass
            else:
                self.wr = R[0]; self.rd = fl(R[1:])
                if op.startswith(('v_fmac', 'v_dot2c', 'v_pk_fmac', 'v_writelane')) or '_dpp' in op or '_sdwa' in op:
                    self.rd = self.rd + R[0]
                if op.startswith('v_cmpx'):
                    self.wr = self.wr + [('s', 'exec')]
        elif op.startswith('ds_'):
            self.kind = 'ds'
            if op.startswith(('ds_read', 'ds_bpermute', 'ds_permute', 'ds_swizzle')) or '_rtn' in op:
                self.wr = R[0]; self.rd = fl(R[1:])
            else:
                self.rd = fl(R)
        elif op.startswith(('buffer_load', 'global_load')):
            self.kind = 'vmem'
            if ' lds' in (' ' + mods) or op.startswith('global_load_lds'):
                self.lds_dma = True
                self.rd = fl(R) + [('s', 'm0')]
            else:
                self.wr = R[0]; self.rd = fl(R[1:])
        elif op.startswith(('buffer_store', 'global_store', 'buffer_atomic', 'global_atomic')):
            self.kind = 'vmem'
            self.rd = fl(R)
            if op.endswith(('x3', 'x4')):
                self.wide = R[0] if op.startswith('buffer') else R[1]
        elif op.startswith(('buffer_inv', 'buffer_wbl2')):
            self.kind = 'vmem'
        elif op.startswith(('s_load', 's_memtime', 's_memrealtime', 's_buffer_load')):
            self.kind = 'smem'
            self.wr = R[0]; self.rd = fl(R[1:])
        elif op in ('s_waitcnt',):
            self.kind = 'wait'
        elif op == 's_nop':
            self.kind = 'nop'
        elif op.startswith(('s_branch', 's_cbranch', 's_setpc', 's_endpgm', 's_call')):
            self.kind = 'branch'
            if 'vcc' in op:
                self.rd = [('s', 'vcc')]
            self.rd += fl(R)
        elif op in ('s_barrier', 's_setprio', 's_sleep'):
            self.kind = 'misc'
        elif op.startswith('s_'):
            self.kind = 'salu'
            if op.startswith(('s_cmp', 's_bitcmp')):
                self.rd = fl(R)
            else:
                self.wr = R[0]; self.rd = fl(R[1:])
                if op.startswith(('s_addk', 's_mulk', 's_cmov')):
                    self.rd = self.rd + R[0]
                if 'saveexec' in op:
                    self.wr = self.wr + [('s', 'exec')]
        else:
            raise ValueError("unknown instruction: " + t)


class Code:
    def __init__(self):
        self.ins = []
        self._cond = False

    def __call__(self, text, waits=None):
        last = None
        for line in text.split('\n'):
            if line.strip():
                last = Ins(line.strip(), waits, self._cond)
                waits = None
                self.ins.append(last)
        return last

    def add(self, ins):
        if isinstance(ins, Ins):
            self.ins.append(ins)
        else:
            for i in ins:
                self.add(i)

    def cond(self, on):
        self._cond = on

    def wait(self, *handles):
        i = Ins('.wait', list(handles), self._cond)
        self.ins.append(i)
        return i


def I(text, waits=None):
    return Ins(text, waits)


def W(*handles):
    return Ins('.wait', list(handles))


def interleave(main, fill, start=0, end=None, lead=0):
    n = len(main)
    end = n if end is None else end
    slots = end - start
    out = []
    k = 0
    for i, m in enumerate(main):
        out.append(m)
        if start <= i < end:
            tgt = ((i - start + 1) * len(fill) + slots - 1) // slots
            while k < min(tgt + lead, len(fill)):
                out.append(fill[k]); k += 1
    out.extend(fill[k:])
    return out


def glue(lst):
    out = []
    for i in lst:
        if out and isinstance(i, Ins) and i.op.startswith(('s_cselect', 's_addc', 's_subb', 's_cbranch_scc')):
            out[-1] = flat(out[-1]) + [i]
        else:
            out.append(i)
    return out


def copy_ins(x):
    return Ins(x.text, list(x.waits), x.cond) if isinstance(x, Ins) else [copy_ins(i) for i in x]


def flat(x):
    if isinstance(x, Ins):
        return [x]
    o = []
    for i in x:
        o.extend(flat(i))
    return o


def insert_waits(ins):
    out = []
    vm_n = 0; vm_done = 0
    st = [0, 0]
    lg_n = 0; lg_done = 0
    smem_pending = False
    pend = {}
    saved = None
    snaps = {}
    for i in ins:
        if i.kind == 'dir' and i.text.startswith('.save'):
            snaps[i.text.split()[1]] = (vm_done, lg_done, smem_pending, dict(pend), vm_n, lg_n, list(st))
            continue
        if i.kind == 'dir' and i.text.startswith('.restore'):
            vm_done, lg_done, smem_pending, pend, vm_n, lg_n, st = snaps[i.text.split()[1]]
            pend = dict(pend); st = list(st)
            continue
        if i.cond and saved is None:
            saved = (vm_done, lg_done, smem_pending, dict(pend), vm_n, lg_n, list(st))
        if not i.cond and saved is not None:
            for r, (c, s) in pend.items():
                if r not in saved[3] or saved[3][r] != (c, s):
                    done = (c == 'vm' and s <= vm_done) or (c == 'lg' and s <= lg_done)
                    assert done, f"conditional region leaves pending load on {r}"
            vm_done, lg_done, smem_pending, pend, vm_n, lg_n, st = saved
            saved = None
        need_vm = need_lg = None
        need_sm = False
        if i.kind not in ('label',):
            for r in list(i.rd) + list(i.wr):
                if r in pend:
                    c, s = pend[r]
                    if c == 'vm' and s > vm_done:
                        need_vm = max(need_vm or 0, s)
                    elif c == 'lg' and s > lg_done:
                        need_lg = max(need_lg or 0, s)
                    elif c == 'sm':
                        need_sm = True
            for h in i.waits:
                assert h.seq is not None, f"wait on un-issued op {h.text}"
                if h.kind == 'vmem' and h.cost is not None:
                    if h.cost > st[1]:
                        need_vm = vm_n
                elif h.kind == 'vmem' and h.seq > vm_done:
                    need_vm = max(need_vm or 0, h.seq)
                elif h.kind == 'ds' and h.seq > lg_done:
                    need_lg = max(need_lg or 0, h.seq)
        w = []
        if need_vm is not None:
            n = min(vm_n - need_vm, 63)
            w.append(f"vmcnt({n})"); vm_done = max(vm_done, vm_n - n); st[1] = st[0] if n == 0 else st[1]
        if need_sm or (need_lg is not None and smem_pending):
            w.append("lgkmcnt(0)"); lg_done = lg_n; smem_pending = False
            pend = {r: v for r, v in pend.items() if v[0] != 'sm'}
        elif need_lg is not None:
            n = min(lg_n - need_lg, 15)
            w.append(f"lgkmcnt({n})"); lg_done = max(lg_done, lg_n - n)
        if w:
            out.append(Ins("s_waitcnt " + " ".join(w), cond=i.cond))
        if i.op == '.wait':
            continue
        if i.kind == 'wait':
            m = re.search(r'vmcnt\((\d+)\)', i.text)
            if m:
                vm_done = max(vm_done, vm_n - int(m.group(1))); st[1] = st[0] if int(m.group(1)) == 0 else st[1]
            m = re.search(r'lgkmcnt\((\d+)\)', i.text)
            if m:
                n = int(m.group(1))
                if n == 0:
                    lg_done = lg_n; smem_pending = False
                    pend = {r: v for r, v in pend.items() if v[0] != 'sm'}
                elif not smem_pending:
                    lg_done = max(lg_done, lg_n - n)
        for r in i.wr:
            pend.pop(r, None)
        if i.kind == 'vmem':
            vm_n += 1
            i.seq = vm_n
            for r in i.wr: pend[r] = ('vm', vm_n)
        elif i.kind == 'ds':
            lg_n += 1; i.seq = lg_n
            for r in i.wr: pend[r] = ('lg', lg_n)
        elif i.kind == 'smem':
            smem_pending = True
            for r in i.wr: pend[r] = ('sm', 0)
        out.append(i)
    return out


def _need(p, c):
    n = 0
    pw, cr, cw = set(p.wr), set(c.rd), set(c.wr)
    if p.kind == 'mfma':
        P = p.mf['p']
        if c.kind == 'mfma':
            if pw & set(c.mf['c']):
                if not (c.mf['c'] == p.mf['d'] and c.mf['p'] == P):
                    n = max(n, P + 2)
            if pw & (set(c.mf['a']) | set(c.mf['b'])):
                n = max(n, P + 4)
            if pw & cw and not (c.mf['c'] == p.mf['d'] and c.mf['p'] == P):
                n = max(n, P + 2)
        elif c.kind in ('valu', 'vmem', 'ds'):
            if pw & (cr | cw):
                n = max(n, P + 4)
            if c.kind == 'valu' and set(p.mf['c']) & cw:
                n = max(n, P - 1)
    elif p.kind == 'valu':
        vw = {r for r in pw if r[0] != 's'}
        sw = {r for r in pw if r[0] == 's'}
        if c.kind == 'mfma' and vw & cr:
            n = max(n, 2)
        if c.kind == 'mfma' and ('s', 'exec') in sw:
            n = max(n, 4)
        if c.kind == 'valu':
            if vw & cr:
                if c.op.startswith('v_permlane') or '_dpp' in c.op:
                    n = max(n, 2)
                if c.op.startswith(('v_readlane', 'v_readfirstlane')):
                    n = max(n, 1)
                if p.op.startswith(TRANS):
                    n = max(n, 1)
                if '_sdwa' in p.op or 'op_sel:' in p.text and not p.op.startswith('v_pk'):
                    n = max(n, 1)
            if sw & cr:
                n = max(n, 4 if c.op.startswith(('v_readlane', 'v_writelane')) else 2)
        if c.kind == 'vmem' and sw & cr:
            n = max(n, 5)
        if c.kind in ('salu', 'branch', 'smem') and sw & cr:
            n = max(n, 1)
        if c.kind in ('vmem', 'ds') and p.op.startswith(TRANS) and vw & cr:
            n = max(n, 1)
    elif p.kind == 'salu':
        if ('s', 'm0') in pw and c.lds_dma:
            n = max(n, 1)
    elif p.kind == 'vmem':
        if p.wide and set(p.wide) & cw:
            n = max(n, 2 if c.kind == 'valu' else 1)
    return n


def _worst(p):
    if p.kind == 'mfma':
        return p.mf['p'] + 4
    if p.kind == 'valu':
        return 5 if any(r[0] == 's' for r in p.wr) else 2
    if p.kind == 'salu' and ('s', 'm0') in p.wr:
        return 1
    if p.kind == 'vmem' and p.wide:
        return 2
    return 0


def insert_nops(ins):
    out = []
    hist = []
    region = 0
    prev_cond = False
    for i in ins:
        if i.kind == 'dir':
            out.append(i); continue
        if i.cond and not prev_cond:
            region += 1
        prev_cond = i.cond
        reg = region if i.cond else 0
        flush = i.kind in ('label', 'branch') and 'noflush' not in i.text
        own = 1 if i.kind == 'branch' else 0
        pad = 0
        for k in range(len(hist) - 1, -1, -1):
            p, _, pr = hist[k]
            if p is None:
                continue
            need = _need(p, i) if i.kind != 'label' else 0
            if flush:
                need = max(need, _worst(p) - own)
            if need <= 0:
                continue
            dist = sum(n for (_, n, r) in hist[k + 1:] if r == 0 or r == pr or r == reg)
            pad = max(pad, need - dist)
        while pad > 0:
            k = min(pad, 16)
            out.append(Ins(f"s_nop {k-1}"))
            hist.append((None, k, reg)); pad -= k
        out.append(i)
        if i.kind == 'label':
            continue
        if i.kind == 'nop':
            hist.append((None, int(i.text.split()[1]) + 1, reg))
        else:
            hist.append((i, 1, reg))
        tot = 0
        for k in range(len(hist) - 1, -1, -1):
            if hist[k][2] == 0:
                tot += hist[k][1]
            if tot > 24:
                hist = hist[k:]
                break
    return out


def finalize(code):
    ins = flat(code.ins)
    ins = insert_waits(ins)
    ins = insert_nops(ins)
    return "\n".join(("" if i.kind in ('label',) else "  ") + i.text for i in ins)


def vr(a, n=1, f='v'):
    return f"{f}{a}" if n == 1 else f"{f}[{a}:{a+n-1}]"


def ar(a, n=1):
    return vr(a, n, 'a')


def sr(a, n=1):
    return vr(a, n, 's')
```

```python
import sys, struct
from dsl import *

NAME = "sequential_preLN__sliding_block__dense_activation_silu__prompt"

QK_OFF = 0
V_OFF = QK_OFF + 32 * 163840
O_OFF = V_OFF + 64 * 40960
H_OFF = O_OFF + 32 * 81920
HST_OFF = H_OFF + 128 * 20480
H1_OFF = HST_OFF + 128 * 1024
WO_OFF = H1_OFF + 128 * 57344
W1_OFF = WO_OFF + 8 * 102400
W2_OFF = W1_OFF + 16 * 143360
RST_OFF = W2_OFF + 8 * 286720
CST_OFF = RST_OFF + 16 * 20480
FL_OFF = CST_OFF + 16 * 10240
F2_OFF = FL_OFF + 4096
F3_OFF = FL_OFF + 2 * 4096
F4_OFF = FL_OFF + 4 * 4096
FR_OFF = FL_OFF + 16 * 4096
FC_OFF = FR_OFF + 32768
FX_OFF = FC_OFF + 32768
FW2_OFF = FX_OFF + 32768
F1_OFF = FW2_OFF + 65536
FWO_OFF = F1_OFF + 32768
EP_OFF = FL_OFF + 8 * 4096
ST_OFF = FL_OFF + 72 * 4096
WS_SIZE = ST_OFF + 256 * 4 * 128

TAGC = 0x9E3779B8
SPIN_MAX = 200000
OOB = 0x7fff0000


def f2u(x):
    return struct.unpack('<I', struct.pack('<f', x))[0]


sX, sWQ, sWS, sKV, sOUT, sRP = 4, 8, 12, 16, 20, 24
sDBG, sWO, sW1, sW2 = 28, 30, 32, 34
sW, sTAG, sRB1, sCT, sU, sNB, sRB, sFB = 36, 37, 38, 39, 40, 41, 42, 43
sHI = 44
sMASK = 46
sHEAD = 47
sT = 48
sST = 101
sSAME, sXCC = 86, 87
sVM = 88
sWOO, sW1O, sW2B, sW2O = 90, 91, 92, 93
sFLB = 94
sW1M = 95
sTM = 96
sRPD, sRPF, sRPT = 98, 99, 100
WSR = f"s[{sWS}:{sWS+3}]"

vL16 = 2
vFLG = 254


class Gen:
    def __init__(self, opt):
        self.o = opt
        self.c = Code()
        self.ool = Code()
        self.stamp_names = []
        self.lab = 0
        self.ld = opt.get('ld', 'sc1')

    def label(self, base):
        self.lab += 1
        return f"L{base}_{self.lab}"

    def sub(self, fn, *a):
        k = Code()
        old, self.c = self.c, k
        fn(*a)
        self.c = old
        return k.ins

    def stamp(self, name, group='main'):
        if self.o.get('probe') and name in ('t0', self.o['probe']):
            self.c(f"s_memrealtime s[{sTM}:{sTM+1}]")
            self.c("s_waitcnt lgkmcnt(0)")
            self.c(f"s_add_u32 s{sST}, s{sTM}, 6000")
        if not self.o.get('stamps'):
            return
        if self.o.get('zoom', 'main') not in group.split() and name != 't0':
            return
        if name in self.stamp_names:
            idx = self.stamp_names.index(name)
        else:
            idx = len(self.stamp_names)
            self.stamp_names.append(name)
        assert idx < 32, name
        c = self.c
        c(f"{'s_memtime' if self.o.get('cyc') else 's_memrealtime'} s[{sTM}:{sTM+1}]")
        c("s_waitcnt lgkmcnt(0)")
        c(f"v_writelane_b32 v255, s{sTM}, {idx}")

    def dump_stamps(self):
        if not self.o.get('stamps'):
            return
        c = self.c
        c(f"s_lshl_b32 s{sT}, s2, 2")
        c(f"s_add_u32 s{sT}, s{sT}, s{sW}")
        c(f"s_lshl_b32 s{sT}, s{sT}, 7")
        c(f"s_add_u32 s{sT}, s{sT}, {ST_OFF}")
        c("v_lshlrev_b32 v3, 2, v1")
        c(f"s_not_b64 exec, s[{sHI}:{sHI+1}]")
        c(f"buffer_store_dword v255, v3, {WSR}, s{sT} offen")
        c("s_mov_b64 exec, -1")

    def prologue(self):
        c, o = self.c, self.o
        if o.get('stamps'):
            c("v_mov_b32 v255, 0")
        self.stamp("t0")
        c("s_cmp_ge_u32 s2, 256")
        c("s_cbranch_scc1 Lend")
        for _ in range(o.get('x_delay', 0)):
            c("s_sleep 32")
        c(f"s_load_dwordx2 s[{sX}:{sX+1}], s[0:1], 0")
        c(f"s_load_dwordx2 s[{sWQ}:{sWQ+1}], s[0:1], 8")
        c(f"s_load_dwordx2 s[{sWS}:{sWS+1}], s[0:1], 64")
        c(f"s_load_dwordx2 s[{sWO}:{sWO+1}], s[0:1], 16")
        c(f"s_load_dwordx4 s[{sW1}:{sW1+3}], s[0:1], 32")
        c(f"s_load_dwordx2 s[{sOUT}:{sOUT+1}], s[0:1], 48")
        c(f"s_getpc_b64 s[{sT}:{sT+1}]")
        c(f"s_lshr_b32 s{sT+3}, s2, 3")
        c(f"s_lshl_b32 s{sT+2}, s{sT+3}, 11")
        c(f"v_lshl_add_u32 v2, v0, 7, s{sT+2}")
        c("v_min_u32 v2, Lcode_end-Lpc0-256, v2")
        c("v_cmp_gt_u32 vcc, 16, v0")
        c(f"s_and_saveexec_b64 s[{sT+4}:{sT+5}], vcc")
        c("s_cbranch_execz Lpc0")
        c.cond(True)
        c(f"global_load_dword v253, v2, s[{sT}:{sT+1}]")
        c.ins[-1].wr = []
        c.cond(False)
        c("Lpc0:")
        c("s_mov_b64 exec, -1")
        c("v_lshrrev_b32 v2, 6, v0")
        c("v_and_b32 v1, 63, v0")
        c(f"v_readfirstlane_b32 s{sW}, v2")
        c(f"s_and_b32 s{sT}, s2, 7")
        if o.get('p1map', 'C') == 'C':
            c(f"s_lshr_b32 s{sRB1}, s{sT}, 1")
            c(f"s_and_b32 s{sT+2}, s{sT+3}, 3")
            c(f"s_lshl2_add_u32 s{sRB1}, s{sRB1}, s{sT+2}")
            c(f"s_lshr_b32 s{sT+2}, s{sT+2}, 1")
            c(f"s_lshr_b32 s{sCT}, s{sT+3}, 2")
            c(f"s_cmp_eq_u32 s{sCT}, 7")
            c(f"s_cselect_b32 s{sT+2}, s{sT+2}, 0")
            c(f"s_xor_b32 s{sT+2}, s{sT+2}, s{sT}")
            c(f"s_and_b32 s{sT+2}, s{sT+2}, 1")
            c(f"s_lshl3_add_u32 s{sCT}, s{sT+2}, s{sCT}")
        elif o.get('p1map') == 'A':
            c(f"s_lshr_b32 s{sRB1}, s{sT+3}, 4")
            c(f"s_lshl1_add_u32 s{sRB1}, s{sT}, s{sRB1}")
            c(f"s_and_b32 s{sCT}, s{sT+3}, 15")
        else:
            c(f"s_and_b32 s{sRB1}, s{sT}, 1")
            c(f"s_and_b32 s{sT+2}, s{sT+3}, 7")
            c(f"s_lshl3_add_u32 s{sRB1}, s{sRB1}, s{sT+2}")
            c(f"s_lshr_b32 s{sCT}, s{sT}, 1")
            c(f"s_lshr_b32 s{sT+2}, s{sT+3}, 3")
            c(f"s_lshl2_add_u32 s{sCT}, s{sCT}, s{sT+2}")
        for r, size in ((sX, 2048 * 1280), (sWQ, 640 * 3840)):
            c(f"s_mov_b32 s{r+2}, {size}")
            c(f"s_mov_b32 s{r+3}, 0x20000")

    def base_setup(self):
        c = self.c
        c(f"s_add_u32 s{sTM}, s{sWS}, {EP_OFF}")
        c(f"s_addc_u32 s{sTM+1}, s{sWS+1}, 0")
        c(f"s_load_dword s{sTAG}, s[{sTM}:{sTM+1}], 0")
        for r, size in ((sWS, WS_SIZE), (sOUT, 2048 * 1280)):
            c(f"s_mov_b32 s{r+2}, {size}")
            c(f"s_mov_b32 s{r+3}, 0x20000")
        c(f"s_mov_b32 s{sHI}, 0")
        c(f"s_mov_b32 s{sHI+1}, -1")
        c(f"s_mov_b32 s{sMASK}, 0xffff0000")
        c(f"s_mov_b32 s{sFLB}, {FL_OFF}")

    def common_setup(self):
        c = self.c
        c(f"s_and_b32 s{sT}, s2, 7")
        c(f"s_lshr_b32 s{sT+1}, s2, 3")
        c(f"s_lshr_b32 s{sU}, s{sT+1}, 3")
        c(f"s_lshl2_add_u32 s{sU}, s{sT}, s{sU}")
        c(f"s_and_b32 s{sNB}, s{sT+1}, 7")
        c(f"s_lshr_b32 s{sRB}, s{sU}, 1")
        c(f"s_and_b32 s{sFB}, s{sT+1}, 15")
        c(f"s_lshl2_add_u32 s{sHEAD}, s{sNB}, s{sW}")
        c(f"s_getreg_b32 s{sXCC}, hwreg(HW_REG_XCC_ID, 0, 4)")
        c(f"v_lshlrev_b32 v{vL16}, 4, v1")
        c(f"s_mul_i32 s{sWOO}, s{sHEAD}, 25600")
        c(f"s_add_u32 s{sWOO}, s{sWOO}, {WO_OFF}")
        c(f"s_mul_i32 s{sW1O}, s{sFB}, 216")
        c(f"s_and_b32 s{sW1O}, s{sW1O}, -16")
        c(f"s_mul_i32 s{sW1M}, s{sW}, {160*3456}")
        c(f"s_add_u32 s{sW1O}, s{sW1O}, s{sW1M}")
        c(f"s_mul_i32 s{sW1M}, s{sW}, {35*1024}")
        c(f"s_mul_i32 s{sW2B}, s{sHEAD}, {70*1024}")
        c(f"s_add_u32 s{sW2B}, s{sW2B}, {W2_OFF}")
        c(f"s_mul_i32 s{sT}, s{sW}, 640")
        c(f"s_lshl_b32 s{sT+1}, s{sNB}, 12")
        c(f"s_add_u32 s{sT}, s{sT}, s{sT+1}")
        c(f"s_add_u32 s{sT}, s{sT}, {FWO_OFF - FL_OFF}")
        c(f"v_min_u32 v{self.vWOF}, 4, v1")
        c(f"v_lshl_add_u32 v{self.vWOF}, v{self.vWOF}, 7, s{sT}")

    def tag_ready(self):
        self.c(f"s_add_u32 s{sTAG}, s{sTAG}, {TAGC}")

    def flag_store(self, so, R=WSR):
        c = self.c
        c(f"v_mov_b32 v{vFLG}, s{sTAG}")
        c(f"v_lshlrev_b32 v253, 2, v1")
        c(f"s_not_b64 exec, s[{sHI}:{sHI+1}]")
        h = c(f"buffer_store_dword v{vFLG}, v253, {R}, s{so} offen sc1")
        c("s_mov_b64 exec, -1")
        return h

    def poll(self, va, vd=vFLG, span=False, sleep=0):
        c = self.c
        L, Ld = self.label("pl"), self.label("pd")
        n = sT + 12
        c(f"s_mov_b32 s{n}, {SPIN_MAX}")
        c(f"{L}:")
        c(f"buffer_load_dword v{vd}, v{va}, {WSR}, s{sFLB} offen sc1")
        c(f"s_sub_u32 s{n}, s{n}, 1")
        c(f"s_cbranch_scc1 {Ld}")
        c("s_waitcnt vmcnt(0)")
        self.tag_cmp(vd, span)
        if sleep:
            c(f"s_cbranch_vccz {Ld}")
            c(f"s_sleep {sleep}")
            c(f"s_branch {L}")
        else:
            c(f"s_cbranch_vccnz {L}")
        c(f"{Ld}:")
        c("s_waitcnt vmcnt(0)")

    def tag_cmp(self, vd, span):
        c = self.c
        if span:
            c(f"v_subrev_u32 v253, s{sTAG}, v{vd}")
            c(f"v_cmp_le_u32 vcc, 16, v253")
        else:
            c(f"v_cmp_ne_u32 vcc, s{sTAG}, v{vd}")

    def flag_check(self, vd, va, span=False):
        c = self.c
        Ls, Lb = self.label("fs"), self.label("fb")
        self.tag_cmp(vd, span)
        c("s_nop 3")
        c(f"s_cbranch_vccnz {Ls} ; noflush")
        c(f"{Lb}: ; noflush")
        old, self.c = self.c, self.ool
        self.c(f"{Ls}:")
        self.c("s_nop 15")
        self.poll(va, vd, span, sleep=4)
        self.c(f"s_branch {Lb}")
        self.c = old

    def flag_store_near(self, so):
        c = self.c
        Lf, Lb = self.label("far"), self.label("near")
        c(f"v_mov_b32 v{vFLG}, s{sTAG}")
        c(f"s_cmp_eq_u32 s{sSAME}, 0")
        c("s_mov_b64 exec, 1")
        c(f"s_cbranch_scc1 {Lf} ; noflush")
        c(f"buffer_store_dword v{vFLG}, off, {WSR}, s{so}")
        c(f"{Lb}: ; noflush")
        c("s_mov_b64 exec, -1")
        k = self.ool
        k(f"{Lf}:")
        k(f"buffer_store_dword v{vFLG}, off, {WSR}, s{so} sc1")
        k(f"s_branch {Lb}")

    NS = 3
    P1_WB = 3 * 16384
    P1_EX = 6 * 16384
    vXD, vWD, vXA, vWA, vXS, vWS_, vSEL, vSQ, vTMP, vRS, vCS = 4, 8, 12, 14, 18, 22, 24, 23, 28, 36, 40
    vPA = 44
    vRP = 52
    vWOF, vWOD = 59, 60
    vW1D = 246
    vACC, vFR, vSF, vEP = 64, 128, 192, 208
    sKC, sKX, sKW, sW4 = sT + 8, sT + 9, sT + 10, sT + 11

    def p1_setup(self):
        c, o = self.c, self.o
        t = self.vTMP
        big, small = (sCT, sRB1) if o.get('p1map', 'C') == 'B' else (sRB1, sCT)
        c(f"s_mul_i32 s{sT}, s{big}, 3")
        c(f"s_add_u32 s{sT}, s{sT}, s{small}")
        c(f"s_mul_i32 s{sT+1}, s{sT}, 205")
        c(f"s_lshr_b32 s{sT+1}, s{sT+1}, 11")
        c(f"s_mul_i32 s{sT+1}, s{sT+1}, 10")
        c(f"s_sub_u32 s{self.sKC}, s{sT}, s{sT+1}")
        assert all((v * 205) >> 11 == v // 10 for v in range(64))
        c(f"s_lshl_b32 s{self.sW4}, s{sW}, 12")
        c(f"s_lshl2_add_u32 s{sT}, s{sRB1}, s{sW}")
        c(f"s_mul_i32 s{sT}, s{sT}, {32*1280}")
        c(f"v_lshrrev_b32 v{t}, 3, v1")
        c(f"v_mul_u32_u24 v{t}, 1280, v{t}")
        c(f"v_lshrrev_b32 v{t+1}, 4, v1")
        c(f"v_and_b32 v{t+2}, 7, v1")
        c(f"v_xor_b32 v{t+2}, v{t+2}, v{t+1}")
        c(f"v_lshlrev_b32 v{t+2}, 4, v{t+2}")
        c(f"v_add3_u32 v{self.vXD}, v{t+2}, v{t}, s{sT}")
        c(f"v_xor_b32 v{t+3}, 64, v{self.vXD}")
        c(f"s_cmp_ge_u32 s{sCT}, 10")
        c(f"s_cselect_b32 s{sT+1}, 10240, 0")
        c(f"s_add_u32 s{sT}, s{sT+1}, {10240-1024}")
        c(f"s_sub_u32 s{sT+1}, {2*(10240-1024)}, s{sT+1}")
        c(f"v_add_u32 v{self.vXD+1}, s{sT}, v{t+3}")
        c(f"v_add_u32 v{self.vXD+2}, s{sT+1}, v{self.vXD}")
        c(f"v_add_u32 v{self.vXD+3}, {3*(10240-1024)}, v{t+3}")
        c(f"s_mul_i32 s{sT}, s{sW}, {16*3840}")
        c(f"s_lshl_b32 s{sT+1}, s{sCT}, 8")
        c(f"s_add_u32 s{sT}, s{sT}, s{sT+1}")
        c(f"v_mul_u32_u24 v{t}, 3840, v{t+1}")
        c(f"v_and_b32 v{t+2}, 15, v1")
        c(f"v_lshlrev_b32 v{t+3}, 1, v{t+1}")
        c(f"v_xor_b32 v{t+2}, v{t+2}, v{t+3}")
        c(f"v_lshlrev_b32 v{t+2}, 4, v{t+2}")
        c(f"v_add3_u32 v{self.vWD}, v{t+2}, v{t}, s{sT}")
        c(f"v_xor_b32 v{t+3}, 128, v{self.vWD}")
        for j in range(1, 4):
            c(f"v_add_u32 v{self.vWD+j}, {j*(4*3840-1024)}, v{self.vWD if j < 2 else t+3}")

    def p1_dma(self, s):
        slot = s % self.NS
        pre = []
        if s > 0:
            pre += [I(f"s_add_u32 s{self.sKC}, s{self.sKC}, 1"),
                    I(f"s_cmp_eq_u32 s{self.sKC}, 10"),
                    I(f"s_cselect_b32 s{self.sKC}, 0, s{self.sKC}")]
        items = []
        for j in range(4):
            d = I(f"buffer_load_dwordx4 v{self.vXD+j}, s[{sX}:{sX+3}], s{self.sKX} offen offset:{j*1024} lds")
            items.append(([I(f"s_add_u32 m0, s{self.sW4}, {slot*16384}"), I(f"s_lshl_b32 s{self.sKX}, s{self.sKC}, 7")] if j == 0 else []) + [d])
        for j in range(4):
            d = I(f"buffer_load_dwordx4 v{self.vWD+j}, s[{sWQ}:{sWQ+3}], s{self.sKW} offen offset:{j*1024} lds")
            items.append(([I(f"s_add_u32 m0, s{self.sW4}, {self.P1_WB + slot*16384}"), I(f"s_mul_i32 s{self.sKW}, s{self.sKC}, {64*3840}")] if j == 0 else []) + [d])
        return pre, items, d

    def p1_setup2(self):
        c = self.c
        t = self.vTMP
        c(f"s_lshr_b32 s{sT}, s{sW}, 1")
        c(f"s_and_b32 s{sT+1}, s{sW}, 1")
        c(f"v_and_b32 v{t}, 15, v1")
        c(f"s_lshl_b32 s{sT+2}, s{sT}, 13")
        c(f"v_lshl_add_u32 v{t}, v{t}, 7, s{sT+2}")
        c(f"v_lshrrev_b32 v{t+5}, 4, v1")
        c(f"v_bfe_u32 v{t+2}, v1, 1, 3")
        c(f"v_xor_b32 v{t+3}, v{t+2}, v{t+5}")
        c(f"v_lshl_add_u32 v{self.vXA}, v{t+3}, 4, v{t}")
        c(f"v_xor_b32 v{self.vXA+1}, 64, v{self.vXA}")
        c(f"v_bfe_u32 v{t+3}, v1, 2, 2")
        c(f"v_lshl_add_u32 v{t}, v{t+5}, 3, v{t+3}")
        c(f"v_lshlrev_b32 v{t}, 8, v{t}")
        c(f"v_bfe_u32 v{t+5}, v1, 2, 3")
        c(f"v_lshl_add_u32 v{t}, v{t+5}, 5, v{t}")
        c(f"v_and_b32 v{t+5}, 3, v1")
        c(f"v_lshlrev_b32 v{t+5}, 3, v{t+5}")
        c(f"v_add_u32 v{t+5}, {self.P1_WB}, v{t+5}")
        c(f"v_add_u32 v{t}, v{t}, v{t+5}")
        c(f"s_lshl_b32 s{sT+2}, s{sT+1}, 7")
        c(f"v_xor_b32 v{self.vWA}, s{sT+2}, v{t}")
        for n in range(1, 4):
            c(f"v_xor_b32 v{self.vWA+n}, {n*32}, v{self.vWA}")
        c(f"v_and_b32 v{t+4}, 31, v1")
        c(f"v_lshrrev_b32 v{t+1}, 5, v1")
        c(f"v_lshl_add_u32 v{t}, v{t+4}, 7, s{self.sW4}")
        c(f"v_xor_b32 v{t+2}, v{t+2}, v{t+1}")
        c(f"v_lshl_add_u32 v{self.vXS}, v{t+2}, 4, v{t}")
        for p in range(1, 4):
            c(f"v_xor_b32 v{self.vXS+p}, {p*32}, v{self.vXS}")
        c(f"v_lshl_add_u32 v{t}, v{t+1}, 3, v{t+3}")
        c(f"v_lshl_add_u32 v{t}, v{t}, 8, v{t+5}")
        c(f"v_lshl_add_u32 v{t+3}, v{t+1}, 2, v{t+3}")
        c(f"v_bfe_u32 v{t+2}, v1, 4, 1")
        c(f"v_xor_b32 v{t+3}, v{t+3}, v{t+2}")
        c(f"v_lshl_add_u32 v{t}, v{t+3}, 5, v{t}")
        c(f"s_lshl_b32 s{sT+2}, s{sW}, 6")
        c(f"v_xor_b32 v{self.vWS_}, s{sT+2}, v{t}")
        c(f"v_lshrrev_b32 v{t}, 2, v1")
        c(f"v_xor_b32 v{t}, v{t}, v1")
        c(f"v_and_b32 v{t}, 4, v{t}")
        c(f"v_cmp_eq_u32 vcc, 0, v{t}")
        c(f"v_mov_b32 v{t}, 0x3f803f80")
        for j in range(4):
            c(f"v_cndmask_b32 v{self.vSEL+j}, 0, v{t}, vcc")
        c(f"v_mov_b32 v{self.vSQ}, 0")

    def p1_setup3(self, k0):
        c = self.c
        t = self.vTMP
        pa = self.vPA
        c(f"v_mov_b32 v{t+3}, {OOB}")
        for k, (role, other, off, sh) in enumerate(((sRB1, sCT, RST_OFF, 4), (sCT, sRB1, CST_OFF, 3))):
            c(f"s_lshl2_add_u32 s{sT+2}, s{role}, s{sW}")
            c(f"s_mul_i32 s{sT+2}, s{sT+2}, {320 << sh}")
            c(f"s_add_u32 s{sT+2}, s{sT+2}, {off}")
            c(f"v_lshl_add_u32 v{t}, v{t+4}, {sh}, s{sT+2}")
            c(f"v_mul_u32_u24 v{t+2}, {160 << sh}, v{t+1}")
            c(f"v_add_u32 v{pa+2+k}, v{t}, v{t+2}")
            c(f"s_lshl_b32 s{sT+2}, s{k0}, {5 + sh}")
            c(f"v_add_u32 v{t}, s{sT+2}, v{t}")
            c(f"s_cmp_lt_u32 s{other}, 10")
            c(f"s_cselect_b64 s[{sT+2}:{sT+3}], s[{sHI}:{sHI+1}], -1")
            c(f"v_cndmask_b32 v{pa+k}, v{t}, v{t+3}, s[{sT+2}:{sT+3}]")
        c(f"s_lshl_b32 s{sT+2}, s{sW}, 7")
        c(f"s_add_u32 s{sT+2}, s{sT+2}, {self.P1_EX}")
        c(f"v_lshl_add_u32 v{pa+6}, v{t+4}, 2, s{sT+2}")

    def fx_publish(self):
        return [I(f"s_lshl4_add_u32 s{sT}, s{sRB}, s{sFB}"),
                I(f"s_lshl_b32 s{sT}, s{sT}, 7"),
                I(f"s_add_u32 s{sT}, s{sT}, {FX_OFF}"),
                I(f"s_add_u32 s{sT+1}, s{sTAG}, s{sXCC}"),
                I(f"v_mov_b32 v61, s{sT+1}"),
                I(f"v_lshrrev_b32 v62, 5, v0"),
                I(f"v_lshlrev_b32 v62, 27, v62"),
                I(f"v_lshl_add_u32 v62, v0, 2, v62"),
                I(f"buffer_store_dword v61, v62, {WSR}, s{sT} offen sc1")]

    def p1_reads(self, s, p):
        slot = s % self.NS
        fr = self.vFR + 32 * p
        X = lambda a: [I(f"ds_read_b128 {vr(fr+4*a, 4)}, v{self.vXA+p} offset:{slot*16384 + a*2048}")]
        Wt = lambda n: [I(f"ds_read_b64_tr_b16 {vr(fr+16+4*n+2*t, 2)}, v{self.vWA+n} offset:{slot*16384 + p*8192 + t*1024}") for t in range(2)]
        return X(0) + Wt(0) + Wt(1) + X(1) + Wt(2) + X(2) + Wt(3) + X(3)

    def p1_stat_step(self, q):
        sf, t = self.vSF + 8 * (q & 1), self.vTMP
        r = [I(f"ds_read_b128 {vr(sf, 4)}, v{self.vXS+q}")]
        r += [I(f"ds_read_b64_tr_b16 {vr(sf+4+2*k, 2)}, v{self.vWS_} offset:{q*4096 + k*1024}") for k in range(2)]
        m = [I(f"v_mfma_f32_16x16x32_bf16 {vr(d,4)}, {vr(self.vSEL,4)}, {vr(src,4)}, {0 if q == 0 else vr(d,4)}") for d, src in ((self.vRS, sf), (self.vCS, sf + 4))]
        V = []
        for j in range(4):
            V += [I(f"v_lshlrev_b32 v{t+2*(j&1)}, 16, v{sf+j}"),
                  I(f"v_and_b32 v{t+1+2*(j&1)}, s{sMASK}, v{sf+j}"),
                  I(f"v_fmac_f32 v{self.vSQ}, v{t+2*(j&1)}, v{t+2*(j&1)}"),
                  I(f"v_fmac_f32 v{self.vSQ}, v{t+1+2*(j&1)}, v{t+1+2*(j&1)}")]
        return r, m, V

    def p1_stat_loads(self):
        q, pa = self.vEP, self.vPA
        return ([I(f"buffer_load_dwordx4 {vr(q+4*i,4)}, v{pa+2}, {WSR}, 0 offen offset:{i*512} sc1") for i in range(5)] +
                [I(f"buffer_load_dwordx2 {vr(q+20+2*i,2)}, v{pa+3}, {WSR}, 0 offen offset:{i*256} sc1") for i in range(5)])

    def p1_stat_tags(self):
        c = self.c
        q, x = self.vEP, self.vPA + 7
        c(f"v_xor_b32 v{x}, s{sTAG}, v{q+29}")
        for i in range(14):
            c(f"v_bitop3_b32 v{x}, v{q+1+2*i}, s{sTAG}, v{x} bitop3:0xbe")
        c(f"v_cmp_ne_u32 vcc, 0, v{x}")

    def p1_stat_check(self):
        c = self.c
        Ls, Lb, L = self.label("ss"), self.label("sb"), self.label("sl")
        c("s_nop 3")
        c(f"s_cbranch_vccnz {Ls} ; noflush")
        c(f"{Lb}: ; noflush")
        old, self.c = self.c, self.ool
        k = self.c
        k(f"{Ls}:")
        k("s_nop 15")
        k(f"s_mov_b32 s{sT+12}, {SPIN_MAX}")
        k(f"{L}:")
        k.add(self.p1_stat_loads())
        k("s_waitcnt vmcnt(0)")
        k(f"s_sub_u32 s{sT+12}, s{sT+12}, 1")
        k(f"s_cbranch_scc1 {Lb}")
        self.p1_stat_tags()
        k(f"s_cbranch_vccz {Lb}")
        k("s_sleep 4")
        k(f"s_branch {L}")
        self.c = old

    def p1_stats_finish(self, isv):
        c = self.c
        q, b, pa = self.vEP, self.vSF, self.vPA
        c(f"v_add_f32 v{b}, v{q}, v{q+4}")
        c(f"v_add_f32 v{b+1}, v{q+2}, v{q+6}")
        c(f"v_add_f32 v{b+10}, v{q+20}, v{q+22}")
        for i in range(2, 5):
            c(f"v_add_f32 v{b}, v{b}, v{q+4*i}")
            c(f"v_add_f32 v{b+1}, v{b+1}, v{q+4*i+2}")
            c(f"v_add_f32 v{b+10}, v{b+10}, v{q+20+2*i}")
        c(f"v_mov_b32 v{b+2}, v{b}")
        c(f"v_mov_b32 v{b+3}, v{b+1}")
        c(f"v_mov_b32 v{b+11}, v{b+10}")
        c(f"v_permlane32_swap_b32 v{b}, v{b+2}")
        c(f"v_permlane32_swap_b32 v{b+1}, v{b+3}")
        c(f"v_permlane32_swap_b32 v{b+10}, v{b+11}")
        c(f"v_add_f32 v{b}, v{b}, v{b+2}")
        c(f"v_add_f32 v{b+1}, v{b+1}, v{b+3}")
        c(f"v_mul_f32 v{b}, {hex(f2u(-1.0/640))}, v{b}")
        c(f"v_mul_f32 v{b+1}, {hex(f2u(1.0/640))}, v{b+1}")
        c(f"v_add_f32 v{b+10}, v{b+10}, v{b+11}")
        c(f"v_fma_f32 v{b+1}, -v{b}, v{b}, v{b+1}")
        c(f"ds_write_b32 v{pa+6}, v{b}")
        c(f"v_max_f32 v{b+1}, 0, v{b+1}")
        c(f"v_add_f32 v{b+1}, {hex(f2u(1e-5))}, v{b+1}")
        c(f"v_rsq_f32 v{b+1}, v{b+1}")
        c(f"ds_write_b32 v{pa+6}, v{b+10} offset:1024")
        if not isv:
            c(f"v_mul_f32 v{b+1}, s{sT+7}, v{b+1}")
        c(f"ds_write_b32 v{pa+6}, v{b+1} offset:512")

    def p1_ep_prep(self, isv):
        c = self.c
        t = self.vTMP
        EX = self.P1_EX
        c(f"s_lshr_b32 s{sT}, s{sW}, 1")
        c(f"s_and_b32 s{sT+1}, s{sW}, 1")
        c(f"s_lshl1_add_u32 s{sT+2}, s{sRB1}, s{sT}")
        c(f"s_lshl1_add_u32 s{sT+3}, s{sCT}, s{sT+1}")
        c(f"s_lshl_b32 s{sT}, s{sT}, 8")
        c(f"s_add_u32 s{sT}, s{sT}, {EX}")
        c(f"s_lshl_b32 s{sT+1}, s{sT+1}, 8")
        c(f"s_add_u32 s{sT+1}, s{sT+1}, {EX+1024}")
        c(f"v_lshrrev_b32 v{t+4}, 4, v1")
        c(f"v_and_b32 v{t+5}, 15, v1")
        c(f"v_lshl_add_u32 v{t}, v{t+5}, 2, s{sT+(1 if isv else 0)}")
        c(f"v_lshl_add_u32 v{t+1}, v{t+4}, 4, s{sT+(0 if isv else 1)}")
        if isv:
            c(f"v_and_b32 v{t+2}, 32, v1")
            c(f"v_add_u32 v{t+1}, v{t+1}, v{t+2}")
        c(f"v_mul_u32_u24 v{t+4}, {(10240 if isv else 512) - 256}, v{t+4}")
        c(f"v_add_u32 v{t+4}, v{vL16}, v{t+4}")
        c(f"s_lshl4_add_u32 s{sT+13}, s{sRB1}, s{sCT}")
        c(f"s_lshl_b32 s{sT+13}, s{sT+13}, 7")
        c(f"s_add_u32 s{sT+13}, s{sT+13}, {F1_OFF}")
        if not isv:
            qs = (20 ** -0.5) * 1.4426950408889634
            c(f"s_mul_i32 s{sT+4}, s{sT+2}, 163840")
            c(f"s_lshl_b32 s{sT+5}, s{sT+3}, 13")
            c(f"s_add_u32 s{sT+4}, s{sT+4}, s{sT+5}")
            c(f"s_add_u32 s{sT+5}, s{sT+4}, 4096")
            c(f"s_cmp_lt_u32 s{sCT}, 5")
            c(f"s_cselect_b32 s{sT+7}, {hex(f2u(qs))}, 1.0")
        else:
            c(f"s_mul_i32 s{sT+4}, s{sT+2}, 81920")
            c(f"s_lshl_b32 s{sT+5}, s{sT+3}, 10")
            c(f"s_add_u32 s{sT+4}, s{sT+4}, s{sT+5}")
            c(f"s_add_u32 s{sT+4}, s{sT+4}, {V_OFF - 10*2048}")
            c(f"s_add_u32 s{sT+5}, s{sT+4}, 40960")

    def p1_ep_reads(self, isv):
        t, e, u = self.vTMP, self.vEP, self.vRS
        r = []
        if not isv:
            r += [I(f"ds_read2_b32 {vr(u+2*a,2)}, v{t} offset0:{16*a} offset1:{128+16*a}") for a in range(4)]
            r += [I(f"ds_read_b128 {vr(e+4*n, 4)}, v{t+1} offset:{64*n}") for n in range(4)]
        else:
            r += [I(f"ds_read2_b32 {vr(u+2*k,2)}, v{t} offset0:{32*k} offset1:{32*k+16}") for k in range(2)]
            for a in range(4):
                off = (32 * (a >> 1) + 8 * (a & 1)) * 4
                r.append(I(f"ds_read_b128 {vr(e+4*a, 4)}, v{t+1} offset:{off}"))
                r.append(I(f"ds_read_b128 {vr(e+16+4*a, 4)}, v{t+1} offset:{512+off}"))
        return r

    P1_ORDER = [(0, 0), (0, 1), (1, 0), (1, 1), (0, 2), (1, 2), (2, 0), (2, 1), (2, 2), (0, 3), (1, 3), (2, 3), (3, 0), (3, 1), (3, 2), (3, 3)]

    def p1_loop(self, isv, h0, h1):
        c, o = self.c, self.o
        hd = {0: h0, 1: h1}
        pa = self.vPA
        c.wait(h0)
        c("s_barrier")
        self.stamp("b0", "main p1")
        R = self.p1_reads(0, 0)
        c.add(R)
        st = [self.p1_stat_step(q) for q in range(4)]
        c.add(st[0][0])
        pre, dma, hd[2] = self.p1_dma(2)
        c.add(pre); c.add(dma[:4]); dma = dma[4:]
        extra = {k: [] for k in range(20)}
        mem = {k: [] for k in range(20)}
        pub = self.sub(self.tag_ready) + [
               I(f"v_mov_b32 v{self.vRS+2}, v{self.vSQ}"), I(f"v_mov_b32 v{self.vRS+1}, s{sTAG}"), I(f"v_mov_b32 v{self.vRS+3}, s{sTAG}"),
               I(f"v_permlane32_swap_b32 v{self.vRS+2}, v{self.vSQ}"), I(f"v_mov_b32 v{self.vCS+1}, s{sTAG}"),
               I(f"v_add_f32 v{self.vRS+2}, v{self.vRS+2}, v{self.vSQ}"),
               I(f"buffer_store_dwordx4 {vr(self.vRS,4)}, v{pa}, {WSR}, 0 offen sc1"),
               I(f"buffer_store_dwordx2 {vr(self.vCS,2)}, v{pa+1}, {WSR}, 0 offen sc1")]
        extra[2] = [[], [], [], []] + pub
        cs = self.fx_publish() + self.late_setup + glue(self.sub(self.p1_ep_prep, isv))
        per = -(-len(cs) // 13)
        for k in range(13):
            extra[3 + k] = [copy_ins(x) for x in cs[k * per:(k + 1) * per]]
        extra[12].append(I(f"buffer_load_dword v{self.vWOD}, v{self.vWOF}, {WSR}, s{sFLB} offen sc1"))
        stl = self.p1_stat_loads()
        mem[15] = stl[:5]; mem[16] = stl[5:]
        wo = self.wo_loads()[:o.get('wot', 12)]
        if wo:
            extra[16].append(self.sub(self.flag_check, self.vWOD, self.vWOF))
        per = -(-len(wo) // 3)
        for k in range(3):
            mem[17 + k] = wo[k * per:(k + 1) * per]
        fin = self.sub(self.p1_stats_finish, isv)
        extra[18] = self.sub(self.p1_stat_tags) + [self.sub(self.p1_stat_check)] + fin[:14]
        for s in range(10):
            for p in range(2):
                k = 2 * s + p
                fr = self.vFR + 32 * p
                M = []
                for a, n in self.P1_ORDER:
                    d = vr(self.vACC + 16 * a + 4 * n, 4)
                    xa, wb = vr(fr + 4 * a, 4), vr(fr + 16 + 4 * n, 4)
                    A, B = (xa, wb) if isv else (wb, xa)
                    M.append(I(f"v_mfma_f32_16x16x32_bf16 {d}, {A}, {B}, {0 if k == 0 else d}"))
                G = [[] for _ in range(16)]
                F = [[] for _ in range(16)]
                if k:
                    if p == 0:
                        M[0].waits = [R[5]]; M[4].waits = [R[11]]
                    else:
                        M[0].waits = [R[11]]
                g0 = 0
                if p == 0:
                    R = self.p1_reads(s, 1)
                elif s < 9:
                    R = self.p1_reads(s + 1, 0)
                    if s == 0:
                        g0 = 3
                    G[g0] = [W(hd[s + 1])] + ([I("s_waitcnt lgkmcnt(0)")] if s == 0 else []) + [I("s_barrier")]
                else:
                    R = []
                for j, r in enumerate(R):
                    G[g0 + j].append(r)
                if p == 0 and s + 3 < 10:
                    pre, nxt, hd[s + 3] = self.p1_dma(s + 3)
                    G[15].append(pre)
                if p == 1 and s + 3 < 10:
                    dma = nxt
                D = dma[:4] + mem[k]; dma = dma[4:]
                for j, d in enumerate(D):
                    g = 16 - len(D) + j
                    if o.get('dspread', 1):
                        g = g0 + 2 + j * (14 - g0) // len(D) if len(D) != 4 or g0 else 2 + 4 * j
                    d = flat(d)
                    F[g] += d[:-1]; G[g].insert(0, d[-1])
                X = extra[k]
                if k == 19:
                    for j, x in enumerate(fin[14:]):
                        G[j // 3].append(x)
                    G[7] += [I("s_waitcnt lgkmcnt(0)"), I("s_barrier")]
                    for j, r in enumerate(self.p1_ep_reads(isv)):
                        G[8 + j * 7 // 10].append(r)
                for j, x in enumerate(X):
                    G[1 + j * 14 // len(X)].append(x)
                if s == 0:
                    for h in range(2):
                        q = 2 * p + h
                        if q < 3:
                            G[8 * h].append(st[q + 1][0])
                        for j, v in enumerate(st[q][2]):
                            G[8 * h + j // 2].append(v)
                        G[8 * h + 7].append(st[q][1])
                for g in range(16):
                    c.add(F[g]); c.add(M[g]); c.add(G[g])
                if o.get('x_pad') and s >= o.get('x_pads', 0):
                    for _ in range(o['x_pad']):
                        c("s_nop 7")
                if p == 1 or s >= 7:
                    self.stamp(f"e{s}{p}", "p1")

    def p1_epilogue(self, isv):
        c = self.c
        t, e, u = self.vTMP, self.vEP, self.vRS
        ob = self.vFR
        for k in range(8):
            out = ob + 4 * k
            if not isv:
                n, lo = k >> 1, k & 1
                rr = [(self.vACC + 16 * a + 4 * n + 2 * q, e + 4 * n + 2 * q, u + 2 * a) for a in (lo, lo + 2) for q in range(2)]
                for r, cs, sv in rr:
                    c(f"v_pk_fma_f32 {vr(r,2)}, {vr(cs,2)}, {vr(sv,2)}, {vr(r,2)} op_sel_hi:[1,0,1]")
                for r, cs, sv in rr:
                    c(f"v_pk_mul_f32 {vr(r,2)}, {vr(r,2)}, {vr(sv,2)} op_sel:[0,1] op_sel_hi:[1,1]")
                so, off = sT + 4 + (n >> 1), (n & 1) * 2048 + lo * 256
            else:
                T, n = k >> 2, k & 3
                sel = "op_sel_hi:[1,0,1]" if n % 2 == 0 else "op_sel:[0,1,0] op_sel_hi:[1,1,1]"
                rr = [(self.vACC + 16 * a + 4 * n + 2 * q, e + 4 * a + 2 * q, 0) for a in (2 * T, 2 * T + 1) for q in range(2)]
                for r, nm, _ in rr:
                    c(f"v_pk_fma_f32 {vr(r,2)}, {vr(nm,2)}, {vr(u+(n&2),2)}, {vr(r,2)} {sel}")
                for r, nm, _ in rr:
                    c(f"v_pk_mul_f32 {vr(r,2)}, {vr(r,2)}, {vr(nm+16,2)}")
                so, off = sT + 4 + T, n * 256
            for q, (r, _, _) in enumerate(rr):
                c(f"v_cvt_pk_bf16_f32 v{out+q}, v{r}, v{r+1}")
            h = c(f"buffer_store_dwordx4 {vr(out,4)}, v{t+4}, {WSR}, s{so} offen offset:{off} sc1")
        return h

    def phase1(self):
        c, o = self.c, self.o
        self.p1_setup()
        c(f"s_cmp_eq_u32 s{sCT}, 15")
        c("s_waitcnt lgkmcnt(0)")
        c("s_cbranch_scc1 Lp1_idle")
        c(".save p0")
        self.stamp("start")
        pre, d0, h0 = self.p1_dma(0)
        c.add(d0)
        c(f"s_mov_b32 s{sT+14}, s{self.sKC}")
        pre, d1, h1 = self.p1_dma(1)
        c.add(pre); c.add(d1[:4])
        self.base_setup()
        self.p1_setup2()
        c.add(d1[4:])
        self.p1_setup3(sT + 14)
        self.common_setup()
        late = glue(self.sub(self.rp_setup_unit) + self.sub(self.v_const) + self.sub(self.w1_offsets))
        ne = o.get('early', 60)
        assert 28 <= ne <= 115
        c.add(late[:ne]); self.late_setup = late[ne:]
        c(f"s_cmp_ge_u32 s{sCT}, 10")
        c("s_cbranch_scc1 Lp1_v")
        c(".save p1")
        for isv in (False, True):
            if isv:
                c("Lp1_v:")
                c(".restore p1")
            self.p1_loop(isv, h0, h1)
            self.stamp("p1loop")
            h = self.p1_epilogue(isv)
            if not isv:
                c("s_branch Lp1_done")
        c("Lp1_done:")
        self.stamp("p1epi")
        n0 = o.get('wot', 12)
        self.woq = self.wo_loads()[n0:]
        self.w1q, self.w2q = list(range(35)), list(range(70))
        KV = f"s[{sKV}:{sKV+3}]"
        c("Lp1_join:")
        self.rp_w2_offsets()
        d = self.rp_dma(5, self.RED, 5120)
        if o.get('w2early', 1):
            c.add(d)
        nb_ = o.get('wob', 0)
        if not n0:
            self.flag_check(self.vWOD, self.vWOF)
        c.add(self.woq[:nb_]); self.woq = self.woq[nb_:]
        init = glue(self.sub(self.attn_init) + self.sub(self.attn_prep))
        na = o.get('inita', 70)
        c.add(init[:na])
        self.stamp("ainit")
        c.wait(h)
        self.stamp("p1drain")
        c("s_barrier")
        lab = self.label("f1")
        c(f"s_cmp_lg_u32 s{sW}, 3")
        c(f"s_cbranch_scc1 {lab}")
        c.cond(True)
        self.flag_store(sT + 13)
        c.cond(False)
        c(f"{lab}:")
        c(f"s_mov_b32 s{sKV+2}, s{sRPT}")
        it = self.rp_items(5, 16, 0, 64, KV)
        it[0].waits = [d[-1][-1]]
        it = self.only_waves(False, self.sub(self.rp_addr, 16, 160, self.RED, 5120, False, 82) + it)
        c.add(it if o.get('w2early', 1) else d)
        c(f"s_mov_b32 s{sWQ}, s{sW1}")
        c(f"s_mov_b32 s{sWQ+1}, s{sW1+1}")
        c(f"s_mov_b32 s{sWQ+2}, {640*3456}")
        nc_ = o.get('woc', 25)
        ld = self.woq[:nc_] + self.w1_take(o.get('w1s', 0)); self.woq = self.woq[nc_:]
        c.add(interleave(init[na:], ld))
        if not o.get('w2early', 1):
            c.add(it)
        self.stamp("join")
        old, self.c = self.c, self.ool
        self.idle_path(n0)
        self.c = old

    def idle_path(self, n0):
        c = self.c
        P = self.RPP
        gw = sT + 8
        KV = f"s[{sKV}:{sKV+3}]"
        c("Lp1_idle:")
        c(".restore p0")
        self.base_setup()
        self.common_setup()
        c(f"s_lshl2_add_u32 s{gw}, s{sRB1}, s{sW}")
        c(f"s_mov_b32 s{sKV}, s{sWS}")
        c(f"s_mov_b32 s{sKV+1}, s{sWS+1}")
        c(f"s_mov_b32 s{sKV+3}, 0x20000")
        hd = {}
        for r in range(3):
            self.rp_setup_wo(gw, r)
            d = self.rp_dma(5, r * 5120, 40960, fl='')
            c.add(d); hd['o', r] = d[-1][-1]
        c(f"s_mov_b32 s{sRP}, s{sW1}")
        c(f"s_mov_b32 s{sRP+1}, s{sW1+1}")
        c(f"s_mov_b32 s{sRP+2}, {640*3456}")
        c(f"v_lshlrev_b32 v8, 7, v1")
        tm = self.o.get('tmode', 0)
        if tm == 0:
            c(f"s_lshl_b32 s{sT+9}, s{gw}, 13")
        else:
            c(f"s_and_b32 s{sT+9}, s{gw}, 7")
            c(f"s_lshl_b32 s{sT+9}, s{sT+9}, 13")
            if tm == 1:
                c(f"s_and_b32 s{sT+10}, s2, 7")
                c(f"s_mul_i32 s{sT+10}, s{sT+10}, {80*3456}")
                c(f"s_add_u32 s{sT+9}, s{sT+9}, s{sT+10}")

        def touch(j):
            c(f"buffer_load_dword v240, v8, s[{sRP}:{sRP+3}], s{sT+9} offen")
            c.ins[-1].wr = []
            if tm == 2:
                st = lambda q: ((q // 2) % 4 * 5 + q // 8) * 32 * 3456 + (q % 2) * 45056
                c(f"s_add_u32 s{sT+9}, s{sT+9}, {(st(j+1) - st(j)) & 0xffffffff}")
                return
            c(f"s_add_u32 s{sT+9}, s{sT+9}, {64*8192 if tm == 0 else 8*8192}")
            if tm == 1:
                c(f"s_cmp_ge_u32 s{sT+9}, {640*3456}")
                c(f"s_cselect_b32 s{sT+10}, {640*3456}, 0")
                c(f"s_sub_u32 s{sT+9}, s{sT+9}, s{sT+10}")
        self.tag_ready()
        c.add(self.fx_publish())
        c(f"v_mov_b32 v{vFLG}, s{sTAG}")
        self.rp_addr(16, 160, 0, 40960, False)

        def params(kind, r):
            if kind == 'o':
                self.rp_params_wo(gw, r)
                c(f"s_cmp_lg_u32 s{sRPT}, 0")
                c(f"s_cselect_b32 s{sKV+2}, {WS_SIZE}, 0")
        hs = {}

        def proc(kind, r, n):
            params(kind, r)
            c.wait(hd[kind, r])
            it = self.rp_items(5, 16, r * 5120, 64 + 20 * n, KV)
            c.add(it); hs[kind, r] = flat(it)[-1]

        def flag(kind, r):
            params(kind, r)
            c.wait(hs[kind, r])
            self.flag_store(sRPF, KV)
        nt0 = self.o.get('touch0', 0)
        dbg = self.o.get('idledbg')
        if dbg: self.stamp("start")
        for j in range(nt0):
            touch(j)
        if dbg: c.wait(hd['o', 0]); self.stamp("b0")
        for r in range(3):
            proc('o', r, r)
        if dbg: self.stamp("p1epi")
        for r in range(3):
            flag('o', r)
        if dbg: self.stamp("ainit")
        if self.o.get('fltouch', 1):
            c(f"s_lshl_b32 s{sT}, s{sRB1}, 11")
            c(f"s_add_u32 s{sT}, s{sT}, {F1_OFF}")
            c(f"v_and_b32 v9, 0x780, v8")
            c(f"buffer_load_dword v240, v9, {WSR}, s{sT} offen")
            c.ins[-1].wr = []
        for j in range(nt0, self.o.get('touchn', 5)):
            touch(j)
        self.stamp("p1loop")
        lab = self.label("ep")
        c(f"s_cmp_lg_u32 s{gw}, {99 if self.o.get('x_noepoch') else 63}")
        c(f"s_cbranch_scc1 {lab}")
        c(f"v_lshlrev_b32 v8, 7, v1")
        for j in range(4):
            c(f"v_add_u32 v9, {FX_OFF - FL_OFF + j*8192}, v8")
            self.poll(9, span=True, sleep=16)
        c(f"s_mov_b32 s{sT}, {EP_OFF}")
        self.flag_store(sT)
        c(f"{lab}:")
        self.rp_setup_unit()
        self.w1_offsets()
        self.v_const()
        c(f"s_lshl_b32 s{sT+13}, s{sRB1}, 11")
        c(f"s_add_u32 s{sT+13}, s{sT+13}, {F1_OFF + 15*128}")
        self.poll(self.vWOF, self.vWOD, sleep=8)
        c("s_barrier")
        c.add(self.wo_loads()[:n0])
        c("s_branch Lp1_join")

    RPP = dict(pitch=sT, col=sT + 1, nch=sT + 2, mch=sT + 3, v0=sT + 4, dm=sT + 5, dd=sT + 6, aa=sT + 7, lim=sT + 12, r0=sT + 13, u=sT + 14)

    def rp_params_wo(self, gw, r):
        c = self.c
        u = self.RPP['u']
        c(f"s_add_u32 s{u}, s{gw}, {64*r}")
        c(f"s_cmp_lt_u32 s{u}, 160")
        c(f"s_cselect_b32 s{sRPT}, 1, 0")
        c(f"s_and_b32 s{u+1}, s{u}, 7")
        c(f"s_lshr_b32 s{u}, s{u}, 3")
        c(f"s_mul_i32 s{sRPD}, s{u+1}, 20")
        c(f"s_add_u32 s{sRPD}, s{sRPD}, s{u}")
        c(f"s_mul_i32 s{sRPD}, s{sRPD}, 5120")
        c(f"s_add_u32 s{sRPD}, s{sRPD}, {WO_OFF}")
        c(f"s_lshl_b32 s{sRPF}, s{u+1}, 5")
        c(f"s_add_u32 s{sRPF}, s{sRPF}, s{u}")
        c(f"s_lshl_b32 s{sRPF}, s{sRPF}, 7")
        c(f"s_add_u32 s{sRPF}, s{sRPF}, {FWO_OFF}")

    def rp_setup_wo(self, gw, r):
        c = self.c
        P = self.RPP
        u = P['u']
        c(f"s_mov_b32 s{sRP}, s{sWO}")
        c(f"s_mov_b32 s{sRP+1}, s{sWO+1}")
        c(f"s_mov_b32 s{sRP+2}, {640*1280}")
        c(f"s_mov_b32 s{sRP+3}, 0x20000")
        self.rp_params_wo(gw, r)
        c(f"s_mov_b32 s{P['pitch']}, 1280")
        c(f"s_mov_b32 s{P['nch']}, 10")
        c(f"s_mov_b32 s{P['mch']}, 6554")
        c(f"s_mul_i32 s{P['r0']}, s{u}, 52")
        c(f"s_lshr_b32 s{P['r0']}, s{P['r0']}, 8")
        c(f"s_mul_i32 s{P['dd']}, s{P['r0']}, 5")
        c(f"s_sub_u32 s{P['dd']}, s{u}, s{P['dd']}")
        c(f"s_mul_i32 s{P['r0']}, s{P['r0']}, 160")
        c(f"s_mul_i32 s{P['aa']}, s{P['dd']}, 40")
        c(f"s_cmp_eq_u32 s{P['dd']}, 4")
        c(f"s_cselect_b32 s{P['aa']}, 16, s{P['aa']}")
        c(f"s_cselect_b32 s{P['dm']}, 4, 1")
        c(f"s_cselect_b32 s{P['dd']}, 4, 16")
        c(f"s_lshl_b32 s{P['dm']}, s{P['dm']}, 12")
        c(f"s_add_u32 s{P['r0']}, s{P['r0']}, s{P['aa']}")
        c(f"s_mov_b32 s{P['aa']}, 20")
        c(f"s_mov_b32 s{P['v0']}, 0")
        c(f"s_mov_b32 s{P['lim']}, 64")
        c(f"s_mul_i32 s{P['col']}, s{u+1}, 160")
        assert all((v * 52) >> 8 == v // 5 for v in range(24))
        self.rp_offsets(5)

    def rp_setup_unit(self):
        c = self.c
        t = self.vTMP
        u, sl, r0, p0, col = sT, sT + 1, sT + 2, 79, 80
        c(f"s_mov_b32 s{sRP}, s{sW2}")
        c(f"s_mov_b32 s{sRP+1}, s{sW2+1}")
        c(f"s_mov_b32 s{sRP+3}, 0x20000")
        c(f"s_lshl1_add_u32 s{u}, s2, s{sW}")
        c(f"s_lshr_b32 s{sl}, s{sW}, 1")
        c(f"s_lshl_b32 s{sl}, s{sl}, 10")
        c(f"s_add_u32 s{sl}, s{sl}, s{u}")
        c(f"s_cmp_lt_u32 s{sl}, 448")
        c(f"s_cselect_b32 s{sRP+2}, {1728*1280}, 0")
        c(f"s_cselect_b32 s{sRPT}, {WS_SIZE}, 0")
        c(f"s_and_b32 s{sl}, s{u}, 7")
        c(f"s_lshr_b32 s{u}, s{u}, 3")
        c(f"s_mul_i32 s{r0}, s{u}, 18726")
        c(f"s_lshr_b32 s{r0}, s{r0}, 16")
        c(f"s_mul_i32 s{col}, s{r0}, 14")
        c(f"s_lshl_b32 s{p0}, s{u}, 2")
        c(f"s_sub_u32 s{p0}, s{p0}, s{col}")
        c(f"s_mul_i32 s{r0}, s{r0}, {108*1280}")
        c(f"s_mul_i32 s{col}, s{sl}, 160")
        c(f"s_add_u32 s{col}, s{col}, s{r0}")
        c(f"s_mul_i32 s{sRPD}, s{sl}, 56")
        c(f"s_add_u32 s{sRPD}, s{sRPD}, s{u}")
        c(f"s_mul_i32 s{sRPD}, s{sRPD}, 5120")
        c(f"s_add_u32 s{sRPD}, s{sRPD}, {W2_OFF}")
        c(f"s_lshl_b32 s{sRPF}, s{sl}, 6")
        c(f"s_add_u32 s{sRPF}, s{sRPF}, s{u}")
        c(f"s_lshl_b32 s{sRPF}, s{sRPF}, 7")
        c(f"s_add_u32 s{sRPF}, s{sRPF}, {FW2_OFF}")
        assert all((S * 18726) >> 16 == (4 * S) // 14 for S in range(80))

    def rp_w2_offsets(self):
        c = self.c
        t, p0, col = 16, 79, 80
        c(f"v_bfe_u32 v{t}, v1, 3, 2")
        c(f"v_add_u32 v{t}, s{p0}, v{t}")
        c(f"v_and_b32 v{t+1}, 4, v1")
        c(f"v_lshl_add_u32 v{t+2}, v{t}, 3, v{t+1}")
        c(f"v_and_b32 v{t+3}, 12, v{t}")
        c(f"v_add_u32 v{t+3}, v{t+3}, v{t}")
        c(f"v_cmp_lt_u32 vcc, 13, v{t}")
        c(f"v_add_u32 v{t+4}, {27-14}, v{t}")
        c(f"v_cndmask_b32 v{t+3}, v{t+3}, v{t+4}, vcc")
        c(f"v_add_lshl_u32 v{t+3}, v{t+3}, v{t+1}, 2")
        c(f"v_and_b32 v{t+4}, 30, v{t}")
        c(f"v_cmp_eq_u32 vcc, 12, v{t+4}")
        c(f"v_and_b32 v{t+4}, 3, v1")
        c(f"v_cndmask_b32 v{t+3}, v{t+3}, v{t+2}, vcc")
        c(f"v_cmp_eq_u32 vcc, 108, v{t+2}")
        c(f"v_add_u32 v{t+3}, v{t+3}, v{t+4}")
        c(f"v_mul_u32_u24 v{t+3}, 1280, v{t+3}")
        c(f"v_add_u32 v{t+3}, s{col}, v{t+3}")
        c(f"v_mov_b32 v{t+4}, {OOB}")
        c(f"v_cndmask_b32 v{t+5}, v{t+3}, v{t+4}, vcc")
        for j in range(5):
            c(f"v_add_u32 v{t}, {64*j}, v1")
            c(f"v_mul_u32_u24 v{t+1}, 6554, v{t}")
            c(f"v_lshrrev_b32 v{t+1}, 16, v{t+1}")
            c(f"v_lshlrev_b32 v{t+2}, 2, v{t+1}")
            c(f"ds_bpermute_b32 v{self.vRP+j}, v{t+2}, v{t+5}")
            c(f"v_mul_u32_u24 v{t+1}, 10, v{t+1}")
            c(f"v_sub_u32 v{t+6+j}, v{t}, v{t+1}")
        for j in range(5):
            c(f"v_lshl_add_u32 v{self.vRP+j}, v{t+6+j}, 4, v{self.vRP+j}")

    def w1_offsets(self):
        c = self.c
        t = self.vTMP
        for j in range(7):
            c(f"v_add_u32 v{t}, {64*j}, v1")
            c(f"v_mul_u32_u24 v{t+1}, 4682, v{t}")
            c(f"v_lshrrev_b32 v{t+1}, 16, v{t+1}")
            c(f"v_mul_u32_u24 v{t+2}, 14, v{t+1}")
            c(f"v_sub_u32 v{t}, v{t}, v{t+2}")
            c(f"v_lshrrev_b32 v{t+2}, 1, v{t+1}")
            c(f"v_xor_b32 v{t+2}, v{t+2}, v{t+1}")
            c(f"v_and_b32 v{t+2}, 4, v{t+2}")
            c(f"v_mul_u32_u24 v{t+2}, 3, v{t+2}")
            c(f"v_xor_b32 v{t+1}, v{t+1}, v{t+2}")
            c(f"v_mul_u32_u24 v{t+1}, 3456, v{t+1}")
            c(f"v_lshl_add_u32 v{t}, v{t}, 4, v{t+1}")
            c(f"v_subrev_u32 v{self.vW1D+j}, {1024*(j&3)}, v{t}")

    def only_waves(self, hi, items):
        lab = self.label("ow")
        out = [I(f"s_cmp_ge_u32 s{sW}, 2"), I(f"s_cbranch_scc{0 if hi else 1} {lab} ; noflush")]
        for i in flat(items):
            i.cond = True
            out.append(i)
        out.append(I(f"{lab}: ; noflush"))
        return out

    def rp_offsets(self, n):
        c = self.c
        P = self.RPP
        t, u = self.vTMP, P['u']
        assert all((v * 6554) >> 16 == v // 10 for v in range(448)) and all((v * 4682) >> 16 == v // 14 for v in range(448))
        for j in range(n):
            c(f"v_add_u32 v{t}, {64*j}, v1")
            c(f"v_mul_u32_u24 v{t+1}, s{P['mch']}, v{t}")
            c(f"v_lshrrev_b32 v{t+1}, 16, v{t+1}")
            c(f"v_mul_u32_u24 v{t+2}, s{P['nch']}, v{t+1}")
            c(f"v_sub_u32 v{t}, v{t}, v{t+2}")
            c(f"v_lshl_add_u32 v{t}, v{t}, 4, s{P['col']}")
            c(f"v_mul_u32_u24 v{t+2}, s{P['dm']}, v{t+1}")
            c(f"v_lshrrev_b32 v{t+2}, 16, v{t+2}")
            c(f"v_mul_u32_u24 v{t+3}, s{P['dd']}, v{t+2}")
            c(f"v_sub_u32 v{t+1}, v{t+1}, v{t+3}")
            c(f"v_mad_u32_u24 v{t+1}, v{t+2}, s{P['aa']}, v{t+1}")
            c(f"v_add_u32 v{t+1}, s{P['r0']}, v{t+1}")
            c(f"v_mad_u32_u24 v{self.vRP+j}, v{t+1}, s{P['pitch']}, v{t}")

    RP1_LDS = 6 * 16384

    def rp_dma(self, n, base, wstride, so="0", fl=None, vb=None):
        items = []
        vb = self.vRP if vb is None else vb
        fl = self.o.get('rpld', '') if fl is None else fl
        for j in range(n):
            pre = [I(f"s_mul_i32 s{sT+12}, s{sW}, {wstride}")] if j == 0 else []
            items.append(pre + [I(f"s_add_u32 m0, s{sT+12}, {base + 1024*j}"),
                                I(f"buffer_load_dwordx4 v{vb+j}, s[{sRP}:{sRP+3}], {so} offen {fl} lds")])
        return items

    def rp_addr(self, t, pitch, base, wstride, oddshift, st=sT):
        c = self.c
        c(f"s_mul_i32 s{st+1}, s{sW}, {wstride}")
        if oddshift:
            c(f"s_and_b32 s{st+2}, s{sW}, 1")
            c(f"s_lshl3_add_u32 s{st+1}, s{st+2}, s{st+1}")
        c(f"s_add_u32 s{st+1}, s{st+1}, {base}")
        c(f"v_lshrrev_b32 v{t}, 4, v1")
        c(f"v_bfe_u32 v{t+1}, v1, 2, 2")
        c(f"v_lshl_add_u32 v{t}, v{t}, 3, v{t+1}")
        c(f"v_mul_u32_u24 v{t}, {pitch}, v{t}")
        c(f"v_add_u32 v{t}, s{st+1}, v{t}")
        c(f"v_and_b32 v{t+1}, 3, v1")
        c(f"v_lshl_add_u32 v{t+2}, v{t+1}, 4, v{t}")
        c(f"v_lshl_add_u32 v{t+3}, v{t+1}, 3, v{t}")

    def rp_items(self, nt, t, off, fr, R):
        pitch = 160 if nt == 5 else 224
        fb = fr if isinstance(fr, list) else [fr + 4 * tl for tl in range(nt)]
        rd, stv = [], []
        for tl in range(nt):
            for q in range(2):
                if tl < nt - 1:
                    rd.append(I(f"ds_read_b64_tr_b16 {vr(fb[tl]+2*q,2)}, v{t+2} offset:{off + q*4*pitch + (tl>>1)*64 + (tl&1)*8}"))
                else:
                    rd.append(I(f"ds_read_b64_tr_b16 {vr(fb[tl]+2*q,2)}, v{t+3} offset:{off + q*4*pitch + tl*32}"))
        for tl in range(nt):
            g = []
            if tl == 4:
                g.append(I(f"s_add_u32 s{sRPD}, s{sRPD}, 4096"))
            if tl == 6:
                g += [I(f"v_and_b32 v{t}, 15, v1"), I(f"v_cmp_gt_u32 vcc, 12, v{t}")]
                g += [I(f"v_cndmask_b32 v{fr+24+q}, 0, v{fr+24+q}, vcc") for q in range(4)]
            g.append(I(f"buffer_store_dwordx4 {vr(fb[tl],4)}, v{vL16}, {R}, s{sRPD} offen offset:{(tl&3)*1024} sc1"))
            stv.append(g)
        return rd + stv

    aV, aW1L, aWO = 0, 80, 156

    def wo_loads(self):
        items = []
        for i in range(25):
            pre = [I(f"s_add_u32 s{sWOO}, s{sWOO}, 4096")] if i and i % 4 == 0 else []
            items.append(pre + [I(f"buffer_load_dwordx4 {ar(self.aWO+4*i,4)}, v{vL16}, {WSR}, s{sWOO} offen offset:{(i&3)*1024} {self.ld}")])
        return items

    def w1_take(self, n):
        items = []
        first = True
        for i in self.w1q[:n]:
            st, j = divmod(i, 7)
            pre = []
            if (j in (0, 4) or first) and i < 25:
                pre.append(I(f"s_add_u32 m0, s{sW1M}, {st * 7168 + (j >> 2) * 4096}"))
            if j == 0 and st:
                pre.append(I(f"s_add_u32 s{sW1O}, s{sW1O}, {32*3456}"))
            first = False
            if i < 25:
                items.append(pre + [I(f"buffer_load_dwordx4 v{self.vW1D+j}, s[{sWQ}:{sWQ+3}], s{sW1O} offen offset:{(j&3)*1024} lds")])
            else:
                items.append(pre + [I(f"buffer_load_dwordx4 {ar(self.aW1L+4*(i-25),4)}, v{self.vW1D+j}, s[{sWQ}:{sWQ+3}], s{sW1O} offen offset:{(j&3)*1024}")])
        self.w1q = self.w1q[n:]
        return items

    def w2_take(self, n, below=70):
        items = []
        while n and self.w2q and self.w2q[0] < below:
            i = self.w2q.pop(0); n -= 1
            pre = [I(f"s_add_u32 s{sW2O}, s{sW2B}, {(i >> 2) * 4096}")] if i % 4 == 0 else []
            items.append(pre + [I(f"buffer_load_dwordx4 {self.w2reg(i)}, v{vL16}, {WSR}, s{sW2O} offen offset:{(i&3)*1024} {self.ld}")])
        return items

    def w2reg(self, i):
        return ar(4 * i, 4) if i < 64 else vr(184 + 4 * (i - 64), 4)

    vO, vK, vQ, vQ4, vZ, vS, vCO, vCD, vP = 32, 64, 124, 132, 136, 146, 178, 194, 210
    vX = 226
    vXL, vRP2 = 226, 230
    vL16m, vVA, vFWA, vFWD, vPOL = 3, 4, 5, 6, 7
    sKO, sVO = sT + 8, sT + 9
    UNITS = sorted([(kt, 0) for kt in range(9)] + [(kt, 1) for kt in range(1, 10)])

    def v_const(self):
        c = self.c
        for pi in range(5):
            c(f"s_cmp_ge_u32 s{sU}, {4-pi}")
            c(f"s_cselect_b32 s81, 0x3f803f80, 0")
            c(f"v_mov_b32 v63, s81")
            for j in range(16):
                c(f"v_accvgpr_write_b32 a{self.aV+16*pi+j}, v63")

    def attn_init(self):
        c = self.c
        t = 8
        c(f"s_mov_b32 s{sVM}, 0x000fffff")
        c(f"s_mov_b32 s{sVM+1}, 0x000fffff")
        c(f"s_mov_b32 s{sKV}, s{sWS}")
        c(f"s_mov_b32 s{sKV+1}, s{sWS+1}")
        c(f"s_mov_b32 s{sKV+3}, 0x20000")
        c(f"v_and_b32 v{self.vL16m}, 0x1f0, v{vL16}")
        c(f"v_lshrrev_b32 v{t}, 1, v1")
        c(f"v_xor_b32 v{t}, v{t}, v1")
        c(f"v_and_b32 v{t}, 4, v{t}")
        c(f"v_mul_u32_u24 v{t}, 48, v{t}")
        c(f"v_xor_b32 v{t}, v{t}, v{self.vL16m}")
        c(f"v_lshrrev_b32 v{t+1}, 5, v1")
        c(f"v_mul_u32_u24 v{t+2}, 10240, v{t+1}")
        c(f"v_add_u32 v{self.vVA}, v{t}, v{t+2}")
        c(f"v_and_b32 v{t}, 31, v1")
        c(f"v_lshlrev_b32 v{t+1}, 2, v{t+1}")
        c(f"v_sub_u32 v{t}, v{t}, v{t+1}")
        c(f"v_mov_b32 v{t+2}, 0xff800000")
        for r in range(0, 16, 4):
            for i in range(4):
                c(f"v_cmp_gt_i32 s[{sT+2*i}:{sT+2*i+1}], {8*(r>>2) + i}, v{t}")
            for i in range(4):
                c(f"v_cndmask_b32 v{self.vCD+r+i}, 0, v{t+2}, s[{sT+2*i}:{sT+2*i+1}]")
            for i in range(4):
                c(f"v_xor_b32 v{self.vCO+r+i}, v{self.vCD+r+i}, v{t+2}")
        c(f"s_lshl_b32 s{sT+2}, s{sRB}, 11")
        c(f"s_add_u32 s{sT+2}, s{sT+2}, {FX_OFF - FL_OFF}")
        c(f"v_and_b32 v{t}, 15, v1")
        c(f"v_lshl_add_u32 v{self.vFWA}, v{t}, 7, s{sT+2}")
        c(f"s_mul_i32 s{sT}, s{sNB}, 80")
        c(f"s_add_u32 s{sT+1}, s{sT}, 79")
        c(f"s_lshr_b32 s{sT}, s{sT}, 7")
        c(f"s_lshr_b32 s{sT+1}, s{sT+1}, 7")
        c(f"s_sub_u32 s{sT+1}, s{sT+1}, s{sT}")
        c(f"v_lshrrev_b32 v{t}, 2, v1")
        c(f"v_min_u32 v{t}, 2, v{t}")
        c(f"v_bfe_u32 v{t+1}, v1, 1, 1")
        c(f"v_add_u32 v{t+1}, 1, v{t+1}")
        c(f"v_cmp_lt_u32 vcc, 11, v1")
        c(f"v_and_b32 v{t+2}, s{sT+1}, v1")
        c(f"v_cndmask_b32 v{t+1}, v{t+1}, 0, vcc")
        c(f"v_mad_u32_u24 v{t+1}, v{t+1}, 5, v{t+2}")
        c(f"v_add_u32 v{t+1}, s{sT}, v{t+1}")
        c(f"s_sub_u32 s{sT}, s{sRB}, 2")
        c(f"v_add_u32 v{t}, s{sT}, v{t}")
        c(f"v_max_i32 v{t}, 0, v{t}")
        c(f"v_lshl_add_u32 v{t}, v{t}, 4, v{t+1}")
        c(f"v_lshlrev_b32 v{t}, 7, v{t}")
        c(f"v_add_u32 v{self.vPOL}, {F1_OFF - FL_OFF}, v{t}")
        for j in range(3):
            c(f"v_add_u32 v{t}, {64*j}, v1")
            c(f"v_mul_u32_u24 v{t+1}, 6554, v{t}")
            c(f"v_lshrrev_b32 v{t+1}, 16, v{t+1}")
            c(f"v_mul_u32_u24 v{t+1}, {1280-160}, v{t+1}")
            c(f"v_add_u32 v{self.vXL+j}, v{vL16}, v{t+1}")
        c(f"v_mov_b32 v{t}, {OOB}")
        c(f"v_cndmask_b32 v{self.vXL+2}, v{self.vXL+2}, v{t}, s[{sHI}:{sHI+1}]")
        for j in range(1, 4):
            c(f"v_add_u32 v{t+j}, {j*20480}, v{self.vVA}")
        c(f"v_and_b32 v{t+4}, 15, v1")
        c(f"v_bfe_u32 v{t}, v1, 4, 1")
        c(f"v_lshlrev_b32 v{t+4}, 4, v{t+4}")
        c(f"v_lshl_add_u32 v{t+5}, v{t}, 13, v{t+4}")
        c(f"v_lshl_add_u32 v{t+4}, v{t}, 14, v{t+4}")
        c(f"v_lshrrev_b32 v{t}, 5, v1")
        c(f"v_lshl_add_u32 v{t+4}, v{t}, 8, v{t+4}")

    sKVO = 64

    def attn_kv_prep(self):
        c = self.c
        for pi in range(5):
            b = self.sKVO + 3 * pi
            c(f"s_sub_u32 s{sT}, s{sU}, {4-pi}")
            c(f"s_cselect_b32 s{b+2}, 0, {WS_SIZE}")
            c(f"s_cselect_b32 s{sT}, 0, s{sT}")
            c(f"s_mul_i32 s{b+1}, s{sT}, 81920")
            c(f"s_lshl1_add_u32 s{b}, s{b+1}, s{sT+6}")
            c(f"s_add_u32 s{b+1}, s{b+1}, s{sT+7}")

    def attn_kv_loads(self, pi):
        ld = self.ld
        k = self.vK + 12 * pi
        R = f"s[{sKV}:{sKV+3}]"
        b = self.sKVO + 3 * pi
        K = [[I(f"s_mov_b32 s{sKV+2}, s{b+2}"), I(f"buffer_load_dwordx4 {vr(k,4)}, v{vL16}, {R}, s{b} offen {ld}")],
             [I(f"buffer_load_dwordx4 {vr(k+4,4)}, v{vL16}, {R}, s{b} offen offset:1024 {ld}")],
             [I(f"buffer_load_dwordx4 {vr(k+8,4)}, v{self.vL16m}, {R}, s{b} offen offset:2048 {ld}")]]
        va = [self.vVA, 9, 10, 11]
        L = [I(f"buffer_load_dwordx4 {ar(self.aV+16*pi+4*q,4)}, v{va[q]}, {R}, s{b+1} offen {ld}") for q in range(4)]
        on, off = (lambda: I(f"s_mov_b64 exec, s[{sVM}:{sVM+1}]")), (lambda: I("s_mov_b64 exec, -1"))
        return K, [[on(), q, off()] for q in L]

    def attn_qk(self, u, dst):
        kt, T = self.UNITS[u]
        k = self.vK + 12 * (kt >> 1)
        cin = '0'
        if kt == T:
            cin = vr(self.vCO, 16)
        elif kt == 8 + T:
            cin = vr(self.vCD, 16)
        d = vr(dst, 16)
        z = self.vZ + 4 * T + (0 if kt & 1 else 2)
        return [I(f"v_mfma_f32_32x32x16_bf16 {d}, {vr(k+4*(kt&1),4)}, {vr(self.vQ+4*T,4)}, {cin}"),
                I(f"v_mfma_f32_32x32x16_bf16 {d}, {vr(k+8,4)}, {vr(z,4)}, {d}")]

    def attn_loop(self, fill, swaps):
        c = self.c
        n = len(self.UNITS)
        S = lambda u: self.vS + 16 * (u & 1)
        P = lambda u: self.vP + 8 * (u & 1)
        seen = set()

        def qk(u):
            kt = self.UNITS[u][0]
            pre = []
            if swaps and (kt >> 1) not in seen:
                seen.add(kt >> 1)
                k = self.vK + 12 * (kt >> 1)
                pre = [I(f"v_swap_b32 v{k+2}, v{k+4}"), I(f"v_swap_b32 v{k+3}, v{k+5}")]
            return pre, self.attn_qk(u, S(u))

        def pv(u, s):
            kt, T = self.UNITS[u]
            d = vr(self.vO + 16 * T, 16)
            first = (kt == T and s == 0)
            return I(f"v_mfma_f32_32x32x16_bf16 {d}, {ar(self.aV+8*kt+4*s,4)}, {vr(P(u)+4*s,4)}, {0 if first else d}")

        ex = lambda u, g: [I(f"v_exp_f32 v{S(u)+4*g+i}, v{S(u)+4*g+i}") for i in range(4)]
        cv = lambda u, g: [I(f"v_cvt_pk_bf16_f32 v{P(u)+2*g+i}, v{S(u)+4*g+2*i}, v{S(u)+4*g+2*i+1}") for i in range(2)]
        slot = [0]

        def mf(m):
            items = [flat(x) for x in fill.get(slot[0], [])]
            slot[0] += 1
            if items:
                f = items[0]
                k = next((j for j, i in enumerate(f) if i.kind in ('vmem', 'ds')), 0)
                c.add(f[:k]); c.add(m); c.add(f[k:]); c.add(items[1:])
            else:
                c.add(m)
        pre, m = qk(0)
        c.add(pre); c.add(m)
        if fill:
            self.stamp("qk0", "attn")
        c.add(fill.get(-1, []))
        for u in range(n + 1):
            pre, m = qk(u + 1) if u + 1 < n else ([], None)
            if u > 0: mf(pv(u - 1, 0))
            if u > 0: c.add(cv(u - 1, 3))
            c.add(pre)
            if u < n: c.add(ex(u, 0))
            if m: mf(m[0])
            if u < n: c.add(ex(u, 1)); c.add(cv(u, 0))
            if m: mf(m[1])
            if u < n: c.add(ex(u, 2)); c.add(cv(u, 1))
            if u > 0: mf(pv(u - 1, 1))
            if u < n: c.add(ex(u, 3)); c.add(cv(u, 2))
            if fill:
                self.stamp(f"u{u}", "attn")
        assert slot[0] == 70

    def same_check(self):
        c = self.c
        self.flag_check(self.vFWD, self.vFWA, span=True)
        c(f"s_add_u32 s{sT+1}, s{sTAG}, s{sXCC}")
        c(f"v_cmp_ne_u32 vcc, s{sT+1}, v{self.vFWD}")
        c(f"s_cmp_lg_u64 vcc, 0")
        c(f"s_cselect_b32 s{sSAME}, 0, 1")
        if self.o.get('nosame'):
            c(f"s_mov_b32 s{sSAME}, 0")

    def attn_prep(self):
        c = self.c
        c(f"s_lshl_b32 s{sT}, s{sU}, 7")
        c(f"s_add_u32 s{sT}, s{sT}, {F2_OFF - FL_OFF}")
        c(f"s_lshl2_add_u32 s{sT+1}, s{sRB}, s{sW}")
        c(f"s_lshl_b32 s{sT+1}, s{sT+1}, 7")
        c(f"s_add_u32 s{sT+1}, s{sT+1}, {F3_OFF - FL_OFF}")
        c(f"v_and_b32 v14, 1, v1")
        c(f"v_mul_u32_u24 v14, {F4_OFF - F2_OFF}, v14")
        c(f"v_add_u32 v14, s{sT}, v14")
        c(f"v_mov_b32 v15, s{sT+1}")
        c(f"v_cndmask_b32 v14, v14, v15, s[{sHI}:{sHI+1}]")
        c(f"s_mul_i32 s{sT+5}, s{sHEAD}, 2560")
        c(f"s_add_u32 s{sT+6}, s{sT+5}, {QK_OFF + 160*512}")
        c(f"s_mul_i32 s{sT+7}, s{sHEAD}, 320")
        c(f"s_add_u32 s{sT+7}, s{sT+7}, {V_OFF}")
        c(f"s_mul_i32 s{sT+4}, s{sU}, 163840")
        c(f"s_add_u32 s{sT+5}, s{sT+5}, s{sT+4}")
        c(f"s_lshl2_add_u32 s{sT+3}, s{sU}, s{sW}")
        c(f"s_mul_i32 s{sT+3}, s{sT+3}, {16*1280}")
        c(f"s_mul_i32 s{sT+2}, s{sNB}, 160")
        c(f"s_add_u32 s{sT+3}, s{sT+3}, s{sT+2}")
        self.attn_kv_prep()

    def attention(self):
        c, o = self.c, self.o
        ld = self.ld
        t = 8
        for r in (0, 1, 4, 5, 8, 9):
            c(f"v_mov_b32 v{self.vZ+r}, 0")
        kv = [self.attn_kv_loads(pi) for pi in range(5)]
        c.add(kv[0][0][0][:-1])
        lab = self.label("w1")
        c(f"s_cmp_lg_u32 s{sW}, 2")
        c(f"s_cbranch_scc1 {lab}")
        c.cond(True)
        self.poll(self.vPOL, sleep=o.get('s1sleep', 0))
        c.cond(False)
        c(f"{lab}:")
        c("s_barrier")
        self.stamp("s1", "main attn")
        q = self.vQ
        c(f"buffer_load_dwordx4 {vr(q,4)}, v{vL16}, {WSR}, s{sT+5} offen {ld}")
        c(f"buffer_load_dwordx4 {vr(q+4,4)}, v{vL16}, {WSR}, s{sT+5} offen offset:1024 {ld}")
        c.add(kv[0][0][0][-1]); c.add(kv[0][0][1])
        c(f"buffer_load_dwordx4 {vr(self.vQ4,4)}, v{self.vL16m}, {WSR}, s{sT+5} offen offset:2048 {ld}")
        c.add(kv[0][0][2])
        rest = kv[0][1] + kv[1][0] + kv[1][1] + kv[2][0] + kv[2][1] + kv[3][0] + kv[3][1] + kv[4][0] + kv[4][1]
        n0 = o.get('kv0', 7)
        c.add(rest[:n0]); rest = rest[n0:]
        fl = I(f"buffer_load_dword v{self.vFWD}, v{self.vFWA}, {WSR}, s{sFLB} offen sc1")
        XR = f"s[{sX}:{sX+3}]"
        KV = f"s[{sKV}:{sKV+3}]"
        xl = [[I(f"buffer_load_dwordx4 v{self.vXL+j}, {XR}, s{sT+3} offen offset:{j*1024} lds")] for j in range(3)]
        self.h_x = xl[2][0]
        xl[0] = [I(f"s_add_u32 m0, s{sW1M}, 25600")] + xl[0]
        fill = {}
        n1 = o.get('kv1', 2)
        fill[-1] = rest[:n1]; rest = rest[n1:]

        def place(items, g0, step):
            g = g0
            for it in items:
                assert g < 70
                fill.setdefault(int(g), []).append(it); g += step
            return int(g + 0.999)
        g = place(rest, 0, o.get('kvstep', 13) / 10)
        w2f = [I(f"s_mov_b32 s{sKV+2}, s{sRPT}", waits=[kv[0][0][1][0]])] + self.sub(self.flag_store, sRPF, KV)
        g = place([w2f, I(f"buffer_load_dword v15, v14, {WSR}, s{sFLB} offen sc1"), fl] + xl + self.woq, g, 1)
        w1 = self.w1_take(o.get('w1a', 18))
        place(w1, g, (o.get('w1e', 64) - g) / max(len(w1), 1))
        place([self.sub(self.same_check)], 65, 1)
        sb = [I(f"s_mul_i32 s{sT}, s{sU}, 81920"), I(f"s_add_u32 s{sT}, s{sT}, {O_OFF}"),
              I(f"s_lshl_b32 s{sT+1}, s{sHEAD}, 9"), I(f"s_add_u32 s{sT+1}, s{sT+1}, s{sT}"),
              I(f"s_add_u32 s{sT+2}, s{sT+1}, 32768"), I(f"s_lshr_b32 s{sT+4}, s{sHEAD}, 3"),
              I(f"s_and_b32 s{sT+5}, s{sHEAD}, 1"), I(f"s_lshl1_add_u32 s{sT+4}, s{sT+4}, s{sT+5}"),
              I(f"s_bfe_u32 s{sT+5}, s{sHEAD}, 0x20001"), I(f"s_lshl2_add_u32 s{sT+4}, s{sT+4}, s{sT+5}"),
              I(f"s_lshl_b32 s{sT+4}, s{sT+4}, 8"), I(f"s_add_u32 s{sT+4}, s{sT+4}, s{sT}"),
              I(f"s_add_u32 s{sT+4}, s{sT+4}, 65536")]
        place([sb[:4], sb[4:]], 68, 1)
        c(f"v_swap_b32 v{q+2}, v{q+4}")
        c(f"v_swap_b32 v{q+3}, v{q+5}")
        for T in range(2):
            for i in range(2):
                c(f"v_cndmask_b32 v{self.vZ+2+4*T+i}, v{self.vQ4+2*T+i}, 0, s[{sHI}:{sHI+1}]")
        self.attn_loop(fill, True)
        self.stamp("attn")
        lo, hi = f2u(2.0 ** -40), f2u(2.0 ** 40)
        O = self.vO
        c(f"v_subrev_u32 v{t}, {hex(lo)}, v{O+12}")
        c(f"v_subrev_u32 v{t+1}, {hex(lo)}, v{O+28}")
        c(f"v_max_u32 v{t}, v{t}, v{t+1}")
        c(f"v_cmp_lt_u32 vcc, {hex(hi-lo)}, v{t}")
        if o.get('forceslow'):
            c("s_mov_b64 vcc, -1")
        c(f"s_cbranch_vccnz Lattn_slow")
        c("Lattn_fin:")
        self.attn_slow()
        self.attn_epilogue('sc1')

    def attn_epilogue(self, st):
        c, o = self.c, self.o
        t, O, ob = 8, self.vO, 16
        c(f"v_rcp_f32 v{t}, v{O+12}")
        c(f"v_rcp_f32 v{t+1}, v{O+28}")
        for T in range(2):
            sel = "op_sel_hi:[1,0]" if T == 0 else "op_sel:[0,1] op_sel_hi:[1,1]"
            for i in range(6):
                r = O + 16 * T + 2 * i
                c(f"v_pk_mul_f32 {vr(r,2)}, {vr(r,2)}, {vr(t,2)} {sel}")
            for i in range(6):
                r = O + 16 * T + 2 * i
                d = ob + 4 * T + i if i < 4 else ob + 8 + 2 * T + (i - 4)
                c(f"v_cvt_pk_bf16_f32 v{d}, v{r}, v{r+1}")
            c(f"buffer_store_dwordx4 {vr(ob+4*T,4)}, v{t+4}, {WSR}, s{sT+1+T} offen {st}")
        c(f"s_not_b64 exec, s[{sHI}:{sHI+1}]")
        h = c(f"buffer_store_dwordx4 {vr(ob+8,4)}, v{t+5}, {WSR}, s{sT+4} offen {st}")
        c("s_mov_b64 exec, -1")
        c.add(self.w1_take(o.get('w1b', 0)))
        self.p3_prep()
        c.wait(h)
        self.stamp("odrain")
        self.flag_store_near(sT + 13)

    def attn_slow(self):
        old, self.c = self.c, self.ool
        c = self.c
        t = 16
        c("Lattn_slow:")
        c("s_waitcnt vmcnt(0) lgkmcnt(0)")
        c(f"v_mov_b32 v{t}, 0xff800000")
        c(f"v_mov_b32 v{t+1}, 0xff800000")
        for pi in range(5):
            lab = self.label("sl")
            c(f"s_cmp_ge_u32 s{sU}, {4-pi}")
            c(f"s_cselect_b32 s{sT+12}, 0x3f803f80, 0")
            c(f"v_mov_b32 v{t+2}, s{sT+12}")
            for i in range(4):
                r = self.vK + 12 * pi + 8 + i
                c(f"v_cndmask_b32 v{r}, v{r}, v{t+2}, s[{sHI}:{sHI+1}]")
            c(f"s_cbranch_scc0 {lab}")
            for u, (kt, T) in enumerate(self.UNITS):
                if kt >> 1 != pi:
                    continue
                c.add(self.attn_qk(u, self.vS))
                for i in range(8):
                    c(f"v_max3_f32 v{t+T}, v{self.vS+2*i}, v{self.vS+2*i+1}, v{t+T}")
            c(f"{lab}:")
        for T in range(2):
            c(f"v_mov_b32 v{t+2}, v{t+T}")
            c(f"v_permlane32_swap_b32 v{t+2}, v{t+T}")
            c(f"v_max_f32 v{t+2}, v{t+2}, v{t+T}")
            c(f"v_xor_b32 v{t+2}, 0x80000000, v{t+2}")
            c(f"v_and_b32 v{t+3}, s{sMASK}, v{t+2}")
            c(f"v_sub_f32 v{t+2}, v{t+2}, v{t+3}")
            c(f"v_and_b32 v{t+4}, s{sMASK}, v{t+2}")
            c(f"v_sub_f32 v{t+2}, v{t+2}, v{t+4}")
            c(f"v_lshrrev_b32 v{t+3}, 16, v{t+3}")
            c(f"v_or_b32 v{t+3}, v{t+3}, v{t+4}")
            c(f"v_lshrrev_b32 v{t+2}, 16, v{t+2}")
            z = self.vZ + 2 + 4 * T
            c(f"v_cndmask_b32 v{z}, v{z}, v{t+3}, s[{sHI}:{sHI+1}]")
            c(f"v_cndmask_b32 v{z+1}, v{z+1}, v{t+2}, s[{sHI}:{sHI+1}]")
        self.attn_loop({}, False)
        c("s_branch Lattn_fin")
        self.c = old

    RED = 143360
    vRES = 236
    CORD = (1, 2, 3, 0)
    p3A, p3L, p3AC, p3PB, p3SUM = 64, 128, 144, 184, 204
    p3PR = (184, 64, 84)

    def p3_prep(self):
        c = self.c
        t = 32
        c(f"s_lshl_b32 s{sT+13}, s{sU}, 7")
        c(f"s_lshl_b32 s{sT+3}, s{sW}, 5")
        c(f"s_add_u32 s{sT+3}, s{sT+3}, s{sT+13}")
        c(f"s_add_u32 s{sT+3}, s{sT+3}, {F2_OFF - FL_OFF}")
        c(f"s_lshl2_add_u32 s{sT+13}, s{sHEAD}, s{sT+13}")
        c(f"s_add_u32 s{sT+13}, s{sT+13}, {F2_OFF}")
        c(f"v_and_b32 v{self.vPOL}, 7, v1")
        c(f"v_lshl_add_u32 v{self.vPOL}, v{self.vPOL}, 2, s{sT+3}")
        c(f"s_mul_i32 s{sT+5}, s{sW}, {14*128}")
        c(f"s_lshl_b32 s{sT+6}, s{sNB}, 13")
        c(f"s_add_u32 s{sT+5}, s{sT+5}, s{sT+6}")
        c(f"s_add_u32 s{sT+5}, s{sT+5}, {FW2_OFF - FL_OFF}")
        c(f"v_min_u32 v{self.vFWA}, 13, v1")
        c(f"v_lshl_add_u32 v{self.vFWA}, v{self.vFWA}, 7, s{sT+5}")
        c(f"s_lshl_b32 s{sT+6}, s{sW}, 12")
        c(f"s_add_u32 s{sT+6}, s{sT+6}, s{sT}")
        for i, cc in enumerate(self.CORD):
            c(f"s_xor_b32 s{sT+5}, s{sW}, {cc}")
            c(f"s_lshl_b32 s{sT+8+i}, s{sT+5}, 14")
            c(f"s_add_u32 s{sT+8+i}, s{sT+8+i}, s{sT+6}")
            c(f"s_mul_i32 s{sT+5}, s{sT+5}, {5120 if i in (0, 3) else 35840}")
            c(f"s_add_u32 s{sT+5}, s{sT+5}, {self.RED if i in (0, 3) else 25600 + (i-1)*5120}")
            c(f"v_add_u32 v{t+2+i}, s{sT+5}, v{vL16}")
        c(f"s_lshl_b32 s{sT+6}, s{sW}, 11")
        c(f"s_add_u32 s{sT+5}, s{sT}, s{sT+6}")
        c(f"s_add_u32 s{sT+5}, s{sT+5}, 65536")
        c(f"s_and_b32 s{sT+7}, s{sW}, 1")
        c(f"s_lshl_b32 s{sT+7}, s{sT+7}, 13")
        c(f"s_xor_b32 s{sT+6}, s{sT+7}, 8192")
        c(f"s_add_u32 s{sT+6}, s{sT+6}, s{sT+5}")
        c(f"s_add_u32 s{sT+7}, s{sT+7}, s{sT+5}")
        c(f"s_lshr_b32 s{sT+5}, s{sW}, 1")
        c(f"s_cselect_b64 s[{sT+14}:{sT+15}], -1, 0")
        c(f"s_lshl_b32 s{sT+5}, s{sT+5}, 10")
        c(f"v_xor_b32 v{t}, s{sT+5}, v{vL16}")
        c(f"v_xor_b32 v{t+1}, 1024, v{t}")
        c(f"s_add_u32 s{sT+5}, s{sW1M}, 25600")
        c(f"v_add_u32 v{t+12}, s{sT+5}, v{vL16}")
        c(f"v_and_b32 v{t+6}, 15, v1")
        c(f"v_mul_u32_u24 v{t+6}, 160, v{t+6}")
        c(f"v_add_u32 v{t+6}, s{sT+5}, v{t+6}")
        c(f"v_lshrrev_b32 v{t+7}, 4, v1")
        c(f"v_lshl_add_u32 v{t+8}, v{t+7}, 4, v{t+6}")
        c(f"v_lshl_add_u32 v{t+7}, v{t+7}, 3, v{t+6}")
        c(f"ds_read_b128 {vr(self.vX,4)}, v{t+8}", waits=[self.h_x])
        c(f"ds_read_b128 {vr(self.vX+4,4)}, v{t+8} offset:64")
        c(f"ds_read_b64 {vr(self.vX+8,2)}, v{t+7} offset:128")
        for j in range(10):
            c(f"v_lshlrev_b32 v{self.p3SUM+2*j}, 16, v{self.vX+j}")
            c(f"v_and_b32 v{self.p3SUM+2*j+1}, s{sMASK}, v{self.vX+j}")

    def phase3(self):
        c, o = self.c, self.o
        ld = o.get('la', 'sc1')
        vA, vL, vAC, vPB, vSUM = self.p3A, self.p3L, self.p3AC, self.p3PB, self.p3SUM
        t = 32
        c("s_barrier")
        self.poll(self.vPOL)
        self.stamp("s2", "main p3")
        L = []
        for i in range(4):
            for s in range(4):
                L.append(I(f"buffer_load_dwordx4 {vr(vA+16*i+4*s,4)}, v{vL16}, {WSR}, s{sT+8+i} offen offset:{s*1024} {ld}"))
            if i < 2:
                L.append(I(f"buffer_load_dwordx4 {vr(vL+8*i,4)}, v{t}, {WSR}, s{sT+6+i} offen {ld}"))
                L.append(I(f"buffer_load_dwordx4 {vr(vL+8*i+4,4)}, v{t+1}, {WSR}, s{sT+6+i} offen {ld}"))
        n0 = o.get('p3n0', 12)
        c.add(L[:n0])
        L = L[n0:] + self.w1_take(35)
        self.fw2 = (I(f"buffer_load_dword v{self.vFWD}, v{self.vFWA}, {WSR}, s{sFLB} offen sc1"))
        c(f"s_lshl2_add_u32 s{sT}, s{sU}, s{sW}")
        c(f"s_mul_i32 s{sT+1}, s{sT}, 20480")
        c(f"s_mul_i32 s{sT+2}, s{sNB}, 2560")
        c(f"s_add_u32 s{sT+1}, s{sT+1}, s{sT+2}")
        c(f"s_add_u32 s{sT+1}, s{sT+1}, {H_OFF}")
        c(f"s_lshl3_add_u32 s{sT+2}, s{sT}, s{sNB}")
        c(f"s_and_b32 s{sT+13}, s{sT+2}, 15")
        c(f"s_lshr_b32 s{sT+3}, s{sT}, 1")
        c(f"s_lshl_b32 s{sT+3}, s{sT+3}, 7")
        c(f"s_lshl2_add_u32 s{sT+13}, s{sT+13}, s{sT+3}")
        c(f"s_add_u32 s{sT+13}, s{sT+13}, {F3_OFF}")
        c(f"s_lshl_b32 s{sT+2}, s{sT+2}, 7")
        c(f"s_add_u32 s{sT+2}, s{sT+2}, {HST_OFF}")
        c(f"v_and_b32 v{t+6}, 15, v1")
        c(f"v_lshrrev_b32 v{t+7}, 5, v1")
        c(f"v_lshl_add_u32 v{t+6}, v{t+7}, 4, v{t+6}")
        c(f"v_lshlrev_b32 v{t+7}, 4, v{t+6}")
        c(f"v_lshlrev_b32 v{t+6}, 2, v{t+6}")
        c(f"s_mov_b32 s{sT+4}, 0xffff")
        c(f"s_mov_b32 s{sT+5}, 0xffff")

        def swaps(g):
            q = vL + 8 * g
            return [I(f"s_not_b64 exec, s[{sT+14}:{sT+15}]"), I(f"v_swap_b32 v{q+2}, v{q+4}"), I(f"v_swap_b32 v{q+3}, v{q+5}"),
                    I(f"s_mov_b64 exec, s[{sT+14}:{sT+15}]"), I(f"v_swap_b32 v{q}, v{q+6}"), I(f"v_swap_b32 v{q+1}, v{q+7}"),
                    I("s_mov_b64 exec, -1")]
        left = {0: vL, 1: vL + 12, 2: vL + 4, 3: vL + 8}
        lper = o.get('p3lp', 3)
        for i in range(4):
            ac = vAC + 20 * (i & 1)
            M = []
            for s in range(5):
                b = vA + 16 * i + 4 * s if s < 4 else left[i]
                for tl in range(5):
                    d = vr(ac + 4 * tl, 4)
                    M.append(I(f"v_mfma_f32_16x16x32_bf16 {d}, {ar(self.aWO+4*(5*s+tl),4)}, {vr(b,4)}, {0 if s == 0 else d}"))
            F = [[] for _ in range(25)]
            if i < 2:
                F[17] += swaps(i)
            if i > 0:
                pa = vAC + 20 * ((i - 1) & 1)
                for tl in range(5):
                    F[(3 + 2 * tl) if i == 3 else (3 + 4 * tl)] += [I(f"ds_write_b128 v{t+2+i-1}, {vr(pa+4*tl,4)} offset:{tl*1024}")]
            if i == 3:
                F[14] += [I("s_waitcnt lgkmcnt(0)"), I("s_barrier")]
                for r in range(3):
                    for tl in range(5):
                        src = f"v{t+5} offset:{tl*1024}" if r == 0 else f"v{t+12} offset:{(r-1)*5120 + tl*1024}"
                        F[15 + (5 * r + tl) * 2 // 3] += [I(f"ds_read_b128 {vr(self.p3PR[r]+4*tl,4)}, {src}")]
            for k in range(25):
                c.add(M[k])
                if L and (25 * i + k) % lper == 0:
                    c.add(L.pop(0))
                c.add(F[k])
                if k in (0, 8, 12, 24):
                    self.stamp(f"i{i}k{k}", "p3")
        c.add(L)
        self.stamp("p3")
        self.p3_epilogue('sc1')

    def p3_epilogue(self, st):
        c, o = self.c, self.o
        vAC, vPB, vSUM = self.p3AC, self.p3PB, self.p3SUM
        t = 32
        ac = vAC + 20
        rs = self.vRES
        for r in range(2):
            for j in range(10):
                c(f"v_pk_add_f32 {vr(vSUM+2*j,2)}, {vr(vSUM+2*j,2)}, {vr(self.p3PR[r]+2*j,2)}")
        for P in range(3):
            for src in (self.p3PR[2], ac):
                for j in range(4 * P, min(4 * P + 4, 10)):
                    c(f"v_pk_add_f32 {vr(vSUM+2*j,2)}, {vr(vSUM+2*j,2)}, {vr(src+2*j,2)}")
            for j in range(4 * P, min(4 * P + 4, 10)):
                c(f"v_cvt_pk_bf16_f32 v{rs+j}, v{vSUM+2*j}, v{vSUM+2*j+1}")
            if P < 2:
                c(f"buffer_store_dwordx4 {vr(rs+4*P,4)}, v{vL16}, {WSR}, s{sT+1} offen offset:{P*1024} {st}")
        for j in range(4):
            c(f"v_mov_b32 v{vPB+j}, v{rs+8+(j&1)}")
        a1, a2 = t + 8, t + 10
        c(f"v_pk_add_f32 {vr(a1,2)}, {vr(vSUM,2)}, {vr(vSUM+2,2)}")
        c(f"v_pk_mul_f32 {vr(a2,2)}, {vr(vSUM,2)}, {vr(vSUM,2)}")
        c(f"v_permlane16_swap_b32 v{vPB}, v{vPB+2}")
        c(f"v_permlane16_swap_b32 v{vPB+1}, v{vPB+3}")
        c(f"s_mov_b64 exec, s[{sT+4}:{sT+5}]")
        c(f"buffer_store_dwordx4 {vr(vPB,4)}, v{t+7}, {WSR}, s{sT+1} offen offset:2048 {st}")
        c("s_mov_b64 exec, -1")
        for j in range(1, 10):
            if j > 1:
                c(f"v_pk_add_f32 {vr(a1,2)}, {vr(a1,2)}, {vr(vSUM+2*j,2)}")
            c(f"v_pk_fma_f32 {vr(a2,2)}, {vr(vSUM+2*j,2)}, {vr(vSUM+2*j,2)}, {vr(a2,2)}")
        c(f"v_add_f32 v{a1}, v{a1}, v{a1+1}")
        c(f"v_add_f32 v{a2}, v{a2}, v{a2+1}")
        c(f"v_permlane32_swap_b32 v{a1}, v{a2}")
        c(f"v_add_f32 v{a1}, v{a1}, v{a2}")
        c(f"v_mov_b32 v{a2}, v{a1}")
        c(f"v_permlane16_swap_b32 v{a1}, v{a2}")
        c(f"v_add_f32 v{a1}, v{a1}, v{a2}")
        c(f"s_mov_b64 exec, s[{sT+4}:{sT+5}]")
        h = c(f"buffer_store_dword v{a1}, v{t+6}, {WSR}, s{sT+2} offen {st}")
        c("s_mov_b64 exec, -1")
        for n in range(10):
            c(f"ds_write_b128 v{t+12}, {ar(self.aW1L+4*n,4)} offset:{n*1024}")
        self.p4_prep()
        c.wait(h)
        self.stamp("hdrain")
        self.flag_store_near(sT + 13)
        c("s_waitcnt lgkmcnt(0)")
        c("s_barrier")
        self.csum_k = 0
        self.csum(o.get('csb', 14))

    def csum(self, n, tail=None):
        c = self.c
        vAC, vC, vONE, NB, LA = self.p4AC, self.p4CS, 56, 14, 7
        rd = lambda k: [I(f"ds_read_b64_tr_b16 {vr(vAC+4*(k%NB)+2*q,2)}, v{52+(k>>1)//9} offset:{((k>>1)%9)*7168 + q*1792 + (k&1)*128}") for q in range(2)]
        if self.csum_k == 0:
            for k in range(LA):
                c.add(rd(k))
        for k in range(self.csum_k, min(self.csum_k + n, 40)):
            d = vr(vC + 4 * (k & 1), 4)
            c(f"v_mfma_f32_16x16x32_bf16 {d}, {vr(vAC+4*(k%NB),4)}, {vr(vONE,4)}, {0 if k < 2 else d}")
            if k + LA < 40:
                c.add(rd(k + LA))
            elif tail:
                c.add(tail[:2]); del tail[:2]
        self.csum_k = min(self.csum_k + n, 40)

    p4AC, p4W, p4A, p4NR, p4ST, p4CS = 64, 120, 176, 7, 16, 24

    def p4_prep(self):
        c = self.c
        t = 8
        c(f"s_lshl2_add_u32 s{sT}, s{sRB}, s{sW}")
        c(f"s_mul_i32 s{sT+6}, s{sT}, 40960")
        c(f"s_add_u32 s{sT+6}, s{sT+6}, {H_OFF}")
        c(f"s_add_u32 s{sT+7}, s{sT+6}, 20480")
        c(f"s_lshl_b32 s{sT+8}, s{sT}, 11")
        c(f"s_add_u32 s{sT+8}, s{sT+8}, {HST_OFF}")
        c(f"v_and_b32 v{t}, 31, v1")
        c(f"v_lshrrev_b32 v{t+1}, 5, v1")
        c(f"v_lshlrev_b32 v{t}, 2, v{t}")
        c(f"v_lshl_add_u32 v{t}, v{t+1}, 10, v{t}")
        c(f"v_bfe_u32 v{t+2}, v1, 2, 3")
        c(f"v_lshl_add_u32 v{t+2}, v{t+1}, 4, v{t+2}")
        c(f"v_mul_u32_u24 v{t+2}, 224, v{t+2}")
        c(f"s_and_b32 s{sT+9}, s{sFB}, 1")
        c(f"v_and_b32 v{t+3}, 3, v1")
        c(f"v_add_u32 v{t+3}, s{sT+9}, v{t+3}")
        c(f"v_lshl_add_u32 v60, v{t+3}, 3, v{t+2}")
        c(f"v_add_u32 v{t+2}, {9*7168}, v60")
        c(f"v_add_u32 v{t+3}, {18*7168}, v60")
        c(f"v_and_b32 v{t+4}, 48, v1")
        c(f"v_add_u32 v{t+4}, {self.RED}, v{t+4}")
        c(f"s_mul_i32 s{sT+9}, s{sW}, 5120")
        c(f"v_add_u32 v{t+5}, s{sT+9}, v{t+4}")
        c(f"s_lshl_b32 s{sT+9}, s{sT}, 7")
        c(f"s_add_u32 s{sT+9}, s{sT+9}, {F3_OFF - FL_OFF}")
        c(f"v_and_b32 v{self.vPOL}, 15, v1")
        c(f"v_lshl_add_u32 v{self.vPOL}, v{self.vPOL}, 2, s{sT+9}")
        c(f"s_lshl_b32 s{sT+9}, s{sW}, 5")
        c(f"v_add_u32 v52, s{sT+9}, v60")
        c(f"v_add_u32 v53, {9*7168}, v52")
        c(f"v_add_u32 v54, {18*7168}, v52")
        for j in range(4):
            c(f"v_mov_b32 v{56+j}, 0x3f803f80")

    def phase4(self):
        c, o = self.c, self.o
        ld = o.get('la', 'sc1')
        vAC, vW, vA, NR, vST, vCS = self.p4AC, self.p4W, self.p4A, self.p4NR, self.p4ST, self.p4CS
        t = 8
        wa = [60, t + 2, t + 3]
        rdw = lambda s: [I(f"ds_read_b64_tr_b16 {vr(vW+28*(s&1)+4*tl+2*q,2)}, v{wa[s//9]} offset:{(s%9)*7168 + q*1792 + tl*32}") for tl in range(7) for q in range(2)]
        vC = vCS
        self.poll(self.vPOL)
        self.stamp("s3", "main p4")

        def lda(s):
            g = []
            for a in range(2):
                pre = [I(f"s_add_u32 s{sT+6+a}, s{sT+6+a}, 4096")] if s and s % 4 == 0 else []
                g.append(pre + [I(f"buffer_load_dwordx4 {vr(vA+8*(s%NR)+4*a,4)}, v{vL16}, {WSR}, s{sT+6+a} offen offset:{(s&3)*1024} {ld}")])
            return g
        for s in range(NR - 1):
            c.add(lda(s))
            if s == 2:
                c.add(self.fw2)
        r0 = rdw(0)
        Rp = list(r0)
        self.csum(40, r0)
        c.add(r0)
        self.stamp("csum", "p4")
        extra = [[I(f"buffer_load_dword v{vST+j}, v{t}, {WSR}, s{sT+8} offen offset:{j*128} {ld}")] for j in range(8)]
        extra[-1] = [extra[-1], self.sub(self.flag_check, self.vFWD, self.vFWA)]
        misc = {0: [[I(f"ds_write_b128 v{t+5}, {vr(vC,4)}")], [I(f"ds_write_b128 v{t+5}, {vr(vC+4,4)} offset:64")]],
                2: [[I("s_barrier")]],
                3: [[I(f"ds_read_b128 {vr(vCS+4*tl,4)}, v{t+4} offset:{(tl&3)*5120 + (tl>>2)*64}")] for tl in range(3)],
                4: [[I(f"ds_read_b128 {vr(vCS+4*tl,4)}, v{t+4} offset:{(tl&3)*5120 + (tl>>2)*64}")] for tl in range(3, 5)],
                5: [[I(f"ds_read_b128 {vr(vCS+4*tl,4)}, v{t+4} offset:{(tl&3)*5120 + (tl>>2)*64}")] for tl in range(5, 7)]}
        misc[2][0].insert(0, W(misc[0][1][0]))
        fin = self.sub(self.p4_stats)
        for s in range(12, 20):
            n = -(-len(fin) // (20 - s))
            misc[s] = [fin[:n][i::3] and fin[:n][(i * n) // 3:((i + 1) * n) // 3] for i in range(3)]
            fin = fin[n:]
        for s in range(20):
            M = []
            for tl in range(7):
                for a in range(2):
                    d = vr(vAC + 28 * a + 4 * tl, 4)
                    M.append(I(f"v_mfma_f32_16x16x32_bf16 {d}, {vr(vW+28*(s&1)+4*tl,4)}, {vr(vA+8*(s%NR)+4*a,4)}, {0 if s == 0 else d}"))
            Rn = rdw(s + 1) if s < 19 else [[]] * 14
            F = (lda(s + NR - 1) if s + NR - 1 < 20 else [])
            ne = o.get('p4x', 2) if s + NR - 1 < 20 else o.get('p4y', 4)
            X = extra[:ne]; extra = extra[ne:]
            X += self.w2_take(ne - len(X), 64)
            F += X + misc.get(s, [])
            assert len(F) <= 7
            M[0].waits = [Rp[7]]; M[8].waits = [Rp[13]]
            Rp = Rn
            for k in range(14):
                f = flat(F[k // 2]) if k % 2 and k // 2 < len(F) else []
                j = next((j for j, i in enumerate(f) if i.kind == 'vmem'), 0)
                c.add(f[:j]); c.add(M[k]); c.add(f[j:]); c.add(Rn[k])
            if s < 8 or s % 2:
                self.stamp(f"k{s}", "p4")
        self.stamp("p4")
        self.p4_epilogue('sc1')

    def p4_stats(self):
        c = self.c
        vST, t = self.p4ST, 8
        for j in range(1, 8):
            c(f"v_add_f32 v{vST}, v{vST}, v{vST+j}")
        c(f"v_mov_b32 v{vST+1}, v{vST}")
        c(f"v_permlane16_swap_b32 v{vST}, v{vST+1}")
        c(f"v_mul_f32 v{vST}, {hex(f2u(-1.0/640))}, v{vST}")
        c(f"v_mul_f32 v{vST+1}, {hex(f2u(1.0/640))}, v{vST+1}")
        c(f"v_fma_f32 v{vST+1}, -v{vST}, v{vST}, v{vST+1}")
        c(f"v_max_f32 v{vST+1}, 0, v{vST+1}")
        c(f"v_add_f32 v{vST+1}, {hex(f2u(1e-5))}, v{vST+1}")
        c(f"v_rsq_f32 v{vST+1}, v{vST+1}")
        nl = hex(f2u(-1.4426950408889634))
        c(f"v_mov_b32 v{vST+4}, {nl}")
        c(f"v_mov_b32 v{vST+5}, {nl}")
        c(f"v_mul_f32 v{vST+1}, v{vST+4}, v{vST+1}")
        c(f"v_mov_b32 v{vST+2}, v{vST}")
        c(f"v_mov_b32 v{vST+3}, v{vST+1}")
        c(f"v_permlane32_swap_b32 v{vST}, v{vST+2}")
        c(f"v_permlane32_swap_b32 v{vST+1}, v{vST+3}")
        c(f"s_mul_i32 s{sT+1}, s{sT}, {2*57344}")
        c(f"s_mul_i32 s{sT+2}, s{sFB}, 3584")
        c(f"s_add_u32 s{sT+1}, s{sT+1}, s{sT+2}")
        c(f"s_add_u32 s{sT+1}, s{sT+1}, {H1_OFF}")
        c(f"s_add_u32 s{sT+2}, s{sT+1}, 57344")
        c(f"v_bfe_u32 v{t+6}, v1, 4, 1")
        c(f"v_mul_u32_u24 v{t+6}, 57344, v{t+6}")
        c(f"v_and_b32 v{t+7}, 15, v1")
        c(f"v_lshl_add_u32 v{t+6}, v{t+7}, 4, v{t+6}")
        c(f"v_lshl_add_u32 v{t+6}, v{t+1}, 8, v{t+6}")
        c(f"s_lshr_b32 s{sT+13}, s{sT}, 1")
        c(f"s_lshl_b32 s{sT+13}, s{sT+13}, 7")
        c(f"s_and_b32 s{sT+3}, s{sW}, 1")
        c(f"s_lshl1_add_u32 s{sT+3}, s{sFB}, s{sT+3}")
        c(f"s_lshl2_add_u32 s{sT+13}, s{sT+3}, s{sT+13}")
        c(f"s_add_u32 s{sT+13}, s{sT+13}, {F4_OFF}")

    def p4_epilogue(self, st):
        c, o = self.c, self.o
        vAC, vW, vST, vCS = self.p4AC, self.p4W, self.p4ST, self.p4CS
        t = 8
        vE, vOUT = 52, vW
        groups = [[(a, 2 * P), (a, 2 * P + 1)] for P in range(3) for a in range(2)] + [[(0, 6), (1, 6)]]
        for gi, g in enumerate(groups):
            if gi < 5:
                c.add(self.w2_take(o.get('p4e', 3)))
            pairs = [(vAC + 28 * a + 4 * tl + 2 * q, vCS + 4 * tl + 2 * q, vST + 2 * a) for a, tl in g for q in range(2)]
            for r, cs, sv in pairs:
                c(f"v_pk_fma_f32 {vr(r,2)}, {vr(cs,2)}, {vr(sv,2)}, {vr(r,2)} op_sel_hi:[1,0,1]")
            for r, cs, sv in pairs:
                c(f"v_pk_mul_f32 {vr(r,2)}, {vr(r,2)}, {vr(sv,2)} op_sel:[0,1] op_sel_hi:[1,1]")
            for k, (r, cs, sv) in enumerate(pairs):
                c(f"v_exp_f32 v{vE+2*k}, v{r}")
                c(f"v_exp_f32 v{vE+2*k+1}, v{r+1}")
            for k in range(4):
                c(f"v_pk_fma_f32 {vr(vE+2*k,2)}, {vr(vE+2*k,2)}, {vr(vST+4,2)}, {vr(vST+4,2)}")
            for k in range(8):
                c(f"v_rcp_f32 v{vE+k}, v{vE+k}")
            for k, (r, cs, sv) in enumerate(pairs):
                c(f"v_pk_mul_f32 {vr(r,2)}, {vr(r,2)}, {vr(vE+2*k,2)}")
            out = vOUT + 4 * gi
            for k, (r, cs, sv) in enumerate(pairs):
                c(f"v_cvt_pk_bf16_f32 v{out+k}, v{r}, v{r+1}")
            if gi < 6:
                c(f"buffer_store_dwordx4 {vr(out,4)}, v{vL16}, {WSR}, s{sT+1+(gi&1)} offen offset:{(gi>>1)*1024} {st}")
            else:
                c(f"v_cmp_gt_u32 vcc, 48, v1")
                for k in range(4):
                    c(f"v_cndmask_b32 v{out+k}, 0, v{out+k}, vcc")
                c(f"v_permlane16_swap_b32 v{out}, v{out+2}")
                c(f"v_permlane16_swap_b32 v{out+1}, v{out+3}")
                h = c(f"buffer_store_dwordx4 {vr(out,4)}, v{t+6}, {WSR}, s{sT+1} offen offset:3072 {st}")
        self.stamp("p4epi")
        c.add(self.w2_take(o.get('p4d', 4)))
        self.p5_prep()
        c.wait(h)
        self.stamp("h1drain")
        self.flag_store_near(sT + 13)
        c.add(self.w2_take(70))

    p5A, p5NR, p5AC, p5PB, p5SUM = 64, 20, 144, 208, 32

    def p5_prep(self):
        c = self.c
        t, rs, vSUM = 16, self.vRES, self.p5SUM
        c(f"s_mul_i32 s{sT+5}, s{sU}, {4*57344}")
        c(f"s_mul_i32 s{sT+6}, s{sW}, 14336")
        c(f"s_add_u32 s{sT+5}, s{sT+5}, s{sT+6}")
        c(f"s_add_u32 s{sT+5}, s{sT+5}, {H1_OFF}")
        for i, cc in enumerate(self.CORD):
            c(f"s_xor_b32 s{sT+6}, s{sW}, {cc}")
            c(f"s_mul_i32 s{sT+8+i}, s{sT+6}, 57344")
            c(f"s_add_u32 s{sT+8+i}, s{sT+8+i}, s{sT+5}")
        c(f"s_lshl_b32 s{sT+3}, s{sU}, 7")
        c(f"s_lshl_b32 s{sT+6}, s{sW}, 5")
        c(f"s_add_u32 s{sT+3}, s{sT+3}, s{sT+6}")
        c(f"s_add_u32 s{sT+3}, s{sT+3}, {F4_OFF - FL_OFF}")
        c(f"v_and_b32 v{self.vPOL}, 7, v1")
        c(f"v_lshl_add_u32 v{self.vPOL}, v{self.vPOL}, 2, s{sT+3}")

    def p5_prep2(self):
        c = self.c
        t, rs, vSUM = 16, self.vRES, self.p5SUM
        for i, cc in enumerate(self.CORD):
            c(f"s_xor_b32 s{sT+6}, s{sW}, {cc}")
            c(f"s_mul_i32 s{sT+6}, s{sT+6}, 15360")
            if 0 < i < 3:
                c(f"s_add_u32 s{sT+6}, s{sT+6}, {i*5120}")
            c(f"v_add_u32 v{t+6+i}, s{sT+6}, v{vL16}")
        for j in range(10):
            c(f"v_lshlrev_b32 v{vSUM+2*j}, 16, v{rs+j}")
            c(f"v_and_b32 v{vSUM+2*j+1}, s{sMASK}, v{rs+j}")
        c(f"s_lshl_b32 s{sT+6}, s{sW}, 12")
        c(f"s_add_u32 s{sT+6}, s{sT+6}, 65536")
        c(f"v_and_b32 v{t}, 15, v1")
        c(f"v_mul_u32_u24 v{t}, 160, v{t}")
        c(f"v_add_u32 v{t}, s{sT+6}, v{t}")
        c(f"v_lshrrev_b32 v{t+1}, 4, v1")
        c(f"v_lshl_add_u32 v{t+2}, v{t+1}, 3, v{t}")
        c(f"v_lshl_add_u32 v{t+1}, v{t+1}, 4, v{t}")
        c(f"v_add_u32 v{t}, s{sT+6}, v{vL16}")
        for j in range(3):
            c(f"v_add_u32 v{t+10}, {64*j}, v1")
            c(f"v_mul_u32_u24 v{t+11}, 6554, v{t+10}")
            c(f"v_lshrrev_b32 v{t+11}, 16, v{t+11}")
            c(f"v_mul_u32_u24 v{t+11}, {1280-160}, v{t+11}")
            c(f"v_lshl_add_u32 v{t+3+j}, v{t+10}, 4, v{t+11}")
        c(f"s_lshl2_add_u32 s{sT}, s{sU}, s{sW}")
        c(f"s_mul_i32 s{sT}, s{sT}, {16*1280}")
        c(f"s_mul_i32 s{sT+1}, s{sNB}, 160")
        c(f"s_add_u32 s{sT}, s{sT}, s{sT+1}")

    def phase5(self):
        c, o = self.c, self.o
        ld = o.get('la', 'sc1')
        vA, NR, vAC, vPB, vSUM = self.p5A, self.p5NR, self.p5AC, self.p5PB, self.p5SUM
        t = 16
        rs = self.vRES
        c("s_barrier")
        self.poll(self.vPOL)
        self.stamp("s4", "main p5")

        def lda(k):
            i, s = divmod(k, 14)
            pre = [I(f"s_add_u32 s{sT+8+i}, s{sT+8+i}, 4096")] if s and s % 4 == 0 else []
            return pre + [I(f"buffer_load_dwordx4 {vr(vA+4*(k%NR),4)}, v{vL16}, {WSR}, s{sT+8+i} offen offset:{(s&3)*1024} {ld}")]
        LA = o.get('p5la', 12)
        for k in range(LA):
            c.add(lda(k))
        self.p5_prep2()
        for i in range(4):
            ac = vAC + 20 * (i & 1)
            F = [[] for _ in range(70)]
            if i > 0:
                pa = vAC + 20 * ((i - 1) & 1)
                for tl in range(5):
                    F[3 + 5 * tl].append(I(f"ds_write_b128 v{t+6+i-1}, {vr(pa+4*tl,4)} offset:{tl*1024}"))
            if i == 3:
                F[27] += [I("s_waitcnt lgkmcnt(0)"), I("s_barrier")]
                k = 28
                for r in range(3):
                    for tl in range(5):
                        F[k + tl // 2] += [I(f"ds_read_b128 {vr(vPB+4*tl,4)}, v{t+9} offset:{r*5120 + tl*1024}")]
                    for j in range(10):
                        F[k + 4 + j] += [I(f"v_add_f32 v{vSUM+2*j}, v{vSUM+2*j}, v{vPB+2*j}"), I(f"v_add_f32 v{vSUM+2*j+1}, v{vSUM+2*j+1}, v{vPB+2*j+1}")]
                    k += 14
            for s in range(14):
                k = 14 * i + s
                for tl in range(5):
                    d = vr(ac + 4 * tl, 4)
                    c(f"v_mfma_f32_16x16x32_bf16 {d}, {self.w2reg(5*s+tl)}, {vr(vA+4*(k%NR),4)}, {0 if s == 0 else d}")
                    if tl == 0 and k + LA < 56:
                        c.add(lda(k + LA))
                    c.add(F[5 * s + tl])
                if s in (0, 4, 9, 13):
                    self.stamp(f"i{i}s{s}", "p5")
        self.stamp("p5")
        ac = vAC + 20
        for P in range(3):
            for j in range(4 * P, min(4 * P + 4, 10)):
                c(f"v_pk_add_f32 {vr(vSUM+2*j,2)}, {vr(vSUM+2*j,2)}, {vr(ac+2*j,2)}")
            for j in range(4 * P, min(4 * P + 4, 10)):
                c(f"v_cvt_pk_bf16_f32 v{rs+j}, v{vSUM+2*j}, v{vSUM+2*j+1}")
            if P < 2:
                c(f"ds_write_b128 v{t+1}, {vr(rs+4*P,4)} offset:{64*P}")
            else:
                c(f"ds_write_b64 v{t+2}, {vr(rs+8,2)} offset:128")
        for j in range(3):
            c(f"ds_read_b128 {vr(vPB+4*j,4)}, v{t} offset:{j*1024}")
        for j in range(3):
            if j == 2:
                c(f"s_not_b64 exec, s[{sHI}:{sHI+1}]")
            c(f"buffer_store_dwordx4 {vr(vPB+4*j,4)}, v{t+3+j}, s[{sOUT}:{sOUT+3}], s{sT} offen {o.get('ost', '').replace('+', ' ')}")
        c("s_mov_b64 exec, -1")

    def build(self):
        c = self.c
        self.prologue()
        self.phase1()
        self.attention()
        self.phase3()
        self.phase4()
        self.phase5()
        if self.o.get('stamps'):
            c("s_waitcnt vmcnt(0) lgkmcnt(0)")
            self.stamp("end")
            self.dump_stamps()
        if self.o.get('probe'):
            c("s_waitcnt vmcnt(0) lgkmcnt(0)")
            self.stamp("end")
            if 'pmask' in self.o:
                c(f"s_and_b32 s{sT}, s2, {self.o['pmask']}")
                c(f"s_cmp_lg_u32 s{sT}, {self.o['pval']}")
                c("s_cbranch_scc1 Lend")
            if self.o.get('pmin'):
                c(f"s_load_dwordx2 s[{sDBG}:{sDBG+1}], s[0:1], 56")
                c(f"s_not_b32 s{sT}, s{sST}")
                c(f"v_mov_b32 v2, s{sT}")
                c("v_mov_b32 v3, 0")
                c("s_mov_b64 exec, 1")
                c(f"global_atomic_umax v3, v2, s[{sDBG}:{sDBG+1}] sc1")
                c(f"s_sub_u32 s{sST}, s{sST}, 1000")
                c("Lprobe0:")
                c(f"s_memrealtime s[{sTM}:{sTM+1}]")
                c("s_waitcnt lgkmcnt(0)")
                c(f"s_sub_u32 s{sT}, s{sTM}, s{sST}")
                c(f"s_cmp_lt_i32 s{sT}, 0")
                c("s_cbranch_scc1 Lprobe0")
                c(f"global_load_dword v2, v3, s[{sDBG}:{sDBG+1}] sc1")
                c(f"v_readfirstlane_b32 s{sT}, v2")
                c(f"s_not_b32 s{sST}, s{sT}")
                c(f"s_add_u32 s{sST}, s{sST}, 1000")
            c("Lprobe:")
            c(f"s_memrealtime s[{sTM}:{sTM+1}]")
            c("s_waitcnt lgkmcnt(0)")
            c(f"s_sub_u32 s{sT}, s{sTM}, s{sST}")
            c(f"s_cmp_lt_i32 s{sT}, 0")
            c("s_cbranch_scc1 Lprobe")
        c("s_endpgm")
        c.add(self.ool.ins)
        c("Lend:")
        body = finalize(c)
        return f"""; Fused pre-LN sliding-window attention block + SiLU FFN (generated by work/gen.py)
; @launch grid=(256,1,1) block=(256,1,1) lds=163840
.amdgcn_target "amdgcn-amd-amdhsa--gfx950"
.text
.globl {NAME}_kernel
.p2align 8
.type {NAME}_kernel,@function
{NAME}_kernel:
{body}
  s_endpgm
Lcode_end:
.section .rodata,"a"
.p2align 6
.amdhsa_kernel {NAME}_kernel
  .amdhsa_next_free_vgpr 512
  .amdhsa_next_free_sgpr 102
  .amdhsa_accum_offset 256
  .amdhsa_group_segment_fixed_size 0
  .amdhsa_kernarg_size 72
  .amdhsa_user_sgpr_count 2
  .amdhsa_user_sgpr_kernarg_segment_ptr 1
  .amdhsa_system_sgpr_workgroup_id_x 1
.end_amdhsa_kernel
"""


def generate(**opt):
    g = Gen(opt)
    return g.build(), g


if __name__ == "__main__":
    opt = {}
    out = None
    for a in sys.argv[1:]:
        if '=' in a:
            k, v = a.split('=', 1)
            opt[k] = int(v) if v.lstrip('-').isdigit() else v
        else:
            out = a
    asm, g = generate(**opt)
    open(out or f"cdna_kernels/{NAME}.s", "w").write(asm)
    print(len(asm.splitlines()), "lines")
```

```python
import sys, struct
from dsl import *

NAME = "sequential_preLN__sliding_block__dense_activation_silu__prompt"

QK_OFF = 0
V_OFF = QK_OFF + 32 * 163840
O_OFF = V_OFF + 64 * 40960
H_OFF = O_OFF + 32 * 81920
HST_OFF = H_OFF + 128 * 20480
H1_OFF = HST_OFF + 128 * 1024
WO_OFF = H1_OFF + 128 * 57344
W1_OFF = WO_OFF + 8 * 102400
W2_OFF = W1_OFF + 16 * 143360
PX_OFF = W2_OFF + 8 * 286720
RST_OFF = PX_OFF + 1024 * 2560
CST_OFF = RST_OFF + 16 * 20480
FL_OFF = CST_OFF + 16 * 10240
F2_OFF = FL_OFF + 4096
F4_OFF = FL_OFF + 4 * 4096
FW1_OFF = FL_OFF + 16 * 4096
FX_OFF = FW1_OFF + 65536
FW2_OFF = FX_OFF + 32768
F1_OFF = FW2_OFF + 65536
FWO_OFF = F1_OFF + 32768
F3_OFF = FL_OFF + 72 * 4096
F5_OFF = F3_OFF + 131072
EP_OFF = FL_OFF + 8 * 4096
ST_OFF = FL_OFF + 136 * 4096
WS_SIZE = ST_OFF + 256 * 4 * 128

TAGC = 0x9E3779B8
SPIN_MAX = 200000
OOB = 0x7fff0000


def f2u(x):
    return struct.unpack('<I', struct.pack('<f', x))[0]


sX, sWQ, sWS, sKV, sOUT, sRP = 4, 8, 12, 16, 20, 24
sDBG, sWO, sW1, sW2 = 28, 30, 32, 34
sTP = 3
sW, sTAG, sRB1, sCT, sU, sNB, sRB, sFB = 36, 37, 38, 39, 40, 41, 42, 43
sHI = 44
sMASK = 46
sHEAD = 47
sT = 48
sST = 101
sK8, sSAME, sXCC = 85, 86, 87
sVM = 88
sWOO, sW1O, sW2B, sW2O = 90, 91, 92, 93
sFLB = 94
sW1M = 95
sTM = 96
sRPD, sRPF, sRPT = 98, 99, 100
WSR = f"s[{sWS}:{sWS+3}]"

vL16 = 2
vFLG = 254


class Gen:
    def __init__(self, opt):
        self.o = opt
        self.c = Code()
        self.ool = Code()
        self.stamp_names = []
        self.lab = 0
        self.ld = opt.get('ld', 'sc1')

    def label(self, base):
        self.lab += 1
        return f"L{base}_{self.lab}"

    def sub(self, fn, *a):
        k = Code()
        old, self.c = self.c, k
        fn(*a)
        self.c = old
        return k.ins

    def stamp(self, name, group='main'):
        if self.o.get('probe') and name in ('t0', self.o['probe']):
            self.c(f"s_memrealtime s[{sTM}:{sTM+1}]")
            self.c("s_waitcnt lgkmcnt(0)")
            self.c(f"s_add_u32 s{sST}, s{sTM}, 6000")
        if not self.o.get('stamps'):
            return
        if self.o.get('zoom', 'main') not in group.split() and name != 't0':
            return
        if name in self.stamp_names:
            idx = self.stamp_names.index(name)
        else:
            idx = len(self.stamp_names)
            self.stamp_names.append(name)
        assert idx < 32, name
        c = self.c
        c(f"{'s_memtime' if self.o.get('cyc') else 's_memrealtime'} s[{sTM}:{sTM+1}]")
        c("s_waitcnt lgkmcnt(0)")
        c(f"v_writelane_b32 v255, s{sTM}, {idx}")

    def dump_stamps(self):
        if not self.o.get('stamps'):
            return
        c = self.c
        c(f"s_lshl_b32 s{sT}, s2, 2")
        c(f"s_add_u32 s{sT}, s{sT}, s{sW}")
        c(f"s_lshl_b32 s{sT}, s{sT}, 7")
        c(f"s_add_u32 s{sT}, s{sT}, {ST_OFF}")
        c("v_lshlrev_b32 v3, 2, v1")
        c(f"s_not_b64 exec, s[{sHI}:{sHI+1}]")
        c(f"buffer_store_dword v255, v3, {WSR}, s{sT} offen")
        c("s_mov_b64 exec, -1")

    def prologue(self):
        c, o = self.c, self.o
        if o.get('stamps'):
            c("v_mov_b32 v255, 0")
        self.stamp("t0")
        c("s_cmp_ge_u32 s2, 256")
        c("s_cbranch_scc1 Lend")
        for _ in range(o.get('x_delay', 0)):
            c("s_sleep 32")
        c(f"s_load_dwordx2 s[{sX}:{sX+1}], s[0:1], 0")
        c(f"s_load_dwordx2 s[{sWQ}:{sWQ+1}], s[0:1], 8")
        c(f"s_load_dwordx2 s[{sWS}:{sWS+1}], s[0:1], 64")
        c(f"s_load_dwordx2 s[{sWO}:{sWO+1}], s[0:1], 16")
        c(f"s_load_dwordx4 s[{sW1}:{sW1+3}], s[0:1], 32")
        c(f"s_load_dwordx2 s[{sOUT}:{sOUT+1}], s[0:1], 48")
        c(f"s_getpc_b64 s[{sT}:{sT+1}]")
        c(f"s_lshr_b32 s{sT+3}, s2, 3")
        c(f"s_lshl_b32 s{sT+2}, s{sT+3}, 11")
        c(f"v_lshl_add_u32 v2, v0, 7, s{sT+2}")
        c("v_min_u32 v2, Lcode_end-Lpc0-256, v2")
        c("v_cmp_gt_u32 vcc, 16, v0")
        c(f"s_and_saveexec_b64 s[{sT+4}:{sT+5}], vcc")
        c("s_cbranch_execz Lpc0")
        c.cond(True)
        c(f"global_load_dword v253, v2, s[{sT}:{sT+1}]")
        c.ins[-1].wr = []
        c.cond(False)
        c("Lpc0:")
        c("s_mov_b64 exec, -1")
        c("v_lshrrev_b32 v2, 6, v0")
        c("v_and_b32 v1, 63, v0")
        c(f"v_readfirstlane_b32 s{sW}, v2")
        c(f"s_and_b32 s{sT}, s2, 7")
        if o.get('p1map', 'C') == 'C':
            c(f"s_lshr_b32 s{sRB1}, s{sT}, 1")
            c(f"s_and_b32 s{sT+2}, s{sT+3}, 3")
            c(f"s_lshl2_add_u32 s{sRB1}, s{sRB1}, s{sT+2}")
            c(f"s_lshr_b32 s{sT+2}, s{sT+2}, 1")
            c(f"s_lshr_b32 s{sCT}, s{sT+3}, 2")
            c(f"s_cmp_eq_u32 s{sCT}, 7")
            c(f"s_cselect_b32 s{sT+2}, s{sT+2}, 0")
            c(f"s_xor_b32 s{sT+2}, s{sT+2}, s{sT}")
            c(f"s_and_b32 s{sT+2}, s{sT+2}, 1")
            c(f"s_lshl3_add_u32 s{sCT}, s{sT+2}, s{sCT}")
        elif o.get('p1map') == 'A':
            c(f"s_lshr_b32 s{sRB1}, s{sT+3}, 4")
            c(f"s_lshl1_add_u32 s{sRB1}, s{sT}, s{sRB1}")
            c(f"s_and_b32 s{sCT}, s{sT+3}, 15")
        else:
            c(f"s_and_b32 s{sRB1}, s{sT}, 1")
            c(f"s_and_b32 s{sT+2}, s{sT+3}, 7")
            c(f"s_lshl3_add_u32 s{sRB1}, s{sRB1}, s{sT+2}")
            c(f"s_lshr_b32 s{sCT}, s{sT}, 1")
            c(f"s_lshr_b32 s{sT+2}, s{sT+3}, 3")
            c(f"s_lshl2_add_u32 s{sCT}, s{sCT}, s{sT+2}")
        for r, size in ((sX, 2048 * 1280), (sWQ, 640 * 3840)):
            c(f"s_mov_b32 s{r+2}, {size}")
            c(f"s_mov_b32 s{r+3}, 0x20000")

    def base_setup(self):
        c = self.c
        c(f"s_add_u32 s{sTM}, s{sWS}, {EP_OFF}")
        c(f"s_addc_u32 s{sTM+1}, s{sWS+1}, 0")
        c(f"s_load_dword s{sTAG}, s[{sTM}:{sTM+1}], 0")
        for r, size in ((sWS, WS_SIZE), (sOUT, 2048 * 1280)):
            c(f"s_mov_b32 s{r+2}, {size}")
            c(f"s_mov_b32 s{r+3}, 0x20000")
        c(f"s_mov_b32 s{sHI}, 0")
        c(f"s_mov_b32 s{sHI+1}, -1")
        c(f"s_mov_b32 s{sMASK}, 0xffff0000")
        c(f"s_mov_b32 s{sFLB}, {FL_OFF}")

    def common_setup(self):
        c = self.c
        c(f"s_and_b32 s{sT}, s2, 7")
        c(f"s_lshr_b32 s{sT+1}, s2, 3")
        c(f"s_lshr_b32 s{sU}, s{sT+1}, 3")
        c(f"s_lshl2_add_u32 s{sU}, s{sT}, s{sU}")
        c(f"s_and_b32 s{sNB}, s{sT+1}, 7")
        c(f"s_lshr_b32 s{sRB}, s{sU}, 1")
        c(f"s_and_b32 s{sK8}, s2, 1")
        c(f"s_lshl3_add_u32 s{sFB}, s{sK8}, s{sNB}")
        c(f"s_andn2_b32 s{sTP}, s{sU}, 4")
        c(f"s_and_b32 s{sT}, s{sW}, 2")
        c(f"s_lshl1_add_u32 s{sTP}, s{sT}, s{sTP}")
        c(f"s_and_b32 s{sT}, s{sW}, 1")
        c(f"s_lshl1_add_u32 s{sTP}, s{sTP}, s{sT}")
        c(f"s_lshl2_add_u32 s{sHEAD}, s{sNB}, s{sW}")
        c(f"s_getreg_b32 s{sXCC}, hwreg(HW_REG_XCC_ID, 0, 4)")
        c(f"v_lshlrev_b32 v{vL16}, 4, v1")
        c(f"s_mul_i32 s{sWOO}, s{sHEAD}, 25600")
        c(f"s_add_u32 s{sWOO}, s{sWOO}, {WO_OFF}")
        c(f"s_lshl2_add_u32 s{sW1O}, s{sFB}, s{sW}")
        c(f"s_mul_i32 s{sW1O}, s{sW1O}, {35*1024}")
        c(f"s_add_u32 s{sW1O}, s{sW1O}, {W1_OFF}")
        c(f"s_mul_i32 s{sW1M}, s{sW}, {35*1024}")
        c(f"s_lshl2_add_u32 s{sK8}, s{sK8}, s{sW}")
        c(f"s_lshl3_add_u32 s{sW2B}, s{sNB}, s{sK8}")
        c(f"s_mul_i32 s{sW2B}, s{sW2B}, {35*1024}")
        c(f"s_add_u32 s{sW2B}, s{sW2B}, {W2_OFF}")
        c(f"s_mul_i32 s{sT}, s{sW}, 640")
        c(f"s_lshl_b32 s{sT+1}, s{sNB}, 12")
        c(f"s_add_u32 s{sT}, s{sT}, s{sT+1}")
        c(f"s_add_u32 s{sT}, s{sT}, {FWO_OFF - FL_OFF}")
        c(f"v_min_u32 v{self.vWOF}, 4, v1")
        c(f"v_lshl_add_u32 v{self.vWOF}, v{self.vWOF}, 7, s{sT}")

    def tag_ready(self):
        self.c(f"s_add_u32 s{sTAG}, s{sTAG}, {TAGC}")

    def flag_store(self, so, R=WSR):
        c = self.c
        c(f"v_mov_b32 v{vFLG}, s{sTAG}")
        c(f"v_lshlrev_b32 v253, 2, v1")
        c(f"s_not_b64 exec, s[{sHI}:{sHI+1}]")
        h = c(f"buffer_store_dword v{vFLG}, v253, {R}, s{so} offen sc1")
        c("s_mov_b64 exec, -1")
        return h

    def poll(self, va, vd=vFLG, span=False, sleep=0):
        c = self.c
        L, Ld = self.label("pl"), self.label("pd")
        n = sT + 12
        c(f"s_mov_b32 s{n}, {SPIN_MAX}")
        c(f"{L}:")
        c(f"buffer_load_dword v{vd}, v{va}, {WSR}, s{sFLB} offen sc1")
        c(f"s_sub_u32 s{n}, s{n}, 1")
        c(f"s_cbranch_scc1 {Ld}")
        c("s_waitcnt vmcnt(0)")
        self.tag_cmp(vd, span)
        if sleep:
            c(f"s_cbranch_vccz {Ld}")
            c(f"s_sleep {sleep}")
            c(f"s_branch {L}")
        else:
            c(f"s_cbranch_vccnz {L}")
        c(f"{Ld}:")
        c("s_waitcnt vmcnt(0)")

    def tag_cmp(self, vd, span):
        c = self.c
        if span:
            c(f"v_subrev_u32 v253, s{sTAG}, v{vd}")
            c(f"v_cmp_le_u32 vcc, 16, v253")
        else:
            c(f"v_cmp_ne_u32 vcc, s{sTAG}, v{vd}")

    def flag_check(self, vd, va, span=False, sleep=4):
        c = self.c
        Ls, Lb = self.label("fs"), self.label("fb")
        self.tag_cmp(vd, span)
        c("s_nop 3")
        c(f"s_cbranch_vccnz {Ls} ; noflush")
        c(f"{Lb}: ; noflush")
        old, self.c = self.c, self.ool
        self.c(f"{Ls}:")
        self.c("s_nop 15")
        self.poll(va, vd, span, sleep=sleep)
        self.c(f"s_branch {Lb}")
        self.c = old

    def flag_store_near(self, so):
        c = self.c
        Lf, Lb = self.label("far"), self.label("near")
        c(f"v_mov_b32 v{vFLG}, s{sTAG}")
        c(f"s_cmp_eq_u32 s{sSAME}, 0")
        c("s_mov_b64 exec, 1")
        c(f"s_cbranch_scc1 {Lf} ; noflush")
        c(f"buffer_store_dword v{vFLG}, off, {WSR}, s{so}")
        c(f"{Lb}: ; noflush")
        c("s_mov_b64 exec, -1")
        k = self.ool
        k(f"{Lf}:")
        k(f"buffer_store_dword v{vFLG}, off, {WSR}, s{so} sc1")
        k(f"s_branch {Lb}")

    NS = 3
    P1_WB = 3 * 16384
    P1_EX = 143360
    vXD, vWD, vXA, vWA, vXS, vWS_, vSEL, vSQ, vTMP, vRS, vCS = 4, 8, 12, 14, 18, 22, 24, 23, 28, 36, 40
    vPA = 44
    vRP = 52
    vWOF, vWOD = 59, 60
    vACC, vFR, vSF, vEP = 64, 128, 192, 208
    sKC, sKX, sKW, sW4 = sT + 8, sT + 9, sT + 10, sT + 11
    sSS, sONE = 76, 77

    def p1_setup(self):
        c, o = self.c, self.o
        t = self.vTMP
        c(f"s_lshr_b32 s{sT}, s2, 1")
        c(f"s_xor_b32 s{sT}, s{sT}, s2")
        c(f"s_and_b32 s{sT}, s{sT}, 1")
        c(f"s_mul_i32 s{self.sKC}, s{sT}, 5")
        c(f"s_lshl_b32 s{self.sW4}, s{sW}, 12")
        c(f"s_lshl2_add_u32 s{sT}, s{sRB1}, s{sW}")
        c(f"s_mul_i32 s{sT}, s{sT}, {32*1280}")
        c(f"v_lshrrev_b32 v{t}, 3, v1")
        c(f"v_mul_u32_u24 v{t}, 1280, v{t}")
        c(f"v_lshrrev_b32 v{t+1}, 4, v1")
        c(f"v_and_b32 v{t+2}, 7, v1")
        c(f"v_xor_b32 v{t+2}, v{t+2}, v{t+1}")
        c(f"v_lshlrev_b32 v{t+2}, 4, v{t+2}")
        c(f"v_add3_u32 v{self.vXD}, v{t+2}, v{t}, s{sT}")
        c(f"v_xor_b32 v{t+3}, 64, v{self.vXD}")
        c(f"s_cmp_ge_u32 s{sCT}, 10")
        c(f"s_cselect_b32 s{sT+1}, 10240, 0")
        c(f"s_add_u32 s{sT}, s{sT+1}, {10240-1024}")
        c(f"s_sub_u32 s{sT+1}, {2*(10240-1024)}, s{sT+1}")
        c(f"v_add_u32 v{self.vXD+1}, s{sT}, v{t+3}")
        c(f"v_add_u32 v{self.vXD+2}, s{sT+1}, v{self.vXD}")
        c(f"v_add_u32 v{self.vXD+3}, {3*(10240-1024)}, v{t+3}")
        c(f"s_mul_i32 s{sT}, s{sW}, {16*3840}")
        c(f"s_lshl_b32 s{sT+1}, s{sCT}, 8")
        c(f"s_add_u32 s{sT}, s{sT}, s{sT+1}")
        c(f"v_mul_u32_u24 v{t}, 3840, v{t+1}")
        c(f"v_and_b32 v{t+2}, 15, v1")
        c(f"v_lshlrev_b32 v{t+3}, 1, v{t+1}")
        c(f"v_xor_b32 v{t+2}, v{t+2}, v{t+3}")
        c(f"v_lshlrev_b32 v{t+2}, 4, v{t+2}")
        c(f"v_add3_u32 v{self.vWD}, v{t+2}, v{t}, s{sT}")
        c(f"v_xor_b32 v{t+3}, 128, v{self.vWD}")
        for j in range(1, 4):
            c(f"v_add_u32 v{self.vWD+j}, {j*(4*3840-1024)}, v{self.vWD if j < 2 else t+3}")

    def p1_dma(self, s):
        slot = s % self.NS
        pre = []
        if s > 0:
            pre += [I(f"s_add_u32 s{self.sKC}, s{self.sKC}, 1"),
                    I(f"s_cmp_eq_u32 s{self.sKC}, 10"),
                    I(f"s_cselect_b32 s{self.sKC}, 0, s{self.sKC}")]
        items = []
        for j in range(4):
            d = I(f"buffer_load_dwordx4 v{self.vXD+j}, s[{sX}:{sX+3}], s{self.sKX} offen offset:{j*1024} lds")
            items.append(([I(f"s_add_u32 m0, s{self.sW4}, {slot*16384}"), I(f"s_lshl_b32 s{self.sKX}, s{self.sKC}, 7")] if j == 0 else []) + [d])
        for j in range(4):
            d = I(f"buffer_load_dwordx4 v{self.vWD+j}, s[{sWQ}:{sWQ+3}], s{self.sKW} offen offset:{j*1024} lds")
            items.append(([I(f"s_add_u32 m0, s{self.sW4}, {self.P1_WB + slot*16384}"), I(f"s_mul_i32 s{self.sKW}, s{self.sKC}, {64*3840}")] if j == 0 else []) + [d])
        return pre, items, d

    def p1_setup2(self):
        c = self.c
        t = self.vTMP
        c(f"s_lshr_b32 s{sT}, s{sW}, 1")
        c(f"s_and_b32 s{sT+1}, s{sW}, 1")
        c(f"v_and_b32 v{t}, 15, v1")
        c(f"s_lshl_b32 s{sT+2}, s{sT}, 13")
        c(f"v_lshl_add_u32 v{t}, v{t}, 7, s{sT+2}")
        c(f"v_lshrrev_b32 v{t+5}, 4, v1")
        c(f"v_bfe_u32 v{t+2}, v1, 1, 3")
        c(f"v_xor_b32 v{t+3}, v{t+2}, v{t+5}")
        c(f"v_lshl_add_u32 v{self.vXA}, v{t+3}, 4, v{t}")
        c(f"v_xor_b32 v{self.vXA+1}, 64, v{self.vXA}")
        c(f"v_bfe_u32 v{t+3}, v1, 2, 2")
        c(f"v_lshl_add_u32 v{t}, v{t+5}, 3, v{t+3}")
        c(f"v_lshlrev_b32 v{t}, 8, v{t}")
        c(f"v_bfe_u32 v{t+5}, v1, 2, 3")
        c(f"v_lshl_add_u32 v{t}, v{t+5}, 5, v{t}")
        c(f"v_and_b32 v{t+5}, 3, v1")
        c(f"v_lshlrev_b32 v{t+5}, 3, v{t+5}")
        c(f"v_add_u32 v{t+5}, {self.P1_WB}, v{t+5}")
        c(f"v_add_u32 v{t}, v{t}, v{t+5}")
        c(f"s_lshl_b32 s{sT+2}, s{sT+1}, 7")
        c(f"v_xor_b32 v{self.vWA}, s{sT+2}, v{t}")
        for n in range(1, 4):
            c(f"v_xor_b32 v{self.vWA+n}, {n*32}, v{self.vWA}")

    def p1_setup3(self, k0):
        c = self.c
        t = self.vTMP
        c(f"v_and_b32 v{t+4}, 31, v1")
        c(f"v_lshrrev_b32 v{t+1}, 5, v1")
        c(f"s_cmp_ge_u32 s{self.sSS}, 3")
        c(f"s_cselect_b32 s{sT+3}, 3, 0")
        c(f"s_sub_u32 s{sT+3}, s{self.sSS}, s{sT+3}")
        c(f"s_lshl_b32 s{sT+3}, s{sT+3}, 14")
        c(f"s_add_u32 s{sT+2}, s{sT+3}, s{self.sW4}")
        c(f"v_add_u32 v{t+5}, s{sT+3}, v{t+5}")
        c(f"v_lshl_add_u32 v{t}, v{t+4}, 7, s{sT+2}")
        c(f"v_xor_b32 v{t+2}, v{t+2}, v{t+1}")
        c(f"v_lshl_add_u32 v{self.vXS}, v{t+2}, 4, v{t}")
        for p in range(1, 4):
            c(f"v_xor_b32 v{self.vXS+p}, {p*32}, v{self.vXS}")
        c(f"v_lshl_add_u32 v{t}, v{t+1}, 3, v{t+3}")
        c(f"v_lshl_add_u32 v{t}, v{t}, 8, v{t+5}")
        c(f"v_lshl_add_u32 v{t+3}, v{t+1}, 2, v{t+3}")
        c(f"v_bfe_u32 v{t+2}, v1, 4, 1")
        c(f"v_xor_b32 v{t+3}, v{t+3}, v{t+2}")
        c(f"v_lshl_add_u32 v{t}, v{t+3}, 5, v{t}")
        c(f"s_lshl_b32 s{sT+2}, s{sW}, 6")
        c(f"v_xor_b32 v{self.vWS_}, s{sT+2}, v{t}")
        c(f"s_mov_b32 s{self.sONE}, 0x3f803f80")
        pa = self.vPA
        c(f"v_mov_b32 v{t+3}, {OOB}")
        for k, (role, other, off, sh) in enumerate(((sRB1, 75, RST_OFF, 4), (sCT, 74, CST_OFF, 3))):
            c(f"s_lshl2_add_u32 s{sT+2}, s{role}, s{sW}")
            c(f"s_mul_i32 s{sT+2}, s{sT+2}, {320 << sh}")
            c(f"s_add_u32 s{sT+2}, s{sT+2}, {off}")
            c(f"v_lshl_add_u32 v{t}, v{t+4}, {sh}, s{sT+2}")
            c(f"v_mul_u32_u24 v{t+2}, {160 << sh}, v{t+1}")
            c(f"v_add_u32 v{pa+2+k}, v{t}, v{t+2}")
            c(f"s_lshl_b32 s{sT+2}, s{k0}, {5 + sh}")
            c(f"v_add_u32 v{t}, s{sT+2}, v{t}")
            if k == 0:
                c(f"s_cmp_ge_u32 s{sCT}, 10")
                c(f"s_cselect_b32 s{sT+2}, 48, 0")
                c(f"v_lshrrev_b32 v{t+2}, 1, v1")
                c(f"v_xor_b32 v{t+2}, v{t+2}, v1")
                c(f"v_and_b32 v{t+2}, 8, v{t+2}")
                c(f"v_mul_u32_u24 v{t+2}, s{sT+2}, v{t+2}")
                c(f"v_xor_b32 v{t}, v{t}, v{t+2}")
            c(f"s_cmp_lt_u32 s{other}, 5")
            c(f"s_cselect_b64 s[{sT+2}:{sT+3}], s[{sHI}:{sHI+1}], -1")
            c(f"v_cndmask_b32 v{pa+k}, v{t}, v{t+3}, s[{sT+2}:{sT+3}]")
        c(f"s_lshl_b32 s{sT+2}, s{sW}, 7")
        c(f"s_add_u32 s{sT+2}, s{sT+2}, {self.P1_EX}")
        c(f"v_lshl_add_u32 v{pa+6}, v{t+4}, 2, s{sT+2}")

    def fx_publish(self):
        return [I(f"s_lshl3_add_u32 s{sT}, s{sU}, s{sNB}"),
                I(f"s_lshl_b32 s{sT}, s{sT}, 7"),
                I(f"s_add_u32 s{sT}, s{sT}, {FX_OFF}"),
                I(f"s_add_u32 s{sT+1}, s{sTAG}, s{sXCC}"),
                I(f"v_mov_b32 v61, s{sT+1}"),
                I(f"v_lshrrev_b32 v62, 5, v0"),
                I(f"v_lshlrev_b32 v62, 27, v62"),
                I(f"v_lshl_add_u32 v62, v0, 2, v62"),
                I(f"buffer_store_dword v61, v62, {WSR}, s{sT} offen sc1")]

    def p1_reads(self, s, p):
        slot = s % self.NS
        fr = self.vFR + 32 * p
        X = lambda a: [I(f"ds_read_b128 {vr(fr+4*a, 4)}, v{self.vXA+p} offset:{slot*16384 + a*2048}")]
        Wt = lambda n: [I(f"ds_read_b64_tr_b16 {vr(fr+16+4*n+2*t, 2)}, v{self.vWA+n} offset:{slot*16384 + p*8192 + t*1024}") for t in range(2)]
        return X(0) + Wt(0) + Wt(1) + X(1) + Wt(2) + X(2) + Wt(3) + X(3)

    def p1_stat_reads(self, s):
        sf = self.vSF
        lab = self.label("sc")
        r = []
        for q in range(4):
            r.append(I(f"ds_read_b128 {vr(sf+4*q, 4)}, v{self.vXS+q}"))
            r += [I(f"ds_read_b64_tr_b16 {vr(sf+16+4*q+2*j, 2)}, v{self.vWS_} offset:{q*4096 + j*1024}") for j in range(2)]
        for x in r:
            x.wr = []; x.cond = True
        return [I(f"s_cmp_lg_u32 s{self.sSS}, {s}"), I(f"s_cbranch_scc1 {lab} ; noflush")] + r + [I(f"{lab}: ; noflush")]

    def p1_stat_sums(self):
        k = self.c
        sf, u, pa = self.vSF, self.vRS, self.vPA
        for j in range(16):
            k(f"v_dot2_f32_bf16 v{u}, v{sf+j}, s{self.sONE}, {0 if j == 0 else f'v{u}'}")
            k(f"v_dot2_f32_bf16 v{u+2}, v{sf+j}, v{sf+j}, {0 if j == 0 else f'v{u+2}'}")
            k(f"v_dot2_f32_bf16 v{u+4}, v{sf+16+j}, s{self.sONE}, {0 if j == 0 else f'v{u+4}'}")

    def p1_stat_publish(self):
        k = self.c
        sf, u, pa = self.vSF, self.vRS, self.vPA
        for j in (0, 2, 4):
            k(f"v_mov_b32 v{u+j+1}, v{u+j}")
        for j in (0, 2, 4):
            k(f"v_permlane32_swap_b32 v{u+j}, v{u+j+1}")
        for j in (0, 2, 4):
            k(f"v_add_f32 v{u+j}, v{u+j}, v{u+j+1}")
        for j in (0, 2, 4):
            k(f"v_mov_b32 v{u+j+1}, s{sTAG}")
        k(f"buffer_store_dwordx4 {vr(u,4)}, v{pa}, {WSR}, 0 offen sc1")
        k(f"buffer_store_dwordx2 {vr(u+4,2)}, v{pa+1}, {WSR}, 0 offen sc1")

    def p1_stat_loads(self):
        q, pa = self.vSF, self.vPA
        return ([I(f"buffer_load_dwordx4 {vr(q+4*i,4)}, v{pa+2}, {WSR}, 0 offen offset:{i*512} sc1") for i in range(5)] +
                [I(f"buffer_load_dwordx2 {vr(q+20+2*i,2)}, v{pa+3}, {WSR}, 0 offen offset:{i*256} sc1") for i in range(5)])

    def p1_stat_tags(self):
        c = self.c
        q, x = self.vSF, self.vPA + 7
        c(f"v_xor_b32 v{x}, s{sTAG}, v{q+29}")
        for i in range(14):
            c(f"v_bitop3_b32 v{x}, v{q+1+2*i}, s{sTAG}, v{x} bitop3:0xbe")
        c(f"v_cmp_ne_u32 vcc, 0, v{x}")

    def p1_stat_check(self):
        c = self.c
        Ls, Lb, L = self.label("ss"), self.label("sb"), self.label("sl")
        c("s_nop 3")
        c(f"s_cbranch_vccnz {Ls} ; noflush")
        c(f"{Lb}: ; noflush")
        old, self.c = self.c, self.ool
        k = self.c
        k(f"{Ls}:")
        k("s_nop 15")
        k(f"s_mov_b32 s{sT+12}, {SPIN_MAX}")
        k(f"{L}:")
        k.add(self.p1_stat_loads())
        k("s_waitcnt vmcnt(0)")
        k(f"s_sub_u32 s{sT+12}, s{sT+12}, 1")
        k(f"s_cbranch_scc1 {Lb}")
        self.p1_stat_tags()
        k(f"s_cbranch_vccz {Lb}")
        k("s_sleep 4")
        k(f"s_branch {L}")
        self.c = old

    def p1_stats_finish(self, isv):
        c = self.c
        q, b, pa = self.vSF, 224, self.vPA
        c(f"v_add_f32 v{b}, v{q}, v{q+4}")
        c(f"v_add_f32 v{b+1}, v{q+2}, v{q+6}")
        c(f"v_add_f32 v{b+10}, v{q+20}, v{q+22}")
        for i in range(2, 5):
            c(f"v_add_f32 v{b}, v{b}, v{q+4*i}")
            c(f"v_add_f32 v{b+1}, v{b+1}, v{q+4*i+2}")
            c(f"v_add_f32 v{b+10}, v{b+10}, v{q+20+2*i}")
        c(f"v_mov_b32 v{b+2}, v{b}")
        c(f"v_mov_b32 v{b+3}, v{b+1}")
        c(f"v_mov_b32 v{b+11}, v{b+10}")
        c(f"v_permlane32_swap_b32 v{b}, v{b+2}")
        c(f"v_permlane32_swap_b32 v{b+1}, v{b+3}")
        c(f"v_permlane32_swap_b32 v{b+10}, v{b+11}")
        c(f"v_add_f32 v{b}, v{b}, v{b+2}")
        c(f"v_add_f32 v{b+1}, v{b+1}, v{b+3}")
        c(f"v_mul_f32 v{b}, {hex(f2u(-1.0/640))}, v{b}")
        c(f"v_mul_f32 v{b+1}, {hex(f2u(1.0/640))}, v{b+1}")
        c(f"v_add_f32 v{b+10}, v{b+10}, v{b+11}")
        c(f"v_fma_f32 v{b+1}, -v{b}, v{b}, v{b+1}")
        c(f"ds_write_b32 v{pa+6}, v{b}")
        c(f"v_max_f32 v{b+1}, 0, v{b+1}")
        c(f"v_add_f32 v{b+1}, {hex(f2u(1e-5))}, v{b+1}")
        c(f"v_rsq_f32 v{b+1}, v{b+1}")
        c(f"ds_write_b32 v{pa+6}, v{b+10} offset:1024")
        if not isv:
            c(f"v_mul_f32 v{b+1}, s{sT+7}, v{b+1}")
        c(f"ds_write_b32 v{pa+6}, v{b+1} offset:512")

    def p1_ep_prep(self, isv):
        c = self.c
        t = self.vTMP
        EX = self.P1_EX
        c(f"s_lshr_b32 s{sT}, s{sW}, 1")
        c(f"s_and_b32 s{sT+1}, s{sW}, 1")
        c(f"s_lshl1_add_u32 s{sT+2}, s{sRB1}, s{sT}")
        c(f"s_lshl1_add_u32 s{sT+3}, s{sCT}, s{sT+1}")
        c(f"s_lshl_b32 s{sT}, s{sT}, 8")
        c(f"s_add_u32 s{sT}, s{sT}, {EX}")
        c(f"s_lshl_b32 s{sT+1}, s{sT+1}, 8")
        c(f"s_add_u32 s{sT+1}, s{sT+1}, {EX+1024}")
        c(f"v_lshrrev_b32 v{t+4}, 4, v1")
        c(f"v_and_b32 v{t+5}, 15, v1")
        c(f"v_lshl_add_u32 v{t}, v{t+5}, 2, s{sT+(1 if isv else 0)}")
        c(f"v_lshl_add_u32 v{t+1}, v{t+4}, 4, s{sT+(0 if isv else 1)}")
        if isv:
            c(f"v_and_b32 v{t+2}, 32, v1")
            c(f"v_add_u32 v{t+1}, v{t+1}, v{t+2}")
        c(f"v_mul_u32_u24 v{t+4}, {(10240 if isv else 512) - 256}, v{t+4}")
        c(f"v_add_u32 v{t+4}, v{vL16}, v{t+4}")
        c(f"s_lshl4_add_u32 s{sT+13}, s{sRB1}, s{sCT}")
        c(f"s_lshl_b32 s{sT+13}, s{sT+13}, 7")
        c(f"s_add_u32 s{sT+13}, s{sT+13}, {F1_OFF}")
        if not isv:
            qs = (20 ** -0.5) * 1.4426950408889634
            c(f"s_mul_i32 s{sT+4}, s{sT+2}, 163840")
            c(f"s_lshl_b32 s{sT+5}, s{sT+3}, 13")
            c(f"s_add_u32 s{sT+4}, s{sT+4}, s{sT+5}")
            c(f"s_add_u32 s{sT+5}, s{sT+4}, 4096")
            c(f"s_cmp_lt_u32 s{sCT}, 5")
            c(f"s_cselect_b32 s{sT+7}, {hex(f2u(qs))}, 1.0")
        else:
            c(f"s_mul_i32 s{sT+4}, s{sT+2}, 81920")
            c(f"s_lshl_b32 s{sT+5}, s{sT+3}, 10")
            c(f"s_add_u32 s{sT+4}, s{sT+4}, s{sT+5}")
            c(f"s_add_u32 s{sT+4}, s{sT+4}, {V_OFF - 10*2048}")
            c(f"s_add_u32 s{sT+5}, s{sT+4}, 40960")

    def p1_ep_reads(self, isv):
        t, e, u = self.vTMP, self.vEP, self.vRS
        r = []
        if not isv:
            r += [I(f"ds_read2_b32 {vr(u+2*a,2)}, v{t} offset0:{16*a} offset1:{128+16*a}") for a in range(4)]
            r += [I(f"ds_read_b128 {vr(e+4*n, 4)}, v{t+1} offset:{64*n}") for n in range(4)]
        else:
            r += [I(f"ds_read2_b32 {vr(u+2*k,2)}, v{t} offset0:{32*k} offset1:{32*k+16}") for k in range(2)]
            for a in range(4):
                off = (32 * (a >> 1) + 8 * (a & 1)) * 4
                r.append(I(f"ds_read_b128 {vr(e+4*a, 4)}, v{t+1} offset:{off}"))
                r.append(I(f"ds_read_b128 {vr(e+16+4*a, 4)}, v{t+1} offset:{512+off}"))
        return r

    P1_ORDER = [(0, 0), (0, 1), (1, 0), (1, 1), (0, 2), (1, 2), (2, 0), (2, 1), (2, 2), (0, 3), (1, 3), (2, 3), (3, 0), (3, 1), (3, 2), (3, 3)]

    P1_SNAKE = [(0, 0), (0, 1), (1, 1), (1, 0), (1, 2), (0, 2), (2, 2), (2, 1), (2, 0), (2, 3), (1, 3), (0, 3), (3, 3), (3, 2), (3, 1), (3, 0)]

    def p1_loop(self, isv, h0, h1):
        c, o = self.c, self.o
        hd = {0: h0, 1: h1}
        pa = self.vPA
        c.wait(h0)
        c("s_barrier")
        self.stamp("b0", "main p1")
        R = self.p1_reads(0, 0)
        c.add(R)
        pre, dma, hd[2] = self.p1_dma(2)
        c.add(pre); c.add(dma[:4]); dma = dma[4:]
        extra = {k: [] for k in range(20)}
        mem = {k: [] for k in range(20)}
        tail = {k: [] for k in range(20)}
        k0, k1, k2 = o.get('rpa', 4), o.get('rpb', 9), o.get('rpc', 15)
        cs = self.sub(self.tag_ready) + self.late_setup
        per = -(-len(cs) // k0)
        for k in range(k0):
            extra[k] = [copy_ins(x) for x in cs[k * per:(k + 1) * per]]
        cs = self.fx_publish() + self.later_setup + glue(self.sub(self.p1_ep_prep, isv))
        per = -(-len(cs) // (16 - k0))
        for k in range(16 - k0):
            extra[k0 + k] = [copy_ins(x) for x in cs[k * per:(k + 1) * per]]
        assert k1 % 2 and k1 + 5 <= k2 <= 17 and k0 + 3 <= k1
        d, rd, stv, fs = self.rp_unit_items([24, 224, 228])
        d1, rd1, pad, stv1 = self.rp_unit1_items(232)
        d += d1; stv += stv1
        for j in range(3):
            tail[k0 + j] = d[2 * j:2 * j + 2]
        ns = min(o.get('rpn', 5), k2 - k1 - 2)
        for j in range(5):
            mem[k1 + 2 + j * ns // 5].append(stv[j])
        bwait = {k1: d[-1][-1]}
        self.rp_flag = fs
        extra[k1 + 1] = interleave(extra[k1 + 1], rd + rd1)
        extra[k1 + 2] = pad + extra[k1 + 2]
        extra[12].append(I(f"buffer_load_dword v{self.vWOD}, v{self.vWOF}, {WSR}, s{sFLB} offen sc1"))
        stl = self.p1_stat_loads()
        mem[15] += stl[:5]; mem[16] += stl[5:]
        wo = self.wo_loads()[:o.get('wot', 18)]
        if wo:
            extra[16].append(self.sub(self.flag_check, self.vWOD, self.vWOF))
        per = -(-len(wo) // 3)
        for k in range(3):
            mem[17 + k] = wo[k * per:(k + 1) * per]
        fin = self.sub(self.p1_stats_finish, isv)
        extra[18] = self.sub(self.p1_stat_tags) + [self.sub(self.p1_stat_check)] + fin[:14]
        for s in range(10):
            for p in range(2):
                k = 2 * s + p
                fr = self.vFR + 32 * p
                M = []
                for a, n in (self.P1_SNAKE if o.get('snake', 0) else self.P1_ORDER):
                    d = vr(self.vACC + 16 * a + 4 * n, 4)
                    xa, wb = vr(fr + 4 * a, 4), vr(fr + 16 + 4 * n, 4)
                    A, B = (xa, wb) if isv else (wb, xa)
                    M.append(I(f"v_mfma_f32_16x16x32_bf16 {d}, {A}, {B}, {0 if k == 0 else d}"))
                G = [[] for _ in range(16)]
                F = [[] for _ in range(16)]
                if k:
                    if p == 0:
                        M[0].waits = [R[5]]; M[4].waits = [R[11]]
                    else:
                        M[0].waits = [R[11]]
                g0 = 0
                if p == 0:
                    R = self.p1_reads(s, 1)
                elif s < 9:
                    R = self.p1_reads(s + 1, 0)
                    G[g0] = [W(hd[s + 1], *([bwait[k]] if k in bwait else []))] + [I("s_barrier")]
                else:
                    R = []
                for j, r in enumerate(R):
                    G[g0 + j].append(r)
                if p == 0 and s + 3 < 10:
                    pre, nxt, hd[s + 3] = self.p1_dma(s + 3)
                    G[15].append(pre)
                if p == 1 and s + 3 < 10:
                    dma = nxt
                D = interleave(dma[:4], mem[k]) + tail[k] if dma else mem[k]; dma = dma[4:]
                for j, d in enumerate(D):
                    g = 16 - len(D) + j
                    if o.get('dspread', 1):
                        g = g0 + 2 + j * (14 - g0) // len(D) if len(D) != 4 or g0 else 2 + 4 * j
                    d = flat(d)
                    F[g] += d[:-1]; G[g].insert(0, d[-1])
                X = extra[k]
                if k == 19:
                    for j, x in enumerate(fin[14:]):
                        G[j // 3].append(x)
                    G[7] += [I("s_waitcnt lgkmcnt(0)"), I("s_barrier")]
                    for j, r in enumerate(self.p1_ep_reads(isv)):
                        G[8 + j * 7 // 10].append(r)
                for j, x in enumerate(X):
                    G[1 + j * 14 // len(X)].append(x)
                if p == 0 and s < 5:
                    G[0].append(self.p1_stat_reads(s))
                if k == 8:
                    G[8].append([W(R[2])] + self.sub(self.p1_stat_sums))
                    for j, x in enumerate(self.sub(self.p1_stat_publish)):
                        G[11 + j // 3].append(x)
                for g in range(16):
                    c.add(F[g]); c.add(M[g]); c.add(G[g])
                if o.get('x_pad') and o.get('x_pads', 0) <= s < o.get('x_pade', 10):
                    for _ in range(o['x_pad']):
                        c("s_nop 7")
                if p == 1 or s >= 7:
                    self.stamp(f"e{s}{p}", "p1")

    def p1_epilogue(self, isv):
        c = self.c
        t, e, u = self.vTMP, self.vEP, self.vRS
        ob = self.vFR
        n0 = self.o.get('wot', 18)
        assert n0 > 0
        wo = self.wo_loads()[n0:n0 + self.o.get('woe', 0)]
        for k in range(8):
            out = ob + 4 * k
            if not isv:
                n, lo = k >> 1, k & 1
                rr = [(self.vACC + 16 * a + 4 * n + 2 * q, e + 4 * n + 2 * q, u + 2 * a) for a in (lo, lo + 2) for q in range(2)]
                for r, cs, sv in rr:
                    c(f"v_pk_fma_f32 {vr(r,2)}, {vr(cs,2)}, {vr(sv,2)}, {vr(r,2)} op_sel_hi:[1,0,1]")
                for r, cs, sv in rr:
                    c(f"v_pk_mul_f32 {vr(r,2)}, {vr(r,2)}, {vr(sv,2)} op_sel:[0,1] op_sel_hi:[1,1]")
                so, off = sT + 4 + (n >> 1), (n & 1) * 2048 + lo * 256
            else:
                T, n = k >> 2, k & 3
                sel = "op_sel_hi:[1,0,1]" if n % 2 == 0 else "op_sel:[0,1,0] op_sel_hi:[1,1,1]"
                rr = [(self.vACC + 16 * a + 4 * n + 2 * q, e + 4 * a + 2 * q, 0) for a in (2 * T, 2 * T + 1) for q in range(2)]
                for r, nm, _ in rr:
                    c(f"v_pk_fma_f32 {vr(r,2)}, {vr(nm,2)}, {vr(u+(n&2),2)}, {vr(r,2)} {sel}")
                for r, nm, _ in rr:
                    c(f"v_pk_mul_f32 {vr(r,2)}, {vr(r,2)}, {vr(nm+16,2)}")
                so, off = sT + 4 + T, n * 256
            for q, (r, _, _) in enumerate(rr):
                c(f"v_cvt_pk_bf16_f32 v{out+q}, v{r}, v{r+1}")
            h = c(f"buffer_store_dwordx4 {vr(out,4)}, v{t+4}, {WSR}, s{so} offen offset:{off} sc1")
            if k < 7:
                c.add(wo[k * len(wo) // 7:(k + 1) * len(wo) // 7])
        return h

    def phase1(self):
        c, o = self.c, self.o
        self.p1_setup()
        c(f"s_cmp_eq_u32 s{sCT}, 15")
        c("s_waitcnt lgkmcnt(0)")
        c("s_cbranch_scc1 Lp1_idle")
        c(".save p0")
        self.stamp("start")
        pre, d0, h0 = self.p1_dma(0)
        c.add(d0)
        c(f"s_lshr_b32 s{sT}, s{sRB1}, 3")
        c(f"s_and_b32 s{sT+1}, s{sRB1}, 3")
        c(f"s_lshl2_add_u32 s74, s{sT}, s{sT+1}")
        c(f"s_and_b32 s75, s{sCT}, 7")
        c(f"s_add_u32 s{sT}, s74, s75")
        c(f"s_mul_i32 s{sT+1}, s{sT}, 52")
        c(f"s_lshr_b32 s{sT+1}, s{sT+1}, 8")
        c(f"s_mul_i32 s{sT+1}, s{sT+1}, 5")
        c(f"s_sub_u32 s{self.sSS}, s{sT}, s{sT+1}")
        c(f"s_add_u32 s{sT+14}, s{self.sSS}, s{self.sKC}")
        pre, d1, h1 = self.p1_dma(1)
        c.add(pre); c.add(d1[:4])
        self.base_setup()
        self.p1_setup2()
        c.add(d1[4:])
        self.p1_setup3(sT + 14)
        late = glue(self.sub(self.common_setup) + self.sub(self.rp_setup_unit) + self.sub(self.rp_setup_unit1))
        ne = o.get('early', 60)
        c.add(late[:ne]); self.late_setup = late[ne:]
        vc = glue(self.sub(self.v_const))
        nv = o.get('vcn', 36)
        self.later_setup = vc[:nv]
        c(f"s_cmp_ge_u32 s{sCT}, 10")
        c("s_cbranch_scc1 Lp1_v")
        c(".save p1")
        for isv in (False, True):
            if isv:
                c("Lp1_v:")
                c(".restore p1")
            self.p1_loop(isv, h0, h1)
            self.stamp("p1loop")
            h = self.p1_epilogue(isv)
            if not isv:
                c("s_branch Lp1_done")
        c("Lp1_done:")
        self.stamp("p1epi")
        c.add(vc[nv:])
        n0 = min(o.get('wot', 18) + o.get('woe', 0), 25)
        self.woq = self.wo_loads()[n0:]
        self.w1q, self.w2q = list(range(35)), list(range(35))
        KV = f"s[{sKV}:{sKV+3}]"
        c("Lp1_join:")
        nb_ = o.get('wob', 0)
        if not n0:
            self.flag_check(self.vWOD, self.vWOF)
        c.add(self.woq[:nb_]); self.woq = self.woq[nb_:]
        init = glue(self.sub(self.attn_init) + self.sub(self.attn_prep))
        na = o.get('inita', 70)
        c.add(init[:na])
        self.stamp("ainit")
        c.wait(h)
        self.stamp("p1drain")
        c("s_barrier")
        lab = self.label("f1")
        c(f"s_cmp_lg_u32 s{sW}, 2")
        c(f"s_cbranch_scc1 {lab}")
        c.cond(True)
        self.flag_store(sT + 13)
        c.cond(False)
        c(f"{lab}:")
        lab = self.label("f1")
        c(f"s_cmp_lg_u32 s{sW}, 0")
        c(f"s_cbranch_scc1 {lab}")
        for x in self.rp_flag:
            x.cond = True
        c.add(self.rp_flag)
        c(f"{lab}:")
        nc_ = o.get('woc', 0)
        ld = self.woq[:nc_]; self.woq = self.woq[nc_:]
        c.add(interleave(init[na:], ld))
        self.stamp("join")
        old, self.c = self.c, self.ool
        self.idle_path(n0)
        self.c = old

    def idle_path(self, n0):
        c = self.c
        P = self.RPP
        gw = sT + 8
        KV = f"s[{sKV}:{sKV+3}]"
        c("Lp1_idle:")
        c(".restore p0")
        c(f"s_lshl2_add_u32 s{gw}, s{sRB1}, s{sW}")
        c(f"s_mov_b32 s{sRP}, s{sWO}")
        c(f"s_mov_b32 s{sRP+1}, s{sWO+1}")
        c(f"s_mov_b32 s{sRP+2}, {640*1280}")
        c(f"s_mov_b32 s{sRP+3}, 0x20000")
        t = self.vTMP
        for j in range(5):
            c(f"v_add_u32 v{t}, {64*j}, v1")
            c(f"v_mul_u32_u24 v{t+1}, 6554, v{t}")
            c(f"v_lshrrev_b32 v{t+2}, 16, v{t+1}")
            c(f"v_mul_u32_u24 v{t+2}, 70, v{t+2}")
            c(f"v_add_u32 v{t}, v{t}, v{t+2}")
            c(f"v_lshrrev_b32 v{t+2}, 20, v{t+1}")
            c(f"v_mul_u32_u24 v{t+2}, 320, v{t+2}")
            c(f"v_add_lshl_u32 v{self.vRP+j}, v{t}, v{t+2}, 4")
            c(f"v_lshrrev_b32 v{t+2}, 18, v{t+1}")
            c(f"v_mul_u32_u24 v{t+2}, 1280, v{t+2}")
            c(f"v_add_lshl_u32 v{44+j}, v{t}, v{t+2}, 4")
        c(f"s_and_b32 s{sT}, s{gw}, 7")
        c(f"s_mul_i32 s{sT}, s{sT}, 160")
        c(f"s_lshr_b32 s{sT+1}, s{gw}, 3")
        hd = {}
        for r in range(3):
            c(f"s_mul_i32 s{sT+9}, s{sT+1}, {(40 if r < 2 else 160)*1280}")
            c(f"s_add_u32 s{sT+9}, s{sT+9}, s{sT}")
            if r:
                c(f"s_add_u32 s{sT+9}, s{sT+9}, {(320 if r == 1 else 16)*1280}")
            if r == 2:
                c(f"s_cmp_lt_u32 s{gw}, 32")
                c(f"s_cselect_b32 s{sRP+2}, s{sRP+2}, 0")
            d = self.rp_dma(5, r * 5120, 40960, so=f"s{sT+9}", fl='', vb=self.vRP if r < 2 else 44)
            c.add(d); hd['o', r] = d[-1][-1]
        self.base_setup()
        self.common_setup()
        c(f"s_mov_b32 s{sKV}, s{sWS}")
        c(f"s_mov_b32 s{sKV+1}, s{sWS+1}")
        c(f"s_mov_b32 s{sKV+3}, 0x20000")
        c(f"s_and_b32 s82, s{gw}, 15")
        c(f"s_lshr_b32 s83, s{gw}, 4")
        c(f"s_mul_i32 s83, s83, 5")
        self.rp_w1_params(82, 83, 80)
        c(f"s_mov_b32 s{sRP+2}, {640*3456}")
        self.rp_w1_offsets(80)

        def dma1(r):
            c(f"s_mov_b32 s{sT+9}, {r*32*3456}")
            d = self.rp_dma(7, 15360 + (r % 3) * 7168, 40960, so=f"s{sT+9}", fl='')
            c.add(d); hd['a', r] = d[-1][-1]
        c(f"v_lshlrev_b32 v8, 7, v1")
        self.tag_ready()
        c.add(self.fx_publish())
        c(f"v_mov_b32 v{vFLG}, s{sTAG}")
        self.rp_addr(16, 160, 0, 40960, False)
        self.rp_addr(22, 224, 15360, 40960, sW)

        def params(kind, r):
            if kind == 'o':
                self.rp_params_wo(gw, r)
                c(f"s_cmp_lg_u32 s{sRPT}, 0")
                c(f"s_cselect_b32 s{sKV+2}, {WS_SIZE}, 0")
            else:
                c(f"s_mov_b32 s{sKV+2}, {WS_SIZE}")
                c(f"s_lshr_b32 s83, s{gw}, 4")
                c(f"s_mul_i32 s83, s83, 5")
                c(f"s_add_u32 s83, s83, {r}")
                self.rp_w1_params(82, 83)
        hs = {}

        def proc(kind, r, n):
            params(kind, r)
            c.wait(hd[kind, r])
            it = self.rp_items(5, 16, r * 5120, 64 + 20 * r, KV) if kind == 'o' else self.rp_items(7, 22, (r % 3) * 7168, 124 + 28 * (r % 3), KV)
            c.add(it); hs[kind, r] = flat(it)[-1]

        def flag(kind, r):
            params(kind, r)
            c.wait(hs[kind, r])
            self.flag_store(sRPF, KV)
        dbg = self.o.get('idledbg')
        if dbg: self.stamp("start")
        dma1(0)
        if dbg: c.wait(hd['o', 0]); self.stamp("b0")
        for r in range(3):
            proc('o', r, r)
        dma1(1)
        for r in range(3):
            flag('o', r)
        if dbg: self.stamp("p1epi")
        ni = 5 - self.o.get('nr', 3)
        assert 2 <= ni <= 3
        if ni > 2:
            dma1(2)
        for r in range(ni):
            proc('a', r, r)
        self.v_const()
        for r in range(ni):
            flag('a', r)
        if self.o.get('fltouch', 1):
            c(f"s_lshl_b32 s{sT}, s{sRB1}, 11")
            c(f"s_add_u32 s{sT}, s{sT}, {F1_OFF}")
            c(f"v_and_b32 v9, 0x780, v8")
            c(f"buffer_load_dword v240, v9, {WSR}, s{sT} offen")
            c.ins[-1].wr = []
        self.stamp("p1loop")
        lab = self.label("ep")
        c(f"s_cmp_lg_u32 s{gw}, {99 if self.o.get('x_noepoch') else 63}")
        c(f"s_cbranch_scc1 {lab}")
        c(f"v_lshlrev_b32 v8, 7, v1")
        for j in range(4):
            c(f"v_add_u32 v9, {FX_OFF - FL_OFF + j*8192}, v8")
            self.poll(9, span=True, sleep=16)
        c(f"s_mov_b32 s{sT}, {EP_OFF}")
        self.flag_store(sT)
        c(f"{lab}:")
        c(f"s_mov_b32 s{sRP+2}, 0")
        c(f"v_mov_b32 v{self.vRA+4}, 0")
        c(f"s_lshl_b32 s{sT+13}, s{sRB1}, 11")
        c(f"s_add_u32 s{sT+13}, s{sT+13}, {F1_OFF + 15*128}")
        self.poll(self.vWOF, self.vWOD, sleep=8)
        c("s_barrier")
        c.add(self.wo_loads()[:n0])
        c("s_branch Lp1_join")

    RPP = dict(pitch=sT, col=sT + 1, nch=sT + 2, mch=sT + 3, v0=sT + 4, dm=sT + 5, dd=sT + 6, aa=sT + 7, lim=sT + 12, r0=sT + 13, u=sT + 14)

    def rp_params_wo(self, gw, r):
        c = self.c
        u = self.RPP['u']
        c(f"s_lshr_b32 s{u}, s{gw}, 3")
        if r < 2:
            c(f"s_lshr_b32 s{u+1}, s{u}, 2")
            c(f"s_add_u32 s{u}, s{u}, s{u+1}")
            c(f"s_add_u32 s{u}, s{u}, {10*r}")
            c(f"s_mov_b32 s{sRPT}, 1")
        else:
            c(f"s_mul_i32 s{u}, s{u}, 5")
            c(f"s_add_u32 s{u}, s{u}, 4")
            c(f"s_cmp_lt_u32 s{gw}, 32")
            c(f"s_cselect_b32 s{sRPT}, 1, 0")
        c(f"s_and_b32 s{u+1}, s{gw}, 7")
        c(f"s_mul_i32 s{sRPD}, s{u+1}, 20")
        c(f"s_add_u32 s{sRPD}, s{sRPD}, s{u}")
        c(f"s_mul_i32 s{sRPD}, s{sRPD}, 5120")
        c(f"s_add_u32 s{sRPD}, s{sRPD}, {WO_OFF}")
        c(f"s_lshl_b32 s{sRPF}, s{u+1}, 5")
        c(f"s_add_u32 s{sRPF}, s{sRPF}, s{u}")
        c(f"s_lshl_b32 s{sRPF}, s{sRPF}, 7")
        c(f"s_add_u32 s{sRPF}, s{sRPF}, {FWO_OFF}")

    RPL = 6 * 16384
    vRA = 240
    sRD = 82

    def rp_setup_unit(self):
        c = self.c
        t, ra = self.vTMP, self.vRA
        u, sl, r0, v0, col, x, y = [sT + i for i in range(7)]
        c(f"s_mov_b32 s{sRP}, s{sW2}")
        c(f"s_mov_b32 s{sRP+1}, s{sW2+1}")
        c(f"s_mov_b32 s{sRP+3}, 0x20000")
        c(f"s_cmp_lt_u32 s2, 224")
        c(f"s_cselect_b32 s{sRP+2}, {1728*1280}, 0")
        c(f"s_cselect_b32 s{sRPT}, {WS_SIZE}, 0")
        c(f"s_and_b32 s{sl}, s2, 3")
        c(f"s_lshr_b32 s{u}, s2, 2")
        c(f"s_mul_i32 s{r0}, s{u}, 18726")
        c(f"s_lshr_b32 s{r0}, s{r0}, 16")
        c(f"s_mul_i32 s{col}, s{r0}, 112")
        c(f"s_lshl_b32 s{v0}, s{u}, 5")
        c(f"s_sub_u32 s{v0}, s{v0}, s{col}")
        c(f"s_mul_i32 s{r0}, s{r0}, {108*1280}")
        c(f"s_mul_i32 s{col}, s{sl}, 320")
        c(f"s_add_u32 s{col}, s{col}, s{r0}")
        c(f"s_mul_i32 s{sRPD}, s{sl}, 112")
        c(f"s_add_u32 s{sRPD}, s{sRPD}, s{u}")
        c(f"s_mul_i32 s{sRPD}, s{sRPD}, 5120")
        c(f"s_add_u32 s{sRPD}, s{sRPD}, {W2_OFF}")
        c(f"s_lshl_b32 s{sRPF}, s{sl}, 6")
        c(f"s_add_u32 s{sRPF}, s{sRPF}, s{u}")
        c(f"s_lshl_b32 s{sRPF}, s{sRPF}, 7")
        c(f"s_add_u32 s{sRPF}, s{sRPF}, {FW2_OFF}")
        assert all((S * 18726) >> 16 == (32 * S) // 112 for S in range(80)) and all((v * 3277) >> 16 == v // 20 for v in range(768))
        c(f"v_mov_b32 v{t+4}, {OOB}")
        for j in range(3):
            c(f"v_add_u32 v{t}, {256*j}, v0")
            c(f"v_mul_u32_u24 v{t+1}, 3277, v{t}")
            c(f"v_lshrrev_b32 v{t+1}, 16, v{t+1}")
            c(f"v_mul_u32_u24 v{t+2}, 20, v{t+1}")
            c(f"v_sub_u32 v{t}, v{t}, v{t+2}")
            c(f"v_lshl_add_u32 v{t}, v{t}, 4, s{col}")
            c(f"v_add_u32 v{t+1}, s{v0}, v{t+1}")
            c(f"v_subrev_u32 v{t+2}, 108, v{t+1}")
            c(f"v_med3_i32 v{t+3}, v{t+2}, 0, 4")
            c(f"v_cmp_gt_u32 vcc, 4, v{t+2}")
            c(f"v_sub_u32 v{t+1}, v{t+1}, v{t+3}")
            c(f"v_mul_u32_u24 v{t+1}, 1280, v{t+1}")
            c(f"v_add_u32 v{t}, v{t}, v{t+1}")
            c(f"v_cndmask_b32 v{self.vRP+j}, v{t}, v{t+4}, vcc")
        c(f"v_cmp_gt_u32 vcc, 128, v0")
        c(f"v_lshrrev_b32 v{t}, 4, v1")
        c(f"v_bfe_u32 v{t+1}, v1, 2, 2")
        c(f"v_cndmask_b32 v{self.vRP+2}, v{t+4}, v{self.vRP+2}, vcc")
        c(f"v_cndmask_b32 v{ra+3}, v{t+4}, v{vL16}, vcc")
        c(f"v_cmp_gt_u32 vcc, 32, v0")
        c(f"v_lshl_add_u32 v{t+2}, v1, 2, s{sRPF}")
        c(f"v_lshl_add_u32 v{t}, v{t}, 3, v{t+1}")
        c(f"v_cndmask_b32 v{ra+4}, v{t+4}, v{t+2}, vcc")
        c(f"v_mul_u32_u24 v{t}, 320, v{t}")
        c(f"v_and_b32 v{t+1}, 3, v1")
        for j in range(3):
            c(f"s_add_u32 s{u}, s{sW}, {4*j}")
            c(f"s_cmp_ge_u32 s{u}, 5")
            c(f"s_cselect_b32 s{sl}, 1, 0")
            c(f"s_mul_i32 s{x}, s{sl}, 5")
            c(f"s_sub_u32 s{u}, s{u}, s{x}")
            c(f"s_mul_i32 s{x}, s{sl}, {56*5}")
            c(f"s_add_u32 s{x}, s{x}, s{u}")
            c(f"s_lshl_b32 s{x}, s{x}, 10")
            c(f"s_add_u32 s{self.sRD+j}, s{sRPD}, s{x}")
            c(f"s_mul_i32 s{sl}, s{sl}, 160")
            c(f"s_and_b32 s{x}, s{u}, 1")
            c(f"s_lshl3_add_u32 s{sl}, s{x}, s{sl}")
            c(f"s_and_b32 s{x}, s{u}, 6")
            c(f"s_lshl_b32 s{x}, s{x}, 5")
            c(f"s_add_u32 s{sl}, s{sl}, s{x}")
            c(f"s_add_u32 s{sl}, s{sl}, {self.RPL}")
            c(f"s_cmp_eq_u32 s{u}, 4")
            c(f"s_cselect_b32 s{y}, 3, 4")
            c(f"v_lshlrev_b32 v{t+2}, s{y}, v{t+1}")
            c(f"v_add3_u32 v{ra+j}, v{t+2}, v{t}, s{sl}")

    RPL1 = 6 * 16384 + 12288
    vRB = 246

    def rp_setup_unit1(self):
        c = self.c
        nr = self.o.get('nr', 3)
        t, rb = self.vTMP, self.vRB
        fb, st, col, x = [sT + i for i in range(4)]
        c(f"s_mov_b32 s{sKV}, s{sW1}")
        c(f"s_mov_b32 s{sKV+1}, s{sW1+1}")
        c(f"s_mov_b32 s{sKV+3}, 0x20000")
        c(f"s_cmp_lt_u32 s2, {64*nr}")
        c(f"s_cselect_b32 s{sKV+2}, {640*3456}, 0")
        c(f"s_cselect_b32 s79, {WS_SIZE}, 0")
        c(f"s_cselect_b64 vcc, s[{sHI}:{sHI+1}], 0")
        c(f"s_and_b32 s{fb}, s2, 15")
        c(f"s_bfe_u32 s{st}, s2, 0x20004")
        c(f"s_mul_i32 s{st}, s{st}, 5")
        c(f"s_lshr_b32 s{x}, s2, 6")
        c(f"s_add_u32 s{st}, s{st}, s{x}")
        c(f"s_add_u32 s{st}, s{st}, {5 - nr}")
        c(f"s_mul_i32 s80, s{fb}, 20")
        c(f"s_add_u32 s80, s80, s{st}")
        c(f"s_mul_i32 s80, s80, 7")
        c(f"s_add_u32 s80, s80, s{sW}")
        c(f"s_lshl_b32 s80, s80, 10")
        c(f"s_add_u32 s80, s80, {W1_OFF}")
        c(f"s_lshl_b32 s{x}, s{fb}, 5")
        c(f"s_add_u32 s{x}, s{x}, s{st}")
        c(f"s_lshl_b32 s{x}, s{x}, 7")
        c(f"s_add_u32 s{x}, s{x}, {FW1_OFF - 128}")
        c(f"s_cmp_eq_u32 s{sW}, 0")
        c(f"s_cselect_b64 vcc, vcc, 0")
        c(f"v_lshl_add_u32 v{t}, v1, 2, s{x}")
        c(f"v_cndmask_b32 v{self.vRA+4}, v{self.vRA+4}, v{t}, vcc")
        c(f"s_mul_i32 s{col}, s{fb}, 216")
        c(f"s_and_b32 s{col}, s{col}, -16")
        c(f"s_mul_i32 s{x}, s{st}, {32*3456}")
        c(f"s_add_u32 s{col}, s{col}, s{x}")
        for j in range(2):
            c(f"v_add_u32 v{t}, {256*j}, v0")
            c(f"v_mul_u32_u24 v{t+1}, 4682, v{t}")
            c(f"v_lshrrev_b32 v{t+1}, 16, v{t+1}")
            c(f"v_mul_u32_u24 v{t+1}, {3456-224}, v{t+1}")
            c(f"v_lshl_add_u32 v{t}, v{t}, 4, s{col}")
            c(f"v_add_u32 v{self.vRP+3+j}, v{t}, v{t+1}")
        c(f"v_cmp_gt_u32 vcc, 192, v0")
        c(f"v_add_u32 v{t}, 4096, v{vL16}")
        c(f"v_lshrrev_b32 v{t+2}, 4, v1")
        c(f"v_cndmask_b32 v{self.vRP+4}, v{t+4}, v{self.vRP+4}, vcc")
        c(f"v_cndmask_b32 v{rb+2}, v{t+4}, v{t}, vcc")
        c(f"v_bfe_u32 v{t+1}, v1, 2, 2")
        c(f"v_lshl_add_u32 v{t}, v{t+2}, 3, v{t+1}")
        c(f"v_mul_u32_u24 v{t}, 224, v{t}")
        c(f"v_and_b32 v{t+1}, 3, v1")
        c(f"s_and_b32 s{x}, s{fb}, 1")
        c(f"s_and_b32 s{col}, s{sW}, 1")
        c(f"s_add_u32 s{x}, s{x}, s{col}")
        c(f"s_and_b32 s{col}, s{sW}, 2")
        c(f"s_lshl_b32 s{col}, s{col}, 5")
        c(f"s_lshl3_add_u32 s{x}, s{x}, s{col}")
        c(f"s_add_u32 s{x}, s{x}, {self.RPL1}")
        c(f"v_add_u32 v{t}, s{x}, v{t}")
        c(f"v_lshl_add_u32 v{rb}, v{t+1}, 4, v{t}")
        c(f"s_cmp_eq_u32 s{sW}, 2")
        c(f"s_cselect_b32 s{x}, 3, 4")
        c(f"s_cselect_b32 s78, 12, 16")
        c(f"v_lshl_add_u32 v{rb+1}, v{t+1}, s{x}, v{t}")

    def rp_unit1_items(self, fr):
        rb, KV = self.vRB, f"s[{sKV}:{sKV+3}]"
        dma = [[I(f"s_add_u32 m0, s{sT+12}, {self.RPL1 + 4096*j}"), I(f"buffer_load_dwordx4 v{self.vRP+3+j}, {KV}, 0 offen lds")] for j in range(2)]
        rd = [I(f"ds_read_b64_tr_b16 {vr(fr+4*j+2*q,2)}, v{rb+j} offset:{q*896 + j*128}") for j in range(2) for q in range(2)]
        pad = [I(f"v_and_b32 v{rb}, 15, v1"), I(f"v_cmp_gt_u32 vcc, s78, v{rb}")] + [I(f"v_cndmask_b32 v{fr+4+q}, 0, v{fr+4+q}, vcc") for q in range(4)]
        stv = [[I(f"buffer_store_dwordx4 {vr(fr+4*j,4)}, v{vL16 if j == 0 else rb+2}, {KV}, s80 offen sc1")] for j in range(2)]
        stv[0] = [I(f"s_mov_b64 s[{sKV}:{sKV+1}], s[{sWS}:{sWS+1}]"), I(f"s_mov_b32 s{sKV+2}, s79")] + stv[0]
        return dma, rd, pad, stv

    def rp_unit_items(self, fr):
        ra, RP = self.vRA, f"s[{sRP}:{sRP+3}]"
        dma = [[I(f"s_lshl_b32 s{sT+12}, s{sW}, 10")] * (j == 0) + [I(f"s_add_u32 m0, s{sT+12}, {self.RPL + 4096*j}"),
               I(f"buffer_load_dwordx4 v{self.vRP+j}, {RP}, 0 offen lds")] for j in range(3)]
        rd = [I(f"ds_read_b64_tr_b16 {vr(fr[j]+2*q,2)}, v{ra+j} offset:{q*1280}") for j in range(3) for q in range(2)]
        stv = [[I(f"buffer_store_dwordx4 {vr(fr[j],4)}, v{vL16 if j < 2 else ra+3}, {RP}, s{self.sRD+j} offen sc1")] for j in range(3)]
        stv[0] = [I(f"s_mov_b64 s[{sRP}:{sRP+1}], s[{sWS}:{sWS+1}]"), I(f"s_mov_b32 s{sRP+2}, s{sRPT}")] + stv[0]
        flag = [I(f"v_mov_b32 v{vFLG}, s{sTAG}"), I(f"buffer_store_dword v{vFLG}, v{ra+4}, {RP}, 0 offen sc1")]
        return dma, rd, stv, flag

    def rp_w1_params(self, fb, step, col=None):
        c = self.c
        c(f"s_mul_i32 s{sRPD}, s{fb}, 20")
        c(f"s_add_u32 s{sRPD}, s{sRPD}, s{step}")
        c(f"s_mul_i32 s{sRPD}, s{sRPD}, 7168")
        c(f"s_add_u32 s{sRPD}, s{sRPD}, {W1_OFF}")
        c(f"s_lshl_b32 s{sRPF}, s{fb}, 5")
        c(f"s_add_u32 s{sRPF}, s{sRPF}, s{step}")
        c(f"s_lshl_b32 s{sRPF}, s{sRPF}, 7")
        c(f"s_add_u32 s{sRPF}, s{sRPF}, {FW1_OFF}")
        if col is not None:
            c(f"s_mov_b32 s{sRP}, s{sW1}")
            c(f"s_mov_b32 s{sRP+1}, s{sW1+1}")
            c(f"s_mul_i32 s{col}, s{fb}, 216")
            c(f"s_and_b32 s{col}, s{col}, -16")
            c(f"s_mul_i32 s{step}, s{step}, {32*3456}")
            c(f"s_add_u32 s{col}, s{col}, s{step}")

    def rp_w1_offsets(self, col):
        c = self.c
        t = 16
        for j in range(7):
            c(f"v_add_u32 v{t}, {64*j}, v1")
            c(f"v_mul_u32_u24 v{t+1}, 4682, v{t}")
            c(f"v_lshrrev_b32 v{t+1}, 16, v{t+1}")
            c(f"v_mul_u32_u24 v{t+1}, {3456-224}, v{t+1}")
            c(f"v_lshl_add_u32 v{t}, v{t}, 4, s{col}")
            c(f"v_add_u32 v{self.vRP+j}, v{t}, v{t+1}")

    def only_waves(self, hi, items):
        lab = self.label("ow")
        out = [I(f"s_cmp_ge_u32 s{sW}, {3 if hi else 2}"), I(f"s_cbranch_scc{0 if hi else 1} {lab} ; noflush")]
        for i in flat(items):
            i.cond = True
            out.append(i)
        out.append(I(f"{lab}: ; noflush"))
        return out

    RP1_LDS = 6 * 16384

    def rp_dma(self, n, base, wstride, so="0", fl=None, vb=None):
        items = []
        vb = self.vRP if vb is None else vb
        fl = self.o.get('rpld', '') if fl is None else fl
        for j in range(n):
            pre = [I(f"s_mul_i32 s{sT+12}, s{sW}, {wstride}")] if j == 0 else []
            items.append(pre + [I(f"s_add_u32 m0, s{sT+12}, {base + 1024*j}"),
                                I(f"buffer_load_dwordx4 v{vb+j}, s[{sRP}:{sRP+3}], {so} offen {fl} lds")])
        return items

    def rp_addr(self, t, pitch, base, wstride, oddshift, st=sT):
        c = self.c
        c(f"s_mul_i32 s{st+1}, s{sW}, {wstride}")
        if oddshift:
            c(f"s_and_b32 s{st+2}, s{oddshift}, 1")
            c(f"s_lshl3_add_u32 s{st+1}, s{st+2}, s{st+1}")
        c(f"s_add_u32 s{st+1}, s{st+1}, {base}")
        c(f"v_lshrrev_b32 v{t}, 4, v1")
        c(f"v_bfe_u32 v{t+1}, v1, 2, 2")
        c(f"v_lshl_add_u32 v{t}, v{t}, 3, v{t+1}")
        c(f"v_mul_u32_u24 v{t}, {pitch}, v{t}")
        c(f"v_add_u32 v{t}, s{st+1}, v{t}")
        c(f"v_and_b32 v{t+1}, 3, v1")
        c(f"v_lshl_add_u32 v{t+2}, v{t+1}, 4, v{t}")
        c(f"v_lshl_add_u32 v{t+3}, v{t+1}, 3, v{t}")

    def rp_items(self, nt, t, off, fr, R):
        pitch = 160 if nt == 5 else 224
        fb = fr if isinstance(fr, list) else [fr + 4 * tl for tl in range(nt)]
        rd, stv = [], []
        for tl in range(nt):
            for q in range(2):
                if tl < nt - 1:
                    rd.append(I(f"ds_read_b64_tr_b16 {vr(fb[tl]+2*q,2)}, v{t+2} offset:{off + q*4*pitch + (tl>>1)*64 + (tl&1)*8}"))
                else:
                    rd.append(I(f"ds_read_b64_tr_b16 {vr(fb[tl]+2*q,2)}, v{t+3} offset:{off + q*4*pitch + tl*32}"))
        for tl in range(nt):
            g = []
            if tl == 4:
                g.append(I(f"s_add_u32 s{sRPD}, s{sRPD}, 4096"))
            if tl == 6:
                g += [I(f"v_and_b32 v{t}, 15, v1"), I(f"v_cmp_gt_u32 vcc, 12, v{t}")]
                g += [I(f"v_cndmask_b32 v{fr+24+q}, 0, v{fr+24+q}, vcc") for q in range(4)]
            g.append(I(f"buffer_store_dwordx4 {vr(fb[tl],4)}, v{vL16}, {R}, s{sRPD} offen offset:{(tl&3)*1024} sc1"))
            stv.append(g)
        return rd + stv

    aV, aW1L, aWO = 0, 80, 156

    def wo_loads(self):
        items = []
        for i in range(25):
            pre = [I(f"s_add_u32 s{sWOO}, s{sWOO}, 4096")] if i and i % 4 == 0 else []
            items.append(pre + [I(f"buffer_load_dwordx4 {ar(self.aWO+4*i,4)}, v{vL16}, {WSR}, s{sWOO} offen offset:{(i&3)*1024} {self.ld}")])
        return items

    def w1_take(self, n, below=35):
        items = []
        first = True
        while n and self.w1q and self.w1q[0] < below:
            i = self.w1q.pop(0); n -= 1
            pre = []
            if (i % 4 == 0 or first) and i < 25:
                pre.append(I(f"s_add_u32 m0, s{sW1M}, {(i >> 2) * 4096}"))
            if i % 4 == 0 and i:
                pre.append(I(f"s_add_u32 s{sW1O}, s{sW1O}, 4096"))
            first = False
            if i < 25:
                items.append(pre + [I(f"buffer_load_dwordx4 v{vL16}, {WSR}, s{sW1O} offen offset:{(i&3)*1024} {self.ld} lds")])
            else:
                items.append(pre + [I(f"buffer_load_dwordx4 {ar(self.aW1L+4*(i-25),4)}, v{vL16}, {WSR}, s{sW1O} offen offset:{(i&3)*1024} {self.ld}")])
        return items

    def w2_take(self, n, below=70):
        items = []
        while n and self.w2q and self.w2q[0] < below:
            i = self.w2q.pop(0); n -= 1
            pre = [I(f"s_add_u32 s{sW2O}, s{sW2B}, {(i >> 2) * 4096}")] if i % 4 == 0 else []
            items.append(pre + [I(f"buffer_load_dwordx4 {self.w2reg(i)}, v{vL16}, {WSR}, s{sW2O} offen offset:{(i&3)*1024} {self.ld}")])
        return items

    def w2reg(self, i):
        return ar(120 + 4 * i if i < 9 else 4 * (i - 9), 4)

    vO, vK, vQ, vQ4, vZ, vS, vCO, vCD, vP = 32, 64, 124, 132, 136, 146, 178, 194, 210
    vX = 226
    vXL, vRP2 = 226, 230
    vL16m, vVA, vFWA, vFWD, vPOL = 3, 4, 5, 6, 7
    sKO, sVO = sT + 8, sT + 9
    UNITS = sorted([(kt, 0) for kt in range(9)] + [(kt, 1) for kt in range(1, 10)])

    def v_const(self):
        c = self.c
        for pi in range(5):
            c(f"s_cmp_ge_u32 s{sU}, {4-pi}")
            c(f"s_cselect_b32 s81, 0x3f803f80, 0")
            c(f"v_mov_b32 v63, s81")
            for j in range(16):
                c(f"v_accvgpr_write_b32 a{self.aV+16*pi+j}, v63")

    def attn_init(self):
        c = self.c
        t = 8
        c(f"s_mov_b32 s{sVM}, 0x000fffff")
        c(f"s_mov_b32 s{sVM+1}, 0x000fffff")
        c(f"s_mov_b32 s{sKV}, s{sWS}")
        c(f"s_mov_b32 s{sKV+1}, s{sWS+1}")
        c(f"s_mov_b32 s{sKV+3}, 0x20000")
        c(f"v_and_b32 v{self.vL16m}, 0x1f0, v{vL16}")
        c(f"v_lshrrev_b32 v{t}, 1, v1")
        c(f"v_xor_b32 v{t}, v{t}, v1")
        c(f"v_and_b32 v{t}, 4, v{t}")
        c(f"v_mul_u32_u24 v{t}, 48, v{t}")
        c(f"v_xor_b32 v{t}, v{t}, v{self.vL16m}")
        c(f"v_lshrrev_b32 v{t+1}, 5, v1")
        c(f"v_mul_u32_u24 v{t+2}, 10240, v{t+1}")
        c(f"v_add_u32 v{self.vVA}, v{t}, v{t+2}")
        c(f"v_and_b32 v{t}, 31, v1")
        c(f"v_lshlrev_b32 v{t+1}, 2, v{t+1}")
        c(f"v_sub_u32 v{t}, v{t}, v{t+1}")
        c(f"v_mov_b32 v{t+2}, 0xff800000")
        for r in range(0, 16, 4):
            for i in range(4):
                c(f"v_cmp_gt_i32 s[{sT+2*i}:{sT+2*i+1}], {8*(r>>2) + i}, v{t}")
            for i in range(4):
                c(f"v_cndmask_b32 v{self.vCD+r+i}, 0, v{t+2}, s[{sT+2*i}:{sT+2*i+1}]")
            for i in range(4):
                c(f"v_xor_b32 v{self.vCO+r+i}, v{self.vCD+r+i}, v{t+2}")
        c(f"s_lshl_b32 s{sT+2}, s{sU}, 10")
        c(f"s_add_u32 s{sT+2}, s{sT+2}, {FX_OFF - FL_OFF}")
        c(f"v_and_b32 v{t}, 7, v1")
        c(f"v_lshl_add_u32 v{self.vFWA}, v{t}, 7, s{sT+2}")
        c(f"s_mul_i32 s{sT}, s{sK8}, {7*128}")
        c(f"s_lshr_b32 s{sT+1}, s{sNB}, 1")
        c(f"s_lshl_b32 s{sT+1}, s{sT+1}, 13")
        c(f"s_add_u32 s{sT}, s{sT}, s{sT+1}")
        c(f"s_add_u32 s{sT}, s{sT}, {FW2_OFF - FL_OFF}")
        c(f"v_min_u32 v{t}, 6, v{t}")
        c(f"v_lshl_add_u32 v{t+1}, v{t}, 7, s{sT}")
        c(f"v_cndmask_b32 v{self.vFWA}, v{self.vFWA}, v{t+1}, s[{sHI}:{sHI+1}]")
        c(f"s_mul_i32 s{sT}, s{sW}, 640")
        c(f"s_lshl_b32 s{sT+1}, s{sFB}, 12")
        c(f"s_add_u32 s{sT}, s{sT}, s{sT+1}")
        c(f"s_add_u32 s{sT}, s{sT}, {FW1_OFF - FL_OFF}")
        c(f"v_cmp_lt_u32 vcc, 47, v1")
        c(f"v_min_u32 v{t}, 4, v{t}")
        c(f"v_lshl_add_u32 v{t}, v{t}, 7, s{sT}")
        c(f"v_cndmask_b32 v{self.vFWA}, v{self.vFWA}, v{t}, vcc")
        c(f"s_mul_i32 s{sT}, s{sNB}, 80")
        c(f"s_add_u32 s{sT+1}, s{sT}, 79")
        c(f"s_lshr_b32 s{sT}, s{sT}, 7")
        c(f"s_lshr_b32 s{sT+1}, s{sT+1}, 7")
        c(f"s_sub_u32 s{sT+1}, s{sT+1}, s{sT}")
        c(f"v_lshrrev_b32 v{t}, 2, v1")
        c(f"v_min_u32 v{t}, 2, v{t}")
        c(f"v_bfe_u32 v{t+1}, v1, 1, 1")
        c(f"v_add_u32 v{t+1}, 1, v{t+1}")
        c(f"v_cmp_lt_u32 vcc, 11, v1")
        c(f"v_and_b32 v{t+2}, s{sT+1}, v1")
        c(f"v_cndmask_b32 v{t+1}, v{t+1}, 0, vcc")
        c(f"v_mad_u32_u24 v{t+1}, v{t+1}, 5, v{t+2}")
        c(f"v_add_u32 v{t+1}, s{sT}, v{t+1}")
        c(f"s_sub_u32 s{sT}, s{sRB}, 2")
        c(f"v_add_u32 v{t}, s{sT}, v{t}")
        c(f"v_max_i32 v{t}, 0, v{t}")
        c(f"v_lshl_add_u32 v{t}, v{t}, 4, v{t+1}")
        c(f"v_lshlrev_b32 v{t}, 7, v{t}")
        c(f"v_add_u32 v{self.vPOL}, {F1_OFF - FL_OFF}, v{t}")
        for j in range(3):
            c(f"v_add_u32 v{t}, {64*j}, v1")
            c(f"v_mul_u32_u24 v{t+1}, 6554, v{t}")
            c(f"v_lshrrev_b32 v{t+1}, 16, v{t+1}")
            c(f"v_mul_u32_u24 v{t+1}, {1280-160}, v{t+1}")
            c(f"v_add_u32 v{self.vXL+j}, v{vL16}, v{t+1}")
        c(f"v_mov_b32 v{t}, {OOB}")
        c(f"v_cndmask_b32 v{self.vXL+2}, v{self.vXL+2}, v{t}, s[{sHI}:{sHI+1}]")
        for j in range(1, 4):
            c(f"v_add_u32 v{t+j}, {j*20480}, v{self.vVA}")
        c(f"v_and_b32 v{t+4}, 15, v1")
        c(f"v_bfe_u32 v{t}, v1, 4, 1")
        c(f"v_lshlrev_b32 v{t+4}, 4, v{t+4}")
        c(f"v_lshl_add_u32 v{t+5}, v{t}, 13, v{t+4}")
        c(f"v_lshl_add_u32 v{t+4}, v{t}, 14, v{t+4}")
        c(f"v_lshrrev_b32 v{t}, 5, v1")
        c(f"v_lshl_add_u32 v{t+4}, v{t}, 8, v{t+4}")

    sKVO = 64

    def attn_kv_prep(self):
        c = self.c
        for pi in range(5):
            b = self.sKVO + 3 * pi
            c(f"s_sub_u32 s{sT}, s{sU}, {4-pi}")
            c(f"s_cselect_b32 s{b+2}, 0, {WS_SIZE}")
            c(f"s_cselect_b32 s{sT}, 0, s{sT}")
            c(f"s_mul_i32 s{b+1}, s{sT}, 81920")
            c(f"s_lshl1_add_u32 s{b}, s{b+1}, s{sT+6}")
            c(f"s_add_u32 s{b+1}, s{b+1}, s{sT+7}")

    def attn_kv_loads(self, pi):
        ld = self.ld
        k = self.vK + 12 * pi
        R = f"s[{sKV}:{sKV+3}]"
        b = self.sKVO + 3 * pi
        K = [[I(f"s_mov_b32 s{sKV+2}, s{b+2}"), I(f"buffer_load_dwordx4 {vr(k,4)}, v{vL16}, {R}, s{b} offen {ld}")],
             [I(f"buffer_load_dwordx4 {vr(k+4,4)}, v{vL16}, {R}, s{b} offen offset:1024 {ld}")],
             [I(f"buffer_load_dwordx4 {vr(k+8,4)}, v{self.vL16m}, {R}, s{b} offen offset:2048 {ld}")]]
        va = [self.vVA, 9, 10, 11]
        L = [I(f"buffer_load_dwordx4 {ar(self.aV+16*pi+4*q,4)}, v{va[q]}, {R}, s{b+1} offen {ld}") for q in range(4)]
        on, off = (lambda: I(f"s_mov_b64 exec, s[{sVM}:{sVM+1}]")), (lambda: I("s_mov_b64 exec, -1"))
        return K, [[on(), q, off()] for q in L]

    def attn_qk(self, u, dst, units=None):
        kt, T = (units or self.UNITS)[u]
        k = self.vK + 12 * (kt >> 1)
        cin = '0'
        if kt == T:
            cin = vr(self.vCO, 16)
        elif kt == 8 + T:
            cin = vr(self.vCD, 16)
        d = vr(dst, 16)
        z = self.vZ + 4 * T + (0 if kt & 1 else 2)
        return [I(f"v_mfma_f32_32x32x16_bf16 {d}, {vr(k+4*(kt&1),4)}, {vr(self.vQ+4*T,4)}, {cin}"),
                I(f"v_mfma_f32_32x32x16_bf16 {d}, {vr(k+8,4)}, {vr(z,4)}, {d}")]

    def attn_loop(self, fill, swaps, order=(0, 1, 2, 3, 4)):
        c = self.c
        UN = [x for pi in order for x in self.UNITS if x[0] >> 1 == pi]
        n = len(UN)
        S = lambda u: self.vS + 16 * (u & 1)
        P = lambda u: self.vP + 8 * (u & 1)
        seen = set()

        def qk(u):
            kt = UN[u][0]
            pre = []
            if swaps and (kt >> 1) not in seen:
                seen.add(kt >> 1)
                k = self.vK + 12 * (kt >> 1)
                pre = [I(f"v_swap_b32 v{k+2}, v{k+4}"), I(f"v_swap_b32 v{k+3}, v{k+5}")]
            return pre, self.attn_qk(u, S(u), UN)

        def pv(u, s):
            kt, T = UN[u]
            d = vr(self.vO + 16 * T, 16)
            first = (s == 0 and all(x[1] != T for x in UN[:u]))
            return I(f"v_mfma_f32_32x32x16_bf16 {d}, {ar(self.aV+8*kt+4*s,4)}, {vr(P(u)+4*s,4)}, {0 if first else d}")

        ex = lambda u, g: [I(f"v_exp_f32 v{S(u)+4*g+i}, v{S(u)+4*g+i}") for i in range(4)]
        cv = lambda u, g: [I(f"v_cvt_pk_bf16_f32 v{P(u)+2*g+i}, v{S(u)+4*g+2*i}, v{S(u)+4*g+2*i+1}") for i in range(2)]
        slot = [0]

        def mf(m):
            items = [flat(x) for x in fill.get(slot[0], [])]
            slot[0] += 1
            if items:
                f = items[0]
                k = next((j for j, i in enumerate(f) if i.kind in ('vmem', 'ds')), 0)
                c.add(f[:k]); c.add(m); c.add(f[k:]); c.add(items[1:])
            else:
                c.add(m)
        pre, m = qk(0)
        c.add(pre); c.add(m)
        if fill:
            self.stamp("qk0", "attn")
        c.add(fill.get(-1, []))
        for u in range(n + 1):
            pre, m = qk(u + 1) if u + 1 < n else ([], None)
            if u > 0: mf(pv(u - 1, 0))
            if u > 0: c.add(cv(u - 1, 3))
            c.add(pre)
            if u < n: c.add(ex(u, 0))
            if m: mf(m[0])
            if u < n: c.add(ex(u, 1)); c.add(cv(u, 0))
            if m: mf(m[1])
            if u < n: c.add(ex(u, 2)); c.add(cv(u, 1))
            if u > 0: mf(pv(u - 1, 1))
            if u < n: c.add(ex(u, 3)); c.add(cv(u, 2))
            if fill:
                self.stamp(f"u{u}", "attn")
        assert slot[0] == 70

    def same_check(self):
        c = self.c
        self.flag_check(self.vFWD, self.vFWA, span=True)
        c(f"s_add_u32 s{sT+1}, s{sTAG}, s{sXCC}")
        c(f"v_cmp_ne_u32 vcc, s{sT+1}, v{self.vFWD}")
        c(f"s_andn2_b64 vcc, vcc, s[{sHI}:{sHI+1}]")
        c(f"s_cselect_b32 s{sSAME}, 0, 1")
        if self.o.get('nosame'):
            c(f"s_mov_b32 s{sSAME}, 0")

    def attn_prep(self):
        c = self.c
        c(f"s_lshl_b32 s{sT}, s{sU}, 7")
        c(f"s_add_u32 s{sT}, s{sT}, {F2_OFF - FL_OFF}")
        c(f"v_and_b32 v14, 1, v1")
        c(f"v_mul_u32_u24 v14, {F4_OFF - F2_OFF}, v14")
        c(f"v_add_u32 v14, s{sT}, v14")
        c(f"s_lshl_b32 s{sT}, s{sU}, 5")
        c(f"s_add_u32 s{sT}, s{sT}, s{sHEAD}")
        c(f"s_lshl_b32 s{sT}, s{sT}, 7")
        c(f"s_add_u32 s{sT}, s{sT}, {F5_OFF - FL_OFF}")
        c(f"v_writelane_b32 v14, s{sT}, 2")
        c(f"s_lshl_b32 s{sT+1}, s{sTP}, 11")
        c(f"s_add_u32 s{sT+1}, s{sT+1}, {F3_OFF - FL_OFF}")
        c(f"v_and_b32 v15, 15, v1")
        c(f"v_lshl_add_u32 v15, v15, 7, s{sT+1}")
        c(f"v_cndmask_b32 v14, v14, v15, s[{sHI}:{sHI+1}]")
        c(f"s_mul_i32 s{sT+5}, s{sHEAD}, 2560")
        c(f"s_add_u32 s{sT+6}, s{sT+5}, {QK_OFF + 160*512}")
        c(f"s_mul_i32 s{sT+7}, s{sHEAD}, 320")
        c(f"s_add_u32 s{sT+7}, s{sT+7}, {V_OFF}")
        c(f"s_mul_i32 s{sT+4}, s{sU}, 163840")
        c(f"s_add_u32 s{sT+5}, s{sT+5}, s{sT+4}")
        c(f"s_lshl2_add_u32 s{sT+3}, s{sU}, s{sW}")
        c(f"s_mul_i32 s{sT+3}, s{sT+3}, {16*1280}")
        c(f"s_mul_i32 s{sT+2}, s{sNB}, 160")
        c(f"s_add_u32 s{sT+3}, s{sT+3}, s{sT+2}")
        self.attn_kv_prep()

    def attention(self):
        c, o = self.c, self.o
        ld = self.ld
        t = 8
        for r in (0, 1, 4, 5, 8, 9):
            c(f"v_mov_b32 v{self.vZ+r}, 0")
        lab = self.label("w1")
        c(f"s_cmp_lg_u32 s{sW}, 2")
        c(f"s_cbranch_scc1 {lab}")
        c.cond(True)
        self.poll(self.vPOL, sleep=o.get('s1sleep', 0))
        c.cond(False)
        c(f"{lab}:")
        orders = [(3, 4, 2, 1, 0), (2, 3, 1, 4, 0), (1, 2, 3, 0, 4), (0, 1, 2, 3, 4)] if o.get('avar', 1) else [(0, 1, 2, 3, 4)]
        labs = [self.label("av") for _ in orders]
        c(f"s_and_b32 s{sT}, s{sU}, 3")
        for r in range(1, len(orders)):
            c(f"s_cmp_eq_u32 s{sT}, {r}")
            c(f"s_cbranch_scc1 {labs[r]}")
        c(".save av")
        q0 = (list(self.w1q), self.woq)
        for r, order in enumerate(orders):
            c(f"{labs[r]}:")
            c(".restore av")
            self.w1q, self.woq = list(q0[0]), copy_ins(q0[1])
            self.attn_body(order)
            if r + 1 < len(orders):
                c("s_branch Lattn_done")
        c("Lattn_done:")
        self.stamp("attn")
        lo, hi = f2u(2.0 ** -40), f2u(2.0 ** 40)
        O = self.vO
        c(f"v_subrev_u32 v{t}, {hex(lo)}, v{O+12}")
        c(f"v_subrev_u32 v{t+1}, {hex(lo)}, v{O+28}")
        c(f"v_max_u32 v{t}, v{t}, v{t+1}")
        c(f"v_cmp_lt_u32 vcc, {hex(hi-lo)}, v{t}")
        if o.get('forceslow'):
            c("s_mov_b64 vcc, -1")
        c(f"s_cbranch_vccnz Lattn_slow")
        c("Lattn_fin:")
        self.attn_slow()
        self.attn_epilogue('sc1')

    def attn_body(self, order):
        c, o = self.c, self.o
        ld = self.ld
        t = 8
        kv = [self.attn_kv_loads(pi) for pi in order]
        c.add(kv[0][0][0][:-1])
        c("s_barrier")
        self.stamp("s1", "main attn")
        q = self.vQ
        c(f"buffer_load_dwordx4 {vr(q,4)}, v{vL16}, {WSR}, s{sT+5} offen {ld}")
        c(f"buffer_load_dwordx4 {vr(q+4,4)}, v{vL16}, {WSR}, s{sT+5} offen offset:1024 {ld}")
        c.add(kv[0][0][0][-1]); c.add(kv[0][0][1])
        c(f"buffer_load_dwordx4 {vr(self.vQ4,4)}, v{self.vL16m}, {WSR}, s{sT+5} offen offset:2048 {ld}")
        c.add(kv[0][0][2])
        rest = kv[0][1] + kv[1][0] + kv[1][1] + kv[2][0] + kv[2][1] + kv[3][0] + kv[3][1] + kv[4][0] + kv[4][1]
        n0 = o.get('kv0', 7)
        c.add(rest[:n0]); rest = rest[n0:]
        if o.get('x_kv'):
            c("s_waitcnt vmcnt(0)"); self.stamp("kv13")
            c.add(rest); rest = []
            c("s_waitcnt vmcnt(0)"); self.stamp("kvall")
            c.add(self.w1_take(21, 21))
            c("s_waitcnt vmcnt(0)"); self.stamp("w1")
        fl = I(f"buffer_load_dword v{self.vFWD}, v{self.vFWA}, {WSR}, s{sFLB} offen sc1")
        XR = f"s[{sX}:{sX+3}]"
        KV = f"s[{sKV}:{sKV+3}]"
        xl = [[I(f"buffer_load_dwordx4 v{self.vXL+j}, {XR}, s{sT+3} offen offset:{j*1024} lds")] for j in range(3)]
        self.h_x = xl[2][0]
        xl[0] = [I(f"s_add_u32 m0, s{sW1M}, {25600 + 7168}")] + xl[0]
        fill = {}
        n1 = o.get('kv1', 2)
        fill[-1] = rest[:n1]; rest = rest[n1:]

        def place(items, g0, step):
            g = g0
            for it in items:
                assert g < 70
                fill.setdefault(int(g), []).append(it); g += step
            return int(g + 0.999)
        g = place(rest, 0, o.get('kvstep', 13) / 10)
        g = place([I(f"buffer_load_dword v15, v14, {WSR}, s{sFLB} offen sc1")] + xl + self.woq, g, 1)
        place([fl], next(z for z in range(o.get('flg', 8), 70) if z not in fill), 1)
        g = place([self.sub(self.same_check)], max(g, o.get('w1g', 44)), 1)
        w1 = self.w1_take(o.get('w1a', 14))
        place(w1, g, (o.get('w1e', 66) - g) / max(len(w1), 1))
        sb = [I(f"s_mul_i32 s{sT}, s{sU}, 81920"), I(f"s_add_u32 s{sT}, s{sT}, {O_OFF}"),
              I(f"s_lshl_b32 s{sT+1}, s{sHEAD}, 9"), I(f"s_add_u32 s{sT+1}, s{sT+1}, s{sT}"),
              I(f"s_add_u32 s{sT+2}, s{sT+1}, 32768"), I(f"s_lshr_b32 s{sT+4}, s{sHEAD}, 3"),
              I(f"s_and_b32 s{sT+5}, s{sHEAD}, 1"), I(f"s_lshl1_add_u32 s{sT+4}, s{sT+4}, s{sT+5}"),
              I(f"s_bfe_u32 s{sT+5}, s{sHEAD}, 0x20001"), I(f"s_lshl2_add_u32 s{sT+4}, s{sT+4}, s{sT+5}"),
              I(f"s_lshl_b32 s{sT+4}, s{sT+4}, 8"), I(f"s_add_u32 s{sT+4}, s{sT+4}, s{sT}"),
              I(f"s_add_u32 s{sT+4}, s{sT+4}, 65536")]
        place([sb[:4], sb[4:]], 68, 1)
        c(f"v_swap_b32 v{q+2}, v{q+4}")
        c(f"v_swap_b32 v{q+3}, v{q+5}")
        for T in range(2):
            for i in range(2):
                c(f"v_cndmask_b32 v{self.vZ+2+4*T+i}, v{self.vQ4+2*T+i}, 0, s[{sHI}:{sHI+1}]")
        self.attn_loop(fill, True, order)

    def attn_epilogue(self, st):
        c, o = self.c, self.o
        t, O, ob = 8, self.vO, 16
        c(f"v_rcp_f32 v{t}, v{O+12}")
        c(f"v_rcp_f32 v{t+1}, v{O+28}")
        for T in range(2):
            sel = "op_sel_hi:[1,0]" if T == 0 else "op_sel:[0,1] op_sel_hi:[1,1]"
            for i in range(6):
                r = O + 16 * T + 2 * i
                c(f"v_pk_mul_f32 {vr(r,2)}, {vr(r,2)}, {vr(t,2)} {sel}")
            for i in range(6):
                r = O + 16 * T + 2 * i
                d = ob + 4 * T + i if i < 4 else ob + 8 + 2 * T + (i - 4)
                c(f"v_cvt_pk_bf16_f32 v{d}, v{r}, v{r+1}")
            c(f"buffer_store_dwordx4 {vr(ob+4*T,4)}, v{t+4}, {WSR}, s{sT+1+T} offen {st}")
        c(f"s_not_b64 exec, s[{sHI}:{sHI+1}]")
        h = c(f"buffer_store_dwordx4 {vr(ob+8,4)}, v{t+5}, {WSR}, s{sT+4} offen {st}")
        c("s_mov_b64 exec, -1")
        c.add(self.w1_take(o.get('w1b', 0)))
        self.p3_prep()
        c.wait(h)
        self.stamp("odrain")
        self.flag_store_near(sT + 13)

    def attn_slow(self):
        old, self.c = self.c, self.ool
        c = self.c
        t = 16
        c("Lattn_slow:")
        c("s_waitcnt vmcnt(0) lgkmcnt(0)")
        c(f"v_mov_b32 v{t}, 0xff800000")
        c(f"v_mov_b32 v{t+1}, 0xff800000")
        for pi in range(5):
            lab = self.label("sl")
            c(f"s_cmp_ge_u32 s{sU}, {4-pi}")
            c(f"s_cselect_b32 s{sT+12}, 0x3f803f80, 0")
            c(f"v_mov_b32 v{t+2}, s{sT+12}")
            for i in range(4):
                r = self.vK + 12 * pi + 8 + i
                c(f"v_cndmask_b32 v{r}, v{r}, v{t+2}, s[{sHI}:{sHI+1}]")
            c(f"s_cbranch_scc0 {lab}")
            for u, (kt, T) in enumerate(self.UNITS):
                if kt >> 1 != pi:
                    continue
                c.add(self.attn_qk(u, self.vS))
                for i in range(8):
                    c(f"v_max3_f32 v{t+T}, v{self.vS+2*i}, v{self.vS+2*i+1}, v{t+T}")
            c(f"{lab}:")
        for T in range(2):
            c(f"v_mov_b32 v{t+2}, v{t+T}")
            c(f"v_permlane32_swap_b32 v{t+2}, v{t+T}")
            c(f"v_max_f32 v{t+2}, v{t+2}, v{t+T}")
            c(f"v_xor_b32 v{t+2}, 0x80000000, v{t+2}")
            c(f"v_and_b32 v{t+3}, s{sMASK}, v{t+2}")
            c(f"v_sub_f32 v{t+2}, v{t+2}, v{t+3}")
            c(f"v_and_b32 v{t+4}, s{sMASK}, v{t+2}")
            c(f"v_sub_f32 v{t+2}, v{t+2}, v{t+4}")
            c(f"v_lshrrev_b32 v{t+3}, 16, v{t+3}")
            c(f"v_or_b32 v{t+3}, v{t+3}, v{t+4}")
            c(f"v_lshrrev_b32 v{t+2}, 16, v{t+2}")
            z = self.vZ + 2 + 4 * T
            c(f"v_cndmask_b32 v{z}, v{z}, v{t+3}, s[{sHI}:{sHI+1}]")
            c(f"v_cndmask_b32 v{z+1}, v{z+1}, v{t+2}, s[{sHI}:{sHI+1}]")
        self.attn_loop({}, False)
        c("s_branch Lattn_fin")
        self.c = old

    RED = 143360
    vRES = 236
    CORD = (1, 2, 3, 0)
    p3A, p3L, p3AC, p3PB, p3SUM = 64, 128, 144, 184, 204
    p3PR = (184, 64, 84)

    def p3_prep(self):
        c = self.c
        t = 32
        c(f"s_lshl_b32 s{sT+13}, s{sU}, 7")
        c(f"s_lshl_b32 s{sT+3}, s{sW}, 5")
        c(f"s_add_u32 s{sT+3}, s{sT+3}, s{sT+13}")
        c(f"s_add_u32 s{sT+3}, s{sT+3}, {F2_OFF - FL_OFF}")
        c(f"s_lshl2_add_u32 s{sT+13}, s{sHEAD}, s{sT+13}")
        c(f"s_add_u32 s{sT+13}, s{sT+13}, {F2_OFF}")
        c(f"v_and_b32 v{self.vPOL}, 7, v1")
        c(f"v_lshl_add_u32 v{self.vPOL}, v{self.vPOL}, 2, s{sT+3}")
        c(f"s_lshl_b32 s{sT+6}, s{sW}, 12")
        c(f"s_add_u32 s{sT+6}, s{sT+6}, s{sT}")
        for i, cc in enumerate(self.CORD):
            c(f"s_xor_b32 s{sT+5}, s{sW}, {cc}")
            c(f"s_lshl_b32 s{sT+8+i}, s{sT+5}, 14")
            c(f"s_add_u32 s{sT+8+i}, s{sT+8+i}, s{sT+6}")
            c(f"s_mul_i32 s{sT+5}, s{sT+5}, {5120 if i in (0, 3) else 35840}")
            c(f"s_add_u32 s{sT+5}, s{sT+5}, {self.RED if i in (0, 3) else 25600 + (i-1)*5120}")
            c(f"v_add_u32 v{t+2+i}, s{sT+5}, v{vL16}")
        c(f"s_lshl_b32 s{sT+6}, s{sW}, 11")
        c(f"s_add_u32 s{sT+5}, s{sT}, s{sT+6}")
        c(f"s_add_u32 s{sT+5}, s{sT+5}, 65536")
        c(f"s_and_b32 s{sT+7}, s{sW}, 1")
        c(f"s_lshl_b32 s{sT+7}, s{sT+7}, 13")
        c(f"s_xor_b32 s{sT+6}, s{sT+7}, 8192")
        c(f"s_add_u32 s{sT+6}, s{sT+6}, s{sT+5}")
        c(f"s_add_u32 s{sT+7}, s{sT+7}, s{sT+5}")
        c(f"s_lshr_b32 s{sT+5}, s{sW}, 1")
        c(f"s_cselect_b64 s[{sT+14}:{sT+15}], -1, 0")
        c(f"s_lshl_b32 s{sT+5}, s{sT+5}, 10")
        c(f"v_xor_b32 v{t}, s{sT+5}, v{vL16}")
        c(f"v_xor_b32 v{t+1}, 1024, v{t}")
        c(f"s_add_u32 s{sT+5}, s{sW1M}, 25600")
        c(f"v_add_u32 v{t+12}, s{sT+5}, v{vL16}")
        c(f"v_and_b32 v{t+6}, 15, v1")
        c(f"v_mul_u32_u24 v{t+6}, 160, v{t+6}")
        c(f"v_add_u32 v{t+6}, s{sT+5}, v{t+6}")
        c(f"v_lshrrev_b32 v{t+7}, 4, v1")
        c(f"v_lshl_add_u32 v{t+8}, v{t+7}, 4, v{t+6}")
        c(f"v_lshl_add_u32 v{t+7}, v{t+7}, 3, v{t+6}")
        c(f"ds_read_b128 {vr(self.vX,4)}, v{t+8} offset:7168", waits=[self.h_x])
        c(f"ds_read_b128 {vr(self.vX+4,4)}, v{t+8} offset:{7168+64}")
        c(f"ds_read_b64 {vr(self.vX+8,2)}, v{t+7} offset:{7168+128}")
        for j in range(10):
            c(f"v_lshlrev_b32 v{self.p3SUM+2*j}, 16, v{self.vX+j}")
            c(f"v_and_b32 v{self.p3SUM+2*j+1}, s{sMASK}, v{self.vX+j}")

    def phase3(self):
        c, o = self.c, self.o
        ld = o.get('la', 'sc1')
        vA, vL, vAC, vPB, vSUM = self.p3A, self.p3L, self.p3AC, self.p3PB, self.p3SUM
        t = 32
        c(f"s_lshl2_add_u32 s{sT}, s{sU}, s{sW}")
        c(f"s_mul_i32 s{sT+1}, s{sT}, 20480")
        c(f"s_mul_i32 s{sT+2}, s{sNB}, 2560")
        c(f"s_add_u32 s{sT+1}, s{sT+1}, s{sT+2}")
        c(f"s_add_u32 s{sT+1}, s{sT+1}, {H_OFF}")
        c(f"s_lshl3_add_u32 s{sT+2}, s{sT}, s{sNB}")
        c(f"s_lshl_b32 s{sT+2}, s{sT+2}, 7")
        c(f"s_add_u32 s{sT+13}, s{sT+2}, {F3_OFF}")
        c(f"s_add_u32 s{sT+2}, s{sT+2}, {HST_OFF}")
        c(f"v_and_b32 v{t+6}, 15, v1")
        c(f"v_lshrrev_b32 v{t+7}, 5, v1")
        c(f"v_lshl_add_u32 v{t+6}, v{t+7}, 4, v{t+6}")
        c(f"v_lshlrev_b32 v{t+7}, 4, v{t+6}")
        c(f"v_lshlrev_b32 v{t+6}, 2, v{t+6}")
        c(f"s_mov_b32 s{sT+4}, 0xffff")
        c(f"s_mov_b32 s{sT+5}, 0xffff")
        c("s_barrier")
        self.poll(self.vPOL)
        self.stamp("s2", "main p3")
        L = []
        for i in range(4):
            for s in range(4):
                L.append(I(f"buffer_load_dwordx4 {vr(vA+16*i+4*s,4)}, v{vL16}, {WSR}, s{sT+8+i} offen offset:{s*1024} {ld}"))
            if i < 2:
                L.append(I(f"buffer_load_dwordx4 {vr(vL+8*i,4)}, v{t}, {WSR}, s{sT+6+i} offen {ld}"))
                L.append(I(f"buffer_load_dwordx4 {vr(vL+8*i+4,4)}, v{t+1}, {WSR}, s{sT+6+i} offen {ld}"))
        n0 = o.get('p3n0', 8)
        c.add(L[:n0])
        L = L[n0:] + self.w1_take(35)

        def swaps(g):
            q = vL + 8 * g
            return [I(f"s_not_b64 exec, s[{sT+14}:{sT+15}]"), I(f"v_swap_b32 v{q+2}, v{q+4}"), I(f"v_swap_b32 v{q+3}, v{q+5}"),
                    I(f"s_mov_b64 exec, s[{sT+14}:{sT+15}]"), I(f"v_swap_b32 v{q}, v{q+6}"), I(f"v_swap_b32 v{q+1}, v{q+7}"),
                    I("s_mov_b64 exec, -1")]
        left = {0: vL, 1: vL + 12, 2: vL + 4, 3: vL + 8}
        lper = o.get('p3lp', 3)
        for i in range(4):
            ac = vAC + 20 * (i & 1) if i < 3 else vSUM
            M = []
            for s in range(5):
                b = vA + 16 * i + 4 * s if s < 4 else left[i]
                for tl in range(5):
                    d = vr(ac + 4 * tl, 4)
                    M.append(I(f"v_mfma_f32_16x16x32_bf16 {d}, {ar(self.aWO+4*(5*s+tl),4)}, {vr(b,4)}, {0 if s == 0 and i < 3 else d}"))
            F = [[] for _ in range(25)]
            if i < 2:
                F[17] += swaps(i)
            if i > 0:
                pa = vAC + 20 * ((i - 1) & 1)
                for tl in range(5):
                    F[(3 + 2 * tl) if i == 3 else (3 + 4 * tl)] += [I(f"ds_write_b128 v{t+2+i-1}, {vr(pa+4*tl,4)} offset:{tl*1024}")]
            if i == 3:
                F[14] += [I("s_waitcnt lgkmcnt(0)"), I("s_barrier")]
                for r in range(3):
                    for tl in range(5):
                        src = f"v{t+5} offset:{tl*1024}" if r == 0 else f"v{t+12} offset:{(r-1)*5120 + tl*1024}"
                        F[15 + (5 * r + tl) * 2 // 3] += [I(f"ds_read_b128 {vr(self.p3PR[r]+4*tl,4)}, {src}")]
            for k in range(25):
                c.add(M[k])
                if L and (25 * i + k) % lper == 0:
                    c.add(L.pop(0))
                c.add(F[k])
                if k in (0, 8, 12, 24):
                    self.stamp(f"i{i}k{k}", "p3")
        c.add(L)
        self.stamp("p3")
        self.p3_epilogue('sc1')

    def p3_epilogue(self, st):
        c, o = self.c, self.o
        vAC, vPB, vSUM = self.p3AC, self.p3PB, self.p3SUM
        t = 32
        ac = vAC + 20
        rs = self.vRES
        for j in range(10):
            c(f"v_pk_add_f32 {vr(self.p3PR[1]+2*j,2)}, {vr(self.p3PR[0]+2*j,2)}, {vr(self.p3PR[1]+2*j,2)}")
        for P in range(3):
            for src in (self.p3PR[1], self.p3PR[2]):
                for j in range(4 * P, min(4 * P + 4, 10)):
                    c(f"v_pk_add_f32 {vr(vSUM+2*j,2)}, {vr(vSUM+2*j,2)}, {vr(src+2*j,2)}")
            for j in range(4 * P, min(4 * P + 4, 10)):
                c(f"v_cvt_pk_bf16_f32 v{rs+j}, v{vSUM+2*j}, v{vSUM+2*j+1}")
            if P < 2:
                c(f"buffer_store_dwordx4 {vr(rs+4*P,4)}, v{vL16}, {WSR}, s{sT+1} offen offset:{P*1024} {st}")
        for j in range(4):
            c(f"v_mov_b32 v{vPB+j}, v{rs+8+(j&1)}")
        a1, a2 = t + 8, t + 10
        c(f"v_pk_add_f32 {vr(a1,2)}, {vr(vSUM,2)}, {vr(vSUM+2,2)}")
        c(f"v_pk_mul_f32 {vr(a2,2)}, {vr(vSUM,2)}, {vr(vSUM,2)}")
        c(f"v_permlane16_swap_b32 v{vPB}, v{vPB+2}")
        c(f"v_permlane16_swap_b32 v{vPB+1}, v{vPB+3}")
        c(f"s_mov_b64 exec, s[{sT+4}:{sT+5}]")
        c(f"buffer_store_dwordx4 {vr(vPB,4)}, v{t+7}, {WSR}, s{sT+1} offen offset:2048 {st}")
        c("s_mov_b64 exec, -1")
        for j in range(1, 10):
            if j > 1:
                c(f"v_pk_add_f32 {vr(a1,2)}, {vr(a1,2)}, {vr(vSUM+2*j,2)}")
            c(f"v_pk_fma_f32 {vr(a2,2)}, {vr(vSUM+2*j,2)}, {vr(vSUM+2*j,2)}, {vr(a2,2)}")
        c(f"v_add_f32 v{a1}, v{a1}, v{a1+1}")
        c(f"v_add_f32 v{a2}, v{a2}, v{a2+1}")
        c(f"v_permlane32_swap_b32 v{a1}, v{a2}")
        c(f"v_add_f32 v{a1}, v{a1}, v{a2}")
        c(f"v_mov_b32 v{a2}, v{a1}")
        c(f"v_permlane16_swap_b32 v{a1}, v{a2}")
        c(f"v_add_f32 v{a1}, v{a1}, v{a2}")
        c(f"s_mov_b64 exec, s[{sT+4}:{sT+5}]")
        h = c(f"buffer_store_dword v{a1}, v{t+6}, {WSR}, s{sT+2} offen {st}")
        c("s_mov_b64 exec, -1")
        for n in range(10):
            c(f"ds_write_b128 v{t+12}, {ar(self.aW1L+4*n,4)} offset:{n*1024}")
        self.p4_prep()
        c.wait(h)
        self.stamp("hdrain")
        self.flag_store(sT + 13)
        c("s_waitcnt lgkmcnt(0)")
        c("s_barrier")
        self.csum_k = 0
        self.r0 = None
        if o.get('csb', 40) >= 40:
            r0 = [I(f"ds_read_b128 {vr(self.p4W+4*tl,4)}, v{vL16} offset:{tl*1024}") for tl in range(7)]
            self.r0 = list(r0)
            self.csum(40, r0)
        else:
            self.csum(min(o['csb'], 30))

    def csum(self, n, tail=None):
        c = self.c
        vAC, vC, vONE, NB, LA = self.p4AC, self.p4CS, 56, 14, 10
        rd = lambda k: I(f"ds_read_b128 {vr(vAC+4*(k%NB),4)}, v{52+(k>>1)//9} offset:{((k>>1)%9)*7168 + (k&1)*4096}")
        if self.csum_k == 0:
            for k in range(LA):
                c.add(rd(k))
        for k in range(self.csum_k, min(self.csum_k + n, 40)):
            d = vr(vC + 4 * (k & 1), 4)
            c(f"v_mfma_f32_16x16x32_bf16 {d}, {vr(vAC+4*(k%NB),4)}, {vr(vONE,4)}, {0 if k < 2 else d}")
            if k + LA < 40:
                c.add(rd(k + LA))
            elif tail:
                c.add(tail[:1]); del tail[:1]
        self.csum_k = min(self.csum_k + n, 40)

    p4AC, p4W, p4A, p4NR, p4ST, p4CS = 64, 120, 176, 7, 16, 24

    def p4_prep(self):
        c = self.c
        t = 8
        c(f"s_mov_b32 s{sT}, s{sTP}")
        c(f"s_mul_i32 s{sT+6}, s{sT}, 40960")
        c(f"s_add_u32 s{sT+6}, s{sT+6}, {H_OFF}")
        c(f"s_add_u32 s{sT+7}, s{sT+6}, 20480")
        c(f"s_lshl_b32 s{sT+8}, s{sT}, 11")
        c(f"s_add_u32 s{sT+8}, s{sT+8}, {HST_OFF}")
        c(f"v_and_b32 v{t}, 31, v1")
        c(f"v_lshrrev_b32 v{t+1}, 5, v1")
        c(f"v_lshlrev_b32 v{t}, 2, v{t}")
        c(f"v_lshl_add_u32 v{t}, v{t+1}, 10, v{t}")
        c(f"v_add_u32 v{t+2}, {9*7168}, v{vL16}")
        c(f"v_add_u32 v{t+3}, {18*7168}, v{vL16}")
        c(f"v_and_b32 v{t+4}, 48, v1")
        c(f"v_add_u32 v{t+4}, {self.RED}, v{t+4}")
        c(f"s_mul_i32 s{sT+9}, s{sW}, 5120")
        c(f"v_add_u32 v{t+5}, s{sT+9}, v{t+4}")
        c(f"s_lshl_b32 s{sT+9}, s{sT}, 11")
        c(f"s_add_u32 s{sT+9}, s{sT+9}, {F3_OFF - FL_OFF}")
        c(f"v_and_b32 v{self.vPOL}, 15, v1")
        c(f"v_lshl_add_u32 v{self.vPOL}, v{self.vPOL}, 7, s{sT+9}")
        c(f"s_lshl_b32 s{sT+9}, s{sW}, 10")
        c(f"v_add_u32 v52, s{sT+9}, v{vL16}")
        c(f"v_add_u32 v53, {9*7168}, v52")
        c(f"v_add_u32 v54, {18*7168}, v52")
        for j in range(4):
            c(f"v_mov_b32 v{56+j}, 0x3f803f80")

    def phase4(self):
        c, o = self.c, self.o
        ld = o.get('la', 'sc1')
        vAC, vW, vA, NR, vST, vCS = self.p4AC, self.p4W, self.p4A, self.p4NR, self.p4ST, self.p4CS
        t = 8
        wa = [vL16, t + 2, t + 3]
        rdw = lambda s: [I(f"ds_read_b128 {vr(vW+28*(s&1)+4*tl,4)}, v{wa[s//9]} offset:{(s%9)*7168 + tl*1024}") for tl in range(7)]
        vC = vCS
        self.poll(self.vPOL)
        self.stamp("s3", "main p4")

        def lda(s):
            g = []
            for a in range(2):
                pre = [I(f"s_add_u32 s{sT+6+a}, s{sT+6+a}, 4096")] if s and s % 4 == 0 else []
                g.append(pre + [I(f"buffer_load_dwordx4 {vr(vA+8*(s%NR)+4*a,4)}, v{vL16}, {WSR}, s{sT+6+a} offen offset:{(s&3)*1024} {ld}")])
            return g
        Q = [x for s in range(20) for x in lda(s)]
        n0 = o.get('p4n0', 8)
        c.add(Q[:n0]); qi = n0
        r0 = rdw(0) if self.r0 is None else []
        Rp = list(r0) if self.r0 is None else self.r0
        self.csum(40, r0)
        c.add(r0)
        self.stamp("csum", "p4")
        extra = [[I(f"buffer_load_dword v{vST+j}, v{t}, {WSR}, s{sT+8} offen offset:{j*128} {ld}")] for j in range(8)]
        misc = {k: [] for k in range(20)}
        wr = [I(f"ds_write_b128 v{t+5}, {vr(vC,4)}"), I(f"ds_write_b128 v{t+5}, {vr(vC+4,4)} offset:64")]
        misc[0] = wr
        sb = o.get('p4b', 8)
        misc[sb] = [[W(wr[1]), I("s_barrier")]]
        for tl in range(7):
            misc[sb + 1 + tl // 3].append(I(f"ds_read_b128 {vr(vCS+4*tl,4)}, v{t+4} offset:{(tl&3)*5120 + (tl>>2)*64}"))
        sw = o.get('p4w', 4)
        credit = 0
        fin = self.sub(self.p4_stats)
        V = {k: [] for k in range(20)}
        for j, x in enumerate(fin):
            V[11 + j // 10].append(x)
        assert len(fin) <= 40
        for s in range(20):
            M = []
            for tl in range(7):
                for a in range(2):
                    d = vr(vAC + 28 * a + 4 * tl, 4)
                    M.append(I(f"v_mfma_f32_16x16x32_bf16 {d}, {vr(vW+28*(s&1)+4*tl,4)}, {vr(vA+8*(s%NR)+4*a,4)}, {0 if s == 0 else d}"))
            Rn = rdw(s + 1) if s < 19 else [[]] * 7
            na = min(min(2 * (s + NR), 40) - qi, o.get('p4r', 3))
            F = Q[qi:qi + na]; qi += na
            assert qi >= min(2 * (s + 2), 40)
            ne = 2 if s < sw else 0
            F += extra[:ne]; extra = extra[ne:]
            if s >= sw:
                assert not extra
                credit += o.get('p4x', 20) if na else o.get('p4y', 30)
                F += self.w2_take(credit // 10); credit %= 10
            F += misc[s]
            assert len(F) <= 7, (s, len(F))
            if 15 <= s < 19:
                for k in range(14):
                    tl, a = divmod((k + 7) % 14, 2)
                    V[s].append(I(f"v_fmac_f32 v{vAC + 28*a + 4*tl + s - 15}, v{vCS + 4*tl + s - 15}, v{vST + 2*a}"))
            M[0].waits = [Rp[3]]; M[8].waits = [Rp[6]]
            Rp = Rn
            for k in range(14):
                f = flat(F[k // 2]) if k % 2 and k // 2 < len(F) else []
                j = next((j for j, i in enumerate(f) if i.kind == 'vmem'), 0)
                c.add(f[:j]); c.add(M[k]); c.add(f[j:]); c.add(Rn[k // 2] if k % 2 == 0 else [])
                c.add(V[s][k:k + 1])
            if s < 8 or s % 2:
                self.stamp(f"k{s}", "p4")
        self.stamp("p4")
        self.p4_epilogue('sc1')

    def p4_stats(self):
        c = self.c
        vST, t = self.p4ST, 8
        for j in range(1, 8):
            c(f"v_add_f32 v{vST}, v{vST}, v{vST+j}")
        c(f"v_mov_b32 v{vST+1}, v{vST}")
        c(f"v_permlane16_swap_b32 v{vST}, v{vST+1}")
        c(f"v_mul_f32 v{vST}, {hex(f2u(-1.0/640))}, v{vST}")
        c(f"v_mul_f32 v{vST+1}, {hex(f2u(1.0/640))}, v{vST+1}")
        c(f"v_fma_f32 v{vST+1}, -v{vST}, v{vST}, v{vST+1}")
        c(f"v_max_f32 v{vST+1}, 0, v{vST+1}")
        c(f"v_add_f32 v{vST+1}, {hex(f2u(1e-5))}, v{vST+1}")
        c(f"v_rsq_f32 v{vST+1}, v{vST+1}")
        nl = hex(f2u(-1.4426950408889634))
        c(f"v_mov_b32 v{vST+4}, {nl}")
        c(f"v_mov_b32 v{vST+5}, {nl}")
        c(f"v_mul_f32 v{vST+1}, v{vST+4}, v{vST+1}")
        c(f"v_mov_b32 v{vST+2}, v{vST}")
        c(f"v_mov_b32 v{vST+3}, v{vST+1}")
        c(f"v_permlane32_swap_b32 v{vST}, v{vST+2}")
        c(f"v_permlane32_swap_b32 v{vST+1}, v{vST+3}")
        c(f"s_mul_i32 s{sT+1}, s{sT}, {2*57344}")
        c(f"s_mul_i32 s{sT+2}, s{sFB}, 3584")
        c(f"s_add_u32 s{sT+1}, s{sT+1}, s{sT+2}")
        c(f"s_add_u32 s{sT+1}, s{sT+1}, {H1_OFF}")
        c(f"s_add_u32 s{sT+2}, s{sT+1}, 57344")
        c(f"v_bfe_u32 v{t+6}, v1, 4, 1")
        c(f"v_mul_u32_u24 v{t+6}, 57344, v{t+6}")
        c(f"v_and_b32 v{t+7}, 15, v1")
        c(f"v_lshl_add_u32 v{t+6}, v{t+7}, 4, v{t+6}")
        c(f"v_lshl_add_u32 v{t+6}, v{t+1}, 8, v{t+6}")
        c(f"s_lshl_b32 s{sT+13}, s{sU}, 7")
        c(f"s_lshl2_add_u32 s{sT+13}, s{sHEAD}, s{sT+13}")
        c(f"s_add_u32 s{sT+13}, s{sT+13}, {F4_OFF}")

    def p4_epilogue(self, st):
        c, o = self.c, self.o
        vAC, vW, vST, vCS = self.p4AC, self.p4W, self.p4ST, self.p4CS
        t = 8
        vE, vOUT = 52, vW
        groups = [[(a, 2 * P), (a, 2 * P + 1)] for P in range(3) for a in range(2)] + [[(0, 6), (1, 6)]]
        for gi, g in enumerate(groups):
            if gi < 5:
                c.add(self.w2_take(o.get('p4e', 0)))
            pairs = [(vAC + 28 * a + 4 * tl + 2 * q, vCS + 4 * tl + 2 * q, vST + 2 * a) for a, tl in g for q in range(2)]
            for r, cs, sv in pairs:
                c(f"v_pk_mul_f32 {vr(r,2)}, {vr(r,2)}, {vr(sv,2)} op_sel:[0,1] op_sel_hi:[1,1]")
            for k, (r, cs, sv) in enumerate(pairs):
                c(f"v_exp_f32 v{vE+2*k}, v{r}")
                c(f"v_exp_f32 v{vE+2*k+1}, v{r+1}")
            for k in range(4):
                c(f"v_pk_fma_f32 {vr(vE+2*k,2)}, {vr(vE+2*k,2)}, {vr(vST+4,2)}, {vr(vST+4,2)}")
            for k in range(8):
                c(f"v_rcp_f32 v{vE+k}, v{vE+k}")
            for k, (r, cs, sv) in enumerate(pairs):
                c(f"v_pk_mul_f32 {vr(r,2)}, {vr(r,2)}, {vr(vE+2*k,2)}")
            out = vOUT + 4 * gi
            for k, (r, cs, sv) in enumerate(pairs):
                c(f"v_cvt_pk_bf16_f32 v{out+k}, v{r}, v{r+1}")
            if gi < 6:
                c(f"buffer_store_dwordx4 {vr(out,4)}, v{vL16}, {WSR}, s{sT+1+(gi&1)} offen offset:{(gi>>1)*1024} {st}")
            else:
                c(f"v_permlane16_swap_b32 v{out}, v{out+2}")
                c(f"v_permlane16_swap_b32 v{out+1}, v{out+3}")
                h = c(f"buffer_store_dwordx4 {vr(out,4)}, v{t+6}, {WSR}, s{sT+1} offen offset:3072 {st}")
        self.stamp("p4epi")
        c.add(self.w2_take(o.get('p4d', 0)))
        self.p5_prep()
        self.p5_prep2()
        c.wait(h)
        self.stamp("h1drain")
        self.flag_store_near(sT + 13)
        c.add(self.w2_take(70))

    p5A, p5NR, p5AC, p5PB, p5SUM, p5S0 = 64, 20, 144, 208, 32, 184
    sA5 = 64

    def p5_prep(self):
        c = self.c
        c(f"s_mul_i32 s{sT+5}, s{sK8}, 7168")
        c(f"s_add_u32 s{sT+5}, s{sT+5}, {H1_OFF}")
        c(f"s_lshl2_add_u32 s{sT+7}, s{sU}, s{sW}")
        for i in range(8):
            c(f"s_xor_b32 s{sT+6}, s{sT+7}, {self.CORD[i & 3] + (16 if i < 4 else 0)}")
            c(f"s_mul_i32 s{self.sA5+i}, s{sT+6}, 57344")
            c(f"s_add_u32 s{self.sA5+i}, s{self.sA5+i}, s{sT+5}")
        c(f"s_lshl2_add_u32 s{sT+3}, s{sU}, s{sW}")
        c(f"s_lshl_b32 s{sT+3}, s{sT+3}, 5")
        c(f"s_add_u32 s{sT+3}, s{sT+3}, {F4_OFF - FL_OFF}")
        c(f"v_and_b32 v{self.vPOL}, 7, v1")
        c(f"v_lshl_add_u32 v{self.vPOL}, v{self.vPOL}, 2, s{sT+3}")

    def p5_prep2(self):
        c = self.c
        t, rs, vSUM = 16, self.vRES, self.p5SUM
        for i, cc in enumerate(self.CORD):
            c(f"s_xor_b32 s{sT+6}, s{sW}, {cc}")
            c(f"s_mul_i32 s{sT+6}, s{sT+6}, 30720")
            if 0 < i < 3:
                c(f"s_add_u32 s{sT+6}, s{sT+6}, {i*5120}")
            c(f"v_add_u32 v{t+6+i}, s{sT+6}, v{vL16}")
        for j in range(10):
            c(f"v_lshlrev_b32 v{vSUM+2*j}, 16, v{rs+j}")
            c(f"v_and_b32 v{vSUM+2*j+1}, s{sMASK}, v{rs+j}")
        c(f"s_lshl_b32 s{sT+6}, s{sU}, 5")
        c(f"s_add_u32 s{sT+6}, s{sT+6}, s{sHEAD}")
        c(f"s_xor_b32 s{sT+7}, s{sT+6}, 128")
        c(f"s_mul_i32 s{sT+4}, s{sT+6}, 2560")
        c(f"s_add_u32 s{sT+4}, s{sT+4}, {PX_OFF}")
        c(f"s_mul_i32 s{sT+5}, s{sT+7}, 2560")
        c(f"s_add_u32 s{sT+5}, s{sT+5}, {PX_OFF}")
        c(f"s_lshl_b32 s72, s{sT+7}, 7")
        c(f"s_add_u32 s72, s72, {F5_OFF}")
        c(f"s_lshl_b32 s{sT+6}, s{sT+6}, 7")
        c(f"s_add_u32 s{sT+6}, s{sT+6}, {F5_OFF - FL_OFF}")
        c(f"v_mov_b32 v{self.vFWA}, s{sT+6}")
        c(f"v_lshlrev_b32 v{t+12}, 3, v1")
        c(f"s_lshl_b32 s{sT+6}, s{sW}, 12")
        c(f"s_add_u32 s{sT+6}, s{sT+6}, 122880")
        c(f"v_and_b32 v{t}, 15, v1")
        c(f"v_mul_u32_u24 v{t}, 160, v{t}")
        c(f"v_add_u32 v{t}, s{sT+6}, v{t}")
        c(f"v_lshrrev_b32 v{t+1}, 4, v1")
        c(f"v_lshl_add_u32 v{t+2}, v{t+1}, 3, v{t}")
        c(f"v_lshl_add_u32 v{t+1}, v{t+1}, 4, v{t}")
        c(f"v_add_u32 v{t}, s{sT+6}, v{vL16}")
        for j in range(3):
            c(f"v_add_u32 v{t+10}, {64*j}, v1")
            c(f"v_mul_u32_u24 v{t+11}, 6554, v{t+10}")
            c(f"v_lshrrev_b32 v{t+11}, 16, v{t+11}")
            c(f"v_mul_u32_u24 v{t+11}, {1280-160}, v{t+11}")
            c(f"v_lshl_add_u32 v{t+3+j}, v{t+10}, 4, v{t+11}")
        c(f"s_lshl2_add_u32 s{sT}, s{sU}, s{sW}")
        c(f"s_mul_i32 s{sT}, s{sT}, {16*1280}")
        c(f"s_mul_i32 s{sT+1}, s{sNB}, 160")
        c(f"s_add_u32 s{sT}, s{sT}, s{sT+1}")

    def phase5(self):
        c, o = self.c, self.o
        ld = o.get('la', 'sc1')
        vA, NR, vAC, vPB, vSUM, vS0 = self.p5A, self.p5NR, self.p5AC, self.p5PB, self.p5SUM, self.p5S0
        t = 16
        rs = self.vRES
        c("s_barrier")
        self.poll(self.vPOL)
        self.stamp("s4", "main p5")

        def lda(k):
            i, s = divmod(k, 7)
            pre = [I(f"s_add_u32 s{self.sA5+i}, s{self.sA5+i}, 4096")] if s == 4 else []
            return pre + [I(f"buffer_load_dwordx4 {vr(vA+4*(k%NR),4)}, v{vL16}, {WSR}, s{self.sA5+i} offen offset:{(s&3)*1024} {ld}")]
        LA = o.get('p5la', 12)
        qi = o.get('p5n0', 8)
        for k in range(qi):
            c.add(lda(k))
        F = [[] for _ in range(280)]
        add = lambda d, x, n=20: [I(f"v_add_f32 v{d+j}, v{d+j}, v{x+j}") for j in range(n)]
        vXP = 52

        def put(items, g, per=1, step=1):
            items = list(items)
            while items:
                n = per
                if g % 5 == 0 and g // 5 + LA < 56 or g % 5 == 4:
                    n = per - 1
                F[g] += items[:n]; items = items[n:]; g += step
            return g
        for i in range(1, 8):
            half, r = divmod(i - 1, 4)
            g = 35 * i
            pa = vAC + 20 * ((i - 1) & 1)
            if r == 3:
                A = add(vS0, vPB)
                it = []
                for P in range(3):
                    js = range(4 * P, min(4 * P + 4, 10))
                    it += [x for j in js for x in A[2 * j:2 * j + 2]]
                    it += [I(f"v_cvt_pk_bf16_f32 v{vXP+j}, v{vS0+2*j}, v{vS0+2*j+1}") for j in js]
                    if P < 2:
                        hs = I(f"buffer_store_dwordx4 {vr(vXP+4*P,4)}, v{vL16}, {WSR}, s{sT+5} offen offset:{P*1024} sc1")
                    else:
                        hs = I(f"buffer_store_dwordx2 {vr(vXP+8,2)}, v{t+12}, {WSR}, s{sT+5} offen offset:2048 sc1")
                    it += [hs]
                put(it, g + 3, 2)
                fs = self.sub(self.flag_store, 72)
                fs[0].waits = [hs]
                F[g + o.get('p5f', 52)] += fs
                continue
            last = r == 1
            wr = [I(f"ds_write_b128 v{t+6+r}, {vr(pa+4*tl,4)} offset:{half*15360 + tl*1024}") for tl in range(5)]
            for tl, g1 in enumerate((3, 6, 8, 11, 13) if last else (3, 7, 11, 13, 17)):
                F[g + g1].insert(0, wr[tl])
            gb = g + (17 if last else 22)
            F[gb] += [W(wr[-1]), I("s_barrier")]
            dst = vS0 if i == 1 else vPB
            rd = [I(f"ds_read_b128 {vr(dst+4*tl,4)}, v{t+9} offset:{half*15360 + r*5120 + tl*1024}") for tl in range(5)]
            gn = put(rd, gb + 1, 2 if last else 1)
            if i == 1 or r == 2:
                continue
            A = add(vSUM if half else vS0, vPB)
            A[0].waits = [rd[-1] if not last else rd[2]]
            gn = put(A, gn + (4 if last else 5), 3 if last else 2)
            assert gn <= g + (34 if last else 52), (i, gn - g)
        gl = o.get('p5g', 222)
        F[gl].insert(0, I(f"buffer_load_dword v{self.vFWD}, v{self.vFWA}, {WSR}, s{sFLB} offen sc1"))
        gc = o.get('p5c', 247)
        F[gc] += self.sub(self.flag_check, self.vFWD, self.vFWA, False, 0)
        F[gc + 1].insert(0, I(f"buffer_load_dwordx4 {vr(vXP,4)}, v{vL16}, {WSR}, s{sT+4} offen sc1"))
        F[gc + 2].insert(0, I(f"buffer_load_dwordx4 {vr(vXP+4,4)}, v{vL16}, {WSR}, s{sT+4} offen offset:1024 sc1"))
        F[gc + 3].insert(0, I(f"buffer_load_dwordx2 {vr(vXP+8,2)}, v{t+12}, {WSR}, s{sT+4} offen offset:2048 sc1"))
        for k in range(56):
            i, s = divmod(k, 7)
            ac = {3: vS0, 7: vSUM}.get(i, vAC + 20 * (i & 1))
            for tl in range(5):
                d = vr(ac + 4 * tl, 4)
                L = []
                if tl in (0, 2) and qi < min(k + LA + 1, 56):
                    L = lda(qi); qi += 1
                c.add(L[:-1])
                c(f"v_mfma_f32_16x16x32_bf16 {d}, {self.w2reg(5*s+tl)}, {vr(vA+4*(k%NR),4)}, {0 if s == 0 and i % 4 != 3 else d}")
                c.add(L[-1:])
                c.add(F[5 * k + tl])
            if s in (0, 6):
                self.stamp(f"i{i}s{s}", "p5")
        self.stamp("p5")
        for j in range(10):
            c(f"v_pk_add_f32 {vr(vSUM+2*j,2)}, {vr(vSUM+2*j,2)}, {vr(vPB+2*j,2)}")
        for P in range(3):
            for j in range(4 * P, min(4 * P + 4, 10)):
                c(f"v_lshlrev_b32 v{vS0+2*j}, 16, v{vXP+j}")
                c(f"v_and_b32 v{vS0+2*j+1}, s{sMASK}, v{vXP+j}")
            for j in range(4 * P, min(4 * P + 4, 10)):
                c(f"v_pk_add_f32 {vr(vSUM+2*j,2)}, {vr(vSUM+2*j,2)}, {vr(vS0+2*j,2)}")
            for j in range(4 * P, min(4 * P + 4, 10)):
                c(f"v_cvt_pk_bf16_f32 v{rs+j}, v{vSUM+2*j}, v{vSUM+2*j+1}")
            if P < 2:
                c(f"ds_write_b128 v{t+1}, {vr(rs+4*P,4)} offset:{64*P}")
            else:
                c(f"ds_write_b64 v{t+2}, {vr(rs+8,2)} offset:128")
        for j in range(3):
            c(f"ds_read_b128 {vr(vPB+4*j,4)}, v{t} offset:{j*1024}")
        for j in range(3):
            if j == 2:
                c(f"s_not_b64 exec, s[{sHI}:{sHI+1}]")
            c(f"buffer_store_dwordx4 {vr(vPB+4*j,4)}, v{t+3+j}, s[{sOUT}:{sOUT+3}], s{sT} offen {o.get('ost', '').replace('+', ' ')}")
        c("s_mov_b64 exec, -1")

    def build(self):
        c = self.c
        self.prologue()
        self.phase1()
        self.attention()
        self.phase3()
        self.phase4()
        self.phase5()
        if self.o.get('stamps'):
            c("s_waitcnt vmcnt(0) lgkmcnt(0)")
            self.stamp("end")
            self.dump_stamps()
        if self.o.get('probe'):
            c("s_waitcnt vmcnt(0) lgkmcnt(0)")
            self.stamp("end")
            if 'pmask' in self.o:
                c(f"s_and_b32 s{sT}, s2, {self.o['pmask']}")
                c(f"s_cmp_lg_u32 s{sT}, {self.o['pval']}")
                c("s_cbranch_scc1 Lend")
            if self.o.get('pmin'):
                c(f"s_load_dwordx2 s[{sDBG}:{sDBG+1}], s[0:1], 56")
                c(f"s_not_b32 s{sT}, s{sST}")
                c(f"v_mov_b32 v2, s{sT}")
                c("v_mov_b32 v3, 0")
                c("s_mov_b64 exec, 1")
                c(f"global_atomic_umax v3, v2, s[{sDBG}:{sDBG+1}] sc1")
                c(f"s_sub_u32 s{sST}, s{sST}, 1000")
                c("Lprobe0:")
                c(f"s_memrealtime s[{sTM}:{sTM+1}]")
                c("s_waitcnt lgkmcnt(0)")
                c(f"s_sub_u32 s{sT}, s{sTM}, s{sST}")
                c(f"s_cmp_lt_i32 s{sT}, 0")
                c("s_cbranch_scc1 Lprobe0")
                c(f"global_load_dword v2, v3, s[{sDBG}:{sDBG+1}] sc1")
                c(f"v_readfirstlane_b32 s{sT}, v2")
                c(f"s_not_b32 s{sST}, s{sT}")
                c(f"s_add_u32 s{sST}, s{sST}, 1000")
            c("Lprobe:")
            c(f"s_memrealtime s[{sTM}:{sTM+1}]")
            c("s_waitcnt lgkmcnt(0)")
            c(f"s_sub_u32 s{sT}, s{sTM}, s{sST}")
            c(f"s_cmp_lt_i32 s{sT}, 0")
            c("s_cbranch_scc1 Lprobe")
        c("s_endpgm")
        c.add(self.ool.ins)
        c("Lend:")
        body = finalize(c)
        return f"""; Fused pre-LN sliding-window attention block + SiLU FFN (generated by work/gen.py)
; @launch grid=(256,1,1) block=(256,1,1) lds=163840
.amdgcn_target "amdgcn-amd-amdhsa--gfx950"
.text
.globl {NAME}_kernel
.p2align 8
.type {NAME}_kernel,@function
{NAME}_kernel:
{body}
  s_endpgm
Lcode_end:
.section .rodata,"a"
.p2align 6
.amdhsa_kernel {NAME}_kernel
  .amdhsa_next_free_vgpr 512
  .amdhsa_next_free_sgpr 102
  .amdhsa_accum_offset 256
  .amdhsa_group_segment_fixed_size 0
  .amdhsa_kernarg_size 72
  .amdhsa_user_sgpr_count 2
  .amdhsa_user_sgpr_kernarg_segment_ptr 1
  .amdhsa_system_sgpr_workgroup_id_x 1
.end_amdhsa_kernel
"""


def generate(**opt):
    g = Gen(opt)
    return g.build(), g


if __name__ == "__main__":
    opt = {}
    out = None
    for a in sys.argv[1:]:
        if '=' in a:
            k, v = a.split('=', 1)
            opt[k] = int(v) if v.lstrip('-').isdigit() else v
        else:
            out = a
    asm, g = generate(**opt)
    open(out or f"cdna_kernels/{NAME}.s", "w").write(asm)
    print(len(asm.splitlines()), "lines")
```

```python
import sys, struct
from dsl import *

NAME = "sequential_preLN__sliding_block__dense_activation_silu__prompt"

QK_OFF = 0
V_OFF = QK_OFF + 32 * 163840
O_OFF = V_OFF + 64 * 40960
H_OFF = O_OFF + 32 * 81920
HST_OFF = H_OFF + 128 * 20480
H1_OFF = HST_OFF + 128 * 1024
WO_OFF = H1_OFF + 128 * 57344
W1_OFF = WO_OFF + 8 * 102400
W2_OFF = W1_OFF + 16 * 143360
PX_OFF = W2_OFF + 8 * 286720
RST_OFF = PX_OFF + 1024 * 2560
CST_OFF = RST_OFF + 16 * 20480
FL_OFF = CST_OFF + 16 * 10240
F2_OFF = FL_OFF + 4096
F4_OFF = FL_OFF + 4 * 4096
FW1_OFF = FL_OFF + 16 * 4096
FX_OFF = FW1_OFF + 65536
FW2_OFF = FX_OFF + 32768
F1_OFF = FW2_OFF + 65536
FWO_OFF = F1_OFF + 32768
F3_OFF = FL_OFF + 72 * 4096
F5_OFF = F3_OFF + 131072
EP_OFF = FL_OFF + 8 * 4096
ST_OFF = FL_OFF + 136 * 4096
WS_SIZE = ST_OFF + 256 * 4 * 128

TAGC = 0x9E3779B8
SPIN_MAX = 200000
OOB = 0x7fff0000


def f2u(x):
    return struct.unpack('<I', struct.pack('<f', x))[0]


sX, sWQ, sWS, sKV, sOUT, sRP = 4, 8, 12, 16, 20, 24
sDBG, sWO, sW1, sW2 = 28, 30, 32, 34
sTP = 3
sW, sTAG, sRB1, sCT, sU, sNB, sRB, sFB = 36, 37, 38, 39, 40, 41, 42, 43
sHI = 44
sMASK = 46
sHEAD = 47
sT = 48
sST = 101
sK8, sSAME, sXCC = 85, 86, 87
sVM = 88
sWOO, sW1O, sW2B, sW2O = 90, 91, 92, 93
sFLB = 94
sW1M = 95
sTM = 96
sRPD, sRPF, sRPT = 98, 99, 100
WSR = f"s[{sWS}:{sWS+3}]"

vL16 = 2
vFLG = 254


class Gen:
    def __init__(self, opt):
        self.o = opt
        self.c = Code()
        self.ool = Code()
        self.stamp_names = []
        self.lab = 0
        self.ld = opt.get('ld', 'sc1')

    def label(self, base):
        self.lab += 1
        return f"L{base}_{self.lab}"

    def sub(self, fn, *a):
        k = Code()
        old, self.c = self.c, k
        fn(*a)
        self.c = old
        return k.ins

    def stamp(self, name, group='main'):
        if self.o.get('probe') and name in ('t0', self.o['probe']):
            self.c(f"s_memrealtime s[{sTM}:{sTM+1}]")
            self.c("s_waitcnt lgkmcnt(0)")
            self.c(f"s_add_u32 s{sST}, s{sTM}, 6000")
        if not self.o.get('stamps'):
            return
        if self.o.get('zoom', 'main') not in group.split() and name != 't0':
            return
        if name in self.stamp_names:
            idx = self.stamp_names.index(name)
        else:
            idx = len(self.stamp_names)
            self.stamp_names.append(name)
        assert idx < 32, name
        c = self.c
        c(f"{'s_memtime' if self.o.get('cyc') else 's_memrealtime'} s[{sTM}:{sTM+1}]")
        c("s_waitcnt lgkmcnt(0)")
        c(f"v_writelane_b32 v255, s{sTM}, {idx}")

    def dump_stamps(self):
        if not self.o.get('stamps'):
            return
        c = self.c
        c(f"s_lshl_b32 s{sT}, s2, 2")
        c(f"s_add_u32 s{sT}, s{sT}, s{sW}")
        c(f"s_lshl_b32 s{sT}, s{sT}, 7")
        c(f"s_add_u32 s{sT}, s{sT}, {ST_OFF}")
        c("v_lshlrev_b32 v3, 2, v1")
        c(f"s_not_b64 exec, s[{sHI}:{sHI+1}]")
        c(f"buffer_store_dword v255, v3, {WSR}, s{sT} offen")
        c("s_mov_b64 exec, -1")

    def prologue(self):
        c, o = self.c, self.o
        if o.get('stamps'):
            c("v_mov_b32 v255, 0")
        self.stamp("t0")
        c("s_cmp_ge_u32 s2, 256")
        c("s_cbranch_scc1 Lend")
        for _ in range(o.get('x_delay', 0)):
            c("s_sleep 32")
        c(f"s_load_dwordx2 s[{sX}:{sX+1}], s[0:1], 0")
        c(f"s_load_dwordx2 s[{sWQ}:{sWQ+1}], s[0:1], 8")
        c(f"s_load_dwordx2 s[{sWS}:{sWS+1}], s[0:1], 64")
        c(f"s_load_dwordx2 s[{sWO}:{sWO+1}], s[0:1], 16")
        c(f"s_load_dwordx4 s[{sW1}:{sW1+3}], s[0:1], 32")
        c(f"s_load_dwordx2 s[{sOUT}:{sOUT+1}], s[0:1], 48")
        c(f"s_getpc_b64 s[{sT}:{sT+1}]")
        c(f"s_lshr_b32 s{sT+3}, s2, 3")
        c(f"s_lshl_b32 s{sT+2}, s{sT+3}, 11")
        c(f"v_lshl_add_u32 v2, v0, 7, s{sT+2}")
        c("v_min_u32 v2, Lcode_end-Lpc0-256, v2")
        c("v_cmp_gt_u32 vcc, 16, v0")
        c(f"s_and_saveexec_b64 s[{sT+4}:{sT+5}], vcc")
        c("s_cbranch_execz Lpc0")
        c.cond(True)
        c(f"global_load_dword v253, v2, s[{sT}:{sT+1}]")
        c.ins[-1].wr = []
        c.cond(False)
        c("Lpc0:")
        c("s_mov_b64 exec, -1")
        c("v_lshrrev_b32 v2, 6, v0")
        c("v_and_b32 v1, 63, v0")
        c(f"v_readfirstlane_b32 s{sW}, v2")
        c(f"s_and_b32 s{sT}, s2, 7")
        if o.get('p1map', 'C') == 'C':
            c(f"s_lshr_b32 s{sRB1}, s{sT}, 1")
            c(f"s_and_b32 s{sT+2}, s{sT+3}, 3")
            c(f"s_lshl2_add_u32 s{sRB1}, s{sRB1}, s{sT+2}")
            c(f"s_lshr_b32 s{sT+2}, s{sT+2}, 1")
            c(f"s_lshr_b32 s{sCT}, s{sT+3}, 2")
            c(f"s_cmp_eq_u32 s{sCT}, 7")
            c(f"s_cselect_b32 s{sT+2}, s{sT+2}, 0")
            c(f"s_xor_b32 s{sT+2}, s{sT+2}, s{sT}")
            c(f"s_and_b32 s{sT+2}, s{sT+2}, 1")
            c(f"s_lshl3_add_u32 s{sCT}, s{sT+2}, s{sCT}")
        elif o.get('p1map') == 'A':
            c(f"s_lshr_b32 s{sRB1}, s{sT+3}, 4")
            c(f"s_lshl1_add_u32 s{sRB1}, s{sT}, s{sRB1}")
            c(f"s_and_b32 s{sCT}, s{sT+3}, 15")
        else:
            c(f"s_and_b32 s{sRB1}, s{sT}, 1")
            c(f"s_and_b32 s{sT+2}, s{sT+3}, 7")
            c(f"s_lshl3_add_u32 s{sRB1}, s{sRB1}, s{sT+2}")
            c(f"s_lshr_b32 s{sCT}, s{sT}, 1")
            c(f"s_lshr_b32 s{sT+2}, s{sT+3}, 3")
            c(f"s_lshl2_add_u32 s{sCT}, s{sCT}, s{sT+2}")
        for r, size in ((sX, 2048 * 1280), (sWQ, 640 * 3840)):
            c(f"s_mov_b32 s{r+2}, {size}")
            c(f"s_mov_b32 s{r+3}, 0x20000")

    def base_setup(self):
        c = self.c
        c(f"s_add_u32 s{sTM}, s{sWS}, {EP_OFF}")
        c(f"s_addc_u32 s{sTM+1}, s{sWS+1}, 0")
        c(f"s_load_dword s{sTAG}, s[{sTM}:{sTM+1}], 0")
        for r, size in ((sWS, WS_SIZE), (sOUT, 2048 * 1280)):
            c(f"s_mov_b32 s{r+2}, {size}")
            c(f"s_mov_b32 s{r+3}, 0x20000")
        c(f"s_mov_b32 s{sHI}, 0")
        c(f"s_mov_b32 s{sHI+1}, -1")
        c(f"s_mov_b32 s{sMASK}, 0xffff0000")
        c(f"s_mov_b32 s{sFLB}, {FL_OFF}")

    def common_setup(self):
        c = self.c
        c(f"s_and_b32 s{sT}, s2, 7")
        c(f"s_lshr_b32 s{sT+1}, s2, 3")
        c(f"s_lshr_b32 s{sU}, s{sT+1}, 3")
        c(f"s_lshl2_add_u32 s{sU}, s{sT}, s{sU}")
        c(f"s_and_b32 s{sNB}, s{sT+1}, 7")
        c(f"s_lshr_b32 s{sRB}, s{sU}, 1")
        c(f"s_and_b32 s{sK8}, s2, 1")
        c(f"s_lshl3_add_u32 s{sFB}, s{sK8}, s{sNB}")
        c(f"s_andn2_b32 s{sTP}, s{sU}, 4")
        c(f"s_and_b32 s{sT}, s{sW}, 2")
        c(f"s_lshl1_add_u32 s{sTP}, s{sT}, s{sTP}")
        c(f"s_and_b32 s{sT}, s{sW}, 1")
        c(f"s_lshl1_add_u32 s{sTP}, s{sTP}, s{sT}")
        c(f"s_lshl2_add_u32 s{sHEAD}, s{sNB}, s{sW}")
        c(f"s_getreg_b32 s{sXCC}, hwreg(HW_REG_XCC_ID, 0, 4)")
        c(f"v_lshlrev_b32 v{vL16}, 4, v1")
        c(f"s_mul_i32 s{sWOO}, s{sHEAD}, 25600")
        c(f"s_add_u32 s{sWOO}, s{sWOO}, {WO_OFF}")
        c(f"s_lshl2_add_u32 s{sW1O}, s{sFB}, s{sW}")
        c(f"s_mul_i32 s{sW1O}, s{sW1O}, {35*1024}")
        c(f"s_add_u32 s{sW1O}, s{sW1O}, {W1_OFF}")
        c(f"s_mul_i32 s{sW1M}, s{sW}, {35*1024}")
        c(f"s_lshl2_add_u32 s{sK8}, s{sK8}, s{sW}")
        c(f"s_lshl3_add_u32 s{sW2B}, s{sNB}, s{sK8}")
        c(f"s_mul_i32 s{sW2B}, s{sW2B}, {35*1024}")
        c(f"s_add_u32 s{sW2B}, s{sW2B}, {W2_OFF}")
        c(f"s_mul_i32 s{sT}, s{sW}, 640")
        c(f"s_lshl_b32 s{sT+1}, s{sNB}, 12")
        c(f"s_add_u32 s{sT}, s{sT}, s{sT+1}")
        c(f"s_add_u32 s{sT}, s{sT}, {FWO_OFF - FL_OFF}")
        c(f"v_min_u32 v{self.vWOF}, 4, v1")
        c(f"v_lshl_add_u32 v{self.vWOF}, v{self.vWOF}, 7, s{sT}")

    def tag_ready(self):
        self.c(f"s_add_u32 s{sTAG}, s{sTAG}, {TAGC}")

    def flag_store(self, so, R=WSR):
        c = self.c
        c(f"v_mov_b32 v{vFLG}, s{sTAG}")
        c(f"v_lshlrev_b32 v253, 2, v1")
        c(f"s_not_b64 exec, s[{sHI}:{sHI+1}]")
        h = c(f"buffer_store_dword v{vFLG}, v253, {R}, s{so} offen sc1")
        c("s_mov_b64 exec, -1")
        return h

    def poll(self, va, vd=vFLG, span=False, sleep=0):
        c = self.c
        L, Ld = self.label("pl"), self.label("pd")
        n = sT + 12
        c(f"s_mov_b32 s{n}, {SPIN_MAX}")
        c(f"{L}:")
        c(f"buffer_load_dword v{vd}, v{va}, {WSR}, s{sFLB} offen sc1")
        c(f"s_sub_u32 s{n}, s{n}, 1")
        c(f"s_cbranch_scc1 {Ld}")
        c("s_waitcnt vmcnt(0)")
        self.tag_cmp(vd, span)
        if sleep:
            c(f"s_cbranch_vccz {Ld}")
            c(f"s_sleep {sleep}")
            c(f"s_branch {L}")
        else:
            c(f"s_cbranch_vccnz {L}")
        c(f"{Ld}:")
        c("s_waitcnt vmcnt(0)")

    def tag_cmp(self, vd, span):
        c = self.c
        if span:
            c(f"v_subrev_u32 v253, s{sTAG}, v{vd}")
            c(f"v_cmp_le_u32 vcc, 16, v253")
        else:
            c(f"v_cmp_ne_u32 vcc, s{sTAG}, v{vd}")

    def flag_check(self, vd, va, span=False, sleep=4):
        c = self.c
        Ls, Lb = self.label("fs"), self.label("fb")
        self.tag_cmp(vd, span)
        c("s_nop 3")
        c(f"s_cbranch_vccnz {Ls} ; noflush")
        c(f"{Lb}: ; noflush")
        old, self.c = self.c, self.ool
        self.c(f"{Ls}:")
        self.c("s_nop 15")
        self.poll(va, vd, span, sleep=sleep)
        self.c(f"s_branch {Lb}")
        self.c = old

    def flag_store_near(self, so):
        c = self.c
        Lf, Lb = self.label("far"), self.label("near")
        c(f"v_mov_b32 v{vFLG}, s{sTAG}")
        c(f"s_cmp_eq_u32 s{sSAME}, 0")
        c("s_mov_b64 exec, 1")
        c(f"s_cbranch_scc1 {Lf} ; noflush")
        c(f"buffer_store_dword v{vFLG}, off, {WSR}, s{so}")
        c(f"{Lb}: ; noflush")
        c("s_mov_b64 exec, -1")
        k = self.ool
        k(f"{Lf}:")
        k(f"buffer_store_dword v{vFLG}, off, {WSR}, s{so} sc1")
        k(f"s_branch {Lb}")

    NS = 4
    P1_WB = 4 * 16384
    P1_EX = 153600
    vXD, vWD, vXA, vWA, vXS, vWS_, vSEL, vSQ, vTMP, vRS, vCS = 4, 8, 12, 14, 18, 22, 24, 23, 28, 36, 40
    vPA = 44
    vRP = 52
    vWOF, vWOD = 59, 60
    vACC, vFR, vSF, vEP = 64, 128, 192, 208
    sKC, sKX, sKW, sW4 = sT + 8, sT + 9, sT + 10, sT + 11
    sSS, sONE = 76, 77

    def p1_setup(self):
        c, o = self.c, self.o
        t = self.vTMP
        if o.get('rot', 'A') == 'A':
            c(f"s_lshr_b32 s{sT}, s2, 1")
            c(f"s_xor_b32 s{sT}, s{sT}, s2")
        else:
            c(f"s_xor_b32 s{sT}, s{sRB1}, s{sCT}")
        c(f"s_and_b32 s{sT}, s{sT}, 1")
        c(f"s_mul_i32 s{self.sKC}, s{sT}, 5")
        c(f"s_lshl_b32 s{self.sW4}, s{sW}, 12")
        c(f"s_lshl2_add_u32 s{sT}, s{sRB1}, s{sW}")
        c(f"s_mul_i32 s{sT}, s{sT}, {32*1280}")
        c(f"v_lshrrev_b32 v{t}, 3, v1")
        c(f"v_mul_u32_u24 v{t}, 1280, v{t}")
        c(f"v_lshrrev_b32 v{t+1}, 4, v1")
        c(f"v_and_b32 v{t+2}, 7, v1")
        c(f"v_xor_b32 v{t+2}, v{t+2}, v{t+1}")
        c(f"v_lshlrev_b32 v{t+2}, 4, v{t+2}")
        c(f"v_add3_u32 v{self.vXD}, v{t+2}, v{t}, s{sT}")
        c(f"v_xor_b32 v{t+3}, 64, v{self.vXD}")
        c(f"s_cmp_ge_u32 s{sCT}, 10")
        c(f"s_cselect_b32 s{sT+1}, 10240, 0")
        c(f"s_add_u32 s{sT}, s{sT+1}, {10240-1024}")
        c(f"s_sub_u32 s{sT+1}, {2*(10240-1024)}, s{sT+1}")
        c(f"v_add_u32 v{self.vXD+1}, s{sT}, v{t+3}")
        c(f"v_add_u32 v{self.vXD+2}, s{sT+1}, v{self.vXD}")
        c(f"v_add_u32 v{self.vXD+3}, {3*(10240-1024)}, v{t+3}")
        c(f"s_mul_i32 s{sT}, s{sW}, {16*3840}")
        c(f"s_lshl_b32 s{sT+1}, s{sCT}, 8")
        c(f"s_add_u32 s{sT}, s{sT}, s{sT+1}")
        c(f"v_mul_u32_u24 v{t}, 3840, v{t+1}")
        c(f"v_and_b32 v{t+2}, 15, v1")
        c(f"v_lshlrev_b32 v{t+3}, 1, v{t+1}")
        c(f"v_xor_b32 v{t+2}, v{t+2}, v{t+3}")
        c(f"v_lshlrev_b32 v{t+2}, 4, v{t+2}")
        c(f"v_add3_u32 v{self.vWD}, v{t+2}, v{t}, s{sT}")
        c(f"v_xor_b32 v{t+3}, 128, v{self.vWD}")
        for j in range(1, 4):
            c(f"v_add_u32 v{self.vWD+j}, {j*(4*3840-1024)}, v{self.vWD if j < 2 else t+3}")

    def p1_dma(self, s):
        slot = s % self.NS
        pre = []
        if s > 0:
            pre += [I(f"s_add_u32 s{self.sKC}, s{self.sKC}, 1"),
                    I(f"s_cmp_eq_u32 s{self.sKC}, 10"),
                    I(f"s_cselect_b32 s{self.sKC}, 0, s{self.sKC}")]
        items = []
        for j in range(4):
            d = I(f"buffer_load_dwordx4 v{self.vXD+j}, s[{sX}:{sX+3}], s{self.sKX} offen offset:{j*1024} lds")
            items.append(([I(f"s_add_u32 m0, s{self.sW4}, {slot*16384}"), I(f"s_lshl_b32 s{self.sKX}, s{self.sKC}, 7")] if j == 0 else []) + [d])
        for j in range(4):
            d = I(f"buffer_load_dwordx4 v{self.vWD+j}, s[{sWQ}:{sWQ+3}], s{self.sKW} offen offset:{j*1024} lds")
            items.append(([I(f"s_add_u32 m0, s{self.sW4}, {self.P1_WB + slot*16384}"), I(f"s_mul_i32 s{self.sKW}, s{self.sKC}, {64*3840}")] if j == 0 else []) + [d])
        return pre, items, d

    def p1_setup2(self):
        c = self.c
        t = self.vTMP
        c(f"s_lshr_b32 s{sT}, s{sW}, 1")
        c(f"s_and_b32 s{sT+1}, s{sW}, 1")
        c(f"v_and_b32 v{t}, 15, v1")
        c(f"s_lshl_b32 s{sT+2}, s{sT}, 13")
        c(f"v_lshl_add_u32 v{t}, v{t}, 7, s{sT+2}")
        c(f"v_lshrrev_b32 v{t+5}, 4, v1")
        c(f"v_bfe_u32 v{t+2}, v1, 1, 3")
        c(f"v_xor_b32 v{t+3}, v{t+2}, v{t+5}")
        c(f"v_lshl_add_u32 v{self.vXA}, v{t+3}, 4, v{t}")
        c(f"v_xor_b32 v{self.vXA+1}, 64, v{self.vXA}")
        c(f"v_bfe_u32 v{t+3}, v1, 2, 2")
        c(f"v_lshl_add_u32 v{t}, v{t+5}, 3, v{t+3}")
        c(f"v_lshlrev_b32 v{t}, 8, v{t}")
        c(f"v_bfe_u32 v{t+5}, v1, 2, 3")
        c(f"v_lshl_add_u32 v{t}, v{t+5}, 5, v{t}")
        c(f"v_and_b32 v{t+5}, 3, v1")
        c(f"v_lshlrev_b32 v{t+5}, 3, v{t+5}")
        c(f"v_add_u32 v{t+5}, {self.P1_WB}, v{t+5}")
        c(f"v_add_u32 v{t}, v{t}, v{t+5}")
        c(f"s_lshl_b32 s{sT+2}, s{sT+1}, 7")
        c(f"v_xor_b32 v{self.vWA}, s{sT+2}, v{t}")
        for n in range(1, 4):
            c(f"v_xor_b32 v{self.vWA+n}, {n*32}, v{self.vWA}")

    def p1_setup3(self, k0):
        c = self.c
        t = self.vTMP
        c(f"v_and_b32 v{t+4}, 31, v1")
        c(f"v_lshrrev_b32 v{t+1}, 5, v1")
        c(f"s_and_b32 s{sT+3}, s{self.sSS}, 3")
        c(f"s_lshl_b32 s{sT+3}, s{sT+3}, 14")
        c(f"s_add_u32 s{sT+2}, s{sT+3}, s{self.sW4}")
        c(f"v_add_u32 v{t+5}, s{sT+3}, v{t+5}")
        c(f"v_lshl_add_u32 v{t}, v{t+4}, 7, s{sT+2}")
        c(f"v_xor_b32 v{t+2}, v{t+2}, v{t+1}")
        c(f"v_lshl_add_u32 v{self.vXS}, v{t+2}, 4, v{t}")
        for p in range(1, 4):
            c(f"v_xor_b32 v{self.vXS+p}, {p*32}, v{self.vXS}")
        c(f"v_lshl_add_u32 v{t}, v{t+1}, 3, v{t+3}")
        c(f"v_lshl_add_u32 v{t}, v{t}, 8, v{t+5}")
        c(f"v_lshl_add_u32 v{t+3}, v{t+1}, 2, v{t+3}")
        c(f"v_bfe_u32 v{t+2}, v1, 4, 1")
        c(f"v_xor_b32 v{t+3}, v{t+3}, v{t+2}")
        c(f"v_lshl_add_u32 v{t}, v{t+3}, 5, v{t}")
        c(f"s_lshl_b32 s{sT+2}, s{sW}, 6")
        c(f"v_xor_b32 v{self.vWS_}, s{sT+2}, v{t}")
        c(f"s_mov_b32 s{self.sONE}, 0x3f803f80")
        pa = self.vPA
        c(f"v_mov_b32 v{t+3}, {OOB}")
        for k, (role, other, off, sh) in enumerate(((sRB1, 75, RST_OFF, 4), (sCT, 74, CST_OFF, 3))):
            c(f"s_lshl2_add_u32 s{sT+2}, s{role}, s{sW}")
            c(f"s_mul_i32 s{sT+2}, s{sT+2}, {320 << sh}")
            c(f"s_add_u32 s{sT+2}, s{sT+2}, {off}")
            c(f"v_lshl_add_u32 v{t}, v{t+4}, {sh}, s{sT+2}")
            c(f"v_mul_u32_u24 v{t+2}, {160 << sh}, v{t+1}")
            c(f"v_add_u32 v{pa+2+k}, v{t}, v{t+2}")
            c(f"s_lshl_b32 s{sT+2}, s{k0}, {5 + sh}")
            c(f"v_add_u32 v{t}, s{sT+2}, v{t}")
            if k == 0:
                c(f"s_cmp_ge_u32 s{sCT}, 10")
                c(f"s_cselect_b32 s{sT+2}, 48, 0")
                c(f"v_lshrrev_b32 v{t+2}, 1, v1")
                c(f"v_xor_b32 v{t+2}, v{t+2}, v1")
                c(f"v_and_b32 v{t+2}, 8, v{t+2}")
                c(f"v_mul_u32_u24 v{t+2}, s{sT+2}, v{t+2}")
                c(f"v_xor_b32 v{t}, v{t}, v{t+2}")
            c(f"s_cmp_lt_u32 s{other}, 5")
            c(f"s_cselect_b64 s[{sT+2}:{sT+3}], s[{sHI}:{sHI+1}], -1")
            c(f"v_cndmask_b32 v{pa+k}, v{t}, v{t+3}, s[{sT+2}:{sT+3}]")
        c(f"s_lshl_b32 s{sT+2}, s{sW}, 7")
        c(f"s_add_u32 s{sT+2}, s{sT+2}, {self.P1_EX}")
        c(f"v_lshl_add_u32 v{pa+6}, v{t+4}, 2, s{sT+2}")

    def fx_publish(self):
        return [I(f"s_lshl3_add_u32 s{sT}, s{sU}, s{sNB}"),
                I(f"s_lshl_b32 s{sT}, s{sT}, 7"),
                I(f"s_add_u32 s{sT}, s{sT}, {FX_OFF}"),
                I(f"s_add_u32 s{sT+1}, s{sTAG}, s{sXCC}"),
                I(f"v_mov_b32 v61, s{sT+1}"),
                I(f"v_lshrrev_b32 v62, 5, v0"),
                I(f"v_lshlrev_b32 v62, 27, v62"),
                I(f"v_lshl_add_u32 v62, v0, 2, v62"),
                I(f"buffer_store_dword v61, v62, {WSR}, s{sT} offen sc1")]

    def p1_reads(self, s, p):
        slot = s % self.NS
        fr = self.vFR + 32 * p
        X = lambda a: [I(f"ds_read_b128 {vr(fr+4*a, 4)}, v{self.vXA+p} offset:{slot*16384 + a*2048}")]
        Wt = lambda n: [I(f"ds_read_b64_tr_b16 {vr(fr+16+4*n+2*t, 2)}, v{self.vWA+n} offset:{slot*16384 + p*8192 + t*1024}") for t in range(2)]
        return X(0) + Wt(0) + Wt(1) + X(1) + Wt(2) + X(2) + Wt(3) + X(3)

    def p1_stat_reads(self, s):
        sf = self.vSF
        lab = self.label("sc")
        r = []
        for q in range(4):
            r.append(I(f"ds_read_b128 {vr(sf+4*q, 4)}, v{self.vXS+q}"))
            r += [I(f"ds_read_b64_tr_b16 {vr(sf+16+4*q+2*j, 2)}, v{self.vWS_} offset:{q*4096 + j*1024}") for j in range(2)]
        for x in r:
            x.wr = []; x.cond = True
        return [I(f"s_cmp_lg_u32 s{self.sSS}, {s}"), I(f"s_cbranch_scc1 {lab} ; noflush")] + r + [I(f"{lab}: ; noflush")]

    def p1_stat_sums(self):
        k = self.c
        sf, u, pa = self.vSF, self.vRS, self.vPA
        for j in range(16):
            k(f"v_dot2_f32_bf16 v{u}, v{sf+j}, s{self.sONE}, {0 if j == 0 else f'v{u}'}")
            k(f"v_dot2_f32_bf16 v{u+2}, v{sf+j}, v{sf+j}, {0 if j == 0 else f'v{u+2}'}")
            k(f"v_dot2_f32_bf16 v{u+4}, v{sf+16+j}, s{self.sONE}, {0 if j == 0 else f'v{u+4}'}")

    def p1_stat_publish(self):
        k = self.c
        sf, u, pa = self.vSF, self.vRS, self.vPA
        for j in (0, 2, 4):
            k(f"v_mov_b32 v{u+j+1}, v{u+j}")
        for j in (0, 2, 4):
            k(f"v_permlane32_swap_b32 v{u+j}, v{u+j+1}")
        for j in (0, 2, 4):
            k(f"v_add_f32 v{u+j}, v{u+j}, v{u+j+1}")
        for j in (0, 2, 4):
            k(f"v_mov_b32 v{u+j+1}, s{sTAG}")
        k(f"buffer_store_dwordx4 {vr(u,4)}, v{pa}, {WSR}, 0 offen sc1")
        k(f"buffer_store_dwordx2 {vr(u+4,2)}, v{pa+1}, {WSR}, 0 offen sc1")

    def p1_stat_loads(self):
        q, pa = self.vSF, self.vPA
        return ([I(f"buffer_load_dwordx4 {vr(q+4*i,4)}, v{pa+2}, {WSR}, 0 offen offset:{i*512} sc1") for i in range(5)] +
                [I(f"buffer_load_dwordx2 {vr(q+20+2*i,2)}, v{pa+3}, {WSR}, 0 offen offset:{i*256} sc1") for i in range(5)])

    def p1_stat_tags(self):
        c = self.c
        q, x = self.vSF, self.vPA + 7
        c(f"v_xor_b32 v{x}, s{sTAG}, v{q+29}")
        for i in range(14):
            c(f"v_bitop3_b32 v{x}, v{q+1+2*i}, s{sTAG}, v{x} bitop3:0xbe")
        c(f"v_cmp_ne_u32 vcc, 0, v{x}")

    def p1_stat_check(self):
        c = self.c
        Ls, Lb, L = self.label("ss"), self.label("sb"), self.label("sl")
        c("s_nop 3")
        c(f"s_cbranch_vccnz {Ls} ; noflush")
        c(f"{Lb}: ; noflush")
        old, self.c = self.c, self.ool
        k = self.c
        k(f"{Ls}:")
        k("s_nop 15")
        k(f"s_mov_b32 s{sT+12}, {SPIN_MAX}")
        k(f"{L}:")
        k.add(self.p1_stat_loads())
        k("s_waitcnt vmcnt(0)")
        k(f"s_sub_u32 s{sT+12}, s{sT+12}, 1")
        k(f"s_cbranch_scc1 {Lb}")
        self.p1_stat_tags()
        k(f"s_cbranch_vccz {Lb}")
        k("s_sleep 4")
        k(f"s_branch {L}")
        self.c = old

    def p1_stats_finish(self, isv):
        c = self.c
        q, b, pa = self.vSF, 224, self.vPA
        c(f"v_add_f32 v{b}, v{q}, v{q+4}")
        c(f"v_add_f32 v{b+1}, v{q+2}, v{q+6}")
        c(f"v_add_f32 v{b+10}, v{q+20}, v{q+22}")
        for i in range(2, 5):
            c(f"v_add_f32 v{b}, v{b}, v{q+4*i}")
            c(f"v_add_f32 v{b+1}, v{b+1}, v{q+4*i+2}")
            c(f"v_add_f32 v{b+10}, v{b+10}, v{q+20+2*i}")
        c(f"v_mov_b32 v{b+2}, v{b}")
        c(f"v_mov_b32 v{b+3}, v{b+1}")
        c(f"v_mov_b32 v{b+11}, v{b+10}")
        c(f"v_permlane32_swap_b32 v{b}, v{b+2}")
        c(f"v_permlane32_swap_b32 v{b+1}, v{b+3}")
        c(f"v_permlane32_swap_b32 v{b+10}, v{b+11}")
        c(f"v_add_f32 v{b}, v{b}, v{b+2}")
        c(f"v_add_f32 v{b+1}, v{b+1}, v{b+3}")
        c(f"v_mul_f32 v{b}, {hex(f2u(-1.0/640))}, v{b}")
        c(f"v_mul_f32 v{b+1}, {hex(f2u(1.0/640))}, v{b+1}")
        c(f"v_add_f32 v{b+10}, v{b+10}, v{b+11}")
        c(f"v_fma_f32 v{b+1}, -v{b}, v{b}, v{b+1}")
        c(f"ds_write_b32 v{pa+6}, v{b}")
        c(f"v_max_f32 v{b+1}, 0, v{b+1}")
        c(f"v_add_f32 v{b+1}, {hex(f2u(1e-5))}, v{b+1}")
        c(f"v_rsq_f32 v{b+1}, v{b+1}")
        c(f"ds_write_b32 v{pa+6}, v{b+10} offset:1024")
        if not isv:
            c(f"v_mul_f32 v{b+1}, s{sT+7}, v{b+1}")
        c(f"ds_write_b32 v{pa+6}, v{b+1} offset:512")

    def p1_ep_prep(self, isv):
        c = self.c
        t = self.vTMP
        EX = self.P1_EX
        c(f"s_lshr_b32 s{sT}, s{sW}, 1")
        c(f"s_and_b32 s{sT+1}, s{sW}, 1")
        c(f"s_lshl1_add_u32 s{sT+2}, s{sRB1}, s{sT}")
        c(f"s_lshl1_add_u32 s{sT+3}, s{sCT}, s{sT+1}")
        c(f"s_lshl_b32 s{sT}, s{sT}, 8")
        c(f"s_add_u32 s{sT}, s{sT}, {EX}")
        c(f"s_lshl_b32 s{sT+1}, s{sT+1}, 8")
        c(f"s_add_u32 s{sT+1}, s{sT+1}, {EX+1024}")
        c(f"v_lshrrev_b32 v{t+4}, 4, v1")
        c(f"v_and_b32 v{t+5}, 15, v1")
        c(f"v_lshl_add_u32 v{t}, v{t+5}, 2, s{sT+(1 if isv else 0)}")
        c(f"v_lshl_add_u32 v{t+1}, v{t+4}, 4, s{sT+(0 if isv else 1)}")
        if isv:
            c(f"v_and_b32 v{t+2}, 32, v1")
            c(f"v_add_u32 v{t+1}, v{t+1}, v{t+2}")
        c(f"v_mul_u32_u24 v{t+4}, {(10240 if isv else 512) - 256}, v{t+4}")
        c(f"v_add_u32 v{t+4}, v{vL16}, v{t+4}")
        c(f"s_lshl4_add_u32 s{sT+13}, s{sRB1}, s{sCT}")
        c(f"s_lshl_b32 s{sT+13}, s{sT+13}, 7")
        c(f"s_add_u32 s{sT+13}, s{sT+13}, {F1_OFF}")
        if not isv:
            qs = (20 ** -0.5) * 1.4426950408889634
            c(f"s_mul_i32 s{sT+4}, s{sT+2}, 163840")
            c(f"s_lshl_b32 s{sT+5}, s{sT+3}, 13")
            c(f"s_add_u32 s{sT+4}, s{sT+4}, s{sT+5}")
            c(f"s_add_u32 s{sT+5}, s{sT+4}, 4096")
            c(f"s_cmp_lt_u32 s{sCT}, 5")
            c(f"s_cselect_b32 s{sT+7}, {hex(f2u(qs))}, 1.0")
        else:
            c(f"s_mul_i32 s{sT+4}, s{sT+2}, 81920")
            c(f"s_lshl_b32 s{sT+5}, s{sT+3}, 10")
            c(f"s_add_u32 s{sT+4}, s{sT+4}, s{sT+5}")
            c(f"s_add_u32 s{sT+4}, s{sT+4}, {V_OFF - 10*2048}")
            c(f"s_add_u32 s{sT+5}, s{sT+4}, 40960")

    def p1_ep_reads(self, isv):
        t, e, u = self.vTMP, self.vEP, self.vRS
        r = []
        if not isv:
            r += [I(f"ds_read2_b32 {vr(u+2*a,2)}, v{t} offset0:{16*a} offset1:{128+16*a}") for a in range(4)]
            r += [I(f"ds_read_b128 {vr(e+4*n, 4)}, v{t+1} offset:{64*n}") for n in range(4)]
        else:
            r += [I(f"ds_read2_b32 {vr(u+2*k,2)}, v{t} offset0:{32*k} offset1:{32*k+16}") for k in range(2)]
            for a in range(4):
                off = (32 * (a >> 1) + 8 * (a & 1)) * 4
                r.append(I(f"ds_read_b128 {vr(e+4*a, 4)}, v{t+1} offset:{off}"))
                r.append(I(f"ds_read_b128 {vr(e+16+4*a, 4)}, v{t+1} offset:{512+off}"))
        return r

    P1_ORDER = [(0, 0), (0, 1), (1, 0), (1, 1), (0, 2), (1, 2), (2, 0), (2, 1), (2, 2), (0, 3), (1, 3), (2, 3), (3, 0), (3, 1), (3, 2), (3, 3)]

    P1_SNAKE = [(0, 0), (0, 1), (1, 1), (1, 0), (1, 2), (0, 2), (2, 2), (2, 1), (2, 0), (2, 3), (1, 3), (0, 3), (3, 3), (3, 2), (3, 1), (3, 0)]

    def p1_loop(self, isv, h0, h1):
        c, o = self.c, self.o
        hd = {0: h0, 1: h1}
        pa = self.vPA
        c.wait(h0)
        c("s_barrier")
        self.stamp("b0", "main p1")
        R = self.p1_reads(0, 0)
        c.add(R)
        grp = []
        for q in range(2, 10):
            pre, dma, hd[q] = self.p1_dma(q)
            dma[0] = pre + dma[0]
            grp += [dma[:4], dma[4:]]
        c.add(grp.pop(0))
        ramp = {0: (), 1: (0,), 2: (0, 1), 3: (0, 2), 4: (1, 2)}[o.get('ramp', 4)]
        extra = {k: [] for k in range(20)}
        mem = {k: [] for k in range(20)}
        tail = {k: [] for k in range(20)}
        k0, k1, k2 = o.get('rpa', 4), o.get('rpb', 9), o.get('rpc', 15)
        cs = self.sub(self.tag_ready) + self.late_setup
        per = -(-len(cs) // k0)
        for k in range(k0):
            extra[k] = [copy_ins(x) for x in cs[k * per:(k + 1) * per]]
        cs = self.fx_publish() + self.later_setup + glue(self.sub(self.p1_ep_prep, isv))
        per = -(-len(cs) // (16 - k0))
        for k in range(16 - k0):
            extra[k0 + k] = [copy_ins(x) for x in cs[k * per:(k + 1) * per]]
        assert k1 % 2 and k1 + 5 <= k2 <= 17 and k0 + 3 <= k1
        d, rd, stv, fs = self.rp_unit_items([24, 224, 228])
        d1, rd1, pad, stv1 = self.rp_unit1_items(232)
        d += d1; stv += stv1
        for j in range(3):
            tail[k0 + j] = d[2 * j:2 * j + 2]
        ns = min(o.get('rpn', 5), k2 - k1 - 2)
        for j in range(5):
            mem[k1 + 2 + j * ns // 5].append(stv[j])
        bwait = {k1: d[-1][-1]}
        self.rp_flag = fs
        extra[k1 + 1] = interleave(extra[k1 + 1], rd + rd1)
        extra[k1 + 2] = pad + extra[k1 + 2]
        extra[11].append(I(f"buffer_load_dword v{self.vWOD}, v{self.vWOF}, {WSR}, s{sFLB} offen sc1"))
        stl = self.p1_stat_loads()
        ks = o.get('stk', 13)
        mem[ks] += stl[:5]; mem[ks + 1] += stl[5:]
        wo = self.wo_loads()[:o.get('wot', 18)]
        if wo:
            extra[ks + 1].append(self.sub(self.flag_check, self.vWOD, self.vWOF))
        nw = 18 - ks
        for k in range(nw):
            mem[ks + 2 + k] += wo[k * len(wo) // nw:(k + 1) * len(wo) // nw]
        fin = self.sub(self.p1_stats_finish, isv)
        extra[18] = self.sub(self.p1_stat_tags) + [self.sub(self.p1_stat_check)] + fin[:14]
        for s in range(10):
            for p in range(2):
                k = 2 * s + p
                fr = self.vFR + 32 * p
                M = []
                for a, n in (self.P1_SNAKE if o.get('snake', 0) else self.P1_ORDER):
                    d = vr(self.vACC + 16 * a + 4 * n, 4)
                    xa, wb = vr(fr + 4 * a, 4), vr(fr + 16 + 4 * n, 4)
                    A, B = (xa, wb) if isv else (wb, xa)
                    M.append(I(f"v_mfma_f32_16x16x32_bf16 {d}, {A}, {B}, {0 if k == 0 else d}"))
                G = [[] for _ in range(16)]
                F = [[] for _ in range(16)]
                if k:
                    if p == 0:
                        M[0].waits = [R[5]]; M[4].waits = [R[11]]
                    else:
                        M[0].waits = [R[11]]
                g0 = 0
                if p == 0:
                    R = self.p1_reads(s, 1)
                elif s < 9:
                    R = self.p1_reads(s + 1, 0)
                    G[g0] = [W(hd[s + 1], *([bwait[k]] if k in bwait else []))] + [I("s_barrier")]
                else:
                    R = []
                for j, r in enumerate(R):
                    G[g0 + j].append(r)
                dma = grp.pop(0) if grp else []
                if k in ramp:
                    dma = dma + grp.pop(0)
                D = interleave(dma, mem[k]) + tail[k] if dma else mem[k] + tail[k]
                for j, d in enumerate(D):
                    g = 16 - len(D) + j
                    if o.get('dspread', 1):
                        g = g0 + 2 + j * (14 - g0) // len(D) if len(D) != 4 or g0 else 2 + 4 * j
                    d = flat(d)
                    F[g] += d[:-1]; G[g].insert(0, d[-1])
                X = extra[k]
                if k == 19:
                    for j, x in enumerate(fin[14:]):
                        G[j // 3].append(x)
                    G[7] += [I("s_waitcnt lgkmcnt(0)"), I("s_barrier")]
                    for j, r in enumerate(self.p1_ep_reads(isv)):
                        G[8 + j * 7 // 10].append(r)
                for j, x in enumerate(X):
                    G[1 + j * 14 // len(X)].append(x)
                if p == 0 and s < 5:
                    G[0].append(self.p1_stat_reads(s))
                if k == 8:
                    G[8].append([W(R[2])] + self.sub(self.p1_stat_sums))
                    for j, x in enumerate(self.sub(self.p1_stat_publish)):
                        G[11 + j // 3].append(x)
                for g in range(16):
                    c.add(F[g]); c.add(M[g]); c.add(G[g])
                if o.get('x_pad') and o.get('x_pads', 0) <= s < o.get('x_pade', 10):
                    for _ in range(o['x_pad']):
                        c("s_nop 7")
                if p == 1 or s >= 7:
                    self.stamp(f"e{s}{p}", "p1")

    def p1_epilogue(self, isv):
        c = self.c
        t, e, u = self.vTMP, self.vEP, self.vRS
        ob = self.vFR
        n0 = self.o.get('wot', 18)
        assert n0 > 0
        wo = self.wo_loads()[n0:n0 + self.o.get('woe', 0)]
        for k in range(8):
            out = ob + 4 * k
            if not isv:
                n, lo = k >> 1, k & 1
                rr = [(self.vACC + 16 * a + 4 * n + 2 * q, e + 4 * n + 2 * q, u + 2 * a) for a in (lo, lo + 2) for q in range(2)]
                for r, cs, sv in rr:
                    c(f"v_pk_fma_f32 {vr(r,2)}, {vr(cs,2)}, {vr(sv,2)}, {vr(r,2)} op_sel_hi:[1,0,1]")
                for r, cs, sv in rr:
                    c(f"v_pk_mul_f32 {vr(r,2)}, {vr(r,2)}, {vr(sv,2)} op_sel:[0,1] op_sel_hi:[1,1]")
                so, off = sT + 4 + (n >> 1), (n & 1) * 2048 + lo * 256
            else:
                T, n = k >> 2, k & 3
                sel = "op_sel_hi:[1,0,1]" if n % 2 == 0 else "op_sel:[0,1,0] op_sel_hi:[1,1,1]"
                rr = [(self.vACC + 16 * a + 4 * n + 2 * q, e + 4 * a + 2 * q, 0) for a in (2 * T, 2 * T + 1) for q in range(2)]
                for r, nm, _ in rr:
                    c(f"v_pk_fma_f32 {vr(r,2)}, {vr(nm,2)}, {vr(u+(n&2),2)}, {vr(r,2)} {sel}")
                for r, nm, _ in rr:
                    c(f"v_pk_mul_f32 {vr(r,2)}, {vr(r,2)}, {vr(nm+16,2)}")
                so, off = sT + 4 + T, n * 256
            for q, (r, _, _) in enumerate(rr):
                c(f"v_cvt_pk_bf16_f32 v{out+q}, v{r}, v{r+1}")
            h = c(f"buffer_store_dwordx4 {vr(out,4)}, v{t+4}, {WSR}, s{so} offen offset:{off} sc1")
            if k < 7:
                c.add(wo[k * len(wo) // 7:(k + 1) * len(wo) // 7])
        return h

    def phase1(self):
        c, o = self.c, self.o
        self.p1_setup()
        c(f"s_cmp_eq_u32 s{sCT}, 15")
        c("s_waitcnt lgkmcnt(0)")
        c("s_cbranch_scc1 Lp1_idle")
        c(".save p0")
        self.stamp("start")
        pre, d0, h0 = self.p1_dma(0)
        c.add(d0)
        c(f"s_lshr_b32 s{sT}, s{sRB1}, 3")
        c(f"s_and_b32 s{sT+1}, s{sRB1}, 3")
        c(f"s_lshl2_add_u32 s74, s{sT}, s{sT+1}")
        c(f"s_and_b32 s75, s{sCT}, 7")
        if o.get('rot', 'A') != 'A':
            c(f"s_lshr_b32 s74, s{sRB1}, 1")
            c(f"s_lshr_b32 s75, s{sCT}, 1")
        c(f"s_add_u32 s{sT}, s74, s75")
        c(f"s_mul_i32 s{sT+1}, s{sT}, 52")
        c(f"s_lshr_b32 s{sT+1}, s{sT+1}, 8")
        c(f"s_mul_i32 s{sT+1}, s{sT+1}, 5")
        c(f"s_sub_u32 s{self.sSS}, s{sT}, s{sT+1}")
        c(f"s_add_u32 s{sT+14}, s{self.sSS}, s{self.sKC}")
        pre, d1, h1 = self.p1_dma(1)
        c.add(pre); c.add(d1[:4])
        self.base_setup()
        self.p1_setup2()
        c.add(d1[4:])
        self.p1_setup3(sT + 14)
        late = glue(self.sub(self.common_setup) + self.sub(self.rp_setup_unit) + self.sub(self.rp_setup_unit1))
        ne = o.get('early', 30)
        c.add(late[:ne]); self.late_setup = late[ne:]
        vc = glue(self.sub(self.v_const))
        nv = o.get('vcn', 0)
        self.later_setup = vc[:nv]
        c(f"s_cmp_ge_u32 s{sCT}, 10")
        c("s_cbranch_scc1 Lp1_v")
        c(".save p1")
        for isv in (False, True):
            if isv:
                c("Lp1_v:")
                c(".restore p1")
            self.p1_loop(isv, h0, h1)
            self.stamp("p1loop")
            h = self.p1_epilogue(isv)
            if not isv:
                c("s_branch Lp1_done")
        c("Lp1_done:")
        self.stamp("p1epi")
        c.add(vc[nv:])
        n0 = min(o.get('wot', 18) + o.get('woe', 0), 25)
        self.woq = self.wo_loads()[n0:]
        self.w1q, self.w2q = list(range(35)), list(range(35))
        KV = f"s[{sKV}:{sKV+3}]"
        c("Lp1_join:")
        nb_ = o.get('wob', 0)
        if not n0:
            self.flag_check(self.vWOD, self.vWOF)
        c.add(self.woq[:nb_]); self.woq = self.woq[nb_:]
        init = glue(self.sub(self.attn_init) + self.sub(self.attn_prep))
        na = o.get('inita', 70)
        c.add(init[:na])
        self.stamp("ainit")
        c.wait(h)
        self.stamp("p1drain")
        c("s_barrier")
        lab = self.label("f1")
        c(f"s_cmp_lg_u32 s{sW}, 2")
        c(f"s_cbranch_scc1 {lab}")
        c.cond(True)
        self.flag_store(sT + 13)
        c.cond(False)
        c(f"{lab}:")
        lab = self.label("f1")
        c(f"s_cmp_lg_u32 s{sW}, 0")
        c(f"s_cbranch_scc1 {lab}")
        for x in self.rp_flag:
            x.cond = True
        c.add(self.rp_flag)
        c(f"{lab}:")
        nc_ = o.get('woc', 0)
        ld = self.woq[:nc_]; self.woq = self.woq[nc_:]
        c.add(interleave(init[na:], ld))
        self.stamp("join")
        old, self.c = self.c, self.ool
        self.idle_path(n0)
        self.c = old

    def idle_path(self, n0):
        c = self.c
        P = self.RPP
        gw = sT + 8
        KV = f"s[{sKV}:{sKV+3}]"
        c("Lp1_idle:")
        c(".restore p0")
        c(f"s_lshl2_add_u32 s{gw}, s{sRB1}, s{sW}")
        c(f"s_mov_b32 s{sRP}, s{sWO}")
        c(f"s_mov_b32 s{sRP+1}, s{sWO+1}")
        c(f"s_mov_b32 s{sRP+2}, {640*1280}")
        c(f"s_mov_b32 s{sRP+3}, 0x20000")
        t = self.vTMP
        for j in range(5):
            c(f"v_add_u32 v{t}, {64*j}, v1")
            c(f"v_mul_u32_u24 v{t+1}, 6554, v{t}")
            c(f"v_lshrrev_b32 v{t+2}, 16, v{t+1}")
            c(f"v_mul_u32_u24 v{t+2}, 70, v{t+2}")
            c(f"v_add_u32 v{t}, v{t}, v{t+2}")
            c(f"v_lshrrev_b32 v{t+2}, 20, v{t+1}")
            c(f"v_mul_u32_u24 v{t+2}, 320, v{t+2}")
            c(f"v_add_lshl_u32 v{self.vRP+j}, v{t}, v{t+2}, 4")
            c(f"v_lshrrev_b32 v{t+2}, 18, v{t+1}")
            c(f"v_mul_u32_u24 v{t+2}, 1280, v{t+2}")
            c(f"v_add_lshl_u32 v{44+j}, v{t}, v{t+2}, 4")
        c(f"s_and_b32 s{sT}, s{gw}, 7")
        c(f"s_mul_i32 s{sT}, s{sT}, 160")
        c(f"s_lshr_b32 s{sT+1}, s{gw}, 3")
        hd = {}
        for r in range(3):
            c(f"s_mul_i32 s{sT+9}, s{sT+1}, {(40 if r < 2 else 160)*1280}")
            c(f"s_add_u32 s{sT+9}, s{sT+9}, s{sT}")
            if r:
                c(f"s_add_u32 s{sT+9}, s{sT+9}, {(320 if r == 1 else 16)*1280}")
            if r == 2:
                c(f"s_cmp_lt_u32 s{gw}, 32")
                c(f"s_cselect_b32 s{sRP+2}, s{sRP+2}, 0")
            d = self.rp_dma(5, r * 5120, 40960, so=f"s{sT+9}", fl='', vb=self.vRP if r < 2 else 44)
            c.add(d); hd['o', r] = d[-1][-1]
        self.base_setup()
        self.common_setup()
        c(f"s_mov_b32 s{sKV}, s{sWS}")
        c(f"s_mov_b32 s{sKV+1}, s{sWS+1}")
        c(f"s_mov_b32 s{sKV+3}, 0x20000")
        c(f"s_and_b32 s82, s{gw}, 15")
        c(f"s_lshr_b32 s83, s{gw}, 4")
        c(f"s_mul_i32 s83, s83, 5")
        self.rp_w1_params(82, 83, 80)
        c(f"s_mov_b32 s{sRP+2}, {640*3456}")
        self.rp_w1_offsets(80)

        def dma1(r):
            c(f"s_mov_b32 s{sT+9}, {r*32*3456}")
            d = self.rp_dma(7, 15360 + (r % 3) * 7168, 40960, so=f"s{sT+9}", fl='')
            c.add(d); hd['a', r] = d[-1][-1]
        c(f"v_lshlrev_b32 v8, 7, v1")
        self.tag_ready()
        c.add(self.fx_publish())
        c(f"v_mov_b32 v{vFLG}, s{sTAG}")
        self.rp_addr(16, 160, 0, 40960, False)
        self.rp_addr(22, 224, 15360, 40960, sW)

        def params(kind, r):
            if kind == 'o':
                self.rp_params_wo(gw, r)
                c(f"s_cmp_lg_u32 s{sRPT}, 0")
                c(f"s_cselect_b32 s{sKV+2}, {WS_SIZE}, 0")
            else:
                c(f"s_mov_b32 s{sKV+2}, {WS_SIZE}")
                c(f"s_lshr_b32 s83, s{gw}, 4")
                c(f"s_mul_i32 s83, s83, 5")
                c(f"s_add_u32 s83, s83, {r}")
                self.rp_w1_params(82, 83)
        hs = {}

        def proc(kind, r, n):
            params(kind, r)
            c.wait(hd[kind, r])
            it = self.rp_items(5, 16, r * 5120, 64 + 20 * r, KV) if kind == 'o' else self.rp_items(7, 22, (r % 3) * 7168, 124 + 28 * (r % 3), KV)
            c.add(it); hs[kind, r] = flat(it)[-1]

        def flag(kind, r):
            params(kind, r)
            c.wait(hs[kind, r])
            self.flag_store(sRPF, KV)
        dbg = self.o.get('idledbg')
        if dbg: self.stamp("start")
        dma1(0)
        if dbg: c.wait(hd['o', 0]); self.stamp("b0")
        for r in range(3):
            proc('o', r, r)
        dma1(1)
        for r in range(3):
            flag('o', r)
        if dbg: self.stamp("p1epi")
        ni = 5 - self.o.get('nr', 3)
        assert 2 <= ni <= 3
        if ni > 2:
            dma1(2)
        for r in range(ni):
            proc('a', r, r)
        self.v_const()
        for r in range(ni):
            flag('a', r)
        if self.o.get('fltouch', 1):
            c(f"s_lshl_b32 s{sT}, s{sRB1}, 11")
            c(f"s_add_u32 s{sT}, s{sT}, {F1_OFF}")
            c(f"v_and_b32 v9, 0x780, v8")
            c(f"buffer_load_dword v240, v9, {WSR}, s{sT} offen")
            c.ins[-1].wr = []
        self.stamp("p1loop")
        lab = self.label("ep")
        c(f"s_cmp_lg_u32 s{gw}, {99 if self.o.get('x_noepoch') else 63}")
        c(f"s_cbranch_scc1 {lab}")
        c(f"v_lshlrev_b32 v8, 7, v1")
        for j in range(4):
            c(f"v_add_u32 v9, {FX_OFF - FL_OFF + j*8192}, v8")
            self.poll(9, span=True, sleep=16)
        c(f"s_mov_b32 s{sT}, {EP_OFF}")
        self.flag_store(sT)
        c(f"{lab}:")
        c(f"s_mov_b32 s{sRP+2}, 0")
        c(f"v_mov_b32 v{self.vRA+4}, 0")
        c(f"s_lshl_b32 s{sT+13}, s{sRB1}, 11")
        c(f"s_add_u32 s{sT+13}, s{sT+13}, {F1_OFF + 15*128}")
        self.poll(self.vWOF, self.vWOD, sleep=8)
        c("s_barrier")
        c.add(self.wo_loads()[:n0])
        c("s_branch Lp1_join")

    RPP = dict(pitch=sT, col=sT + 1, nch=sT + 2, mch=sT + 3, v0=sT + 4, dm=sT + 5, dd=sT + 6, aa=sT + 7, lim=sT + 12, r0=sT + 13, u=sT + 14)

    def rp_params_wo(self, gw, r):
        c = self.c
        u = self.RPP['u']
        c(f"s_lshr_b32 s{u}, s{gw}, 3")
        if r < 2:
            c(f"s_lshr_b32 s{u+1}, s{u}, 2")
            c(f"s_add_u32 s{u}, s{u}, s{u+1}")
            c(f"s_add_u32 s{u}, s{u}, {10*r}")
            c(f"s_mov_b32 s{sRPT}, 1")
        else:
            c(f"s_mul_i32 s{u}, s{u}, 5")
            c(f"s_add_u32 s{u}, s{u}, 4")
            c(f"s_cmp_lt_u32 s{gw}, 32")
            c(f"s_cselect_b32 s{sRPT}, 1, 0")
        c(f"s_and_b32 s{u+1}, s{gw}, 7")
        c(f"s_mul_i32 s{sRPD}, s{u+1}, 20")
        c(f"s_add_u32 s{sRPD}, s{sRPD}, s{u}")
        c(f"s_mul_i32 s{sRPD}, s{sRPD}, 5120")
        c(f"s_add_u32 s{sRPD}, s{sRPD}, {WO_OFF}")
        c(f"s_lshl_b32 s{sRPF}, s{u+1}, 5")
        c(f"s_add_u32 s{sRPF}, s{sRPF}, s{u}")
        c(f"s_lshl_b32 s{sRPF}, s{sRPF}, 7")
        c(f"s_add_u32 s{sRPF}, s{sRPF}, {FWO_OFF}")

    RPL = 8 * 16384
    vRA = 240
    sRD = 82

    def rp_setup_unit(self):
        c = self.c
        t, ra = self.vTMP, self.vRA
        u, sl, r0, v0, col, x, y = [sT + i for i in range(7)]
        c(f"s_mov_b32 s{sRP}, s{sW2}")
        c(f"s_mov_b32 s{sRP+1}, s{sW2+1}")
        c(f"s_mov_b32 s{sRP+3}, 0x20000")
        c(f"s_cmp_lt_u32 s2, 224")
        c(f"s_cselect_b32 s{sRP+2}, {1728*1280}, 0")
        c(f"s_cselect_b32 s{sRPT}, {WS_SIZE}, 0")
        c(f"s_and_b32 s{sl}, s2, 3")
        c(f"s_lshr_b32 s{u}, s2, 2")
        c(f"s_mul_i32 s{r0}, s{u}, 18726")
        c(f"s_lshr_b32 s{r0}, s{r0}, 16")
        c(f"s_mul_i32 s{col}, s{r0}, 112")
        c(f"s_lshl_b32 s{v0}, s{u}, 5")
        c(f"s_sub_u32 s{v0}, s{v0}, s{col}")
        c(f"s_mul_i32 s{r0}, s{r0}, {108*1280}")
        c(f"s_mul_i32 s{col}, s{sl}, 320")
        c(f"s_add_u32 s{col}, s{col}, s{r0}")
        c(f"s_mul_i32 s{sRPD}, s{sl}, 112")
        c(f"s_add_u32 s{sRPD}, s{sRPD}, s{u}")
        c(f"s_mul_i32 s{sRPD}, s{sRPD}, 5120")
        c(f"s_add_u32 s{sRPD}, s{sRPD}, {W2_OFF}")
        c(f"s_lshl_b32 s{sRPF}, s{sl}, 6")
        c(f"s_add_u32 s{sRPF}, s{sRPF}, s{u}")
        c(f"s_lshl_b32 s{sRPF}, s{sRPF}, 7")
        c(f"s_add_u32 s{sRPF}, s{sRPF}, {FW2_OFF}")
        assert all((S * 18726) >> 16 == (32 * S) // 112 for S in range(80)) and all((v * 3277) >> 16 == v // 20 for v in range(768))
        c(f"v_mov_b32 v{t+4}, {OOB}")
        for j in range(3):
            c(f"v_add_u32 v{t}, {256*j}, v0")
            c(f"v_mul_u32_u24 v{t+1}, 3277, v{t}")
            c(f"v_lshrrev_b32 v{t+1}, 16, v{t+1}")
            c(f"v_mul_u32_u24 v{t+2}, 20, v{t+1}")
            c(f"v_sub_u32 v{t}, v{t}, v{t+2}")
            c(f"v_lshl_add_u32 v{t}, v{t}, 4, s{col}")
            c(f"v_add_u32 v{t+1}, s{v0}, v{t+1}")
            c(f"v_subrev_u32 v{t+2}, 108, v{t+1}")
            c(f"v_med3_i32 v{t+3}, v{t+2}, 0, 4")
            c(f"v_cmp_gt_u32 vcc, 4, v{t+2}")
            c(f"v_sub_u32 v{t+1}, v{t+1}, v{t+3}")
            c(f"v_mul_u32_u24 v{t+1}, 1280, v{t+1}")
            c(f"v_add_u32 v{t}, v{t}, v{t+1}")
            c(f"v_cndmask_b32 v{self.vRP+j}, v{t}, v{t+4}, vcc")
        c(f"v_cmp_gt_u32 vcc, 128, v0")
        c(f"v_lshrrev_b32 v{t}, 4, v1")
        c(f"v_bfe_u32 v{t+1}, v1, 2, 2")
        c(f"v_cndmask_b32 v{self.vRP+2}, v{t+4}, v{self.vRP+2}, vcc")
        c(f"v_cndmask_b32 v{ra+3}, v{t+4}, v{vL16}, vcc")
        c(f"v_cmp_gt_u32 vcc, 32, v0")
        c(f"v_lshl_add_u32 v{t+2}, v1, 2, s{sRPF}")
        c(f"v_lshl_add_u32 v{t}, v{t}, 3, v{t+1}")
        c(f"v_cndmask_b32 v{ra+4}, v{t+4}, v{t+2}, vcc")
        c(f"v_mul_u32_u24 v{t}, 320, v{t}")
        c(f"v_and_b32 v{t+1}, 3, v1")
        for j in range(3):
            c(f"s_add_u32 s{u}, s{sW}, {4*j}")
            c(f"s_cmp_ge_u32 s{u}, 5")
            c(f"s_cselect_b32 s{sl}, 1, 0")
            c(f"s_mul_i32 s{x}, s{sl}, 5")
            c(f"s_sub_u32 s{u}, s{u}, s{x}")
            c(f"s_mul_i32 s{x}, s{sl}, {56*5}")
            c(f"s_add_u32 s{x}, s{x}, s{u}")
            c(f"s_lshl_b32 s{x}, s{x}, 10")
            c(f"s_add_u32 s{self.sRD+j}, s{sRPD}, s{x}")
            c(f"s_mul_i32 s{sl}, s{sl}, 160")
            c(f"s_and_b32 s{x}, s{u}, 1")
            c(f"s_lshl3_add_u32 s{sl}, s{x}, s{sl}")
            c(f"s_and_b32 s{x}, s{u}, 6")
            c(f"s_lshl_b32 s{x}, s{x}, 5")
            c(f"s_add_u32 s{sl}, s{sl}, s{x}")
            c(f"s_add_u32 s{sl}, s{sl}, {self.RPL}")
            c(f"s_cmp_eq_u32 s{u}, 4")
            c(f"s_cselect_b32 s{y}, 3, 4")
            c(f"v_lshlrev_b32 v{t+2}, s{y}, v{t+1}")
            c(f"v_add3_u32 v{ra+j}, v{t+2}, v{t}, s{sl}")

    RPL1 = 8 * 16384 + 12288
    vRB = 246

    def rp_setup_unit1(self):
        c = self.c
        nr = self.o.get('nr', 3)
        t, rb = self.vTMP, self.vRB
        fb, st, col, x = [sT + i for i in range(4)]
        c(f"s_mov_b32 s{sKV}, s{sW1}")
        c(f"s_mov_b32 s{sKV+1}, s{sW1+1}")
        c(f"s_mov_b32 s{sKV+3}, 0x20000")
        c(f"s_cmp_lt_u32 s2, {64*nr}")
        c(f"s_cselect_b32 s{sKV+2}, {640*3456}, 0")
        c(f"s_cselect_b32 s79, {WS_SIZE}, 0")
        c(f"s_cselect_b64 vcc, s[{sHI}:{sHI+1}], 0")
        c(f"s_and_b32 s{fb}, s2, 15")
        c(f"s_bfe_u32 s{st}, s2, 0x20004")
        c(f"s_mul_i32 s{st}, s{st}, 5")
        c(f"s_lshr_b32 s{x}, s2, 6")
        c(f"s_add_u32 s{st}, s{st}, s{x}")
        c(f"s_add_u32 s{st}, s{st}, {5 - nr}")
        c(f"s_mul_i32 s80, s{fb}, 20")
        c(f"s_add_u32 s80, s80, s{st}")
        c(f"s_mul_i32 s80, s80, 7")
        c(f"s_add_u32 s80, s80, s{sW}")
        c(f"s_lshl_b32 s80, s80, 10")
        c(f"s_add_u32 s80, s80, {W1_OFF}")
        c(f"s_lshl_b32 s{x}, s{fb}, 5")
        c(f"s_add_u32 s{x}, s{x}, s{st}")
        c(f"s_lshl_b32 s{x}, s{x}, 7")
        c(f"s_add_u32 s{x}, s{x}, {FW1_OFF - 128}")
        c(f"s_cmp_eq_u32 s{sW}, 0")
        c(f"s_cselect_b64 vcc, vcc, 0")
        c(f"v_lshl_add_u32 v{t}, v1, 2, s{x}")
        c(f"v_cndmask_b32 v{self.vRA+4}, v{self.vRA+4}, v{t}, vcc")
        c(f"s_mul_i32 s{col}, s{fb}, 216")
        c(f"s_and_b32 s{col}, s{col}, -16")
        c(f"s_mul_i32 s{x}, s{st}, {32*3456}")
        c(f"s_add_u32 s{col}, s{col}, s{x}")
        for j in range(2):
            c(f"v_add_u32 v{t}, {256*j}, v0")
            c(f"v_mul_u32_u24 v{t+1}, 4682, v{t}")
            c(f"v_lshrrev_b32 v{t+1}, 16, v{t+1}")
            c(f"v_mul_u32_u24 v{t+1}, {3456-224}, v{t+1}")
            c(f"v_lshl_add_u32 v{t}, v{t}, 4, s{col}")
            c(f"v_add_u32 v{self.vRP+3+j}, v{t}, v{t+1}")
        c(f"v_cmp_gt_u32 vcc, 192, v0")
        c(f"v_add_u32 v{t}, 4096, v{vL16}")
        c(f"v_lshrrev_b32 v{t+2}, 4, v1")
        c(f"v_cndmask_b32 v{self.vRP+4}, v{t+4}, v{self.vRP+4}, vcc")
        c(f"v_cndmask_b32 v{rb+2}, v{t+4}, v{t}, vcc")
        c(f"v_bfe_u32 v{t+1}, v1, 2, 2")
        c(f"v_lshl_add_u32 v{t}, v{t+2}, 3, v{t+1}")
        c(f"v_mul_u32_u24 v{t}, 224, v{t}")
        c(f"v_and_b32 v{t+1}, 3, v1")
        c(f"s_and_b32 s{x}, s{fb}, 1")
        c(f"s_and_b32 s{col}, s{sW}, 1")
        c(f"s_add_u32 s{x}, s{x}, s{col}")
        c(f"s_and_b32 s{col}, s{sW}, 2")
        c(f"s_lshl_b32 s{col}, s{col}, 5")
        c(f"s_lshl3_add_u32 s{x}, s{x}, s{col}")
        c(f"s_add_u32 s{x}, s{x}, {self.RPL1}")
        c(f"v_add_u32 v{t}, s{x}, v{t}")
        c(f"v_lshl_add_u32 v{rb}, v{t+1}, 4, v{t}")
        c(f"s_cmp_eq_u32 s{sW}, 2")
        c(f"s_cselect_b32 s{x}, 3, 4")
        c(f"s_cselect_b32 s78, 12, 16")
        c(f"v_lshl_add_u32 v{rb+1}, v{t+1}, s{x}, v{t}")

    def rp_unit1_items(self, fr):
        rb, KV = self.vRB, f"s[{sKV}:{sKV+3}]"
        dma = [[I(f"s_add_u32 m0, s{sT+12}, {self.RPL1 + 4096*j}"), I(f"buffer_load_dwordx4 v{self.vRP+3+j}, {KV}, 0 offen lds")] for j in range(2)]
        rd = [I(f"ds_read_b64_tr_b16 {vr(fr+4*j+2*q,2)}, v{rb+j} offset:{q*896 + j*128}") for j in range(2) for q in range(2)]
        pad = [I(f"v_and_b32 v{rb}, 15, v1"), I(f"v_cmp_gt_u32 vcc, s78, v{rb}")] + [I(f"v_cndmask_b32 v{fr+4+q}, 0, v{fr+4+q}, vcc") for q in range(4)]
        stv = [[I(f"buffer_store_dwordx4 {vr(fr+4*j,4)}, v{vL16 if j == 0 else rb+2}, {KV}, s80 offen sc1")] for j in range(2)]
        stv[0] = [I(f"s_mov_b64 s[{sKV}:{sKV+1}], s[{sWS}:{sWS+1}]"), I(f"s_mov_b32 s{sKV+2}, s79")] + stv[0]
        return dma, rd, pad, stv

    def rp_unit_items(self, fr):
        ra, RP = self.vRA, f"s[{sRP}:{sRP+3}]"
        dma = [[I(f"s_lshl_b32 s{sT+12}, s{sW}, 10")] * (j == 0) + [I(f"s_add_u32 m0, s{sT+12}, {self.RPL + 4096*j}"),
               I(f"buffer_load_dwordx4 v{self.vRP+j}, {RP}, 0 offen lds")] for j in range(3)]
        rd = [I(f"ds_read_b64_tr_b16 {vr(fr[j]+2*q,2)}, v{ra+j} offset:{q*1280}") for j in range(3) for q in range(2)]
        stv = [[I(f"buffer_store_dwordx4 {vr(fr[j],4)}, v{vL16 if j < 2 else ra+3}, {RP}, s{self.sRD+j} offen sc1")] for j in range(3)]
        stv[0] = [I(f"s_mov_b64 s[{sRP}:{sRP+1}], s[{sWS}:{sWS+1}]"), I(f"s_mov_b32 s{sRP+2}, s{sRPT}")] + stv[0]
        flag = [I(f"v_mov_b32 v{vFLG}, s{sTAG}"), I(f"buffer_store_dword v{vFLG}, v{ra+4}, {RP}, 0 offen sc1")]
        return dma, rd, stv, flag

    def rp_w1_params(self, fb, step, col=None):
        c = self.c
        c(f"s_mul_i32 s{sRPD}, s{fb}, 20")
        c(f"s_add_u32 s{sRPD}, s{sRPD}, s{step}")
        c(f"s_mul_i32 s{sRPD}, s{sRPD}, 7168")
        c(f"s_add_u32 s{sRPD}, s{sRPD}, {W1_OFF}")
        c(f"s_lshl_b32 s{sRPF}, s{fb}, 5")
        c(f"s_add_u32 s{sRPF}, s{sRPF}, s{step}")
        c(f"s_lshl_b32 s{sRPF}, s{sRPF}, 7")
        c(f"s_add_u32 s{sRPF}, s{sRPF}, {FW1_OFF}")
        if col is not None:
            c(f"s_mov_b32 s{sRP}, s{sW1}")
            c(f"s_mov_b32 s{sRP+1}, s{sW1+1}")
            c(f"s_mul_i32 s{col}, s{fb}, 216")
            c(f"s_and_b32 s{col}, s{col}, -16")
            c(f"s_mul_i32 s{step}, s{step}, {32*3456}")
            c(f"s_add_u32 s{col}, s{col}, s{step}")

    def rp_w1_offsets(self, col):
        c = self.c
        t = 16
        for j in range(7):
            c(f"v_add_u32 v{t}, {64*j}, v1")
            c(f"v_mul_u32_u24 v{t+1}, 4682, v{t}")
            c(f"v_lshrrev_b32 v{t+1}, 16, v{t+1}")
            c(f"v_mul_u32_u24 v{t+1}, {3456-224}, v{t+1}")
            c(f"v_lshl_add_u32 v{t}, v{t}, 4, s{col}")
            c(f"v_add_u32 v{self.vRP+j}, v{t}, v{t+1}")

    def only_waves(self, hi, items):
        lab = self.label("ow")
        out = [I(f"s_cmp_ge_u32 s{sW}, {3 if hi else 2}"), I(f"s_cbranch_scc{0 if hi else 1} {lab} ; noflush")]
        for i in flat(items):
            i.cond = True
            out.append(i)
        out.append(I(f"{lab}: ; noflush"))
        return out

    RP1_LDS = 6 * 16384

    def rp_dma(self, n, base, wstride, so="0", fl=None, vb=None):
        items = []
        vb = self.vRP if vb is None else vb
        fl = self.o.get('rpld', '') if fl is None else fl
        for j in range(n):
            pre = [I(f"s_mul_i32 s{sT+12}, s{sW}, {wstride}")] if j == 0 else []
            items.append(pre + [I(f"s_add_u32 m0, s{sT+12}, {base + 1024*j}"),
                                I(f"buffer_load_dwordx4 v{vb+j}, s[{sRP}:{sRP+3}], {so} offen {fl} lds")])
        return items

    def rp_addr(self, t, pitch, base, wstride, oddshift, st=sT):
        c = self.c
        c(f"s_mul_i32 s{st+1}, s{sW}, {wstride}")
        if oddshift:
            c(f"s_and_b32 s{st+2}, s{oddshift}, 1")
            c(f"s_lshl3_add_u32 s{st+1}, s{st+2}, s{st+1}")
        c(f"s_add_u32 s{st+1}, s{st+1}, {base}")
        c(f"v_lshrrev_b32 v{t}, 4, v1")
        c(f"v_bfe_u32 v{t+1}, v1, 2, 2")
        c(f"v_lshl_add_u32 v{t}, v{t}, 3, v{t+1}")
        c(f"v_mul_u32_u24 v{t}, {pitch}, v{t}")
        c(f"v_add_u32 v{t}, s{st+1}, v{t}")
        c(f"v_and_b32 v{t+1}, 3, v1")
        c(f"v_lshl_add_u32 v{t+2}, v{t+1}, 4, v{t}")
        c(f"v_lshl_add_u32 v{t+3}, v{t+1}, 3, v{t}")

    def rp_items(self, nt, t, off, fr, R):
        pitch = 160 if nt == 5 else 224
        fb = fr if isinstance(fr, list) else [fr + 4 * tl for tl in range(nt)]
        rd, stv = [], []
        for tl in range(nt):
            for q in range(2):
                if tl < nt - 1:
                    rd.append(I(f"ds_read_b64_tr_b16 {vr(fb[tl]+2*q,2)}, v{t+2} offset:{off + q*4*pitch + (tl>>1)*64 + (tl&1)*8}"))
                else:
                    rd.append(I(f"ds_read_b64_tr_b16 {vr(fb[tl]+2*q,2)}, v{t+3} offset:{off + q*4*pitch + tl*32}"))
        for tl in range(nt):
            g = []
            if tl == 4:
                g.append(I(f"s_add_u32 s{sRPD}, s{sRPD}, 4096"))
            if tl == 6:
                g += [I(f"v_and_b32 v{t}, 15, v1"), I(f"v_cmp_gt_u32 vcc, 12, v{t}")]
                g += [I(f"v_cndmask_b32 v{fr+24+q}, 0, v{fr+24+q}, vcc") for q in range(4)]
            g.append(I(f"buffer_store_dwordx4 {vr(fb[tl],4)}, v{vL16}, {R}, s{sRPD} offen offset:{(tl&3)*1024} sc1"))
            stv.append(g)
        return rd + stv

    aV, aW1L, aWO = 0, 80, 156

    def wo_loads(self):
        items = []
        for i in range(25):
            pre = [I(f"s_add_u32 s{sWOO}, s{sWOO}, 4096")] if i and i % 4 == 0 else []
            items.append(pre + [I(f"buffer_load_dwordx4 {ar(self.aWO+4*i,4)}, v{vL16}, {WSR}, s{sWOO} offen offset:{(i&3)*1024} {self.ld}")])
        return items

    def w1_take(self, n, below=35):
        items = []
        first = True
        while n and self.w1q and self.w1q[0] < below:
            i = self.w1q.pop(0); n -= 1
            pre = []
            if (i % 4 == 0 or first) and i < 25:
                pre.append(I(f"s_add_u32 m0, s{sW1M}, {(i >> 2) * 4096}"))
            if i % 4 == 0 and i:
                pre.append(I(f"s_add_u32 s{sW1O}, s{sW1O}, 4096"))
            first = False
            if i < 25:
                items.append(pre + [I(f"buffer_load_dwordx4 v{vL16}, {WSR}, s{sW1O} offen offset:{(i&3)*1024} {self.ld} lds")])
            else:
                items.append(pre + [I(f"buffer_load_dwordx4 {ar(self.aW1L+4*(i-25),4)}, v{vL16}, {WSR}, s{sW1O} offen offset:{(i&3)*1024} {self.ld}")])
        return items

    def w2_take(self, n, below=70):
        items = []
        while n and self.w2q and self.w2q[0] < below:
            i = self.w2q.pop(0); n -= 1
            pre = [I(f"s_add_u32 s{sW2O}, s{sW2B}, {(i >> 2) * 4096}")] if i % 4 == 0 else []
            items.append(pre + [I(f"buffer_load_dwordx4 {self.w2reg(i)}, v{vL16}, {WSR}, s{sW2O} offen offset:{(i&3)*1024} {self.ld}")])
        return items

    def w2reg(self, i):
        return ar(120 + 4 * i if i < 9 else 4 * (i - 9), 4)

    vO, vK, vQ, vQ4, vZ, vS, vCO, vCD, vP = 32, 64, 124, 132, 136, 146, 178, 194, 210
    vX = 226
    vXL, vRP2 = 226, 230
    vL16m, vVA, vFWA, vFWD, vPOL = 3, 4, 5, 6, 7
    sKO, sVO = sT + 8, sT + 9
    UNITS = sorted([(kt, 0) for kt in range(9)] + [(kt, 1) for kt in range(1, 10)])

    def v_const(self):
        c = self.c
        for pi in range(5):
            c(f"s_cmp_ge_u32 s{sU}, {4-pi}")
            c(f"s_cselect_b32 s81, 0x3f803f80, 0")
            c(f"v_mov_b32 v63, s81")
            for j in range(16):
                c(f"v_accvgpr_write_b32 a{self.aV+16*pi+j}, v63")

    def attn_init(self):
        c = self.c
        t = 8
        c(f"s_mov_b32 s{sVM}, 0x000fffff")
        c(f"s_mov_b32 s{sVM+1}, 0x000fffff")
        c(f"s_mov_b32 s{sKV}, s{sWS}")
        c(f"s_mov_b32 s{sKV+1}, s{sWS+1}")
        c(f"s_mov_b32 s{sKV+3}, 0x20000")
        c(f"v_and_b32 v{self.vL16m}, 0x1f0, v{vL16}")
        c(f"v_lshrrev_b32 v{t}, 1, v1")
        c(f"v_xor_b32 v{t}, v{t}, v1")
        c(f"v_and_b32 v{t}, 4, v{t}")
        c(f"v_mul_u32_u24 v{t}, 48, v{t}")
        c(f"v_xor_b32 v{t}, v{t}, v{self.vL16m}")
        c(f"v_lshrrev_b32 v{t+1}, 5, v1")
        c(f"v_mul_u32_u24 v{t+2}, 10240, v{t+1}")
        c(f"v_add_u32 v{self.vVA}, v{t}, v{t+2}")
        c(f"v_and_b32 v{t}, 31, v1")
        c(f"v_lshlrev_b32 v{t+1}, 2, v{t+1}")
        c(f"v_sub_u32 v{t}, v{t}, v{t+1}")
        c(f"v_mov_b32 v{t+2}, 0xff800000")
        for r in range(0, 16, 4):
            for i in range(4):
                c(f"v_cmp_gt_i32 s[{sT+2*i}:{sT+2*i+1}], {8*(r>>2) + i}, v{t}")
            for i in range(4):
                c(f"v_cndmask_b32 v{self.vCD+r+i}, 0, v{t+2}, s[{sT+2*i}:{sT+2*i+1}]")
            for i in range(4):
                c(f"v_xor_b32 v{self.vCO+r+i}, v{self.vCD+r+i}, v{t+2}")
        c(f"s_lshl_b32 s{sT+2}, s{sU}, 10")
        c(f"s_add_u32 s{sT+2}, s{sT+2}, {FX_OFF - FL_OFF}")
        c(f"v_and_b32 v{t}, 7, v1")
        c(f"v_lshl_add_u32 v{self.vFWA}, v{t}, 7, s{sT+2}")
        c(f"s_mul_i32 s{sT}, s{sK8}, {7*128}")
        c(f"s_lshr_b32 s{sT+1}, s{sNB}, 1")
        c(f"s_lshl_b32 s{sT+1}, s{sT+1}, 13")
        c(f"s_add_u32 s{sT}, s{sT}, s{sT+1}")
        c(f"s_add_u32 s{sT}, s{sT}, {FW2_OFF - FL_OFF}")
        c(f"v_min_u32 v{t}, 6, v{t}")
        c(f"v_lshl_add_u32 v{t+1}, v{t}, 7, s{sT}")
        c(f"v_cndmask_b32 v{self.vFWA}, v{self.vFWA}, v{t+1}, s[{sHI}:{sHI+1}]")
        c(f"s_mul_i32 s{sT}, s{sW}, 640")
        c(f"s_lshl_b32 s{sT+1}, s{sFB}, 12")
        c(f"s_add_u32 s{sT}, s{sT}, s{sT+1}")
        c(f"s_add_u32 s{sT}, s{sT}, {FW1_OFF - FL_OFF}")
        c(f"v_cmp_lt_u32 vcc, 47, v1")
        c(f"v_min_u32 v{t}, 4, v{t}")
        c(f"v_lshl_add_u32 v{t}, v{t}, 7, s{sT}")
        c(f"v_cndmask_b32 v{self.vFWA}, v{self.vFWA}, v{t}, vcc")
        c(f"s_mul_i32 s{sT}, s{sNB}, 80")
        c(f"s_add_u32 s{sT+1}, s{sT}, 79")
        c(f"s_lshr_b32 s{sT}, s{sT}, 7")
        c(f"s_lshr_b32 s{sT+1}, s{sT+1}, 7")
        c(f"s_sub_u32 s{sT+1}, s{sT+1}, s{sT}")
        c(f"v_lshrrev_b32 v{t}, 2, v1")
        c(f"v_min_u32 v{t}, 2, v{t}")
        c(f"v_bfe_u32 v{t+1}, v1, 1, 1")
        c(f"v_add_u32 v{t+1}, 1, v{t+1}")
        c(f"v_cmp_lt_u32 vcc, 11, v1")
        c(f"v_and_b32 v{t+2}, s{sT+1}, v1")
        c(f"v_cndmask_b32 v{t+1}, v{t+1}, 0, vcc")
        c(f"v_mad_u32_u24 v{t+1}, v{t+1}, 5, v{t+2}")
        c(f"v_add_u32 v{t+1}, s{sT}, v{t+1}")
        c(f"s_sub_u32 s{sT}, s{sRB}, 2")
        c(f"v_add_u32 v{t}, s{sT}, v{t}")
        c(f"v_max_i32 v{t}, 0, v{t}")
        c(f"v_lshl_add_u32 v{t}, v{t}, 4, v{t+1}")
        c(f"v_lshlrev_b32 v{t}, 7, v{t}")
        c(f"v_add_u32 v{self.vPOL}, {F1_OFF - FL_OFF}, v{t}")
        for j in range(3):
            c(f"v_add_u32 v{t}, {64*j}, v1")
            c(f"v_mul_u32_u24 v{t+1}, 6554, v{t}")
            c(f"v_lshrrev_b32 v{t+1}, 16, v{t+1}")
            c(f"v_mul_u32_u24 v{t+1}, {1280-160}, v{t+1}")
            c(f"v_add_u32 v{self.vXL+j}, v{vL16}, v{t+1}")
        c(f"v_mov_b32 v{t}, {OOB}")
        c(f"v_cndmask_b32 v{self.vXL+2}, v{self.vXL+2}, v{t}, s[{sHI}:{sHI+1}]")
        for j in range(1, 4):
            c(f"v_add_u32 v{t+j}, {j*20480}, v{self.vVA}")
        c(f"v_and_b32 v{t+4}, 15, v1")
        c(f"v_bfe_u32 v{t}, v1, 4, 1")
        c(f"v_lshlrev_b32 v{t+4}, 4, v{t+4}")
        c(f"v_lshl_add_u32 v{t+5}, v{t}, 13, v{t+4}")
        c(f"v_lshl_add_u32 v{t+4}, v{t}, 14, v{t+4}")
        c(f"v_lshrrev_b32 v{t}, 5, v1")
        c(f"v_lshl_add_u32 v{t+4}, v{t}, 8, v{t+4}")

    sKVO = 64

    def attn_kv_prep(self):
        c = self.c
        for pi in range(5):
            b = self.sKVO + 3 * pi
            c(f"s_sub_u32 s{sT}, s{sU}, {4-pi}")
            c(f"s_cselect_b32 s{b+2}, 0, {WS_SIZE}")
            c(f"s_cselect_b32 s{sT}, 0, s{sT}")
            c(f"s_mul_i32 s{b+1}, s{sT}, 81920")
            c(f"s_lshl1_add_u32 s{b}, s{b+1}, s{sT+6}")
            c(f"s_add_u32 s{b+1}, s{b+1}, s{sT+7}")

    def attn_kv_loads(self, pi):
        ld = self.ld
        k = self.vK + 12 * pi
        R = f"s[{sKV}:{sKV+3}]"
        b = self.sKVO + 3 * pi
        K = [[I(f"s_mov_b32 s{sKV+2}, s{b+2}"), I(f"buffer_load_dwordx4 {vr(k,4)}, v{vL16}, {R}, s{b} offen {ld}")],
             [I(f"buffer_load_dwordx4 {vr(k+4,4)}, v{vL16}, {R}, s{b} offen offset:1024 {ld}")],
             [I(f"buffer_load_dwordx4 {vr(k+8,4)}, v{self.vL16m}, {R}, s{b} offen offset:2048 {ld}")]]
        va = [self.vVA, 9, 10, 11]
        L = [I(f"buffer_load_dwordx4 {ar(self.aV+16*pi+4*q,4)}, v{va[q]}, {R}, s{b+1} offen {ld}") for q in range(4)]
        on, off = (lambda: I(f"s_mov_b64 exec, s[{sVM}:{sVM+1}]")), (lambda: I("s_mov_b64 exec, -1"))
        return K, [[on(), q, off()] for q in L]

    def attn_qk(self, u, dst, units=None):
        kt, T = (units or self.UNITS)[u]
        k = self.vK + 12 * (kt >> 1)
        cin = '0'
        if kt == T:
            cin = vr(self.vCO, 16)
        elif kt == 8 + T:
            cin = vr(self.vCD, 16)
        d = vr(dst, 16)
        z = self.vZ + 4 * T + (0 if kt & 1 else 2)
        return [I(f"v_mfma_f32_32x32x16_bf16 {d}, {vr(k+4*(kt&1),4)}, {vr(self.vQ+4*T,4)}, {cin}"),
                I(f"v_mfma_f32_32x32x16_bf16 {d}, {vr(k+8,4)}, {vr(z,4)}, {d}")]

    def attn_loop(self, fill, swaps, order=(0, 1, 2, 3, 4)):
        c = self.c
        UN = [x for pi in order for x in self.UNITS if x[0] >> 1 == pi]
        n = len(UN)
        S = lambda u: self.vS + 16 * (u & 1)
        P = lambda u: self.vP + 8 * (u & 1)
        seen = set()

        def qk(u):
            kt = UN[u][0]
            pre = []
            if swaps and (kt >> 1) not in seen:
                seen.add(kt >> 1)
                k = self.vK + 12 * (kt >> 1)
                pre = [I(f"v_swap_b32 v{k+2}, v{k+4}"), I(f"v_swap_b32 v{k+3}, v{k+5}")]
            return pre, self.attn_qk(u, S(u), UN)

        def pv(u, s):
            kt, T = UN[u]
            d = vr(self.vO + 16 * T, 16)
            first = (s == 0 and all(x[1] != T for x in UN[:u]))
            return I(f"v_mfma_f32_32x32x16_bf16 {d}, {ar(self.aV+8*kt+4*s,4)}, {vr(P(u)+4*s,4)}, {0 if first else d}")

        ex = lambda u, g: [I(f"v_exp_f32 v{S(u)+4*g+i}, v{S(u)+4*g+i}") for i in range(4)]
        cv = lambda u, g: [I(f"v_cvt_pk_bf16_f32 v{P(u)+2*g+i}, v{S(u)+4*g+2*i}, v{S(u)+4*g+2*i+1}") for i in range(2)]
        slot = [0]

        def mf(m):
            items = [flat(x) for x in fill.get(slot[0], [])]
            slot[0] += 1
            if items:
                f = items[0]
                k = next((j for j, i in enumerate(f) if i.kind in ('vmem', 'ds')), 0)
                c.add(f[:k]); c.add(m); c.add(f[k:]); c.add(items[1:])
            else:
                c.add(m)
        pre, m = qk(0)
        c.add(pre); c.add(m)
        if fill:
            self.stamp("qk0", "attn")
        c.add(fill.get(-1, []))
        for u in range(n + 1):
            pre, m = qk(u + 1) if u + 1 < n else ([], None)
            if u > 0: mf(pv(u - 1, 0))
            if u > 0: c.add(cv(u - 1, 3))
            c.add(pre)
            if u < n: c.add(ex(u, 0))
            if m: mf(m[0])
            if u < n: c.add(ex(u, 1)); c.add(cv(u, 0))
            if m: mf(m[1])
            if u < n: c.add(ex(u, 2)); c.add(cv(u, 1))
            if u > 0: mf(pv(u - 1, 1))
            if u < n: c.add(ex(u, 3)); c.add(cv(u, 2))
            if fill:
                self.stamp(f"u{u}", "attn")
        assert slot[0] == 70

    def same_check(self):
        c = self.c
        self.flag_check(self.vFWD, self.vFWA, span=True)
        c(f"s_add_u32 s{sT+1}, s{sTAG}, s{sXCC}")
        c(f"v_cmp_ne_u32 vcc, s{sT+1}, v{self.vFWD}")
        c(f"s_andn2_b64 vcc, vcc, s[{sHI}:{sHI+1}]")
        c(f"s_cselect_b32 s{sSAME}, 0, 1")
        if self.o.get('nosame'):
            c(f"s_mov_b32 s{sSAME}, 0")

    def attn_prep(self):
        c = self.c
        c(f"s_lshl_b32 s{sT}, s{sU}, 7")
        c(f"s_add_u32 s{sT}, s{sT}, {F2_OFF - FL_OFF}")
        c(f"v_and_b32 v14, 1, v1")
        c(f"v_mul_u32_u24 v14, {F4_OFF - F2_OFF}, v14")
        c(f"v_add_u32 v14, s{sT}, v14")
        c(f"s_lshl_b32 s{sT}, s{sU}, 5")
        c(f"s_add_u32 s{sT}, s{sT}, s{sHEAD}")
        c(f"s_lshl_b32 s{sT}, s{sT}, 7")
        c(f"s_add_u32 s{sT}, s{sT}, {F5_OFF - FL_OFF}")
        c(f"v_writelane_b32 v14, s{sT}, 2")
        c(f"s_lshl_b32 s{sT+1}, s{sTP}, 11")
        c(f"s_add_u32 s{sT+1}, s{sT+1}, {F3_OFF - FL_OFF}")
        c(f"v_and_b32 v15, 15, v1")
        c(f"v_lshl_add_u32 v15, v15, 7, s{sT+1}")
        c(f"v_cndmask_b32 v14, v14, v15, s[{sHI}:{sHI+1}]")
        c(f"s_mul_i32 s{sT+5}, s{sHEAD}, 2560")
        c(f"s_add_u32 s{sT+6}, s{sT+5}, {QK_OFF + 160*512}")
        c(f"s_mul_i32 s{sT+7}, s{sHEAD}, 320")
        c(f"s_add_u32 s{sT+7}, s{sT+7}, {V_OFF}")
        c(f"s_mul_i32 s{sT+4}, s{sU}, 163840")
        c(f"s_add_u32 s{sT+5}, s{sT+5}, s{sT+4}")
        c(f"s_lshl2_add_u32 s{sT+3}, s{sU}, s{sW}")
        c(f"s_mul_i32 s{sT+3}, s{sT+3}, {16*1280}")
        c(f"s_mul_i32 s{sT+2}, s{sNB}, 160")
        c(f"s_add_u32 s{sT+3}, s{sT+3}, s{sT+2}")
        self.attn_kv_prep()

    def attention(self):
        c, o = self.c, self.o
        ld = self.ld
        t = 8
        for r in (0, 1, 4, 5, 8, 9):
            c(f"v_mov_b32 v{self.vZ+r}, 0")
        lab = self.label("w1")
        c(f"s_cmp_lg_u32 s{sW}, 2")
        c(f"s_cbranch_scc1 {lab}")
        c.cond(True)
        self.poll(self.vPOL, sleep=o.get('s1sleep', 0))
        c.cond(False)
        c(f"{lab}:")
        orders = [(3, 4, 2, 1, 0), (2, 3, 1, 4, 0), (1, 2, 3, 0, 4), (0, 1, 2, 3, 4)] if o.get('avar', 1) else [(0, 1, 2, 3, 4)]
        labs = [self.label("av") for _ in orders]
        c(f"s_and_b32 s{sT}, s{sU}, 3")
        for r in range(1, len(orders)):
            c(f"s_cmp_eq_u32 s{sT}, {r}")
            c(f"s_cbranch_scc1 {labs[r]}")
        c(".save av")
        q0 = (list(self.w1q), self.woq)
        for r, order in enumerate(orders):
            c(f"{labs[r]}:")
            c(".restore av")
            self.w1q, self.woq = list(q0[0]), copy_ins(q0[1])
            self.attn_body(order)
            if r + 1 < len(orders):
                c("s_branch Lattn_done")
        c("Lattn_done:")
        self.stamp("attn")
        lo, hi = f2u(2.0 ** -40), f2u(2.0 ** 40)
        O = self.vO
        c(f"v_subrev_u32 v{t}, {hex(lo)}, v{O+12}")
        c(f"v_subrev_u32 v{t+1}, {hex(lo)}, v{O+28}")
        c(f"v_max_u32 v{t}, v{t}, v{t+1}")
        c(f"v_cmp_lt_u32 vcc, {hex(hi-lo)}, v{t}")
        if o.get('forceslow'):
            c("s_mov_b64 vcc, -1")
        c(f"s_cbranch_vccnz Lattn_slow")
        c("Lattn_fin:")
        self.attn_slow()
        self.attn_epilogue('sc1')

    def attn_body(self, order):
        c, o = self.c, self.o
        ld = self.ld
        t = 8
        kv = [self.attn_kv_loads(pi) for pi in order]
        c.add(kv[0][0][0][:-1])
        c("s_barrier")
        self.stamp("s1", "main attn")
        q = self.vQ
        c(f"buffer_load_dwordx4 {vr(q,4)}, v{vL16}, {WSR}, s{sT+5} offen {ld}")
        c(f"buffer_load_dwordx4 {vr(q+4,4)}, v{vL16}, {WSR}, s{sT+5} offen offset:1024 {ld}")
        c.add(kv[0][0][0][-1]); c.add(kv[0][0][1])
        c(f"buffer_load_dwordx4 {vr(self.vQ4,4)}, v{self.vL16m}, {WSR}, s{sT+5} offen offset:2048 {ld}")
        c.add(kv[0][0][2])
        rest = kv[0][1] + kv[1][0] + kv[1][1] + kv[2][0] + kv[2][1] + kv[3][0] + kv[3][1] + kv[4][0] + kv[4][1]
        n0 = o.get('kv0', 7)
        c.add(rest[:n0]); rest = rest[n0:]
        if o.get('x_kv'):
            c("s_waitcnt vmcnt(0)"); self.stamp("kv13")
            c.add(rest); rest = []
            c("s_waitcnt vmcnt(0)"); self.stamp("kvall")
            c.add(self.w1_take(21, 21))
            c("s_waitcnt vmcnt(0)"); self.stamp("w1")
        fl = I(f"buffer_load_dword v{self.vFWD}, v{self.vFWA}, {WSR}, s{sFLB} offen sc1")
        XR = f"s[{sX}:{sX+3}]"
        KV = f"s[{sKV}:{sKV+3}]"
        xl = [[I(f"buffer_load_dwordx4 v{self.vXL+j}, {XR}, s{sT+3} offen offset:{j*1024} lds")] for j in range(3)]
        self.h_x = xl[2][0]
        xl[0] = [I(f"s_add_u32 m0, s{sW1M}, {25600 + 7168}")] + xl[0]
        fill = {}
        n1 = o.get('kv1', 2)
        fill[-1] = rest[:n1]; rest = rest[n1:]

        def place(items, g0, step):
            g = g0
            for it in items:
                assert g < 70
                fill.setdefault(int(g), []).append(it); g += step
            return int(g + 0.999)
        g = place(rest, 0, o.get('kvstep', 13) / 10)
        g = place([I(f"buffer_load_dword v15, v14, {WSR}, s{sFLB} offen sc1")] + xl + self.woq, g, 1)
        place([fl], next(z for z in range(o.get('flg', 8), 70) if z not in fill), 1)
        g = place([self.sub(self.same_check)], max(g, o.get('w1g', 44)), 1)
        w1 = self.w1_take(o.get('w1a', 14))
        place(w1, g, (o.get('w1e', 66) - g) / max(len(w1), 1))
        sb = [I(f"s_mul_i32 s{sT}, s{sU}, 81920"), I(f"s_add_u32 s{sT}, s{sT}, {O_OFF}"),
              I(f"s_lshl_b32 s{sT+1}, s{sHEAD}, 9"), I(f"s_add_u32 s{sT+1}, s{sT+1}, s{sT}"),
              I(f"s_add_u32 s{sT+2}, s{sT+1}, 32768"), I(f"s_lshr_b32 s{sT+4}, s{sHEAD}, 3"),
              I(f"s_and_b32 s{sT+5}, s{sHEAD}, 1"), I(f"s_lshl1_add_u32 s{sT+4}, s{sT+4}, s{sT+5}"),
              I(f"s_bfe_u32 s{sT+5}, s{sHEAD}, 0x20001"), I(f"s_lshl2_add_u32 s{sT+4}, s{sT+4}, s{sT+5}"),
              I(f"s_lshl_b32 s{sT+4}, s{sT+4}, 8"), I(f"s_add_u32 s{sT+4}, s{sT+4}, s{sT}"),
              I(f"s_add_u32 s{sT+4}, s{sT+4}, 65536")]
        place([sb[:4], sb[4:]], 68, 1)
        c(f"v_swap_b32 v{q+2}, v{q+4}")
        c(f"v_swap_b32 v{q+3}, v{q+5}")
        for T in range(2):
            for i in range(2):
                c(f"v_cndmask_b32 v{self.vZ+2+4*T+i}, v{self.vQ4+2*T+i}, 0, s[{sHI}:{sHI+1}]")
        self.attn_loop(fill, True, order)

    def attn_epilogue(self, st):
        c, o = self.c, self.o
        t, O, ob = 8, self.vO, 16
        c(f"v_rcp_f32 v{t}, v{O+12}")
        c(f"v_rcp_f32 v{t+1}, v{O+28}")
        for T in range(2):
            sel = "op_sel_hi:[1,0]" if T == 0 else "op_sel:[0,1] op_sel_hi:[1,1]"
            for i in range(6):
                r = O + 16 * T + 2 * i
                c(f"v_pk_mul_f32 {vr(r,2)}, {vr(r,2)}, {vr(t,2)} {sel}")
            for i in range(6):
                r = O + 16 * T + 2 * i
                d = ob + 4 * T + i if i < 4 else ob + 8 + 2 * T + (i - 4)
                c(f"v_cvt_pk_bf16_f32 v{d}, v{r}, v{r+1}")
            c(f"buffer_store_dwordx4 {vr(ob+4*T,4)}, v{t+4}, {WSR}, s{sT+1+T} offen {st}")
        c(f"s_not_b64 exec, s[{sHI}:{sHI+1}]")
        h = c(f"buffer_store_dwordx4 {vr(ob+8,4)}, v{t+5}, {WSR}, s{sT+4} offen {st}")
        c("s_mov_b64 exec, -1")
        c.add(self.w1_take(o.get('w1b', 0)))
        self.p3_prep()
        c.wait(h)
        self.stamp("odrain")
        self.flag_store_near(sT + 13)

    def attn_slow(self):
        old, self.c = self.c, self.ool
        c = self.c
        t = 16
        c("Lattn_slow:")
        c("s_waitcnt vmcnt(0) lgkmcnt(0)")
        c(f"v_mov_b32 v{t}, 0xff800000")
        c(f"v_mov_b32 v{t+1}, 0xff800000")
        for pi in range(5):
            lab = self.label("sl")
            c(f"s_cmp_ge_u32 s{sU}, {4-pi}")
            c(f"s_cselect_b32 s{sT+12}, 0x3f803f80, 0")
            c(f"v_mov_b32 v{t+2}, s{sT+12}")
            for i in range(4):
                r = self.vK + 12 * pi + 8 + i
                c(f"v_cndmask_b32 v{r}, v{r}, v{t+2}, s[{sHI}:{sHI+1}]")
            c(f"s_cbranch_scc0 {lab}")
            for u, (kt, T) in enumerate(self.UNITS):
                if kt >> 1 != pi:
                    continue
                c.add(self.attn_qk(u, self.vS))
                for i in range(8):
                    c(f"v_max3_f32 v{t+T}, v{self.vS+2*i}, v{self.vS+2*i+1}, v{t+T}")
            c(f"{lab}:")
        for T in range(2):
            c(f"v_mov_b32 v{t+2}, v{t+T}")
            c(f"v_permlane32_swap_b32 v{t+2}, v{t+T}")
            c(f"v_max_f32 v{t+2}, v{t+2}, v{t+T}")
            c(f"v_xor_b32 v{t+2}, 0x80000000, v{t+2}")
            c(f"v_and_b32 v{t+3}, s{sMASK}, v{t+2}")
            c(f"v_sub_f32 v{t+2}, v{t+2}, v{t+3}")
            c(f"v_and_b32 v{t+4}, s{sMASK}, v{t+2}")
            c(f"v_sub_f32 v{t+2}, v{t+2}, v{t+4}")
            c(f"v_lshrrev_b32 v{t+3}, 16, v{t+3}")
            c(f"v_or_b32 v{t+3}, v{t+3}, v{t+4}")
            c(f"v_lshrrev_b32 v{t+2}, 16, v{t+2}")
            z = self.vZ + 2 + 4 * T
            c(f"v_cndmask_b32 v{z}, v{z}, v{t+3}, s[{sHI}:{sHI+1}]")
            c(f"v_cndmask_b32 v{z+1}, v{z+1}, v{t+2}, s[{sHI}:{sHI+1}]")
        self.attn_loop({}, False)
        c("s_branch Lattn_fin")
        self.c = old

    RED = 143360
    vRES = 236
    CORD = (1, 2, 3, 0)
    p3A, p3L, p3AC, p3PB, p3SUM = 64, 128, 144, 184, 204
    p3PR = (184, 64, 84)

    def p3_prep(self):
        c = self.c
        t = 32
        c(f"s_lshl_b32 s{sT+13}, s{sU}, 7")
        c(f"s_lshl_b32 s{sT+3}, s{sW}, 5")
        c(f"s_add_u32 s{sT+3}, s{sT+3}, s{sT+13}")
        c(f"s_add_u32 s{sT+3}, s{sT+3}, {F2_OFF - FL_OFF}")
        c(f"s_lshl2_add_u32 s{sT+13}, s{sHEAD}, s{sT+13}")
        c(f"s_add_u32 s{sT+13}, s{sT+13}, {F2_OFF}")
        c(f"v_and_b32 v{self.vPOL}, 7, v1")
        c(f"v_lshl_add_u32 v{self.vPOL}, v{self.vPOL}, 2, s{sT+3}")
        c(f"s_lshl_b32 s{sT+6}, s{sW}, 12")
        c(f"s_add_u32 s{sT+6}, s{sT+6}, s{sT}")
        for i, cc in enumerate(self.CORD):
            c(f"s_xor_b32 s{sT+5}, s{sW}, {cc}")
            c(f"s_lshl_b32 s{sT+8+i}, s{sT+5}, 14")
            c(f"s_add_u32 s{sT+8+i}, s{sT+8+i}, s{sT+6}")
            c(f"s_mul_i32 s{sT+5}, s{sT+5}, {5120 if i in (0, 3) else 35840}")
            c(f"s_add_u32 s{sT+5}, s{sT+5}, {self.RED if i in (0, 3) else 25600 + (i-1)*5120}")
            c(f"v_add_u32 v{t+2+i}, s{sT+5}, v{vL16}")
        c(f"s_lshl_b32 s{sT+6}, s{sW}, 11")
        c(f"s_add_u32 s{sT+5}, s{sT}, s{sT+6}")
        c(f"s_add_u32 s{sT+5}, s{sT+5}, 65536")
        c(f"s_and_b32 s{sT+7}, s{sW}, 1")
        c(f"s_lshl_b32 s{sT+7}, s{sT+7}, 13")
        c(f"s_xor_b32 s{sT+6}, s{sT+7}, 8192")
        c(f"s_add_u32 s{sT+6}, s{sT+6}, s{sT+5}")
        c(f"s_add_u32 s{sT+7}, s{sT+7}, s{sT+5}")
        c(f"s_lshr_b32 s{sT+5}, s{sW}, 1")
        c(f"s_cselect_b64 s[{sT+14}:{sT+15}], -1, 0")
        c(f"s_lshl_b32 s{sT+5}, s{sT+5}, 10")
        c(f"v_xor_b32 v{t}, s{sT+5}, v{vL16}")
        c(f"v_xor_b32 v{t+1}, 1024, v{t}")
        c(f"s_add_u32 s{sT+5}, s{sW1M}, 25600")
        c(f"v_add_u32 v{t+12}, s{sT+5}, v{vL16}")
        c(f"v_and_b32 v{t+6}, 15, v1")
        c(f"v_mul_u32_u24 v{t+6}, 160, v{t+6}")
        c(f"v_add_u32 v{t+6}, s{sT+5}, v{t+6}")
        c(f"v_lshrrev_b32 v{t+7}, 4, v1")
        c(f"v_lshl_add_u32 v{t+8}, v{t+7}, 4, v{t+6}")
        c(f"v_lshl_add_u32 v{t+7}, v{t+7}, 3, v{t+6}")
        c(f"ds_read_b128 {vr(self.vX,4)}, v{t+8} offset:7168", waits=[self.h_x])
        c(f"ds_read_b128 {vr(self.vX+4,4)}, v{t+8} offset:{7168+64}")
        c(f"ds_read_b64 {vr(self.vX+8,2)}, v{t+7} offset:{7168+128}")
        for j in range(10):
            c(f"v_lshlrev_b32 v{self.p3SUM+2*j}, 16, v{self.vX+j}")
            c(f"v_and_b32 v{self.p3SUM+2*j+1}, s{sMASK}, v{self.vX+j}")

    def phase3(self):
        c, o = self.c, self.o
        ld = o.get('la', 'sc1')
        vA, vL, vAC, vPB, vSUM = self.p3A, self.p3L, self.p3AC, self.p3PB, self.p3SUM
        t = 32
        c(f"s_lshl2_add_u32 s{sT}, s{sU}, s{sW}")
        c(f"s_mul_i32 s{sT+1}, s{sT}, 20480")
        c(f"s_mul_i32 s{sT+2}, s{sNB}, 2560")
        c(f"s_add_u32 s{sT+1}, s{sT+1}, s{sT+2}")
        c(f"s_add_u32 s{sT+1}, s{sT+1}, {H_OFF}")
        c(f"s_lshl3_add_u32 s{sT+2}, s{sT}, s{sNB}")
        c(f"s_lshl_b32 s{sT+2}, s{sT+2}, 7")
        c(f"s_add_u32 s{sT+13}, s{sT+2}, {F3_OFF}")
        c(f"s_add_u32 s{sT+2}, s{sT+2}, {HST_OFF}")
        c(f"v_and_b32 v{t+6}, 15, v1")
        c(f"v_lshrrev_b32 v{t+7}, 5, v1")
        c(f"v_lshl_add_u32 v{t+6}, v{t+7}, 4, v{t+6}")
        c(f"v_lshlrev_b32 v{t+7}, 4, v{t+6}")
        c(f"v_lshlrev_b32 v{t+6}, 2, v{t+6}")
        c(f"s_mov_b32 s{sT+4}, 0xffff")
        c(f"s_mov_b32 s{sT+5}, 0xffff")
        c("s_barrier")
        self.poll(self.vPOL)
        self.stamp("s2", "main p3")
        L = []
        for i in range(4):
            for s in range(4):
                L.append(I(f"buffer_load_dwordx4 {vr(vA+16*i+4*s,4)}, v{vL16}, {WSR}, s{sT+8+i} offen offset:{s*1024} {ld}"))
            if i < 2:
                L.append(I(f"buffer_load_dwordx4 {vr(vL+8*i,4)}, v{t}, {WSR}, s{sT+6+i} offen {ld}"))
                L.append(I(f"buffer_load_dwordx4 {vr(vL+8*i+4,4)}, v{t+1}, {WSR}, s{sT+6+i} offen {ld}"))
        n0 = o.get('p3n0', 8)
        c.add(L[:n0])
        L = L[n0:] + self.w1_take(35)

        def swaps(g):
            q = vL + 8 * g
            return [I(f"s_not_b64 exec, s[{sT+14}:{sT+15}]"), I(f"v_swap_b32 v{q+2}, v{q+4}"), I(f"v_swap_b32 v{q+3}, v{q+5}"),
                    I(f"s_mov_b64 exec, s[{sT+14}:{sT+15}]"), I(f"v_swap_b32 v{q}, v{q+6}"), I(f"v_swap_b32 v{q+1}, v{q+7}"),
                    I("s_mov_b64 exec, -1")]
        left = {0: vL, 1: vL + 12, 2: vL + 4, 3: vL + 8}
        lper = o.get('p3lp', 3)
        for i in range(4):
            ac = vAC + 20 * (i & 1) if i < 3 else vSUM
            M = []
            for s in range(5):
                b = vA + 16 * i + 4 * s if s < 4 else left[i]
                for tl in range(5):
                    d = vr(ac + 4 * tl, 4)
                    M.append(I(f"v_mfma_f32_16x16x32_bf16 {d}, {ar(self.aWO+4*(5*s+tl),4)}, {vr(b,4)}, {0 if s == 0 and i < 3 else d}"))
            F = [[] for _ in range(25)]
            if i < 2:
                F[17] += swaps(i)
            if i > 0:
                pa = vAC + 20 * ((i - 1) & 1)
                for tl in range(5):
                    F[(3 + 2 * tl) if i == 3 else (3 + 4 * tl)] += [I(f"ds_write_b128 v{t+2+i-1}, {vr(pa+4*tl,4)} offset:{tl*1024}")]
            if i == 3:
                F[14] += [I("s_waitcnt lgkmcnt(0)"), I("s_barrier")]
                for r in range(3):
                    for tl in range(5):
                        src = f"v{t+5} offset:{tl*1024}" if r == 0 else f"v{t+12} offset:{(r-1)*5120 + tl*1024}"
                        F[15 + (5 * r + tl) * 2 // 3] += [I(f"ds_read_b128 {vr(self.p3PR[r]+4*tl,4)}, {src}")]
            for k in range(25):
                c.add(M[k])
                if L and (25 * i + k) % lper == 0:
                    c.add(L.pop(0))
                c.add(F[k])
                if k in (0, 8, 12, 24):
                    self.stamp(f"i{i}k{k}", "p3")
        c.add(L)
        self.stamp("p3")
        self.p3_epilogue('sc1')

    def p3_epilogue(self, st):
        c, o = self.c, self.o
        vAC, vPB, vSUM = self.p3AC, self.p3PB, self.p3SUM
        t = 32
        ac = vAC + 20
        rs = self.vRES
        for j in range(10):
            c(f"v_pk_add_f32 {vr(self.p3PR[1]+2*j,2)}, {vr(self.p3PR[0]+2*j,2)}, {vr(self.p3PR[1]+2*j,2)}")
        for P in range(3):
            for src in (self.p3PR[1], self.p3PR[2]):
                for j in range(4 * P, min(4 * P + 4, 10)):
                    c(f"v_pk_add_f32 {vr(vSUM+2*j,2)}, {vr(vSUM+2*j,2)}, {vr(src+2*j,2)}")
            for j in range(4 * P, min(4 * P + 4, 10)):
                c(f"v_cvt_pk_bf16_f32 v{rs+j}, v{vSUM+2*j}, v{vSUM+2*j+1}")
            if P < 2:
                c(f"buffer_store_dwordx4 {vr(rs+4*P,4)}, v{vL16}, {WSR}, s{sT+1} offen offset:{P*1024} {st}")
        for j in range(4):
            c(f"v_mov_b32 v{vPB+j}, v{rs+8+(j&1)}")
        a1, a2 = t + 8, t + 10
        c(f"v_pk_add_f32 {vr(a1,2)}, {vr(vSUM,2)}, {vr(vSUM+2,2)}")
        c(f"v_pk_mul_f32 {vr(a2,2)}, {vr(vSUM,2)}, {vr(vSUM,2)}")
        c(f"v_permlane16_swap_b32 v{vPB}, v{vPB+2}")
        c(f"v_permlane16_swap_b32 v{vPB+1}, v{vPB+3}")
        c(f"s_mov_b64 exec, s[{sT+4}:{sT+5}]")
        c(f"buffer_store_dwordx4 {vr(vPB,4)}, v{t+7}, {WSR}, s{sT+1} offen offset:2048 {st}")
        c("s_mov_b64 exec, -1")
        for j in range(1, 10):
            if j > 1:
                c(f"v_pk_add_f32 {vr(a1,2)}, {vr(a1,2)}, {vr(vSUM+2*j,2)}")
            c(f"v_pk_fma_f32 {vr(a2,2)}, {vr(vSUM+2*j,2)}, {vr(vSUM+2*j,2)}, {vr(a2,2)}")
        c(f"v_add_f32 v{a1}, v{a1}, v{a1+1}")
        c(f"v_add_f32 v{a2}, v{a2}, v{a2+1}")
        c(f"v_permlane32_swap_b32 v{a1}, v{a2}")
        c(f"v_add_f32 v{a1}, v{a1}, v{a2}")
        c(f"v_mov_b32 v{a2}, v{a1}")
        c(f"v_permlane16_swap_b32 v{a1}, v{a2}")
        c(f"v_add_f32 v{a1}, v{a1}, v{a2}")
        c(f"s_mov_b64 exec, s[{sT+4}:{sT+5}]")
        h = c(f"buffer_store_dword v{a1}, v{t+6}, {WSR}, s{sT+2} offen {st}")
        c("s_mov_b64 exec, -1")
        for n in range(10):
            c(f"ds_write_b128 v{t+12}, {ar(self.aW1L+4*n,4)} offset:{n*1024}")
        self.p4_prep()
        c.wait(h)
        self.stamp("hdrain")
        self.flag_store(sT + 13)
        c("s_waitcnt lgkmcnt(0)")
        c("s_barrier")
        self.csum_k = 0
        self.r0 = None
        if o.get('csb', 40) >= 40:
            r0 = [I(f"ds_read_b128 {vr(self.p4W+4*tl,4)}, v{vL16} offset:{tl*1024}") for tl in range(7)]
            self.r0 = list(r0)
            self.csum(40, r0)
        else:
            self.csum(min(o['csb'], 30))

    def csum(self, n, tail=None):
        c = self.c
        vAC, vC, vONE, NB, LA = self.p4AC, self.p4CS, 56, 14, 10
        rd = lambda k: I(f"ds_read_b128 {vr(vAC+4*(k%NB),4)}, v{52+(k>>1)//9} offset:{((k>>1)%9)*7168 + (k&1)*4096}")
        if self.csum_k == 0:
            for k in range(LA):
                c.add(rd(k))
        for k in range(self.csum_k, min(self.csum_k + n, 40)):
            d = vr(vC + 4 * (k & 1), 4)
            c(f"v_mfma_f32_16x16x32_bf16 {d}, {vr(vAC+4*(k%NB),4)}, {vr(vONE,4)}, {0 if k < 2 else d}")
            if k + LA < 40:
                c.add(rd(k + LA))
            elif tail:
                c.add(tail[:1]); del tail[:1]
        self.csum_k = min(self.csum_k + n, 40)

    p4AC, p4W, p4A, p4NR, p4ST, p4CS = 64, 120, 176, 7, 16, 24

    def p4_prep(self):
        c = self.c
        t = 8
        c(f"s_mov_b32 s{sT}, s{sTP}")
        c(f"s_mul_i32 s{sT+6}, s{sT}, 40960")
        c(f"s_add_u32 s{sT+6}, s{sT+6}, {H_OFF}")
        c(f"s_add_u32 s{sT+7}, s{sT+6}, 20480")
        c(f"s_lshl_b32 s{sT+8}, s{sT}, 11")
        c(f"s_add_u32 s{sT+8}, s{sT+8}, {HST_OFF}")
        c(f"v_and_b32 v{t}, 31, v1")
        c(f"v_lshrrev_b32 v{t+1}, 5, v1")
        c(f"v_lshlrev_b32 v{t}, 2, v{t}")
        c(f"v_lshl_add_u32 v{t}, v{t+1}, 10, v{t}")
        c(f"v_add_u32 v{t+2}, {9*7168}, v{vL16}")
        c(f"v_add_u32 v{t+3}, {18*7168}, v{vL16}")
        c(f"v_and_b32 v{t+4}, 48, v1")
        c(f"v_add_u32 v{t+4}, {self.RED}, v{t+4}")
        c(f"s_mul_i32 s{sT+9}, s{sW}, 5120")
        c(f"v_add_u32 v{t+5}, s{sT+9}, v{t+4}")
        c(f"s_lshl_b32 s{sT+9}, s{sT}, 11")
        c(f"s_add_u32 s{sT+9}, s{sT+9}, {F3_OFF - FL_OFF}")
        c(f"v_and_b32 v{self.vPOL}, 15, v1")
        c(f"v_lshl_add_u32 v{self.vPOL}, v{self.vPOL}, 7, s{sT+9}")
        c(f"s_lshl_b32 s{sT+9}, s{sW}, 10")
        c(f"v_add_u32 v52, s{sT+9}, v{vL16}")
        c(f"v_add_u32 v53, {9*7168}, v52")
        c(f"v_add_u32 v54, {18*7168}, v52")
        for j in range(4):
            c(f"v_mov_b32 v{56+j}, 0x3f803f80")

    def phase4(self):
        c, o = self.c, self.o
        ld = o.get('la', 'sc1')
        vAC, vW, vA, NR, vST, vCS = self.p4AC, self.p4W, self.p4A, self.p4NR, self.p4ST, self.p4CS
        t = 8
        wa = [vL16, t + 2, t + 3]
        rdw = lambda s: [I(f"ds_read_b128 {vr(vW+28*(s&1)+4*tl,4)}, v{wa[s//9]} offset:{(s%9)*7168 + tl*1024}") for tl in range(7)]
        vC = vCS
        self.poll(self.vPOL)
        self.stamp("s3", "main p4")

        def lda(s):
            g = []
            for a in range(2):
                pre = [I(f"s_add_u32 s{sT+6+a}, s{sT+6+a}, 4096")] if s and s % 4 == 0 else []
                g.append(pre + [I(f"buffer_load_dwordx4 {vr(vA+8*(s%NR)+4*a,4)}, v{vL16}, {WSR}, s{sT+6+a} offen offset:{(s&3)*1024} {ld}")])
            return g
        Q = [x for s in range(20) for x in lda(s)]
        n0 = o.get('p4n0', 8)
        c.add(Q[:n0]); qi = n0
        r0 = rdw(0) if self.r0 is None else []
        Rp = list(r0) if self.r0 is None else self.r0
        self.csum(40, r0)
        c.add(r0)
        self.stamp("csum", "p4")
        extra = [[I(f"buffer_load_dword v{vST+j}, v{t}, {WSR}, s{sT+8} offen offset:{j*128} {ld}")] for j in range(8)]
        misc = {k: [] for k in range(20)}
        wr = [I(f"ds_write_b128 v{t+5}, {vr(vC,4)}"), I(f"ds_write_b128 v{t+5}, {vr(vC+4,4)} offset:64")]
        misc[0] = wr
        sb = o.get('p4b', 8)
        misc[sb] = [[W(wr[1]), I("s_barrier")]]
        for tl in range(7):
            misc[sb + 1 + tl // 3].append(I(f"ds_read_b128 {vr(vCS+4*tl,4)}, v{t+4} offset:{(tl&3)*5120 + (tl>>2)*64}"))
        sw = o.get('p4w', 4)
        credit = 0
        fin = self.sub(self.p4_stats)
        V = {k: [] for k in range(20)}
        for j, x in enumerate(fin):
            V[11 + j // 10].append(x)
        assert len(fin) <= 40
        for s in range(20):
            M = []
            for tl in range(7):
                for a in range(2):
                    d = vr(vAC + 28 * a + 4 * tl, 4)
                    M.append(I(f"v_mfma_f32_16x16x32_bf16 {d}, {vr(vW+28*(s&1)+4*tl,4)}, {vr(vA+8*(s%NR)+4*a,4)}, {0 if s == 0 else d}"))
            Rn = rdw(s + 1) if s < 19 else [[]] * 7
            na = min(min(2 * (s + NR), 40) - qi, o.get('p4r', 3))
            F = Q[qi:qi + na]; qi += na
            assert qi >= min(2 * (s + 2), 40)
            ne = 2 if s < sw else 0
            F += extra[:ne]; extra = extra[ne:]
            if s >= sw:
                assert not extra
                credit += o.get('p4x', 20) if na else o.get('p4y', 30)
                F += self.w2_take(credit // 10); credit %= 10
            F += misc[s]
            assert len(F) <= 7, (s, len(F))
            if 15 <= s < 19:
                for k in range(14):
                    tl, a = divmod((k + 7) % 14, 2)
                    V[s].append(I(f"v_fmac_f32 v{vAC + 28*a + 4*tl + s - 15}, v{vCS + 4*tl + s - 15}, v{vST + 2*a}"))
            M[0].waits = [Rp[3]]; M[8].waits = [Rp[6]]
            Rp = Rn
            for k in range(14):
                f = flat(F[k // 2]) if k % 2 and k // 2 < len(F) else []
                j = next((j for j, i in enumerate(f) if i.kind == 'vmem'), 0)
                c.add(f[:j]); c.add(M[k]); c.add(f[j:]); c.add(Rn[k // 2] if k % 2 == 0 else [])
                c.add(V[s][k:k + 1])
            if s < 8 or s % 2:
                self.stamp(f"k{s}", "p4")
        self.stamp("p4")
        self.p4_epilogue('sc1')

    def p4_stats(self):
        c = self.c
        vST, t = self.p4ST, 8
        for j in range(1, 8):
            c(f"v_add_f32 v{vST}, v{vST}, v{vST+j}")
        c(f"v_mov_b32 v{vST+1}, v{vST}")
        c(f"v_permlane16_swap_b32 v{vST}, v{vST+1}")
        c(f"v_mul_f32 v{vST}, {hex(f2u(-1.0/640))}, v{vST}")
        c(f"v_mul_f32 v{vST+1}, {hex(f2u(1.0/640))}, v{vST+1}")
        c(f"v_fma_f32 v{vST+1}, -v{vST}, v{vST}, v{vST+1}")
        c(f"v_max_f32 v{vST+1}, 0, v{vST+1}")
        c(f"v_add_f32 v{vST+1}, {hex(f2u(1e-5))}, v{vST+1}")
        c(f"v_rsq_f32 v{vST+1}, v{vST+1}")
        nl = hex(f2u(-1.4426950408889634))
        c(f"v_mov_b32 v{vST+4}, {nl}")
        c(f"v_mov_b32 v{vST+5}, {nl}")
        c(f"v_mul_f32 v{vST+1}, v{vST+4}, v{vST+1}")
        c(f"v_mov_b32 v{vST+2}, v{vST}")
        c(f"v_mov_b32 v{vST+3}, v{vST+1}")
        c(f"v_permlane32_swap_b32 v{vST}, v{vST+2}")
        c(f"v_permlane32_swap_b32 v{vST+1}, v{vST+3}")
        c(f"s_mul_i32 s{sT+1}, s{sT}, {2*57344}")
        c(f"s_mul_i32 s{sT+2}, s{sFB}, 3584")
        c(f"s_add_u32 s{sT+1}, s{sT+1}, s{sT+2}")
        c(f"s_add_u32 s{sT+1}, s{sT+1}, {H1_OFF}")
        c(f"s_add_u32 s{sT+2}, s{sT+1}, 57344")
        c(f"v_bfe_u32 v{t+6}, v1, 4, 1")
        c(f"v_mul_u32_u24 v{t+6}, 57344, v{t+6}")
        c(f"v_and_b32 v{t+7}, 15, v1")
        c(f"v_lshl_add_u32 v{t+6}, v{t+7}, 4, v{t+6}")
        c(f"v_lshl_add_u32 v{t+6}, v{t+1}, 8, v{t+6}")
        c(f"s_lshl_b32 s{sT+13}, s{sU}, 7")
        c(f"s_lshl2_add_u32 s{sT+13}, s{sHEAD}, s{sT+13}")
        c(f"s_add_u32 s{sT+13}, s{sT+13}, {F4_OFF}")

    def p4_epilogue(self, st):
        c, o = self.c, self.o
        vAC, vW, vST, vCS = self.p4AC, self.p4W, self.p4ST, self.p4CS
        t = 8
        vE, vOUT = 52, vW
        groups = [[(a, 2 * P), (a, 2 * P + 1)] for P in range(3) for a in range(2)] + [[(0, 6), (1, 6)]]
        for gi, g in enumerate(groups):
            if gi < 5:
                c.add(self.w2_take(o.get('p4e', 0)))
            pairs = [(vAC + 28 * a + 4 * tl + 2 * q, vCS + 4 * tl + 2 * q, vST + 2 * a) for a, tl in g for q in range(2)]
            for r, cs, sv in pairs:
                c(f"v_pk_mul_f32 {vr(r,2)}, {vr(r,2)}, {vr(sv,2)} op_sel:[0,1] op_sel_hi:[1,1]")
            for k, (r, cs, sv) in enumerate(pairs):
                c(f"v_exp_f32 v{vE+2*k}, v{r}")
                c(f"v_exp_f32 v{vE+2*k+1}, v{r+1}")
            for k in range(4):
                c(f"v_pk_fma_f32 {vr(vE+2*k,2)}, {vr(vE+2*k,2)}, {vr(vST+4,2)}, {vr(vST+4,2)}")
            for k in range(8):
                c(f"v_rcp_f32 v{vE+k}, v{vE+k}")
            for k, (r, cs, sv) in enumerate(pairs):
                c(f"v_pk_mul_f32 {vr(r,2)}, {vr(r,2)}, {vr(vE+2*k,2)}")
            out = vOUT + 4 * gi
            for k, (r, cs, sv) in enumerate(pairs):
                c(f"v_cvt_pk_bf16_f32 v{out+k}, v{r}, v{r+1}")
            if gi < 6:
                c(f"buffer_store_dwordx4 {vr(out,4)}, v{vL16}, {WSR}, s{sT+1+(gi&1)} offen offset:{(gi>>1)*1024} {st}")
            else:
                c(f"v_permlane16_swap_b32 v{out}, v{out+2}")
                c(f"v_permlane16_swap_b32 v{out+1}, v{out+3}")
                h = c(f"buffer_store_dwordx4 {vr(out,4)}, v{t+6}, {WSR}, s{sT+1} offen offset:3072 {st}")
        self.stamp("p4epi")
        c.add(self.w2_take(o.get('p4d', 0)))
        self.p5_prep()
        self.p5_prep2()
        c.wait(h)
        self.stamp("h1drain")
        self.flag_store_near(sT + 13)
        c.add(self.w2_take(70))

    p5A, p5NR, p5AC, p5PB, p5SUM, p5S0 = 64, 20, 144, 208, 32, 184
    sA5 = 64

    def p5_prep(self):
        c = self.c
        c(f"s_mul_i32 s{sT+5}, s{sK8}, 7168")
        c(f"s_add_u32 s{sT+5}, s{sT+5}, {H1_OFF}")
        c(f"s_lshl2_add_u32 s{sT+7}, s{sU}, s{sW}")
        for i in range(8):
            c(f"s_xor_b32 s{sT+6}, s{sT+7}, {self.CORD[i & 3] + (16 if i < 4 else 0)}")
            c(f"s_mul_i32 s{self.sA5+i}, s{sT+6}, 57344")
            c(f"s_add_u32 s{self.sA5+i}, s{self.sA5+i}, s{sT+5}")
        c(f"s_lshl2_add_u32 s{sT+3}, s{sU}, s{sW}")
        c(f"s_lshl_b32 s{sT+3}, s{sT+3}, 5")
        c(f"s_add_u32 s{sT+3}, s{sT+3}, {F4_OFF - FL_OFF}")
        c(f"v_and_b32 v{self.vPOL}, 7, v1")
        c(f"v_lshl_add_u32 v{self.vPOL}, v{self.vPOL}, 2, s{sT+3}")

    def p5_prep2(self):
        c = self.c
        t, rs, vSUM = 16, self.vRES, self.p5SUM
        for i, cc in enumerate(self.CORD):
            c(f"s_xor_b32 s{sT+6}, s{sW}, {cc}")
            c(f"s_mul_i32 s{sT+6}, s{sT+6}, 30720")
            if 0 < i < 3:
                c(f"s_add_u32 s{sT+6}, s{sT+6}, {i*5120}")
            c(f"v_add_u32 v{t+6+i}, s{sT+6}, v{vL16}")
        for j in range(10):
            c(f"v_lshlrev_b32 v{vSUM+2*j}, 16, v{rs+j}")
            c(f"v_and_b32 v{vSUM+2*j+1}, s{sMASK}, v{rs+j}")
        c(f"s_lshl_b32 s{sT+6}, s{sU}, 5")
        c(f"s_add_u32 s{sT+6}, s{sT+6}, s{sHEAD}")
        c(f"s_xor_b32 s{sT+7}, s{sT+6}, 128")
        c(f"s_mul_i32 s{sT+4}, s{sT+6}, 2560")
        c(f"s_add_u32 s{sT+4}, s{sT+4}, {PX_OFF}")
        c(f"s_mul_i32 s{sT+5}, s{sT+7}, 2560")
        c(f"s_add_u32 s{sT+5}, s{sT+5}, {PX_OFF}")
        c(f"s_lshl_b32 s72, s{sT+7}, 7")
        c(f"s_add_u32 s72, s72, {F5_OFF}")
        c(f"s_lshl_b32 s{sT+6}, s{sT+6}, 7")
        c(f"s_add_u32 s{sT+6}, s{sT+6}, {F5_OFF - FL_OFF}")
        c(f"v_mov_b32 v{self.vFWA}, s{sT+6}")
        c(f"v_lshlrev_b32 v{t+12}, 3, v1")
        c(f"s_lshl_b32 s{sT+6}, s{sW}, 12")
        c(f"s_add_u32 s{sT+6}, s{sT+6}, 122880")
        c(f"v_and_b32 v{t}, 15, v1")
        c(f"v_mul_u32_u24 v{t}, 160, v{t}")
        c(f"v_add_u32 v{t}, s{sT+6}, v{t}")
        c(f"v_lshrrev_b32 v{t+1}, 4, v1")
        c(f"v_lshl_add_u32 v{t+2}, v{t+1}, 3, v{t}")
        c(f"v_lshl_add_u32 v{t+1}, v{t+1}, 4, v{t}")
        c(f"v_add_u32 v{t}, s{sT+6}, v{vL16}")
        for j in range(3):
            c(f"v_add_u32 v{t+10}, {64*j}, v1")
            c(f"v_mul_u32_u24 v{t+11}, 6554, v{t+10}")
            c(f"v_lshrrev_b32 v{t+11}, 16, v{t+11}")
            c(f"v_mul_u32_u24 v{t+11}, {1280-160}, v{t+11}")
            c(f"v_lshl_add_u32 v{t+3+j}, v{t+10}, 4, v{t+11}")
        c(f"s_lshl2_add_u32 s{sT}, s{sU}, s{sW}")
        c(f"s_mul_i32 s{sT}, s{sT}, {16*1280}")
        c(f"s_mul_i32 s{sT+1}, s{sNB}, 160")
        c(f"s_add_u32 s{sT}, s{sT}, s{sT+1}")

    def phase5(self):
        c, o = self.c, self.o
        ld = o.get('la', 'sc1')
        vA, NR, vAC, vPB, vSUM, vS0 = self.p5A, self.p5NR, self.p5AC, self.p5PB, self.p5SUM, self.p5S0
        t = 16
        rs = self.vRES
        c("s_barrier")
        self.poll(self.vPOL)
        self.stamp("s4", "main p5")

        def lda(k):
            i, s = divmod(k, 7)
            pre = [I(f"s_add_u32 s{self.sA5+i}, s{self.sA5+i}, 4096")] if s == 4 else []
            return pre + [I(f"buffer_load_dwordx4 {vr(vA+4*(k%NR),4)}, v{vL16}, {WSR}, s{self.sA5+i} offen offset:{(s&3)*1024} {ld}")]
        LA = o.get('p5la', 12)
        qi = o.get('p5n0', 8)
        for k in range(qi):
            c.add(lda(k))
        F = [[] for _ in range(280)]
        add = lambda d, x, n=20: [I(f"v_add_f32 v{d+j}, v{d+j}, v{x+j}") for j in range(n)]
        vXP = 52

        def put(items, g, per=1, step=1):
            items = list(items)
            while items:
                n = per
                if g % 5 == 0 and g // 5 + LA < 56 or g % 5 == 4:
                    n = per - 1
                F[g] += items[:n]; items = items[n:]; g += step
            return g
        for i in range(1, 8):
            half, r = divmod(i - 1, 4)
            g = 35 * i
            pa = vAC + 20 * ((i - 1) & 1)
            if r == 3:
                A = add(vS0, vPB)
                it = []
                for P in range(3):
                    js = range(4 * P, min(4 * P + 4, 10))
                    it += [x for j in js for x in A[2 * j:2 * j + 2]]
                    it += [I(f"v_cvt_pk_bf16_f32 v{vXP+j}, v{vS0+2*j}, v{vS0+2*j+1}") for j in js]
                    if P < 2:
                        hs = I(f"buffer_store_dwordx4 {vr(vXP+4*P,4)}, v{vL16}, {WSR}, s{sT+5} offen offset:{P*1024} sc1")
                    else:
                        hs = I(f"buffer_store_dwordx2 {vr(vXP+8,2)}, v{t+12}, {WSR}, s{sT+5} offen offset:2048 sc1")
                    it += [hs]
                put(it, g + 3, 2)
                fs = self.sub(self.flag_store, 72)
                fs[0].waits = [hs]
                F[g + o.get('p5f', 52)] += fs
                continue
            last = r == 1
            wr = [I(f"ds_write_b128 v{t+6+r}, {vr(pa+4*tl,4)} offset:{half*15360 + tl*1024}") for tl in range(5)]
            for tl, g1 in enumerate((3, 6, 8, 11, 13) if last else (3, 7, 11, 13, 17)):
                F[g + g1].insert(0, wr[tl])
            gb = g + (17 if last else 22)
            F[gb] += [W(wr[-1]), I("s_barrier")]
            dst = vS0 if i == 1 else vPB
            rd = [I(f"ds_read_b128 {vr(dst+4*tl,4)}, v{t+9} offset:{half*15360 + r*5120 + tl*1024}") for tl in range(5)]
            gn = put(rd, gb + 1, 2 if last else 1)
            if i == 1 or r == 2:
                continue
            A = add(vSUM if half else vS0, vPB)
            A[0].waits = [rd[-1] if not last else rd[2]]
            gn = put(A, gn + (4 if last else 5), 3 if last else 2)
            assert gn <= g + (34 if last else 52), (i, gn - g)
        gl = o.get('p5g', 222)
        F[gl].insert(0, I(f"buffer_load_dword v{self.vFWD}, v{self.vFWA}, {WSR}, s{sFLB} offen sc1"))
        gc = o.get('p5c', 247)
        F[gc] += self.sub(self.flag_check, self.vFWD, self.vFWA, False, 0)
        F[gc + 1].insert(0, I(f"buffer_load_dwordx4 {vr(vXP,4)}, v{vL16}, {WSR}, s{sT+4} offen sc1"))
        F[gc + 2].insert(0, I(f"buffer_load_dwordx4 {vr(vXP+4,4)}, v{vL16}, {WSR}, s{sT+4} offen offset:1024 sc1"))
        F[gc + 3].insert(0, I(f"buffer_load_dwordx2 {vr(vXP+8,2)}, v{t+12}, {WSR}, s{sT+4} offen offset:2048 sc1"))
        for k in range(56):
            i, s = divmod(k, 7)
            ac = {3: vS0, 7: vSUM}.get(i, vAC + 20 * (i & 1))
            for tl in range(5):
                d = vr(ac + 4 * tl, 4)
                L = []
                if tl in (0, 2) and qi < min(k + LA + 1, 56):
                    L = lda(qi); qi += 1
                c.add(L[:-1])
                c(f"v_mfma_f32_16x16x32_bf16 {d}, {self.w2reg(5*s+tl)}, {vr(vA+4*(k%NR),4)}, {0 if s == 0 and i % 4 != 3 else d}")
                c.add(L[-1:])
                c.add(F[5 * k + tl])
            if s in (0, 6):
                self.stamp(f"i{i}s{s}", "p5")
        self.stamp("p5")
        for j in range(10):
            c(f"v_pk_add_f32 {vr(vSUM+2*j,2)}, {vr(vSUM+2*j,2)}, {vr(vPB+2*j,2)}")
        for P in range(3):
            for j in range(4 * P, min(4 * P + 4, 10)):
                c(f"v_lshlrev_b32 v{vS0+2*j}, 16, v{vXP+j}")
                c(f"v_and_b32 v{vS0+2*j+1}, s{sMASK}, v{vXP+j}")
            for j in range(4 * P, min(4 * P + 4, 10)):
                c(f"v_pk_add_f32 {vr(vSUM+2*j,2)}, {vr(vSUM+2*j,2)}, {vr(vS0+2*j,2)}")
            for j in range(4 * P, min(4 * P + 4, 10)):
                c(f"v_cvt_pk_bf16_f32 v{rs+j}, v{vSUM+2*j}, v{vSUM+2*j+1}")
            if P < 2:
                c(f"ds_write_b128 v{t+1}, {vr(rs+4*P,4)} offset:{64*P}")
            else:
                c(f"ds_write_b64 v{t+2}, {vr(rs+8,2)} offset:128")
        for j in range(3):
            c(f"ds_read_b128 {vr(vPB+4*j,4)}, v{t} offset:{j*1024}")
        for j in range(3):
            if j == 2:
                c(f"s_not_b64 exec, s[{sHI}:{sHI+1}]")
            c(f"buffer_store_dwordx4 {vr(vPB+4*j,4)}, v{t+3+j}, s[{sOUT}:{sOUT+3}], s{sT} offen {o.get('ost', '').replace('+', ' ')}")
        c("s_mov_b64 exec, -1")

    def build(self):
        c = self.c
        self.prologue()
        self.phase1()
        self.attention()
        self.phase3()
        self.phase4()
        self.phase5()
        if self.o.get('stamps'):
            c("s_waitcnt vmcnt(0) lgkmcnt(0)")
            self.stamp("end")
            self.dump_stamps()
        if self.o.get('probe'):
            c("s_waitcnt vmcnt(0) lgkmcnt(0)")
            self.stamp("end")
            if 'pmask' in self.o:
                c(f"s_and_b32 s{sT}, s2, {self.o['pmask']}")
                c(f"s_cmp_lg_u32 s{sT}, {self.o['pval']}")
                c("s_cbranch_scc1 Lend")
            if self.o.get('pmin'):
                c(f"s_load_dwordx2 s[{sDBG}:{sDBG+1}], s[0:1], 56")
                c(f"s_not_b32 s{sT}, s{sST}")
                c(f"v_mov_b32 v2, s{sT}")
                c("v_mov_b32 v3, 0")
                c("s_mov_b64 exec, 1")
                c(f"global_atomic_umax v3, v2, s[{sDBG}:{sDBG+1}] sc1")
                c(f"s_sub_u32 s{sST}, s{sST}, 1000")
                c("Lprobe0:")
                c(f"s_memrealtime s[{sTM}:{sTM+1}]")
                c("s_waitcnt lgkmcnt(0)")
                c(f"s_sub_u32 s{sT}, s{sTM}, s{sST}")
                c(f"s_cmp_lt_i32 s{sT}, 0")
                c("s_cbranch_scc1 Lprobe0")
                c(f"global_load_dword v2, v3, s[{sDBG}:{sDBG+1}] sc1")
                c(f"v_readfirstlane_b32 s{sT}, v2")
                c(f"s_not_b32 s{sST}, s{sT}")
                c(f"s_add_u32 s{sST}, s{sST}, 1000")
            c("Lprobe:")
            c(f"s_memrealtime s[{sTM}:{sTM+1}]")
            c("s_waitcnt lgkmcnt(0)")
            c(f"s_sub_u32 s{sT}, s{sTM}, s{sST}")
            c(f"s_cmp_lt_i32 s{sT}, 0")
            c("s_cbranch_scc1 Lprobe")
        c("s_endpgm")
        c.add(self.ool.ins)
        c("Lend:")
        body = finalize(c)
        return f"""; Fused pre-LN sliding-window attention block + SiLU FFN (generated by work/gen.py)
; @launch grid=(256,1,1) block=(256,1,1) lds=163840
.amdgcn_target "amdgcn-amd-amdhsa--gfx950"
.text
.globl {NAME}_kernel
.p2align 8
.type {NAME}_kernel,@function
{NAME}_kernel:
{body}
  s_endpgm
Lcode_end:
.section .rodata,"a"
.p2align 6
.amdhsa_kernel {NAME}_kernel
  .amdhsa_next_free_vgpr 512
  .amdhsa_next_free_sgpr 102
  .amdhsa_accum_offset 256
  .amdhsa_group_segment_fixed_size 0
  .amdhsa_kernarg_size 72
  .amdhsa_user_sgpr_count 2
  .amdhsa_user_sgpr_kernarg_segment_ptr 1
  .amdhsa_system_sgpr_workgroup_id_x 1
.end_amdhsa_kernel
"""


def generate(**opt):
    g = Gen(opt)
    return g.build(), g


if __name__ == "__main__":
    opt = {}
    out = None
    for a in sys.argv[1:]:
        if '=' in a:
            k, v = a.split('=', 1)
            opt[k] = int(v) if v.lstrip('-').isdigit() else v
        else:
            out = a
    asm, g = generate(**opt)
    open(out or f"cdna_kernels/{NAME}.s", "w").write(asm)
    print(len(asm.splitlines()), "lines")
```

```python
import sys, struct
from dsl import *

NAME = "sequential_preLN__sliding_block__dense_activation_silu__prompt"

QK_OFF = 0
V_OFF = QK_OFF + 32 * 163840
O_OFF = V_OFF + 64 * 40960
H_OFF = O_OFF + 32 * 81920
HST_OFF = H_OFF + 128 * 20480
H1_OFF = HST_OFF + 128 * 1024
WO_OFF = H1_OFF + 128 * 57344
W1_OFF = WO_OFF + 8 * 102400
W2_OFF = W1_OFF + 16 * 143360
PX_OFF = W2_OFF + 8 * 286720
RST_OFF = PX_OFF + 1024 * 2560
CST_OFF = RST_OFF + 16 * 20480
FL_OFF = CST_OFF + 16 * 10240
F2_OFF = FL_OFF + 4096
F4_OFF = FL_OFF + 4 * 4096
FW1_OFF = FL_OFF + 16 * 4096
FX_OFF = FW1_OFF + 65536
FW2_OFF = FX_OFF + 32768
F1_OFF = FW2_OFF + 65536
FWO_OFF = F1_OFF + 32768
F3_OFF = FL_OFF + 72 * 4096
F5_OFF = F3_OFF + 131072
EP_OFF = FL_OFF + 8 * 4096
ST_OFF = FL_OFF + 136 * 4096
WS_SIZE = ST_OFF + 256 * 4 * 128

TAGC = 0x9E3779B8
SPIN_MAX = 200000
OOB = 0x7fff0000


def f2u(x):
    return struct.unpack('<I', struct.pack('<f', x))[0]


sX, sWQ, sWS, sKV, sOUT, sRP = 4, 8, 12, 16, 20, 24
sDBG, sWO, sW1, sW2 = 28, 30, 32, 34
sTP = 3
sW, sTAG, sRB1, sCT, sU, sNB, sRB, sFB = 36, 37, 38, 39, 40, 41, 42, 43
sHI = 44
sMASK = 46
sHEAD = 47
sT = 48
sST = 101
sK8, sSAME, sXCC = 85, 86, 87
sVM = 88
sWOO, sW1O, sW2B, sW2O = 90, 91, 92, 93
sFLB = 94
sW1M = 95
sTM = 96
sRPD, sRPF, sRPT = 98, 99, 100
WSR = f"s[{sWS}:{sWS+3}]"

vL16 = 2
vFLG = 254


class Gen:
    def __init__(self, opt):
        self.o = opt
        self.c = Code()
        self.ool = Code()
        self.stamp_names = []
        self.lab = 0
        self.ld = opt.get('ld', 'sc1')

    def label(self, base):
        self.lab += 1
        return f"L{base}_{self.lab}"

    def sub(self, fn, *a):
        k = Code()
        old, self.c = self.c, k
        fn(*a)
        self.c = old
        return k.ins

    def stamp(self, name, group='main'):
        if self.o.get('probe') and name in ('t0', self.o['probe']):
            self.c(f"s_memrealtime s[{sTM}:{sTM+1}]")
            self.c("s_waitcnt lgkmcnt(0)")
            self.c(f"s_add_u32 s{sST}, s{sTM}, 6000")
        if not self.o.get('stamps'):
            return
        if self.o.get('zoom', 'main') not in group.split() and name != 't0':
            return
        if name in self.stamp_names:
            idx = self.stamp_names.index(name)
        else:
            idx = len(self.stamp_names)
            self.stamp_names.append(name)
        assert idx < 32, name
        c = self.c
        c(f"{'s_memtime' if self.o.get('cyc') else 's_memrealtime'} s[{sTM}:{sTM+1}]")
        c("s_waitcnt lgkmcnt(0)")
        c(f"v_writelane_b32 v255, s{sTM}, {idx}")

    def dump_stamps(self):
        if not self.o.get('stamps'):
            return
        c = self.c
        c(f"s_lshl_b32 s{sT}, s2, 2")
        c(f"s_add_u32 s{sT}, s{sT}, s{sW}")
        c(f"s_lshl_b32 s{sT}, s{sT}, 7")
        c(f"s_add_u32 s{sT}, s{sT}, {ST_OFF}")
        c("v_lshlrev_b32 v3, 2, v1")
        c(f"s_not_b64 exec, s[{sHI}:{sHI+1}]")
        c(f"buffer_store_dword v255, v3, {WSR}, s{sT} offen")
        c("s_mov_b64 exec, -1")

    def prologue(self):
        c, o = self.c, self.o
        if o.get('stamps'):
            c("v_mov_b32 v255, 0")
        self.stamp("t0")
        c("s_cmp_ge_u32 s2, 256")
        c("s_cbranch_scc1 Lend")
        for _ in range(o.get('x_delay', 0)):
            c("s_sleep 32")
        c(f"s_load_dwordx2 s[{sX}:{sX+1}], s[0:1], 0")
        c(f"s_load_dwordx2 s[{sWQ}:{sWQ+1}], s[0:1], 8")
        c(f"s_load_dwordx2 s[{sWS}:{sWS+1}], s[0:1], 64")
        c(f"s_load_dwordx2 s[{sWO}:{sWO+1}], s[0:1], 16")
        c(f"s_load_dwordx4 s[{sW1}:{sW1+3}], s[0:1], 32")
        c(f"s_load_dwordx2 s[{sOUT}:{sOUT+1}], s[0:1], 48")
        c(f"s_getpc_b64 s[{sT}:{sT+1}]")
        c(f"s_lshr_b32 s{sT+3}, s2, 3")
        c(f"s_lshl_b32 s{sT+2}, s{sT+3}, 11")
        c(f"v_lshl_add_u32 v2, v0, 7, s{sT+2}")
        c("v_min_u32 v2, Lcode_end-Lpc0-256, v2")
        c("v_cmp_gt_u32 vcc, 16, v0")
        c(f"s_and_saveexec_b64 s[{sT+4}:{sT+5}], vcc")
        c("s_cbranch_execz Lpc0")
        c.cond(True)
        c(f"global_load_dword v253, v2, s[{sT}:{sT+1}]")
        c.ins[-1].wr = []
        c.cond(False)
        c("Lpc0:")
        c("s_mov_b64 exec, -1")
        c("v_lshrrev_b32 v2, 6, v0")
        c("v_and_b32 v1, 63, v0")
        c(f"v_readfirstlane_b32 s{sW}, v2")
        c(f"s_and_b32 s{sT}, s2, 7")
        if o.get('p1map', 'C') == 'C':
            c(f"s_lshr_b32 s{sRB1}, s{sT}, 1")
            c(f"s_and_b32 s{sT+2}, s{sT+3}, 3")
            c(f"s_lshl2_add_u32 s{sRB1}, s{sRB1}, s{sT+2}")
            c(f"s_lshr_b32 s{sT+2}, s{sT+2}, 1")
            c(f"s_lshr_b32 s{sCT}, s{sT+3}, 2")
            c(f"s_cmp_eq_u32 s{sCT}, 7")
            c(f"s_cselect_b32 s{sT+2}, s{sT+2}, 0")
            c(f"s_xor_b32 s{sT+2}, s{sT+2}, s{sT}")
            c(f"s_and_b32 s{sT+2}, s{sT+2}, 1")
            c(f"s_lshl3_add_u32 s{sCT}, s{sT+2}, s{sCT}")
        elif o.get('p1map') == 'A':
            c(f"s_lshr_b32 s{sRB1}, s{sT+3}, 4")
            c(f"s_lshl1_add_u32 s{sRB1}, s{sT}, s{sRB1}")
            c(f"s_and_b32 s{sCT}, s{sT+3}, 15")
        else:
            c(f"s_and_b32 s{sRB1}, s{sT}, 1")
            c(f"s_and_b32 s{sT+2}, s{sT+3}, 7")
            c(f"s_lshl3_add_u32 s{sRB1}, s{sRB1}, s{sT+2}")
            c(f"s_lshr_b32 s{sCT}, s{sT}, 1")
            c(f"s_lshr_b32 s{sT+2}, s{sT+3}, 3")
            c(f"s_lshl2_add_u32 s{sCT}, s{sCT}, s{sT+2}")
        for r, size in ((sX, 2048 * 1280), (sWQ, 640 * 3840)):
            c(f"s_mov_b32 s{r+2}, {size}")
            c(f"s_mov_b32 s{r+3}, 0x20000")

    def base_setup(self):
        c = self.c
        c(f"s_add_u32 s{sTM}, s{sWS}, {EP_OFF}")
        c(f"s_addc_u32 s{sTM+1}, s{sWS+1}, 0")
        c(f"s_load_dword s{sTAG}, s[{sTM}:{sTM+1}], 0")
        for r, size in ((sWS, WS_SIZE), (sOUT, 2048 * 1280)):
            c(f"s_mov_b32 s{r+2}, {size}")
            c(f"s_mov_b32 s{r+3}, 0x20000")
        c(f"s_mov_b32 s{sHI}, 0")
        c(f"s_mov_b32 s{sHI+1}, -1")
        c(f"s_mov_b32 s{sMASK}, 0xffff0000")
        c(f"s_mov_b32 s{sFLB}, {FL_OFF}")

    def common_setup(self):
        c = self.c
        c(f"s_and_b32 s{sT}, s2, 7")
        c(f"s_lshr_b32 s{sT+1}, s2, 3")
        c(f"s_lshr_b32 s{sU}, s{sT+1}, 3")
        c(f"s_lshl2_add_u32 s{sU}, s{sT}, s{sU}")
        c(f"s_and_b32 s{sNB}, s{sT+1}, 7")
        c(f"s_lshr_b32 s{sRB}, s{sU}, 1")
        c(f"s_and_b32 s{sK8}, s2, 1")
        c(f"s_lshl3_add_u32 s{sFB}, s{sK8}, s{sNB}")
        c(f"s_andn2_b32 s{sTP}, s{sU}, 4")
        c(f"s_and_b32 s{sT}, s{sW}, 2")
        c(f"s_lshl1_add_u32 s{sTP}, s{sT}, s{sTP}")
        c(f"s_and_b32 s{sT}, s{sW}, 1")
        c(f"s_lshl1_add_u32 s{sTP}, s{sTP}, s{sT}")
        c(f"s_lshl2_add_u32 s{sHEAD}, s{sNB}, s{sW}")
        c(f"s_getreg_b32 s{sXCC}, hwreg(HW_REG_XCC_ID, 0, 4)")
        c(f"v_lshlrev_b32 v{vL16}, 4, v1")
        c(f"s_mul_i32 s{sWOO}, s{sHEAD}, 25600")
        c(f"s_add_u32 s{sWOO}, s{sWOO}, {WO_OFF}")
        c(f"s_lshl2_add_u32 s{sW1O}, s{sFB}, s{sW}")
        c(f"s_mul_i32 s{sW1O}, s{sW1O}, {35*1024}")
        c(f"s_add_u32 s{sW1O}, s{sW1O}, {W1_OFF}")
        c(f"s_mul_i32 s{sW1M}, s{sW}, {35*1024}")
        c(f"s_lshl2_add_u32 s{sK8}, s{sK8}, s{sW}")
        c(f"s_lshl3_add_u32 s{sW2B}, s{sNB}, s{sK8}")
        c(f"s_mul_i32 s{sW2B}, s{sW2B}, {35*1024}")
        c(f"s_add_u32 s{sW2B}, s{sW2B}, {W2_OFF}")
        c(f"s_mul_i32 s{sT}, s{sW}, 640")
        c(f"s_lshl_b32 s{sT+1}, s{sNB}, 12")
        c(f"s_add_u32 s{sT}, s{sT}, s{sT+1}")
        c(f"s_add_u32 s{sT}, s{sT}, {FWO_OFF - FL_OFF}")
        c(f"v_min_u32 v{self.vWOF}, 4, v1")
        c(f"v_lshl_add_u32 v{self.vWOF}, v{self.vWOF}, 7, s{sT}")

    def tag_ready(self):
        self.c(f"s_add_u32 s{sTAG}, s{sTAG}, {TAGC}")

    def flag_store(self, so, R=WSR):
        c = self.c
        c(f"v_mov_b32 v{vFLG}, s{sTAG}")
        c(f"v_lshlrev_b32 v253, 2, v1")
        c(f"s_not_b64 exec, s[{sHI}:{sHI+1}]")
        h = c(f"buffer_store_dword v{vFLG}, v253, {R}, s{so} offen sc1")
        c("s_mov_b64 exec, -1")
        return h

    def poll(self, va, vd=vFLG, span=False, sleep=0):
        c = self.c
        L, Ld = self.label("pl"), self.label("pd")
        n = sT + 12
        c(f"s_mov_b32 s{n}, {SPIN_MAX}")
        c(f"{L}:")
        c(f"buffer_load_dword v{vd}, v{va}, {WSR}, s{sFLB} offen sc1")
        c(f"s_sub_u32 s{n}, s{n}, 1")
        c(f"s_cbranch_scc1 {Ld}")
        c("s_waitcnt vmcnt(0)")
        self.tag_cmp(vd, span)
        if sleep:
            c(f"s_cbranch_vccz {Ld}")
            c(f"s_sleep {sleep}")
            c(f"s_branch {L}")
        else:
            c(f"s_cbranch_vccnz {L}")
        c(f"{Ld}:")
        c("s_waitcnt vmcnt(0)")

    def tag_cmp(self, vd, span):
        c = self.c
        if span:
            c(f"v_subrev_u32 v253, s{sTAG}, v{vd}")
            c(f"v_cmp_le_u32 vcc, 16, v253")
        else:
            c(f"v_cmp_ne_u32 vcc, s{sTAG}, v{vd}")

    def flag_check(self, vd, va, span=False, sleep=4):
        c = self.c
        Ls, Lb = self.label("fs"), self.label("fb")
        self.tag_cmp(vd, span)
        c("s_nop 3")
        c(f"s_cbranch_vccnz {Ls} ; noflush")
        c(f"{Lb}: ; noflush")
        old, self.c = self.c, self.ool
        self.c(f"{Ls}:")
        self.c("s_nop 15")
        self.poll(va, vd, span, sleep=sleep)
        self.c(f"s_branch {Lb}")
        self.c = old

    def flag_store_near(self, so):
        c = self.c
        Lf, Lb = self.label("far"), self.label("near")
        c(f"v_mov_b32 v{vFLG}, s{sTAG}")
        c(f"s_cmp_eq_u32 s{sSAME}, 0")
        c("s_mov_b64 exec, 1")
        c(f"s_cbranch_scc1 {Lf} ; noflush")
        c(f"buffer_store_dword v{vFLG}, off, {WSR}, s{so}")
        c(f"{Lb}: ; noflush")
        c("s_mov_b64 exec, -1")
        k = self.ool
        k(f"{Lf}:")
        k(f"buffer_store_dword v{vFLG}, off, {WSR}, s{so} sc1")
        k(f"s_branch {Lb}")

    NS = 4
    P1_WB = 4 * 16384
    P1_EX = 153600
    vXD, vWD, vXA, vWA, vXS, vWS_, vSEL, vSQ, vTMP, vRS, vCS = 4, 8, 12, 14, 18, 22, 24, 23, 28, 36, 40
    vPA = 44
    vRP = 52
    vWOF, vWOD = 59, 60
    vACC, vFR, vSF, vEP = 64, 128, 192, 208
    sKC, sKX, sKW, sW4 = sT + 8, sT + 9, sT + 10, sT + 11
    sSS, sONE = 76, 77

    def p1_setup(self):
        c, o = self.c, self.o
        t = self.vTMP
        if o.get('rot', 'A') == 'A':
            c(f"s_lshr_b32 s{sT}, s2, 1")
            c(f"s_xor_b32 s{sT}, s{sT}, s2")
        else:
            c(f"s_xor_b32 s{sT}, s{sRB1}, s{sCT}")
        c(f"s_and_b32 s{sT}, s{sT}, 1")
        c(f"s_mul_i32 s{self.sKC}, s{sT}, 5")
        c(f"s_lshl_b32 s{self.sW4}, s{sW}, 12")
        c(f"s_lshl2_add_u32 s{sT}, s{sRB1}, s{sW}")
        c(f"s_mul_i32 s{sT}, s{sT}, {32*1280}")
        c(f"v_lshrrev_b32 v{t}, 3, v1")
        c(f"v_mul_u32_u24 v{t}, 1280, v{t}")
        c(f"v_lshrrev_b32 v{t+1}, 4, v1")
        c(f"v_and_b32 v{t+2}, 7, v1")
        c(f"v_xor_b32 v{t+2}, v{t+2}, v{t+1}")
        c(f"v_lshlrev_b32 v{t+2}, 4, v{t+2}")
        c(f"v_add3_u32 v{self.vXD}, v{t+2}, v{t}, s{sT}")
        c(f"v_xor_b32 v{t+3}, 64, v{self.vXD}")
        c(f"s_cmp_ge_u32 s{sCT}, 10")
        c(f"s_cselect_b32 s{sT+1}, 10240, 0")
        c(f"s_add_u32 s{sT}, s{sT+1}, {10240-1024}")
        c(f"s_sub_u32 s{sT+1}, {2*(10240-1024)}, s{sT+1}")
        c(f"v_add_u32 v{self.vXD+1}, s{sT}, v{t+3}")
        c(f"v_add_u32 v{self.vXD+2}, s{sT+1}, v{self.vXD}")
        c(f"v_add_u32 v{self.vXD+3}, {3*(10240-1024)}, v{t+3}")
        c(f"s_mul_i32 s{sT}, s{sW}, {16*3840}")
        c(f"s_lshl_b32 s{sT+1}, s{sCT}, 8")
        c(f"s_add_u32 s{sT}, s{sT}, s{sT+1}")
        c(f"v_mul_u32_u24 v{t}, 3840, v{t+1}")
        c(f"v_and_b32 v{t+2}, 15, v1")
        c(f"v_lshlrev_b32 v{t+3}, 1, v{t+1}")
        c(f"v_xor_b32 v{t+2}, v{t+2}, v{t+3}")
        c(f"v_lshlrev_b32 v{t+2}, 4, v{t+2}")
        c(f"v_add3_u32 v{self.vWD}, v{t+2}, v{t}, s{sT}")
        c(f"v_xor_b32 v{t+3}, 128, v{self.vWD}")
        for j in range(1, 4):
            c(f"v_add_u32 v{self.vWD+j}, {j*(4*3840-1024)}, v{self.vWD if j < 2 else t+3}")

    def p1_dma(self, s):
        slot = s % self.NS
        pre = []
        if s > 0:
            pre += [I(f"s_add_u32 s{self.sKC}, s{self.sKC}, 1"),
                    I(f"s_cmp_eq_u32 s{self.sKC}, 10"),
                    I(f"s_cselect_b32 s{self.sKC}, 0, s{self.sKC}")]
        items = []
        for j in range(4):
            d = I(f"buffer_load_dwordx4 v{self.vXD+j}, s[{sX}:{sX+3}], s{self.sKX} offen offset:{j*1024} lds")
            items.append(([I(f"s_add_u32 m0, s{self.sW4}, {slot*16384}"), I(f"s_lshl_b32 s{self.sKX}, s{self.sKC}, 7")] if j == 0 else []) + [d])
        for j in range(4):
            d = I(f"buffer_load_dwordx4 v{self.vWD+j}, s[{sWQ}:{sWQ+3}], s{self.sKW} offen offset:{j*1024} lds")
            items.append(([I(f"s_add_u32 m0, s{self.sW4}, {self.P1_WB + slot*16384}"), I(f"s_mul_i32 s{self.sKW}, s{self.sKC}, {64*3840}")] if j == 0 else []) + [d])
        return pre, items, d

    def p1_setup2(self):
        c = self.c
        t = self.vTMP
        c(f"s_lshr_b32 s{sT}, s{sW}, 1")
        c(f"s_and_b32 s{sT+1}, s{sW}, 1")
        c(f"v_and_b32 v{t}, 15, v1")
        c(f"s_lshl_b32 s{sT+2}, s{sT}, 13")
        c(f"v_lshl_add_u32 v{t}, v{t}, 7, s{sT+2}")
        c(f"v_lshrrev_b32 v{t+5}, 4, v1")
        c(f"v_bfe_u32 v{t+2}, v1, 1, 3")
        c(f"v_xor_b32 v{t+3}, v{t+2}, v{t+5}")
        c(f"v_lshl_add_u32 v{self.vXA}, v{t+3}, 4, v{t}")
        c(f"v_xor_b32 v{self.vXA+1}, 64, v{self.vXA}")
        c(f"v_bfe_u32 v{t+3}, v1, 2, 2")
        c(f"v_lshl_add_u32 v{t}, v{t+5}, 3, v{t+3}")
        c(f"v_lshlrev_b32 v{t}, 8, v{t}")
        c(f"v_bfe_u32 v{t+5}, v1, 2, 3")
        c(f"v_lshl_add_u32 v{t}, v{t+5}, 5, v{t}")
        c(f"v_and_b32 v{t+5}, 3, v1")
        c(f"v_lshlrev_b32 v{t+5}, 3, v{t+5}")
        c(f"v_add_u32 v{t+5}, {self.P1_WB}, v{t+5}")
        c(f"v_add_u32 v{t}, v{t}, v{t+5}")
        c(f"s_lshl_b32 s{sT+2}, s{sT+1}, 7")
        c(f"v_xor_b32 v{self.vWA}, s{sT+2}, v{t}")
        for n in range(1, 4):
            c(f"v_xor_b32 v{self.vWA+n}, {n*32}, v{self.vWA}")

    def p1_setup3(self, k0):
        c = self.c
        t = self.vTMP
        c(f"v_and_b32 v{t+4}, 31, v1")
        c(f"v_lshrrev_b32 v{t+1}, 5, v1")
        c(f"s_and_b32 s{sT+3}, s{self.sSS}, 3")
        c(f"s_lshl_b32 s{sT+3}, s{sT+3}, 14")
        c(f"s_add_u32 s{sT+2}, s{sT+3}, s{self.sW4}")
        c(f"v_add_u32 v{t+5}, s{sT+3}, v{t+5}")
        c(f"v_lshl_add_u32 v{t}, v{t+4}, 7, s{sT+2}")
        c(f"v_xor_b32 v{t+2}, v{t+2}, v{t+1}")
        c(f"v_lshl_add_u32 v{self.vXS}, v{t+2}, 4, v{t}")
        for p in range(1, 4):
            c(f"v_xor_b32 v{self.vXS+p}, {p*32}, v{self.vXS}")
        c(f"v_lshl_add_u32 v{t}, v{t+1}, 3, v{t+3}")
        c(f"v_lshl_add_u32 v{t}, v{t}, 8, v{t+5}")
        c(f"v_lshl_add_u32 v{t+3}, v{t+1}, 2, v{t+3}")
        c(f"v_bfe_u32 v{t+2}, v1, 4, 1")
        c(f"v_xor_b32 v{t+3}, v{t+3}, v{t+2}")
        c(f"v_lshl_add_u32 v{t}, v{t+3}, 5, v{t}")
        c(f"s_lshl_b32 s{sT+2}, s{sW}, 6")
        c(f"v_xor_b32 v{self.vWS_}, s{sT+2}, v{t}")
        c(f"s_mov_b32 s{self.sONE}, 0x3f803f80")
        pa = self.vPA
        c(f"v_mov_b32 v{t+3}, {OOB}")
        for k, (role, other, off, sh) in enumerate(((sRB1, 75, RST_OFF, 4), (sCT, 74, CST_OFF, 3))):
            c(f"s_lshl2_add_u32 s{sT+2}, s{role}, s{sW}")
            c(f"s_mul_i32 s{sT+2}, s{sT+2}, {320 << sh}")
            c(f"s_add_u32 s{sT+2}, s{sT+2}, {off}")
            c(f"v_lshl_add_u32 v{t}, v{t+4}, {sh}, s{sT+2}")
            c(f"v_mul_u32_u24 v{t+2}, {160 << sh}, v{t+1}")
            c(f"v_add_u32 v{pa+2+k}, v{t}, v{t+2}")
            c(f"s_lshl_b32 s{sT+2}, s{k0}, {5 + sh}")
            c(f"v_add_u32 v{t}, s{sT+2}, v{t}")
            if k == 0:
                c(f"s_cmp_ge_u32 s{sCT}, 10")
                c(f"s_cselect_b32 s{sT+2}, 48, 0")
                c(f"v_lshrrev_b32 v{t+2}, 1, v1")
                c(f"v_xor_b32 v{t+2}, v{t+2}, v1")
                c(f"v_and_b32 v{t+2}, 8, v{t+2}")
                c(f"v_mul_u32_u24 v{t+2}, s{sT+2}, v{t+2}")
                c(f"v_xor_b32 v{t}, v{t}, v{t+2}")
            c(f"s_cmp_lt_u32 s{other}, 5")
            c(f"s_cselect_b64 s[{sT+2}:{sT+3}], s[{sHI}:{sHI+1}], -1")
            c(f"v_cndmask_b32 v{pa+k}, v{t}, v{t+3}, s[{sT+2}:{sT+3}]")
        c(f"s_lshl_b32 s{sT+2}, s{sW}, 7")
        c(f"s_add_u32 s{sT+2}, s{sT+2}, {self.P1_EX}")
        c(f"v_lshl_add_u32 v{pa+6}, v{t+4}, 2, s{sT+2}")

    def fx_publish(self):
        return [I(f"s_lshl3_add_u32 s{sT}, s{sU}, s{sNB}"),
                I(f"s_lshl_b32 s{sT}, s{sT}, 7"),
                I(f"s_add_u32 s{sT}, s{sT}, {FX_OFF}"),
                I(f"s_add_u32 s{sT+1}, s{sTAG}, s{sXCC}"),
                I(f"v_mov_b32 v61, s{sT+1}"),
                I(f"v_lshrrev_b32 v62, 5, v0"),
                I(f"v_lshlrev_b32 v62, 27, v62"),
                I(f"v_lshl_add_u32 v62, v0, 2, v62"),
                I(f"buffer_store_dword v61, v62, {WSR}, s{sT} offen sc1")]

    def p1_reads(self, s, p):
        slot = s % self.NS
        fr = self.vFR + 32 * p
        X = lambda a: [I(f"ds_read_b128 {vr(fr+4*a, 4)}, v{self.vXA+p} offset:{slot*16384 + a*2048}")]
        Wt = lambda n: [I(f"ds_read_b64_tr_b16 {vr(fr+16+4*n+2*t, 2)}, v{self.vWA+n} offset:{slot*16384 + p*8192 + t*1024}") for t in range(2)]
        return X(0) + Wt(0) + Wt(1) + X(1) + Wt(2) + X(2) + Wt(3) + X(3)

    def p1_stat_reads(self, s):
        sf = self.vSF
        lab = self.label("sc")
        r = []
        for q in range(4):
            r.append(I(f"ds_read_b128 {vr(sf+4*q, 4)}, v{self.vXS+q}"))
            r += [I(f"ds_read_b64_tr_b16 {vr(sf+16+4*q+2*j, 2)}, v{self.vWS_} offset:{q*4096 + j*1024}") for j in range(2)]
        for x in r:
            x.wr = []; x.cond = True
        return [I(f"s_cmp_lg_u32 s{self.sSS}, {s}"), I(f"s_cbranch_scc1 {lab} ; noflush")] + r + [I(f"{lab}: ; noflush")]

    def p1_stat_sums(self):
        k = self.c
        sf, u, pa = self.vSF, self.vRS, self.vPA
        for j in range(16):
            k(f"v_dot2_f32_bf16 v{u}, v{sf+j}, s{self.sONE}, {0 if j == 0 else f'v{u}'}")
            k(f"v_dot2_f32_bf16 v{u+2}, v{sf+j}, v{sf+j}, {0 if j == 0 else f'v{u+2}'}")
            k(f"v_dot2_f32_bf16 v{u+4}, v{sf+16+j}, s{self.sONE}, {0 if j == 0 else f'v{u+4}'}")

    def p1_stat_publish(self):
        k = self.c
        sf, u, pa = self.vSF, self.vRS, self.vPA
        for j in (0, 2, 4):
            k(f"v_mov_b32 v{u+j+1}, v{u+j}")
        for j in (0, 2, 4):
            k(f"v_permlane32_swap_b32 v{u+j}, v{u+j+1}")
        for j in (0, 2, 4):
            k(f"v_add_f32 v{u+j}, v{u+j}, v{u+j+1}")
        for j in (0, 2, 4):
            k(f"v_mov_b32 v{u+j+1}, s{sTAG}")
        k(f"buffer_store_dwordx4 {vr(u,4)}, v{pa}, {WSR}, 0 offen sc1")
        k(f"buffer_store_dwordx2 {vr(u+4,2)}, v{pa+1}, {WSR}, 0 offen sc1")

    def p1_stat_loads(self):
        q, pa = self.vSF, self.vPA
        return ([I(f"buffer_load_dwordx4 {vr(q+4*i,4)}, v{pa+2}, {WSR}, 0 offen offset:{i*512} sc1") for i in range(5)] +
                [I(f"buffer_load_dwordx2 {vr(q+20+2*i,2)}, v{pa+3}, {WSR}, 0 offen offset:{i*256} sc1") for i in range(5)])

    def p1_stat_tags(self):
        c = self.c
        q, x = self.vSF, self.vPA + 7
        c(f"v_xor_b32 v{x}, s{sTAG}, v{q+29}")
        for i in range(14):
            c(f"v_bitop3_b32 v{x}, v{q+1+2*i}, s{sTAG}, v{x} bitop3:0xbe")
        c(f"v_cmp_ne_u32 vcc, 0, v{x}")

    def p1_stat_check(self):
        c = self.c
        Ls, Lb, L = self.label("ss"), self.label("sb"), self.label("sl")
        c("s_nop 3")
        c(f"s_cbranch_vccnz {Ls} ; noflush")
        c(f"{Lb}: ; noflush")
        old, self.c = self.c, self.ool
        k = self.c
        k(f"{Ls}:")
        k("s_nop 15")
        k(f"s_mov_b32 s{sT+12}, {SPIN_MAX}")
        k(f"{L}:")
        k.add(self.p1_stat_loads())
        k("s_waitcnt vmcnt(0)")
        k(f"s_sub_u32 s{sT+12}, s{sT+12}, 1")
        k(f"s_cbranch_scc1 {Lb}")
        self.p1_stat_tags()
        k(f"s_cbranch_vccz {Lb}")
        k("s_sleep 4")
        k(f"s_branch {L}")
        self.c = old

    def p1_stats_finish(self, isv):
        c = self.c
        q, b, pa = self.vSF, 224, self.vPA
        c(f"v_add_f32 v{b}, v{q}, v{q+4}")
        c(f"v_add_f32 v{b+1}, v{q+2}, v{q+6}")
        c(f"v_add_f32 v{b+10}, v{q+20}, v{q+22}")
        for i in range(2, 5):
            c(f"v_add_f32 v{b}, v{b}, v{q+4*i}")
            c(f"v_add_f32 v{b+1}, v{b+1}, v{q+4*i+2}")
            c(f"v_add_f32 v{b+10}, v{b+10}, v{q+20+2*i}")
        c(f"v_mov_b32 v{b+2}, v{b}")
        c(f"v_mov_b32 v{b+3}, v{b+1}")
        c(f"v_mov_b32 v{b+11}, v{b+10}")
        c(f"v_permlane32_swap_b32 v{b}, v{b+2}")
        c(f"v_permlane32_swap_b32 v{b+1}, v{b+3}")
        c(f"v_permlane32_swap_b32 v{b+10}, v{b+11}")
        c(f"v_add_f32 v{b}, v{b}, v{b+2}")
        c(f"v_add_f32 v{b+1}, v{b+1}, v{b+3}")
        c(f"v_mul_f32 v{b}, {hex(f2u(-1.0/640))}, v{b}")
        c(f"v_mul_f32 v{b+1}, {hex(f2u(1.0/640))}, v{b+1}")
        c(f"v_add_f32 v{b+10}, v{b+10}, v{b+11}")
        c(f"v_fma_f32 v{b+1}, -v{b}, v{b}, v{b+1}")
        c(f"ds_write_b32 v{pa+6}, v{b}")
        c(f"v_max_f32 v{b+1}, 0, v{b+1}")
        c(f"v_add_f32 v{b+1}, {hex(f2u(1e-5))}, v{b+1}")
        c(f"v_rsq_f32 v{b+1}, v{b+1}")
        c(f"ds_write_b32 v{pa+6}, v{b+10} offset:1024")
        if not isv:
            c(f"v_mul_f32 v{b+1}, s{sT+7}, v{b+1}")
        c(f"ds_write_b32 v{pa+6}, v{b+1} offset:512")

    def p1_ep_prep(self, isv):
        c = self.c
        t = self.vTMP
        EX = self.P1_EX
        c(f"s_lshr_b32 s{sT}, s{sW}, 1")
        c(f"s_and_b32 s{sT+1}, s{sW}, 1")
        c(f"s_lshl1_add_u32 s{sT+2}, s{sRB1}, s{sT}")
        c(f"s_lshl1_add_u32 s{sT+3}, s{sCT}, s{sT+1}")
        c(f"s_lshl_b32 s{sT}, s{sT}, 8")
        c(f"s_add_u32 s{sT}, s{sT}, {EX}")
        c(f"s_lshl_b32 s{sT+1}, s{sT+1}, 8")
        c(f"s_add_u32 s{sT+1}, s{sT+1}, {EX+1024}")
        c(f"v_lshrrev_b32 v{t+4}, 4, v1")
        c(f"v_and_b32 v{t+5}, 15, v1")
        c(f"v_lshl_add_u32 v{t}, v{t+5}, 2, s{sT+(1 if isv else 0)}")
        c(f"v_lshl_add_u32 v{t+1}, v{t+4}, 4, s{sT+(0 if isv else 1)}")
        if isv:
            c(f"v_and_b32 v{t+2}, 32, v1")
            c(f"v_add_u32 v{t+1}, v{t+1}, v{t+2}")
        c(f"v_mul_u32_u24 v{t+4}, {(10240 if isv else 512) - 256}, v{t+4}")
        c(f"v_add_u32 v{t+4}, v{vL16}, v{t+4}")
        c(f"s_lshl4_add_u32 s{sT+13}, s{sRB1}, s{sCT}")
        c(f"s_lshl_b32 s{sT+13}, s{sT+13}, 7")
        c(f"s_add_u32 s{sT+13}, s{sT+13}, {F1_OFF}")
        if not isv:
            qs = (20 ** -0.5) * 1.4426950408889634
            c(f"s_mul_i32 s{sT+4}, s{sT+2}, 163840")
            c(f"s_lshl_b32 s{sT+5}, s{sT+3}, 13")
            c(f"s_add_u32 s{sT+4}, s{sT+4}, s{sT+5}")
            c(f"s_add_u32 s{sT+5}, s{sT+4}, 4096")
            c(f"s_cmp_lt_u32 s{sCT}, 5")
            c(f"s_cselect_b32 s{sT+7}, {hex(f2u(qs))}, 1.0")
        else:
            c(f"s_mul_i32 s{sT+4}, s{sT+2}, 81920")
            c(f"s_lshl_b32 s{sT+5}, s{sT+3}, 10")
            c(f"s_add_u32 s{sT+4}, s{sT+4}, s{sT+5}")
            c(f"s_add_u32 s{sT+4}, s{sT+4}, {V_OFF - 10*2048}")
            c(f"s_add_u32 s{sT+5}, s{sT+4}, 40960")

    def p1_ep_reads(self, isv):
        t, e, u = self.vTMP, self.vEP, self.vRS
        r = []
        if not isv:
            r += [I(f"ds_read2_b32 {vr(u+2*a,2)}, v{t} offset0:{16*a} offset1:{128+16*a}") for a in range(4)]
            r += [I(f"ds_read_b128 {vr(e+4*n, 4)}, v{t+1} offset:{64*n}") for n in range(4)]
        else:
            r += [I(f"ds_read2_b32 {vr(u+2*k,2)}, v{t} offset0:{32*k} offset1:{32*k+16}") for k in range(2)]
            for a in range(4):
                off = (32 * (a >> 1) + 8 * (a & 1)) * 4
                r.append(I(f"ds_read_b128 {vr(e+4*a, 4)}, v{t+1} offset:{off}"))
                r.append(I(f"ds_read_b128 {vr(e+16+4*a, 4)}, v{t+1} offset:{512+off}"))
        return r

    P1_ORDER = [(0, 0), (0, 1), (1, 0), (1, 1), (0, 2), (1, 2), (2, 0), (2, 1), (2, 2), (0, 3), (1, 3), (2, 3), (3, 0), (3, 1), (3, 2), (3, 3)]

    P1_SNAKE = [(0, 0), (0, 1), (1, 1), (1, 0), (1, 2), (0, 2), (2, 2), (2, 1), (2, 0), (2, 3), (1, 3), (0, 3), (3, 3), (3, 2), (3, 1), (3, 0)]

    def p1_loop(self, isv, h0, h1):
        c, o = self.c, self.o
        hd = {0: h0, 1: h1}
        pa = self.vPA
        c.wait(h0)
        c("s_barrier")
        self.stamp("b0", "main p1")
        R = self.p1_reads(0, 0)
        c.add(R)
        grp = []
        for q in range(2, 10):
            pre, dma, hd[q] = self.p1_dma(q)
            dma[0] = pre + dma[0]
            grp += [dma[:4], dma[4:]]
        c.add(grp.pop(0))
        ramp = {0: (), 1: (0,), 2: (0, 1), 3: (0, 2), 4: (1, 2)}[o.get('ramp', 4)]
        extra = {k: [] for k in range(20)}
        mem = {k: [] for k in range(20)}
        tail = {k: [] for k in range(20)}
        k0, k1, k2 = o.get('rpa', 4), o.get('rpb', 9), o.get('rpc', 15)
        cs = self.sub(self.tag_ready) + self.late_setup
        per = -(-len(cs) // k0)
        for k in range(k0):
            extra[k] = [copy_ins(x) for x in cs[k * per:(k + 1) * per]]
        cs = self.fx_publish() + self.later_setup + glue(self.sub(self.p1_ep_prep, isv))
        per = -(-len(cs) // (16 - k0))
        for k in range(16 - k0):
            extra[k0 + k] = [copy_ins(x) for x in cs[k * per:(k + 1) * per]]
        assert k1 % 2 and k1 + 5 <= k2 <= 17 and k0 + 3 <= k1
        d, rd, stv, fs = self.rp_unit_items([24, 224, 228])
        d1, rd1, pad, stv1 = self.rp_unit1_items(232)
        d += d1; stv += stv1
        for j in range(3):
            tail[k0 + j] = d[2 * j:2 * j + 2]
        ns = min(o.get('rpn', 5), k2 - k1 - 2)
        for j in range(5):
            mem[k1 + 2 + j * ns // 5].append(stv[j])
        bwait = {k1: d[-1][-1]}
        self.rp_flag = fs
        extra[k1 + 1] = interleave(extra[k1 + 1], rd + rd1)
        extra[k1 + 2] = pad + extra[k1 + 2]
        extra[11].append(I(f"buffer_load_dword v{self.vWOD}, v{self.vWOF}, {WSR}, s{sFLB} offen sc1"))
        stl = self.p1_stat_loads()
        ks = o.get('stk', 13)
        mem[ks] += stl[:5]; mem[ks + 1] += stl[5:]
        wo = self.wo_loads()[:o.get('wot', 18)]
        if wo:
            extra[ks + 1].append(self.sub(self.flag_check, self.vWOD, self.vWOF))
        nw = 18 - ks
        for k in range(nw):
            mem[ks + 2 + k] += wo[k * len(wo) // nw:(k + 1) * len(wo) // nw]
        fin = self.sub(self.p1_stats_finish, isv)
        extra[18] = self.sub(self.p1_stat_tags) + [self.sub(self.p1_stat_check)] + fin[:14]
        for s in range(10):
            for p in range(2):
                k = 2 * s + p
                fr = self.vFR + 32 * p
                M = []
                for a, n in (self.P1_SNAKE if o.get('snake', 0) else self.P1_ORDER):
                    d = vr(self.vACC + 16 * a + 4 * n, 4)
                    xa, wb = vr(fr + 4 * a, 4), vr(fr + 16 + 4 * n, 4)
                    A, B = (xa, wb) if isv else (wb, xa)
                    M.append(I(f"v_mfma_f32_16x16x32_bf16 {d}, {A}, {B}, {0 if k == 0 else d}"))
                G = [[] for _ in range(16)]
                F = [[] for _ in range(16)]
                if k:
                    if p == 0:
                        M[0].waits = [R[5]]; M[4].waits = [R[11]]
                    else:
                        M[0].waits = [R[11]]
                g0 = 0
                if p == 0:
                    R = self.p1_reads(s, 1)
                elif s < 9:
                    R = self.p1_reads(s + 1, 0)
                    G[g0] = [W(hd[s + 1], *([bwait[k]] if k in bwait else []))] + [I("s_barrier")]
                else:
                    R = []
                for j, r in enumerate(R):
                    G[g0 + j].append(r)
                dma = grp.pop(0) if grp else []
                if k in ramp:
                    dma = dma + grp.pop(0)
                D = interleave(dma, mem[k]) + tail[k] if dma else mem[k] + tail[k]
                for j, d in enumerate(D):
                    g = 16 - len(D) + j
                    if o.get('dspread', 1):
                        g = g0 + 2 + j * (14 - g0) // len(D) if len(D) != 4 or g0 else 2 + 4 * j
                    d = flat(d)
                    F[g] += d[:-1]; G[g].insert(0, d[-1])
                X = extra[k]
                if k == 19:
                    for j, x in enumerate(fin[14:]):
                        G[j // 3].append(x)
                    G[7] += [I("s_waitcnt lgkmcnt(0)"), I("s_barrier")]
                    for j, r in enumerate(self.p1_ep_reads(isv)):
                        G[8 + j * 7 // 10].append(r)
                for j, x in enumerate(X):
                    G[1 + j * 14 // len(X)].append(x)
                if p == 0 and s < 5:
                    G[0].append(self.p1_stat_reads(s))
                if k == 8:
                    G[8].append([W(R[2])] + self.sub(self.p1_stat_sums))
                    for j, x in enumerate(self.sub(self.p1_stat_publish)):
                        G[11 + j // 3].append(x)
                for g in range(16):
                    c.add(F[g]); c.add(M[g]); c.add(G[g])
                if o.get('x_pad') and o.get('x_pads', 0) <= s < o.get('x_pade', 10):
                    for _ in range(o['x_pad']):
                        c("s_nop 7")
                if p == 1 or s >= 7:
                    self.stamp(f"e{s}{p}", "p1")

    def p1_epilogue(self, isv):
        c = self.c
        t, e, u = self.vTMP, self.vEP, self.vRS
        ob = self.vFR
        n0 = self.o.get('wot', 18)
        assert n0 > 0
        wo = self.wo_loads()[n0:n0 + self.o.get('woe', 0)]
        for k in range(8):
            out = ob + 4 * k
            if not isv:
                n, lo = k >> 1, k & 1
                rr = [(self.vACC + 16 * a + 4 * n + 2 * q, e + 4 * n + 2 * q, u + 2 * a) for a in (lo, lo + 2) for q in range(2)]
                for r, cs, sv in rr:
                    c(f"v_pk_fma_f32 {vr(r,2)}, {vr(cs,2)}, {vr(sv,2)}, {vr(r,2)} op_sel_hi:[1,0,1]")
                for r, cs, sv in rr:
                    c(f"v_pk_mul_f32 {vr(r,2)}, {vr(r,2)}, {vr(sv,2)} op_sel:[0,1] op_sel_hi:[1,1]")
                so, off = sT + 4 + (n >> 1), (n & 1) * 2048 + lo * 256
            else:
                T, n = k >> 2, k & 3
                sel = "op_sel_hi:[1,0,1]" if n % 2 == 0 else "op_sel:[0,1,0] op_sel_hi:[1,1,1]"
                rr = [(self.vACC + 16 * a + 4 * n + 2 * q, e + 4 * a + 2 * q, 0) for a in (2 * T, 2 * T + 1) for q in range(2)]
                for r, nm, _ in rr:
                    c(f"v_pk_fma_f32 {vr(r,2)}, {vr(nm,2)}, {vr(u+(n&2),2)}, {vr(r,2)} {sel}")
                for r, nm, _ in rr:
                    c(f"v_pk_mul_f32 {vr(r,2)}, {vr(r,2)}, {vr(nm+16,2)}")
                so, off = sT + 4 + T, n * 256
            for q, (r, _, _) in enumerate(rr):
                c(f"v_cvt_pk_bf16_f32 v{out+q}, v{r}, v{r+1}")
            h = c(f"buffer_store_dwordx4 {vr(out,4)}, v{t+4}, {WSR}, s{so} offen offset:{off} sc1")
            if k < 7:
                c.add(wo[k * len(wo) // 7:(k + 1) * len(wo) // 7])
        return h

    def phase1(self):
        c, o = self.c, self.o
        self.p1_setup()
        c(f"s_cmp_eq_u32 s{sCT}, 15")
        c("s_waitcnt lgkmcnt(0)")
        c("s_cbranch_scc1 Lp1_idle")
        c(".save p0")
        self.stamp("start")
        pre, d0, h0 = self.p1_dma(0)
        c.add(d0)
        c(f"s_lshr_b32 s{sT}, s{sRB1}, 3")
        c(f"s_and_b32 s{sT+1}, s{sRB1}, 3")
        c(f"s_lshl2_add_u32 s74, s{sT}, s{sT+1}")
        c(f"s_and_b32 s75, s{sCT}, 7")
        if o.get('rot', 'A') != 'A':
            c(f"s_lshr_b32 s74, s{sRB1}, 1")
            c(f"s_lshr_b32 s75, s{sCT}, 1")
        c(f"s_add_u32 s{sT}, s74, s75")
        c(f"s_mul_i32 s{sT+1}, s{sT}, 52")
        c(f"s_lshr_b32 s{sT+1}, s{sT+1}, 8")
        c(f"s_mul_i32 s{sT+1}, s{sT+1}, 5")
        c(f"s_sub_u32 s{self.sSS}, s{sT}, s{sT+1}")
        c(f"s_add_u32 s{sT+14}, s{self.sSS}, s{self.sKC}")
        pre, d1, h1 = self.p1_dma(1)
        c.add(pre); c.add(d1[:4])
        self.base_setup()
        self.p1_setup2()
        c.add(d1[4:])
        self.p1_setup3(sT + 14)
        late = glue(self.sub(self.common_setup) + self.sub(self.rp_setup_unit) + self.sub(self.rp_setup_unit1))
        ne = o.get('early', 30)
        c.add(late[:ne]); self.late_setup = late[ne:]
        vc = glue(self.sub(self.v_const))
        nv = o.get('vcn', 0)
        self.later_setup = vc[:nv]
        c(f"s_cmp_ge_u32 s{sCT}, 10")
        c("s_cbranch_scc1 Lp1_v")
        c(".save p1")
        for isv in (False, True):
            if isv:
                c("Lp1_v:")
                c(".restore p1")
            self.p1_loop(isv, h0, h1)
            self.stamp("p1loop")
            h = self.p1_epilogue(isv)
            if not isv:
                c("s_branch Lp1_done")
        c("Lp1_done:")
        self.stamp("p1epi")
        c.add(vc[nv:])
        n0 = min(o.get('wot', 18) + o.get('woe', 0), 25)
        self.woq = self.wo_loads()[n0:]
        self.w1q, self.w2q = list(range(35)), list(range(35))
        KV = f"s[{sKV}:{sKV+3}]"
        c("Lp1_join:")
        nb_ = o.get('wob', 0)
        if not n0:
            self.flag_check(self.vWOD, self.vWOF)
        c.add(self.woq[:nb_]); self.woq = self.woq[nb_:]
        init = glue(self.sub(self.attn_init) + self.sub(self.attn_prep))
        na = o.get('inita', 70)
        c.add(init[:na])
        self.stamp("ainit")
        c.wait(h)
        self.stamp("p1drain")
        c("s_barrier")
        lab = self.label("f1")
        c(f"s_cmp_lg_u32 s{sW}, 2")
        c(f"s_cbranch_scc1 {lab}")
        c.cond(True)
        self.flag_store(sT + 13)
        c.cond(False)
        c(f"{lab}:")
        lab = self.label("f1")
        c(f"s_cmp_lg_u32 s{sW}, 0")
        c(f"s_cbranch_scc1 {lab}")
        for x in self.rp_flag:
            x.cond = True
        c.add(self.rp_flag)
        c(f"{lab}:")
        nc_ = o.get('woc', 0)
        ld = self.woq[:nc_]; self.woq = self.woq[nc_:]
        c.add(interleave(init[na:], ld))
        self.stamp("join")
        old, self.c = self.c, self.ool
        self.idle_path(n0)
        self.c = old

    def idle_path(self, n0):
        c = self.c
        P = self.RPP
        gw = sT + 8
        KV = f"s[{sKV}:{sKV+3}]"
        c("Lp1_idle:")
        c(".restore p0")
        if self.o.get('tlb', 1):
            sh = self.o.get('tlbs', 18)
            c(f"s_mov_b32 s{sKV+3}, 0x20000")
            c(f"v_lshlrev_b32 v8, {sh}, v1")
            for pair in (((sWS, WS_SIZE, 0), (sW2, 1728*1280, 0), (sWS, WS_SIZE, 64 << sh), (sW1, 640*3456, 0)),
                         ((sWS, WS_SIZE, 128 << sh), (sWQ, 640*3840, 0), (sOUT, 2048*1280, 0), (sX, 2048*1280, 0))):
                for w, (ptr, size, off) in enumerate(pair):
                    if w == 0:
                        c(f"s_mov_b64 s[{sKV}:{sKV+1}], s[{ptr}:{ptr+1}]")
                        c(f"s_mov_b32 s{sKV+2}, {size if off < size else 0}")
                        c(f"s_mov_b32 s{sT}, {off if off < size else 0}")
                    else:
                        c(f"s_cmp_eq_u32 s{sW}, {w}")
                        c(f"s_cselect_b64 s[{sKV}:{sKV+1}], s[{ptr}:{ptr+1}], s[{sKV}:{sKV+1}]")
                        c(f"s_cselect_b32 s{sKV+2}, {size if off < size else 0}, s{sKV+2}")
                        c(f"s_cselect_b32 s{sT}, {off if off < size else 0}, s{sT}")
                c(f"buffer_load_dword v240, v8, {KV}, s{sT} offen sc1").wr = []
        c(f"s_lshl2_add_u32 s{gw}, s{sRB1}, s{sW}")
        c(f"s_mov_b32 s{sRP}, s{sWO}")
        c(f"s_mov_b32 s{sRP+1}, s{sWO+1}")
        c(f"s_mov_b32 s{sRP+2}, {640*1280}")
        c(f"s_mov_b32 s{sRP+3}, 0x20000")
        t = self.vTMP
        for j in range(5):
            c(f"v_add_u32 v{t}, {64*j}, v1")
            c(f"v_mul_u32_u24 v{t+1}, 6554, v{t}")
            c(f"v_lshrrev_b32 v{t+2}, 16, v{t+1}")
            c(f"v_mul_u32_u24 v{t+2}, 70, v{t+2}")
            c(f"v_add_u32 v{t}, v{t}, v{t+2}")
            c(f"v_lshrrev_b32 v{t+2}, 20, v{t+1}")
            c(f"v_mul_u32_u24 v{t+2}, 320, v{t+2}")
            c(f"v_add_lshl_u32 v{self.vRP+j}, v{t}, v{t+2}, 4")
            c(f"v_lshrrev_b32 v{t+2}, 18, v{t+1}")
            c(f"v_mul_u32_u24 v{t+2}, 1280, v{t+2}")
            c(f"v_add_lshl_u32 v{44+j}, v{t}, v{t+2}, 4")
        c(f"s_and_b32 s{sT}, s{gw}, 7")
        c(f"s_mul_i32 s{sT}, s{sT}, 160")
        c(f"s_lshr_b32 s{sT+1}, s{gw}, 3")
        hd = {}
        for r in range(3):
            c(f"s_mul_i32 s{sT+9}, s{sT+1}, {(40 if r < 2 else 160)*1280}")
            c(f"s_add_u32 s{sT+9}, s{sT+9}, s{sT}")
            if r:
                c(f"s_add_u32 s{sT+9}, s{sT+9}, {(320 if r == 1 else 16)*1280}")
            if r == 2:
                c(f"s_cmp_lt_u32 s{gw}, 32")
                c(f"s_cselect_b32 s{sRP+2}, s{sRP+2}, 0")
            d = self.rp_dma(5, r * 5120, 40960, so=f"s{sT+9}", fl='', vb=self.vRP if r < 2 else 44)
            c.add(d); hd['o', r] = d[-1][-1]
        self.base_setup()
        self.common_setup()
        c(f"s_mov_b32 s{sKV}, s{sWS}")
        c(f"s_mov_b32 s{sKV+1}, s{sWS+1}")
        c(f"s_mov_b32 s{sKV+3}, 0x20000")
        c(f"s_and_b32 s82, s{gw}, 15")
        c(f"s_lshr_b32 s83, s{gw}, 4")
        c(f"s_mul_i32 s83, s83, 5")
        self.rp_w1_params(82, 83, 80)
        c(f"s_mov_b32 s{sRP+2}, {640*3456}")
        self.rp_w1_offsets(80)

        def dma1(r):
            c(f"s_mov_b32 s{sT+9}, {r*32*3456}")
            d = self.rp_dma(7, 15360 + (r % 3) * 7168, 40960, so=f"s{sT+9}", fl='')
            c.add(d); hd['a', r] = d[-1][-1]
        c(f"v_lshlrev_b32 v8, 7, v1")
        self.tag_ready()
        c.add(self.fx_publish())
        c(f"v_mov_b32 v{vFLG}, s{sTAG}")
        self.rp_addr(16, 160, 0, 40960, False)
        self.rp_addr(22, 224, 15360, 40960, sW)

        def params(kind, r):
            if kind == 'o':
                self.rp_params_wo(gw, r)
                c(f"s_cmp_lg_u32 s{sRPT}, 0")
                c(f"s_cselect_b32 s{sKV+2}, {WS_SIZE}, 0")
            else:
                c(f"s_mov_b32 s{sKV+2}, {WS_SIZE}")
                c(f"s_lshr_b32 s83, s{gw}, 4")
                c(f"s_mul_i32 s83, s83, 5")
                c(f"s_add_u32 s83, s83, {r}")
                self.rp_w1_params(82, 83)
        hs = {}

        def proc(kind, r, n):
            params(kind, r)
            c.wait(hd[kind, r])
            it = self.rp_items(5, 16, r * 5120, 64 + 20 * r, KV) if kind == 'o' else self.rp_items(7, 22, (r % 3) * 7168, 124 + 28 * (r % 3), KV)
            c.add(it); hs[kind, r] = flat(it)[-1]

        def flag(kind, r):
            params(kind, r)
            c.wait(hs[kind, r])
            self.flag_store(sRPF, KV)
        dbg = self.o.get('idledbg')
        if dbg: self.stamp("start")
        dma1(0)
        if dbg: c.wait(hd['o', 0]); self.stamp("b0")
        for r in range(3):
            proc('o', r, r)
        dma1(1)
        for r in range(3):
            flag('o', r)
        if dbg: self.stamp("p1epi")
        ni = 5 - self.o.get('nr', 3)
        assert 2 <= ni <= 3
        if ni > 2:
            dma1(2)
        for r in range(ni):
            proc('a', r, r)
        self.v_const()
        for r in range(ni):
            flag('a', r)
        if self.o.get('fltouch', 1):
            c(f"s_lshl_b32 s{sT}, s{sRB1}, 11")
            c(f"s_add_u32 s{sT}, s{sT}, {F1_OFF}")
            c(f"v_and_b32 v9, 0x780, v8")
            c(f"buffer_load_dword v240, v9, {WSR}, s{sT} offen")
            c.ins[-1].wr = []
        self.stamp("p1loop")
        lab = self.label("ep")
        c(f"s_cmp_lg_u32 s{gw}, {99 if self.o.get('x_noepoch') else 63}")
        c(f"s_cbranch_scc1 {lab}")
        c(f"v_lshlrev_b32 v8, 7, v1")
        for j in range(4):
            c(f"v_add_u32 v9, {FX_OFF - FL_OFF + j*8192}, v8")
            self.poll(9, span=True, sleep=16)
        c(f"s_mov_b32 s{sT}, {EP_OFF}")
        self.flag_store(sT)
        c(f"{lab}:")
        c(f"s_mov_b32 s{sRP+2}, 0")
        c(f"v_mov_b32 v{self.vRA+4}, 0")
        c(f"s_lshl_b32 s{sT+13}, s{sRB1}, 11")
        c(f"s_add_u32 s{sT+13}, s{sT+13}, {F1_OFF + 15*128}")
        self.poll(self.vWOF, self.vWOD, sleep=8)
        c("s_barrier")
        c.add(self.wo_loads()[:n0])
        c("s_branch Lp1_join")

    RPP = dict(pitch=sT, col=sT + 1, nch=sT + 2, mch=sT + 3, v0=sT + 4, dm=sT + 5, dd=sT + 6, aa=sT + 7, lim=sT + 12, r0=sT + 13, u=sT + 14)

    def rp_params_wo(self, gw, r):
        c = self.c
        u = self.RPP['u']
        c(f"s_lshr_b32 s{u}, s{gw}, 3")
        if r < 2:
            c(f"s_lshr_b32 s{u+1}, s{u}, 2")
            c(f"s_add_u32 s{u}, s{u}, s{u+1}")
            c(f"s_add_u32 s{u}, s{u}, {10*r}")
            c(f"s_mov_b32 s{sRPT}, 1")
        else:
            c(f"s_mul_i32 s{u}, s{u}, 5")
            c(f"s_add_u32 s{u}, s{u}, 4")
            c(f"s_cmp_lt_u32 s{gw}, 32")
            c(f"s_cselect_b32 s{sRPT}, 1, 0")
        c(f"s_and_b32 s{u+1}, s{gw}, 7")
        c(f"s_mul_i32 s{sRPD}, s{u+1}, 20")
        c(f"s_add_u32 s{sRPD}, s{sRPD}, s{u}")
        c(f"s_mul_i32 s{sRPD}, s{sRPD}, 5120")
        c(f"s_add_u32 s{sRPD}, s{sRPD}, {WO_OFF}")
        c(f"s_lshl_b32 s{sRPF}, s{u+1}, 5")
        c(f"s_add_u32 s{sRPF}, s{sRPF}, s{u}")
        c(f"s_lshl_b32 s{sRPF}, s{sRPF}, 7")
        c(f"s_add_u32 s{sRPF}, s{sRPF}, {FWO_OFF}")

    RPL = 8 * 16384
    vRA = 240
    sRD = 82

    def rp_setup_unit(self):
        c = self.c
        t, ra = self.vTMP, self.vRA
        u, sl, r0, v0, col, x, y = [sT + i for i in range(7)]
        c(f"s_mov_b32 s{sRP}, s{sW2}")
        c(f"s_mov_b32 s{sRP+1}, s{sW2+1}")
        c(f"s_mov_b32 s{sRP+3}, 0x20000")
        c(f"s_cmp_lt_u32 s2, 224")
        c(f"s_cselect_b32 s{sRP+2}, {1728*1280}, 0")
        c(f"s_cselect_b32 s{sRPT}, {WS_SIZE}, 0")
        c(f"s_and_b32 s{sl}, s2, 3")
        c(f"s_lshr_b32 s{u}, s2, 2")
        c(f"s_mul_i32 s{r0}, s{u}, 18726")
        c(f"s_lshr_b32 s{r0}, s{r0}, 16")
        c(f"s_mul_i32 s{col}, s{r0}, 112")
        c(f"s_lshl_b32 s{v0}, s{u}, 5")
        c(f"s_sub_u32 s{v0}, s{v0}, s{col}")
        c(f"s_mul_i32 s{r0}, s{r0}, {108*1280}")
        c(f"s_mul_i32 s{col}, s{sl}, 320")
        c(f"s_add_u32 s{col}, s{col}, s{r0}")
        c(f"s_mul_i32 s{sRPD}, s{sl}, 112")
        c(f"s_add_u32 s{sRPD}, s{sRPD}, s{u}")
        c(f"s_mul_i32 s{sRPD}, s{sRPD}, 5120")
        c(f"s_add_u32 s{sRPD}, s{sRPD}, {W2_OFF}")
        c(f"s_lshl_b32 s{sRPF}, s{sl}, 6")
        c(f"s_add_u32 s{sRPF}, s{sRPF}, s{u}")
        c(f"s_lshl_b32 s{sRPF}, s{sRPF}, 7")
        c(f"s_add_u32 s{sRPF}, s{sRPF}, {FW2_OFF}")
        assert all((S * 18726) >> 16 == (32 * S) // 112 for S in range(80)) and all((v * 3277) >> 16 == v // 20 for v in range(768))
        c(f"v_mov_b32 v{t+4}, {OOB}")
        for j in range(3):
            c(f"v_add_u32 v{t}, {256*j}, v0")
            c(f"v_mul_u32_u24 v{t+1}, 3277, v{t}")
            c(f"v_lshrrev_b32 v{t+1}, 16, v{t+1}")
            c(f"v_mul_u32_u24 v{t+2}, 20, v{t+1}")
            c(f"v_sub_u32 v{t}, v{t}, v{t+2}")
            c(f"v_lshl_add_u32 v{t}, v{t}, 4, s{col}")
            c(f"v_add_u32 v{t+1}, s{v0}, v{t+1}")
            c(f"v_subrev_u32 v{t+2}, 108, v{t+1}")
            c(f"v_med3_i32 v{t+3}, v{t+2}, 0, 4")
            c(f"v_cmp_gt_u32 vcc, 4, v{t+2}")
            c(f"v_sub_u32 v{t+1}, v{t+1}, v{t+3}")
            c(f"v_mul_u32_u24 v{t+1}, 1280, v{t+1}")
            c(f"v_add_u32 v{t}, v{t}, v{t+1}")
            c(f"v_cndmask_b32 v{self.vRP+j}, v{t}, v{t+4}, vcc")
        c(f"v_cmp_gt_u32 vcc, 128, v0")
        c(f"v_lshrrev_b32 v{t}, 4, v1")
        c(f"v_bfe_u32 v{t+1}, v1, 2, 2")
        c(f"v_cndmask_b32 v{self.vRP+2}, v{t+4}, v{self.vRP+2}, vcc")
        c(f"v_cndmask_b32 v{ra+3}, v{t+4}, v{vL16}, vcc")
        c(f"v_cmp_gt_u32 vcc, 32, v0")
        c(f"v_lshl_add_u32 v{t+2}, v1, 2, s{sRPF}")
        c(f"v_lshl_add_u32 v{t}, v{t}, 3, v{t+1}")
        c(f"v_cndmask_b32 v{ra+4}, v{t+4}, v{t+2}, vcc")
        c(f"v_mul_u32_u24 v{t}, 320, v{t}")
        c(f"v_and_b32 v{t+1}, 3, v1")
        for j in range(3):
            c(f"s_add_u32 s{u}, s{sW}, {4*j}")
            c(f"s_cmp_ge_u32 s{u}, 5")
            c(f"s_cselect_b32 s{sl}, 1, 0")
            c(f"s_mul_i32 s{x}, s{sl}, 5")
            c(f"s_sub_u32 s{u}, s{u}, s{x}")
            c(f"s_mul_i32 s{x}, s{sl}, {56*5}")
            c(f"s_add_u32 s{x}, s{x}, s{u}")
            c(f"s_lshl_b32 s{x}, s{x}, 10")
            c(f"s_add_u32 s{self.sRD+j}, s{sRPD}, s{x}")
            c(f"s_mul_i32 s{sl}, s{sl}, 160")
            c(f"s_and_b32 s{x}, s{u}, 1")
            c(f"s_lshl3_add_u32 s{sl}, s{x}, s{sl}")
            c(f"s_and_b32 s{x}, s{u}, 6")
            c(f"s_lshl_b32 s{x}, s{x}, 5")
            c(f"s_add_u32 s{sl}, s{sl}, s{x}")
            c(f"s_add_u32 s{sl}, s{sl}, {self.RPL}")
            c(f"s_cmp_eq_u32 s{u}, 4")
            c(f"s_cselect_b32 s{y}, 3, 4")
            c(f"v_lshlrev_b32 v{t+2}, s{y}, v{t+1}")
            c(f"v_add3_u32 v{ra+j}, v{t+2}, v{t}, s{sl}")

    RPL1 = 8 * 16384 + 12288
    vRB = 246

    def rp_setup_unit1(self):
        c = self.c
        nr = self.o.get('nr', 3)
        t, rb = self.vTMP, self.vRB
        fb, st, col, x = [sT + i for i in range(4)]
        c(f"s_mov_b32 s{sKV}, s{sW1}")
        c(f"s_mov_b32 s{sKV+1}, s{sW1+1}")
        c(f"s_mov_b32 s{sKV+3}, 0x20000")
        c(f"s_cmp_lt_u32 s2, {64*nr}")
        c(f"s_cselect_b32 s{sKV+2}, {640*3456}, 0")
        c(f"s_cselect_b32 s79, {WS_SIZE}, 0")
        c(f"s_cselect_b64 vcc, s[{sHI}:{sHI+1}], 0")
        c(f"s_and_b32 s{fb}, s2, 15")
        c(f"s_bfe_u32 s{st}, s2, 0x20004")
        c(f"s_mul_i32 s{st}, s{st}, 5")
        c(f"s_lshr_b32 s{x}, s2, 6")
        c(f"s_add_u32 s{st}, s{st}, s{x}")
        c(f"s_add_u32 s{st}, s{st}, {5 - nr}")
        c(f"s_mul_i32 s80, s{fb}, 20")
        c(f"s_add_u32 s80, s80, s{st}")
        c(f"s_mul_i32 s80, s80, 7")
        c(f"s_add_u32 s80, s80, s{sW}")
        c(f"s_lshl_b32 s80, s80, 10")
        c(f"s_add_u32 s80, s80, {W1_OFF}")
        c(f"s_lshl_b32 s{x}, s{fb}, 5")
        c(f"s_add_u32 s{x}, s{x}, s{st}")
        c(f"s_lshl_b32 s{x}, s{x}, 7")
        c(f"s_add_u32 s{x}, s{x}, {FW1_OFF - 128}")
        c(f"s_cmp_eq_u32 s{sW}, 0")
        c(f"s_cselect_b64 vcc, vcc, 0")
        c(f"v_lshl_add_u32 v{t}, v1, 2, s{x}")
        c(f"v_cndmask_b32 v{self.vRA+4}, v{self.vRA+4}, v{t}, vcc")
        c(f"s_mul_i32 s{col}, s{fb}, 216")
        c(f"s_and_b32 s{col}, s{col}, -16")
        c(f"s_mul_i32 s{x}, s{st}, {32*3456}")
        c(f"s_add_u32 s{col}, s{col}, s{x}")
        for j in range(2):
            c(f"v_add_u32 v{t}, {256*j}, v0")
            c(f"v_mul_u32_u24 v{t+1}, 4682, v{t}")
            c(f"v_lshrrev_b32 v{t+1}, 16, v{t+1}")
            c(f"v_mul_u32_u24 v{t+1}, {3456-224}, v{t+1}")
            c(f"v_lshl_add_u32 v{t}, v{t}, 4, s{col}")
            c(f"v_add_u32 v{self.vRP+3+j}, v{t}, v{t+1}")
        c(f"v_cmp_gt_u32 vcc, 192, v0")
        c(f"v_add_u32 v{t}, 4096, v{vL16}")
        c(f"v_lshrrev_b32 v{t+2}, 4, v1")
        c(f"v_cndmask_b32 v{self.vRP+4}, v{t+4}, v{self.vRP+4}, vcc")
        c(f"v_cndmask_b32 v{rb+2}, v{t+4}, v{t}, vcc")
        c(f"v_bfe_u32 v{t+1}, v1, 2, 2")
        c(f"v_lshl_add_u32 v{t}, v{t+2}, 3, v{t+1}")
        c(f"v_mul_u32_u24 v{t}, 224, v{t}")
        c(f"v_and_b32 v{t+1}, 3, v1")
        c(f"s_and_b32 s{x}, s{fb}, 1")
        c(f"s_and_b32 s{col}, s{sW}, 1")
        c(f"s_add_u32 s{x}, s{x}, s{col}")
        c(f"s_and_b32 s{col}, s{sW}, 2")
        c(f"s_lshl_b32 s{col}, s{col}, 5")
        c(f"s_lshl3_add_u32 s{x}, s{x}, s{col}")
        c(f"s_add_u32 s{x}, s{x}, {self.RPL1}")
        c(f"v_add_u32 v{t}, s{x}, v{t}")
        c(f"v_lshl_add_u32 v{rb}, v{t+1}, 4, v{t}")
        c(f"s_cmp_eq_u32 s{sW}, 2")
        c(f"s_cselect_b32 s{x}, 3, 4")
        c(f"s_cselect_b32 s78, 12, 16")
        c(f"v_lshl_add_u32 v{rb+1}, v{t+1}, s{x}, v{t}")

    def rp_unit1_items(self, fr):
        rb, KV = self.vRB, f"s[{sKV}:{sKV+3}]"
        dma = [[I(f"s_add_u32 m0, s{sT+12}, {self.RPL1 + 4096*j}"), I(f"buffer_load_dwordx4 v{self.vRP+3+j}, {KV}, 0 offen lds")] for j in range(2)]
        rd = [I(f"ds_read_b64_tr_b16 {vr(fr+4*j+2*q,2)}, v{rb+j} offset:{q*896 + j*128}") for j in range(2) for q in range(2)]
        pad = [I(f"v_and_b32 v{rb}, 15, v1"), I(f"v_cmp_gt_u32 vcc, s78, v{rb}")] + [I(f"v_cndmask_b32 v{fr+4+q}, 0, v{fr+4+q}, vcc") for q in range(4)]
        stv = [[I(f"buffer_store_dwordx4 {vr(fr+4*j,4)}, v{vL16 if j == 0 else rb+2}, {KV}, s80 offen sc1")] for j in range(2)]
        stv[0] = [I(f"s_mov_b64 s[{sKV}:{sKV+1}], s[{sWS}:{sWS+1}]"), I(f"s_mov_b32 s{sKV+2}, s79")] + stv[0]
        return dma, rd, pad, stv

    def rp_unit_items(self, fr):
        ra, RP = self.vRA, f"s[{sRP}:{sRP+3}]"
        dma = [[I(f"s_lshl_b32 s{sT+12}, s{sW}, 10")] * (j == 0) + [I(f"s_add_u32 m0, s{sT+12}, {self.RPL + 4096*j}"),
               I(f"buffer_load_dwordx4 v{self.vRP+j}, {RP}, 0 offen lds")] for j in range(3)]
        rd = [I(f"ds_read_b64_tr_b16 {vr(fr[j]+2*q,2)}, v{ra+j} offset:{q*1280}") for j in range(3) for q in range(2)]
        stv = [[I(f"buffer_store_dwordx4 {vr(fr[j],4)}, v{vL16 if j < 2 else ra+3}, {RP}, s{self.sRD+j} offen sc1")] for j in range(3)]
        stv[0] = [I(f"s_mov_b64 s[{sRP}:{sRP+1}], s[{sWS}:{sWS+1}]"), I(f"s_mov_b32 s{sRP+2}, s{sRPT}")] + stv[0]
        flag = [I(f"v_mov_b32 v{vFLG}, s{sTAG}"), I(f"buffer_store_dword v{vFLG}, v{ra+4}, {RP}, 0 offen sc1")]
        return dma, rd, stv, flag

    def rp_w1_params(self, fb, step, col=None):
        c = self.c
        c(f"s_mul_i32 s{sRPD}, s{fb}, 20")
        c(f"s_add_u32 s{sRPD}, s{sRPD}, s{step}")
        c(f"s_mul_i32 s{sRPD}, s{sRPD}, 7168")
        c(f"s_add_u32 s{sRPD}, s{sRPD}, {W1_OFF}")
        c(f"s_lshl_b32 s{sRPF}, s{fb}, 5")
        c(f"s_add_u32 s{sRPF}, s{sRPF}, s{step}")
        c(f"s_lshl_b32 s{sRPF}, s{sRPF}, 7")
        c(f"s_add_u32 s{sRPF}, s{sRPF}, {FW1_OFF}")
        if col is not None:
            c(f"s_mov_b32 s{sRP}, s{sW1}")
            c(f"s_mov_b32 s{sRP+1}, s{sW1+1}")
            c(f"s_mul_i32 s{col}, s{fb}, 216")
            c(f"s_and_b32 s{col}, s{col}, -16")
            c(f"s_mul_i32 s{step}, s{step}, {32*3456}")
            c(f"s_add_u32 s{col}, s{col}, s{step}")

    def rp_w1_offsets(self, col):
        c = self.c
        t = 16
        for j in range(7):
            c(f"v_add_u32 v{t}, {64*j}, v1")
            c(f"v_mul_u32_u24 v{t+1}, 4682, v{t}")
            c(f"v_lshrrev_b32 v{t+1}, 16, v{t+1}")
            c(f"v_mul_u32_u24 v{t+1}, {3456-224}, v{t+1}")
            c(f"v_lshl_add_u32 v{t}, v{t}, 4, s{col}")
            c(f"v_add_u32 v{self.vRP+j}, v{t}, v{t+1}")

    def only_waves(self, hi, items):
        lab = self.label("ow")
        out = [I(f"s_cmp_ge_u32 s{sW}, {3 if hi else 2}"), I(f"s_cbranch_scc{0 if hi else 1} {lab} ; noflush")]
        for i in flat(items):
            i.cond = True
            out.append(i)
        out.append(I(f"{lab}: ; noflush"))
        return out

    RP1_LDS = 6 * 16384

    def rp_dma(self, n, base, wstride, so="0", fl=None, vb=None):
        items = []
        vb = self.vRP if vb is None else vb
        fl = self.o.get('rpld', '') if fl is None else fl
        for j in range(n):
            pre = [I(f"s_mul_i32 s{sT+12}, s{sW}, {wstride}")] if j == 0 else []
            items.append(pre + [I(f"s_add_u32 m0, s{sT+12}, {base + 1024*j}"),
                                I(f"buffer_load_dwordx4 v{vb+j}, s[{sRP}:{sRP+3}], {so} offen {fl} lds")])
        return items

    def rp_addr(self, t, pitch, base, wstride, oddshift, st=sT):
        c = self.c
        c(f"s_mul_i32 s{st+1}, s{sW}, {wstride}")
        if oddshift:
            c(f"s_and_b32 s{st+2}, s{oddshift}, 1")
            c(f"s_lshl3_add_u32 s{st+1}, s{st+2}, s{st+1}")
        c(f"s_add_u32 s{st+1}, s{st+1}, {base}")
        c(f"v_lshrrev_b32 v{t}, 4, v1")
        c(f"v_bfe_u32 v{t+1}, v1, 2, 2")
        c(f"v_lshl_add_u32 v{t}, v{t}, 3, v{t+1}")
        c(f"v_mul_u32_u24 v{t}, {pitch}, v{t}")
        c(f"v_add_u32 v{t}, s{st+1}, v{t}")
        c(f"v_and_b32 v{t+1}, 3, v1")
        c(f"v_lshl_add_u32 v{t+2}, v{t+1}, 4, v{t}")
        c(f"v_lshl_add_u32 v{t+3}, v{t+1}, 3, v{t}")

    def rp_items(self, nt, t, off, fr, R):
        pitch = 160 if nt == 5 else 224
        fb = fr if isinstance(fr, list) else [fr + 4 * tl for tl in range(nt)]
        rd, stv = [], []
        for tl in range(nt):
            for q in range(2):
                if tl < nt - 1:
                    rd.append(I(f"ds_read_b64_tr_b16 {vr(fb[tl]+2*q,2)}, v{t+2} offset:{off + q*4*pitch + (tl>>1)*64 + (tl&1)*8}"))
                else:
                    rd.append(I(f"ds_read_b64_tr_b16 {vr(fb[tl]+2*q,2)}, v{t+3} offset:{off + q*4*pitch + tl*32}"))
        for tl in range(nt):
            g = []
            if tl == 4:
                g.append(I(f"s_add_u32 s{sRPD}, s{sRPD}, 4096"))
            if tl == 6:
                g += [I(f"v_and_b32 v{t}, 15, v1"), I(f"v_cmp_gt_u32 vcc, 12, v{t}")]
                g += [I(f"v_cndmask_b32 v{fr+24+q}, 0, v{fr+24+q}, vcc") for q in range(4)]
            g.append(I(f"buffer_store_dwordx4 {vr(fb[tl],4)}, v{vL16}, {R}, s{sRPD} offen offset:{(tl&3)*1024} sc1"))
            stv.append(g)
        return rd + stv

    aV, aW1L, aWO = 0, 80, 156

    def wo_loads(self):
        items = []
        for i in range(25):
            pre = [I(f"s_add_u32 s{sWOO}, s{sWOO}, 4096")] if i and i % 4 == 0 else []
            items.append(pre + [I(f"buffer_load_dwordx4 {ar(self.aWO+4*i,4)}, v{vL16}, {WSR}, s{sWOO} offen offset:{(i&3)*1024} {self.ld}")])
        return items

    def w1_take(self, n, below=35):
        items = []
        first = True
        while n and self.w1q and self.w1q[0] < below:
            i = self.w1q.pop(0); n -= 1
            pre = []
            if (i % 4 == 0 or first) and i < 25:
                pre.append(I(f"s_add_u32 m0, s{sW1M}, {(i >> 2) * 4096}"))
            if i % 4 == 0 and i:
                pre.append(I(f"s_add_u32 s{sW1O}, s{sW1O}, 4096"))
            first = False
            if i < 25:
                items.append(pre + [I(f"buffer_load_dwordx4 v{vL16}, {WSR}, s{sW1O} offen offset:{(i&3)*1024} {self.ld} lds")])
            else:
                items.append(pre + [I(f"buffer_load_dwordx4 {ar(self.aW1L+4*(i-25),4)}, v{vL16}, {WSR}, s{sW1O} offen offset:{(i&3)*1024} {self.ld}")])
        return items

    def w2_take(self, n, below=70):
        items = []
        while n and self.w2q and self.w2q[0] < below:
            i = self.w2q.pop(0); n -= 1
            pre = [I(f"s_add_u32 s{sW2O}, s{sW2B}, {(i >> 2) * 4096}")] if i % 4 == 0 else []
            items.append(pre + [I(f"buffer_load_dwordx4 {self.w2reg(i)}, v{vL16}, {WSR}, s{sW2O} offen offset:{(i&3)*1024} {self.ld}")])
        return items

    def w2reg(self, i):
        return ar(120 + 4 * i if i < 9 else 4 * (i - 9), 4)

    vO, vK, vQ, vQ4, vZ, vS, vCO, vCD, vP = 32, 64, 124, 132, 136, 146, 178, 194, 210
    vX = 226
    vXL, vRP2 = 226, 230
    vL16m, vVA, vFWA, vFWD, vPOL = 3, 4, 5, 6, 7
    sKO, sVO = sT + 8, sT + 9
    UNITS = sorted([(kt, 0) for kt in range(9)] + [(kt, 1) for kt in range(1, 10)])

    def v_const(self):
        c = self.c
        for pi in range(5):
            c(f"s_cmp_ge_u32 s{sU}, {4-pi}")
            c(f"s_cselect_b32 s81, 0x3f803f80, 0")
            c(f"v_mov_b32 v63, s81")
            for j in range(16):
                c(f"v_accvgpr_write_b32 a{self.aV+16*pi+j}, v63")

    def attn_init(self):
        c = self.c
        t = 8
        c(f"s_mov_b32 s{sVM}, 0x000fffff")
        c(f"s_mov_b32 s{sVM+1}, 0x000fffff")
        c(f"s_mov_b32 s{sKV}, s{sWS}")
        c(f"s_mov_b32 s{sKV+1}, s{sWS+1}")
        c(f"s_mov_b32 s{sKV+3}, 0x20000")
        c(f"v_and_b32 v{self.vL16m}, 0x1f0, v{vL16}")
        c(f"v_lshrrev_b32 v{t}, 1, v1")
        c(f"v_xor_b32 v{t}, v{t}, v1")
        c(f"v_and_b32 v{t}, 4, v{t}")
        c(f"v_mul_u32_u24 v{t}, 48, v{t}")
        c(f"v_xor_b32 v{t}, v{t}, v{self.vL16m}")
        c(f"v_lshrrev_b32 v{t+1}, 5, v1")
        c(f"v_mul_u32_u24 v{t+2}, 10240, v{t+1}")
        c(f"v_add_u32 v{self.vVA}, v{t}, v{t+2}")
        c(f"v_and_b32 v{t}, 31, v1")
        c(f"v_lshlrev_b32 v{t+1}, 2, v{t+1}")
        c(f"v_sub_u32 v{t}, v{t}, v{t+1}")
        c(f"v_mov_b32 v{t+2}, 0xff800000")
        for r in range(0, 16, 4):
            for i in range(4):
                c(f"v_cmp_gt_i32 s[{sT+2*i}:{sT+2*i+1}], {8*(r>>2) + i}, v{t}")
            for i in range(4):
                c(f"v_cndmask_b32 v{self.vCD+r+i}, 0, v{t+2}, s[{sT+2*i}:{sT+2*i+1}]")
            for i in range(4):
                c(f"v_xor_b32 v{self.vCO+r+i}, v{self.vCD+r+i}, v{t+2}")
        c(f"s_lshl_b32 s{sT+2}, s{sU}, 10")
        c(f"s_add_u32 s{sT+2}, s{sT+2}, {FX_OFF - FL_OFF}")
        c(f"v_and_b32 v{t}, 7, v1")
        c(f"v_lshl_add_u32 v{self.vFWA}, v{t}, 7, s{sT+2}")
        c(f"s_mul_i32 s{sT}, s{sK8}, {7*128}")
        c(f"s_lshr_b32 s{sT+1}, s{sNB}, 1")
        c(f"s_lshl_b32 s{sT+1}, s{sT+1}, 13")
        c(f"s_add_u32 s{sT}, s{sT}, s{sT+1}")
        c(f"s_add_u32 s{sT}, s{sT}, {FW2_OFF - FL_OFF}")
        c(f"v_min_u32 v{t}, 6, v{t}")
        c(f"v_lshl_add_u32 v{t+1}, v{t}, 7, s{sT}")
        c(f"v_cndmask_b32 v{self.vFWA}, v{self.vFWA}, v{t+1}, s[{sHI}:{sHI+1}]")
        c(f"s_mul_i32 s{sT}, s{sW}, 640")
        c(f"s_lshl_b32 s{sT+1}, s{sFB}, 12")
        c(f"s_add_u32 s{sT}, s{sT}, s{sT+1}")
        c(f"s_add_u32 s{sT}, s{sT}, {FW1_OFF - FL_OFF}")
        c(f"v_cmp_lt_u32 vcc, 47, v1")
        c(f"v_min_u32 v{t}, 4, v{t}")
        c(f"v_lshl_add_u32 v{t}, v{t}, 7, s{sT}")
        c(f"v_cndmask_b32 v{self.vFWA}, v{self.vFWA}, v{t}, vcc")
        c(f"s_mul_i32 s{sT}, s{sNB}, 80")
        c(f"s_add_u32 s{sT+1}, s{sT}, 79")
        c(f"s_lshr_b32 s{sT}, s{sT}, 7")
        c(f"s_lshr_b32 s{sT+1}, s{sT+1}, 7")
        c(f"s_sub_u32 s{sT+1}, s{sT+1}, s{sT}")
        c(f"v_lshrrev_b32 v{t}, 2, v1")
        c(f"v_min_u32 v{t}, 2, v{t}")
        c(f"v_bfe_u32 v{t+1}, v1, 1, 1")
        c(f"v_add_u32 v{t+1}, 1, v{t+1}")
        c(f"v_cmp_lt_u32 vcc, 11, v1")
        c(f"v_and_b32 v{t+2}, s{sT+1}, v1")
        c(f"v_cndmask_b32 v{t+1}, v{t+1}, 0, vcc")
        c(f"v_mad_u32_u24 v{t+1}, v{t+1}, 5, v{t+2}")
        c(f"v_add_u32 v{t+1}, s{sT}, v{t+1}")
        c(f"s_sub_u32 s{sT}, s{sRB}, 2")
        c(f"v_add_u32 v{t}, s{sT}, v{t}")
        c(f"v_max_i32 v{t}, 0, v{t}")
        c(f"v_lshl_add_u32 v{t}, v{t}, 4, v{t+1}")
        c(f"v_lshlrev_b32 v{t}, 7, v{t}")
        c(f"v_add_u32 v{self.vPOL}, {F1_OFF - FL_OFF}, v{t}")
        for j in range(3):
            c(f"v_add_u32 v{t}, {64*j}, v1")
            c(f"v_mul_u32_u24 v{t+1}, 6554, v{t}")
            c(f"v_lshrrev_b32 v{t+1}, 16, v{t+1}")
            c(f"v_mul_u32_u24 v{t+1}, {1280-160}, v{t+1}")
            c(f"v_add_u32 v{self.vXL+j}, v{vL16}, v{t+1}")
        c(f"v_mov_b32 v{t}, {OOB}")
        c(f"v_cndmask_b32 v{self.vXL+2}, v{self.vXL+2}, v{t}, s[{sHI}:{sHI+1}]")
        for j in range(1, 4):
            c(f"v_add_u32 v{t+j}, {j*20480}, v{self.vVA}")
        c(f"v_and_b32 v{t+4}, 15, v1")
        c(f"v_bfe_u32 v{t}, v1, 4, 1")
        c(f"v_lshlrev_b32 v{t+4}, 4, v{t+4}")
        c(f"v_lshl_add_u32 v{t+5}, v{t}, 13, v{t+4}")
        c(f"v_lshl_add_u32 v{t+4}, v{t}, 14, v{t+4}")
        c(f"v_lshrrev_b32 v{t}, 5, v1")
        c(f"v_lshl_add_u32 v{t+4}, v{t}, 8, v{t+4}")

    sKVO = 64

    def attn_kv_prep(self):
        c = self.c
        for pi in range(5):
            b = self.sKVO + 3 * pi
            c(f"s_sub_u32 s{sT}, s{sU}, {4-pi}")
            c(f"s_cselect_b32 s{b+2}, 0, {WS_SIZE}")
            c(f"s_cselect_b32 s{sT}, 0, s{sT}")
            c(f"s_mul_i32 s{b+1}, s{sT}, 81920")
            c(f"s_lshl1_add_u32 s{b}, s{b+1}, s{sT+6}")
            c(f"s_add_u32 s{b+1}, s{b+1}, s{sT+7}")

    def attn_kv_loads(self, pi):
        ld = self.ld
        k = self.vK + 12 * pi
        R = f"s[{sKV}:{sKV+3}]"
        b = self.sKVO + 3 * pi
        K = [[I(f"s_mov_b32 s{sKV+2}, s{b+2}"), I(f"buffer_load_dwordx4 {vr(k,4)}, v{vL16}, {R}, s{b} offen {ld}")],
             [I(f"buffer_load_dwordx4 {vr(k+4,4)}, v{vL16}, {R}, s{b} offen offset:1024 {ld}")],
             [I(f"buffer_load_dwordx4 {vr(k+8,4)}, v{self.vL16m}, {R}, s{b} offen offset:2048 {ld}")]]
        va = [self.vVA, 9, 10, 11]
        L = [I(f"buffer_load_dwordx4 {ar(self.aV+16*pi+4*q,4)}, v{va[q]}, {R}, s{b+1} offen {ld}") for q in range(4)]
        on, off = (lambda: I(f"s_mov_b64 exec, s[{sVM}:{sVM+1}]")), (lambda: I("s_mov_b64 exec, -1"))
        return K, [[on(), q, off()] for q in L]

    def attn_qk(self, u, dst, units=None):
        kt, T = (units or self.UNITS)[u]
        k = self.vK + 12 * (kt >> 1)
        cin = '0'
        if kt == T:
            cin = vr(self.vCO, 16)
        elif kt == 8 + T:
            cin = vr(self.vCD, 16)
        d = vr(dst, 16)
        z = self.vZ + 4 * T + (0 if kt & 1 else 2)
        return [I(f"v_mfma_f32_32x32x16_bf16 {d}, {vr(k+4*(kt&1),4)}, {vr(self.vQ+4*T,4)}, {cin}"),
                I(f"v_mfma_f32_32x32x16_bf16 {d}, {vr(k+8,4)}, {vr(z,4)}, {d}")]

    def attn_loop(self, fill, swaps, order=(0, 1, 2, 3, 4)):
        c = self.c
        UN = [x for pi in order for x in self.UNITS if x[0] >> 1 == pi]
        n = len(UN)
        S = lambda u: self.vS + 16 * (u & 1)
        P = lambda u: self.vP + 8 * (u & 1)
        seen = set()

        def qk(u):
            kt = UN[u][0]
            pre = []
            if swaps and (kt >> 1) not in seen:
                seen.add(kt >> 1)
                k = self.vK + 12 * (kt >> 1)
                pre = [I(f"v_swap_b32 v{k+2}, v{k+4}"), I(f"v_swap_b32 v{k+3}, v{k+5}")]
            return pre, self.attn_qk(u, S(u), UN)

        def pv(u, s):
            kt, T = UN[u]
            d = vr(self.vO + 16 * T, 16)
            first = (s == 0 and all(x[1] != T for x in UN[:u]))
            return I(f"v_mfma_f32_32x32x16_bf16 {d}, {ar(self.aV+8*kt+4*s,4)}, {vr(P(u)+4*s,4)}, {0 if first else d}")

        ex = lambda u, g: [I(f"v_exp_f32 v{S(u)+4*g+i}, v{S(u)+4*g+i}") for i in range(4)]
        cv = lambda u, g: [I(f"v_cvt_pk_bf16_f32 v{P(u)+2*g+i}, v{S(u)+4*g+2*i}, v{S(u)+4*g+2*i+1}") for i in range(2)]
        slot = [0]

        def mf(m):
            items = [flat(x) for x in fill.get(slot[0], [])]
            slot[0] += 1
            if items:
                f = items[0]
                k = next((j for j, i in enumerate(f) if i.kind in ('vmem', 'ds')), 0)
                c.add(f[:k]); c.add(m); c.add(f[k:]); c.add(items[1:])
            else:
                c.add(m)
        pre, m = qk(0)
        c.add(pre); c.add(m)
        if fill:
            self.stamp("qk0", "attn")
        c.add(fill.get(-1, []))
        for u in range(n + 1):
            pre, m = qk(u + 1) if u + 1 < n else ([], None)
            if u > 0: mf(pv(u - 1, 0))
            if u > 0: c.add(cv(u - 1, 3))
            c.add(pre)
            if u < n: c.add(ex(u, 0))
            if m: mf(m[0])
            if u < n: c.add(ex(u, 1)); c.add(cv(u, 0))
            if m: mf(m[1])
            if u < n: c.add(ex(u, 2)); c.add(cv(u, 1))
            if u > 0: mf(pv(u - 1, 1))
            if u < n: c.add(ex(u, 3)); c.add(cv(u, 2))
            if fill:
                self.stamp(f"u{u}", "attn")
        assert slot[0] == 70

    def same_check(self):
        c = self.c
        self.flag_check(self.vFWD, self.vFWA, span=True)
        c(f"s_add_u32 s{sT+1}, s{sTAG}, s{sXCC}")
        c(f"v_cmp_ne_u32 vcc, s{sT+1}, v{self.vFWD}")
        c(f"s_andn2_b64 vcc, vcc, s[{sHI}:{sHI+1}]")
        c(f"s_cselect_b32 s{sSAME}, 0, 1")
        if self.o.get('nosame'):
            c(f"s_mov_b32 s{sSAME}, 0")

    def attn_prep(self):
        c = self.c
        c(f"s_lshl_b32 s{sT}, s{sU}, 7")
        c(f"s_add_u32 s{sT}, s{sT}, {F2_OFF - FL_OFF}")
        c(f"v_and_b32 v14, 1, v1")
        c(f"v_mul_u32_u24 v14, {F4_OFF - F2_OFF}, v14")
        c(f"v_add_u32 v14, s{sT}, v14")
        c(f"s_lshl_b32 s{sT}, s{sU}, 5")
        c(f"s_add_u32 s{sT}, s{sT}, s{sHEAD}")
        c(f"s_lshl_b32 s{sT}, s{sT}, 7")
        c(f"s_add_u32 s{sT}, s{sT}, {F5_OFF - FL_OFF}")
        c(f"v_writelane_b32 v14, s{sT}, 2")
        c(f"s_lshl_b32 s{sT+1}, s{sTP}, 11")
        c(f"s_add_u32 s{sT+1}, s{sT+1}, {F3_OFF - FL_OFF}")
        c(f"v_and_b32 v15, 15, v1")
        c(f"v_lshl_add_u32 v15, v15, 7, s{sT+1}")
        c(f"v_cndmask_b32 v14, v14, v15, s[{sHI}:{sHI+1}]")
        c(f"s_mul_i32 s{sT+5}, s{sHEAD}, 2560")
        c(f"s_add_u32 s{sT+6}, s{sT+5}, {QK_OFF + 160*512}")
        c(f"s_mul_i32 s{sT+7}, s{sHEAD}, 320")
        c(f"s_add_u32 s{sT+7}, s{sT+7}, {V_OFF}")
        c(f"s_mul_i32 s{sT+4}, s{sU}, 163840")
        c(f"s_add_u32 s{sT+5}, s{sT+5}, s{sT+4}")
        c(f"s_lshl2_add_u32 s{sT+3}, s{sU}, s{sW}")
        c(f"s_mul_i32 s{sT+3}, s{sT+3}, {16*1280}")
        c(f"s_mul_i32 s{sT+2}, s{sNB}, 160")
        c(f"s_add_u32 s{sT+3}, s{sT+3}, s{sT+2}")
        self.attn_kv_prep()

    def attention(self):
        c, o = self.c, self.o
        ld = self.ld
        t = 8
        for r in (0, 1, 4, 5, 8, 9):
            c(f"v_mov_b32 v{self.vZ+r}, 0")
        lab = self.label("w1")
        c(f"s_cmp_lg_u32 s{sW}, 2")
        c(f"s_cbranch_scc1 {lab}")
        c.cond(True)
        self.poll(self.vPOL, sleep=o.get('s1sleep', 0))
        c.cond(False)
        c(f"{lab}:")
        orders = [(3, 4, 2, 1, 0), (2, 3, 1, 4, 0), (1, 2, 3, 0, 4), (0, 1, 2, 3, 4)] if o.get('avar', 1) else [(0, 1, 2, 3, 4)]
        labs = [self.label("av") for _ in orders]
        c(f"s_and_b32 s{sT}, s{sU}, 3")
        for r in range(1, len(orders)):
            c(f"s_cmp_eq_u32 s{sT}, {r}")
            c(f"s_cbranch_scc1 {labs[r]}")
        c(".save av")
        q0 = (list(self.w1q), self.woq)
        for r, order in enumerate(orders):
            c(f"{labs[r]}:")
            c(".restore av")
            self.w1q, self.woq = list(q0[0]), copy_ins(q0[1])
            self.attn_body(order)
            if r + 1 < len(orders):
                c("s_branch Lattn_done")
        c("Lattn_done:")
        self.stamp("attn")
        lo, hi = f2u(2.0 ** -40), f2u(2.0 ** 40)
        O = self.vO
        c(f"v_subrev_u32 v{t}, {hex(lo)}, v{O+12}")
        c(f"v_subrev_u32 v{t+1}, {hex(lo)}, v{O+28}")
        c(f"v_max_u32 v{t}, v{t}, v{t+1}")
        c(f"v_cmp_lt_u32 vcc, {hex(hi-lo)}, v{t}")
        if o.get('forceslow'):
            c("s_mov_b64 vcc, -1")
        c(f"s_cbranch_vccnz Lattn_slow")
        c("Lattn_fin:")
        self.attn_slow()
        self.attn_epilogue('sc1')

    def attn_body(self, order):
        c, o = self.c, self.o
        ld = self.ld
        t = 8
        kv = [self.attn_kv_loads(pi) for pi in order]
        c.add(kv[0][0][0][:-1])
        c("s_barrier")
        self.stamp("s1", "main attn")
        q = self.vQ
        c(f"buffer_load_dwordx4 {vr(q,4)}, v{vL16}, {WSR}, s{sT+5} offen {ld}")
        c(f"buffer_load_dwordx4 {vr(q+4,4)}, v{vL16}, {WSR}, s{sT+5} offen offset:1024 {ld}")
        c.add(kv[0][0][0][-1]); c.add(kv[0][0][1])
        c(f"buffer_load_dwordx4 {vr(self.vQ4,4)}, v{self.vL16m}, {WSR}, s{sT+5} offen offset:2048 {ld}")
        c.add(kv[0][0][2])
        rest = kv[0][1] + kv[1][0] + kv[1][1] + kv[2][0] + kv[2][1] + kv[3][0] + kv[3][1] + kv[4][0] + kv[4][1]
        n0 = o.get('kv0', 7)
        c.add(rest[:n0]); rest = rest[n0:]
        if o.get('x_kv'):
            c("s_waitcnt vmcnt(0)"); self.stamp("kv13")
            c.add(rest); rest = []
            c("s_waitcnt vmcnt(0)"); self.stamp("kvall")
            c.add(self.w1_take(21, 21))
            c("s_waitcnt vmcnt(0)"); self.stamp("w1")
        fl = I(f"buffer_load_dword v{self.vFWD}, v{self.vFWA}, {WSR}, s{sFLB} offen sc1")
        XR = f"s[{sX}:{sX+3}]"
        KV = f"s[{sKV}:{sKV+3}]"
        xl = [[I(f"buffer_load_dwordx4 v{self.vXL+j}, {XR}, s{sT+3} offen offset:{j*1024} lds")] for j in range(3)]
        self.h_x = xl[2][0]
        xl[0] = [I(f"s_add_u32 m0, s{sW1M}, {25600 + 7168}")] + xl[0]
        fill = {}
        n1 = o.get('kv1', 2)
        fill[-1] = rest[:n1]; rest = rest[n1:]

        def place(items, g0, step):
            g = g0
            for it in items:
                assert g < 70
                fill.setdefault(int(g), []).append(it); g += step
            return int(g + 0.999)
        g = place(rest, 0, o.get('kvstep', 13) / 10)
        g = place([I(f"buffer_load_dword v15, v14, {WSR}, s{sFLB} offen sc1")] + xl + self.woq, g, 1)
        place([fl], next(z for z in range(o.get('flg', 8), 70) if z not in fill), 1)
        g = place([self.sub(self.same_check)], max(g, o.get('w1g', 44)), 1)
        w1 = self.w1_take(o.get('w1a', 14))
        place(w1, g, (o.get('w1e', 66) - g) / max(len(w1), 1))
        sb = [I(f"s_mul_i32 s{sT}, s{sU}, 81920"), I(f"s_add_u32 s{sT}, s{sT}, {O_OFF}"),
              I(f"s_lshl_b32 s{sT+1}, s{sHEAD}, 9"), I(f"s_add_u32 s{sT+1}, s{sT+1}, s{sT}"),
              I(f"s_add_u32 s{sT+2}, s{sT+1}, 32768"), I(f"s_lshr_b32 s{sT+4}, s{sHEAD}, 3"),
              I(f"s_and_b32 s{sT+5}, s{sHEAD}, 1"), I(f"s_lshl1_add_u32 s{sT+4}, s{sT+4}, s{sT+5}"),
              I(f"s_bfe_u32 s{sT+5}, s{sHEAD}, 0x20001"), I(f"s_lshl2_add_u32 s{sT+4}, s{sT+4}, s{sT+5}"),
              I(f"s_lshl_b32 s{sT+4}, s{sT+4}, 8"), I(f"s_add_u32 s{sT+4}, s{sT+4}, s{sT}"),
              I(f"s_add_u32 s{sT+4}, s{sT+4}, 65536")]
        place([sb[:4], sb[4:]], 68, 1)
        c(f"v_swap_b32 v{q+2}, v{q+4}")
        c(f"v_swap_b32 v{q+3}, v{q+5}")
        for T in range(2):
            for i in range(2):
                c(f"v_cndmask_b32 v{self.vZ+2+4*T+i}, v{self.vQ4+2*T+i}, 0, s[{sHI}:{sHI+1}]")
        self.attn_loop(fill, True, order)

    def attn_epilogue(self, st):
        c, o = self.c, self.o
        t, O, ob = 8, self.vO, 16
        c(f"v_rcp_f32 v{t}, v{O+12}")
        c(f"v_rcp_f32 v{t+1}, v{O+28}")
        for T in range(2):
            sel = "op_sel_hi:[1,0]" if T == 0 else "op_sel:[0,1] op_sel_hi:[1,1]"
            for i in range(6):
                r = O + 16 * T + 2 * i
                c(f"v_pk_mul_f32 {vr(r,2)}, {vr(r,2)}, {vr(t,2)} {sel}")
            for i in range(6):
                r = O + 16 * T + 2 * i
                d = ob + 4 * T + i if i < 4 else ob + 8 + 2 * T + (i - 4)
                c(f"v_cvt_pk_bf16_f32 v{d}, v{r}, v{r+1}")
            c(f"buffer_store_dwordx4 {vr(ob+4*T,4)}, v{t+4}, {WSR}, s{sT+1+T} offen {st}")
        c(f"s_not_b64 exec, s[{sHI}:{sHI+1}]")
        h = c(f"buffer_store_dwordx4 {vr(ob+8,4)}, v{t+5}, {WSR}, s{sT+4} offen {st}")
        c("s_mov_b64 exec, -1")
        c.add(self.w1_take(o.get('w1b', 0)))
        self.p3_prep()
        c.wait(h)
        self.stamp("odrain")
        self.flag_store_near(sT + 13)

    def attn_slow(self):
        old, self.c = self.c, self.ool
        c = self.c
        t = 16
        c("Lattn_slow:")
        c("s_waitcnt vmcnt(0) lgkmcnt(0)")
        c(f"v_mov_b32 v{t}, 0xff800000")
        c(f"v_mov_b32 v{t+1}, 0xff800000")
        for pi in range(5):
            lab = self.label("sl")
            c(f"s_cmp_ge_u32 s{sU}, {4-pi}")
            c(f"s_cselect_b32 s{sT+12}, 0x3f803f80, 0")
            c(f"v_mov_b32 v{t+2}, s{sT+12}")
            for i in range(4):
                r = self.vK + 12 * pi + 8 + i
                c(f"v_cndmask_b32 v{r}, v{r}, v{t+2}, s[{sHI}:{sHI+1}]")
            c(f"s_cbranch_scc0 {lab}")
            for u, (kt, T) in enumerate(self.UNITS):
                if kt >> 1 != pi:
                    continue
                c.add(self.attn_qk(u, self.vS))
                for i in range(8):
                    c(f"v_max3_f32 v{t+T}, v{self.vS+2*i}, v{self.vS+2*i+1}, v{t+T}")
            c(f"{lab}:")
        for T in range(2):
            c(f"v_mov_b32 v{t+2}, v{t+T}")
            c(f"v_permlane32_swap_b32 v{t+2}, v{t+T}")
            c(f"v_max_f32 v{t+2}, v{t+2}, v{t+T}")
            c(f"v_xor_b32 v{t+2}, 0x80000000, v{t+2}")
            c(f"v_and_b32 v{t+3}, s{sMASK}, v{t+2}")
            c(f"v_sub_f32 v{t+2}, v{t+2}, v{t+3}")
            c(f"v_and_b32 v{t+4}, s{sMASK}, v{t+2}")
            c(f"v_sub_f32 v{t+2}, v{t+2}, v{t+4}")
            c(f"v_lshrrev_b32 v{t+3}, 16, v{t+3}")
            c(f"v_or_b32 v{t+3}, v{t+3}, v{t+4}")
            c(f"v_lshrrev_b32 v{t+2}, 16, v{t+2}")
            z = self.vZ + 2 + 4 * T
            c(f"v_cndmask_b32 v{z}, v{z}, v{t+3}, s[{sHI}:{sHI+1}]")
            c(f"v_cndmask_b32 v{z+1}, v{z+1}, v{t+2}, s[{sHI}:{sHI+1}]")
        self.attn_loop({}, False)
        c("s_branch Lattn_fin")
        self.c = old

    RED = 143360
    vRES = 236
    CORD = (1, 2, 3, 0)
    p3A, p3L, p3AC, p3PB, p3SUM = 64, 128, 144, 184, 204
    p3PR = (184, 64, 84)

    def p3_prep(self):
        c = self.c
        t = 32
        c(f"s_lshl_b32 s{sT+13}, s{sU}, 7")
        c(f"s_lshl_b32 s{sT+3}, s{sW}, 5")
        c(f"s_add_u32 s{sT+3}, s{sT+3}, s{sT+13}")
        c(f"s_add_u32 s{sT+3}, s{sT+3}, {F2_OFF - FL_OFF}")
        c(f"s_lshl2_add_u32 s{sT+13}, s{sHEAD}, s{sT+13}")
        c(f"s_add_u32 s{sT+13}, s{sT+13}, {F2_OFF}")
        c(f"v_and_b32 v{self.vPOL}, 7, v1")
        c(f"v_lshl_add_u32 v{self.vPOL}, v{self.vPOL}, 2, s{sT+3}")
        c(f"s_lshl_b32 s{sT+6}, s{sW}, 12")
        c(f"s_add_u32 s{sT+6}, s{sT+6}, s{sT}")
        for i, cc in enumerate(self.CORD):
            c(f"s_xor_b32 s{sT+5}, s{sW}, {cc}")
            c(f"s_lshl_b32 s{sT+8+i}, s{sT+5}, 14")
            c(f"s_add_u32 s{sT+8+i}, s{sT+8+i}, s{sT+6}")
            c(f"s_mul_i32 s{sT+5}, s{sT+5}, {5120 if i in (0, 3) else 35840}")
            c(f"s_add_u32 s{sT+5}, s{sT+5}, {self.RED if i in (0, 3) else 25600 + (i-1)*5120}")
            c(f"v_add_u32 v{t+2+i}, s{sT+5}, v{vL16}")
        c(f"s_lshl_b32 s{sT+6}, s{sW}, 11")
        c(f"s_add_u32 s{sT+5}, s{sT}, s{sT+6}")
        c(f"s_add_u32 s{sT+5}, s{sT+5}, 65536")
        c(f"s_and_b32 s{sT+7}, s{sW}, 1")
        c(f"s_lshl_b32 s{sT+7}, s{sT+7}, 13")
        c(f"s_xor_b32 s{sT+6}, s{sT+7}, 8192")
        c(f"s_add_u32 s{sT+6}, s{sT+6}, s{sT+5}")
        c(f"s_add_u32 s{sT+7}, s{sT+7}, s{sT+5}")
        c(f"s_lshr_b32 s{sT+5}, s{sW}, 1")
        c(f"s_cselect_b64 s[{sT+14}:{sT+15}], -1, 0")
        c(f"s_lshl_b32 s{sT+5}, s{sT+5}, 10")
        c(f"v_xor_b32 v{t}, s{sT+5}, v{vL16}")
        c(f"v_xor_b32 v{t+1}, 1024, v{t}")
        c(f"s_add_u32 s{sT+5}, s{sW1M}, 25600")
        c(f"v_add_u32 v{t+12}, s{sT+5}, v{vL16}")
        c(f"v_and_b32 v{t+6}, 15, v1")
        c(f"v_mul_u32_u24 v{t+6}, 160, v{t+6}")
        c(f"v_add_u32 v{t+6}, s{sT+5}, v{t+6}")
        c(f"v_lshrrev_b32 v{t+7}, 4, v1")
        c(f"v_lshl_add_u32 v{t+8}, v{t+7}, 4, v{t+6}")
        c(f"v_lshl_add_u32 v{t+7}, v{t+7}, 3, v{t+6}")
        c(f"ds_read_b128 {vr(self.vX,4)}, v{t+8} offset:7168", waits=[self.h_x])
        c(f"ds_read_b128 {vr(self.vX+4,4)}, v{t+8} offset:{7168+64}")
        c(f"ds_read_b64 {vr(self.vX+8,2)}, v{t+7} offset:{7168+128}")
        for j in range(10):
            c(f"v_lshlrev_b32 v{self.p3SUM+2*j}, 16, v{self.vX+j}")
            c(f"v_and_b32 v{self.p3SUM+2*j+1}, s{sMASK}, v{self.vX+j}")

    def phase3(self):
        c, o = self.c, self.o
        ld = o.get('la', 'sc1')
        vA, vL, vAC, vPB, vSUM = self.p3A, self.p3L, self.p3AC, self.p3PB, self.p3SUM
        t = 32
        c(f"s_lshl2_add_u32 s{sT}, s{sU}, s{sW}")
        c(f"s_mul_i32 s{sT+1}, s{sT}, 20480")
        c(f"s_mul_i32 s{sT+2}, s{sNB}, 2560")
        c(f"s_add_u32 s{sT+1}, s{sT+1}, s{sT+2}")
        c(f"s_add_u32 s{sT+1}, s{sT+1}, {H_OFF}")
        c(f"s_lshl3_add_u32 s{sT+2}, s{sT}, s{sNB}")
        c(f"s_lshl_b32 s{sT+2}, s{sT+2}, 7")
        c(f"s_add_u32 s{sT+13}, s{sT+2}, {F3_OFF}")
        c(f"s_add_u32 s{sT+2}, s{sT+2}, {HST_OFF}")
        c(f"v_and_b32 v{t+6}, 15, v1")
        c(f"v_lshrrev_b32 v{t+7}, 5, v1")
        c(f"v_lshl_add_u32 v{t+6}, v{t+7}, 4, v{t+6}")
        c(f"v_lshlrev_b32 v{t+7}, 4, v{t+6}")
        c(f"v_lshlrev_b32 v{t+6}, 2, v{t+6}")
        c(f"s_mov_b32 s{sT+4}, 0xffff")
        c(f"s_mov_b32 s{sT+5}, 0xffff")
        c("s_barrier")
        self.poll(self.vPOL)
        self.stamp("s2", "main p3")
        L = []
        for i in range(4):
            for s in range(4):
                L.append(I(f"buffer_load_dwordx4 {vr(vA+16*i+4*s,4)}, v{vL16}, {WSR}, s{sT+8+i} offen offset:{s*1024} {ld}"))
            if i < 2:
                L.append(I(f"buffer_load_dwordx4 {vr(vL+8*i,4)}, v{t}, {WSR}, s{sT+6+i} offen {ld}"))
                L.append(I(f"buffer_load_dwordx4 {vr(vL+8*i+4,4)}, v{t+1}, {WSR}, s{sT+6+i} offen {ld}"))
        n0 = o.get('p3n0', 8)
        c.add(L[:n0])
        L = L[n0:] + self.w1_take(35)

        def swaps(g):
            q = vL + 8 * g
            return [I(f"s_not_b64 exec, s[{sT+14}:{sT+15}]"), I(f"v_swap_b32 v{q+2}, v{q+4}"), I(f"v_swap_b32 v{q+3}, v{q+5}"),
                    I(f"s_mov_b64 exec, s[{sT+14}:{sT+15}]"), I(f"v_swap_b32 v{q}, v{q+6}"), I(f"v_swap_b32 v{q+1}, v{q+7}"),
                    I("s_mov_b64 exec, -1")]
        left = {0: vL, 1: vL + 12, 2: vL + 4, 3: vL + 8}
        lper = o.get('p3lp', 3)
        for i in range(4):
            ac = vAC + 20 * (i & 1) if i < 3 else vSUM
            M = []
            for s in range(5):
                b = vA + 16 * i + 4 * s if s < 4 else left[i]
                for tl in range(5):
                    d = vr(ac + 4 * tl, 4)
                    M.append(I(f"v_mfma_f32_16x16x32_bf16 {d}, {ar(self.aWO+4*(5*s+tl),4)}, {vr(b,4)}, {0 if s == 0 and i < 3 else d}"))
            F = [[] for _ in range(25)]
            if i < 2:
                F[17] += swaps(i)
            if i > 0:
                pa = vAC + 20 * ((i - 1) & 1)
                for tl in range(5):
                    F[(3 + 2 * tl) if i == 3 else (3 + 4 * tl)] += [I(f"ds_write_b128 v{t+2+i-1}, {vr(pa+4*tl,4)} offset:{tl*1024}")]
            if i == 3:
                F[14] += [I("s_waitcnt lgkmcnt(0)"), I("s_barrier")]
                for r in range(3):
                    for tl in range(5):
                        src = f"v{t+5} offset:{tl*1024}" if r == 0 else f"v{t+12} offset:{(r-1)*5120 + tl*1024}"
                        F[15 + (5 * r + tl) * 2 // 3] += [I(f"ds_read_b128 {vr(self.p3PR[r]+4*tl,4)}, {src}")]
            for k in range(25):
                c.add(M[k])
                if L and (25 * i + k) % lper == 0:
                    c.add(L.pop(0))
                c.add(F[k])
                if k in (0, 8, 12, 24):
                    self.stamp(f"i{i}k{k}", "p3")
        c.add(L)
        self.stamp("p3")
        self.p3_epilogue('sc1')

    def p3_epilogue(self, st):
        c, o = self.c, self.o
        vAC, vPB, vSUM = self.p3AC, self.p3PB, self.p3SUM
        t = 32
        ac = vAC + 20
        rs = self.vRES
        for j in range(10):
            c(f"v_pk_add_f32 {vr(self.p3PR[1]+2*j,2)}, {vr(self.p3PR[0]+2*j,2)}, {vr(self.p3PR[1]+2*j,2)}")
        for P in range(3):
            for src in (self.p3PR[1], self.p3PR[2]):
                for j in range(4 * P, min(4 * P + 4, 10)):
                    c(f"v_pk_add_f32 {vr(vSUM+2*j,2)}, {vr(vSUM+2*j,2)}, {vr(src+2*j,2)}")
            for j in range(4 * P, min(4 * P + 4, 10)):
                c(f"v_cvt_pk_bf16_f32 v{rs+j}, v{vSUM+2*j}, v{vSUM+2*j+1}")
            if P < 2:
                c(f"buffer_store_dwordx4 {vr(rs+4*P,4)}, v{vL16}, {WSR}, s{sT+1} offen offset:{P*1024} {st}")
        for j in range(4):
            c(f"v_mov_b32 v{vPB+j}, v{rs+8+(j&1)}")
        a1, a2 = t + 8, t + 10
        c(f"v_pk_add_f32 {vr(a1,2)}, {vr(vSUM,2)}, {vr(vSUM+2,2)}")
        c(f"v_pk_mul_f32 {vr(a2,2)}, {vr(vSUM,2)}, {vr(vSUM,2)}")
        c(f"v_permlane16_swap_b32 v{vPB}, v{vPB+2}")
        c(f"v_permlane16_swap_b32 v{vPB+1}, v{vPB+3}")
        c(f"s_mov_b64 exec, s[{sT+4}:{sT+5}]")
        c(f"buffer_store_dwordx4 {vr(vPB,4)}, v{t+7}, {WSR}, s{sT+1} offen offset:2048 {st}")
        c("s_mov_b64 exec, -1")
        for j in range(1, 10):
            if j > 1:
                c(f"v_pk_add_f32 {vr(a1,2)}, {vr(a1,2)}, {vr(vSUM+2*j,2)}")
            c(f"v_pk_fma_f32 {vr(a2,2)}, {vr(vSUM+2*j,2)}, {vr(vSUM+2*j,2)}, {vr(a2,2)}")
        c(f"v_add_f32 v{a1}, v{a1}, v{a1+1}")
        c(f"v_add_f32 v{a2}, v{a2}, v{a2+1}")
        c(f"v_permlane32_swap_b32 v{a1}, v{a2}")
        c(f"v_add_f32 v{a1}, v{a1}, v{a2}")
        c(f"v_mov_b32 v{a2}, v{a1}")
        c(f"v_permlane16_swap_b32 v{a1}, v{a2}")
        c(f"v_add_f32 v{a1}, v{a1}, v{a2}")
        c(f"s_mov_b64 exec, s[{sT+4}:{sT+5}]")
        h = c(f"buffer_store_dword v{a1}, v{t+6}, {WSR}, s{sT+2} offen {st}")
        c("s_mov_b64 exec, -1")
        for n in range(10):
            c(f"ds_write_b128 v{t+12}, {ar(self.aW1L+4*n,4)} offset:{n*1024}")
        self.p4_prep()
        c.wait(h)
        self.stamp("hdrain")
        self.flag_store(sT + 13)
        c("s_waitcnt lgkmcnt(0)")
        c("s_barrier")
        self.csum_k = 0
        self.r0 = None
        if o.get('csb', 40) >= 40:
            r0 = [I(f"ds_read_b128 {vr(self.p4W+4*tl,4)}, v{vL16} offset:{tl*1024}") for tl in range(7)]
            self.r0 = list(r0)
            self.csum(40, r0)
        else:
            self.csum(min(o['csb'], 30))

    def csum(self, n, tail=None):
        c = self.c
        vAC, vC, vONE, NB, LA = self.p4AC, self.p4CS, 56, 14, 10
        rd = lambda k: I(f"ds_read_b128 {vr(vAC+4*(k%NB),4)}, v{52+(k>>1)//9} offset:{((k>>1)%9)*7168 + (k&1)*4096}")
        if self.csum_k == 0:
            for k in range(LA):
                c.add(rd(k))
        for k in range(self.csum_k, min(self.csum_k + n, 40)):
            d = vr(vC + 4 * (k & 1), 4)
            c(f"v_mfma_f32_16x16x32_bf16 {d}, {vr(vAC+4*(k%NB),4)}, {vr(vONE,4)}, {0 if k < 2 else d}")
            if k + LA < 40:
                c.add(rd(k + LA))
            elif tail:
                c.add(tail[:1]); del tail[:1]
        self.csum_k = min(self.csum_k + n, 40)

    p4AC, p4W, p4A, p4NR, p4ST, p4CS = 64, 120, 176, 7, 16, 24

    def p4_prep(self):
        c = self.c
        t = 8
        c(f"s_mov_b32 s{sT}, s{sTP}")
        c(f"s_mul_i32 s{sT+6}, s{sT}, 40960")
        c(f"s_add_u32 s{sT+6}, s{sT+6}, {H_OFF}")
        c(f"s_add_u32 s{sT+7}, s{sT+6}, 20480")
        c(f"s_lshl_b32 s{sT+8}, s{sT}, 11")
        c(f"s_add_u32 s{sT+8}, s{sT+8}, {HST_OFF}")
        c(f"v_and_b32 v{t}, 31, v1")
        c(f"v_lshrrev_b32 v{t+1}, 5, v1")
        c(f"v_lshlrev_b32 v{t}, 2, v{t}")
        c(f"v_lshl_add_u32 v{t}, v{t+1}, 10, v{t}")
        c(f"v_add_u32 v{t+2}, {9*7168}, v{vL16}")
        c(f"v_add_u32 v{t+3}, {18*7168}, v{vL16}")
        c(f"v_and_b32 v{t+4}, 48, v1")
        c(f"v_add_u32 v{t+4}, {self.RED}, v{t+4}")
        c(f"s_mul_i32 s{sT+9}, s{sW}, 5120")
        c(f"v_add_u32 v{t+5}, s{sT+9}, v{t+4}")
        c(f"s_lshl_b32 s{sT+9}, s{sT}, 11")
        c(f"s_add_u32 s{sT+9}, s{sT+9}, {F3_OFF - FL_OFF}")
        c(f"v_and_b32 v{self.vPOL}, 15, v1")
        c(f"v_lshl_add_u32 v{self.vPOL}, v{self.vPOL}, 7, s{sT+9}")
        c(f"s_lshl_b32 s{sT+9}, s{sW}, 10")
        c(f"v_add_u32 v52, s{sT+9}, v{vL16}")
        c(f"v_add_u32 v53, {9*7168}, v52")
        c(f"v_add_u32 v54, {18*7168}, v52")
        for j in range(4):
            c(f"v_mov_b32 v{56+j}, 0x3f803f80")

    def phase4(self):
        c, o = self.c, self.o
        ld = o.get('la', 'sc1')
        vAC, vW, vA, NR, vST, vCS = self.p4AC, self.p4W, self.p4A, self.p4NR, self.p4ST, self.p4CS
        t = 8
        wa = [vL16, t + 2, t + 3]
        rdw = lambda s: [I(f"ds_read_b128 {vr(vW+28*(s&1)+4*tl,4)}, v{wa[s//9]} offset:{(s%9)*7168 + tl*1024}") for tl in range(7)]
        vC = vCS
        self.poll(self.vPOL)
        self.stamp("s3", "main p4")

        def lda(s):
            g = []
            for a in range(2):
                pre = [I(f"s_add_u32 s{sT+6+a}, s{sT+6+a}, 4096")] if s and s % 4 == 0 else []
                g.append(pre + [I(f"buffer_load_dwordx4 {vr(vA+8*(s%NR)+4*a,4)}, v{vL16}, {WSR}, s{sT+6+a} offen offset:{(s&3)*1024} {ld}")])
            return g
        Q = [x for s in range(20) for x in lda(s)]
        n0 = o.get('p4n0', 8)
        c.add(Q[:n0]); qi = n0
        r0 = rdw(0) if self.r0 is None else []
        Rp = list(r0) if self.r0 is None else self.r0
        self.csum(40, r0)
        c.add(r0)
        self.stamp("csum", "p4")
        extra = [[I(f"buffer_load_dword v{vST+j}, v{t}, {WSR}, s{sT+8} offen offset:{j*128} {ld}")] for j in range(8)]
        misc = {k: [] for k in range(20)}
        wr = [I(f"ds_write_b128 v{t+5}, {vr(vC,4)}"), I(f"ds_write_b128 v{t+5}, {vr(vC+4,4)} offset:64")]
        misc[0] = wr
        sb = o.get('p4b', 8)
        misc[sb] = [[W(wr[1]), I("s_barrier")]]
        for tl in range(7):
            misc[sb + 1 + tl // 3].append(I(f"ds_read_b128 {vr(vCS+4*tl,4)}, v{t+4} offset:{(tl&3)*5120 + (tl>>2)*64}"))
        sw = o.get('p4w', 4)
        credit = 0
        fin = self.sub(self.p4_stats)
        V = {k: [] for k in range(20)}
        for j, x in enumerate(fin):
            V[11 + j // 10].append(x)
        assert len(fin) <= 40
        for s in range(20):
            M = []
            for tl in range(7):
                for a in range(2):
                    d = vr(vAC + 28 * a + 4 * tl, 4)
                    M.append(I(f"v_mfma_f32_16x16x32_bf16 {d}, {vr(vW+28*(s&1)+4*tl,4)}, {vr(vA+8*(s%NR)+4*a,4)}, {0 if s == 0 else d}"))
            Rn = rdw(s + 1) if s < 19 else [[]] * 7
            na = min(min(2 * (s + NR), 40) - qi, o.get('p4r', 3))
            F = Q[qi:qi + na]; qi += na
            assert qi >= min(2 * (s + 2), 40)
            ne = 2 if s < sw else 0
            F += extra[:ne]; extra = extra[ne:]
            if s >= sw:
                assert not extra
                credit += o.get('p4x', 20) if na else o.get('p4y', 30)
                F += self.w2_take(credit // 10); credit %= 10
            F += misc[s]
            assert len(F) <= 7, (s, len(F))
            if 15 <= s < 19:
                for k in range(14):
                    tl, a = divmod((k + 7) % 14, 2)
                    V[s].append(I(f"v_fmac_f32 v{vAC + 28*a + 4*tl + s - 15}, v{vCS + 4*tl + s - 15}, v{vST + 2*a}"))
            M[0].waits = [Rp[3]]; M[8].waits = [Rp[6]]
            Rp = Rn
            for k in range(14):
                f = flat(F[k // 2]) if k % 2 and k // 2 < len(F) else []
                j = next((j for j, i in enumerate(f) if i.kind == 'vmem'), 0)
                c.add(f[:j]); c.add(M[k]); c.add(f[j:]); c.add(Rn[k // 2] if k % 2 == 0 else [])
                c.add(V[s][k:k + 1])
            if s < 8 or s % 2:
                self.stamp(f"k{s}", "p4")
        self.stamp("p4")
        self.p4_epilogue('sc1')

    def p4_stats(self):
        c = self.c
        vST, t = self.p4ST, 8
        for j in range(1, 8):
            c(f"v_add_f32 v{vST}, v{vST}, v{vST+j}")
        c(f"v_mov_b32 v{vST+1}, v{vST}")
        c(f"v_permlane16_swap_b32 v{vST}, v{vST+1}")
        c(f"v_mul_f32 v{vST}, {hex(f2u(-1.0/640))}, v{vST}")
        c(f"v_mul_f32 v{vST+1}, {hex(f2u(1.0/640))}, v{vST+1}")
        c(f"v_fma_f32 v{vST+1}, -v{vST}, v{vST}, v{vST+1}")
        c(f"v_max_f32 v{vST+1}, 0, v{vST+1}")
        c(f"v_add_f32 v{vST+1}, {hex(f2u(1e-5))}, v{vST+1}")
        c(f"v_rsq_f32 v{vST+1}, v{vST+1}")
        nl = hex(f2u(-1.4426950408889634))
        c(f"v_mov_b32 v{vST+4}, {nl}")
        c(f"v_mov_b32 v{vST+5}, {nl}")
        c(f"v_mul_f32 v{vST+1}, v{vST+4}, v{vST+1}")
        c(f"v_mov_b32 v{vST+2}, v{vST}")
        c(f"v_mov_b32 v{vST+3}, v{vST+1}")
        c(f"v_permlane32_swap_b32 v{vST}, v{vST+2}")
        c(f"v_permlane32_swap_b32 v{vST+1}, v{vST+3}")
        c(f"s_mul_i32 s{sT+1}, s{sT}, {2*57344}")
        c(f"s_mul_i32 s{sT+2}, s{sFB}, 3584")
        c(f"s_add_u32 s{sT+1}, s{sT+1}, s{sT+2}")
        c(f"s_add_u32 s{sT+1}, s{sT+1}, {H1_OFF}")
        c(f"s_add_u32 s{sT+2}, s{sT+1}, 57344")
        c(f"v_bfe_u32 v{t+6}, v1, 4, 1")
        c(f"v_mul_u32_u24 v{t+6}, 57344, v{t+6}")
        c(f"v_and_b32 v{t+7}, 15, v1")
        c(f"v_lshl_add_u32 v{t+6}, v{t+7}, 4, v{t+6}")
        c(f"v_lshl_add_u32 v{t+6}, v{t+1}, 8, v{t+6}")
        c(f"s_lshl_b32 s{sT+13}, s{sU}, 7")
        c(f"s_lshl2_add_u32 s{sT+13}, s{sHEAD}, s{sT+13}")
        c(f"s_add_u32 s{sT+13}, s{sT+13}, {F4_OFF}")

    def p4_epilogue(self, st):
        c, o = self.c, self.o
        vAC, vW, vST, vCS = self.p4AC, self.p4W, self.p4ST, self.p4CS
        t = 8
        vE, vOUT = 52, vW
        groups = [[(a, 2 * P), (a, 2 * P + 1)] for P in range(3) for a in range(2)] + [[(0, 6), (1, 6)]]
        for gi, g in enumerate(groups):
            if gi < 5:
                c.add(self.w2_take(o.get('p4e', 0)))
            pairs = [(vAC + 28 * a + 4 * tl + 2 * q, vCS + 4 * tl + 2 * q, vST + 2 * a) for a, tl in g for q in range(2)]
            for r, cs, sv in pairs:
                c(f"v_pk_mul_f32 {vr(r,2)}, {vr(r,2)}, {vr(sv,2)} op_sel:[0,1] op_sel_hi:[1,1]")
            for k, (r, cs, sv) in enumerate(pairs):
                c(f"v_exp_f32 v{vE+2*k}, v{r}")
                c(f"v_exp_f32 v{vE+2*k+1}, v{r+1}")
            for k in range(4):
                c(f"v_pk_fma_f32 {vr(vE+2*k,2)}, {vr(vE+2*k,2)}, {vr(vST+4,2)}, {vr(vST+4,2)}")
            for k in range(8):
                c(f"v_rcp_f32 v{vE+k}, v{vE+k}")
            for k, (r, cs, sv) in enumerate(pairs):
                c(f"v_pk_mul_f32 {vr(r,2)}, {vr(r,2)}, {vr(vE+2*k,2)}")
            out = vOUT + 4 * gi
            for k, (r, cs, sv) in enumerate(pairs):
                c(f"v_cvt_pk_bf16_f32 v{out+k}, v{r}, v{r+1}")
            if gi < 6:
                c(f"buffer_store_dwordx4 {vr(out,4)}, v{vL16}, {WSR}, s{sT+1+(gi&1)} offen offset:{(gi>>1)*1024} {st}")
            else:
                c(f"v_permlane16_swap_b32 v{out}, v{out+2}")
                c(f"v_permlane16_swap_b32 v{out+1}, v{out+3}")
                h = c(f"buffer_store_dwordx4 {vr(out,4)}, v{t+6}, {WSR}, s{sT+1} offen offset:3072 {st}")
        self.stamp("p4epi")
        c.add(self.w2_take(o.get('p4d', 0)))
        self.p5_prep()
        self.p5_prep2()
        c.wait(h)
        self.stamp("h1drain")
        self.flag_store_near(sT + 13)
        c.add(self.w2_take(70))

    p5A, p5NR, p5AC, p5PB, p5SUM, p5S0 = 64, 20, 144, 208, 32, 184
    sA5 = 64

    def p5_prep(self):
        c = self.c
        c(f"s_mul_i32 s{sT+5}, s{sK8}, 7168")
        c(f"s_add_u32 s{sT+5}, s{sT+5}, {H1_OFF}")
        c(f"s_lshl2_add_u32 s{sT+7}, s{sU}, s{sW}")
        for i in range(8):
            c(f"s_xor_b32 s{sT+6}, s{sT+7}, {self.CORD[i & 3] + (16 if i < 4 else 0)}")
            c(f"s_mul_i32 s{self.sA5+i}, s{sT+6}, 57344")
            c(f"s_add_u32 s{self.sA5+i}, s{self.sA5+i}, s{sT+5}")
        c(f"s_lshl2_add_u32 s{sT+3}, s{sU}, s{sW}")
        c(f"s_lshl_b32 s{sT+3}, s{sT+3}, 5")
        c(f"s_add_u32 s{sT+3}, s{sT+3}, {F4_OFF - FL_OFF}")
        c(f"v_and_b32 v{self.vPOL}, 7, v1")
        c(f"v_lshl_add_u32 v{self.vPOL}, v{self.vPOL}, 2, s{sT+3}")

    def p5_prep2(self):
        c = self.c
        t, rs, vSUM = 16, self.vRES, self.p5SUM
        for i, cc in enumerate(self.CORD):
            c(f"s_xor_b32 s{sT+6}, s{sW}, {cc}")
            c(f"s_mul_i32 s{sT+6}, s{sT+6}, 30720")
            if 0 < i < 3:
                c(f"s_add_u32 s{sT+6}, s{sT+6}, {i*5120}")
            c(f"v_add_u32 v{t+6+i}, s{sT+6}, v{vL16}")
        for j in range(10):
            c(f"v_lshlrev_b32 v{vSUM+2*j}, 16, v{rs+j}")
            c(f"v_and_b32 v{vSUM+2*j+1}, s{sMASK}, v{rs+j}")
        c(f"s_lshl_b32 s{sT+6}, s{sU}, 5")
        c(f"s_add_u32 s{sT+6}, s{sT+6}, s{sHEAD}")
        c(f"s_xor_b32 s{sT+7}, s{sT+6}, 128")
        c(f"s_mul_i32 s{sT+4}, s{sT+6}, 2560")
        c(f"s_add_u32 s{sT+4}, s{sT+4}, {PX_OFF}")
        c(f"s_mul_i32 s{sT+5}, s{sT+7}, 2560")
        c(f"s_add_u32 s{sT+5}, s{sT+5}, {PX_OFF}")
        c(f"s_lshl_b32 s72, s{sT+7}, 7")
        c(f"s_add_u32 s72, s72, {F5_OFF}")
        c(f"s_lshl_b32 s{sT+6}, s{sT+6}, 7")
        c(f"s_add_u32 s{sT+6}, s{sT+6}, {F5_OFF - FL_OFF}")
        c(f"v_mov_b32 v{self.vFWA}, s{sT+6}")
        c(f"v_lshlrev_b32 v{t+12}, 3, v1")
        c(f"s_lshl_b32 s{sT+6}, s{sW}, 12")
        c(f"s_add_u32 s{sT+6}, s{sT+6}, 122880")
        c(f"v_and_b32 v{t}, 15, v1")
        c(f"v_mul_u32_u24 v{t}, 160, v{t}")
        c(f"v_add_u32 v{t}, s{sT+6}, v{t}")
        c(f"v_lshrrev_b32 v{t+1}, 4, v1")
        c(f"v_lshl_add_u32 v{t+2}, v{t+1}, 3, v{t}")
        c(f"v_lshl_add_u32 v{t+1}, v{t+1}, 4, v{t}")
        c(f"v_add_u32 v{t}, s{sT+6}, v{vL16}")
        for j in range(3):
            c(f"v_add_u32 v{t+10}, {64*j}, v1")
            c(f"v_mul_u32_u24 v{t+11}, 6554, v{t+10}")
            c(f"v_lshrrev_b32 v{t+11}, 16, v{t+11}")
            c(f"v_mul_u32_u24 v{t+11}, {1280-160}, v{t+11}")
            c(f"v_lshl_add_u32 v{t+3+j}, v{t+10}, 4, v{t+11}")
        c(f"s_lshl2_add_u32 s{sT}, s{sU}, s{sW}")
        c(f"s_mul_i32 s{sT}, s{sT}, {16*1280}")
        c(f"s_mul_i32 s{sT+1}, s{sNB}, 160")
        c(f"s_add_u32 s{sT}, s{sT}, s{sT+1}")

    def phase5(self):
        c, o = self.c, self.o
        ld = o.get('la', 'sc1')
        vA, NR, vAC, vPB, vSUM, vS0 = self.p5A, self.p5NR, self.p5AC, self.p5PB, self.p5SUM, self.p5S0
        t = 16
        rs = self.vRES
        c("s_barrier")
        self.poll(self.vPOL)
        self.stamp("s4", "main p5")

        def lda(k):
            i, s = divmod(k, 7)
            pre = [I(f"s_add_u32 s{self.sA5+i}, s{self.sA5+i}, 4096")] if s == 4 else []
            return pre + [I(f"buffer_load_dwordx4 {vr(vA+4*(k%NR),4)}, v{vL16}, {WSR}, s{self.sA5+i} offen offset:{(s&3)*1024} {ld}")]
        LA = o.get('p5la', 12)
        qi = o.get('p5n0', 8)
        for k in range(qi):
            c.add(lda(k))
        F = [[] for _ in range(280)]
        add = lambda d, x, n=20: [I(f"v_add_f32 v{d+j}, v{d+j}, v{x+j}") for j in range(n)]
        vXP = 52

        def put(items, g, per=1, step=1):
            items = list(items)
            while items:
                n = per
                if g % 5 == 0 and g // 5 + LA < 56 or g % 5 == 4:
                    n = per - 1
                F[g] += items[:n]; items = items[n:]; g += step
            return g
        for i in range(1, 8):
            half, r = divmod(i - 1, 4)
            g = 35 * i
            pa = vAC + 20 * ((i - 1) & 1)
            if r == 3:
                A = add(vS0, vPB)
                it = []
                for P in range(3):
                    js = range(4 * P, min(4 * P + 4, 10))
                    it += [x for j in js for x in A[2 * j:2 * j + 2]]
                    it += [I(f"v_cvt_pk_bf16_f32 v{vXP+j}, v{vS0+2*j}, v{vS0+2*j+1}") for j in js]
                    if P < 2:
                        hs = I(f"buffer_store_dwordx4 {vr(vXP+4*P,4)}, v{vL16}, {WSR}, s{sT+5} offen offset:{P*1024} sc1")
                    else:
                        hs = I(f"buffer_store_dwordx2 {vr(vXP+8,2)}, v{t+12}, {WSR}, s{sT+5} offen offset:2048 sc1")
                    it += [hs]
                put(it, g + 3, 2)
                fs = self.sub(self.flag_store, 72)
                fs[0].waits = [hs]
                F[g + o.get('p5f', 52)] += fs
                continue
            last = r == 1
            wr = [I(f"ds_write_b128 v{t+6+r}, {vr(pa+4*tl,4)} offset:{half*15360 + tl*1024}") for tl in range(5)]
            for tl, g1 in enumerate((3, 6, 8, 11, 13) if last else (3, 7, 11, 13, 17)):
                F[g + g1].insert(0, wr[tl])
            gb = g + (17 if last else 22)
            F[gb] += [W(wr[-1]), I("s_barrier")]
            dst = vS0 if i == 1 else vPB
            rd = [I(f"ds_read_b128 {vr(dst+4*tl,4)}, v{t+9} offset:{half*15360 + r*5120 + tl*1024}") for tl in range(5)]
            gn = put(rd, gb + 1, 2 if last else 1)
            if i == 1 or r == 2:
                continue
            A = add(vSUM if half else vS0, vPB)
            A[0].waits = [rd[-1] if not last else rd[2]]
            gn = put(A, gn + (4 if last else 5), 3 if last else 2)
            assert gn <= g + (34 if last else 52), (i, gn - g)
        gl = o.get('p5g', 222)
        F[gl].insert(0, I(f"buffer_load_dword v{self.vFWD}, v{self.vFWA}, {WSR}, s{sFLB} offen sc1"))
        gc = o.get('p5c', 247)
        F[gc] += self.sub(self.flag_check, self.vFWD, self.vFWA, False, 0)
        F[gc + 1].insert(0, I(f"buffer_load_dwordx4 {vr(vXP,4)}, v{vL16}, {WSR}, s{sT+4} offen sc1"))
        F[gc + 2].insert(0, I(f"buffer_load_dwordx4 {vr(vXP+4,4)}, v{vL16}, {WSR}, s{sT+4} offen offset:1024 sc1"))
        F[gc + 3].insert(0, I(f"buffer_load_dwordx2 {vr(vXP+8,2)}, v{t+12}, {WSR}, s{sT+4} offen offset:2048 sc1"))
        for k in range(56):
            i, s = divmod(k, 7)
            ac = {3: vS0, 7: vSUM}.get(i, vAC + 20 * (i & 1))
            for tl in range(5):
                d = vr(ac + 4 * tl, 4)
                L = []
                if tl in (0, 2) and qi < min(k + LA + 1, 56):
                    L = lda(qi); qi += 1
                c.add(L[:-1])
                c(f"v_mfma_f32_16x16x32_bf16 {d}, {self.w2reg(5*s+tl)}, {vr(vA+4*(k%NR),4)}, {0 if s == 0 and i % 4 != 3 else d}")
                c.add(L[-1:])
                c.add(F[5 * k + tl])
            if s in (0, 6):
                self.stamp(f"i{i}s{s}", "p5")
        self.stamp("p5")
        for j in range(10):
            c(f"v_pk_add_f32 {vr(vSUM+2*j,2)}, {vr(vSUM+2*j,2)}, {vr(vPB+2*j,2)}")
        for P in range(3):
            for j in range(4 * P, min(4 * P + 4, 10)):
                c(f"v_lshlrev_b32 v{vS0+2*j}, 16, v{vXP+j}")
                c(f"v_and_b32 v{vS0+2*j+1}, s{sMASK}, v{vXP+j}")
            for j in range(4 * P, min(4 * P + 4, 10)):
                c(f"v_pk_add_f32 {vr(vSUM+2*j,2)}, {vr(vSUM+2*j,2)}, {vr(vS0+2*j,2)}")
            for j in range(4 * P, min(4 * P + 4, 10)):
                c(f"v_cvt_pk_bf16_f32 v{rs+j}, v{vSUM+2*j}, v{vSUM+2*j+1}")
            if P < 2:
                c(f"ds_write_b128 v{t+1}, {vr(rs+4*P,4)} offset:{64*P}")
            else:
                c(f"ds_write_b64 v{t+2}, {vr(rs+8,2)} offset:128")
        for j in range(3):
            c(f"ds_read_b128 {vr(vPB+4*j,4)}, v{t} offset:{j*1024}")
        for j in range(3):
            if j == 2:
                c(f"s_not_b64 exec, s[{sHI}:{sHI+1}]")
            c(f"buffer_store_dwordx4 {vr(vPB+4*j,4)}, v{t+3+j}, s[{sOUT}:{sOUT+3}], s{sT} offen {o.get('ost', '').replace('+', ' ')}")
        c("s_mov_b64 exec, -1")

    def build(self):
        c = self.c
        self.prologue()
        self.phase1()
        self.attention()
        self.phase3()
        self.phase4()
        self.phase5()
        if self.o.get('stamps'):
            c("s_waitcnt vmcnt(0) lgkmcnt(0)")
            self.stamp("end")
            self.dump_stamps()
        if self.o.get('probe'):
            c("s_waitcnt vmcnt(0) lgkmcnt(0)")
            self.stamp("end")
            if 'pmask' in self.o:
                c(f"s_and_b32 s{sT}, s2, {self.o['pmask']}")
                c(f"s_cmp_lg_u32 s{sT}, {self.o['pval']}")
                c("s_cbranch_scc1 Lend")
            if self.o.get('pmin'):
                c(f"s_load_dwordx2 s[{sDBG}:{sDBG+1}], s[0:1], 56")
                c(f"s_not_b32 s{sT}, s{sST}")
                c(f"v_mov_b32 v2, s{sT}")
                c("v_mov_b32 v3, 0")
                c("s_mov_b64 exec, 1")
                c(f"global_atomic_umax v3, v2, s[{sDBG}:{sDBG+1}] sc1")
                c(f"s_sub_u32 s{sST}, s{sST}, 1000")
                c("Lprobe0:")
                c(f"s_memrealtime s[{sTM}:{sTM+1}]")
                c("s_waitcnt lgkmcnt(0)")
                c(f"s_sub_u32 s{sT}, s{sTM}, s{sST}")
                c(f"s_cmp_lt_i32 s{sT}, 0")
                c("s_cbranch_scc1 Lprobe0")
                c(f"global_load_dword v2, v3, s[{sDBG}:{sDBG+1}] sc1")
                c(f"v_readfirstlane_b32 s{sT}, v2")
                c(f"s_not_b32 s{sST}, s{sT}")
                c(f"s_add_u32 s{sST}, s{sST}, 1000")
            c("Lprobe:")
            c(f"s_memrealtime s[{sTM}:{sTM+1}]")
            c("s_waitcnt lgkmcnt(0)")
            c(f"s_sub_u32 s{sT}, s{sTM}, s{sST}")
            c(f"s_cmp_lt_i32 s{sT}, 0")
            c("s_cbranch_scc1 Lprobe")
        c("s_endpgm")
        c.add(self.ool.ins)
        c("Lend:")
        body = finalize(c)
        return f"""; Fused pre-LN sliding-window attention block + SiLU FFN (generated by work/gen.py)
; @launch grid=(256,1,1) block=(256,1,1) lds=163840
.amdgcn_target "amdgcn-amd-amdhsa--gfx950"
.text
.globl {NAME}_kernel
.p2align 8
.type {NAME}_kernel,@function
{NAME}_kernel:
{body}
  s_endpgm
Lcode_end:
.section .rodata,"a"
.p2align 6
.amdhsa_kernel {NAME}_kernel
  .amdhsa_next_free_vgpr 512
  .amdhsa_next_free_sgpr 102
  .amdhsa_accum_offset 256
  .amdhsa_group_segment_fixed_size 0
  .amdhsa_kernarg_size 72
  .amdhsa_user_sgpr_count 2
  .amdhsa_user_sgpr_kernarg_segment_ptr 1
  .amdhsa_system_sgpr_workgroup_id_x 1
.end_amdhsa_kernel
"""


def generate(**opt):
    g = Gen(opt)
    return g.build(), g


if __name__ == "__main__":
    opt = {}
    out = None
    for a in sys.argv[1:]:
        if '=' in a:
            k, v = a.split('=', 1)
            opt[k] = int(v) if v.lstrip('-').isdigit() else v
        else:
            out = a
    asm, g = generate(**opt)
    open(out or f"cdna_kernels/{NAME}.s", "w").write(asm)
    print(len(asm.splitlines()), "lines")
```

```python
import sys, struct
from dsl import *

NAME = "sequential_preLN__sliding_block__dense_activation_silu__prompt"

QK_OFF = 0
V_OFF = QK_OFF + 32 * 163840
O_OFF = V_OFF + 64 * 40960
H_OFF = O_OFF + 32 * 81920
HST_OFF = H_OFF + 128 * 20480
H1_OFF = HST_OFF + 128 * 1024
WO_OFF = H1_OFF + 128 * 57344
W1_OFF = WO_OFF + 8 * 102400
W2_OFF = W1_OFF + 16 * 143360
PX_OFF = W2_OFF + 8 * 286720
RST_OFF = PX_OFF + 1024 * 2560
CST_OFF = RST_OFF + 16 * 20480
FL_OFF = CST_OFF + 16 * 10240
F2_OFF = FL_OFF + 4096
F4_OFF = FL_OFF + 4 * 4096
FW1_OFF = FL_OFF + 16 * 4096
FX_OFF = FW1_OFF + 65536
FW2_OFF = FX_OFF + 32768
F1_OFF = FW2_OFF + 65536
FWO_OFF = F1_OFF + 32768
F3_OFF = FL_OFF + 72 * 4096
F5_OFF = F3_OFF + 131072
EP_OFF = FL_OFF + 8 * 4096
ST_OFF = FL_OFF + 136 * 4096
WS_SIZE = ST_OFF + 256 * 4 * 128

TAGC = 0x9E3779B8
SPIN_MAX = 200000
OOB = 0x7fff0000


def f2u(x):
    return struct.unpack('<I', struct.pack('<f', x))[0]


sX, sWQ, sWS, sKV, sOUT, sRP = 4, 8, 12, 16, 20, 24
sDBG, sWO, sW1, sW2 = 28, 30, 32, 34
sTP = 3
sW, sTAG, sRB1, sCT, sU, sNB, sRB, sFB = 36, 37, 38, 39, 40, 41, 42, 43
sHI = 44
sMASK = 46
sHEAD = 47
sT = 48
sST = 101
sK8, sSAME, sXCC = 85, 86, 87
sVM = 88
sWOO, sW1O, sW2B, sW2O = 90, 91, 92, 93
sFLB = 94
sW1M = 95
sTM = 96
sRPD, sRPF, sRPT = 98, 99, 100
WSR = f"s[{sWS}:{sWS+3}]"

vL16 = 2
vFLG = 254


class Gen:
    def __init__(self, opt):
        self.o = opt
        self.c = Code()
        self.ool = Code()
        self.stamp_names = []
        self.lab = 0
        self.ld = opt.get('ld', 'sc1')

    def label(self, base):
        self.lab += 1
        return f"L{base}_{self.lab}"

    def sub(self, fn, *a):
        k = Code()
        old, self.c = self.c, k
        fn(*a)
        self.c = old
        return k.ins

    def stamp(self, name, group='main'):
        if self.o.get('probe') and name in ('t0', self.o['probe']):
            self.c(f"s_memrealtime s[{sTM}:{sTM+1}]")
            self.c("s_waitcnt lgkmcnt(0)")
            self.c(f"s_add_u32 s{sST}, s{sTM}, 6000")
        if not self.o.get('stamps'):
            return
        if self.o.get('zoom', 'main') not in group.split() and name != 't0':
            return
        if name in self.stamp_names:
            idx = self.stamp_names.index(name)
        else:
            idx = len(self.stamp_names)
            self.stamp_names.append(name)
        assert idx < 32, name
        c = self.c
        c(f"{'s_memtime' if self.o.get('cyc') else 's_memrealtime'} s[{sTM}:{sTM+1}]")
        c("s_waitcnt lgkmcnt(0)")
        c(f"v_writelane_b32 v255, s{sTM}, {idx}")

    def dump_stamps(self):
        if not self.o.get('stamps'):
            return
        c = self.c
        c(f"s_lshl_b32 s{sT}, s2, 2")
        c(f"s_add_u32 s{sT}, s{sT}, s{sW}")
        c(f"s_lshl_b32 s{sT}, s{sT}, 7")
        c(f"s_add_u32 s{sT}, s{sT}, {ST_OFF}")
        c("v_lshlrev_b32 v3, 2, v1")
        c(f"s_not_b64 exec, s[{sHI}:{sHI+1}]")
        c(f"buffer_store_dword v255, v3, {WSR}, s{sT} offen")
        c("s_mov_b64 exec, -1")

    def prologue(self):
        c, o = self.c, self.o
        if o.get('stamps'):
            c("v_mov_b32 v255, 0")
        self.stamp("t0")
        c("s_cmp_ge_u32 s2, 256")
        c("s_cbranch_scc1 Lend")
        if 'x_lat' in o:
            c(f"s_load_dwordx2 s[{sKV}:{sKV+1}], s[0:1], {o['x_lat']*8}")
            c(f"s_mov_b32 s{sKV+2}, 800000")
            c(f"s_mov_b32 s{sKV+3}, 0x20000")
            c("s_cmp_lg_u32 s2, 0")
            c("s_cbranch_scc1 Llat_wait")
            c("v_lshrrev_b32 v2, 6, v0")
            c("v_lshlrev_b32 v2, 10, v2")
            if not o.get('x_first'):
                c(f"buffer_load_dword v3, v2, s[{sKV}:{sKV+3}], 0 offen")
                c("s_waitcnt vmcnt(0)")
            c("s_waitcnt lgkmcnt(0)")
            c(f"s_memrealtime s[{sT}:{sT+1}]")
            for j in range(1 if o.get('x_first') else 16):
                c(f"v_add_u32 v2, 37120, v2")
                c(f"buffer_load_dword v3, v2, s[{sKV}:{sKV+3}], 0 offen")
                c("s_waitcnt vmcnt(0)")
            c(f"s_memrealtime s[{sT+2}:{sT+3}]")
            c("s_waitcnt lgkmcnt(0)")
            c(f"s_sub_u32 s{sT}, s{sT+2}, s{sT}")
            c(f"s_lshl2_add_u32 s{sST}, s{sT}, s{sST}")
            c("s_branch Llat_done")
            c("Llat_wait:")
            for _ in range(16):
                c("s_sleep 32")
            c("Llat_done:")
            c("s_waitcnt lgkmcnt(0)")
        for _ in range(o.get('x_delay', 0)):
            c("s_sleep 32")
        c(f"s_load_dwordx2 s[{sX}:{sX+1}], s[0:1], 0")
        c(f"s_load_dwordx2 s[{sWQ}:{sWQ+1}], s[0:1], 8")
        c(f"s_load_dwordx2 s[{sWS}:{sWS+1}], s[0:1], 64")
        c(f"s_load_dwordx2 s[{sWO}:{sWO+1}], s[0:1], 16")
        c(f"s_load_dwordx4 s[{sW1}:{sW1+3}], s[0:1], 32")
        c(f"s_load_dwordx2 s[{sOUT}:{sOUT+1}], s[0:1], 48")
        c(f"s_getpc_b64 s[{sT}:{sT+1}]")
        c(f"s_lshr_b32 s{sT+3}, s2, 3")
        c(f"s_lshl_b32 s{sT+2}, s{sT+3}, 11")
        c(f"v_lshl_add_u32 v2, v0, 7, s{sT+2}")
        c("v_min_u32 v2, Lcode_end-Lpc0-256, v2")
        c("v_cmp_gt_u32 vcc, 16, v0")
        c(f"s_and_saveexec_b64 s[{sT+4}:{sT+5}], vcc")
        c("s_cbranch_execz Lpc0")
        c.cond(True)
        c(f"global_load_dword v253, v2, s[{sT}:{sT+1}]")
        c.ins[-1].wr = []
        c.cond(False)
        c("Lpc0:")
        c("s_mov_b64 exec, -1")
        c("v_lshrrev_b32 v2, 6, v0")
        c("v_and_b32 v1, 63, v0")
        c(f"v_readfirstlane_b32 s{sW}, v2")
        c(f"s_and_b32 s{sT}, s2, 7")
        if o.get('p1map', 'C') == 'C':
            c(f"s_lshr_b32 s{sRB1}, s{sT}, 1")
            c(f"s_and_b32 s{sT+2}, s{sT+3}, 3")
            c(f"s_lshl2_add_u32 s{sRB1}, s{sRB1}, s{sT+2}")
            c(f"s_lshr_b32 s{sT+2}, s{sT+2}, 1")
            c(f"s_lshr_b32 s{sCT}, s{sT+3}, 2")
            c(f"s_cmp_eq_u32 s{sCT}, 7")
            c(f"s_cselect_b32 s{sT+2}, s{sT+2}, 0")
            c(f"s_xor_b32 s{sT+2}, s{sT+2}, s{sT}")
            c(f"s_and_b32 s{sT+2}, s{sT+2}, 1")
            c(f"s_lshl3_add_u32 s{sCT}, s{sT+2}, s{sCT}")
        elif o.get('p1map') == 'A':
            c(f"s_lshr_b32 s{sRB1}, s{sT+3}, 4")
            c(f"s_lshl1_add_u32 s{sRB1}, s{sT}, s{sRB1}")
            c(f"s_and_b32 s{sCT}, s{sT+3}, 15")
        else:
            c(f"s_and_b32 s{sRB1}, s{sT}, 1")
            c(f"s_and_b32 s{sT+2}, s{sT+3}, 7")
            c(f"s_lshl3_add_u32 s{sRB1}, s{sRB1}, s{sT+2}")
            c(f"s_lshr_b32 s{sCT}, s{sT}, 1")
            c(f"s_lshr_b32 s{sT+2}, s{sT+3}, 3")
            c(f"s_lshl2_add_u32 s{sCT}, s{sCT}, s{sT+2}")
        for r, size in ((sX, 2048 * 1280), (sWQ, 640 * 3840)):
            c(f"s_mov_b32 s{r+2}, {size}")
            c(f"s_mov_b32 s{r+3}, 0x20000")

    def base_setup(self):
        c = self.c
        c(f"s_add_u32 s{sTM}, s{sWS}, {EP_OFF}")
        c(f"s_addc_u32 s{sTM+1}, s{sWS+1}, 0")
        c(f"s_load_dword s{sTAG}, s[{sTM}:{sTM+1}], 0")
        for r, size in ((sWS, WS_SIZE), (sOUT, 2048 * 1280)):
            c(f"s_mov_b32 s{r+2}, {size}")
            c(f"s_mov_b32 s{r+3}, 0x20000")
        c(f"s_mov_b32 s{sHI}, 0")
        c(f"s_mov_b32 s{sHI+1}, -1")
        c(f"s_mov_b32 s{sMASK}, 0xffff0000")
        c(f"s_mov_b32 s{sFLB}, {FL_OFF}")

    def common_setup(self):
        c = self.c
        c(f"s_and_b32 s{sT}, s2, 7")
        c(f"s_lshr_b32 s{sT+1}, s2, 3")
        c(f"s_lshr_b32 s{sU}, s{sT+1}, 3")
        c(f"s_lshl2_add_u32 s{sU}, s{sT}, s{sU}")
        c(f"s_and_b32 s{sNB}, s{sT+1}, 7")
        c(f"s_lshr_b32 s{sRB}, s{sU}, 1")
        c(f"s_and_b32 s{sK8}, s2, 1")
        c(f"s_lshl3_add_u32 s{sFB}, s{sK8}, s{sNB}")
        c(f"s_andn2_b32 s{sTP}, s{sU}, 4")
        c(f"s_and_b32 s{sT}, s{sW}, 2")
        c(f"s_lshl1_add_u32 s{sTP}, s{sT}, s{sTP}")
        c(f"s_and_b32 s{sT}, s{sW}, 1")
        c(f"s_lshl1_add_u32 s{sTP}, s{sTP}, s{sT}")
        c(f"s_lshl2_add_u32 s{sHEAD}, s{sNB}, s{sW}")
        c(f"s_getreg_b32 s{sXCC}, hwreg(HW_REG_XCC_ID, 0, 4)")
        c(f"v_lshlrev_b32 v{vL16}, 4, v1")
        c(f"s_mul_i32 s{sWOO}, s{sHEAD}, 25600")
        c(f"s_add_u32 s{sWOO}, s{sWOO}, {WO_OFF}")
        c(f"s_lshl2_add_u32 s{sW1O}, s{sFB}, s{sW}")
        c(f"s_mul_i32 s{sW1O}, s{sW1O}, {35*1024}")
        c(f"s_add_u32 s{sW1O}, s{sW1O}, {W1_OFF}")
        c(f"s_mul_i32 s{sW1M}, s{sW}, {35*1024}")
        c(f"s_lshl2_add_u32 s{sK8}, s{sK8}, s{sW}")
        c(f"s_lshl3_add_u32 s{sW2B}, s{sNB}, s{sK8}")
        c(f"s_mul_i32 s{sW2B}, s{sW2B}, {35*1024}")
        c(f"s_add_u32 s{sW2B}, s{sW2B}, {W2_OFF}")
        c(f"s_mul_i32 s{sT}, s{sW}, 640")
        c(f"s_lshl_b32 s{sT+1}, s{sNB}, 12")
        c(f"s_add_u32 s{sT}, s{sT}, s{sT+1}")
        c(f"s_add_u32 s{sT}, s{sT}, {FWO_OFF - FL_OFF}")
        c(f"v_min_u32 v{self.vWOF}, 4, v1")
        c(f"v_lshl_add_u32 v{self.vWOF}, v{self.vWOF}, 7, s{sT}")

    def tag_ready(self):
        self.c(f"s_add_u32 s{sTAG}, s{sTAG}, {TAGC}")

    def flag_store(self, so, R=WSR):
        c = self.c
        c(f"v_mov_b32 v{vFLG}, s{sTAG}")
        c(f"v_lshlrev_b32 v253, 2, v1")
        c(f"s_not_b64 exec, s[{sHI}:{sHI+1}]")
        h = c(f"buffer_store_dword v{vFLG}, v253, {R}, s{so} offen sc1")
        c("s_mov_b64 exec, -1")
        return h

    def poll(self, va, vd=vFLG, span=False, sleep=0):
        c = self.c
        L, Ld = self.label("pl"), self.label("pd")
        n = sT + 12
        c(f"s_mov_b32 s{n}, {SPIN_MAX}")
        c(f"{L}:")
        c(f"buffer_load_dword v{vd}, v{va}, {WSR}, s{sFLB} offen sc1")
        c(f"s_sub_u32 s{n}, s{n}, 1")
        c(f"s_cbranch_scc1 {Ld}")
        c("s_waitcnt vmcnt(0)")
        self.tag_cmp(vd, span)
        if sleep:
            c(f"s_cbranch_vccz {Ld}")
            c(f"s_sleep {sleep}")
            c(f"s_branch {L}")
        else:
            c(f"s_cbranch_vccnz {L}")
        c(f"{Ld}:")
        c("s_waitcnt vmcnt(0)")

    def tag_cmp(self, vd, span):
        c = self.c
        if span:
            c(f"v_subrev_u32 v253, s{sTAG}, v{vd}")
            c(f"v_cmp_le_u32 vcc, 16, v253")
        else:
            c(f"v_cmp_ne_u32 vcc, s{sTAG}, v{vd}")

    def flag_check(self, vd, va, span=False, sleep=4):
        c = self.c
        Ls, Lb = self.label("fs"), self.label("fb")
        self.tag_cmp(vd, span)
        c("s_nop 3")
        c(f"s_cbranch_vccnz {Ls} ; noflush")
        c(f"{Lb}: ; noflush")
        old, self.c = self.c, self.ool
        self.c(f"{Ls}:")
        self.c("s_nop 15")
        self.poll(va, vd, span, sleep=sleep)
        self.c(f"s_branch {Lb}")
        self.c = old

    def flag_store_near(self, so):
        c = self.c
        Lf, Lb = self.label("far"), self.label("near")
        c(f"v_mov_b32 v{vFLG}, s{sTAG}")
        c(f"s_cmp_eq_u32 s{sSAME}, 0")
        c("s_mov_b64 exec, 1")
        c(f"s_cbranch_scc1 {Lf} ; noflush")
        c(f"buffer_store_dword v{vFLG}, off, {WSR}, s{so}")
        c(f"{Lb}: ; noflush")
        c("s_mov_b64 exec, -1")
        k = self.ool
        k(f"{Lf}:")
        k(f"buffer_store_dword v{vFLG}, off, {WSR}, s{so} sc1")
        k(f"s_branch {Lb}")

    NS = 4
    P1_WB = 4 * 16384
    P1_EX = 153600
    vXD, vWD, vXA, vWA, vXS, vWS_, vSEL, vSQ, vTMP, vRS, vCS = 4, 8, 12, 14, 18, 22, 24, 23, 28, 36, 40
    vPA = 44
    vRP = 52
    vWOF, vWOD = 59, 60
    vACC, vFR, vSF, vEP = 64, 128, 192, 208
    sKC, sKX, sKW, sW4 = sT + 8, sT + 9, sT + 10, sT + 11
    sSS, sONE = 76, 77

    def p1_setup(self):
        c, o = self.c, self.o
        t = self.vTMP
        if o.get('rot', 'A') == 'A':
            c(f"s_lshr_b32 s{sT}, s2, 1")
            c(f"s_xor_b32 s{sT}, s{sT}, s2")
        else:
            c(f"s_xor_b32 s{sT}, s{sRB1}, s{sCT}")
        c(f"s_and_b32 s{sT}, s{sT}, 1")
        c(f"s_mul_i32 s{self.sKC}, s{sT}, 5")
        c(f"s_lshl_b32 s{self.sW4}, s{sW}, 12")
        c(f"s_lshl2_add_u32 s{sT}, s{sRB1}, s{sW}")
        c(f"s_mul_i32 s{sT}, s{sT}, {32*1280}")
        c(f"v_lshrrev_b32 v{t}, 3, v1")
        c(f"v_mul_u32_u24 v{t}, 1280, v{t}")
        c(f"v_lshrrev_b32 v{t+1}, 4, v1")
        c(f"v_and_b32 v{t+2}, 7, v1")
        c(f"v_xor_b32 v{t+2}, v{t+2}, v{t+1}")
        c(f"v_lshlrev_b32 v{t+2}, 4, v{t+2}")
        c(f"v_add3_u32 v{self.vXD}, v{t+2}, v{t}, s{sT}")
        c(f"v_xor_b32 v{t+3}, 64, v{self.vXD}")
        c(f"s_cmp_ge_u32 s{sCT}, 10")
        c(f"s_cselect_b32 s{sT+1}, 10240, 0")
        c(f"s_add_u32 s{sT}, s{sT+1}, {10240-1024}")
        c(f"s_sub_u32 s{sT+1}, {2*(10240-1024)}, s{sT+1}")
        c(f"v_add_u32 v{self.vXD+1}, s{sT}, v{t+3}")
        c(f"v_add_u32 v{self.vXD+2}, s{sT+1}, v{self.vXD}")
        c(f"v_add_u32 v{self.vXD+3}, {3*(10240-1024)}, v{t+3}")
        c(f"s_mul_i32 s{sT}, s{sW}, {16*3840}")
        c(f"s_lshl_b32 s{sT+1}, s{sCT}, 8")
        c(f"s_add_u32 s{sT}, s{sT}, s{sT+1}")
        c(f"v_mul_u32_u24 v{t}, 3840, v{t+1}")
        c(f"v_and_b32 v{t+2}, 15, v1")
        c(f"v_lshlrev_b32 v{t+3}, 1, v{t+1}")
        c(f"v_xor_b32 v{t+2}, v{t+2}, v{t+3}")
        c(f"v_lshlrev_b32 v{t+2}, 4, v{t+2}")
        c(f"v_add3_u32 v{self.vWD}, v{t+2}, v{t}, s{sT}")
        c(f"v_xor_b32 v{t+3}, 128, v{self.vWD}")
        for j in range(1, 4):
            c(f"v_add_u32 v{self.vWD+j}, {j*(4*3840-1024)}, v{self.vWD if j < 2 else t+3}")

    def p1_dma(self, s):
        slot = s % self.NS
        pre = []
        if s > 0:
            pre += [I(f"s_add_u32 s{self.sKC}, s{self.sKC}, 1"),
                    I(f"s_cmp_eq_u32 s{self.sKC}, 10"),
                    I(f"s_cselect_b32 s{self.sKC}, 0, s{self.sKC}")]
        items = []
        for j in range(4):
            d = I(f"buffer_load_dwordx4 v{self.vXD+j}, s[{sX}:{sX+3}], s{self.sKX} offen offset:{j*1024} lds")
            items.append(([I(f"s_add_u32 m0, s{self.sW4}, {slot*16384}"), I(f"s_lshl_b32 s{self.sKX}, s{self.sKC}, 7")] if j == 0 else []) + [d])
        for j in range(4):
            d = I(f"buffer_load_dwordx4 v{self.vWD+j}, s[{sWQ}:{sWQ+3}], s{self.sKW} offen offset:{j*1024} lds")
            items.append(([I(f"s_add_u32 m0, s{self.sW4}, {self.P1_WB + slot*16384}"), I(f"s_mul_i32 s{self.sKW}, s{self.sKC}, {64*3840}")] if j == 0 else []) + [d])
        return pre, items, d

    def p1_setup2(self):
        c = self.c
        t = self.vTMP
        c(f"s_lshr_b32 s{sT}, s{sW}, 1")
        c(f"s_and_b32 s{sT+1}, s{sW}, 1")
        c(f"v_and_b32 v{t}, 15, v1")
        c(f"s_lshl_b32 s{sT+2}, s{sT}, 13")
        c(f"v_lshl_add_u32 v{t}, v{t}, 7, s{sT+2}")
        c(f"v_lshrrev_b32 v{t+5}, 4, v1")
        c(f"v_bfe_u32 v{t+2}, v1, 1, 3")
        c(f"v_xor_b32 v{t+3}, v{t+2}, v{t+5}")
        c(f"v_lshl_add_u32 v{self.vXA}, v{t+3}, 4, v{t}")
        c(f"v_xor_b32 v{self.vXA+1}, 64, v{self.vXA}")
        c(f"v_bfe_u32 v{t+3}, v1, 2, 2")
        c(f"v_lshl_add_u32 v{t}, v{t+5}, 3, v{t+3}")
        c(f"v_lshlrev_b32 v{t}, 8, v{t}")
        c(f"v_bfe_u32 v{t+5}, v1, 2, 3")
        c(f"v_lshl_add_u32 v{t}, v{t+5}, 5, v{t}")
        c(f"v_and_b32 v{t+5}, 3, v1")
        c(f"v_lshlrev_b32 v{t+5}, 3, v{t+5}")
        c(f"v_add_u32 v{t+5}, {self.P1_WB}, v{t+5}")
        c(f"v_add_u32 v{t}, v{t}, v{t+5}")
        c(f"s_lshl_b32 s{sT+2}, s{sT+1}, 7")
        c(f"v_xor_b32 v{self.vWA}, s{sT+2}, v{t}")
        for n in range(1, 4):
            c(f"v_xor_b32 v{self.vWA+n}, {n*32}, v{self.vWA}")

    def p1_setup3(self, k0):
        c = self.c
        t = self.vTMP
        c(f"v_and_b32 v{t+4}, 31, v1")
        c(f"v_lshrrev_b32 v{t+1}, 5, v1")
        c(f"s_and_b32 s{sT+3}, s{self.sSS}, 3")
        c(f"s_lshl_b32 s{sT+3}, s{sT+3}, 14")
        c(f"s_add_u32 s{sT+2}, s{sT+3}, s{self.sW4}")
        c(f"v_add_u32 v{t+5}, s{sT+3}, v{t+5}")
        c(f"v_lshl_add_u32 v{t}, v{t+4}, 7, s{sT+2}")
        c(f"v_xor_b32 v{t+2}, v{t+2}, v{t+1}")
        c(f"v_lshl_add_u32 v{self.vXS}, v{t+2}, 4, v{t}")
        for p in range(1, 4):
            c(f"v_xor_b32 v{self.vXS+p}, {p*32}, v{self.vXS}")
        c(f"v_lshl_add_u32 v{t}, v{t+1}, 3, v{t+3}")
        c(f"v_lshl_add_u32 v{t}, v{t}, 8, v{t+5}")
        c(f"v_lshl_add_u32 v{t+3}, v{t+1}, 2, v{t+3}")
        c(f"v_bfe_u32 v{t+2}, v1, 4, 1")
        c(f"v_xor_b32 v{t+3}, v{t+3}, v{t+2}")
        c(f"v_lshl_add_u32 v{t}, v{t+3}, 5, v{t}")
        c(f"s_lshl_b32 s{sT+2}, s{sW}, 6")
        c(f"v_xor_b32 v{self.vWS_}, s{sT+2}, v{t}")
        c(f"s_mov_b32 s{self.sONE}, 0x3f803f80")
        pa = self.vPA
        c(f"v_mov_b32 v{t+3}, {OOB}")
        for k, (role, other, off, sh) in enumerate(((sRB1, 75, RST_OFF, 4), (sCT, 74, CST_OFF, 3))):
            c(f"s_lshl2_add_u32 s{sT+2}, s{role}, s{sW}")
            c(f"s_mul_i32 s{sT+2}, s{sT+2}, {320 << sh}")
            c(f"s_add_u32 s{sT+2}, s{sT+2}, {off}")
            c(f"v_lshl_add_u32 v{t}, v{t+4}, {sh}, s{sT+2}")
            c(f"v_mul_u32_u24 v{t+2}, {160 << sh}, v{t+1}")
            c(f"v_add_u32 v{pa+2+k}, v{t}, v{t+2}")
            c(f"s_lshl_b32 s{sT+2}, s{k0}, {5 + sh}")
            c(f"v_add_u32 v{t}, s{sT+2}, v{t}")
            if k == 0:
                c(f"s_cmp_ge_u32 s{sCT}, 10")
                c(f"s_cselect_b32 s{sT+2}, 48, 0")
                c(f"v_lshrrev_b32 v{t+2}, 1, v1")
                c(f"v_xor_b32 v{t+2}, v{t+2}, v1")
                c(f"v_and_b32 v{t+2}, 8, v{t+2}")
                c(f"v_mul_u32_u24 v{t+2}, s{sT+2}, v{t+2}")
                c(f"v_xor_b32 v{t}, v{t}, v{t+2}")
            c(f"s_cmp_lt_u32 s{other}, 5")
            c(f"s_cselect_b64 s[{sT+2}:{sT+3}], s[{sHI}:{sHI+1}], -1")
            c(f"v_cndmask_b32 v{pa+k}, v{t}, v{t+3}, s[{sT+2}:{sT+3}]")
        c(f"s_lshl_b32 s{sT+2}, s{sW}, 7")
        c(f"s_add_u32 s{sT+2}, s{sT+2}, {self.P1_EX}")
        c(f"v_lshl_add_u32 v{pa+6}, v{t+4}, 2, s{sT+2}")

    def fx_publish(self):
        return [I(f"s_lshl3_add_u32 s{sT}, s{sU}, s{sNB}"),
                I(f"s_lshl_b32 s{sT}, s{sT}, 7"),
                I(f"s_add_u32 s{sT}, s{sT}, {FX_OFF}"),
                I(f"s_add_u32 s{sT+1}, s{sTAG}, s{sXCC}"),
                I(f"v_mov_b32 v61, s{sT+1}"),
                I(f"v_lshrrev_b32 v62, 5, v0"),
                I(f"v_lshlrev_b32 v62, 27, v62"),
                I(f"v_lshl_add_u32 v62, v0, 2, v62"),
                I(f"buffer_store_dword v61, v62, {WSR}, s{sT} offen sc1")]

    def p1_reads(self, s, p):
        slot = s % self.NS
        fr = self.vFR + 32 * p
        X = lambda a: [I(f"ds_read_b128 {vr(fr+4*a, 4)}, v{self.vXA+p} offset:{slot*16384 + a*2048}")]
        Wt = lambda n: [I(f"ds_read_b64_tr_b16 {vr(fr+16+4*n+2*t, 2)}, v{self.vWA+n} offset:{slot*16384 + p*8192 + t*1024}") for t in range(2)]
        return X(0) + Wt(0) + Wt(1) + X(1) + Wt(2) + X(2) + Wt(3) + X(3)

    def p1_stat_reads(self, s):
        sf = self.vSF
        lab = self.label("sc")
        r = []
        for q in range(4):
            r.append(I(f"ds_read_b128 {vr(sf+4*q, 4)}, v{self.vXS+q}"))
            r += [I(f"ds_read_b64_tr_b16 {vr(sf+16+4*q+2*j, 2)}, v{self.vWS_} offset:{q*4096 + j*1024}") for j in range(2)]
        for x in r:
            x.wr = []; x.cond = True
        return [I(f"s_cmp_lg_u32 s{self.sSS}, {s}"), I(f"s_cbranch_scc1 {lab} ; noflush")] + r + [I(f"{lab}: ; noflush")]

    def p1_stat_sums(self):
        k = self.c
        sf, u, pa = self.vSF, self.vRS, self.vPA
        for j in range(16):
            k(f"v_dot2_f32_bf16 v{u}, v{sf+j}, s{self.sONE}, {0 if j == 0 else f'v{u}'}")
            k(f"v_dot2_f32_bf16 v{u+2}, v{sf+j}, v{sf+j}, {0 if j == 0 else f'v{u+2}'}")
            k(f"v_dot2_f32_bf16 v{u+4}, v{sf+16+j}, s{self.sONE}, {0 if j == 0 else f'v{u+4}'}")

    def p1_stat_publish(self):
        k = self.c
        sf, u, pa = self.vSF, self.vRS, self.vPA
        for j in (0, 2, 4):
            k(f"v_mov_b32 v{u+j+1}, v{u+j}")
        for j in (0, 2, 4):
            k(f"v_permlane32_swap_b32 v{u+j}, v{u+j+1}")
        for j in (0, 2, 4):
            k(f"v_add_f32 v{u+j}, v{u+j}, v{u+j+1}")
        for j in (0, 2, 4):
            k(f"v_mov_b32 v{u+j+1}, s{sTAG}")
        k(f"buffer_store_dwordx4 {vr(u,4)}, v{pa}, {WSR}, 0 offen sc1")
        k(f"buffer_store_dwordx2 {vr(u+4,2)}, v{pa+1}, {WSR}, 0 offen sc1")

    def p1_stat_loads(self):
        q, pa = self.vSF, self.vPA
        return ([I(f"buffer_load_dwordx4 {vr(q+4*i,4)}, v{pa+2}, {WSR}, 0 offen offset:{i*512} sc1") for i in range(5)] +
                [I(f"buffer_load_dwordx2 {vr(q+20+2*i,2)}, v{pa+3}, {WSR}, 0 offen offset:{i*256} sc1") for i in range(5)])

    def p1_stat_tags(self):
        c = self.c
        q, x = self.vSF, self.vPA + 7
        c(f"v_xor_b32 v{x}, s{sTAG}, v{q+29}")
        for i in range(14):
            c(f"v_bitop3_b32 v{x}, v{q+1+2*i}, s{sTAG}, v{x} bitop3:0xbe")
        c(f"v_cmp_ne_u32 vcc, 0, v{x}")

    def p1_stat_check(self):
        c = self.c
        Ls, Lb, L = self.label("ss"), self.label("sb"), self.label("sl")
        c("s_nop 3")
        c(f"s_cbranch_vccnz {Ls} ; noflush")
        c(f"{Lb}: ; noflush")
        old, self.c = self.c, self.ool
        k = self.c
        k(f"{Ls}:")
        k("s_nop 15")
        k(f"s_mov_b32 s{sT+12}, {SPIN_MAX}")
        k(f"{L}:")
        k.add(self.p1_stat_loads())
        k("s_waitcnt vmcnt(0)")
        k(f"s_sub_u32 s{sT+12}, s{sT+12}, 1")
        k(f"s_cbranch_scc1 {Lb}")
        self.p1_stat_tags()
        k(f"s_cbranch_vccz {Lb}")
        k("s_sleep 4")
        k(f"s_branch {L}")
        self.c = old

    def p1_stats_finish(self, isv):
        c = self.c
        q, b, pa = self.vSF, 224, self.vPA
        c(f"v_add_f32 v{b}, v{q}, v{q+4}")
        c(f"v_add_f32 v{b+1}, v{q+2}, v{q+6}")
        c(f"v_add_f32 v{b+10}, v{q+20}, v{q+22}")
        for i in range(2, 5):
            c(f"v_add_f32 v{b}, v{b}, v{q+4*i}")
            c(f"v_add_f32 v{b+1}, v{b+1}, v{q+4*i+2}")
            c(f"v_add_f32 v{b+10}, v{b+10}, v{q+20+2*i}")
        c(f"v_mov_b32 v{b+2}, v{b}")
        c(f"v_mov_b32 v{b+3}, v{b+1}")
        c(f"v_mov_b32 v{b+11}, v{b+10}")
        c(f"v_permlane32_swap_b32 v{b}, v{b+2}")
        c(f"v_permlane32_swap_b32 v{b+1}, v{b+3}")
        c(f"v_permlane32_swap_b32 v{b+10}, v{b+11}")
        c(f"v_add_f32 v{b}, v{b}, v{b+2}")
        c(f"v_add_f32 v{b+1}, v{b+1}, v{b+3}")
        c(f"v_mul_f32 v{b}, {hex(f2u(-1.0/640))}, v{b}")
        c(f"v_mul_f32 v{b+1}, {hex(f2u(1.0/640))}, v{b+1}")
        c(f"v_add_f32 v{b+10}, v{b+10}, v{b+11}")
        c(f"v_fma_f32 v{b+1}, -v{b}, v{b}, v{b+1}")
        c(f"ds_write_b32 v{pa+6}, v{b}")
        c(f"v_max_f32 v{b+1}, 0, v{b+1}")
        c(f"v_add_f32 v{b+1}, {hex(f2u(1e-5))}, v{b+1}")
        c(f"v_rsq_f32 v{b+1}, v{b+1}")
        c(f"ds_write_b32 v{pa+6}, v{b+10} offset:1024")
        if not isv:
            c(f"v_mul_f32 v{b+1}, s{sT+7}, v{b+1}")
        c(f"ds_write_b32 v{pa+6}, v{b+1} offset:512")

    def p1_ep_prep(self, isv):
        c = self.c
        t = self.vTMP
        EX = self.P1_EX
        c(f"s_lshr_b32 s{sT}, s{sW}, 1")
        c(f"s_and_b32 s{sT+1}, s{sW}, 1")
        c(f"s_lshl1_add_u32 s{sT+2}, s{sRB1}, s{sT}")
        c(f"s_lshl1_add_u32 s{sT+3}, s{sCT}, s{sT+1}")
        c(f"s_lshl_b32 s{sT}, s{sT}, 8")
        c(f"s_add_u32 s{sT}, s{sT}, {EX}")
        c(f"s_lshl_b32 s{sT+1}, s{sT+1}, 8")
        c(f"s_add_u32 s{sT+1}, s{sT+1}, {EX+1024}")
        c(f"v_lshrrev_b32 v{t+4}, 4, v1")
        c(f"v_and_b32 v{t+5}, 15, v1")
        c(f"v_lshl_add_u32 v{t}, v{t+5}, 2, s{sT+(1 if isv else 0)}")
        c(f"v_lshl_add_u32 v{t+1}, v{t+4}, 4, s{sT+(0 if isv else 1)}")
        if isv:
            c(f"v_and_b32 v{t+2}, 32, v1")
            c(f"v_add_u32 v{t+1}, v{t+1}, v{t+2}")
        c(f"v_mul_u32_u24 v{t+4}, {(10240 if isv else 512) - 256}, v{t+4}")
        c(f"v_add_u32 v{t+4}, v{vL16}, v{t+4}")
        c(f"s_lshl4_add_u32 s{sT+13}, s{sRB1}, s{sCT}")
        c(f"s_lshl_b32 s{sT+13}, s{sT+13}, 7")
        c(f"s_add_u32 s{sT+13}, s{sT+13}, {F1_OFF}")
        if not isv:
            qs = (20 ** -0.5) * 1.4426950408889634
            c(f"s_mul_i32 s{sT+4}, s{sT+2}, 163840")
            c(f"s_lshl_b32 s{sT+5}, s{sT+3}, 13")
            c(f"s_add_u32 s{sT+4}, s{sT+4}, s{sT+5}")
            c(f"s_add_u32 s{sT+5}, s{sT+4}, 4096")
            c(f"s_cmp_lt_u32 s{sCT}, 5")
            c(f"s_cselect_b32 s{sT+7}, {hex(f2u(qs))}, 1.0")
        else:
            c(f"s_mul_i32 s{sT+4}, s{sT+2}, 81920")
            c(f"s_lshl_b32 s{sT+5}, s{sT+3}, 10")
            c(f"s_add_u32 s{sT+4}, s{sT+4}, s{sT+5}")
            c(f"s_add_u32 s{sT+4}, s{sT+4}, {V_OFF - 10*2048}")
            c(f"s_add_u32 s{sT+5}, s{sT+4}, 40960")

    def p1_ep_reads(self, isv):
        t, e, u = self.vTMP, self.vEP, self.vRS
        r = []
        if not isv:
            r += [I(f"ds_read2_b32 {vr(u+2*a,2)}, v{t} offset0:{16*a} offset1:{128+16*a}") for a in range(4)]
            r += [I(f"ds_read_b128 {vr(e+4*n, 4)}, v{t+1} offset:{64*n}") for n in range(4)]
        else:
            r += [I(f"ds_read2_b32 {vr(u+2*k,2)}, v{t} offset0:{32*k} offset1:{32*k+16}") for k in range(2)]
            for a in range(4):
                off = (32 * (a >> 1) + 8 * (a & 1)) * 4
                r.append(I(f"ds_read_b128 {vr(e+4*a, 4)}, v{t+1} offset:{off}"))
                r.append(I(f"ds_read_b128 {vr(e+16+4*a, 4)}, v{t+1} offset:{512+off}"))
        return r

    P1_ORDER = [(0, 0), (0, 1), (1, 0), (1, 1), (0, 2), (1, 2), (2, 0), (2, 1), (2, 2), (0, 3), (1, 3), (2, 3), (3, 0), (3, 1), (3, 2), (3, 3)]

    P1_SNAKE = [(0, 0), (0, 1), (1, 1), (1, 0), (1, 2), (0, 2), (2, 2), (2, 1), (2, 0), (2, 3), (1, 3), (0, 3), (3, 3), (3, 2), (3, 1), (3, 0)]

    def p1_loop(self, isv, h0, h1):
        c, o = self.c, self.o
        hd = {0: h0, 1: h1}
        pa = self.vPA
        c.wait(h0)
        c("s_barrier")
        self.stamp("b0", "main p1")
        R = self.p1_reads(0, 0)
        c.add(R)
        grp = []
        for q in range(2, 10):
            pre, dma, hd[q] = self.p1_dma(q)
            dma[0] = pre + dma[0]
            grp += [dma[:4], dma[4:]]
        c.add(grp.pop(0))
        ramp = {0: (), 1: (0,), 2: (0, 1), 3: (0, 2), 4: (1, 2)}[o.get('ramp', 4)]
        extra = {k: [] for k in range(20)}
        mem = {k: [] for k in range(20)}
        tail = {k: [] for k in range(20)}
        k0, k1, k2 = o.get('rpa', 4), o.get('rpb', 9), o.get('rpc', 15)
        cs = self.sub(self.tag_ready) + self.late_setup
        per = -(-len(cs) // k0)
        for k in range(k0):
            extra[k] = [copy_ins(x) for x in cs[k * per:(k + 1) * per]]
        cs = self.fx_publish() + self.later_setup + glue(self.sub(self.p1_ep_prep, isv))
        per = -(-len(cs) // (16 - k0))
        for k in range(16 - k0):
            extra[k0 + k] = [copy_ins(x) for x in cs[k * per:(k + 1) * per]]
        assert k1 % 2 and k1 + 5 <= k2 <= 17 and k0 + 3 <= k1
        d, rd, stv, fs = self.rp_unit_items([24, 224, 228])
        d1, rd1, pad, stv1 = self.rp_unit1_items(232)
        d += d1; stv += stv1
        for j in range(3):
            tail[k0 + j] = d[2 * j:2 * j + 2]
        ns = min(o.get('rpn', 5), k2 - k1 - 2)
        for j in range(5):
            mem[k1 + 2 + j * ns // 5].append(stv[j])
        bwait = {k1: d[-1][-1]}
        self.rp_flag = fs
        extra[k1 + 1] = interleave(extra[k1 + 1], rd + rd1)
        extra[k1 + 2] = pad + extra[k1 + 2]
        extra[11].append(I(f"buffer_load_dword v{self.vWOD}, v{self.vWOF}, {WSR}, s{sFLB} offen sc1"))
        stl = self.p1_stat_loads()
        ks = o.get('stk', 13)
        mem[ks] += stl[:5]; mem[ks + 1] += stl[5:]
        wo = self.wo_loads()[:o.get('wot', 18)]
        if wo:
            extra[ks + 1].append(self.sub(self.flag_check, self.vWOD, self.vWOF))
        nw = 18 - ks
        for k in range(nw):
            mem[ks + 2 + k] += wo[k * len(wo) // nw:(k + 1) * len(wo) // nw]
        fin = self.sub(self.p1_stats_finish, isv)
        extra[18] = self.sub(self.p1_stat_tags) + [self.sub(self.p1_stat_check)] + fin[:14]
        for s in range(10):
            for p in range(2):
                k = 2 * s + p
                fr = self.vFR + 32 * p
                M = []
                for a, n in (self.P1_SNAKE if o.get('snake', 0) else self.P1_ORDER):
                    d = vr(self.vACC + 16 * a + 4 * n, 4)
                    xa, wb = vr(fr + 4 * a, 4), vr(fr + 16 + 4 * n, 4)
                    A, B = (xa, wb) if isv else (wb, xa)
                    M.append(I(f"v_mfma_f32_16x16x32_bf16 {d}, {A}, {B}, {0 if k == 0 else d}"))
                G = [[] for _ in range(16)]
                F = [[] for _ in range(16)]
                if k:
                    if p == 0:
                        M[0].waits = [R[5]]; M[4].waits = [R[11]]
                    else:
                        M[0].waits = [R[11]]
                g0 = 0
                if p == 0:
                    R = self.p1_reads(s, 1)
                elif s < 9:
                    R = self.p1_reads(s + 1, 0)
                    G[g0] = [W(hd[s + 1], *([bwait[k]] if k in bwait else []))] + [I("s_barrier")]
                else:
                    R = []
                for j, r in enumerate(R):
                    G[g0 + j].append(r)
                dma = grp.pop(0) if grp else []
                if k in ramp:
                    dma = dma + grp.pop(0)
                D = interleave(dma, mem[k]) + tail[k] if dma else mem[k] + tail[k]
                for j, d in enumerate(D):
                    g = 16 - len(D) + j
                    if o.get('dspread', 1):
                        g = g0 + 2 + j * (14 - g0) // len(D) if len(D) != 4 or g0 else 2 + 4 * j
                    d = flat(d)
                    F[g] += d[:-1]; G[g].insert(0, d[-1])
                X = extra[k]
                if k == 19:
                    for j, x in enumerate(fin[14:]):
                        G[j // 3].append(x)
                    G[7] += [I("s_waitcnt lgkmcnt(0)"), I("s_barrier")]
                    for j, r in enumerate(self.p1_ep_reads(isv)):
                        G[8 + j * 7 // 10].append(r)
                for j, x in enumerate(X):
                    G[1 + j * 14 // len(X)].append(x)
                if p == 0 and s < 5:
                    G[0].append(self.p1_stat_reads(s))
                if k == 8:
                    G[8].append([W(R[2])] + self.sub(self.p1_stat_sums))
                    for j, x in enumerate(self.sub(self.p1_stat_publish)):
                        G[11 + j // 3].append(x)
                for g in range(16):
                    c.add(F[g]); c.add(M[g]); c.add(G[g])
                if o.get('x_pad') and o.get('x_pads', 0) <= s < o.get('x_pade', 10):
                    for _ in range(o['x_pad']):
                        c("s_nop 7")
                if p == 1 or s >= 7:
                    self.stamp(f"e{s}{p}", "p1")

    def p1_epilogue(self, isv):
        c = self.c
        t, e, u = self.vTMP, self.vEP, self.vRS
        ob = self.vFR
        n0 = self.o.get('wot', 18)
        assert n0 > 0
        wo = self.wo_loads()[n0:n0 + self.o.get('woe', 0)]
        for k in range(8):
            out = ob + 4 * k
            if not isv:
                n, lo = k >> 1, k & 1
                rr = [(self.vACC + 16 * a + 4 * n + 2 * q, e + 4 * n + 2 * q, u + 2 * a) for a in (lo, lo + 2) for q in range(2)]
                for r, cs, sv in rr:
                    c(f"v_pk_fma_f32 {vr(r,2)}, {vr(cs,2)}, {vr(sv,2)}, {vr(r,2)} op_sel_hi:[1,0,1]")
                for r, cs, sv in rr:
                    c(f"v_pk_mul_f32 {vr(r,2)}, {vr(r,2)}, {vr(sv,2)} op_sel:[0,1] op_sel_hi:[1,1]")
                so, off = sT + 4 + (n >> 1), (n & 1) * 2048 + lo * 256
            else:
                T, n = k >> 2, k & 3
                sel = "op_sel_hi:[1,0,1]" if n % 2 == 0 else "op_sel:[0,1,0] op_sel_hi:[1,1,1]"
                rr = [(self.vACC + 16 * a + 4 * n + 2 * q, e + 4 * a + 2 * q, 0) for a in (2 * T, 2 * T + 1) for q in range(2)]
                for r, nm, _ in rr:
                    c(f"v_pk_fma_f32 {vr(r,2)}, {vr(nm,2)}, {vr(u+(n&2),2)}, {vr(r,2)} {sel}")
                for r, nm, _ in rr:
                    c(f"v_pk_mul_f32 {vr(r,2)}, {vr(r,2)}, {vr(nm+16,2)}")
                so, off = sT + 4 + T, n * 256
            for q, (r, _, _) in enumerate(rr):
                c(f"v_cvt_pk_bf16_f32 v{out+q}, v{r}, v{r+1}")
            h = c(f"buffer_store_dwordx4 {vr(out,4)}, v{t+4}, {WSR}, s{so} offen offset:{off} sc1")
            if k < 7:
                c.add(wo[k * len(wo) // 7:(k + 1) * len(wo) // 7])
        return h

    def phase1(self):
        c, o = self.c, self.o
        self.p1_setup()
        c(f"s_cmp_eq_u32 s{sCT}, 15")
        c("s_waitcnt lgkmcnt(0)")
        c("s_cbranch_scc1 Lp1_idle")
        c(".save p0")
        self.stamp("start")
        pre, d0, h0 = self.p1_dma(0)
        c.add(d0)
        c(f"s_lshr_b32 s{sT}, s{sRB1}, 3")
        c(f"s_and_b32 s{sT+1}, s{sRB1}, 3")
        c(f"s_lshl2_add_u32 s74, s{sT}, s{sT+1}")
        c(f"s_and_b32 s75, s{sCT}, 7")
        if o.get('rot', 'A') != 'A':
            c(f"s_lshr_b32 s74, s{sRB1}, 1")
            c(f"s_lshr_b32 s75, s{sCT}, 1")
        c(f"s_add_u32 s{sT}, s74, s75")
        c(f"s_mul_i32 s{sT+1}, s{sT}, 52")
        c(f"s_lshr_b32 s{sT+1}, s{sT+1}, 8")
        c(f"s_mul_i32 s{sT+1}, s{sT+1}, 5")
        c(f"s_sub_u32 s{self.sSS}, s{sT}, s{sT+1}")
        c(f"s_add_u32 s{sT+14}, s{self.sSS}, s{self.sKC}")
        pre, d1, h1 = self.p1_dma(1)
        c.add(pre); c.add(d1[:4])
        self.base_setup()
        self.p1_setup2()
        c.add(d1[4:])
        self.p1_setup3(sT + 14)
        late = glue(self.sub(self.common_setup) + self.sub(self.rp_setup_unit) + self.sub(self.rp_setup_unit1))
        ne = o.get('early', 30)
        c.add(late[:ne]); self.late_setup = late[ne:]
        vc = glue(self.sub(self.v_const))
        nv = o.get('vcn', 0)
        self.later_setup = vc[:nv]
        c(f"s_cmp_ge_u32 s{sCT}, 10")
        c("s_cbranch_scc1 Lp1_v")
        c(".save p1")
        for isv in (False, True):
            if isv:
                c("Lp1_v:")
                c(".restore p1")
            self.p1_loop(isv, h0, h1)
            self.stamp("p1loop")
            h = self.p1_epilogue(isv)
            if not isv:
                c("s_branch Lp1_done")
        c("Lp1_done:")
        self.stamp("p1epi")
        c.add(vc[nv:])
        n0 = min(o.get('wot', 18) + o.get('woe', 0), 25)
        self.woq = self.wo_loads()[n0:]
        self.w1q, self.w2q = list(range(35)), list(range(35))
        KV = f"s[{sKV}:{sKV+3}]"
        c("Lp1_join:")
        nb_ = o.get('wob', 0)
        if not n0:
            self.flag_check(self.vWOD, self.vWOF)
        c.add(self.woq[:nb_]); self.woq = self.woq[nb_:]
        init = glue(self.sub(self.attn_init) + self.sub(self.attn_prep))
        na = o.get('inita', 70)
        c.add(init[:na])
        self.stamp("ainit")
        c.wait(h)
        self.stamp("p1drain")
        c("s_barrier")
        lab = self.label("f1")
        c(f"s_cmp_lg_u32 s{sW}, 2")
        c(f"s_cbranch_scc1 {lab}")
        c.cond(True)
        self.flag_store(sT + 13)
        c.cond(False)
        c(f"{lab}:")
        lab = self.label("f1")
        c(f"s_cmp_lg_u32 s{sW}, 0")
        c(f"s_cbranch_scc1 {lab}")
        for x in self.rp_flag:
            x.cond = True
        c.add(self.rp_flag)
        c(f"{lab}:")
        nc_ = o.get('woc', 0)
        ld = self.woq[:nc_]; self.woq = self.woq[nc_:]
        c.add(interleave(init[na:], ld))
        self.stamp("join")
        old, self.c = self.c, self.ool
        self.idle_path(n0)
        self.c = old

    def idle_path(self, n0):
        c = self.c
        P = self.RPP
        gw = sT + 8
        KV = f"s[{sKV}:{sKV+3}]"
        c("Lp1_idle:")
        c(".restore p0")
        if self.o.get('tlb', 1):
            sh = self.o.get('tlbs', 18)
            c(f"s_mov_b32 s{sKV+3}, 0x20000")
            c(f"v_lshlrev_b32 v8, {sh}, v1")
            for pair in (((sWS, WS_SIZE, 0), (sW2, 1728*1280, 0), (sWS, WS_SIZE, 64 << sh), (sW1, 640*3456, 0)),
                         ((sWS, WS_SIZE, 128 << sh), (sWQ, 640*3840, 0), (sOUT, 2048*1280, 0), (sX, 2048*1280, 0))):
                for w, (ptr, size, off) in enumerate(pair):
                    if w == 0:
                        c(f"s_mov_b64 s[{sKV}:{sKV+1}], s[{ptr}:{ptr+1}]")
                        c(f"s_mov_b32 s{sKV+2}, {size if off < size else 0}")
                        c(f"s_mov_b32 s{sT}, {off if off < size else 0}")
                    else:
                        c(f"s_cmp_eq_u32 s{sW}, {w}")
                        c(f"s_cselect_b64 s[{sKV}:{sKV+1}], s[{ptr}:{ptr+1}], s[{sKV}:{sKV+1}]")
                        c(f"s_cselect_b32 s{sKV+2}, {size if off < size else 0}, s{sKV+2}")
                        c(f"s_cselect_b32 s{sT}, {off if off < size else 0}, s{sT}")
                c(f"buffer_load_dword v240, v8, {KV}, s{sT} offen sc1").wr = []
        c(f"s_lshl2_add_u32 s{gw}, s{sRB1}, s{sW}")
        c(f"s_mov_b32 s{sRP}, s{sWO}")
        c(f"s_mov_b32 s{sRP+1}, s{sWO+1}")
        c(f"s_mov_b32 s{sRP+2}, {640*1280}")
        c(f"s_mov_b32 s{sRP+3}, 0x20000")
        t = self.vTMP
        for j in range(5):
            c(f"v_add_u32 v{t}, {64*j}, v1")
            c(f"v_mul_u32_u24 v{t+1}, 6554, v{t}")
            c(f"v_lshrrev_b32 v{t+2}, 16, v{t+1}")
            c(f"v_mul_u32_u24 v{t+2}, 70, v{t+2}")
            c(f"v_add_u32 v{t}, v{t}, v{t+2}")
            c(f"v_lshrrev_b32 v{t+2}, 20, v{t+1}")
            c(f"v_mul_u32_u24 v{t+2}, 320, v{t+2}")
            c(f"v_add_lshl_u32 v{self.vRP+j}, v{t}, v{t+2}, 4")
            c(f"v_lshrrev_b32 v{t+2}, 18, v{t+1}")
            c(f"v_mul_u32_u24 v{t+2}, 1280, v{t+2}")
            c(f"v_add_lshl_u32 v{44+j}, v{t}, v{t+2}, 4")
        c(f"s_and_b32 s{sT}, s{gw}, 7")
        c(f"s_mul_i32 s{sT}, s{sT}, 160")
        c(f"s_lshr_b32 s{sT+1}, s{gw}, 3")
        hd = {}
        for r in range(3):
            c(f"s_mul_i32 s{sT+9}, s{sT+1}, {(40 if r < 2 else 160)*1280}")
            c(f"s_add_u32 s{sT+9}, s{sT+9}, s{sT}")
            if r:
                c(f"s_add_u32 s{sT+9}, s{sT+9}, {(320 if r == 1 else 16)*1280}")
            if r == 2:
                c(f"s_cmp_lt_u32 s{gw}, 32")
                c(f"s_cselect_b32 s{sRP+2}, s{sRP+2}, 0")
            d = self.rp_dma(5, r * 5120, 40960, so=f"s{sT+9}", fl='', vb=self.vRP if r < 2 else 44)
            c.add(d); hd['o', r] = d[-1][-1]
        self.base_setup()
        self.common_setup()
        c(f"s_mov_b32 s{sKV}, s{sWS}")
        c(f"s_mov_b32 s{sKV+1}, s{sWS+1}")
        c(f"s_mov_b32 s{sKV+3}, 0x20000")
        c(f"s_and_b32 s82, s{gw}, 15")
        c(f"s_lshr_b32 s83, s{gw}, 4")
        c(f"s_mul_i32 s83, s83, 5")
        self.rp_w1_params(82, 83, 80)
        c(f"s_mov_b32 s{sRP+2}, {640*3456}")
        self.rp_w1_offsets(80)

        def dma1(r):
            c(f"s_mov_b32 s{sT+9}, {r*32*3456}")
            d = self.rp_dma(7, 15360 + (r % 3) * 7168, 40960, so=f"s{sT+9}", fl='')
            c.add(d); hd['a', r] = d[-1][-1]
        c(f"v_lshlrev_b32 v8, 7, v1")
        self.tag_ready()
        c.add(self.fx_publish())
        c(f"v_mov_b32 v{vFLG}, s{sTAG}")
        self.rp_addr(16, 160, 0, 40960, False)
        self.rp_addr(22, 224, 15360, 40960, sW)

        def params(kind, r):
            if kind == 'o':
                self.rp_params_wo(gw, r)
                c(f"s_cmp_lg_u32 s{sRPT}, 0")
                c(f"s_cselect_b32 s{sKV+2}, {WS_SIZE}, 0")
            else:
                c(f"s_mov_b32 s{sKV+2}, {WS_SIZE}")
                c(f"s_lshr_b32 s83, s{gw}, 4")
                c(f"s_mul_i32 s83, s83, 5")
                c(f"s_add_u32 s83, s83, {r}")
                self.rp_w1_params(82, 83)
        hs = {}

        def proc(kind, r, n):
            params(kind, r)
            c.wait(hd[kind, r])
            it = self.rp_items(5, 16, r * 5120, 64 + 20 * r, KV) if kind == 'o' else self.rp_items(7, 22, (r % 3) * 7168, 124 + 28 * (r % 3), KV)
            c.add(it); hs[kind, r] = flat(it)[-1]

        def flag(kind, r):
            params(kind, r)
            c.wait(hs[kind, r])
            self.flag_store(sRPF, KV)
        dbg = self.o.get('idledbg')
        if dbg: self.stamp("start")
        dma1(0)
        if dbg: c.wait(hd['o', 0]); self.stamp("b0")
        for r in range(3):
            proc('o', r, r)
        dma1(1)
        for r in range(3):
            flag('o', r)
        if dbg: self.stamp("p1epi")
        ni = 5 - self.o.get('nr', 3)
        assert 2 <= ni <= 3
        if ni > 2:
            dma1(2)
        for r in range(ni):
            proc('a', r, r)
        self.v_const()
        for r in range(ni):
            flag('a', r)
        if self.o.get('fltouch', 1):
            c(f"s_lshl_b32 s{sT}, s{sRB1}, 11")
            c(f"s_add_u32 s{sT}, s{sT}, {F1_OFF}")
            c(f"v_and_b32 v9, 0x780, v8")
            c(f"buffer_load_dword v240, v9, {WSR}, s{sT} offen")
            c.ins[-1].wr = []
        self.stamp("p1loop")
        lab = self.label("ep")
        c(f"s_cmp_lg_u32 s{gw}, {99 if self.o.get('x_noepoch') else 63}")
        c(f"s_cbranch_scc1 {lab}")
        c(f"v_lshlrev_b32 v8, 7, v1")
        for j in range(4):
            c(f"v_add_u32 v9, {FX_OFF - FL_OFF + j*8192}, v8")
            self.poll(9, span=True, sleep=16)
        c(f"s_mov_b32 s{sT}, {EP_OFF}")
        self.flag_store(sT)
        c(f"{lab}:")
        c(f"s_mov_b32 s{sRP+2}, 0")
        c(f"v_mov_b32 v{self.vRA+4}, 0")
        c(f"s_lshl_b32 s{sT+13}, s{sRB1}, 11")
        c(f"s_add_u32 s{sT+13}, s{sT+13}, {F1_OFF + 15*128}")
        self.poll(self.vWOF, self.vWOD, sleep=8)
        c("s_barrier")
        c.add(self.wo_loads()[:n0])
        c("s_branch Lp1_join")

    RPP = dict(pitch=sT, col=sT + 1, nch=sT + 2, mch=sT + 3, v0=sT + 4, dm=sT + 5, dd=sT + 6, aa=sT + 7, lim=sT + 12, r0=sT + 13, u=sT + 14)

    def rp_params_wo(self, gw, r):
        c = self.c
        u = self.RPP['u']
        c(f"s_lshr_b32 s{u}, s{gw}, 3")
        if r < 2:
            c(f"s_lshr_b32 s{u+1}, s{u}, 2")
            c(f"s_add_u32 s{u}, s{u}, s{u+1}")
            c(f"s_add_u32 s{u}, s{u}, {10*r}")
            c(f"s_mov_b32 s{sRPT}, 1")
        else:
            c(f"s_mul_i32 s{u}, s{u}, 5")
            c(f"s_add_u32 s{u}, s{u}, 4")
            c(f"s_cmp_lt_u32 s{gw}, 32")
            c(f"s_cselect_b32 s{sRPT}, 1, 0")
        c(f"s_and_b32 s{u+1}, s{gw}, 7")
        c(f"s_mul_i32 s{sRPD}, s{u+1}, 20")
        c(f"s_add_u32 s{sRPD}, s{sRPD}, s{u}")
        c(f"s_mul_i32 s{sRPD}, s{sRPD}, 5120")
        c(f"s_add_u32 s{sRPD}, s{sRPD}, {WO_OFF}")
        c(f"s_lshl_b32 s{sRPF}, s{u+1}, 5")
        c(f"s_add_u32 s{sRPF}, s{sRPF}, s{u}")
        c(f"s_lshl_b32 s{sRPF}, s{sRPF}, 7")
        c(f"s_add_u32 s{sRPF}, s{sRPF}, {FWO_OFF}")

    RPL = 8 * 16384
    vRA = 240
    sRD = 82

    def rp_setup_unit(self):
        c = self.c
        t, ra = self.vTMP, self.vRA
        u, sl, r0, v0, col, x, y = [sT + i for i in range(7)]
        c(f"s_mov_b32 s{sRP}, s{sW2}")
        c(f"s_mov_b32 s{sRP+1}, s{sW2+1}")
        c(f"s_mov_b32 s{sRP+3}, 0x20000")
        c(f"s_cmp_lt_u32 s2, 224")
        c(f"s_cselect_b32 s{sRP+2}, {1728*1280}, 0")
        c(f"s_cselect_b32 s{sRPT}, {WS_SIZE}, 0")
        c(f"s_and_b32 s{sl}, s2, 3")
        c(f"s_lshr_b32 s{u}, s2, 2")
        c(f"s_mul_i32 s{r0}, s{u}, 18726")
        c(f"s_lshr_b32 s{r0}, s{r0}, 16")
        c(f"s_mul_i32 s{col}, s{r0}, 112")
        c(f"s_lshl_b32 s{v0}, s{u}, 5")
        c(f"s_sub_u32 s{v0}, s{v0}, s{col}")
        c(f"s_mul_i32 s{r0}, s{r0}, {108*1280}")
        c(f"s_mul_i32 s{col}, s{sl}, 320")
        c(f"s_add_u32 s{col}, s{col}, s{r0}")
        c(f"s_mul_i32 s{sRPD}, s{sl}, 112")
        c(f"s_add_u32 s{sRPD}, s{sRPD}, s{u}")
        c(f"s_mul_i32 s{sRPD}, s{sRPD}, 5120")
        c(f"s_add_u32 s{sRPD}, s{sRPD}, {W2_OFF}")
        c(f"s_lshl_b32 s{sRPF}, s{sl}, 6")
        c(f"s_add_u32 s{sRPF}, s{sRPF}, s{u}")
        c(f"s_lshl_b32 s{sRPF}, s{sRPF}, 7")
        c(f"s_add_u32 s{sRPF}, s{sRPF}, {FW2_OFF}")
        assert all((S * 18726) >> 16 == (32 * S) // 112 for S in range(80)) and all((v * 3277) >> 16 == v // 20 for v in range(768))
        c(f"v_mov_b32 v{t+4}, {OOB}")
        for j in range(3):
            c(f"v_add_u32 v{t}, {256*j}, v0")
            c(f"v_mul_u32_u24 v{t+1}, 3277, v{t}")
            c(f"v_lshrrev_b32 v{t+1}, 16, v{t+1}")
            c(f"v_mul_u32_u24 v{t+2}, 20, v{t+1}")
            c(f"v_sub_u32 v{t}, v{t}, v{t+2}")
            c(f"v_lshl_add_u32 v{t}, v{t}, 4, s{col}")
            c(f"v_add_u32 v{t+1}, s{v0}, v{t+1}")
            c(f"v_subrev_u32 v{t+2}, 108, v{t+1}")
            c(f"v_med3_i32 v{t+3}, v{t+2}, 0, 4")
            c(f"v_cmp_gt_u32 vcc, 4, v{t+2}")
            c(f"v_sub_u32 v{t+1}, v{t+1}, v{t+3}")
            c(f"v_mul_u32_u24 v{t+1}, 1280, v{t+1}")
            c(f"v_add_u32 v{t}, v{t}, v{t+1}")
            c(f"v_cndmask_b32 v{self.vRP+j}, v{t}, v{t+4}, vcc")
        c(f"v_cmp_gt_u32 vcc, 128, v0")
        c(f"v_lshrrev_b32 v{t}, 4, v1")
        c(f"v_bfe_u32 v{t+1}, v1, 2, 2")
        c(f"v_cndmask_b32 v{self.vRP+2}, v{t+4}, v{self.vRP+2}, vcc")
        c(f"v_cndmask_b32 v{ra+3}, v{t+4}, v{vL16}, vcc")
        c(f"v_cmp_gt_u32 vcc, 32, v0")
        c(f"v_lshl_add_u32 v{t+2}, v1, 2, s{sRPF}")
        c(f"v_lshl_add_u32 v{t}, v{t}, 3, v{t+1}")
        c(f"v_cndmask_b32 v{ra+4}, v{t+4}, v{t+2}, vcc")
        c(f"v_mul_u32_u24 v{t}, 320, v{t}")
        c(f"v_and_b32 v{t+1}, 3, v1")
        for j in range(3):
            c(f"s_add_u32 s{u}, s{sW}, {4*j}")
            c(f"s_cmp_ge_u32 s{u}, 5")
            c(f"s_cselect_b32 s{sl}, 1, 0")
            c(f"s_mul_i32 s{x}, s{sl}, 5")
            c(f"s_sub_u32 s{u}, s{u}, s{x}")
            c(f"s_mul_i32 s{x}, s{sl}, {56*5}")
            c(f"s_add_u32 s{x}, s{x}, s{u}")
            c(f"s_lshl_b32 s{x}, s{x}, 10")
            c(f"s_add_u32 s{self.sRD+j}, s{sRPD}, s{x}")
            c(f"s_mul_i32 s{sl}, s{sl}, 160")
            c(f"s_and_b32 s{x}, s{u}, 1")
            c(f"s_lshl3_add_u32 s{sl}, s{x}, s{sl}")
            c(f"s_and_b32 s{x}, s{u}, 6")
            c(f"s_lshl_b32 s{x}, s{x}, 5")
            c(f"s_add_u32 s{sl}, s{sl}, s{x}")
            c(f"s_add_u32 s{sl}, s{sl}, {self.RPL}")
            c(f"s_cmp_eq_u32 s{u}, 4")
            c(f"s_cselect_b32 s{y}, 3, 4")
            c(f"v_lshlrev_b32 v{t+2}, s{y}, v{t+1}")
            c(f"v_add3_u32 v{ra+j}, v{t+2}, v{t}, s{sl}")

    RPL1 = 8 * 16384 + 12288
    vRB = 246

    def rp_setup_unit1(self):
        c = self.c
        nr = self.o.get('nr', 3)
        t, rb = self.vTMP, self.vRB
        fb, st, col, x = [sT + i for i in range(4)]
        c(f"s_mov_b32 s{sKV}, s{sW1}")
        c(f"s_mov_b32 s{sKV+1}, s{sW1+1}")
        c(f"s_mov_b32 s{sKV+3}, 0x20000")
        c(f"s_cmp_lt_u32 s2, {64*nr}")
        c(f"s_cselect_b32 s{sKV+2}, {640*3456}, 0")
        c(f"s_cselect_b32 s79, {WS_SIZE}, 0")
        c(f"s_cselect_b64 vcc, s[{sHI}:{sHI+1}], 0")
        c(f"s_and_b32 s{fb}, s2, 15")
        c(f"s_bfe_u32 s{st}, s2, 0x20004")
        c(f"s_mul_i32 s{st}, s{st}, 5")
        c(f"s_lshr_b32 s{x}, s2, 6")
        c(f"s_add_u32 s{st}, s{st}, s{x}")
        c(f"s_add_u32 s{st}, s{st}, {5 - nr}")
        c(f"s_mul_i32 s80, s{fb}, 20")
        c(f"s_add_u32 s80, s80, s{st}")
        c(f"s_mul_i32 s80, s80, 7")
        c(f"s_add_u32 s80, s80, s{sW}")
        c(f"s_lshl_b32 s80, s80, 10")
        c(f"s_add_u32 s80, s80, {W1_OFF}")
        c(f"s_lshl_b32 s{x}, s{fb}, 5")
        c(f"s_add_u32 s{x}, s{x}, s{st}")
        c(f"s_lshl_b32 s{x}, s{x}, 7")
        c(f"s_add_u32 s{x}, s{x}, {FW1_OFF - 128}")
        c(f"s_cmp_eq_u32 s{sW}, 0")
        c(f"s_cselect_b64 vcc, vcc, 0")
        c(f"v_lshl_add_u32 v{t}, v1, 2, s{x}")
        c(f"v_cndmask_b32 v{self.vRA+4}, v{self.vRA+4}, v{t}, vcc")
        c(f"s_mul_i32 s{col}, s{fb}, 216")
        c(f"s_and_b32 s{col}, s{col}, -16")
        c(f"s_mul_i32 s{x}, s{st}, {32*3456}")
        c(f"s_add_u32 s{col}, s{col}, s{x}")
        for j in range(2):
            c(f"v_add_u32 v{t}, {256*j}, v0")
            c(f"v_mul_u32_u24 v{t+1}, 4682, v{t}")
            c(f"v_lshrrev_b32 v{t+1}, 16, v{t+1}")
            c(f"v_mul_u32_u24 v{t+1}, {3456-224}, v{t+1}")
            c(f"v_lshl_add_u32 v{t}, v{t}, 4, s{col}")
            c(f"v_add_u32 v{self.vRP+3+j}, v{t}, v{t+1}")
        c(f"v_cmp_gt_u32 vcc, 192, v0")
        c(f"v_add_u32 v{t}, 4096, v{vL16}")
        c(f"v_lshrrev_b32 v{t+2}, 4, v1")
        c(f"v_cndmask_b32 v{self.vRP+4}, v{t+4}, v{self.vRP+4}, vcc")
        c(f"v_cndmask_b32 v{rb+2}, v{t+4}, v{t}, vcc")
        c(f"v_bfe_u32 v{t+1}, v1, 2, 2")
        c(f"v_lshl_add_u32 v{t}, v{t+2}, 3, v{t+1}")
        c(f"v_mul_u32_u24 v{t}, 224, v{t}")
        c(f"v_and_b32 v{t+1}, 3, v1")
        c(f"s_and_b32 s{x}, s{fb}, 1")
        c(f"s_and_b32 s{col}, s{sW}, 1")
        c(f"s_add_u32 s{x}, s{x}, s{col}")
        c(f"s_and_b32 s{col}, s{sW}, 2")
        c(f"s_lshl_b32 s{col}, s{col}, 5")
        c(f"s_lshl3_add_u32 s{x}, s{x}, s{col}")
        c(f"s_add_u32 s{x}, s{x}, {self.RPL1}")
        c(f"v_add_u32 v{t}, s{x}, v{t}")
        c(f"v_lshl_add_u32 v{rb}, v{t+1}, 4, v{t}")
        c(f"s_cmp_eq_u32 s{sW}, 2")
        c(f"s_cselect_b32 s{x}, 3, 4")
        c(f"s_cselect_b32 s78, 12, 16")
        c(f"v_lshl_add_u32 v{rb+1}, v{t+1}, s{x}, v{t}")

    def rp_unit1_items(self, fr):
        rb, KV = self.vRB, f"s[{sKV}:{sKV+3}]"
        dma = [[I(f"s_add_u32 m0, s{sT+12}, {self.RPL1 + 4096*j}"), I(f"buffer_load_dwordx4 v{self.vRP+3+j}, {KV}, 0 offen lds")] for j in range(2)]
        rd = [I(f"ds_read_b64_tr_b16 {vr(fr+4*j+2*q,2)}, v{rb+j} offset:{q*896 + j*128}") for j in range(2) for q in range(2)]
        pad = [I(f"v_and_b32 v{rb}, 15, v1"), I(f"v_cmp_gt_u32 vcc, s78, v{rb}")] + [I(f"v_cndmask_b32 v{fr+4+q}, 0, v{fr+4+q}, vcc") for q in range(4)]
        stv = [[I(f"buffer_store_dwordx4 {vr(fr+4*j,4)}, v{vL16 if j == 0 else rb+2}, {KV}, s80 offen sc1")] for j in range(2)]
        stv[0] = [I(f"s_mov_b64 s[{sKV}:{sKV+1}], s[{sWS}:{sWS+1}]"), I(f"s_mov_b32 s{sKV+2}, s79")] + stv[0]
        return dma, rd, pad, stv

    def rp_unit_items(self, fr):
        ra, RP = self.vRA, f"s[{sRP}:{sRP+3}]"
        dma = [[I(f"s_lshl_b32 s{sT+12}, s{sW}, 10")] * (j == 0) + [I(f"s_add_u32 m0, s{sT+12}, {self.RPL + 4096*j}"),
               I(f"buffer_load_dwordx4 v{self.vRP+j}, {RP}, 0 offen lds")] for j in range(3)]
        rd = [I(f"ds_read_b64_tr_b16 {vr(fr[j]+2*q,2)}, v{ra+j} offset:{q*1280}") for j in range(3) for q in range(2)]
        stv = [[I(f"buffer_store_dwordx4 {vr(fr[j],4)}, v{vL16 if j < 2 else ra+3}, {RP}, s{self.sRD+j} offen sc1")] for j in range(3)]
        stv[0] = [I(f"s_mov_b64 s[{sRP}:{sRP+1}], s[{sWS}:{sWS+1}]"), I(f"s_mov_b32 s{sRP+2}, s{sRPT}")] + stv[0]
        flag = [I(f"v_mov_b32 v{vFLG}, s{sTAG}"), I(f"buffer_store_dword v{vFLG}, v{ra+4}, {RP}, 0 offen sc1")]
        return dma, rd, stv, flag

    def rp_w1_params(self, fb, step, col=None):
        c = self.c
        c(f"s_mul_i32 s{sRPD}, s{fb}, 20")
        c(f"s_add_u32 s{sRPD}, s{sRPD}, s{step}")
        c(f"s_mul_i32 s{sRPD}, s{sRPD}, 7168")
        c(f"s_add_u32 s{sRPD}, s{sRPD}, {W1_OFF}")
        c(f"s_lshl_b32 s{sRPF}, s{fb}, 5")
        c(f"s_add_u32 s{sRPF}, s{sRPF}, s{step}")
        c(f"s_lshl_b32 s{sRPF}, s{sRPF}, 7")
        c(f"s_add_u32 s{sRPF}, s{sRPF}, {FW1_OFF}")
        if col is not None:
            c(f"s_mov_b32 s{sRP}, s{sW1}")
            c(f"s_mov_b32 s{sRP+1}, s{sW1+1}")
            c(f"s_mul_i32 s{col}, s{fb}, 216")
            c(f"s_and_b32 s{col}, s{col}, -16")
            c(f"s_mul_i32 s{step}, s{step}, {32*3456}")
            c(f"s_add_u32 s{col}, s{col}, s{step}")

    def rp_w1_offsets(self, col):
        c = self.c
        t = 16
        for j in range(7):
            c(f"v_add_u32 v{t}, {64*j}, v1")
            c(f"v_mul_u32_u24 v{t+1}, 4682, v{t}")
            c(f"v_lshrrev_b32 v{t+1}, 16, v{t+1}")
            c(f"v_mul_u32_u24 v{t+1}, {3456-224}, v{t+1}")
            c(f"v_lshl_add_u32 v{t}, v{t}, 4, s{col}")
            c(f"v_add_u32 v{self.vRP+j}, v{t}, v{t+1}")

    def only_waves(self, hi, items):
        lab = self.label("ow")
        out = [I(f"s_cmp_ge_u32 s{sW}, {3 if hi else 2}"), I(f"s_cbranch_scc{0 if hi else 1} {lab} ; noflush")]
        for i in flat(items):
            i.cond = True
            out.append(i)
        out.append(I(f"{lab}: ; noflush"))
        return out

    RP1_LDS = 6 * 16384

    def rp_dma(self, n, base, wstride, so="0", fl=None, vb=None):
        items = []
        vb = self.vRP if vb is None else vb
        fl = self.o.get('rpld', '') if fl is None else fl
        for j in range(n):
            pre = [I(f"s_mul_i32 s{sT+12}, s{sW}, {wstride}")] if j == 0 else []
            items.append(pre + [I(f"s_add_u32 m0, s{sT+12}, {base + 1024*j}"),
                                I(f"buffer_load_dwordx4 v{vb+j}, s[{sRP}:{sRP+3}], {so} offen {fl} lds")])
        return items

    def rp_addr(self, t, pitch, base, wstride, oddshift, st=sT):
        c = self.c
        c(f"s_mul_i32 s{st+1}, s{sW}, {wstride}")
        if oddshift:
            c(f"s_and_b32 s{st+2}, s{oddshift}, 1")
            c(f"s_lshl3_add_u32 s{st+1}, s{st+2}, s{st+1}")
        c(f"s_add_u32 s{st+1}, s{st+1}, {base}")
        c(f"v_lshrrev_b32 v{t}, 4, v1")
        c(f"v_bfe_u32 v{t+1}, v1, 2, 2")
        c(f"v_lshl_add_u32 v{t}, v{t}, 3, v{t+1}")
        c(f"v_mul_u32_u24 v{t}, {pitch}, v{t}")
        c(f"v_add_u32 v{t}, s{st+1}, v{t}")
        c(f"v_and_b32 v{t+1}, 3, v1")
        c(f"v_lshl_add_u32 v{t+2}, v{t+1}, 4, v{t}")
        c(f"v_lshl_add_u32 v{t+3}, v{t+1}, 3, v{t}")

    def rp_items(self, nt, t, off, fr, R):
        pitch = 160 if nt == 5 else 224
        fb = fr if isinstance(fr, list) else [fr + 4 * tl for tl in range(nt)]
        rd, stv = [], []
        for tl in range(nt):
            for q in range(2):
                if tl < nt - 1:
                    rd.append(I(f"ds_read_b64_tr_b16 {vr(fb[tl]+2*q,2)}, v{t+2} offset:{off + q*4*pitch + (tl>>1)*64 + (tl&1)*8}"))
                else:
                    rd.append(I(f"ds_read_b64_tr_b16 {vr(fb[tl]+2*q,2)}, v{t+3} offset:{off + q*4*pitch + tl*32}"))
        for tl in range(nt):
            g = []
            if tl == 4:
                g.append(I(f"s_add_u32 s{sRPD}, s{sRPD}, 4096"))
            if tl == 6:
                g += [I(f"v_and_b32 v{t}, 15, v1"), I(f"v_cmp_gt_u32 vcc, 12, v{t}")]
                g += [I(f"v_cndmask_b32 v{fr+24+q}, 0, v{fr+24+q}, vcc") for q in range(4)]
            g.append(I(f"buffer_store_dwordx4 {vr(fb[tl],4)}, v{vL16}, {R}, s{sRPD} offen offset:{(tl&3)*1024} sc1"))
            stv.append(g)
        return rd + stv

    aV, aW1L, aWO = 0, 80, 156

    def wo_loads(self):
        items = []
        for i in range(25):
            pre = [I(f"s_add_u32 s{sWOO}, s{sWOO}, 4096")] if i and i % 4 == 0 else []
            items.append(pre + [I(f"buffer_load_dwordx4 {ar(self.aWO+4*i,4)}, v{vL16}, {WSR}, s{sWOO} offen offset:{(i&3)*1024} {self.ld}")])
        return items

    def w1_take(self, n, below=35):
        items = []
        first = True
        while n and self.w1q and self.w1q[0] < below:
            i = self.w1q.pop(0); n -= 1
            pre = []
            if (i % 4 == 0 or first) and i < 25:
                pre.append(I(f"s_add_u32 m0, s{sW1M}, {(i >> 2) * 4096}"))
            if i % 4 == 0 and i:
                pre.append(I(f"s_add_u32 s{sW1O}, s{sW1O}, 4096"))
            first = False
            if i < 25:
                items.append(pre + [I(f"buffer_load_dwordx4 v{vL16}, {WSR}, s{sW1O} offen offset:{(i&3)*1024} {self.ld} lds")])
            else:
                items.append(pre + [I(f"buffer_load_dwordx4 {ar(self.aW1L+4*(i-25),4)}, v{vL16}, {WSR}, s{sW1O} offen offset:{(i&3)*1024} {self.ld}")])
        return items

    def w2_take(self, n, below=70):
        items = []
        while n and self.w2q and self.w2q[0] < below:
            i = self.w2q.pop(0); n -= 1
            pre = [I(f"s_add_u32 s{sW2O}, s{sW2B}, {(i >> 2) * 4096}")] if i % 4 == 0 else []
            items.append(pre + [I(f"buffer_load_dwordx4 {self.w2reg(i)}, v{vL16}, {WSR}, s{sW2O} offen offset:{(i&3)*1024} {self.ld}")])
        return items

    def w2reg(self, i):
        return ar(120 + 4 * i if i < 9 else 4 * (i - 9), 4)

    vO, vK, vQ, vQ4, vZ, vS, vCO, vCD, vP = 32, 64, 124, 132, 136, 146, 178, 194, 210
    vX = 226
    vXL, vRP2 = 226, 230
    vL16m, vVA, vFWA, vFWD, vPOL = 3, 4, 5, 6, 7
    sKO, sVO = sT + 8, sT + 9
    UNITS = sorted([(kt, 0) for kt in range(9)] + [(kt, 1) for kt in range(1, 10)])

    def v_const(self):
        c = self.c
        for pi in range(5):
            c(f"s_cmp_ge_u32 s{sU}, {4-pi}")
            c(f"s_cselect_b32 s81, 0x3f803f80, 0")
            c(f"v_mov_b32 v63, s81")
            for j in range(16):
                c(f"v_accvgpr_write_b32 a{self.aV+16*pi+j}, v63")

    def attn_init(self):
        c = self.c
        t = 8
        c(f"s_mov_b32 s{sVM}, 0x000fffff")
        c(f"s_mov_b32 s{sVM+1}, 0x000fffff")
        c(f"s_mov_b32 s{sKV}, s{sWS}")
        c(f"s_mov_b32 s{sKV+1}, s{sWS+1}")
        c(f"s_mov_b32 s{sKV+3}, 0x20000")
        c(f"v_and_b32 v{self.vL16m}, 0x1f0, v{vL16}")
        c(f"v_lshrrev_b32 v{t}, 1, v1")
        c(f"v_xor_b32 v{t}, v{t}, v1")
        c(f"v_and_b32 v{t}, 4, v{t}")
        c(f"v_mul_u32_u24 v{t}, 48, v{t}")
        c(f"v_xor_b32 v{t}, v{t}, v{self.vL16m}")
        c(f"v_lshrrev_b32 v{t+1}, 5, v1")
        c(f"v_mul_u32_u24 v{t+2}, 10240, v{t+1}")
        c(f"v_add_u32 v{self.vVA}, v{t}, v{t+2}")
        c(f"v_and_b32 v{t}, 31, v1")
        c(f"v_lshlrev_b32 v{t+1}, 2, v{t+1}")
        c(f"v_sub_u32 v{t}, v{t}, v{t+1}")
        c(f"v_mov_b32 v{t+2}, 0xff800000")
        for r in range(0, 16, 4):
            for i in range(4):
                c(f"v_cmp_gt_i32 s[{sT+2*i}:{sT+2*i+1}], {8*(r>>2) + i}, v{t}")
            for i in range(4):
                c(f"v_cndmask_b32 v{self.vCD+r+i}, 0, v{t+2}, s[{sT+2*i}:{sT+2*i+1}]")
            for i in range(4):
                c(f"v_xor_b32 v{self.vCO+r+i}, v{self.vCD+r+i}, v{t+2}")
        c(f"s_lshl_b32 s{sT+2}, s{sU}, 10")
        c(f"s_add_u32 s{sT+2}, s{sT+2}, {FX_OFF - FL_OFF}")
        c(f"v_and_b32 v{t}, 7, v1")
        c(f"v_lshl_add_u32 v{self.vFWA}, v{t}, 7, s{sT+2}")
        c(f"s_mul_i32 s{sT}, s{sK8}, {7*128}")
        c(f"s_lshr_b32 s{sT+1}, s{sNB}, 1")
        c(f"s_lshl_b32 s{sT+1}, s{sT+1}, 13")
        c(f"s_add_u32 s{sT}, s{sT}, s{sT+1}")
        c(f"s_add_u32 s{sT}, s{sT}, {FW2_OFF - FL_OFF}")
        c(f"v_min_u32 v{t}, 6, v{t}")
        c(f"v_lshl_add_u32 v{t+1}, v{t}, 7, s{sT}")
        c(f"v_cndmask_b32 v{self.vFWA}, v{self.vFWA}, v{t+1}, s[{sHI}:{sHI+1}]")
        c(f"s_mul_i32 s{sT}, s{sW}, 640")
        c(f"s_lshl_b32 s{sT+1}, s{sFB}, 12")
        c(f"s_add_u32 s{sT}, s{sT}, s{sT+1}")
        c(f"s_add_u32 s{sT}, s{sT}, {FW1_OFF - FL_OFF}")
        c(f"v_cmp_lt_u32 vcc, 47, v1")
        c(f"v_min_u32 v{t}, 4, v{t}")
        c(f"v_lshl_add_u32 v{t}, v{t}, 7, s{sT}")
        c(f"v_cndmask_b32 v{self.vFWA}, v{self.vFWA}, v{t}, vcc")
        c(f"s_mul_i32 s{sT}, s{sNB}, 80")
        c(f"s_add_u32 s{sT+1}, s{sT}, 79")
        c(f"s_lshr_b32 s{sT}, s{sT}, 7")
        c(f"s_lshr_b32 s{sT+1}, s{sT+1}, 7")
        c(f"s_sub_u32 s{sT+1}, s{sT+1}, s{sT}")
        c(f"v_lshrrev_b32 v{t}, 2, v1")
        c(f"v_min_u32 v{t}, 2, v{t}")
        c(f"v_bfe_u32 v{t+1}, v1, 1, 1")
        c(f"v_add_u32 v{t+1}, 1, v{t+1}")
        c(f"v_cmp_lt_u32 vcc, 11, v1")
        c(f"v_and_b32 v{t+2}, s{sT+1}, v1")
        c(f"v_cndmask_b32 v{t+1}, v{t+1}, 0, vcc")
        c(f"v_mad_u32_u24 v{t+1}, v{t+1}, 5, v{t+2}")
        c(f"v_add_u32 v{t+1}, s{sT}, v{t+1}")
        c(f"s_sub_u32 s{sT}, s{sRB}, 2")
        c(f"v_add_u32 v{t}, s{sT}, v{t}")
        c(f"v_max_i32 v{t}, 0, v{t}")
        c(f"v_lshl_add_u32 v{t}, v{t}, 4, v{t+1}")
        c(f"v_lshlrev_b32 v{t}, 7, v{t}")
        c(f"v_add_u32 v{self.vPOL}, {F1_OFF - FL_OFF}, v{t}")
        for j in range(3):
            c(f"v_add_u32 v{t}, {64*j}, v1")
            c(f"v_mul_u32_u24 v{t+1}, 6554, v{t}")
            c(f"v_lshrrev_b32 v{t+1}, 16, v{t+1}")
            c(f"v_mul_u32_u24 v{t+1}, {1280-160}, v{t+1}")
            c(f"v_add_u32 v{self.vXL+j}, v{vL16}, v{t+1}")
        c(f"v_mov_b32 v{t}, {OOB}")
        c(f"v_cndmask_b32 v{self.vXL+2}, v{self.vXL+2}, v{t}, s[{sHI}:{sHI+1}]")
        for j in range(1, 4):
            c(f"v_add_u32 v{t+j}, {j*20480}, v{self.vVA}")
        c(f"v_and_b32 v{t+4}, 15, v1")
        c(f"v_bfe_u32 v{t}, v1, 4, 1")
        c(f"v_lshlrev_b32 v{t+4}, 4, v{t+4}")
        c(f"v_lshl_add_u32 v{t+5}, v{t}, 13, v{t+4}")
        c(f"v_lshl_add_u32 v{t+4}, v{t}, 14, v{t+4}")
        c(f"v_lshrrev_b32 v{t}, 5, v1")
        c(f"v_lshl_add_u32 v{t+4}, v{t}, 8, v{t+4}")

    sKVO = 64

    def attn_kv_prep(self):
        c = self.c
        for pi in range(5):
            b = self.sKVO + 3 * pi
            c(f"s_sub_u32 s{sT}, s{sU}, {4-pi}")
            c(f"s_cselect_b32 s{b+2}, 0, {WS_SIZE}")
            c(f"s_cselect_b32 s{sT}, 0, s{sT}")
            c(f"s_mul_i32 s{b+1}, s{sT}, 81920")
            c(f"s_lshl1_add_u32 s{b}, s{b+1}, s{sT+6}")
            c(f"s_add_u32 s{b+1}, s{b+1}, s{sT+7}")

    def attn_kv_loads(self, pi):
        ld = self.ld
        k = self.vK + 12 * pi
        R = f"s[{sKV}:{sKV+3}]"
        b = self.sKVO + 3 * pi
        K = [[I(f"s_mov_b32 s{sKV+2}, s{b+2}"), I(f"buffer_load_dwordx4 {vr(k,4)}, v{vL16}, {R}, s{b} offen {ld}")],
             [I(f"buffer_load_dwordx4 {vr(k+4,4)}, v{vL16}, {R}, s{b} offen offset:1024 {ld}")],
             [I(f"buffer_load_dwordx4 {vr(k+8,4)}, v{self.vL16m}, {R}, s{b} offen offset:2048 {ld}")]]
        va = [self.vVA, 9, 10, 11]
        L = [I(f"buffer_load_dwordx4 {ar(self.aV+16*pi+4*q,4)}, v{va[q]}, {R}, s{b+1} offen {ld}") for q in range(4)]
        on, off = (lambda: I(f"s_mov_b64 exec, s[{sVM}:{sVM+1}]")), (lambda: I("s_mov_b64 exec, -1"))
        return K, [[on(), q, off()] for q in L]

    def attn_qk(self, u, dst, units=None):
        kt, T = (units or self.UNITS)[u]
        k = self.vK + 12 * (kt >> 1)
        cin = '0'
        if kt == T:
            cin = vr(self.vCO, 16)
        elif kt == 8 + T:
            cin = vr(self.vCD, 16)
        d = vr(dst, 16)
        z = self.vZ + 4 * T + (0 if kt & 1 else 2)
        return [I(f"v_mfma_f32_32x32x16_bf16 {d}, {vr(k+4*(kt&1),4)}, {vr(self.vQ+4*T,4)}, {cin}"),
                I(f"v_mfma_f32_32x32x16_bf16 {d}, {vr(k+8,4)}, {vr(z,4)}, {d}")]

    def attn_loop(self, fill, swaps, order=(0, 1, 2, 3, 4)):
        c = self.c
        UN = [x for pi in order for x in self.UNITS if x[0] >> 1 == pi]
        n = len(UN)
        S = lambda u: self.vS + 16 * (u & 1)
        P = lambda u: self.vP + 8 * (u & 1)
        seen = set()

        def qk(u):
            kt = UN[u][0]
            pre = []
            if swaps and (kt >> 1) not in seen:
                seen.add(kt >> 1)
                k = self.vK + 12 * (kt >> 1)
                pre = [I(f"v_swap_b32 v{k+2}, v{k+4}"), I(f"v_swap_b32 v{k+3}, v{k+5}")]
            return pre, self.attn_qk(u, S(u), UN)

        def pv(u, s):
            kt, T = UN[u]
            d = vr(self.vO + 16 * T, 16)
            first = (s == 0 and all(x[1] != T for x in UN[:u]))
            return I(f"v_mfma_f32_32x32x16_bf16 {d}, {ar(self.aV+8*kt+4*s,4)}, {vr(P(u)+4*s,4)}, {0 if first else d}")

        ex = lambda u, g: [I(f"v_exp_f32 v{S(u)+4*g+i}, v{S(u)+4*g+i}") for i in range(4)]
        cv = lambda u, g: [I(f"v_cvt_pk_bf16_f32 v{P(u)+2*g+i}, v{S(u)+4*g+2*i}, v{S(u)+4*g+2*i+1}") for i in range(2)]
        slot = [0]

        def mf(m):
            items = [flat(x) for x in fill.get(slot[0], [])]
            slot[0] += 1
            if items:
                f = items[0]
                k = next((j for j, i in enumerate(f) if i.kind in ('vmem', 'ds')), 0)
                c.add(f[:k]); c.add(m); c.add(f[k:]); c.add(items[1:])
            else:
                c.add(m)
        pre, m = qk(0)
        c.add(pre); c.add(m)
        if fill:
            self.stamp("qk0", "attn")
        c.add(fill.get(-1, []))
        for u in range(n + 1):
            pre, m = qk(u + 1) if u + 1 < n else ([], None)
            if u > 0: mf(pv(u - 1, 0))
            if u > 0: c.add(cv(u - 1, 3))
            c.add(pre)
            if u < n: c.add(ex(u, 0))
            if m: mf(m[0])
            if u < n: c.add(ex(u, 1)); c.add(cv(u, 0))
            if m: mf(m[1])
            if u < n: c.add(ex(u, 2)); c.add(cv(u, 1))
            if u > 0: mf(pv(u - 1, 1))
            if u < n: c.add(ex(u, 3)); c.add(cv(u, 2))
            if fill:
                self.stamp(f"u{u}", "attn")
        assert slot[0] == 70

    def same_check(self):
        c = self.c
        self.flag_check(self.vFWD, self.vFWA, span=True)
        c(f"s_add_u32 s{sT+1}, s{sTAG}, s{sXCC}")
        c(f"v_cmp_ne_u32 vcc, s{sT+1}, v{self.vFWD}")
        c(f"s_andn2_b64 vcc, vcc, s[{sHI}:{sHI+1}]")
        c(f"s_cselect_b32 s{sSAME}, 0, 1")
        if self.o.get('nosame'):
            c(f"s_mov_b32 s{sSAME}, 0")

    def attn_prep(self):
        c = self.c
        c(f"s_lshl_b32 s{sT}, s{sU}, 7")
        c(f"s_add_u32 s{sT}, s{sT}, {F2_OFF - FL_OFF}")
        c(f"v_and_b32 v14, 1, v1")
        c(f"v_mul_u32_u24 v14, {F4_OFF - F2_OFF}, v14")
        c(f"v_add_u32 v14, s{sT}, v14")
        c(f"s_lshl_b32 s{sT}, s{sU}, 5")
        c(f"s_add_u32 s{sT}, s{sT}, s{sHEAD}")
        c(f"s_lshl_b32 s{sT}, s{sT}, 7")
        c(f"s_add_u32 s{sT}, s{sT}, {F5_OFF - FL_OFF}")
        c(f"v_writelane_b32 v14, s{sT}, 2")
        c(f"s_lshl_b32 s{sT+1}, s{sTP}, 11")
        c(f"s_add_u32 s{sT+1}, s{sT+1}, {F3_OFF - FL_OFF}")
        c(f"v_and_b32 v15, 15, v1")
        c(f"v_lshl_add_u32 v15, v15, 7, s{sT+1}")
        c(f"v_cndmask_b32 v14, v14, v15, s[{sHI}:{sHI+1}]")
        c(f"s_mul_i32 s{sT+5}, s{sHEAD}, 2560")
        c(f"s_add_u32 s{sT+6}, s{sT+5}, {QK_OFF + 160*512}")
        c(f"s_mul_i32 s{sT+7}, s{sHEAD}, 320")
        c(f"s_add_u32 s{sT+7}, s{sT+7}, {V_OFF}")
        c(f"s_mul_i32 s{sT+4}, s{sU}, 163840")
        c(f"s_add_u32 s{sT+5}, s{sT+5}, s{sT+4}")
        c(f"s_lshl2_add_u32 s{sT+3}, s{sU}, s{sW}")
        c(f"s_mul_i32 s{sT+3}, s{sT+3}, {16*1280}")
        c(f"s_mul_i32 s{sT+2}, s{sNB}, 160")
        c(f"s_add_u32 s{sT+3}, s{sT+3}, s{sT+2}")
        self.attn_kv_prep()

    def attention(self):
        c, o = self.c, self.o
        ld = self.ld
        t = 8
        for r in (0, 1, 4, 5, 8, 9):
            c(f"v_mov_b32 v{self.vZ+r}, 0")
        lab = self.label("w1")
        c(f"s_cmp_lg_u32 s{sW}, 2")
        c(f"s_cbranch_scc1 {lab}")
        c.cond(True)
        self.poll(self.vPOL, sleep=o.get('s1sleep', 0))
        c.cond(False)
        c(f"{lab}:")
        orders = [(3, 4, 2, 1, 0), (2, 3, 1, 4, 0), (1, 2, 3, 0, 4), (0, 1, 2, 3, 4)] if o.get('avar', 1) else [(0, 1, 2, 3, 4)]
        labs = [self.label("av") for _ in orders]
        c(f"s_and_b32 s{sT}, s{sU}, 3")
        for r in range(1, len(orders)):
            c(f"s_cmp_eq_u32 s{sT}, {r}")
            c(f"s_cbranch_scc1 {labs[r]}")
        c(".save av")
        q0 = (list(self.w1q), self.woq)
        for r, order in enumerate(orders):
            c(f"{labs[r]}:")
            c(".restore av")
            self.w1q, self.woq = list(q0[0]), copy_ins(q0[1])
            self.attn_body(order)
            if r + 1 < len(orders):
                c("s_branch Lattn_done")
        c("Lattn_done:")
        self.stamp("attn")
        lo, hi = f2u(2.0 ** -40), f2u(2.0 ** 40)
        O = self.vO
        c(f"v_subrev_u32 v{t}, {hex(lo)}, v{O+12}")
        c(f"v_subrev_u32 v{t+1}, {hex(lo)}, v{O+28}")
        c(f"v_max_u32 v{t}, v{t}, v{t+1}")
        c(f"v_cmp_lt_u32 vcc, {hex(hi-lo)}, v{t}")
        if o.get('forceslow'):
            c("s_mov_b64 vcc, -1")
        c(f"s_cbranch_vccnz Lattn_slow")
        c("Lattn_fin:")
        self.attn_slow()
        self.attn_epilogue('sc1')

    def attn_body(self, order):
        c, o = self.c, self.o
        ld = self.ld
        t = 8
        kv = [self.attn_kv_loads(pi) for pi in order]
        c.add(kv[0][0][0][:-1])
        c("s_barrier")
        self.stamp("s1", "main attn")
        q = self.vQ
        c(f"buffer_load_dwordx4 {vr(q,4)}, v{vL16}, {WSR}, s{sT+5} offen {ld}")
        c(f"buffer_load_dwordx4 {vr(q+4,4)}, v{vL16}, {WSR}, s{sT+5} offen offset:1024 {ld}")
        c.add(kv[0][0][0][-1]); c.add(kv[0][0][1])
        c(f"buffer_load_dwordx4 {vr(self.vQ4,4)}, v{self.vL16m}, {WSR}, s{sT+5} offen offset:2048 {ld}")
        c.add(kv[0][0][2])
        rest = kv[0][1] + kv[1][0] + kv[1][1] + kv[2][0] + kv[2][1] + kv[3][0] + kv[3][1] + kv[4][0] + kv[4][1]
        n0 = o.get('kv0', 7)
        c.add(rest[:n0]); rest = rest[n0:]
        if o.get('x_kv'):
            c("s_waitcnt vmcnt(0)"); self.stamp("kv13")
            c.add(rest); rest = []
            c("s_waitcnt vmcnt(0)"); self.stamp("kvall")
            c.add(self.w1_take(21, 21))
            c("s_waitcnt vmcnt(0)"); self.stamp("w1")
        fl = I(f"buffer_load_dword v{self.vFWD}, v{self.vFWA}, {WSR}, s{sFLB} offen sc1")
        XR = f"s[{sX}:{sX+3}]"
        KV = f"s[{sKV}:{sKV+3}]"
        xl = [[I(f"buffer_load_dwordx4 v{self.vXL+j}, {XR}, s{sT+3} offen offset:{j*1024} lds")] for j in range(3)]
        self.h_x = xl[2][0]
        xl[0] = [I(f"s_add_u32 m0, s{sW1M}, {25600 + 7168}")] + xl[0]
        fill = {}
        n1 = o.get('kv1', 2)
        fill[-1] = rest[:n1]; rest = rest[n1:]

        def place(items, g0, step):
            g = g0
            for it in items:
                assert g < 70
                fill.setdefault(int(g), []).append(it); g += step
            return int(g + 0.999)
        g = place(rest, 0, o.get('kvstep', 13) / 10)
        g = place([I(f"buffer_load_dword v15, v14, {WSR}, s{sFLB} offen sc1")] + xl + self.woq, g, 1)
        place([fl], next(z for z in range(o.get('flg', 8), 70) if z not in fill), 1)
        g = place([self.sub(self.same_check)], max(g, o.get('w1g', 44)), 1)
        w1 = self.w1_take(o.get('w1a', 14))
        place(w1, g, (o.get('w1e', 66) - g) / max(len(w1), 1))
        sb = [I(f"s_mul_i32 s{sT}, s{sU}, 81920"), I(f"s_add_u32 s{sT}, s{sT}, {O_OFF}"),
              I(f"s_lshl_b32 s{sT+1}, s{sHEAD}, 9"), I(f"s_add_u32 s{sT+1}, s{sT+1}, s{sT}"),
              I(f"s_add_u32 s{sT+2}, s{sT+1}, 32768"), I(f"s_lshr_b32 s{sT+4}, s{sHEAD}, 3"),
              I(f"s_and_b32 s{sT+5}, s{sHEAD}, 1"), I(f"s_lshl1_add_u32 s{sT+4}, s{sT+4}, s{sT+5}"),
              I(f"s_bfe_u32 s{sT+5}, s{sHEAD}, 0x20001"), I(f"s_lshl2_add_u32 s{sT+4}, s{sT+4}, s{sT+5}"),
              I(f"s_lshl_b32 s{sT+4}, s{sT+4}, 8"), I(f"s_add_u32 s{sT+4}, s{sT+4}, s{sT}"),
              I(f"s_add_u32 s{sT+4}, s{sT+4}, 65536")]
        place([sb[:4], sb[4:]], 68, 1)
        c(f"v_swap_b32 v{q+2}, v{q+4}")
        c(f"v_swap_b32 v{q+3}, v{q+5}")
        for T in range(2):
            for i in range(2):
                c(f"v_cndmask_b32 v{self.vZ+2+4*T+i}, v{self.vQ4+2*T+i}, 0, s[{sHI}:{sHI+1}]")
        self.attn_loop(fill, True, order)

    def attn_epilogue(self, st):
        c, o = self.c, self.o
        t, O, ob = 8, self.vO, 16
        c(f"v_rcp_f32 v{t}, v{O+12}")
        c(f"v_rcp_f32 v{t+1}, v{O+28}")
        for T in range(2):
            sel = "op_sel_hi:[1,0]" if T == 0 else "op_sel:[0,1] op_sel_hi:[1,1]"
            for i in range(6):
                r = O + 16 * T + 2 * i
                c(f"v_pk_mul_f32 {vr(r,2)}, {vr(r,2)}, {vr(t,2)} {sel}")
            for i in range(6):
                r = O + 16 * T + 2 * i
                d = ob + 4 * T + i if i < 4 else ob + 8 + 2 * T + (i - 4)
                c(f"v_cvt_pk_bf16_f32 v{d}, v{r}, v{r+1}")
            c(f"buffer_store_dwordx4 {vr(ob+4*T,4)}, v{t+4}, {WSR}, s{sT+1+T} offen {st}")
        c(f"s_not_b64 exec, s[{sHI}:{sHI+1}]")
        h = c(f"buffer_store_dwordx4 {vr(ob+8,4)}, v{t+5}, {WSR}, s{sT+4} offen {st}")
        c("s_mov_b64 exec, -1")
        c.add(self.w1_take(o.get('w1b', 0)))
        self.p3_prep()
        c.wait(h)
        self.stamp("odrain")
        self.flag_store_near(sT + 13)

    def attn_slow(self):
        old, self.c = self.c, self.ool
        c = self.c
        t = 16
        c("Lattn_slow:")
        c("s_waitcnt vmcnt(0) lgkmcnt(0)")
        c(f"v_mov_b32 v{t}, 0xff800000")
        c(f"v_mov_b32 v{t+1}, 0xff800000")
        for pi in range(5):
            lab = self.label("sl")
            c(f"s_cmp_ge_u32 s{sU}, {4-pi}")
            c(f"s_cselect_b32 s{sT+12}, 0x3f803f80, 0")
            c(f"v_mov_b32 v{t+2}, s{sT+12}")
            for i in range(4):
                r = self.vK + 12 * pi + 8 + i
                c(f"v_cndmask_b32 v{r}, v{r}, v{t+2}, s[{sHI}:{sHI+1}]")
            c(f"s_cbranch_scc0 {lab}")
            for u, (kt, T) in enumerate(self.UNITS):
                if kt >> 1 != pi:
                    continue
                c.add(self.attn_qk(u, self.vS))
                for i in range(8):
                    c(f"v_max3_f32 v{t+T}, v{self.vS+2*i}, v{self.vS+2*i+1}, v{t+T}")
            c(f"{lab}:")
        for T in range(2):
            c(f"v_mov_b32 v{t+2}, v{t+T}")
            c(f"v_permlane32_swap_b32 v{t+2}, v{t+T}")
            c(f"v_max_f32 v{t+2}, v{t+2}, v{t+T}")
            c(f"v_xor_b32 v{t+2}, 0x80000000, v{t+2}")
            c(f"v_and_b32 v{t+3}, s{sMASK}, v{t+2}")
            c(f"v_sub_f32 v{t+2}, v{t+2}, v{t+3}")
            c(f"v_and_b32 v{t+4}, s{sMASK}, v{t+2}")
            c(f"v_sub_f32 v{t+2}, v{t+2}, v{t+4}")
            c(f"v_lshrrev_b32 v{t+3}, 16, v{t+3}")
            c(f"v_or_b32 v{t+3}, v{t+3}, v{t+4}")
            c(f"v_lshrrev_b32 v{t+2}, 16, v{t+2}")
            z = self.vZ + 2 + 4 * T
            c(f"v_cndmask_b32 v{z}, v{z}, v{t+3}, s[{sHI}:{sHI+1}]")
            c(f"v_cndmask_b32 v{z+1}, v{z+1}, v{t+2}, s[{sHI}:{sHI+1}]")
        self.attn_loop({}, False)
        c("s_branch Lattn_fin")
        self.c = old

    RED = 143360
    vRES = 236
    CORD = (1, 2, 3, 0)
    p3A, p3L, p3AC, p3PB, p3SUM = 64, 128, 144, 184, 204
    p3PR = (184, 64, 84)

    def p3_prep(self):
        c = self.c
        t = 32
        c(f"s_lshl_b32 s{sT+13}, s{sU}, 7")
        c(f"s_lshl_b32 s{sT+3}, s{sW}, 5")
        c(f"s_add_u32 s{sT+3}, s{sT+3}, s{sT+13}")
        c(f"s_add_u32 s{sT+3}, s{sT+3}, {F2_OFF - FL_OFF}")
        c(f"s_lshl2_add_u32 s{sT+13}, s{sHEAD}, s{sT+13}")
        c(f"s_add_u32 s{sT+13}, s{sT+13}, {F2_OFF}")
        c(f"v_and_b32 v{self.vPOL}, 7, v1")
        c(f"v_lshl_add_u32 v{self.vPOL}, v{self.vPOL}, 2, s{sT+3}")
        c(f"s_lshl_b32 s{sT+6}, s{sW}, 12")
        c(f"s_add_u32 s{sT+6}, s{sT+6}, s{sT}")
        for i, cc in enumerate(self.CORD):
            c(f"s_xor_b32 s{sT+5}, s{sW}, {cc}")
            c(f"s_lshl_b32 s{sT+8+i}, s{sT+5}, 14")
            c(f"s_add_u32 s{sT+8+i}, s{sT+8+i}, s{sT+6}")
            c(f"s_mul_i32 s{sT+5}, s{sT+5}, {5120 if i in (0, 3) else 35840}")
            c(f"s_add_u32 s{sT+5}, s{sT+5}, {self.RED if i in (0, 3) else 25600 + (i-1)*5120}")
            c(f"v_add_u32 v{t+2+i}, s{sT+5}, v{vL16}")
        c(f"s_lshl_b32 s{sT+6}, s{sW}, 11")
        c(f"s_add_u32 s{sT+5}, s{sT}, s{sT+6}")
        c(f"s_add_u32 s{sT+5}, s{sT+5}, 65536")
        c(f"s_and_b32 s{sT+7}, s{sW}, 1")
        c(f"s_lshl_b32 s{sT+7}, s{sT+7}, 13")
        c(f"s_xor_b32 s{sT+6}, s{sT+7}, 8192")
        c(f"s_add_u32 s{sT+6}, s{sT+6}, s{sT+5}")
        c(f"s_add_u32 s{sT+7}, s{sT+7}, s{sT+5}")
        c(f"s_lshr_b32 s{sT+5}, s{sW}, 1")
        c(f"s_cselect_b64 s[{sT+14}:{sT+15}], -1, 0")
        c(f"s_lshl_b32 s{sT+5}, s{sT+5}, 10")
        c(f"v_xor_b32 v{t}, s{sT+5}, v{vL16}")
        c(f"v_xor_b32 v{t+1}, 1024, v{t}")
        c(f"s_add_u32 s{sT+5}, s{sW1M}, 25600")
        c(f"v_add_u32 v{t+12}, s{sT+5}, v{vL16}")
        c(f"v_and_b32 v{t+6}, 15, v1")
        c(f"v_mul_u32_u24 v{t+6}, 160, v{t+6}")
        c(f"v_add_u32 v{t+6}, s{sT+5}, v{t+6}")
        c(f"v_lshrrev_b32 v{t+7}, 4, v1")
        c(f"v_lshl_add_u32 v{t+8}, v{t+7}, 4, v{t+6}")
        c(f"v_lshl_add_u32 v{t+7}, v{t+7}, 3, v{t+6}")
        c(f"ds_read_b128 {vr(self.vX,4)}, v{t+8} offset:7168", waits=[self.h_x])
        c(f"ds_read_b128 {vr(self.vX+4,4)}, v{t+8} offset:{7168+64}")
        c(f"ds_read_b64 {vr(self.vX+8,2)}, v{t+7} offset:{7168+128}")
        for j in range(10):
            c(f"v_lshlrev_b32 v{self.p3SUM+2*j}, 16, v{self.vX+j}")
            c(f"v_and_b32 v{self.p3SUM+2*j+1}, s{sMASK}, v{self.vX+j}")

    def phase3(self):
        c, o = self.c, self.o
        ld = o.get('la', 'sc1')
        vA, vL, vAC, vPB, vSUM = self.p3A, self.p3L, self.p3AC, self.p3PB, self.p3SUM
        t = 32
        c(f"s_lshl2_add_u32 s{sT}, s{sU}, s{sW}")
        c(f"s_mul_i32 s{sT+1}, s{sT}, 20480")
        c(f"s_mul_i32 s{sT+2}, s{sNB}, 2560")
        c(f"s_add_u32 s{sT+1}, s{sT+1}, s{sT+2}")
        c(f"s_add_u32 s{sT+1}, s{sT+1}, {H_OFF}")
        c(f"s_lshl3_add_u32 s{sT+2}, s{sT}, s{sNB}")
        c(f"s_lshl_b32 s{sT+2}, s{sT+2}, 7")
        c(f"s_add_u32 s{sT+13}, s{sT+2}, {F3_OFF}")
        c(f"s_add_u32 s{sT+2}, s{sT+2}, {HST_OFF}")
        c(f"v_and_b32 v{t+6}, 15, v1")
        c(f"v_lshrrev_b32 v{t+7}, 5, v1")
        c(f"v_lshl_add_u32 v{t+6}, v{t+7}, 4, v{t+6}")
        c(f"v_lshlrev_b32 v{t+7}, 4, v{t+6}")
        c(f"v_lshlrev_b32 v{t+6}, 2, v{t+6}")
        c(f"s_mov_b32 s{sT+4}, 0xffff")
        c(f"s_mov_b32 s{sT+5}, 0xffff")
        c("s_barrier")
        self.poll(self.vPOL)
        self.stamp("s2", "main p3")
        L = []
        for i in range(4):
            for s in range(4):
                L.append(I(f"buffer_load_dwordx4 {vr(vA+16*i+4*s,4)}, v{vL16}, {WSR}, s{sT+8+i} offen offset:{s*1024} {ld}"))
            if i < 2:
                L.append(I(f"buffer_load_dwordx4 {vr(vL+8*i,4)}, v{t}, {WSR}, s{sT+6+i} offen {ld}"))
                L.append(I(f"buffer_load_dwordx4 {vr(vL+8*i+4,4)}, v{t+1}, {WSR}, s{sT+6+i} offen {ld}"))
        n0 = o.get('p3n0', 8)
        c.add(L[:n0])
        L = L[n0:] + self.w1_take(35)

        def swaps(g):
            q = vL + 8 * g
            return [I(f"s_not_b64 exec, s[{sT+14}:{sT+15}]"), I(f"v_swap_b32 v{q+2}, v{q+4}"), I(f"v_swap_b32 v{q+3}, v{q+5}"),
                    I(f"s_mov_b64 exec, s[{sT+14}:{sT+15}]"), I(f"v_swap_b32 v{q}, v{q+6}"), I(f"v_swap_b32 v{q+1}, v{q+7}"),
                    I("s_mov_b64 exec, -1")]
        left = {0: vL, 1: vL + 12, 2: vL + 4, 3: vL + 8}
        lper = o.get('p3lp', 3)
        for i in range(4):
            ac = vAC + 20 * (i & 1) if i < 3 else vSUM
            M = []
            for s in range(5):
                b = vA + 16 * i + 4 * s if s < 4 else left[i]
                for tl in range(5):
                    d = vr(ac + 4 * tl, 4)
                    M.append(I(f"v_mfma_f32_16x16x32_bf16 {d}, {ar(self.aWO+4*(5*s+tl),4)}, {vr(b,4)}, {0 if s == 0 and i < 3 else d}"))
            F = [[] for _ in range(25)]
            if i < 2:
                F[17] += swaps(i)
            if i > 0:
                pa = vAC + 20 * ((i - 1) & 1)
                for tl in range(5):
                    F[(3 + 2 * tl) if i == 3 else (3 + 4 * tl)] += [I(f"ds_write_b128 v{t+2+i-1}, {vr(pa+4*tl,4)} offset:{tl*1024}")]
            if i == 3:
                F[14] += [I("s_waitcnt lgkmcnt(0)"), I("s_barrier")]
                for r in range(3):
                    for tl in range(5):
                        src = f"v{t+5} offset:{tl*1024}" if r == 0 else f"v{t+12} offset:{(r-1)*5120 + tl*1024}"
                        F[15 + (5 * r + tl) * 2 // 3] += [I(f"ds_read_b128 {vr(self.p3PR[r]+4*tl,4)}, {src}")]
            for k in range(25):
                c.add(M[k])
                if L and (25 * i + k) % lper == 0:
                    c.add(L.pop(0))
                c.add(F[k])
                if k in (0, 8, 12, 24):
                    self.stamp(f"i{i}k{k}", "p3")
        c.add(L)
        self.stamp("p3")
        self.p3_epilogue('sc1')

    def p3_epilogue(self, st):
        c, o = self.c, self.o
        vAC, vPB, vSUM = self.p3AC, self.p3PB, self.p3SUM
        t = 32
        ac = vAC + 20
        rs = self.vRES
        for j in range(10):
            c(f"v_pk_add_f32 {vr(self.p3PR[1]+2*j,2)}, {vr(self.p3PR[0]+2*j,2)}, {vr(self.p3PR[1]+2*j,2)}")
        for P in range(3):
            for src in (self.p3PR[1], self.p3PR[2]):
                for j in range(4 * P, min(4 * P + 4, 10)):
                    c(f"v_pk_add_f32 {vr(vSUM+2*j,2)}, {vr(vSUM+2*j,2)}, {vr(src+2*j,2)}")
            for j in range(4 * P, min(4 * P + 4, 10)):
                c(f"v_cvt_pk_bf16_f32 v{rs+j}, v{vSUM+2*j}, v{vSUM+2*j+1}")
            if P < 2:
                c(f"buffer_store_dwordx4 {vr(rs+4*P,4)}, v{vL16}, {WSR}, s{sT+1} offen offset:{P*1024} {st}")
        for j in range(4):
            c(f"v_mov_b32 v{vPB+j}, v{rs+8+(j&1)}")
        a1, a2 = t + 8, t + 10
        c(f"v_pk_add_f32 {vr(a1,2)}, {vr(vSUM,2)}, {vr(vSUM+2,2)}")
        c(f"v_pk_mul_f32 {vr(a2,2)}, {vr(vSUM,2)}, {vr(vSUM,2)}")
        c(f"v_permlane16_swap_b32 v{vPB}, v{vPB+2}")
        c(f"v_permlane16_swap_b32 v{vPB+1}, v{vPB+3}")
        c(f"s_mov_b64 exec, s[{sT+4}:{sT+5}]")
        c(f"buffer_store_dwordx4 {vr(vPB,4)}, v{t+7}, {WSR}, s{sT+1} offen offset:2048 {st}")
        c("s_mov_b64 exec, -1")
        for j in range(1, 10):
            if j > 1:
                c(f"v_pk_add_f32 {vr(a1,2)}, {vr(a1,2)}, {vr(vSUM+2*j,2)}")
            c(f"v_pk_fma_f32 {vr(a2,2)}, {vr(vSUM+2*j,2)}, {vr(vSUM+2*j,2)}, {vr(a2,2)}")
        c(f"v_add_f32 v{a1}, v{a1}, v{a1+1}")
        c(f"v_add_f32 v{a2}, v{a2}, v{a2+1}")
        c(f"v_permlane32_swap_b32 v{a1}, v{a2}")
        c(f"v_add_f32 v{a1}, v{a1}, v{a2}")
        c(f"v_mov_b32 v{a2}, v{a1}")
        c(f"v_permlane16_swap_b32 v{a1}, v{a2}")
        c(f"v_add_f32 v{a1}, v{a1}, v{a2}")
        c(f"s_mov_b64 exec, s[{sT+4}:{sT+5}]")
        h = c(f"buffer_store_dword v{a1}, v{t+6}, {WSR}, s{sT+2} offen {st}")
        c("s_mov_b64 exec, -1")
        for n in range(10):
            c(f"ds_write_b128 v{t+12}, {ar(self.aW1L+4*n,4)} offset:{n*1024}")
        self.p4_prep()
        c.wait(h)
        self.stamp("hdrain")
        self.flag_store(sT + 13)
        c("s_waitcnt lgkmcnt(0)")
        c("s_barrier")
        self.csum_k = 0
        self.r0 = None
        if o.get('csb', 40) >= 40:
            r0 = [I(f"ds_read_b128 {vr(self.p4W+4*tl,4)}, v{vL16} offset:{tl*1024}") for tl in range(7)]
            self.r0 = list(r0)
            self.csum(40, r0)
        else:
            self.csum(min(o['csb'], 30))

    def csum(self, n, tail=None):
        c = self.c
        vAC, vC, vONE, NB, LA = self.p4AC, self.p4CS, 56, 14, 10
        rd = lambda k: I(f"ds_read_b128 {vr(vAC+4*(k%NB),4)}, v{52+(k>>1)//9} offset:{((k>>1)%9)*7168 + (k&1)*4096}")
        if self.csum_k == 0:
            for k in range(LA):
                c.add(rd(k))
        for k in range(self.csum_k, min(self.csum_k + n, 40)):
            d = vr(vC + 4 * (k & 1), 4)
            c(f"v_mfma_f32_16x16x32_bf16 {d}, {vr(vAC+4*(k%NB),4)}, {vr(vONE,4)}, {0 if k < 2 else d}")
            if k + LA < 40:
                c.add(rd(k + LA))
            elif tail:
                c.add(tail[:1]); del tail[:1]
        self.csum_k = min(self.csum_k + n, 40)

    p4AC, p4W, p4A, p4NR, p4ST, p4CS = 64, 120, 176, 7, 16, 24

    def p4_prep(self):
        c = self.c
        t = 8
        c(f"s_mov_b32 s{sT}, s{sTP}")
        c(f"s_mul_i32 s{sT+6}, s{sT}, 40960")
        c(f"s_add_u32 s{sT+6}, s{sT+6}, {H_OFF}")
        c(f"s_add_u32 s{sT+7}, s{sT+6}, 20480")
        c(f"s_lshl_b32 s{sT+8}, s{sT}, 11")
        c(f"s_add_u32 s{sT+8}, s{sT+8}, {HST_OFF}")
        c(f"v_and_b32 v{t}, 31, v1")
        c(f"v_lshrrev_b32 v{t+1}, 5, v1")
        c(f"v_lshlrev_b32 v{t}, 2, v{t}")
        c(f"v_lshl_add_u32 v{t}, v{t+1}, 10, v{t}")
        c(f"v_add_u32 v{t+2}, {9*7168}, v{vL16}")
        c(f"v_add_u32 v{t+3}, {18*7168}, v{vL16}")
        c(f"v_and_b32 v{t+4}, 48, v1")
        c(f"v_add_u32 v{t+4}, {self.RED}, v{t+4}")
        c(f"s_mul_i32 s{sT+9}, s{sW}, 5120")
        c(f"v_add_u32 v{t+5}, s{sT+9}, v{t+4}")
        c(f"s_lshl_b32 s{sT+9}, s{sT}, 11")
        c(f"s_add_u32 s{sT+9}, s{sT+9}, {F3_OFF - FL_OFF}")
        c(f"v_and_b32 v{self.vPOL}, 15, v1")
        c(f"v_lshl_add_u32 v{self.vPOL}, v{self.vPOL}, 7, s{sT+9}")
        c(f"s_lshl_b32 s{sT+9}, s{sW}, 10")
        c(f"v_add_u32 v52, s{sT+9}, v{vL16}")
        c(f"v_add_u32 v53, {9*7168}, v52")
        c(f"v_add_u32 v54, {18*7168}, v52")
        for j in range(4):
            c(f"v_mov_b32 v{56+j}, 0x3f803f80")

    def phase4(self):
        c, o = self.c, self.o
        ld = o.get('la', 'sc1')
        vAC, vW, vA, NR, vST, vCS = self.p4AC, self.p4W, self.p4A, self.p4NR, self.p4ST, self.p4CS
        t = 8
        wa = [vL16, t + 2, t + 3]
        rdw = lambda s: [I(f"ds_read_b128 {vr(vW+28*(s&1)+4*tl,4)}, v{wa[s//9]} offset:{(s%9)*7168 + tl*1024}") for tl in range(7)]
        vC = vCS
        self.poll(self.vPOL)
        self.stamp("s3", "main p4")

        def lda(s):
            g = []
            for a in range(2):
                pre = [I(f"s_add_u32 s{sT+6+a}, s{sT+6+a}, 4096")] if s and s % 4 == 0 else []
                g.append(pre + [I(f"buffer_load_dwordx4 {vr(vA+8*(s%NR)+4*a,4)}, v{vL16}, {WSR}, s{sT+6+a} offen offset:{(s&3)*1024} {ld}")])
            return g
        Q = [x for s in range(20) for x in lda(s)]
        n0 = o.get('p4n0', 8)
        c.add(Q[:n0]); qi = n0
        r0 = rdw(0) if self.r0 is None else []
        Rp = list(r0) if self.r0 is None else self.r0
        self.csum(40, r0)
        c.add(r0)
        self.stamp("csum", "p4")
        extra = [[I(f"buffer_load_dword v{vST+j}, v{t}, {WSR}, s{sT+8} offen offset:{j*128} {ld}")] for j in range(8)]
        misc = {k: [] for k in range(20)}
        wr = [I(f"ds_write_b128 v{t+5}, {vr(vC,4)}"), I(f"ds_write_b128 v{t+5}, {vr(vC+4,4)} offset:64")]
        misc[0] = wr
        sb = o.get('p4b', 8)
        misc[sb] = [[W(wr[1]), I("s_barrier")]]
        for tl in range(7):
            misc[sb + 1 + tl // 3].append(I(f"ds_read_b128 {vr(vCS+4*tl,4)}, v{t+4} offset:{(tl&3)*5120 + (tl>>2)*64}"))
        sw = o.get('p4w', 4)
        credit = 0
        fin = self.sub(self.p4_stats)
        V = {k: [] for k in range(20)}
        for j, x in enumerate(fin):
            V[11 + j // 10].append(x)
        assert len(fin) <= 40
        for s in range(20):
            M = []
            for tl in range(7):
                for a in range(2):
                    d = vr(vAC + 28 * a + 4 * tl, 4)
                    M.append(I(f"v_mfma_f32_16x16x32_bf16 {d}, {vr(vW+28*(s&1)+4*tl,4)}, {vr(vA+8*(s%NR)+4*a,4)}, {0 if s == 0 else d}"))
            Rn = rdw(s + 1) if s < 19 else [[]] * 7
            na = min(min(2 * (s + NR), 40) - qi, o.get('p4r', 3))
            F = Q[qi:qi + na]; qi += na
            assert qi >= min(2 * (s + 2), 40)
            ne = 2 if s < sw else 0
            F += extra[:ne]; extra = extra[ne:]
            if s >= sw:
                assert not extra
                credit += o.get('p4x', 20) if na else o.get('p4y', 30)
                F += self.w2_take(credit // 10); credit %= 10
            F += misc[s]
            assert len(F) <= 7, (s, len(F))
            if 15 <= s < 19:
                for k in range(14):
                    tl, a = divmod((k + 7) % 14, 2)
                    V[s].append(I(f"v_fmac_f32 v{vAC + 28*a + 4*tl + s - 15}, v{vCS + 4*tl + s - 15}, v{vST + 2*a}"))
            M[0].waits = [Rp[3]]; M[8].waits = [Rp[6]]
            Rp = Rn
            for k in range(14):
                f = flat(F[k // 2]) if k % 2 and k // 2 < len(F) else []
                j = next((j for j, i in enumerate(f) if i.kind == 'vmem'), 0)
                c.add(f[:j]); c.add(M[k]); c.add(f[j:]); c.add(Rn[k // 2] if k % 2 == 0 else [])
                c.add(V[s][k:k + 1])
            if s < 8 or s % 2:
                self.stamp(f"k{s}", "p4")
        self.stamp("p4")
        self.p4_epilogue('sc1')

    def p4_stats(self):
        c = self.c
        vST, t = self.p4ST, 8
        for j in range(1, 8):
            c(f"v_add_f32 v{vST}, v{vST}, v{vST+j}")
        c(f"v_mov_b32 v{vST+1}, v{vST}")
        c(f"v_permlane16_swap_b32 v{vST}, v{vST+1}")
        c(f"v_mul_f32 v{vST}, {hex(f2u(-1.0/640))}, v{vST}")
        c(f"v_mul_f32 v{vST+1}, {hex(f2u(1.0/640))}, v{vST+1}")
        c(f"v_fma_f32 v{vST+1}, -v{vST}, v{vST}, v{vST+1}")
        c(f"v_max_f32 v{vST+1}, 0, v{vST+1}")
        c(f"v_add_f32 v{vST+1}, {hex(f2u(1e-5))}, v{vST+1}")
        c(f"v_rsq_f32 v{vST+1}, v{vST+1}")
        nl = hex(f2u(-1.4426950408889634))
        c(f"v_mov_b32 v{vST+4}, {nl}")
        c(f"v_mov_b32 v{vST+5}, {nl}")
        c(f"v_mul_f32 v{vST+1}, v{vST+4}, v{vST+1}")
        c(f"v_mov_b32 v{vST+2}, v{vST}")
        c(f"v_mov_b32 v{vST+3}, v{vST+1}")
        c(f"v_permlane32_swap_b32 v{vST}, v{vST+2}")
        c(f"v_permlane32_swap_b32 v{vST+1}, v{vST+3}")
        c(f"s_mul_i32 s{sT+1}, s{sT}, {2*57344}")
        c(f"s_mul_i32 s{sT+2}, s{sFB}, 3584")
        c(f"s_add_u32 s{sT+1}, s{sT+1}, s{sT+2}")
        c(f"s_add_u32 s{sT+1}, s{sT+1}, {H1_OFF}")
        c(f"s_add_u32 s{sT+2}, s{sT+1}, 57344")
        c(f"v_bfe_u32 v{t+6}, v1, 4, 1")
        c(f"v_mul_u32_u24 v{t+6}, 57344, v{t+6}")
        c(f"v_and_b32 v{t+7}, 15, v1")
        c(f"v_lshl_add_u32 v{t+6}, v{t+7}, 4, v{t+6}")
        c(f"v_lshl_add_u32 v{t+6}, v{t+1}, 8, v{t+6}")
        c(f"s_lshl_b32 s{sT+13}, s{sU}, 7")
        c(f"s_lshl2_add_u32 s{sT+13}, s{sHEAD}, s{sT+13}")
        c(f"s_add_u32 s{sT+13}, s{sT+13}, {F4_OFF}")

    def p4_epilogue(self, st):
        c, o = self.c, self.o
        vAC, vW, vST, vCS = self.p4AC, self.p4W, self.p4ST, self.p4CS
        t = 8
        vE, vOUT = 52, vW
        groups = [[(a, 2 * P), (a, 2 * P + 1)] for P in range(3) for a in range(2)] + [[(0, 6), (1, 6)]]
        for gi, g in enumerate(groups):
            if gi < 5:
                c.add(self.w2_take(o.get('p4e', 0)))
            pairs = [(vAC + 28 * a + 4 * tl + 2 * q, vCS + 4 * tl + 2 * q, vST + 2 * a) for a, tl in g for q in range(2)]
            for r, cs, sv in pairs:
                c(f"v_pk_mul_f32 {vr(r,2)}, {vr(r,2)}, {vr(sv,2)} op_sel:[0,1] op_sel_hi:[1,1]")
            for k, (r, cs, sv) in enumerate(pairs):
                c(f"v_exp_f32 v{vE+2*k}, v{r}")
                c(f"v_exp_f32 v{vE+2*k+1}, v{r+1}")
            for k in range(4):
                c(f"v_pk_fma_f32 {vr(vE+2*k,2)}, {vr(vE+2*k,2)}, {vr(vST+4,2)}, {vr(vST+4,2)}")
            for k in range(8):
                c(f"v_rcp_f32 v{vE+k}, v{vE+k}")
            for k, (r, cs, sv) in enumerate(pairs):
                c(f"v_pk_mul_f32 {vr(r,2)}, {vr(r,2)}, {vr(vE+2*k,2)}")
            out = vOUT + 4 * gi
            for k, (r, cs, sv) in enumerate(pairs):
                c(f"v_cvt_pk_bf16_f32 v{out+k}, v{r}, v{r+1}")
            if gi < 6:
                c(f"buffer_store_dwordx4 {vr(out,4)}, v{vL16}, {WSR}, s{sT+1+(gi&1)} offen offset:{(gi>>1)*1024} {st}")
            else:
                c(f"v_permlane16_swap_b32 v{out}, v{out+2}")
                c(f"v_permlane16_swap_b32 v{out+1}, v{out+3}")
                h = c(f"buffer_store_dwordx4 {vr(out,4)}, v{t+6}, {WSR}, s{sT+1} offen offset:3072 {st}")
        self.stamp("p4epi")
        c.add(self.w2_take(o.get('p4d', 0)))
        self.p5_prep()
        self.p5_prep2()
        c.wait(h)
        self.stamp("h1drain")
        self.flag_store_near(sT + 13)
        c.add(self.w2_take(70))

    p5A, p5NR, p5AC, p5PB, p5SUM, p5S0 = 64, 20, 144, 208, 32, 184
    sA5 = 64

    def p5_prep(self):
        c = self.c
        c(f"s_mul_i32 s{sT+5}, s{sK8}, 7168")
        c(f"s_add_u32 s{sT+5}, s{sT+5}, {H1_OFF}")
        c(f"s_lshl2_add_u32 s{sT+7}, s{sU}, s{sW}")
        for i in range(8):
            c(f"s_xor_b32 s{sT+6}, s{sT+7}, {self.CORD[i & 3] + (16 if i < 4 else 0)}")
            c(f"s_mul_i32 s{self.sA5+i}, s{sT+6}, 57344")
            c(f"s_add_u32 s{self.sA5+i}, s{self.sA5+i}, s{sT+5}")
        c(f"s_lshl2_add_u32 s{sT+3}, s{sU}, s{sW}")
        c(f"s_lshl_b32 s{sT+3}, s{sT+3}, 5")
        c(f"s_add_u32 s{sT+3}, s{sT+3}, {F4_OFF - FL_OFF}")
        c(f"v_and_b32 v{self.vPOL}, 7, v1")
        c(f"v_lshl_add_u32 v{self.vPOL}, v{self.vPOL}, 2, s{sT+3}")

    def p5_prep2(self):
        c = self.c
        t, rs, vSUM = 16, self.vRES, self.p5SUM
        for i, cc in enumerate(self.CORD):
            c(f"s_xor_b32 s{sT+6}, s{sW}, {cc}")
            c(f"s_mul_i32 s{sT+6}, s{sT+6}, 30720")
            if 0 < i < 3:
                c(f"s_add_u32 s{sT+6}, s{sT+6}, {i*5120}")
            c(f"v_add_u32 v{t+6+i}, s{sT+6}, v{vL16}")
        for j in range(10):
            c(f"v_lshlrev_b32 v{vSUM+2*j}, 16, v{rs+j}")
            c(f"v_and_b32 v{vSUM+2*j+1}, s{sMASK}, v{rs+j}")
        c(f"s_lshl_b32 s{sT+6}, s{sU}, 5")
        c(f"s_add_u32 s{sT+6}, s{sT+6}, s{sHEAD}")
        c(f"s_xor_b32 s{sT+7}, s{sT+6}, 128")
        c(f"s_mul_i32 s{sT+4}, s{sT+6}, 2560")
        c(f"s_add_u32 s{sT+4}, s{sT+4}, {PX_OFF}")
        c(f"s_mul_i32 s{sT+5}, s{sT+7}, 2560")
        c(f"s_add_u32 s{sT+5}, s{sT+5}, {PX_OFF}")
        c(f"s_lshl_b32 s72, s{sT+7}, 7")
        c(f"s_add_u32 s72, s72, {F5_OFF}")
        c(f"s_lshl_b32 s{sT+6}, s{sT+6}, 7")
        c(f"s_add_u32 s{sT+6}, s{sT+6}, {F5_OFF - FL_OFF}")
        c(f"v_mov_b32 v{self.vFWA}, s{sT+6}")
        c(f"v_lshlrev_b32 v{t+12}, 3, v1")
        c(f"s_lshl_b32 s{sT+6}, s{sW}, 12")
        c(f"s_add_u32 s{sT+6}, s{sT+6}, 122880")
        c(f"v_and_b32 v{t}, 15, v1")
        c(f"v_mul_u32_u24 v{t}, 160, v{t}")
        c(f"v_add_u32 v{t}, s{sT+6}, v{t}")
        c(f"v_lshrrev_b32 v{t+1}, 4, v1")
        c(f"v_lshl_add_u32 v{t+2}, v{t+1}, 3, v{t}")
        c(f"v_lshl_add_u32 v{t+1}, v{t+1}, 4, v{t}")
        c(f"v_add_u32 v{t}, s{sT+6}, v{vL16}")
        for j in range(3):
            c(f"v_add_u32 v{t+10}, {64*j}, v1")
            c(f"v_mul_u32_u24 v{t+11}, 6554, v{t+10}")
            c(f"v_lshrrev_b32 v{t+11}, 16, v{t+11}")
            c(f"v_mul_u32_u24 v{t+11}, {1280-160}, v{t+11}")
            c(f"v_lshl_add_u32 v{t+3+j}, v{t+10}, 4, v{t+11}")
        c(f"s_lshl2_add_u32 s{sT}, s{sU}, s{sW}")
        c(f"s_mul_i32 s{sT}, s{sT}, {16*1280}")
        c(f"s_mul_i32 s{sT+1}, s{sNB}, 160")
        c(f"s_add_u32 s{sT}, s{sT}, s{sT+1}")

    def phase5(self):
        c, o = self.c, self.o
        ld = o.get('la', 'sc1')
        vA, NR, vAC, vPB, vSUM, vS0 = self.p5A, self.p5NR, self.p5AC, self.p5PB, self.p5SUM, self.p5S0
        t = 16
        rs = self.vRES
        c("s_barrier")
        self.poll(self.vPOL)
        self.stamp("s4", "main p5")

        def lda(k):
            i, s = divmod(k, 7)
            pre = [I(f"s_add_u32 s{self.sA5+i}, s{self.sA5+i}, 4096")] if s == 4 else []
            return pre + [I(f"buffer_load_dwordx4 {vr(vA+4*(k%NR),4)}, v{vL16}, {WSR}, s{self.sA5+i} offen offset:{(s&3)*1024} {ld}")]
        LA = o.get('p5la', 12)
        qi = o.get('p5n0', 8)
        for k in range(qi):
            c.add(lda(k))
        F = [[] for _ in range(280)]
        add = lambda d, x, n=20: [I(f"v_add_f32 v{d+j}, v{d+j}, v{x+j}") for j in range(n)]
        vXP = 52

        def put(items, g, per=1, step=1):
            items = list(items)
            while items:
                n = per
                if g % 5 == 0 and g // 5 + LA < 56 or g % 5 == 4:
                    n = per - 1
                F[g] += items[:n]; items = items[n:]; g += step
            return g
        for i in range(1, 8):
            half, r = divmod(i - 1, 4)
            g = 35 * i
            pa = vAC + 20 * ((i - 1) & 1)
            if r == 3:
                A = add(vS0, vPB)
                it = []
                for P in range(3):
                    js = range(4 * P, min(4 * P + 4, 10))
                    it += [x for j in js for x in A[2 * j:2 * j + 2]]
                    it += [I(f"v_cvt_pk_bf16_f32 v{vXP+j}, v{vS0+2*j}, v{vS0+2*j+1}") for j in js]
                    if P < 2:
                        hs = I(f"buffer_store_dwordx4 {vr(vXP+4*P,4)}, v{vL16}, {WSR}, s{sT+5} offen offset:{P*1024} sc1")
                    else:
                        hs = I(f"buffer_store_dwordx2 {vr(vXP+8,2)}, v{t+12}, {WSR}, s{sT+5} offen offset:2048 sc1")
                    it += [hs]
                put(it, g + 3, 2)
                fs = self.sub(self.flag_store, 72)
                fs[0].waits = [hs]
                F[g + o.get('p5f', 52)] += fs
                continue
            last = r == 1
            wr = [I(f"ds_write_b128 v{t+6+r}, {vr(pa+4*tl,4)} offset:{half*15360 + tl*1024}") for tl in range(5)]
            for tl, g1 in enumerate((3, 6, 8, 11, 13) if last else (3, 7, 11, 13, 17)):
                F[g + g1].insert(0, wr[tl])
            gb = g + (17 if last else 22)
            F[gb] += [W(wr[-1]), I("s_barrier")]
            dst = vS0 if i == 1 else vPB
            rd = [I(f"ds_read_b128 {vr(dst+4*tl,4)}, v{t+9} offset:{half*15360 + r*5120 + tl*1024}") for tl in range(5)]
            gn = put(rd, gb + 1, 2 if last else 1)
            if i == 1 or r == 2:
                continue
            A = add(vSUM if half else vS0, vPB)
            A[0].waits = [rd[-1] if not last else rd[2]]
            gn = put(A, gn + (4 if last else 5), 3 if last else 2)
            assert gn <= g + (34 if last else 52), (i, gn - g)
        gl = o.get('p5g', 222)
        F[gl].insert(0, I(f"buffer_load_dword v{self.vFWD}, v{self.vFWA}, {WSR}, s{sFLB} offen sc1"))
        gc = o.get('p5c', 247)
        F[gc] += self.sub(self.flag_check, self.vFWD, self.vFWA, False, 0)
        F[gc + 1].insert(0, I(f"buffer_load_dwordx4 {vr(vXP,4)}, v{vL16}, {WSR}, s{sT+4} offen sc1"))
        F[gc + 2].insert(0, I(f"buffer_load_dwordx4 {vr(vXP+4,4)}, v{vL16}, {WSR}, s{sT+4} offen offset:1024 sc1"))
        F[gc + 3].insert(0, I(f"buffer_load_dwordx2 {vr(vXP+8,2)}, v{t+12}, {WSR}, s{sT+4} offen offset:2048 sc1"))
        for k in range(56):
            i, s = divmod(k, 7)
            ac = {3: vS0, 7: vSUM}.get(i, vAC + 20 * (i & 1))
            for tl in range(5):
                d = vr(ac + 4 * tl, 4)
                L = []
                if tl in (0, 2) and qi < min(k + LA + 1, 56):
                    L = lda(qi); qi += 1
                c.add(L[:-1])
                c(f"v_mfma_f32_16x16x32_bf16 {d}, {self.w2reg(5*s+tl)}, {vr(vA+4*(k%NR),4)}, {0 if s == 0 and i % 4 != 3 else d}")
                c.add(L[-1:])
                c.add(F[5 * k + tl])
            if s in (0, 6):
                self.stamp(f"i{i}s{s}", "p5")
        self.stamp("p5")
        for j in range(10):
            c(f"v_pk_add_f32 {vr(vSUM+2*j,2)}, {vr(vSUM+2*j,2)}, {vr(vPB+2*j,2)}")
        for P in range(3):
            for j in range(4 * P, min(4 * P + 4, 10)):
                c(f"v_lshlrev_b32 v{vS0+2*j}, 16, v{vXP+j}")
                c(f"v_and_b32 v{vS0+2*j+1}, s{sMASK}, v{vXP+j}")
            for j in range(4 * P, min(4 * P + 4, 10)):
                c(f"v_pk_add_f32 {vr(vSUM+2*j,2)}, {vr(vSUM+2*j,2)}, {vr(vS0+2*j,2)}")
            for j in range(4 * P, min(4 * P + 4, 10)):
                c(f"v_cvt_pk_bf16_f32 v{rs+j}, v{vSUM+2*j}, v{vSUM+2*j+1}")
            if P < 2:
                c(f"ds_write_b128 v{t+1}, {vr(rs+4*P,4)} offset:{64*P}")
            else:
                c(f"ds_write_b64 v{t+2}, {vr(rs+8,2)} offset:128")
        for j in range(3):
            c(f"ds_read_b128 {vr(vPB+4*j,4)}, v{t} offset:{j*1024}")
        for j in range(3):
            if j == 2:
                c(f"s_not_b64 exec, s[{sHI}:{sHI+1}]")
            c(f"buffer_store_dwordx4 {vr(vPB+4*j,4)}, v{t+3+j}, s[{sOUT}:{sOUT+3}], s{sT} offen {o.get('ost', '').replace('+', ' ')}")
        c("s_mov_b64 exec, -1")

    def build(self):
        c = self.c
        self.prologue()
        self.phase1()
        self.attention()
        self.phase3()
        self.phase4()
        self.phase5()
        if self.o.get('stamps'):
            c("s_waitcnt vmcnt(0) lgkmcnt(0)")
            self.stamp("end")
            self.dump_stamps()
        if self.o.get('probe'):
            c("s_waitcnt vmcnt(0) lgkmcnt(0)")
            self.stamp("end")
            if 'pmask' in self.o:
                c(f"s_and_b32 s{sT}, s2, {self.o['pmask']}")
                c(f"s_cmp_lg_u32 s{sT}, {self.o['pval']}")
                c("s_cbranch_scc1 Lend")
            if self.o.get('pmin'):
                c(f"s_load_dwordx2 s[{sDBG}:{sDBG+1}], s[0:1], 56")
                c(f"s_not_b32 s{sT}, s{sST}")
                c(f"v_mov_b32 v2, s{sT}")
                c("v_mov_b32 v3, 0")
                c("s_mov_b64 exec, 1")
                c(f"global_atomic_umax v3, v2, s[{sDBG}:{sDBG+1}] sc1")
                c(f"s_sub_u32 s{sST}, s{sST}, 1000")
                c("Lprobe0:")
                c(f"s_memrealtime s[{sTM}:{sTM+1}]")
                c("s_waitcnt lgkmcnt(0)")
                c(f"s_sub_u32 s{sT}, s{sTM}, s{sST}")
                c(f"s_cmp_lt_i32 s{sT}, 0")
                c("s_cbranch_scc1 Lprobe0")
                c(f"global_load_dword v2, v3, s[{sDBG}:{sDBG+1}] sc1")
                c(f"v_readfirstlane_b32 s{sT}, v2")
                c(f"s_not_b32 s{sST}, s{sT}")
                c(f"s_add_u32 s{sST}, s{sST}, 1000")
            c("Lprobe:")
            c(f"s_memrealtime s[{sTM}:{sTM+1}]")
            c("s_waitcnt lgkmcnt(0)")
            c(f"s_sub_u32 s{sT}, s{sTM}, s{sST}")
            c(f"s_cmp_lt_i32 s{sT}, 0")
            c("s_cbranch_scc1 Lprobe")
        c("s_endpgm")
        c.add(self.ool.ins)
        c("Lend:")
        body = finalize(c)
        return f"""; Fused pre-LN sliding-window attention block + SiLU FFN (generated by work/gen.py)
; @launch grid=(256,1,1) block=(256,1,1) lds=163840
.amdgcn_target "amdgcn-amd-amdhsa--gfx950"
.text
.globl {NAME}_kernel
.p2align 8
.type {NAME}_kernel,@function
{NAME}_kernel:
{body}
  s_endpgm
Lcode_end:
.section .rodata,"a"
.p2align 6
.amdhsa_kernel {NAME}_kernel
  .amdhsa_next_free_vgpr 512
  .amdhsa_next_free_sgpr 102
  .amdhsa_accum_offset 256
  .amdhsa_group_segment_fixed_size 0
  .amdhsa_kernarg_size 72
  .amdhsa_user_sgpr_count 2
  .amdhsa_user_sgpr_kernarg_segment_ptr 1
  .amdhsa_system_sgpr_workgroup_id_x 1
.end_amdhsa_kernel
"""


def generate(**opt):
    g = Gen(opt)
    return g.build(), g


if __name__ == "__main__":
    opt = {}
    out = None
    for a in sys.argv[1:]:
        if '=' in a:
            k, v = a.split('=', 1)
            opt[k] = int(v) if v.lstrip('-').isdigit() else v
        else:
            out = a
    asm, g = generate(**opt)
    open(out or f"cdna_kernels/{NAME}.s", "w").write(asm)
    print(len(asm.splitlines()), "lines")
```

```python
import sys, struct
from dsl import *

NAME = "sequential_preLN__sliding_block__dense_activation_silu__prompt"

QK_OFF = 0
V_OFF = QK_OFF + 32 * 163840
O_OFF = V_OFF + 64 * 40960
H_OFF = O_OFF + 32 * 81920
HST_OFF = H_OFF + 128 * 20480
H1_OFF = HST_OFF + 128 * 1024
WO_OFF = H1_OFF + 128 * 57344
W1_OFF = WO_OFF + 8 * 102400
W2_OFF = W1_OFF + 16 * 143360
PX_OFF = W2_OFF + 8 * 286720
RST_OFF = PX_OFF + 1024 * 2560
CST_OFF = RST_OFF + 16 * 20480
FL_OFF = CST_OFF + 16 * 10240
F2_OFF = FL_OFF + 4096
F4_OFF = FL_OFF + 4 * 4096
FW1_OFF = FL_OFF + 16 * 4096
FX_OFF = FW1_OFF + 65536
FW2_OFF = FX_OFF + 32768
F1_OFF = FW2_OFF + 65536
FWO_OFF = F1_OFF + 32768
F3_OFF = FL_OFF + 72 * 4096
F5_OFF = F3_OFF + 131072
EP_OFF = FL_OFF + 8 * 4096
ST_OFF = FL_OFF + 136 * 4096
WS_SIZE = ST_OFF + 256 * 4 * 128

TAGC = 0x9E3779B8
SPIN_MAX = 200000
OOB = 0x7fff0000


def f2u(x):
    return struct.unpack('<I', struct.pack('<f', x))[0]


sX, sWQ, sWS, sKV, sOUT, sRP = 4, 8, 12, 16, 20, 24
sDBG, sWO, sW1, sW2 = 28, 30, 32, 34
sTP = 3
sW, sTAG, sRB1, sCT, sU, sNB, sRB, sFB = 36, 37, 38, 39, 40, 41, 42, 43
sHI = 44
sMASK = 46
sHEAD = 47
sT = 48
sST = 101
sK8, sSAME, sXCC = 85, 86, 87
sVM = 88
sWOO, sW1O, sW2B, sW2O = 90, 91, 92, 93
sFLB = 94
sW1M = 95
sTM = 96
sRPD, sRPF, sRPT = 98, 99, 100
WSR = f"s[{sWS}:{sWS+3}]"

vL16 = 2
vFLG = 254


class Gen:
    def __init__(self, opt):
        self.o = opt
        self.c = Code()
        self.ool = Code()
        self.stamp_names = []
        self.lab = 0
        self.ld = opt.get('ld', 'sc1')
        self.PB = opt.get('pb', 4)

    def label(self, base):
        self.lab += 1
        return f"L{base}_{self.lab}"

    def sub(self, fn, *a):
        k = Code()
        old, self.c = self.c, k
        fn(*a)
        self.c = old
        return k.ins

    def stamp(self, name, group='main'):
        if self.o.get('probe') and name in ('t0', self.o['probe']):
            self.c(f"s_memrealtime s[{sTM}:{sTM+1}]")
            self.c("s_waitcnt lgkmcnt(0)")
            self.c(f"s_add_u32 s{sST}, s{sTM}, 6000")
        if not self.o.get('stamps'):
            return
        if self.o.get('zoom', 'main') not in group.split() and name != 't0':
            return
        if name in self.stamp_names:
            idx = self.stamp_names.index(name)
        else:
            idx = len(self.stamp_names)
            self.stamp_names.append(name)
        assert idx < 32, name
        c = self.c
        c(f"{'s_memtime' if self.o.get('cyc') else 's_memrealtime'} s[{sTM}:{sTM+1}]")
        c("s_waitcnt lgkmcnt(0)")
        c(f"v_writelane_b32 v255, s{sTM}, {idx}")

    def dump_stamps(self):
        if not self.o.get('stamps'):
            return
        c = self.c
        c(f"s_lshl_b32 s{sT}, s2, 2")
        c(f"s_add_u32 s{sT}, s{sT}, s{sW}")
        c(f"s_lshl_b32 s{sT}, s{sT}, 7")
        c(f"s_add_u32 s{sT}, s{sT}, {ST_OFF}")
        c("v_lshlrev_b32 v3, 2, v1")
        c(f"s_not_b64 exec, s[{sHI}:{sHI+1}]")
        c(f"buffer_store_dword v255, v3, {WSR}, s{sT} offen")
        c("s_mov_b64 exec, -1")

    def prologue(self):
        c, o = self.c, self.o
        if o.get('stamps'):
            c("v_mov_b32 v255, 0")
        self.stamp("t0")
        c("s_cmp_ge_u32 s2, 256")
        c("s_cbranch_scc1 Lend")
        if 'x_lat' in o:
            c(f"s_load_dwordx2 s[{sKV}:{sKV+1}], s[0:1], {o['x_lat']*8}")
            c(f"s_mov_b32 s{sKV+2}, 800000")
            c(f"s_mov_b32 s{sKV+3}, 0x20000")
            c("s_cmp_lg_u32 s2, 0")
            c("s_cbranch_scc1 Llat_wait")
            c("v_lshrrev_b32 v2, 6, v0")
            c("v_lshlrev_b32 v2, 10, v2")
            if not o.get('x_first'):
                c(f"buffer_load_dword v3, v2, s[{sKV}:{sKV+3}], 0 offen")
                c("s_waitcnt vmcnt(0)")
            c("s_waitcnt lgkmcnt(0)")
            c(f"s_memrealtime s[{sT}:{sT+1}]")
            for j in range(1 if o.get('x_first') else 16):
                c(f"v_add_u32 v2, 37120, v2")
                c(f"buffer_load_dword v3, v2, s[{sKV}:{sKV+3}], 0 offen")
                c("s_waitcnt vmcnt(0)")
            c(f"s_memrealtime s[{sT+2}:{sT+3}]")
            c("s_waitcnt lgkmcnt(0)")
            c(f"s_sub_u32 s{sT}, s{sT+2}, s{sT}")
            c(f"s_lshl2_add_u32 s{sST}, s{sT}, s{sST}")
            c("s_branch Llat_done")
            c("Llat_wait:")
            for _ in range(16):
                c("s_sleep 32")
            c("Llat_done:")
            c("s_waitcnt lgkmcnt(0)")
        for _ in range(o.get('x_delay', 0)):
            c("s_sleep 32")
        c(f"s_load_dwordx2 s[{sX}:{sX+1}], s[0:1], 0")
        c(f"s_load_dwordx2 s[{sWQ}:{sWQ+1}], s[0:1], 8")
        c(f"s_load_dwordx2 s[{sWS}:{sWS+1}], s[0:1], 64")
        c(f"s_load_dwordx2 s[{sWO}:{sWO+1}], s[0:1], 16")
        c(f"s_load_dwordx4 s[{sW1}:{sW1+3}], s[0:1], 32")
        c(f"s_load_dwordx2 s[{sOUT}:{sOUT+1}], s[0:1], 48")
        c(f"s_getpc_b64 s[{sT}:{sT+1}]")
        c(f"s_lshr_b32 s{sT+3}, s2, 3")
        c(f"s_lshl_b32 s{sT+2}, s{sT+3}, 11")
        c(f"v_lshl_add_u32 v2, v0, 7, s{sT+2}")
        c("v_min_u32 v2, Lcode_end-Lpc0-256, v2")
        c("v_cmp_gt_u32 vcc, 16, v0")
        c(f"s_and_saveexec_b64 s[{sT+4}:{sT+5}], vcc")
        c("s_cbranch_execz Lpc0")
        c.cond(True)
        c(f"global_load_dword v253, v2, s[{sT}:{sT+1}]")
        c.ins[-1].wr = []
        c.cond(False)
        c("Lpc0:")
        c("s_mov_b64 exec, -1")
        c("v_lshrrev_b32 v2, 6, v0")
        c("v_and_b32 v1, 63, v0")
        c(f"v_readfirstlane_b32 s{sW}, v2")
        c(f"s_and_b32 s{sT}, s2, 7")
        if o.get('p1map', 'C') == 'C':
            c(f"s_lshr_b32 s{sRB1}, s{sT}, 1")
            c(f"s_and_b32 s{sT+2}, s{sT+3}, 3")
            c(f"s_lshl2_add_u32 s{sRB1}, s{sRB1}, s{sT+2}")
            c(f"s_lshr_b32 s{sT+2}, s{sT+2}, 1")
            c(f"s_lshr_b32 s{sCT}, s{sT+3}, 2")
            c(f"s_cmp_eq_u32 s{sCT}, 7")
            c(f"s_cselect_b32 s{sT+2}, s{sT+2}, 0")
            c(f"s_xor_b32 s{sT+2}, s{sT+2}, s{sT}")
            c(f"s_and_b32 s{sT+2}, s{sT+2}, 1")
            c(f"s_lshl3_add_u32 s{sCT}, s{sT+2}, s{sCT}")
        elif o.get('p1map') == 'A':
            c(f"s_lshr_b32 s{sRB1}, s{sT+3}, 4")
            c(f"s_lshl1_add_u32 s{sRB1}, s{sT}, s{sRB1}")
            c(f"s_and_b32 s{sCT}, s{sT+3}, 15")
        else:
            c(f"s_and_b32 s{sRB1}, s{sT}, 1")
            c(f"s_and_b32 s{sT+2}, s{sT+3}, 7")
            c(f"s_lshl3_add_u32 s{sRB1}, s{sRB1}, s{sT+2}")
            c(f"s_lshr_b32 s{sCT}, s{sT}, 1")
            c(f"s_lshr_b32 s{sT+2}, s{sT+3}, 3")
            c(f"s_lshl2_add_u32 s{sCT}, s{sCT}, s{sT+2}")
        for r, size in ((sX, 2048 * 1280), (sWQ, 640 * 3840)):
            c(f"s_mov_b32 s{r+2}, {size}")
            c(f"s_mov_b32 s{r+3}, 0x20000")

    def base_setup(self):
        c = self.c
        c(f"s_add_u32 s{sTM}, s{sWS}, {EP_OFF}")
        c(f"s_addc_u32 s{sTM+1}, s{sWS+1}, 0")
        c(f"s_load_dword s{sTAG}, s[{sTM}:{sTM+1}], 0")
        for r, size in ((sWS, WS_SIZE), (sOUT, 2048 * 1280)):
            c(f"s_mov_b32 s{r+2}, {size}")
            c(f"s_mov_b32 s{r+3}, 0x20000")
        c(f"s_mov_b32 s{sHI}, 0")
        c(f"s_mov_b32 s{sHI+1}, -1")
        c(f"s_mov_b32 s{sMASK}, 0xffff0000")
        c(f"s_mov_b32 s{sFLB}, {FL_OFF}")

    def common_setup(self):
        c = self.c
        c(f"s_and_b32 s{sT}, s2, 7")
        c(f"s_lshr_b32 s{sT+1}, s2, 3")
        c(f"s_lshr_b32 s{sU}, s{sT+1}, 3")
        c(f"s_lshl2_add_u32 s{sU}, s{sT}, s{sU}")
        c(f"s_and_b32 s{sNB}, s{sT+1}, 7")
        c(f"s_lshr_b32 s{sRB}, s{sU}, 1")
        c(f"s_and_b32 s{sK8}, s{2 if self.PB == 4 else sU}, 1")
        c(f"s_lshl3_add_u32 s{sFB}, s{sK8}, s{sNB}")
        if self.PB == 4:
            c(f"s_andn2_b32 s{sTP}, s{sU}, 4")
            c(f"s_and_b32 s{sT}, s{sW}, 2")
            c(f"s_lshl1_add_u32 s{sTP}, s{sT}, s{sTP}")
            c(f"s_and_b32 s{sT}, s{sW}, 1")
            c(f"s_lshl1_add_u32 s{sTP}, s{sTP}, s{sT}")
        else:
            c(f"s_lshl2_add_u32 s{sTP}, s{sRB}, s{sW}")
        c(f"s_lshl2_add_u32 s{sHEAD}, s{sNB}, s{sW}")
        c(f"s_getreg_b32 s{sXCC}, hwreg(HW_REG_XCC_ID, 0, 4)")
        c(f"v_lshlrev_b32 v{vL16}, 4, v1")
        c(f"s_mul_i32 s{sWOO}, s{sHEAD}, 25600")
        c(f"s_add_u32 s{sWOO}, s{sWOO}, {WO_OFF + 4096}")
        c(f"s_lshl2_add_u32 s{sW1O}, s{sFB}, s{sW}")
        c(f"s_mul_i32 s{sW1O}, s{sW1O}, {35*1024}")
        c(f"s_add_u32 s{sW1O}, s{sW1O}, {W1_OFF}")
        c(f"s_mul_i32 s{sW1M}, s{sW}, {35*1024}")
        c(f"s_lshl2_add_u32 s{sK8}, s{sK8}, s{sW}")
        c(f"s_lshl3_add_u32 s{sW2B}, s{sNB}, s{sK8}")
        c(f"s_mul_i32 s{sW2B}, s{sW2B}, {35*1024}")
        c(f"s_add_u32 s{sW2B}, s{sW2B}, {W2_OFF + 4096}")
        c(f"s_mul_i32 s{sT}, s{sW}, 640")
        c(f"s_lshl_b32 s{sT+1}, s{sNB}, 12")
        c(f"s_add_u32 s{sT}, s{sT}, s{sT+1}")
        c(f"s_add_u32 s{sT}, s{sT}, {FWO_OFF - FL_OFF}")
        c(f"v_min_u32 v{self.vWOF}, 4, v1")
        c(f"v_lshl_add_u32 v{self.vWOF}, v{self.vWOF}, 7, s{sT}")

    def tag_ready(self):
        self.c(f"s_add_u32 s{sTAG}, s{sTAG}, {TAGC}")

    def flag_store(self, so, R=WSR):
        c = self.c
        c(f"v_mov_b32 v{vFLG}, s{sTAG}")
        c(f"v_lshlrev_b32 v253, 2, v1")
        c(f"s_not_b64 exec, s[{sHI}:{sHI+1}]")
        h = c(f"buffer_store_dword v{vFLG}, v253, {R}, s{so} offen sc1")
        c("s_mov_b64 exec, -1")
        return h

    def poll(self, va, vd=vFLG, span=False, sleep=0, early=()):
        c = self.c
        L, Ld = self.label("pl"), self.label("pd")
        n = sT + 12
        if early:
            Le = self.label("pe")
            for j, r in enumerate(early):
                c(f"s_waitcnt vmcnt({len(early) - 1 - j})")
                self.tag_cmp(r, span)
                c(f"s_cbranch_vccz {Le}")
                c.cond(True)
            self.poll(va, vd, span, sleep)
            c.cond(False)
            c(f"{Le}:")
            return
        c(f"s_mov_b32 s{n}, {SPIN_MAX}")
        c(f"{L}:")
        c(f"buffer_load_dword v{vd}, v{va}, {WSR}, s{sFLB} offen sc1")
        c(f"s_sub_u32 s{n}, s{n}, 1")
        c(f"s_cbranch_scc1 {Ld}")
        c("s_waitcnt vmcnt(0)")
        self.tag_cmp(vd, span)
        if sleep:
            c(f"s_cbranch_vccz {Ld}")
            c(f"s_sleep {sleep}")
            c(f"s_branch {L}")
        else:
            c(f"s_cbranch_vccnz {L}")
        c(f"{Ld}:")
        c("s_waitcnt vmcnt(0)")

    def tag_cmp(self, vd, span):
        c = self.c
        if span:
            c(f"v_subrev_u32 v253, s{sTAG}, v{vd}")
            c(f"v_cmp_le_u32 vcc, 16, v253")
        else:
            c(f"v_cmp_ne_u32 vcc, s{sTAG}, v{vd}")

    def flag_check(self, vd, va, span=False, sleep=4):
        c = self.c
        Ls, Lb = self.label("fs"), self.label("fb")
        self.tag_cmp(vd, span)
        c("s_nop 3")
        c(f"s_cbranch_vccnz {Ls} ; noflush")
        c(f"{Lb}: ; noflush")
        old, self.c = self.c, self.ool
        self.c(f"{Ls}:")
        self.c("s_nop 15")
        self.poll(va, vd, span, sleep=sleep)
        self.c(f"s_branch {Lb}")
        self.c = old

    def store_near(self, text, near=''):
        c = self.c
        Lf, Lb = self.label("far"), self.label("near")
        c(f"s_cbranch_scc1 {Lf} ; noflush")
        h = c(f"{text} {near}")
        c(f"{Lb}: ; noflush")
        self.ool(f"{Lf}:")
        self.ool(f"{text} sc1")
        self.ool(f"s_branch {Lb}")
        return h

    def flag_store_near(self, so):
        c = self.c
        Lf, Lb = self.label("far"), self.label("near")
        c(f"v_mov_b32 v{vFLG}, s{sTAG}")
        c(f"s_cmp_eq_u32 s{sSAME}, 0")
        c("s_mov_b64 exec, 1")
        c(f"s_cbranch_scc1 {Lf} ; noflush")
        c(f"buffer_store_dword v{vFLG}, off, {WSR}, s{so}")
        c(f"{Lb}: ; noflush")
        c("s_mov_b64 exec, -1")
        k = self.ool
        k(f"{Lf}:")
        k(f"buffer_store_dword v{vFLG}, off, {WSR}, s{so} sc1")
        k(f"s_branch {Lb}")

    NS = 4
    P1_WB = 4 * 16384
    P1_EX = 153600
    vXD, vWD, vXA, vWA, vXS, vWS_, vSEL, vSQ, vTMP, vRS, vCS = 4, 8, 12, 14, 18, 22, 24, 23, 28, 36, 40
    vPA = 44
    vRP = 52
    vWOF, vWOD = 59, 60
    vACC, vFR, vSF, vEP = 64, 128, 192, 208
    sKC, sKX, sKW, sW4 = sT + 8, sT + 9, sT + 10, sT + 11
    sSS, sONE = 76, 77

    def p1_setup(self):
        c, o = self.c, self.o
        t = self.vTMP
        if o.get('rot', 'A') == 'A':
            c(f"s_lshr_b32 s{sT}, s2, 1")
            c(f"s_xor_b32 s{sT}, s{sT}, s2")
        else:
            c(f"s_xor_b32 s{sT}, s{sRB1}, s{sCT}")
        c(f"s_and_b32 s{sT}, s{sT}, 1")
        c(f"s_mul_i32 s{self.sKC}, s{sT}, 5")
        if o.get('rot', 'A') == 'F':
            del c.ins[-3:]
            c(f"s_mul_i32 s{sT}, s{sRB1}, 3")
            c(f"s_add_u32 s{sT}, s{sT}, s{sCT}")
            c(f"s_mul_i32 s{sT+1}, s{sT}, 205")
            c(f"s_lshr_b32 s{sT+1}, s{sT+1}, 11")
            c(f"s_mul_i32 s{sT+1}, s{sT+1}, 10")
            c(f"s_sub_u32 s{self.sKC}, s{sT}, s{sT+1}")
        c(f"s_lshl_b32 s{self.sW4}, s{sW}, 12")
        c(f"s_lshl2_add_u32 s{sT}, s{sRB1}, s{sW}")
        c(f"s_mul_i32 s{sT}, s{sT}, {32*1280}")
        c(f"v_lshrrev_b32 v{t}, 3, v1")
        c(f"v_mul_u32_u24 v{t}, 1280, v{t}")
        c(f"v_lshrrev_b32 v{t+1}, 4, v1")
        c(f"v_and_b32 v{t+2}, 7, v1")
        c(f"v_xor_b32 v{t+2}, v{t+2}, v{t+1}")
        c(f"v_lshlrev_b32 v{t+2}, 4, v{t+2}")
        c(f"v_add3_u32 v{self.vXD}, v{t+2}, v{t}, s{sT}")
        c(f"v_xor_b32 v{t+3}, 64, v{self.vXD}")
        c(f"s_cmp_ge_u32 s{sCT}, 10")
        c(f"s_cselect_b32 s{sT+1}, 10240, 0")
        c(f"s_add_u32 s{sT}, s{sT+1}, {10240-1024}")
        c(f"s_sub_u32 s{sT+1}, {2*(10240-1024)}, s{sT+1}")
        c(f"v_add_u32 v{self.vXD+1}, s{sT}, v{t+3}")
        c(f"v_add_u32 v{self.vXD+2}, s{sT+1}, v{self.vXD}")
        c(f"v_add_u32 v{self.vXD+3}, {3*(10240-1024)}, v{t+3}")
        c(f"s_mul_i32 s{sT}, s{sW}, {16*3840}")
        c(f"s_lshl_b32 s{sT+1}, s{sCT}, 8")
        c(f"s_add_u32 s{sT}, s{sT}, s{sT+1}")
        c(f"v_mul_u32_u24 v{t}, 3840, v{t+1}")
        c(f"v_and_b32 v{t+2}, 15, v1")
        c(f"v_lshlrev_b32 v{t+3}, 1, v{t+1}")
        c(f"v_xor_b32 v{t+2}, v{t+2}, v{t+3}")
        c(f"v_lshlrev_b32 v{t+2}, 4, v{t+2}")
        c(f"v_add3_u32 v{self.vWD}, v{t+2}, v{t}, s{sT}")
        c(f"v_xor_b32 v{t+3}, 128, v{self.vWD}")
        for j in range(1, 4):
            c(f"v_add_u32 v{self.vWD+j}, {j*(4*3840-1024)}, v{self.vWD if j < 2 else t+3}")

    def first_touch(self):
        c = self.c
        t = self.vTMP
        c(f"s_and_b32 s{sT}, s2, 7")
        c(f"s_lshr_b32 s{sT+1}, s2, 3")
        c(f"s_lshl_b32 s{sT+2}, s{sT}, 5")
        c(f"s_add_u32 s{sT+2}, s{sT+2}, s{sT+1}")
        c(f"s_mul_i32 s{sT+2}, s{sT+2}, 10240")
        c(f"s_lshr_b32 s{sT+3}, s{sT}, 1")
        c(f"s_lshl_b32 s{sT+3}, s{sT+3}, 5")
        c(f"s_add_u32 s{sT+3}, s{sT+3}, s{sT+1}")
        c(f"s_mul_i32 s{sT+3}, s{sT+3}, {5*3840}")
        c(f"s_and_b32 s{sT}, s{sT}, 1")
        c(f"s_mul_i32 s{sT}, s{sT}, {14*128}")
        c(f"s_add_u32 s{sT+3}, s{sT+3}, s{sT}")
        c(f"s_and_b32 s{sT}, s{sW}, 1")
        c(f"s_mul_i32 s{sT}, s{sT}, 40")
        c(f"v_min_u32 v{t}, 39, v1")
        c(f"v_add_u32 v{t}, s{sT}, v{t}")
        c(f"s_cmp_ge_u32 s{sW}, 2")
        c(f"s_cselect_b64 s[{sRP}:{sRP+1}], s[{sWQ}:{sWQ+1}], s[{sX}:{sX+1}]")
        c(f"s_cselect_b32 s{sRP+2}, s{sWQ+2}, s{sX+2}")
        c(f"s_cselect_b32 s{sT+2}, s{sT+3}, s{sT+2}")
        c(f"s_cselect_b32 s{sT}, {3840-2048}, 0")
        c(f"s_mov_b32 s{sRP+3}, 0x20000")
        c(f"v_lshrrev_b32 v{t+1}, 4, v{t}")
        c(f"v_mul_u32_u24 v{t+1}, s{sT}, v{t+1}")
        c(f"v_lshl_add_u32 v{t}, v{t}, 7, v{t+1}")
        c(f"buffer_load_dword v252, v{t}, s[{sRP}:{sRP+3}], s{sT+2} offen").wr = []

    def p1_dma(self, s):
        slot = s % self.NS
        pre = []
        if s > 0:
            pre += [I(f"s_add_u32 s{self.sKC}, s{self.sKC}, 1"),
                    I(f"s_cmp_eq_u32 s{self.sKC}, 10"),
                    I(f"s_cselect_b32 s{self.sKC}, 0, s{self.sKC}")]
        items = []
        for j in range(4):
            d = I(f"buffer_load_dwordx4 v{self.vXD+j}, s[{sX}:{sX+3}], s{self.sKX} offen offset:{j*1024} lds")
            items.append(([I(f"s_add_u32 m0, s{self.sW4}, {slot*16384}"), I(f"s_lshl_b32 s{self.sKX}, s{self.sKC}, 7")] if j == 0 else []) + [d])
        for j in range(4):
            d = I(f"buffer_load_dwordx4 v{self.vWD+j}, s[{sWQ}:{sWQ+3}], s{self.sKW} offen offset:{j*1024} lds")
            items.append(([I(f"s_add_u32 m0, s{self.sW4}, {self.P1_WB + slot*16384}"), I(f"s_mul_i32 s{self.sKW}, s{self.sKC}, {64*3840}")] if j == 0 else []) + [d])
        return pre, items, d

    def p1_setup2(self):
        c = self.c
        t = self.vTMP
        c(f"s_lshr_b32 s{sT}, s{sW}, 1")
        c(f"s_and_b32 s{sT+1}, s{sW}, 1")
        c(f"v_and_b32 v{t}, 15, v1")
        c(f"s_lshl_b32 s{sT+2}, s{sT}, 13")
        c(f"v_lshl_add_u32 v{t}, v{t}, 7, s{sT+2}")
        c(f"v_lshrrev_b32 v{t+5}, 4, v1")
        c(f"v_bfe_u32 v{t+2}, v1, 1, 3")
        c(f"v_xor_b32 v{t+3}, v{t+2}, v{t+5}")
        c(f"v_lshl_add_u32 v{self.vXA}, v{t+3}, 4, v{t}")
        c(f"v_xor_b32 v{self.vXA+1}, 64, v{self.vXA}")
        c(f"v_bfe_u32 v{t+3}, v1, 2, 2")
        c(f"v_lshl_add_u32 v{t}, v{t+5}, 3, v{t+3}")
        c(f"v_lshlrev_b32 v{t}, 8, v{t}")
        c(f"v_bfe_u32 v{t+5}, v1, 2, 3")
        c(f"v_lshl_add_u32 v{t}, v{t+5}, 5, v{t}")
        c(f"v_and_b32 v{t+5}, 3, v1")
        c(f"v_lshlrev_b32 v{t+5}, 3, v{t+5}")
        c(f"v_add_u32 v{t+5}, {self.P1_WB}, v{t+5}")
        c(f"v_add_u32 v{t}, v{t}, v{t+5}")
        c(f"s_lshl_b32 s{sT+2}, s{sT+1}, 7")
        c(f"v_xor_b32 v{self.vWA}, s{sT+2}, v{t}")
        for n in range(1, 4):
            c(f"v_xor_b32 v{self.vWA+n}, {n*32}, v{self.vWA}")

    def p1_setup3(self, k0):
        c = self.c
        t = self.vTMP
        c(f"v_and_b32 v{t+4}, 31, v1")
        c(f"v_lshrrev_b32 v{t+1}, 5, v1")
        c(f"s_and_b32 s{sT+3}, s{self.sSS}, 3")
        c(f"s_lshl_b32 s{sT+3}, s{sT+3}, 14")
        c(f"s_add_u32 s{sT+2}, s{sT+3}, s{self.sW4}")
        c(f"v_add_u32 v{t+5}, s{sT+3}, v{t+5}")
        c(f"v_lshl_add_u32 v{t}, v{t+4}, 7, s{sT+2}")
        c(f"v_xor_b32 v{t+2}, v{t+2}, v{t+1}")
        c(f"v_lshl_add_u32 v{self.vXS}, v{t+2}, 4, v{t}")
        for p in range(1, 4):
            c(f"v_xor_b32 v{self.vXS+p}, {p*32}, v{self.vXS}")
        c(f"v_lshl_add_u32 v{t}, v{t+1}, 3, v{t+3}")
        c(f"v_lshl_add_u32 v{t}, v{t}, 8, v{t+5}")
        c(f"v_lshl_add_u32 v{t+3}, v{t+1}, 2, v{t+3}")
        c(f"v_bfe_u32 v{t+2}, v1, 4, 1")
        c(f"v_xor_b32 v{t+3}, v{t+3}, v{t+2}")
        c(f"v_lshl_add_u32 v{t}, v{t+3}, 5, v{t}")
        c(f"s_lshl_b32 s{sT+2}, s{sW}, 6")
        c(f"v_xor_b32 v{self.vWS_}, s{sT+2}, v{t}")
        c(f"s_mov_b32 s{self.sONE}, 0x3f803f80")
        pa = self.vPA
        c(f"v_mov_b32 v{t+3}, {OOB}")
        for k, (role, other, off, sh) in enumerate(((sRB1, 75, RST_OFF, 4), (sCT, 74, CST_OFF, 3))):
            c(f"s_lshl2_add_u32 s{sT+2}, s{role}, s{sW}")
            c(f"s_mul_i32 s{sT+2}, s{sT+2}, {320 << sh}")
            c(f"s_add_u32 s{sT+2}, s{sT+2}, {off}")
            c(f"v_lshl_add_u32 v{t}, v{t+4}, {sh}, s{sT+2}")
            c(f"v_mul_u32_u24 v{t+2}, {160 << sh}, v{t+1}")
            c(f"v_add_u32 v{pa+2+k}, v{t}, v{t+2}")
            c(f"s_lshl_b32 s{sT+2}, s{k0}, {5 + sh}")
            c(f"v_add_u32 v{t}, s{sT+2}, v{t}")
            if k == 0:
                c(f"s_cmp_ge_u32 s{sCT}, 10")
                c(f"s_cselect_b32 s{sT+2}, 48, 0")
                c(f"v_lshrrev_b32 v{t+2}, 1, v1")
                c(f"v_xor_b32 v{t+2}, v{t+2}, v1")
                c(f"v_and_b32 v{t+2}, 8, v{t+2}")
                c(f"v_mul_u32_u24 v{t+2}, s{sT+2}, v{t+2}")
                c(f"v_xor_b32 v{t}, v{t}, v{t+2}")
            c(f"s_cmp_lt_u32 s{other}, 5")
            c(f"s_cselect_b64 s[{sT+2}:{sT+3}], s[{sHI}:{sHI+1}], -1")
            c(f"v_cndmask_b32 v{pa+k}, v{t}, v{t+3}, s[{sT+2}:{sT+3}]")
        c(f"s_lshl_b32 s{sT+2}, s{sW}, 7")
        c(f"s_add_u32 s{sT+2}, s{sT+2}, {self.P1_EX}")
        c(f"v_lshl_add_u32 v{pa+6}, v{t+4}, 2, s{sT+2}")

    def fx_publish(self, sT=sT):
        return [I(f"s_lshl3_add_u32 s{sT}, s{sU}, s{sNB}"),
                I(f"s_lshl_b32 s{sT}, s{sT}, 7"),
                I(f"s_add_u32 s{sT}, s{sT}, {FX_OFF}"),
                I(f"s_add_u32 s{sT+1}, s{sTAG}, s{sXCC}"),
                I(f"v_mov_b32 v61, s{sT+1}"),
                I(f"v_lshrrev_b32 v62, 5, v0"),
                I(f"v_lshlrev_b32 v62, 27, v62"),
                I(f"v_lshl_add_u32 v62, v0, 2, v62"),
                I(f"buffer_store_dword v61, v62, {WSR}, s{sT} offen sc1")]

    def p1_reads(self, s, p):
        slot = s % self.NS
        fr = self.vFR + 32 * p
        X = lambda a: [I(f"ds_read_b128 {vr(fr+4*a, 4)}, v{self.vXA+p} offset:{slot*16384 + a*2048}")]
        Wt = lambda n: [I(f"ds_read_b64_tr_b16 {vr(fr+16+4*n+2*t, 2)}, v{self.vWA+n} offset:{slot*16384 + p*8192 + t*1024}") for t in range(2)]
        return X(0) + Wt(0) + Wt(1) + X(1) + Wt(2) + X(2) + Wt(3) + X(3)

    def p1_stat_reads(self, s):
        sf = self.vSF
        lab = self.label("sc")
        r = []
        for q in range(4):
            r.append(I(f"ds_read_b128 {vr(sf+4*q, 4)}, v{self.vXS+q}"))
            r += [I(f"ds_read_b64_tr_b16 {vr(sf+16+4*q+2*j, 2)}, v{self.vWS_} offset:{q*4096 + j*1024}") for j in range(2)]
        for x in r:
            x.wr = []; x.cond = True
        return [I(f"s_cmp_lg_u32 s{self.sSS}, {s}"), I(f"s_cbranch_scc1 {lab} ; noflush")] + r + [I(f"{lab}: ; noflush")]

    def p1_stat_sums(self):
        k = self.c
        sf, u, pa = self.vSF, self.vRS, self.vPA
        for j in range(16):
            k(f"v_dot2_f32_bf16 v{u}, v{sf+j}, s{self.sONE}, {0 if j == 0 else f'v{u}'}")
            k(f"v_dot2_f32_bf16 v{u+2}, v{sf+j}, v{sf+j}, {0 if j == 0 else f'v{u+2}'}")
            k(f"v_dot2_f32_bf16 v{u+4}, v{sf+16+j}, s{self.sONE}, {0 if j == 0 else f'v{u+4}'}")

    def p1_stat_publish(self):
        k = self.c
        sf, u, pa = self.vSF, self.vRS, self.vPA
        for j in (0, 2, 4):
            k(f"v_mov_b32 v{u+j+1}, v{u+j}")
        for j in (0, 2, 4):
            k(f"v_permlane32_swap_b32 v{u+j}, v{u+j+1}")
        for j in (0, 2, 4):
            k(f"v_add_f32 v{u+j}, v{u+j}, v{u+j+1}")
        for j in (0, 2, 4):
            k(f"v_mov_b32 v{u+j+1}, s{sTAG}")
        k(f"buffer_store_dwordx4 {vr(u,4)}, v{pa}, {WSR}, 0 offen sc1")
        k(f"buffer_store_dwordx2 {vr(u+4,2)}, v{pa+1}, {WSR}, 0 offen sc1")

    def p1_stat_loads(self):
        q, pa = self.vSF, self.vPA
        return ([I(f"buffer_load_dwordx4 {vr(q+4*i,4)}, v{pa+2}, {WSR}, 0 offen offset:{i*512} sc1") for i in range(5)] +
                [I(f"buffer_load_dwordx2 {vr(q+20+2*i,2)}, v{pa+3}, {WSR}, 0 offen offset:{i*256} sc1") for i in range(5)])

    def p1_stat_tags(self):
        c = self.c
        q, x = self.vSF, self.vPA + 7
        c(f"v_xor_b32 v{x}, s{sTAG}, v{q+29}")
        for i in range(14):
            c(f"v_bitop3_b32 v{x}, v{q+1+2*i}, s{sTAG}, v{x} bitop3:0xbe")
        c(f"v_cmp_ne_u32 vcc, 0, v{x}")

    def p1_stat_check(self):
        self.retry(self.p1_stat_loads, self.p1_stat_tags, 4)

    def retry(self, loads, tags, sleep):
        c = self.c
        Ls, Lb, L = self.label("ss"), self.label("sb"), self.label("sl")
        c("s_nop 3")
        c(f"s_cbranch_vccnz {Ls} ; noflush")
        c(f"{Lb}: ; noflush")
        old, self.c = self.c, self.ool
        k = self.c
        k(f"{Ls}:")
        k("s_nop 15")
        k(f"s_mov_b32 s{sT+12}, {SPIN_MAX}")
        k(f"{L}:")
        k.add(loads())
        k("s_waitcnt vmcnt(0)")
        k(f"s_sub_u32 s{sT+12}, s{sT+12}, 1")
        k(f"s_cbranch_scc1 {Lb}")
        tags()
        k(f"s_cbranch_vccz {Lb}")
        if sleep:
            k(f"s_sleep {sleep}")
        k(f"s_branch {L}")
        self.c = old

    def p1_stats_finish(self, isv):
        c = self.c
        q, b, pa = self.vSF, 224, self.vPA
        c(f"v_add_f32 v{b}, v{q}, v{q+4}")
        c(f"v_add_f32 v{b+1}, v{q+2}, v{q+6}")
        c(f"v_add_f32 v{b+10}, v{q+20}, v{q+22}")
        for i in range(2, 5):
            c(f"v_add_f32 v{b}, v{b}, v{q+4*i}")
            c(f"v_add_f32 v{b+1}, v{b+1}, v{q+4*i+2}")
            c(f"v_add_f32 v{b+10}, v{b+10}, v{q+20+2*i}")
        c(f"v_mov_b32 v{b+2}, v{b}")
        c(f"v_mov_b32 v{b+3}, v{b+1}")
        c(f"v_mov_b32 v{b+11}, v{b+10}")
        c(f"v_permlane32_swap_b32 v{b}, v{b+2}")
        c(f"v_permlane32_swap_b32 v{b+1}, v{b+3}")
        c(f"v_permlane32_swap_b32 v{b+10}, v{b+11}")
        c(f"v_add_f32 v{b}, v{b}, v{b+2}")
        c(f"v_add_f32 v{b+1}, v{b+1}, v{b+3}")
        c(f"v_mul_f32 v{b}, {hex(f2u(-1.0/640))}, v{b}")
        c(f"v_mul_f32 v{b+1}, {hex(f2u(1.0/640))}, v{b+1}")
        c(f"v_add_f32 v{b+10}, v{b+10}, v{b+11}")
        c(f"v_fma_f32 v{b+1}, -v{b}, v{b}, v{b+1}")
        c(f"ds_write_b32 v{pa+6}, v{b}")
        c(f"v_max_f32 v{b+1}, 0, v{b+1}")
        c(f"v_add_f32 v{b+1}, {hex(f2u(1e-5))}, v{b+1}")
        c(f"v_rsq_f32 v{b+1}, v{b+1}")
        c(f"ds_write_b32 v{pa+6}, v{b+10} offset:1024")
        if not isv:
            c(f"v_mul_f32 v{b+1}, s{sT+7}, v{b+1}")
        c(f"ds_write_b32 v{pa+6}, v{b+1} offset:512")

    def p1_ep_prep(self, isv):
        c = self.c
        t = self.vTMP
        EX = self.P1_EX
        c(f"s_lshr_b32 s{sT}, s{sW}, 1")
        c(f"s_and_b32 s{sT+1}, s{sW}, 1")
        c(f"s_lshl1_add_u32 s{sT+2}, s{sRB1}, s{sT}")
        c(f"s_lshl1_add_u32 s{sT+3}, s{sCT}, s{sT+1}")
        c(f"s_lshl_b32 s{sT}, s{sT}, 8")
        c(f"s_add_u32 s{sT}, s{sT}, {EX}")
        c(f"s_lshl_b32 s{sT+1}, s{sT+1}, 8")
        c(f"s_add_u32 s{sT+1}, s{sT+1}, {EX+1024}")
        c(f"v_lshrrev_b32 v{t+4}, 4, v1")
        c(f"v_and_b32 v{t+5}, 15, v1")
        c(f"v_lshl_add_u32 v{t}, v{t+5}, 2, s{sT+(1 if isv else 0)}")
        c(f"v_lshl_add_u32 v{t+1}, v{t+4}, 4, s{sT+(0 if isv else 1)}")
        if isv:
            c(f"v_and_b32 v{t+2}, 32, v1")
            c(f"v_add_u32 v{t+1}, v{t+1}, v{t+2}")
        c(f"v_mul_u32_u24 v{t+4}, {(10240 if isv else 512) - 256}, v{t+4}")
        c(f"v_add_u32 v{t+4}, v{vL16}, v{t+4}")
        c(f"s_lshl4_add_u32 s{sT+13}, s{sRB1}, s{sCT}")
        c(f"s_lshl_b32 s{sT+13}, s{sT+13}, 7")
        c(f"s_add_u32 s{sT+13}, s{sT+13}, {F1_OFF}")
        if not isv:
            qs = (20 ** -0.5) * 1.4426950408889634
            c(f"s_mul_i32 s{sT+4}, s{sT+2}, 163840")
            c(f"s_lshl_b32 s{sT+5}, s{sT+3}, 13")
            c(f"s_add_u32 s{sT+4}, s{sT+4}, s{sT+5}")
            c(f"s_add_u32 s{sT+5}, s{sT+4}, 4096")
            c(f"s_cmp_lt_u32 s{sCT}, 5")
            c(f"s_cselect_b32 s{sT+7}, {hex(f2u(qs))}, 1.0")
        else:
            c(f"s_mul_i32 s{sT+4}, s{sT+2}, 81920")
            c(f"s_lshl_b32 s{sT+5}, s{sT+3}, 10")
            c(f"s_add_u32 s{sT+4}, s{sT+4}, s{sT+5}")
            c(f"s_add_u32 s{sT+4}, s{sT+4}, {V_OFF - 10*2048}")
            c(f"s_add_u32 s{sT+5}, s{sT+4}, 40960")

    def p1_ep_reads(self, isv):
        t, e, u = self.vTMP, self.vEP, self.vRS
        r = []
        if not isv:
            r += [I(f"ds_read2_b32 {vr(u+2*a,2)}, v{t} offset0:{16*a} offset1:{128+16*a}") for a in range(4)]
            r += [I(f"ds_read_b128 {vr(e+4*n, 4)}, v{t+1} offset:{64*n}") for n in range(4)]
        else:
            r += [I(f"ds_read2_b32 {vr(u+2*k,2)}, v{t} offset0:{32*k} offset1:{32*k+16}") for k in range(2)]
            for a in range(4):
                off = (32 * (a >> 1) + 8 * (a & 1)) * 4
                r.append(I(f"ds_read_b128 {vr(e+4*a, 4)}, v{t+1} offset:{off}"))
                r.append(I(f"ds_read_b128 {vr(e+16+4*a, 4)}, v{t+1} offset:{512+off}"))
        return r

    P1_ORDER = [(0, 0), (0, 1), (1, 0), (1, 1), (0, 2), (1, 2), (2, 0), (2, 1), (2, 2), (0, 3), (1, 3), (2, 3), (3, 0), (3, 1), (3, 2), (3, 3)]

    P1_SNAKE = [(0, 0), (0, 1), (1, 1), (1, 0), (1, 2), (0, 2), (2, 2), (2, 1), (2, 0), (2, 3), (1, 3), (0, 3), (3, 3), (3, 2), (3, 1), (3, 0)]

    def p1_loop(self, isv, h0, h1):
        c, o = self.c, self.o
        hd = {0: h0, 1: h1}
        pa = self.vPA
        at = len(c.ins)
        c.wait(h0)
        c("s_barrier")
        if o.get('rpa') == -2:
            at = len(c.ins)
        self.stamp("b0", "main p1")
        R = self.p1_reads(0, 0)
        c.add(R)
        grp = []
        for q in range(2, 10):
            pre, dma, hd[q] = self.p1_dma(q)
            dma[0] = pre + dma[0]
            grp += [dma[:4], dma[4:]]
        c.add(grp.pop(0))
        ramp = {0: (), 1: (0,), 2: (0, 1), 3: (0, 2), 4: (1, 2)}[o.get('ramp', 0)]
        extra = {k: [] for k in range(20)}
        mem = {k: [] for k in range(20)}
        tail = {k: [] for k in range(20)}
        k0, k1, k2 = o.get('rpa', 4), o.get('rpb', 9), o.get('rpc', 15)
        src_first = k0 < 0
        k0 = max(k0, 1)
        late_rp = o.get('rpm', 0)
        if late_rp:
            k0 = o.get('fk', 12)
        cs = self.sub(self.tag_ready) + self.late_setup
        if late_rp:
            assert o.get('early', 32) >= 32
            cs = cs[:1] + self.fx_publish(64) + cs[1:]
        per = -(-len(cs) // k0)
        for k in range(k0):
            extra[k] = [copy_ins(x) for x in cs[k * per:(k + 1) * per]]
        cs = ([] if late_rp else self.fx_publish()) + self.later_setup + glue(self.sub(self.p1_ep_prep, isv))
        per = -(-len(cs) // (16 - k0))
        for k in range(16 - k0):
            extra[k0 + k] = [copy_ins(x) for x in cs[k * per:(k + 1) * per]]
        assert late_rp or k1 % 2 and k1 + 5 <= k2 <= 17 and k0 + 3 <= k1
        d, rd, stv, fs = self.rp_unit_items([64, 68, 72] if late_rp else [24, 224, 228])
        d1, rd1, pad, stv1 = self.rp_unit1_items(76 if late_rp else 232)
        d += d1; stv += stv1
        self.rp_late = []
        if late_rp:
            kt = o.get('rpt', 14)
            assert kt >= k0
            tail[kt] = d
            self.rp_late = rd1 + rd + pad + stv1 + stv[:3]
            rd, rd1, pad, stv, k1 = [], [], [], [[]] * 5, 1
        elif src_first:
            assert not self.late_setup
            c.ins[at:at] = flat(d)
        else:
            rr = o.get('rpr', 2)
            for j in range(0, 5, rr):
                tail[k0 + j // rr] = d[j:j + rr]
        ns = min(o.get('rpn', 5), k2 - k1 - 2)
        for j in range(0 if late_rp else 5):
            mem[k1 + 2 + j * ns // 5].append(stv[j])
        bwait = {} if late_rp else {k1: d[-1][-1]}
        self.rp_flag = fs
        extra[k1 + 1] = interleave(extra[k1 + 1], rd + rd1)
        extra[k1 + 2] = pad + extra[k1 + 2]
        kf, kw = o.get('wof', 14), o.get('wok', 17)
        mem[kf].append(I(f"buffer_load_dword v{self.vWOD}, v{self.vWOF}, {WSR}, s{sFLB} offen sc1"))
        stl = self.p1_stat_loads()
        ks = o.get('stk', 15)
        mem[ks] += stl[:5]; mem[ks + 1] += stl[5:]
        wo = self.wo_loads()[:o.get('wot', 18)]
        extra[kw - 1].append(self.sub(self.flag_check, self.vWOD, self.vWOF))
        nw = 20 - kw
        for k in range(nw):
            mem[kw + k] += wo[k * len(wo) // nw:(k + 1) * len(wo) // nw]
        fin = self.sub(self.p1_stats_finish, isv)
        extra[18] = self.sub(self.p1_stat_tags) + [self.sub(self.p1_stat_check)] + fin[:14]
        for s in range(10):
            for p in range(2):
                k = 2 * s + p
                fr = self.vFR + 32 * p
                M = []
                for a, n in (self.P1_SNAKE if o.get('snake', 0) else self.P1_ORDER):
                    d = vr(self.vACC + 16 * a + 4 * n, 4)
                    xa, wb = vr(fr + 4 * a, 4), vr(fr + 16 + 4 * n, 4)
                    A, B = (xa, wb) if isv else (wb, xa)
                    M.append(I(f"v_mfma_f32_16x16x32_bf16 {d}, {A}, {B}, {0 if k == 0 else d}"))
                G = [[] for _ in range(16)]
                F = [[] for _ in range(16)]
                if k:
                    if p == 0:
                        M[0].waits = [R[5]]; M[4].waits = [R[11]]
                    else:
                        M[0].waits = [R[11]]
                g0 = 0
                if p == 0:
                    R = self.p1_reads(s, 1)
                elif s < 9:
                    R = self.p1_reads(s + 1, 0)
                    G[g0] = [W(hd[s + 1], *([bwait[k]] if k in bwait else []))] + [I("s_barrier")]
                else:
                    R = []
                for j, r in enumerate(R):
                    G[g0 + j].append(r)
                dma = grp.pop(0) if grp else []
                if k in ramp:
                    dma = dma + grp.pop(0)
                D = interleave(dma, mem[k]) + tail[k] if dma else mem[k] + tail[k]
                for j, d in enumerate(D):
                    g = 16 - len(D) + j
                    if o.get('dspread', 1):
                        g = g0 + 2 + j * (14 - g0) // len(D) if len(D) != 4 or g0 else 2 + 4 * j
                    d = flat(d)
                    F[g] += d[:-1]; G[g].insert(0, d[-1])
                X = extra[k]
                if k == 19:
                    for j, x in enumerate(fin[14:]):
                        G[j // 3].append(x)
                    G[7] += [I("s_waitcnt lgkmcnt(0)"), I("s_barrier")]
                    for j, r in enumerate(self.p1_ep_reads(isv)):
                        G[8 + j * 7 // 10].append(r)
                for j, x in enumerate(X):
                    G[1 + j * 14 // len(X)].append(x)
                full = o.get('rot', 'A') == 'F'
                if p == 0 and s < (1 if full else 5):
                    G[0].append(self.p1_stat_reads(s))
                if k == (0 if full else 8):
                    G[8].append([W(R[2])] + self.sub(self.p1_stat_sums))
                    for j, x in enumerate(self.sub(self.p1_stat_publish)):
                        G[11 + j // 3].append(x)
                for g in range(16):
                    c.add(F[g]); c.add(M[g]); c.add(G[g])
                if o.get('x_pad') and o.get('x_pads', 0) <= s < o.get('x_pade', 10):
                    for _ in range(o['x_pad']):
                        c("s_nop 7")
                if p == 1 or s >= 7:
                    self.stamp(f"e{s}{p}", "p1")

    def p1_epilogue(self, isv):
        c = self.c
        t, e, u = self.vTMP, self.vEP, self.vRS
        ob = self.vFR
        n0 = self.o.get('wot', 18)
        assert n0 > 0
        wo = self.wo_loads()[n0:n0 + self.o.get('woe', 0)]
        for k in range(8):
            out = ob + 4 * k
            if not isv:
                n, lo = k >> 1, k & 1
                rr = [(self.vACC + 16 * a + 4 * n + 2 * q, e + 4 * n + 2 * q, u + 2 * a) for a in (lo, lo + 2) for q in range(2)]
                for r, cs, sv in rr:
                    c(f"v_pk_fma_f32 {vr(r,2)}, {vr(cs,2)}, {vr(sv,2)}, {vr(r,2)} op_sel_hi:[1,0,1]")
                for r, cs, sv in rr:
                    c(f"v_pk_mul_f32 {vr(r,2)}, {vr(r,2)}, {vr(sv,2)} op_sel:[0,1] op_sel_hi:[1,1]")
                so, off = sT + 4 + (n >> 1), (n & 1) * 2048 + lo * 256
            else:
                T, n = k >> 2, k & 3
                sel = "op_sel_hi:[1,0,1]" if n % 2 == 0 else "op_sel:[0,1,0] op_sel_hi:[1,1,1]"
                rr = [(self.vACC + 16 * a + 4 * n + 2 * q, e + 4 * a + 2 * q, 0) for a in (2 * T, 2 * T + 1) for q in range(2)]
                for r, nm, _ in rr:
                    c(f"v_pk_fma_f32 {vr(r,2)}, {vr(nm,2)}, {vr(u+(n&2),2)}, {vr(r,2)} {sel}")
                for r, nm, _ in rr:
                    c(f"v_pk_mul_f32 {vr(r,2)}, {vr(r,2)}, {vr(nm+16,2)}")
                so, off = sT + 4 + T, n * 256
            for q, (r, _, _) in enumerate(rr):
                c(f"v_cvt_pk_bf16_f32 v{out+q}, v{r}, v{r+1}")
            h = c(f"buffer_store_dwordx4 {vr(out,4)}, v{t+4}, {WSR}, s{so} offen offset:{off} sc1")
            if k < 7:
                c.add(wo[k * len(wo) // 7:(k + 1) * len(wo) // 7])
        return h

    def phase1(self):
        c, o = self.c, self.o
        self.p1_setup()
        c(f"s_cmp_eq_u32 s{sCT}, 15")
        c("s_waitcnt lgkmcnt(0)")
        c("s_cbranch_scc1 Lp1_idle")
        c(".save p0")
        self.stamp("start")
        pre, d0, h0 = self.p1_dma(0)
        ft = o.get('ft', 0)
        if ft == 2:
            self.first_touch()
        c.add(d0)
        if ft == 1:
            self.first_touch()
        c(f"s_lshr_b32 s{sT}, s{sRB1}, 3")
        c(f"s_and_b32 s{sT+1}, s{sRB1}, 3")
        c(f"s_lshl2_add_u32 s74, s{sT}, s{sT+1}")
        c(f"s_and_b32 s75, s{sCT}, 7")
        if o.get('rot', 'A') != 'A':
            c(f"s_lshr_b32 s74, s{sRB1}, 1")
            c(f"s_lshr_b32 s75, s{sCT}, 1")
        c(f"s_add_u32 s{sT}, s74, s75")
        c(f"s_mul_i32 s{sT+1}, s{sT}, 52")
        c(f"s_lshr_b32 s{sT+1}, s{sT+1}, 8")
        c(f"s_mul_i32 s{sT+1}, s{sT+1}, 5")
        c(f"s_sub_u32 s{self.sSS}, s{sT}, s{sT+1}")
        if o.get('rot', 'A') == 'F':
            c(f"s_mov_b32 s{self.sSS}, 0")
        c(f"s_add_u32 s{sT+14}, s{self.sSS}, s{self.sKC}")
        pre, d1, h1 = self.p1_dma(1)
        c.add(pre); c.add(d1[:4])
        self.base_setup()
        self.p1_setup2()
        c.add(d1[4:])
        self.p1_setup3(sT + 14)
        late = glue(self.sub(self.common_setup) + self.sub(self.rp_setup_unit) + self.sub(self.rp_setup_unit1))
        ne = o.get('early', 32)
        c.add(late[:ne]); self.late_setup = late[ne:]
        vc = glue(self.sub(self.v_const))
        nv = o.get('vcn', 0)
        self.later_setup = vc[:nv]
        c(f"s_cmp_ge_u32 s{sCT}, 10")
        c("s_cbranch_scc1 Lp1_v")
        c(".save p1")
        for isv in (False, True):
            if isv:
                c("Lp1_v:")
                c(".restore p1")
            self.p1_loop(isv, h0, h1)
            self.stamp("p1loop")
            h = self.p1_epilogue(isv)
            if not isv:
                c("s_branch Lp1_done")
        c("Lp1_done:")
        self.stamp("p1epi")
        c.add(vc[nv:])
        n0 = min(o.get('wot', 18) + o.get('woe', 0), 25)
        self.woq = self.wo_loads()[n0:]
        self.w1q, self.w2q = list(range(35)), list(range(35))
        KV = f"s[{sKV}:{sKV+3}]"
        c("Lp1_join:")
        nb_ = o.get('wob', 0)
        if not n0:
            self.flag_check(self.vWOD, self.vWOF)
        c.add(self.woq[:nb_]); self.woq = self.woq[nb_:]
        init = glue(self.sub(self.attn_init) + self.sub(self.attn_prep))
        na = o.get('inita', 70)
        while any(('s', 'vcc') in x.rd for x in flat(init[na:na + 4])):
            na += 1
        c.add(init[:na])
        self.stamp("ainit")
        c.wait(h)
        self.stamp("p1drain")
        c("s_barrier")
        lab = self.label("f1")
        c(f"s_cmp_lg_u32 s{sW}, 2")
        c(f"s_cbranch_scc1 {lab}")
        c.cond(True)
        self.flag_store(sT + 13)
        c.cond(False)
        c(f"{lab}:")
        c.add(self.rp_late)
        if not self.rp_late:
            self.emit_rp_flag()
        nc_ = o.get('woc', 7)
        ld = self.woq[:nc_]; self.woq = self.woq[nc_:]
        c.add(interleave(init[na:], ld))
        self.stamp("join")
        old, self.c = self.c, self.ool
        self.idle_path(n0)
        self.c = old

    def emit_rp_flag(self):
        c = self.c
        lab = self.label("f1")
        c(f"s_cmp_lg_u32 s{sW}, 0")
        c(f"s_cbranch_scc1 {lab} ; noflush")
        for x in copy_ins(self.rp_flag):
            x.cond = True
            c.add(x)
        c(f"{lab}: ; noflush")

    def idle_path(self, n0):
        c = self.c
        P = self.RPP
        gw = sT + 8
        KV = f"s[{sKV}:{sKV+3}]"
        c("Lp1_idle:")
        c(".restore p0")
        if self.o.get('ft', 0):
            self.first_touch()
        if self.o.get('tlb', 0):
            sh = self.o.get('tlbs', 18)
            c(f"s_mov_b32 s{sKV+3}, 0x20000")
            c(f"v_lshlrev_b32 v8, {sh}, v1")
            for pair in (((sWS, WS_SIZE, 0), (sW2, 1728*1280, 0), (sWS, WS_SIZE, 64 << sh), (sW1, 640*3456, 0)),
                         ((sWS, WS_SIZE, 128 << sh), (sWQ, 640*3840, 0), (sOUT, 2048*1280, 0), (sX, 2048*1280, 0))):
                for w, (ptr, size, off) in enumerate(pair):
                    if w == 0:
                        c(f"s_mov_b64 s[{sKV}:{sKV+1}], s[{ptr}:{ptr+1}]")
                        c(f"s_mov_b32 s{sKV+2}, {size if off < size else 0}")
                        c(f"s_mov_b32 s{sT}, {off if off < size else 0}")
                    else:
                        c(f"s_cmp_eq_u32 s{sW}, {w}")
                        c(f"s_cselect_b64 s[{sKV}:{sKV+1}], s[{ptr}:{ptr+1}], s[{sKV}:{sKV+1}]")
                        c(f"s_cselect_b32 s{sKV+2}, {size if off < size else 0}, s{sKV+2}")
                        c(f"s_cselect_b32 s{sT}, {off if off < size else 0}, s{sT}")
                c(f"buffer_load_dword v240, v8, {KV}, s{sT} offen sc1").wr = []
        c(f"s_lshl2_add_u32 s{gw}, s{sRB1}, s{sW}")
        c(f"s_mov_b32 s{sRP}, s{sWO}")
        c(f"s_mov_b32 s{sRP+1}, s{sWO+1}")
        c(f"s_mov_b32 s{sRP+2}, {640*1280}")
        c(f"s_mov_b32 s{sRP+3}, 0x20000")
        t = self.vTMP
        for j in range(5):
            c(f"v_add_u32 v{t}, {64*j}, v1")
            c(f"v_mul_u32_u24 v{t+1}, 6554, v{t}")
            c(f"v_lshrrev_b32 v{t+2}, 16, v{t+1}")
            c(f"v_mul_u32_u24 v{t+2}, 70, v{t+2}")
            c(f"v_add_u32 v{t}, v{t}, v{t+2}")
            c(f"v_lshrrev_b32 v{t+2}, 20, v{t+1}")
            c(f"v_mul_u32_u24 v{t+2}, 320, v{t+2}")
            c(f"v_add_lshl_u32 v{self.vRP+j}, v{t}, v{t+2}, 4")
            c(f"v_lshrrev_b32 v{t+2}, 18, v{t+1}")
            c(f"v_mul_u32_u24 v{t+2}, 1280, v{t+2}")
            c(f"v_add_lshl_u32 v{44+j}, v{t}, v{t+2}, 4")
        c(f"s_and_b32 s{sT}, s{gw}, 7")
        c(f"s_mul_i32 s{sT}, s{sT}, 160")
        c(f"s_lshr_b32 s{sT+1}, s{gw}, 3")
        hd = {}
        for r in range(3):
            c(f"s_mul_i32 s{sT+9}, s{sT+1}, {(40 if r < 2 else 160)*1280}")
            c(f"s_add_u32 s{sT+9}, s{sT+9}, s{sT}")
            if r:
                c(f"s_add_u32 s{sT+9}, s{sT+9}, {(320 if r == 1 else 16)*1280}")
            if r == 2:
                c(f"s_cmp_lt_u32 s{gw}, 32")
                c(f"s_cselect_b32 s{sRP+2}, s{sRP+2}, 0")
            d = self.rp_dma(5, r * 5120, 40960, so=f"s{sT+9}", fl='', vb=self.vRP if r < 2 else 44)
            c.add(d); hd['o', r] = d[-1][-1]
        self.base_setup()
        self.common_setup()
        c(f"s_mov_b32 s{sKV}, s{sWS}")
        c(f"s_mov_b32 s{sKV+1}, s{sWS+1}")
        c(f"s_mov_b32 s{sKV+3}, 0x20000")
        c(f"s_and_b32 s82, s{gw}, 15")
        c(f"s_lshr_b32 s83, s{gw}, 4")
        c(f"s_mul_i32 s83, s83, 5")
        self.rp_w1_params(82, 83, 80)
        c(f"s_mov_b32 s{sRP+2}, {640*3456}")
        self.rp_w1_offsets(80)

        def dma1(r):
            c(f"s_mov_b32 s{sT+9}, {r*32*3456}")
            d = self.rp_dma(7, 15360 + (r % 3) * 7168, 40960, so=f"s{sT+9}", fl='')
            c.add(d); hd['a', r] = d[-1][-1]
        c(f"v_lshlrev_b32 v8, 7, v1")
        self.tag_ready()
        c.add(self.fx_publish())
        c(f"v_mov_b32 v{vFLG}, s{sTAG}")
        self.rp_addr(16, 160, 0, 40960, False)
        self.rp_addr(22, 224, 15360, 40960, sW)

        def params(kind, r):
            if kind == 'o':
                self.rp_params_wo(gw, r)
                c(f"s_cmp_lg_u32 s{sRPT}, 0")
                c(f"s_cselect_b32 s{sKV+2}, {WS_SIZE}, 0")
            else:
                c(f"s_mov_b32 s{sKV+2}, {WS_SIZE}")
                c(f"s_lshr_b32 s83, s{gw}, 4")
                c(f"s_mul_i32 s83, s83, 5")
                c(f"s_add_u32 s83, s83, {r}")
                self.rp_w1_params(82, 83)
        hs = {}

        def proc(kind, r, n):
            params(kind, r)
            c.wait(hd[kind, r])
            it = self.rp_items(5, 16, r * 5120, 64 + 20 * r, KV) if kind == 'o' else self.rp_items(7, 22, (r % 3) * 7168, 124 + 28 * (r % 3), KV)
            c.add(it); hs[kind, r] = flat(it)[-1]

        def flag(kind, r):
            params(kind, r)
            c.wait(hs[kind, r])
            self.flag_store(sRPF, KV)
        dbg = self.o.get('idledbg')
        if dbg: self.stamp("start")
        dma1(0)
        if dbg: c.wait(hd['o', 0]); self.stamp("b0")
        for r in range(3):
            proc('o', r, r)
        dma1(1)
        for r in range(3):
            flag('o', r)
        if dbg: self.stamp("p1epi")
        ni = 5 - self.o.get('nr', 3)
        assert 2 <= ni <= 3
        if ni > 2:
            dma1(2)
        for r in range(ni):
            proc('a', r, r)
        self.v_const()
        for r in range(ni):
            flag('a', r)
        if self.o.get('fltouch', 1):
            c(f"s_lshl_b32 s{sT}, s{sRB1}, 11")
            c(f"s_add_u32 s{sT}, s{sT}, {F1_OFF}")
            c(f"v_and_b32 v9, 0x780, v8")
            c(f"buffer_load_dword v240, v9, {WSR}, s{sT} offen")
            c.ins[-1].wr = []
        self.stamp("p1loop")
        lab = self.label("ep")
        c(f"s_cmp_lg_u32 s{gw}, {99 if self.o.get('x_noepoch') else 63}")
        c(f"s_cbranch_scc1 {lab}")
        c(f"v_lshlrev_b32 v8, 7, v1")
        for j in range(4):
            c(f"v_add_u32 v9, {FX_OFF - FL_OFF + j*8192}, v8")
            self.poll(9, span=True, sleep=16)
        c(f"s_mov_b32 s{sT}, {EP_OFF}")
        self.flag_store(sT)
        c(f"{lab}:")
        c("s_waitcnt vmcnt(0)")
        for r in (sRP + 2, sRPT, 28, 79, 80, 82, 83, 84):
            c(f"s_mov_b32 s{r}, 0")
        for r in range(self.vRA, self.vRB + 3):
            c(f"v_mov_b32 v{r}, 0")
        c(f"s_lshl_b32 s{sT+13}, s{sRB1}, 11")
        c(f"s_add_u32 s{sT+13}, s{sT+13}, {F1_OFF + 15*128}")
        self.poll(self.vWOF, self.vWOD, sleep=8)
        c("s_barrier")
        c.add(self.wo_loads()[:n0])
        c("s_branch Lp1_join")

    RPP = dict(pitch=sT, col=sT + 1, nch=sT + 2, mch=sT + 3, v0=sT + 4, dm=sT + 5, dd=sT + 6, aa=sT + 7, lim=sT + 12, r0=sT + 13, u=sT + 14)

    def rp_params_wo(self, gw, r):
        c = self.c
        u = self.RPP['u']
        c(f"s_lshr_b32 s{u}, s{gw}, 3")
        if r < 2:
            c(f"s_lshr_b32 s{u+1}, s{u}, 2")
            c(f"s_add_u32 s{u}, s{u}, s{u+1}")
            c(f"s_add_u32 s{u}, s{u}, {10*r}")
            c(f"s_mov_b32 s{sRPT}, 1")
        else:
            c(f"s_mul_i32 s{u}, s{u}, 5")
            c(f"s_add_u32 s{u}, s{u}, 4")
            c(f"s_cmp_lt_u32 s{gw}, 32")
            c(f"s_cselect_b32 s{sRPT}, 1, 0")
        c(f"s_and_b32 s{u+1}, s{gw}, 7")
        c(f"s_mul_i32 s{sRPD}, s{u+1}, 20")
        c(f"s_add_u32 s{sRPD}, s{sRPD}, s{u}")
        c(f"s_mul_i32 s{sRPD}, s{sRPD}, 5120")
        c(f"s_add_u32 s{sRPD}, s{sRPD}, {WO_OFF}")
        c(f"s_lshl_b32 s{sRPF}, s{u+1}, 5")
        c(f"s_add_u32 s{sRPF}, s{sRPF}, s{u}")
        c(f"s_lshl_b32 s{sRPF}, s{sRPF}, 7")
        c(f"s_add_u32 s{sRPF}, s{sRPF}, {FWO_OFF}")

    RPL = 8 * 16384
    vRA = 240
    sRD = 82

    def rp_setup_unit(self):
        c = self.c
        t, ra = self.vTMP, self.vRA
        u, sl, r0, v0, col, x, y = [sT + i for i in range(7)]
        c(f"s_mov_b32 s{sRP}, s{sW2}")
        c(f"s_mov_b32 s{sRP+1}, s{sW2+1}")
        c(f"s_mov_b32 s{sRP+3}, 0x20000")
        c(f"s_cmp_lt_u32 s2, 224")
        c(f"s_cselect_b32 s{sRP+2}, {1728*1280}, 0")
        c(f"s_cselect_b32 s{sRPT}, {WS_SIZE}, 0")
        c(f"s_and_b32 s{sl}, s2, 3")
        c(f"s_lshr_b32 s{u}, s2, 2")
        c(f"s_mul_i32 s{r0}, s{u}, 18726")
        c(f"s_lshr_b32 s{r0}, s{r0}, 16")
        c(f"s_mul_i32 s{col}, s{r0}, 112")
        c(f"s_lshl_b32 s{v0}, s{u}, 5")
        c(f"s_sub_u32 s{v0}, s{v0}, s{col}")
        c(f"s_mul_i32 s{r0}, s{r0}, {108*1280}")
        c(f"s_mul_i32 s{col}, s{sl}, 320")
        c(f"s_add_u32 s{col}, s{col}, s{r0}")
        c(f"s_mul_i32 s{sRPD}, s{sl}, 112")
        c(f"s_add_u32 s{sRPD}, s{sRPD}, s{u}")
        c(f"s_mul_i32 s{sRPD}, s{sRPD}, 5120")
        c(f"s_add_u32 s{sRPD}, s{sRPD}, {W2_OFF}")
        c(f"s_lshl_b32 s{sRPF}, s{sl}, 6")
        c(f"s_add_u32 s{sRPF}, s{sRPF}, s{u}")
        c(f"s_lshl_b32 s{sRPF}, s{sRPF}, 7")
        c(f"s_add_u32 s{sRPF}, s{sRPF}, {FW2_OFF}")
        assert all((S * 18726) >> 16 == (32 * S) // 112 for S in range(80)) and all((v * 3277) >> 16 == v // 20 for v in range(768))
        c(f"v_mov_b32 v{t+4}, {OOB}")
        for j in range(3):
            c(f"v_add_u32 v{t}, {256*j}, v0")
            c(f"v_mul_u32_u24 v{t+1}, 3277, v{t}")
            c(f"v_lshrrev_b32 v{t+1}, 16, v{t+1}")
            c(f"v_mul_u32_u24 v{t+2}, 20, v{t+1}")
            c(f"v_sub_u32 v{t}, v{t}, v{t+2}")
            c(f"v_lshl_add_u32 v{t}, v{t}, 4, s{col}")
            c(f"v_add_u32 v{t+1}, s{v0}, v{t+1}")
            c(f"v_subrev_u32 v{t+2}, 108, v{t+1}")
            c(f"v_med3_i32 v{t+3}, v{t+2}, 0, 4")
            c(f"v_cmp_gt_u32 vcc, 4, v{t+2}")
            c(f"v_sub_u32 v{t+1}, v{t+1}, v{t+3}")
            c(f"v_mul_u32_u24 v{t+1}, 1280, v{t+1}")
            c(f"v_add_u32 v{t}, v{t}, v{t+1}")
            c(f"v_cndmask_b32 v{self.vRP+j}, v{t}, v{t+4}, vcc")
        c(f"v_cmp_gt_u32 vcc, 128, v0")
        c(f"v_lshrrev_b32 v{t}, 4, v1")
        c(f"v_bfe_u32 v{t+1}, v1, 2, 2")
        c(f"v_cndmask_b32 v{self.vRP+2}, v{t+4}, v{self.vRP+2}, vcc")
        c(f"v_cndmask_b32 v{ra+3}, v{t+4}, v{vL16}, vcc")
        c(f"v_cmp_gt_u32 vcc, 32, v0")
        c(f"v_lshl_add_u32 v{t+2}, v1, 2, s{sRPF}")
        c(f"v_lshl_add_u32 v{t}, v{t}, 3, v{t+1}")
        c(f"v_cndmask_b32 v{ra+4}, v{t+4}, v{t+2}, vcc")
        c(f"v_mul_u32_u24 v{t}, 320, v{t}")
        c(f"v_and_b32 v{t+1}, 3, v1")
        for j in range(3):
            c(f"s_add_u32 s{u}, s{sW}, {4*j}")
            c(f"s_cmp_ge_u32 s{u}, 5")
            c(f"s_cselect_b32 s{sl}, 1, 0")
            c(f"s_mul_i32 s{x}, s{sl}, 5")
            c(f"s_sub_u32 s{u}, s{u}, s{x}")
            c(f"s_mul_i32 s{x}, s{sl}, {56*5}")
            c(f"s_add_u32 s{x}, s{x}, s{u}")
            c(f"s_lshl_b32 s{x}, s{x}, 10")
            c(f"s_add_u32 s{self.sRD+j}, s{sRPD}, s{x}")
            c(f"s_mul_i32 s{sl}, s{sl}, 160")
            c(f"s_and_b32 s{x}, s{u}, 1")
            c(f"s_lshl3_add_u32 s{sl}, s{x}, s{sl}")
            c(f"s_and_b32 s{x}, s{u}, 6")
            c(f"s_lshl_b32 s{x}, s{x}, 5")
            c(f"s_add_u32 s{sl}, s{sl}, s{x}")
            c(f"s_add_u32 s{sl}, s{sl}, {self.RPL}")
            c(f"s_cmp_eq_u32 s{u}, 4")
            c(f"s_cselect_b32 s{y}, 3, 4")
            c(f"v_lshlrev_b32 v{t+2}, s{y}, v{t+1}")
            c(f"v_add3_u32 v{ra+j}, v{t+2}, v{t}, s{sl}")

    RPL1 = 8 * 16384 + 12288
    vRB = 246

    def rp_setup_unit1(self):
        c = self.c
        nr = self.o.get('nr', 3)
        t, rb = self.vTMP, self.vRB
        fb, st, col, x = [sT + i for i in range(4)]
        c(f"s_mov_b32 s{sKV}, s{sW1}")
        c(f"s_mov_b32 s{sKV+1}, s{sW1+1}")
        c(f"s_mov_b32 s{sKV+3}, 0x20000")
        c(f"s_cmp_lt_u32 s2, {64*nr}")
        c(f"s_cselect_b32 s{sKV+2}, {640*3456}, 0")
        c(f"s_cselect_b32 s79, {WS_SIZE}, 0")
        c(f"s_cselect_b64 vcc, s[{sHI}:{sHI+1}], 0")
        c(f"s_and_b32 s{fb}, s2, 15")
        c(f"s_bfe_u32 s{st}, s2, 0x20004")
        c(f"s_mul_i32 s{st}, s{st}, 5")
        c(f"s_lshr_b32 s{x}, s2, 6")
        c(f"s_add_u32 s{st}, s{st}, s{x}")
        c(f"s_add_u32 s{st}, s{st}, {5 - nr}")
        c(f"s_mul_i32 s80, s{fb}, 20")
        c(f"s_add_u32 s80, s80, s{st}")
        c(f"s_mul_i32 s80, s80, 7")
        c(f"s_add_u32 s80, s80, s{sW}")
        c(f"s_lshl_b32 s80, s80, 10")
        c(f"s_add_u32 s80, s80, {W1_OFF}")
        c(f"s_lshl_b32 s{x}, s{fb}, 5")
        c(f"s_add_u32 s{x}, s{x}, s{st}")
        c(f"s_lshl_b32 s{x}, s{x}, 7")
        c(f"s_add_u32 s{x}, s{x}, {FW1_OFF - 128}")
        c(f"s_cmp_eq_u32 s{sW}, 0")
        c(f"s_cselect_b64 vcc, vcc, 0")
        c(f"v_lshl_add_u32 v{t}, v1, 2, s{x}")
        c(f"v_cndmask_b32 v{self.vRA+4}, v{self.vRA+4}, v{t}, vcc")
        c(f"s_mul_i32 s{col}, s{fb}, 216")
        c(f"s_and_b32 s{col}, s{col}, -16")
        c(f"s_mul_i32 s{x}, s{st}, {32*3456}")
        c(f"s_add_u32 s{col}, s{col}, s{x}")
        for j in range(2):
            c(f"v_add_u32 v{t}, {256*j}, v0")
            c(f"v_mul_u32_u24 v{t+1}, 4682, v{t}")
            c(f"v_lshrrev_b32 v{t+1}, 16, v{t+1}")
            c(f"v_mul_u32_u24 v{t+1}, {3456-224}, v{t+1}")
            c(f"v_lshl_add_u32 v{t}, v{t}, 4, s{col}")
            c(f"v_add_u32 v{self.vRP+3+j}, v{t}, v{t+1}")
        c(f"v_cmp_gt_u32 vcc, 192, v0")
        c(f"v_add_u32 v{t}, 4096, v{vL16}")
        c(f"v_lshrrev_b32 v{t+2}, 4, v1")
        c(f"v_cndmask_b32 v{self.vRP+4}, v{t+4}, v{self.vRP+4}, vcc")
        c(f"v_cndmask_b32 v{rb+2}, v{t+4}, v{t}, vcc")
        c(f"v_bfe_u32 v{t+1}, v1, 2, 2")
        c(f"v_lshl_add_u32 v{t}, v{t+2}, 3, v{t+1}")
        c(f"v_mul_u32_u24 v{t}, 224, v{t}")
        c(f"v_and_b32 v{t+1}, 3, v1")
        c(f"s_and_b32 s{x}, s{fb}, 1")
        c(f"s_and_b32 s{col}, s{sW}, 1")
        c(f"s_add_u32 s{x}, s{x}, s{col}")
        c(f"s_and_b32 s{col}, s{sW}, 2")
        c(f"s_lshl_b32 s{col}, s{col}, 5")
        c(f"s_lshl3_add_u32 s{x}, s{x}, s{col}")
        c(f"s_add_u32 s{x}, s{x}, {self.RPL1}")
        c(f"v_add_u32 v{t}, s{x}, v{t}")
        c(f"v_lshl_add_u32 v{rb}, v{t+1}, 4, v{t}")
        c(f"s_cmp_eq_u32 s{sW}, 2")
        c(f"s_cselect_b32 s{x}, 3, 4")
        c(f"s_cselect_b32 s28, 12, 16")
        c(f"v_lshl_add_u32 v{rb+1}, v{t+1}, s{x}, v{t}")

    def rp_unit1_items(self, fr):
        rb, KV = self.vRB, f"s[{sKV}:{sKV+3}]"
        dma = [[I(f"s_add_u32 m0, s{sT+12}, {self.RPL1 + 4096*j}"), I(f"buffer_load_dwordx4 v{self.vRP+3+j}, {KV}, 0 offen {self.o.get('rpld', '')} lds")] for j in range(2)]
        rd = [I(f"ds_read_b64_tr_b16 {vr(fr+4*j+2*q,2)}, v{rb+j} offset:{q*896 + j*128}") for j in range(2) for q in range(2)]
        pad = [I(f"v_and_b32 v{rb}, 15, v1"), I(f"v_cmp_gt_u32 vcc, s28, v{rb}")] + [I(f"v_cndmask_b32 v{fr+4+q}, 0, v{fr+4+q}, vcc") for q in range(4)]
        stv = [[I(f"buffer_store_dwordx4 {vr(fr+4*j,4)}, v{vL16 if j == 0 else rb+2}, {KV}, s80 offen sc1")] for j in range(2)]
        stv[0] = [I(f"s_mov_b64 s[{sKV}:{sKV+1}], s[{sWS}:{sWS+1}]"), I(f"s_mov_b32 s{sKV+2}, s79")] + stv[0]
        return dma, rd, pad, stv

    def rp_unit_items(self, fr):
        ra, RP = self.vRA, f"s[{sRP}:{sRP+3}]"
        dma = [[I(f"s_lshl_b32 s{sT+12}, s{sW}, 10")] * (j == 0) + [I(f"s_add_u32 m0, s{sT+12}, {self.RPL + 4096*j}"),
               I(f"buffer_load_dwordx4 v{self.vRP+j}, {RP}, 0 offen {self.o.get('rpld', '')} lds")] for j in range(3)]
        rd = [I(f"ds_read_b64_tr_b16 {vr(fr[j]+2*q,2)}, v{ra+j} offset:{q*1280}") for j in range(3) for q in range(2)]
        stv = [[I(f"buffer_store_dwordx4 {vr(fr[j],4)}, v{vL16 if j < 2 else ra+3}, {RP}, s{self.sRD+j} offen sc1")] for j in range(3)]
        stv[0] = [I(f"s_mov_b64 s[{sRP}:{sRP+1}], s[{sWS}:{sWS+1}]"), I(f"s_mov_b32 s{sRP+2}, s{sRPT}")] + stv[0]
        flag = [I(f"v_mov_b32 v{vFLG}, s{sTAG}"), I(f"buffer_store_dword v{vFLG}, v{ra+4}, {RP}, 0 offen sc1")]
        return dma, rd, stv, flag

    def rp_w1_params(self, fb, step, col=None):
        c = self.c
        c(f"s_mul_i32 s{sRPD}, s{fb}, 20")
        c(f"s_add_u32 s{sRPD}, s{sRPD}, s{step}")
        c(f"s_mul_i32 s{sRPD}, s{sRPD}, 7168")
        c(f"s_add_u32 s{sRPD}, s{sRPD}, {W1_OFF}")
        c(f"s_lshl_b32 s{sRPF}, s{fb}, 5")
        c(f"s_add_u32 s{sRPF}, s{sRPF}, s{step}")
        c(f"s_lshl_b32 s{sRPF}, s{sRPF}, 7")
        c(f"s_add_u32 s{sRPF}, s{sRPF}, {FW1_OFF}")
        if col is not None:
            c(f"s_mov_b32 s{sRP}, s{sW1}")
            c(f"s_mov_b32 s{sRP+1}, s{sW1+1}")
            c(f"s_mul_i32 s{col}, s{fb}, 216")
            c(f"s_and_b32 s{col}, s{col}, -16")
            c(f"s_mul_i32 s{step}, s{step}, {32*3456}")
            c(f"s_add_u32 s{col}, s{col}, s{step}")

    def rp_w1_offsets(self, col):
        c = self.c
        t = 16
        for j in range(7):
            c(f"v_add_u32 v{t}, {64*j}, v1")
            c(f"v_mul_u32_u24 v{t+1}, 4682, v{t}")
            c(f"v_lshrrev_b32 v{t+1}, 16, v{t+1}")
            c(f"v_mul_u32_u24 v{t+1}, {3456-224}, v{t+1}")
            c(f"v_lshl_add_u32 v{t}, v{t}, 4, s{col}")
            c(f"v_add_u32 v{self.vRP+j}, v{t}, v{t+1}")

    def only_waves(self, hi, items):
        lab = self.label("ow")
        out = [I(f"s_cmp_ge_u32 s{sW}, {3 if hi else 2}"), I(f"s_cbranch_scc{0 if hi else 1} {lab} ; noflush")]
        for i in flat(items):
            i.cond = True
            out.append(i)
        out.append(I(f"{lab}: ; noflush"))
        return out

    RP1_LDS = 6 * 16384

    def rp_dma(self, n, base, wstride, so="0", fl=None, vb=None):
        items = []
        vb = self.vRP if vb is None else vb
        fl = self.o.get('rpld', '') if fl is None else fl
        for j in range(n):
            pre = [I(f"s_mul_i32 s{sT+12}, s{sW}, {wstride}")] if j == 0 else []
            items.append(pre + [I(f"s_add_u32 m0, s{sT+12}, {base + 1024*j}"),
                                I(f"buffer_load_dwordx4 v{vb+j}, s[{sRP}:{sRP+3}], {so} offen {fl} lds")])
        return items

    def rp_addr(self, t, pitch, base, wstride, oddshift, st=sT):
        c = self.c
        c(f"s_mul_i32 s{st+1}, s{sW}, {wstride}")
        if oddshift:
            c(f"s_and_b32 s{st+2}, s{oddshift}, 1")
            c(f"s_lshl3_add_u32 s{st+1}, s{st+2}, s{st+1}")
        c(f"s_add_u32 s{st+1}, s{st+1}, {base}")
        c(f"v_lshrrev_b32 v{t}, 4, v1")
        c(f"v_bfe_u32 v{t+1}, v1, 2, 2")
        c(f"v_lshl_add_u32 v{t}, v{t}, 3, v{t+1}")
        c(f"v_mul_u32_u24 v{t}, {pitch}, v{t}")
        c(f"v_add_u32 v{t}, s{st+1}, v{t}")
        c(f"v_and_b32 v{t+1}, 3, v1")
        c(f"v_lshl_add_u32 v{t+2}, v{t+1}, 4, v{t}")
        c(f"v_lshl_add_u32 v{t+3}, v{t+1}, 3, v{t}")

    def rp_items(self, nt, t, off, fr, R):
        pitch = 160 if nt == 5 else 224
        fb = fr if isinstance(fr, list) else [fr + 4 * tl for tl in range(nt)]
        rd, stv = [], []
        for tl in range(nt):
            for q in range(2):
                if tl < nt - 1:
                    rd.append(I(f"ds_read_b64_tr_b16 {vr(fb[tl]+2*q,2)}, v{t+2} offset:{off + q*4*pitch + (tl>>1)*64 + (tl&1)*8}"))
                else:
                    rd.append(I(f"ds_read_b64_tr_b16 {vr(fb[tl]+2*q,2)}, v{t+3} offset:{off + q*4*pitch + tl*32}"))
        for tl in range(nt):
            g = []
            if tl == 4:
                g.append(I(f"s_add_u32 s{sRPD}, s{sRPD}, 4096"))
            if tl == 6:
                g += [I(f"v_and_b32 v{t}, 15, v1"), I(f"v_cmp_gt_u32 vcc, 12, v{t}")]
                g += [I(f"v_cndmask_b32 v{fr+24+q}, 0, v{fr+24+q}, vcc") for q in range(4)]
            g.append(I(f"buffer_store_dwordx4 {vr(fb[tl],4)}, v{vL16}, {R}, s{sRPD} offen offset:{(tl&3)*1024} sc1"))
            stv.append(g)
        return rd + stv

    aV, aW1L, aWO = 0, 80, 156

    def wo_loads(self):
        items = []
        for i in range(25):
            pre = [I(f"v_add_u32 v250, {'s%d' % sWOO if i == 0 else 8192}, v{vL16 if i == 0 else 250}")] if i % 8 == 0 else []
            items.append(pre + [I(f"global_load_dwordx4 {ar(self.aWO+4*i,4)}, v250, s[{sWS}:{sWS+1}] offset:{(i%8-4)*1024} {self.ld}")])
        return items

    def w1_take(self, n, below=35):
        items = []
        first = True
        while n and self.w1q and self.w1q[0] < below:
            i = self.w1q.pop(0); n -= 1
            pre = []
            if i % 4 == 0:
                pre.append(I(f"v_add_u32 v251, {'s%d' % sW1O if i == 0 else 4096}, v{vL16 if i == 0 else 251}"))
            if (i % 4 == 0 or first) and i < 25:
                pre.insert(0, I(f"s_add_u32 m0, s{sW1M}, {(i >> 2) * 4096}"))
            first = False
            if i < 25:
                items.append(pre + [I(f"global_load_lds_dwordx4 v251, s[{sWS}:{sWS+1}] offset:{(i&3)*1024} {self.ld}")])
            else:
                items.append(pre + [I(f"global_load_dwordx4 {ar(self.aW1L+4*(i-25),4)}, v251, s[{sWS}:{sWS+1}] offset:{(i&3)*1024} {self.ld}")])
        return items

    def w2_take(self, n, below=70):
        items = []
        while n and self.w2q and self.w2q[0] < below:
            i = self.w2q.pop(0); n -= 1
            pre = [I(f"v_add_u32 v234, {'s%d' % sW2B if i == 0 else 8192}, v{vL16 if i == 0 else 234}")] if i % 8 == 0 else []
            items.append(pre + [I(f"global_load_dwordx4 {self.w2reg(i)}, v234, s[{sWS}:{sWS+1}] offset:{(i%8-4)*1024} {self.ld}")])
        return items

    def w2reg(self, i):
        return ar(120 + 4 * i if i < 9 else 4 * (i - 9), 4)

    vO, vK, vQ, vQ4, vZ, vS, vCO, vCD, vP = 32, 64, 124, 132, 136, 146, 178, 194, 210
    vX = 226
    vXL, vRP2 = 226, 230
    vL16m, vVA, vFWA, vFWD, vPOL = 3, 4, 5, 6, 7
    sKO, sVO = sT + 8, sT + 9
    UNITS = sorted([(kt, 0) for kt in range(9)] + [(kt, 1) for kt in range(1, 10)])

    def v_const(self):
        c = self.c
        for pi in range(5):
            c(f"s_cmp_ge_u32 s{sU}, {4-pi}")
            c(f"s_cselect_b32 s81, 0x3f803f80, 0")
            c(f"v_mov_b32 v63, s81")
            for j in range(16):
                c(f"v_accvgpr_write_b32 a{self.aV+16*pi+j}, v63")

    def attn_init(self):
        c = self.c
        t = 8
        c(f"s_mov_b32 s{sVM}, 0x000fffff")
        c(f"s_mov_b32 s{sVM+1}, 0x000fffff")
        c(f"s_mov_b32 s{sKV}, s{sWS}")
        c(f"s_mov_b32 s{sKV+1}, s{sWS+1}")
        c(f"s_mov_b32 s{sKV+3}, 0x20000")
        c(f"v_and_b32 v{self.vL16m}, 0x1f0, v{vL16}")
        c(f"v_lshrrev_b32 v{t}, 1, v1")
        c(f"v_xor_b32 v{t}, v{t}, v1")
        c(f"v_and_b32 v{t}, 4, v{t}")
        c(f"v_mul_u32_u24 v{t}, 48, v{t}")
        c(f"v_xor_b32 v{t}, v{t}, v{self.vL16m}")
        c(f"v_lshrrev_b32 v{t+1}, 5, v1")
        c(f"v_mul_u32_u24 v{t+2}, 10240, v{t+1}")
        c(f"v_add_u32 v{self.vVA}, v{t}, v{t+2}")
        c(f"v_and_b32 v{t}, 31, v1")
        c(f"v_lshlrev_b32 v{t+1}, 2, v{t+1}")
        c(f"v_sub_u32 v{t}, v{t}, v{t+1}")
        c(f"v_mov_b32 v{t+2}, 0xff800000")
        for r in range(0, 16, 4):
            for i in range(4):
                c(f"v_cmp_gt_i32 s[{sT+2*i}:{sT+2*i+1}], {8*(r>>2) + i}, v{t}")
            for i in range(4):
                c(f"v_cndmask_b32 v{self.vCD+r+i}, 0, v{t+2}, s[{sT+2*i}:{sT+2*i+1}]")
            for i in range(4):
                c(f"v_xor_b32 v{self.vCO+r+i}, v{self.vCD+r+i}, v{t+2}")
        c(f"s_lshl_b32 s{sT+2}, s{sU if self.PB == 4 else sRB}, {10 if self.PB == 4 else 11}")
        c(f"s_add_u32 s{sT+2}, s{sT+2}, {FX_OFF - FL_OFF}")
        c(f"v_and_b32 v{t}, {7 if self.PB == 4 else 15}, v1")
        c(f"v_lshl_add_u32 v{self.vFWA}, v{t}, 7, s{sT+2}")
        c(f"s_mul_i32 s{sT}, s{sK8}, {7*128}")
        c(f"s_lshr_b32 s{sT+1}, s{sNB}, 1")
        c(f"s_lshl_b32 s{sT+1}, s{sT+1}, 13")
        c(f"s_add_u32 s{sT}, s{sT}, s{sT+1}")
        c(f"s_add_u32 s{sT}, s{sT}, {FW2_OFF - FL_OFF}")
        c(f"v_min_u32 v{t}, 6, v{t}")
        c(f"v_lshl_add_u32 v{t+1}, v{t}, 7, s{sT}")
        c(f"v_cndmask_b32 v{self.vFWA}, v{self.vFWA}, v{t+1}, s[{sHI}:{sHI+1}]")
        c(f"s_mul_i32 s{sT}, s{sW}, 640")
        c(f"s_lshl_b32 s{sT+1}, s{sFB}, 12")
        c(f"s_add_u32 s{sT}, s{sT}, s{sT+1}")
        c(f"s_add_u32 s{sT}, s{sT}, {FW1_OFF - FL_OFF}")
        c(f"v_cmp_lt_u32 vcc, 47, v1")
        c(f"v_min_u32 v{t}, 4, v{t}")
        c(f"v_lshl_add_u32 v{t}, v{t}, 7, s{sT}")
        c(f"v_cndmask_b32 v{self.vFWA}, v{self.vFWA}, v{t}, vcc")
        c(f"s_mul_i32 s{sT}, s{sNB}, 80")
        c(f"s_add_u32 s{sT+1}, s{sT}, 79")
        c(f"s_lshr_b32 s{sT}, s{sT}, 7")
        c(f"s_lshr_b32 s{sT+1}, s{sT+1}, 7")
        c(f"s_sub_u32 s{sT+1}, s{sT+1}, s{sT}")
        c(f"v_lshrrev_b32 v{t}, 2, v1")
        c(f"v_min_u32 v{t}, 2, v{t}")
        c(f"v_bfe_u32 v{t+1}, v1, 1, 1")
        c(f"v_add_u32 v{t+1}, 1, v{t+1}")
        c(f"v_cmp_lt_u32 vcc, 11, v1")
        c(f"v_and_b32 v{t+2}, s{sT+1}, v1")
        c(f"v_cndmask_b32 v{t+1}, v{t+1}, 0, vcc")
        c(f"v_mad_u32_u24 v{t+1}, v{t+1}, 5, v{t+2}")
        c(f"v_add_u32 v{t+1}, s{sT}, v{t+1}")
        c(f"s_sub_u32 s{sT}, s{sRB}, 2")
        c(f"v_add_u32 v{t}, s{sT}, v{t}")
        c(f"v_max_i32 v{t}, 0, v{t}")
        c(f"v_lshl_add_u32 v{t}, v{t}, 4, v{t+1}")
        c(f"v_lshlrev_b32 v{t}, 7, v{t}")
        c(f"v_add_u32 v{self.vPOL}, {F1_OFF - FL_OFF}, v{t}")
        for j in range(3):
            c(f"v_add_u32 v{t}, {64*j}, v1")
            c(f"v_mul_u32_u24 v{t+1}, 6554, v{t}")
            c(f"v_lshrrev_b32 v{t+1}, 16, v{t+1}")
            c(f"v_mul_u32_u24 v{t+1}, {1280-160}, v{t+1}")
            c(f"v_add_u32 v{self.vXL+j}, v{vL16}, v{t+1}")
        c(f"v_mov_b32 v{t}, {OOB}")
        c(f"v_cndmask_b32 v{self.vXL+2}, v{self.vXL+2}, v{t}, s[{sHI}:{sHI+1}]")
        for j in range(1, 4):
            c(f"v_add_u32 v{t+j}, {j*20480}, v{self.vVA}")
        c(f"v_and_b32 v{t+4}, 15, v1")
        c(f"v_bfe_u32 v{t}, v1, 4, 1")
        c(f"v_lshlrev_b32 v{t+4}, 4, v{t+4}")
        c(f"v_lshl_add_u32 v{t+4}, v{t}, 9, v{t+4}")
        c(f"v_lshrrev_b32 v{t}, 5, v1")
        c(f"v_lshl_add_u32 v{t+4}, v{t}, 8, v{t+4}")

    sKVO = 64

    def attn_kv_prep(self):
        c = self.c
        for pi in range(5):
            b = self.sKVO + 3 * pi
            c(f"s_sub_u32 s{sT}, s{sU}, {4-pi}")
            c(f"s_cselect_b32 s{b+2}, 0, {WS_SIZE}")
            c(f"s_cselect_b32 s{sT}, 0, s{sT}")
            c(f"s_mul_i32 s{b+1}, s{sT}, 81920")
            c(f"s_lshl1_add_u32 s{b}, s{b+1}, s{sT+6}")
            c(f"s_add_u32 s{b+1}, s{b+1}, s{sT+7}")

    def attn_kv_loads(self, pi):
        ld = self.ld
        k = self.vK + 12 * pi
        R = f"s[{sKV}:{sKV+3}]"
        b = self.sKVO + 3 * pi
        K = [[I(f"s_mov_b32 s{sKV+2}, s{b+2}"), I(f"buffer_load_dwordx4 {vr(k,4)}, v{vL16}, {R}, s{b} offen {ld}")],
             [I(f"buffer_load_dwordx4 {vr(k+4,4)}, v{vL16}, {R}, s{b} offen offset:1024 {ld}")],
             [I(f"buffer_load_dwordx4 {vr(k+8,4)}, v{self.vL16m}, {R}, s{b} offen offset:2048 {ld}")]]
        va = [self.vVA, 9, 10, 11]
        L = [I(f"buffer_load_dwordx4 {ar(self.aV+16*pi+4*q,4)}, v{va[q]}, {R}, s{b+1} offen {ld}") for q in range(4)]
        on, off = (lambda: I(f"s_mov_b64 exec, s[{sVM}:{sVM+1}]")), (lambda: I("s_mov_b64 exec, -1"))
        return K, [[on(), q, off()] for q in L]

    def attn_qk(self, u, dst, units=None):
        kt, T = (units or self.UNITS)[u]
        k = self.vK + 12 * (kt >> 1)
        cin = '0'
        if kt == T:
            cin = vr(self.vCO, 16)
        elif kt == 8 + T:
            cin = vr(self.vCD, 16)
        d = vr(dst, 16)
        z = self.vZ + 4 * T + (0 if kt & 1 else 2)
        return [I(f"v_mfma_f32_32x32x16_bf16 {d}, {vr(k+4*(kt&1),4)}, {vr(self.vQ+4*T,4)}, {cin}"),
                I(f"v_mfma_f32_32x32x16_bf16 {d}, {vr(k+8,4)}, {vr(z,4)}, {d}")]

    def attn_loop(self, fill, swaps, order=(0, 1, 2, 3, 4)):
        c = self.c
        UN = [x for pi in order for x in self.UNITS if x[0] >> 1 == pi]
        n = len(UN)
        S = lambda u: self.vS + 16 * (u & 1)
        P = lambda u: self.vP + 8 * (u & 1)
        seen = set()

        def qk(u):
            kt = UN[u][0]
            pre = []
            if swaps and (kt >> 1) not in seen:
                seen.add(kt >> 1)
                k = self.vK + 12 * (kt >> 1)
                pre = [I(f"v_swap_b32 v{k+2}, v{k+4}"), I(f"v_swap_b32 v{k+3}, v{k+5}")]
            return pre, self.attn_qk(u, S(u), UN)

        def pv(u, s):
            kt, T = UN[u]
            d = vr(self.vO + 16 * T, 16)
            first = (s == 0 and all(x[1] != T for x in UN[:u]))
            return I(f"v_mfma_f32_32x32x16_bf16 {d}, {ar(self.aV+8*kt+4*s,4)}, {vr(P(u)+4*s,4)}, {0 if first else d}")

        ex = lambda u, g: [I(f"v_exp_f32 v{S(u)+4*g+i}, v{S(u)+4*g+i}") for i in range(4)]
        cv = lambda u, g: [I(f"v_cvt_pk_bf16_f32 v{P(u)+2*g+i}, v{S(u)+4*g+2*i}, v{S(u)+4*g+2*i+1}") for i in range(2)]
        slot = [0]

        def mf(m):
            items = [flat(x) for x in fill.get(slot[0], [])]
            slot[0] += 1
            if items:
                f = items[0]
                k = next((j for j, i in enumerate(f) if i.kind in ('vmem', 'ds')), 0)
                c.add(f[:k]); c.add(m); c.add(f[k:]); c.add(items[1:])
            else:
                c.add(m)
        pre, m = qk(0)
        c.add(pre); c.add(m)
        if fill:
            self.stamp("qk0", "attn")
        c.add(fill.get(-1, []))
        for u in range(n + 1):
            pre, m = qk(u + 1) if u + 1 < n else ([], None)
            if u > 0: mf(pv(u - 1, 0))
            if u > 0: c.add(cv(u - 1, 3))
            c.add(pre)
            if u < n: c.add(ex(u, 0))
            if m: mf(m[0])
            if u < n: c.add(ex(u, 1)); c.add(cv(u, 0))
            if m: mf(m[1])
            if u < n: c.add(ex(u, 2)); c.add(cv(u, 1))
            if u > 0: mf(pv(u - 1, 1))
            if u < n: c.add(ex(u, 3)); c.add(cv(u, 2))
            if fill:
                self.stamp(f"u{u}", "attn")
        assert slot[0] == 70

    def same_check(self):
        c = self.c
        self.flag_check(self.vFWD, self.vFWA, span=True)
        c(f"s_add_u32 s{sT+1}, s{sTAG}, s{sXCC}")
        c(f"v_cmp_ne_u32 vcc, s{sT+1}, v{self.vFWD}")
        c(f"s_andn2_b64 vcc, vcc, s[{sHI}:{sHI+1}]")
        c(f"s_cselect_b32 s{sSAME}, 0, 1")
        if self.o.get('nosame'):
            c(f"s_mov_b32 s{sSAME}, 0")

    def attn_prep(self):
        c = self.c
        c(f"s_lshl_b32 s{sT}, s{sU}, 7")
        c(f"s_add_u32 s{sT}, s{sT}, {F2_OFF - FL_OFF}")
        c(f"v_and_b32 v14, 1, v1")
        c(f"v_mul_u32_u24 v14, {F4_OFF - F2_OFF}, v14")
        c(f"v_add_u32 v14, s{sT}, v14")
        c(f"s_lshl_b32 s{sT}, s{sU}, 5")
        c(f"s_add_u32 s{sT}, s{sT}, s{sHEAD}")
        c(f"s_lshl_b32 s{sT}, s{sT}, 7")
        c(f"s_add_u32 s{sT}, s{sT}, {F5_OFF - FL_OFF}")
        c(f"v_writelane_b32 v14, s{sT}, 2")
        c(f"s_lshl_b32 s{sT+1}, s{sTP}, 11")
        c(f"s_add_u32 s{sT+1}, s{sT+1}, {F3_OFF - FL_OFF}")
        c(f"v_and_b32 v15, 15, v1")
        c(f"v_lshl_add_u32 v15, v15, 7, s{sT+1}")
        if self.o.get('s3wg', 1):
            del c.ins[-4:]
            self.f3_lanes(15, sT + 1)
        if self.o.get('f3pf', 1):
            c(f"v_cndmask_b32 v14, v14, v15, s[{sHI}:{sHI+1}]")
        c(f"s_mul_i32 s{sT+5}, s{sHEAD}, 2560")
        c(f"s_add_u32 s{sT+6}, s{sT+5}, {QK_OFF + 160*512}")
        c(f"s_mul_i32 s{sT+7}, s{sHEAD}, 320")
        c(f"s_add_u32 s{sT+7}, s{sT+7}, {V_OFF}")
        c(f"s_mul_i32 s{sT+4}, s{sU}, 163840")
        c(f"s_add_u32 s{sT+5}, s{sT+5}, s{sT+4}")
        c(f"s_lshl2_add_u32 s{sT+3}, s{sU}, s{sW}")
        c(f"s_mul_i32 s{sT+3}, s{sT+3}, {16*1280}")
        c(f"s_mul_i32 s{sT+2}, s{sNB}, 160")
        c(f"s_add_u32 s{sT+3}, s{sT+3}, s{sT+2}")
        self.attn_kv_prep()

    def attention(self):
        c, o = self.c, self.o
        ld = self.ld
        t = 8
        for r in (0, 1, 4, 5, 8, 9):
            c(f"v_mov_b32 v{self.vZ+r}, 0")
        lab = self.label("w1")
        c(f"s_cmp_lg_u32 s{sW}, 2")
        c(f"s_cbranch_scc1 {lab}")
        c.cond(True)
        self.poll(self.vPOL, sleep=o.get('s1sleep', 0))
        c.cond(False)
        c(f"{lab}:")
        orders = [(3, 4, 2, 1, 0), (2, 3, 1, 4, 0), (1, 2, 3, 0, 4), (0, 1, 2, 3, 4)] if o.get('avar', 1) else [(0, 1, 2, 3, 4)]
        labs = [self.label("av") for _ in orders]
        c(f"s_and_b32 s{sT}, s{sU}, 3")
        for r in range(1, len(orders)):
            c(f"s_cmp_eq_u32 s{sT}, {r}")
            c(f"s_cbranch_scc1 {labs[r]}")
        c(".save av")
        q0 = (list(self.w1q), self.woq)
        for r, order in enumerate(orders):
            c(f"{labs[r]}:")
            c(".restore av")
            self.w1q, self.woq = list(q0[0]), copy_ins(q0[1])
            self.attn_body(order)
            if r + 1 < len(orders):
                c("s_branch Lattn_done")
        c("Lattn_done:")
        self.stamp("attn")
        lo, hi = f2u(2.0 ** -40), f2u(2.0 ** 40)
        O = self.vO
        c(f"v_subrev_u32 v{t}, {hex(lo)}, v{O+12}")
        c(f"v_subrev_u32 v{t+1}, {hex(lo)}, v{O+28}")
        c(f"v_max_u32 v{t}, v{t}, v{t+1}")
        c(f"v_cmp_lt_u32 vcc, {hex(hi-lo)}, v{t}")
        if o.get('forceslow'):
            c("s_mov_b64 vcc, -1")
        c(f"s_cbranch_vccnz Lattn_slow")
        c("Lattn_fin:")
        self.attn_slow()
        self.attn_epilogue('sc1')

    def attn_body(self, order):
        c, o = self.c, self.o
        ld = self.ld
        t = 8
        kv = [self.attn_kv_loads(pi) for pi in order]
        c.add(kv[0][0][0][:-1])
        if self.rp_late:
            c("s_waitcnt vmcnt(0)")
        c("s_barrier")
        self.stamp("s1", "main attn")
        q = self.vQ
        c(f"buffer_load_dwordx4 {vr(q,4)}, v{vL16}, {WSR}, s{sT+5} offen {ld}")
        c(f"buffer_load_dwordx4 {vr(q+4,4)}, v{vL16}, {WSR}, s{sT+5} offen offset:1024 {ld}")
        c.add(kv[0][0][0][-1]); c.add(kv[0][0][1])
        c(f"buffer_load_dwordx4 {vr(self.vQ4,4)}, v{self.vL16m}, {WSR}, s{sT+5} offen offset:2048 {ld}")
        c.add(kv[0][0][2])
        rest = kv[0][1] + kv[1][0] + kv[1][1] + kv[2][0] + kv[2][1] + kv[3][0] + kv[3][1] + kv[4][0] + kv[4][1]
        n0 = o.get('kv0', 7)
        c.add(rest[:n0]); rest = rest[n0:]
        if self.rp_late:
            self.emit_rp_flag()
        if o.get('x_kv'):
            c("s_waitcnt vmcnt(0)"); self.stamp("kv13")
            c.add(rest); rest = []
            c("s_waitcnt vmcnt(0)"); self.stamp("kvall")
            c.add(self.w1_take(21, 21))
            c("s_waitcnt vmcnt(0)"); self.stamp("w1")
        fl = I(f"buffer_load_dword v{self.vFWD}, v{self.vFWA}, {WSR}, s{sFLB} offen sc1")
        XR = f"s[{sX}:{sX+3}]"
        KV = f"s[{sKV}:{sKV+3}]"
        xl = [[I(f"buffer_load_dwordx4 v{self.vXL+j}, {XR}, s{sT+3} offen offset:{j*1024} lds")] for j in range(3)]
        self.h_x = xl[2][0]
        xl[0] = [I(f"s_add_u32 m0, s{sW1M}, {25600 + 7168}")] + xl[0]
        fill = {}
        n1 = o.get('kv1', 2)
        fill[-1] = rest[:n1]; rest = rest[n1:]

        def place(items, g0, step):
            g = g0
            for it in items:
                assert g < 70
                fill.setdefault(int(g), []).append(it); g += step
            return int(g + 0.999)
        g = place(rest, 0, o.get('kvstep', 13) / 10)
        g = place([I(f"buffer_load_dword v15, v14, {WSR}, s{sFLB} offen sc1")] + xl + self.woq, g, 1)
        place([fl], next(z for z in range(o.get('flg', 8), 70) if z not in fill), 1)
        g = place([self.sub(self.same_check)], max(g, o.get('w1g', 44)), 1)
        w1 = self.w1_take(o.get('w1a', 12))
        place(w1, g, (o.get('w1e', 66) - g) / max(len(w1), 1))
        c(f"v_swap_b32 v{q+2}, v{q+4}")
        c(f"v_swap_b32 v{q+3}, v{q+5}")
        for T in range(2):
            for i in range(2):
                c(f"v_cndmask_b32 v{self.vZ+2+4*T+i}, v{self.vQ4+2*T+i}, 0, s[{sHI}:{sHI+1}]")
        self.attn_loop(fill, True, order)

    def attn_epilogue(self, st):
        c, o = self.c, self.o
        t, O, ob = 8, self.vO, 16
        c(f"v_rcp_f32 v{t}, v{O+12}")
        c(f"v_rcp_f32 v{t+1}, v{O+28}")
        for T in range(2):
            sel = "op_sel_hi:[1,0]" if T == 0 else "op_sel:[0,1] op_sel_hi:[1,1]"
            for i in range(6):
                r = O + 16 * T + 2 * i
                c(f"v_pk_mul_f32 {vr(r,2)}, {vr(r,2)}, {vr(t,2)} {sel}")
            for i in range(6):
                r = O + 16 * T + 2 * i
                d = ob + 4 * T + i if i < 4 else ob + 8 + 2 * T + (i - 4)
                c(f"v_cvt_pk_bf16_f32 v{d}, v{r}, v{r+1}")
        def stores(k, st):
            for T in range(2):
                k(f"buffer_store_dwordx4 {vr(ob+4*T,4)}, v{t+4}, {WSR}, s{sT+5} offen offset:{T*1024} {st}")
            k(f"s_not_b64 exec, s[{sHI}:{sHI+1}]")
            return k(f"buffer_store_dwordx4 {vr(ob+8,4)}, v{vL16}, {WSR}, s{sT+5} offen offset:2048 {st}")
        Lf, Lb = self.label("far"), self.label("near")
        c(f"s_cmp_eq_u32 s{sSAME}, 0")
        c(f"s_cbranch_scc1 {Lf} ; noflush")
        h = stores(c, o.get('onear', ''))
        c(f"{Lb}: ; noflush")
        c("s_mov_b64 exec, -1")
        c("s_nop 0")
        self.ool(f"{Lf}:")
        stores(self.ool, 'sc1')
        self.ool(f"s_branch {Lb}")
        c.add(self.w1_take(o.get('w1b', 0)))
        self.p3_prep()
        c.wait(h)
        self.stamp("odrain")
        self.flag_store_near(sT + 13)

    def attn_slow(self):
        old, self.c = self.c, self.ool
        c = self.c
        t = 16
        c("Lattn_slow:")
        c("s_waitcnt vmcnt(0) lgkmcnt(0)")
        c(f"v_mov_b32 v{t}, 0xff800000")
        c(f"v_mov_b32 v{t+1}, 0xff800000")
        for pi in range(5):
            lab = self.label("sl")
            c(f"s_cmp_ge_u32 s{sU}, {4-pi}")
            c(f"s_cselect_b32 s{sT+12}, 0x3f803f80, 0")
            c(f"v_mov_b32 v{t+2}, s{sT+12}")
            for i in range(4):
                r = self.vK + 12 * pi + 8 + i
                c(f"v_cndmask_b32 v{r}, v{r}, v{t+2}, s[{sHI}:{sHI+1}]")
            c(f"s_cbranch_scc0 {lab}")
            for u, (kt, T) in enumerate(self.UNITS):
                if kt >> 1 != pi:
                    continue
                c.add(self.attn_qk(u, self.vS))
                for i in range(8):
                    c(f"v_max3_f32 v{t+T}, v{self.vS+2*i}, v{self.vS+2*i+1}, v{t+T}")
            c(f"{lab}:")
        for T in range(2):
            c(f"v_mov_b32 v{t+2}, v{t+T}")
            c(f"v_permlane32_swap_b32 v{t+2}, v{t+T}")
            c(f"v_max_f32 v{t+2}, v{t+2}, v{t+T}")
            c(f"v_xor_b32 v{t+2}, 0x80000000, v{t+2}")
            c(f"v_and_b32 v{t+3}, s{sMASK}, v{t+2}")
            c(f"v_sub_f32 v{t+2}, v{t+2}, v{t+3}")
            c(f"v_and_b32 v{t+4}, s{sMASK}, v{t+2}")
            c(f"v_sub_f32 v{t+2}, v{t+2}, v{t+4}")
            c(f"v_lshrrev_b32 v{t+3}, 16, v{t+3}")
            c(f"v_or_b32 v{t+3}, v{t+3}, v{t+4}")
            c(f"v_lshrrev_b32 v{t+2}, 16, v{t+2}")
            z = self.vZ + 2 + 4 * T
            c(f"v_cndmask_b32 v{z}, v{z}, v{t+3}, s[{sHI}:{sHI+1}]")
            c(f"v_cndmask_b32 v{z+1}, v{z+1}, v{t+2}, s[{sHI}:{sHI+1}]")
        self.attn_loop({}, False)
        c("s_branch Lattn_fin")
        self.c = old

    RED = 143360
    vRES = 236
    CORD = (1, 2, 3, 0)
    p3A, p3L, p3AC, p3PB, p3SUM = 64, 128, 144, 184, 204
    p3PR = (184, 64, 84)

    def p3_prep(self):
        c = self.c
        t = 32
        c(f"s_lshl_b32 s{sT+13}, s{sU}, 7")
        c(f"s_lshl_b32 s{sT+3}, s{sW}, 5")
        c(f"s_add_u32 s{sT+3}, s{sT+3}, s{sT+13}")
        c(f"s_add_u32 s{sT+3}, s{sT+3}, {F2_OFF - FL_OFF}")
        c(f"s_lshl2_add_u32 s{sT+13}, s{sHEAD}, s{sT+13}")
        c(f"s_add_u32 s{sT+13}, s{sT+13}, {F2_OFF}")
        c(f"v_and_b32 v{self.vPOL}, 7, v1")
        c(f"v_lshl_add_u32 v{self.vPOL}, v{self.vPOL}, 2, s{sT+3}")
        c(f"s_mul_i32 s{sT}, s{sU}, 163840")
        c(f"s_mul_i32 s{sT+6}, s{sW}, 20480")
        c(f"s_add_u32 s{sT}, s{sT}, s{sT+6}")
        for i, cc in enumerate(self.CORD):
            c(f"s_xor_b32 s{sT+5}, s{sW}, {cc}")
            c(f"s_lshl_b32 s{sT+8+i}, s{sT+5}, 9")
            c(f"s_add_u32 s{sT+8+i}, s{sT+8+i}, s{sT}")
            c(f"s_mul_i32 s{sT+5}, s{sT+5}, {5120 if i in (0, 3) else 35840}")
            c(f"s_add_u32 s{sT+5}, s{sT+5}, {self.RED if i in (0, 3) else 25600 + (i-1)*5120}")
            c(f"v_add_u32 v{t+2+i}, s{sT+5}, v{vL16}")
        c(f"v_lshrrev_b32 v{t}, 5, v1")
        c(f"v_lshl_add_u32 v{t+13}, v{t}, 11, v{vL16}")
        for j in range(1, 4):
            c(f"v_add_u32 v{t+13+j}, {j*5120}, v{t+13}")
        c(f"s_and_b32 s{sT+7}, s{sW}, 1")
        c(f"s_lshl_b32 s{sT+7}, s{sT+7}, 8")
        c(f"s_xor_b32 s{sT+6}, s{sT+7}, 256")
        c(f"s_add_u32 s{sT+6}, s{sT+6}, s{sT}")
        c(f"s_add_u32 s{sT+7}, s{sT+7}, s{sT}")
        c(f"s_lshr_b32 s{sT+5}, s{sW}, 1")
        c(f"s_cselect_b64 s[{sT+14}:{sT+15}], -1, 0")
        c(f"s_mul_i32 s{sT+5}, s{sT+5}, 2560")
        c(f"s_sub_u32 s{sT+4}, 2560, s{sT+5}")
        c(f"v_lshrrev_b32 v{t}, 4, v1")
        c(f"v_mul_u32_u24 v{t}, {5120-256}, v{t}")
        c(f"v_add3_u32 v{t+1}, v{t}, v{vL16}, s{sT+4}")
        c(f"v_add3_u32 v{t}, v{t}, v{vL16}, s{sT+5}")
        c(f"s_add_u32 s{sT+5}, s{sW1M}, 25600")
        c(f"v_add_u32 v{t+12}, s{sT+5}, v{vL16}")
        c(f"v_and_b32 v{t+6}, 15, v1")
        c(f"v_mul_u32_u24 v{t+6}, 160, v{t+6}")
        c(f"v_add_u32 v{t+6}, s{sT+5}, v{t+6}")
        c(f"v_lshrrev_b32 v{t+7}, 4, v1")
        c(f"v_lshl_add_u32 v{t+8}, v{t+7}, 4, v{t+6}")
        c(f"v_lshl_add_u32 v{t+7}, v{t+7}, 3, v{t+6}")
        c(f"ds_read_b128 {vr(self.vX,4)}, v{t+8} offset:7168", waits=[self.h_x])
        c(f"ds_read_b128 {vr(self.vX+4,4)}, v{t+8} offset:{7168+64}")
        c(f"ds_read_b64 {vr(self.vX+8,2)}, v{t+7} offset:{7168+128}")
        for j in range(10):
            c(f"v_lshlrev_b32 v{self.p3SUM+2*j}, 16, v{self.vX+j}")
            c(f"v_and_b32 v{self.p3SUM+2*j+1}, s{sMASK}, v{self.vX+j}")

    def phase3(self):
        c, o = self.c, self.o
        ld = o.get('la', 'sc1')
        vA, vL, vAC, vPB, vSUM = self.p3A, self.p3L, self.p3AC, self.p3PB, self.p3SUM
        t = 32
        c(f"s_lshl2_add_u32 s{sT}, s{sU}, s{sW}")
        c(f"s_mul_i32 s{sT+1}, s{sT}, 20480")
        c(f"s_mul_i32 s{sT+2}, s{sNB}, 2560")
        c(f"s_add_u32 s{sT+1}, s{sT+1}, s{sT+2}")
        c(f"s_add_u32 s{sT+1}, s{sT+1}, {H_OFF}")
        c(f"s_lshl3_add_u32 s{sT+2}, s{sT}, s{sNB}")
        c(f"s_lshl_b32 s{sT+2}, s{sT+2}, 7")
        c(f"s_add_u32 s{sT+13}, s{sT+2}, {F3_OFF}")
        if o.get('s3wg', 1):
            c(f"s_lshl3_add_u32 s{sT+13}, s{sU}, s{sNB}")
            c(f"s_lshl_b32 s{sT+13}, s{sT+13}, 7")
            c(f"s_add_u32 s{sT+13}, s{sT+13}, {F3_OFF}")
        c(f"s_add_u32 s{sT+2}, s{sT+2}, {HST_OFF}")
        c(f"v_and_b32 v{t+6}, 15, v1")
        c(f"v_lshrrev_b32 v{t+7}, 5, v1")
        c(f"v_lshl_add_u32 v{t+6}, v{t+7}, 4, v{t+6}")
        c(f"v_lshlrev_b32 v{t+7}, 4, v{t+6}")
        c(f"v_lshlrev_b32 v{t+6}, 2, v{t+6}")
        c(f"s_mov_b32 s{sT+4}, 0xffff")
        c(f"s_mov_b32 s{sT+5}, 0xffff")
        c("s_barrier")
        self.poll(self.vPOL)
        self.stamp("s2", "main p3")
        L = []
        for i in range(4):
            for s in range(4):
                L.append(I(f"buffer_load_dwordx4 {vr(vA+16*i+4*s,4)}, v{t+13+s}, {WSR}, s{sT+8+i} offen {ld}"))
            if i < 2:
                L.append(I(f"buffer_load_dwordx4 {vr(vL+8*i,4)}, v{t}, {WSR}, s{sT+6+i} offen offset:2048 {ld}"))
                L.append(I(f"buffer_load_dwordx4 {vr(vL+8*i+4,4)}, v{t+1}, {WSR}, s{sT+6+i} offen offset:2048 {ld}"))
        n0 = o.get('p3n0', 8)
        c.add(L[:n0])
        L = L[n0:] + self.w1_take(35)

        def swaps(g):
            q = vL + 8 * g
            return [I(f"s_not_b64 exec, s[{sT+14}:{sT+15}]"), I(f"v_swap_b32 v{q+2}, v{q+4}"), I(f"v_swap_b32 v{q+3}, v{q+5}"),
                    I(f"s_mov_b64 exec, s[{sT+14}:{sT+15}]"), I(f"v_swap_b32 v{q}, v{q+6}"), I(f"v_swap_b32 v{q+1}, v{q+7}"),
                    I("s_mov_b64 exec, -1")]
        left = {0: vL, 1: vL + 12, 2: vL + 4, 3: vL + 8}
        lper = o.get('p3lp', 3)
        for i in range(4):
            ac = vAC + 20 * (i & 1) if i < 3 else vSUM
            M = []
            for s in range(5):
                b = vA + 16 * i + 4 * s if s < 4 else left[i]
                for tl in range(5):
                    d = vr(ac + 4 * tl, 4)
                    M.append(I(f"v_mfma_f32_16x16x32_bf16 {d}, {ar(self.aWO+4*(5*s+tl),4)}, {vr(b,4)}, {0 if s == 0 and i < 3 else d}"))
            F = [[] for _ in range(25)]
            if i < 2:
                F[17] += swaps(i)
            if i > 0:
                pa = vAC + 20 * ((i - 1) & 1)
                for tl in range(5):
                    F[(3 + 2 * tl) if i == 3 else (3 + 4 * tl)] += [I(f"ds_write_b128 v{t+2+i-1}, {vr(pa+4*tl,4)} offset:{tl*1024}")]
            if i == 3:
                F[14] += [I("s_waitcnt lgkmcnt(0)"), I("s_barrier")]
                for r in range(3):
                    for tl in range(5):
                        src = f"v{t+5} offset:{tl*1024}" if r == 0 else f"v{t+12} offset:{(r-1)*5120 + tl*1024}"
                        F[15 + (5 * r + tl) * 2 // 3] += [I(f"ds_read_b128 {vr(self.p3PR[r]+4*tl,4)}, {src}")]
            for k in range(25):
                c.add(M[k])
                if L and (25 * i + k) % lper == 0:
                    c.add(L.pop(0))
                c.add(F[k])
                if k in (0, 8, 12, 24):
                    self.stamp(f"i{i}k{k}", "p3")
        c.add(L)
        self.stamp("p3")
        self.p3_epilogue('sc1')

    def p3_epilogue(self, st):
        c, o = self.c, self.o
        vAC, vPB, vSUM = self.p3AC, self.p3PB, self.p3SUM
        t = 32
        ac = vAC + 20
        rs = self.vRES
        for j in range(10):
            c(f"v_pk_add_f32 {vr(self.p3PR[1]+2*j,2)}, {vr(self.p3PR[0]+2*j,2)}, {vr(self.p3PR[1]+2*j,2)}")
        for P in range(3):
            for src in (self.p3PR[1], self.p3PR[2]):
                for j in range(4 * P, min(4 * P + 4, 10)):
                    c(f"v_pk_add_f32 {vr(vSUM+2*j,2)}, {vr(vSUM+2*j,2)}, {vr(src+2*j,2)}")
            for j in range(4 * P, min(4 * P + 4, 10)):
                c(f"v_cvt_pk_bf16_f32 v{rs+j}, v{vSUM+2*j}, v{vSUM+2*j+1}")
            if P < 2:
                c(f"buffer_store_dwordx4 {vr(rs+4*P,4)}, v{vL16}, {WSR}, s{sT+1} offen offset:{P*1024} {st}")
        for j in range(4):
            c(f"v_mov_b32 v{vPB+j}, v{rs+8+(j&1)}")
        a1, a2 = t + 8, t + 10
        c(f"v_pk_add_f32 {vr(a1,2)}, {vr(vSUM,2)}, {vr(vSUM+2,2)}")
        c(f"v_pk_mul_f32 {vr(a2,2)}, {vr(vSUM,2)}, {vr(vSUM,2)}")
        c(f"v_permlane16_swap_b32 v{vPB}, v{vPB+2}")
        c(f"v_permlane16_swap_b32 v{vPB+1}, v{vPB+3}")
        c(f"s_mov_b64 exec, s[{sT+4}:{sT+5}]")
        c(f"buffer_store_dwordx4 {vr(vPB,4)}, v{t+7}, {WSR}, s{sT+1} offen offset:2048 {st}")
        c("s_mov_b64 exec, -1")
        for j in range(1, 10):
            if j > 1:
                c(f"v_pk_add_f32 {vr(a1,2)}, {vr(a1,2)}, {vr(vSUM+2*j,2)}")
            c(f"v_pk_fma_f32 {vr(a2,2)}, {vr(vSUM+2*j,2)}, {vr(vSUM+2*j,2)}, {vr(a2,2)}")
        c(f"v_add_f32 v{a1}, v{a1}, v{a1+1}")
        c(f"v_add_f32 v{a2}, v{a2}, v{a2+1}")
        c(f"v_permlane32_swap_b32 v{a1}, v{a2}")
        c(f"v_add_f32 v{a1}, v{a1}, v{a2}")
        c(f"v_mov_b32 v{a2}, v{a1}")
        c(f"v_permlane16_swap_b32 v{a1}, v{a2}")
        c(f"v_add_f32 v{a1}, v{a1}, v{a2}")
        c(f"s_mov_b64 exec, s[{sT+4}:{sT+5}]")
        h = c(f"buffer_store_dword v{a1}, v{t+6}, {WSR}, s{sT+2} offen {st}")
        c("s_mov_b64 exec, -1")
        for n in range(10):
            c(f"ds_write_b128 v{t+12}, {ar(self.aW1L+4*n,4)} offset:{n*1024}")
        self.p4_prep()
        c.wait(h)
        self.stamp("hdrain")
        if not o.get('s3wg', 1):
            (self.flag_store if self.PB == 4 else self.flag_store_near)(sT + 13)
        c("s_waitcnt lgkmcnt(0)")
        c("s_barrier")
        if o.get('s3wg', 1):
            c.add(self.only_waves(True, self.sub(self.flag_store, sT + 13)))
        self.csum_k = 0
        self.r0 = [I(f"ds_read_b128 {vr(self.p4W+4*tl,4)}, v{vL16} offset:{tl*1024}") for tl in range(7)]
        self.r0q = list(self.r0)
        self.early_at = [int(x) for x in str(o.get('ep3', '99')).split('.') if int(x) < o.get('csb', 24)]
        self.csum(o.get('csb', 24), self.r0q)

    def csum(self, n, tail=None, mem=()):
        c = self.c
        vAC, vC, vONE, NB, LA = self.p4AC, self.p4CS, 56, 14, 10
        rd = lambda k: I(f"ds_read_b128 {vr(vAC+4*(k%NB),4)}, v{52+(k>>1)//9} offset:{((k>>1)%9)*7168 + (k&1)*4096}")
        if self.csum_k == 0:
            for k in range(LA):
                c.add(rd(k))
        for k in range(self.csum_k, min(self.csum_k + n, 40)):
            d = vr(vC + 4 * (k & 1), 4)
            c(f"v_mfma_f32_16x16x32_bf16 {d}, {vr(vAC+4*(k%NB),4)}, {vr(vONE,4)}, {0 if k < 2 else d}")
            if mem and k % 2:
                c.add(mem.pop(0))
            if k in self.early_at:
                x = c(f"buffer_load_dword v{61 + self.early_at.index(k)}, v{self.vPOL}, {WSR}, s{sFLB} offen sc1"); x.wr = []
            if k + LA < 40:
                c.add(rd(k + LA))
            elif tail:
                c.add(tail[:1]); del tail[:1]
        self.csum_k = min(self.csum_k + n, 40)

    p4AC, p4W, p4A, p4NR, p4ST, p4CS = 64, 120, 176, 7, 16, 24

    def f3_lanes(self, v, st):
        c = self.c
        c(f"s_andn2_b32 s{st}, s{sU}, {self.PB}")
        c(f"s_lshl_b32 s{st}, s{st}, 10")
        c(f"s_add_u32 s{st}, s{st}, {F3_OFF - FL_OFF}")
        c(f"v_and_b32 v{v}, 8, v1")
        c(f"v_mul_u32_u24 v{v}, {self.PB}, v{v}")
        c(f"v_and_or_b32 v{v}, v1, 7, v{v}")
        c(f"v_lshl_add_u32 v{v}, v{v}, 7, s{st}")

    def p4_prep(self):
        c = self.c
        t = 8
        c(f"s_mov_b32 s{sT}, s{sTP}")
        c(f"s_mul_i32 s{sT+6}, s{sT}, 40960")
        c(f"s_add_u32 s{sT+6}, s{sT+6}, {H_OFF + 4096}")
        c(f"v_add_u32 v232, s{sT+6}, v{vL16}")
        c(f"v_add_u32 v233, 20480, v232")
        c(f"s_lshl_b32 s{sT+8}, s{sT}, 11")
        c(f"s_add_u32 s{sT+8}, s{sT+8}, {HST_OFF}")
        c(f"v_and_b32 v{t}, 31, v1")
        c(f"v_lshrrev_b32 v{t+1}, 5, v1")
        c(f"v_lshlrev_b32 v{t}, 2, v{t}")
        c(f"v_lshl_add_u32 v{t}, v{t+1}, 10, v{t}")
        c(f"v_add_u32 v{t+2}, {9*7168}, v{vL16}")
        c(f"v_add_u32 v{t+3}, {18*7168}, v{vL16}")
        c(f"v_and_b32 v{t+4}, 48, v1")
        c(f"v_add_u32 v{t+4}, {self.RED}, v{t+4}")
        c(f"s_mul_i32 s{sT+9}, s{sW}, 5120")
        c(f"v_add_u32 v{t+5}, s{sT+9}, v{t+4}")
        c(f"s_lshl_b32 s{sT+9}, s{sT}, 11")
        c(f"s_add_u32 s{sT+9}, s{sT+9}, {F3_OFF - FL_OFF}")
        c(f"v_and_b32 v{self.vPOL}, 15, v1")
        c(f"v_lshl_add_u32 v{self.vPOL}, v{self.vPOL}, 7, s{sT+9}")
        if self.o.get('s3wg', 1):
            del c.ins[-4:]
            self.f3_lanes(self.vPOL, sT + 9)
        c(f"s_lshl_b32 s{sT+9}, s{sW}, 10")
        c(f"v_add_u32 v52, s{sT+9}, v{vL16}")
        c(f"v_add_u32 v53, {9*7168}, v52")
        c(f"v_add_u32 v54, {18*7168}, v52")
        for j in range(4):
            c(f"v_mov_b32 v{56+j}, 0x3f803f80")

    def phase4(self):
        c, o = self.c, self.o
        ld = o.get('la', 'sc1')
        vAC, vW, vST, vCS = self.p4AC, self.p4W, self.p4ST, self.p4CS
        t = 8
        TL, NR, aA = o.get('p4t', 8), 12, 156
        KM = 20 - TL
        wa = [vL16, t + 2, t + 3]
        groups = [(0, 1), (2, 3), (4, 5), (6,)]
        fr = [(s, tl) for s in range(KM) for tl in range(7)] + [(s, tl) for g in groups for s in range(KM, 20) for tl in g]
        gend = [7 * KM + TL * n for n in (2, 4, 6, 7)]
        rd = self.r0 + [I(f"ds_read_b128 {vr(vW+4*(j%14),4)}, v{wa[s//9]} offset:{(s%9)*7168 + tl*1024}") for j, (s, tl) in enumerate(fr)][7:]
        if o.get('s3wg', 1) == 1:
            assert not self.early_at
            lab = self.label("w3")
            c(f"s_cmp_lg_u32 s{sW}, 1")
            c(f"s_cbranch_scc1 {lab}")
            c.cond(True)
            self.poll(self.vPOL, sleep=o.get('s3sleep', 0))
            c.cond(False)
            c(f"{lab}:")
            c("s_barrier")
        else:
            self.poll(self.vPOL, early=[61 + j for j in range(len(self.early_at))])
        self.stamp("s3", "main p4")
        areg = lambda s, a: ar(aA + 8 * (s % NR) + 4 * a, 4)
        Q = []
        for s in range(20):
            for a in range(2):
                pre = [I(f"v_add_u32 v{232+a}, 8192, v{232+a}")] if s and s % 8 == 0 else []
                Q.append(pre + [I(f"global_load_dwordx4 {areg(s, a)}, v{232+a}, s[{sWS}:{sWS+1}] offset:{(s%8-4)*1024} {ld}")])
        n0, n1 = o.get('p4n0', 4), o.get('p4n1', 8)
        c.add(Q[:n0]); qi = n0 + n1
        early, self.early_at = self.early_at, []
        mem = Q[n0:qi] + [I(f"buffer_load_dword v{vST+j}, v{t}, {WSR}, s{sT+8} offen offset:{j*128} {ld}") for j in range(8)]
        self.csum(40, self.r0q, mem)
        c.add(mem)
        self.stamp("csum", "p4")
        V = [[] for _ in range(280)]
        X = [[] for _ in range(280)]
        wr = [I(f"ds_write_b128 v{t+5}, {vr(vCS,4)}"), I(f"ds_write_b128 v{t+5}, {vr(vCS+4,4)} offset:64")]
        V[5].append(wr[0]); V[9].append(wr[1])
        mb = 14 * (KM - 6) + 1
        V[mb] += [W(wr[1]), I("s_barrier")]
        for tl in range(7):
            V[mb + 2 + 2 * tl].append(I(f"ds_read_b128 {vr(vCS+4*((tl+3)%7),4)}, v{t+4} offset:{(((tl+3)%7)&3)*5120 + (((tl+3)%7)>>2)*64}"))
        for j, x in enumerate(self.sub(self.p4_stats)):
            V[14 * 3 + j].append(x)
        assert KM >= 10
        for q in range(4):
            for k in range(14):
                tl, a = divmod((k + 7) % 14, 2)
                V[14 * (KM - 4 + q) + k].append(I(f"v_fmac_f32 v{vAC + 28*a + 4*tl + q}, v{vCS + 4*tl + q}, v{vST + 2*a}"))
        for g in range(3):
            E = self.p4_silu([(0, tl) for tl in groups[g]], 2 * g, False) + self.p4_silu([(1, tl) for tl in groups[g]], 2 * g + 1, False)
            m0, m1 = 2 * gend[g] + 3, 2 * gend[g + 1]
            cost = lambda x: 2 if x.op.startswith(TRANS) else 1
            tot, acc = sum(map(cost, E)), 0
            for x in E:
                V[m0 + acc * (m1 - m0) // tot].append(x); acc += cost(x)
        ra, rw, m = o.get('p4ra', 44), o.get('p4rw', 36), 10
        while qi < 40:
            s = qi // 2
            m = max(m, 140 * (s - NR + 1) + 10)
            assert m // 10 < 2 * fr.index((s, 0)) - 14
            X[m // 10 | 1] += Q[qi]; qi += 1; m += ra
            if qi % o.get('p4mix', 99) == 0:
                X[m // 10 | 1] += self.w2_take(1); m += rw
        while self.w2q and m // 10 < 279:
            X[m // 10 | 1] += self.w2_take(1); m += rw
        for j, (s, tl) in enumerate(fr):
            for a in range(2):
                m = 2 * j + a
                d = vr(vAC + 28 * a + 4 * tl, 4)
                M = I(f"v_mfma_f32_16x16x32_bf16 {d}, {vr(vW+4*(j%14),4)}, {areg(s, a)}, {0 if s == 0 else d}")
                if a == 0 and j % 4 == 0:
                    M.waits = [rd[min(j + 3, 139)]]
                f = flat(X[m])
                k = next((k for k, i in enumerate(f) if i.kind == 'vmem'), 0)
                c.add(f[:k]); c.add(M); c.add(f[k:])
                if a == 0 and j + 7 < 140:
                    c.add(rd[j + 7])
                c.add(V[m])
            if j + 1 in gend or (j < 7 * KM and tl == 6 and (s < 6 or s % 2)):
                self.stamp(f"f{j}", "p4")
        self.stamp("p4")
        E = self.p4_silu([(0, 6), (1, 6)], 6, True)
        c.add(E)
        self.stamp("p4epi")
        c.add(self.w2_take(o.get('p4d', 0)))
        self.p5_prep()
        self.p5_prep2()
        c.wait(E[-1])
        self.stamp("h1drain")
        self.flag_store_near(sT + 13)
        c.add(self.w2_take(70))

    def p4_silu(self, g, gi, packed):
        k = Code()
        vAC, vST, t = self.p4AC, self.p4ST, 8
        vE, out = 52, 176 + 4 * gi
        pairs = [(vAC + 28 * a + 4 * tl + 2 * q, vST + 2 * a) for a, tl in g for q in range(2)]
        for r, sv in pairs:
            if packed:
                k(f"v_pk_mul_f32 {vr(r,2)}, {vr(r,2)}, {vr(sv,2)} op_sel:[0,1] op_sel_hi:[1,1]")
            else:
                k(f"v_mul_f32 v{r}, v{r}, v{sv+1}"); k(f"v_mul_f32 v{r+1}, v{r+1}, v{sv+1}")
        for j, (r, sv) in enumerate(pairs):
            k(f"v_exp_f32 v{vE+2*j}, v{r}")
            k(f"v_exp_f32 v{vE+2*j+1}, v{r+1}")
        for j in range(4):
            if packed:
                k(f"v_pk_fma_f32 {vr(vE+2*j,2)}, {vr(vE+2*j,2)}, {vr(vST+4,2)}, {vr(vST+4,2)}")
            else:
                for e in (vE + 2 * j, vE + 2 * j + 1):
                    k(f"v_fma_f32 v{e}, v{e}, v{vST+4}, v{vST+4}")
        for j in range(8):
            k(f"v_rcp_f32 v{vE+j}, v{vE+j}")
        for j, (r, sv) in enumerate(pairs):
            if packed:
                k(f"v_pk_mul_f32 {vr(r,2)}, {vr(r,2)}, {vr(vE+2*j,2)}")
            else:
                k(f"v_mul_f32 v{r}, v{r}, v{vE+2*j}"); k(f"v_mul_f32 v{r+1}, v{r+1}, v{vE+2*j+1}")
        for j, (r, sv) in enumerate(pairs):
            k(f"v_cvt_pk_bf16_f32 v{out+j}, v{r}, v{r+1}")
        if gi < 6:
            k(f"buffer_store_dwordx4 {vr(out,4)}, v{vL16}, {WSR}, s{sT+1+(gi&1)} offen offset:{(gi>>1)*1024} sc1")
        else:
            k(f"v_permlane16_swap_b32 v{out}, v{out+2}")
            k(f"v_permlane16_swap_b32 v{out+1}, v{out+3}")
            k(f"buffer_store_dwordx4 {vr(out,4)}, v{t+6}, {WSR}, s{sT+1} offen offset:3072 sc1")
        return k.ins

    def p4_stats(self):
        c = self.c
        vST, t = self.p4ST, 8
        for j in range(1, 8):
            c(f"v_add_f32 v{vST}, v{vST}, v{vST+j}")
        c(f"v_mov_b32 v{vST+1}, v{vST}")
        c(f"v_permlane16_swap_b32 v{vST}, v{vST+1}")
        c(f"v_mul_f32 v{vST}, {hex(f2u(-1.0/640))}, v{vST}")
        c(f"v_mul_f32 v{vST+1}, {hex(f2u(1.0/640))}, v{vST+1}")
        c(f"v_fma_f32 v{vST+1}, -v{vST}, v{vST}, v{vST+1}")
        c(f"v_max_f32 v{vST+1}, 0, v{vST+1}")
        c(f"v_add_f32 v{vST+1}, {hex(f2u(1e-5))}, v{vST+1}")
        c(f"v_rsq_f32 v{vST+1}, v{vST+1}")
        nl = hex(f2u(-1.4426950408889634))
        c(f"v_mov_b32 v{vST+4}, {nl}")
        c(f"v_mov_b32 v{vST+5}, {nl}")
        c(f"v_mul_f32 v{vST+1}, v{vST+4}, v{vST+1}")
        c(f"v_mov_b32 v{vST+2}, v{vST}")
        c(f"v_mov_b32 v{vST+3}, v{vST+1}")
        c(f"v_permlane32_swap_b32 v{vST}, v{vST+2}")
        c(f"v_permlane32_swap_b32 v{vST+1}, v{vST+3}")
        c(f"s_mul_i32 s{sT+1}, s{sT}, {2*57344}")
        c(f"s_mul_i32 s{sT+2}, s{sFB}, 3584")
        c(f"s_add_u32 s{sT+1}, s{sT+1}, s{sT+2}")
        c(f"s_add_u32 s{sT+1}, s{sT+1}, {H1_OFF}")
        c(f"s_add_u32 s{sT+2}, s{sT+1}, 57344")
        c(f"v_bfe_u32 v{t+6}, v1, 4, 1")
        c(f"v_mul_u32_u24 v{t+6}, 57344, v{t+6}")
        c(f"v_and_b32 v{t+7}, 15, v1")
        c(f"v_lshl_add_u32 v{t+6}, v{t+7}, 4, v{t+6}")
        c(f"v_lshl_add_u32 v{t+6}, v{t+1}, 8, v{t+6}")
        c(f"s_lshl_b32 s{sT+13}, s{sU}, 7")
        c(f"s_lshl2_add_u32 s{sT+13}, s{sHEAD}, s{sT+13}")
        c(f"s_add_u32 s{sT+13}, s{sT+13}, {F4_OFF}")

    p5A, p5NR, p5AC, p5PB, p5SUM, p5S0, p5XP, p5AD = 64, 20, 144, 204, 32, 184, 224, 52
    sA5 = 64

    def p5_prep(self):
        c = self.c
        c(f"s_mul_i32 s{sT+5}, s{sK8}, 7168")
        c(f"s_add_u32 s{sT+5}, s{sT+5}, {H1_OFF + 3072}")
        c(f"v_mov_b32 v60, s{sT+5}")
        c(f"s_lshl2_add_u32 s{sT+7}, s{sU}, s{sW}")
        for i in range(8):
            c(f"s_xor_b32 s{sT+6}, s{sT+7}, {self.CORD[i & 3] + (4 * self.PB if i < 4 else 0)}")
            c(f"s_mul_i32 s{sT+6}, s{sT+6}, 57344")
            c(f"v_add3_u32 v{self.p5AD+i}, v{vL16}, s{sT+6}, v60")
        c(f"s_lshl2_add_u32 s{sT+3}, s{sU}, s{sW}")
        c(f"s_lshl_b32 s{sT+3}, s{sT+3}, 5")
        c(f"s_add_u32 s{sT+3}, s{sT+3}, {F4_OFF - FL_OFF}")
        c(f"v_and_b32 v{self.vPOL}, 7, v1")
        c(f"v_lshl_add_u32 v{self.vPOL}, v{self.vPOL}, 2, s{sT+3}")

    def p5_prep2(self):
        c = self.c
        t, rs, vSUM = 16, self.vRES, self.p5SUM
        for i, cc in enumerate(self.CORD):
            c(f"s_xor_b32 s{sT+6}, s{sW}, {cc}")
            c(f"s_mul_i32 s{sT+6}, s{sT+6}, 30720")
            if 0 < i < 3:
                c(f"s_add_u32 s{sT+6}, s{sT+6}, {i*5120}")
            c(f"v_add_u32 v{t+6+i}, s{sT+6}, v{vL16}")
        for j in range(10):
            c(f"v_lshlrev_b32 v{vSUM+2*j}, 16, v{rs+j}")
            c(f"v_and_b32 v{vSUM+2*j+1}, s{sMASK}, v{rs+j}")
        c(f"s_lshl_b32 s{sT+6}, s{sU}, 5")
        c(f"s_add_u32 s{sT+6}, s{sT+6}, s{sHEAD}")
        c(f"s_xor_b32 s{sT+7}, s{sT+6}, {32 * self.PB}")
        c(f"s_mul_i32 s{sT+4}, s{sT+6}, 2560")
        c(f"s_add_u32 s{sT+4}, s{sT+4}, {PX_OFF}")
        c(f"s_mul_i32 s{sT+5}, s{sT+7}, 2560")
        c(f"s_add_u32 s{sT+5}, s{sT+5}, {PX_OFF}")
        c(f"s_lshl_b32 s72, s{sT+7}, 7")
        c(f"s_add_u32 s72, s72, {F5_OFF}")
        c(f"s_lshl_b32 s{sT+6}, s{sT+6}, 7")
        c(f"s_add_u32 s{sT+6}, s{sT+6}, {F5_OFF - FL_OFF}")
        c(f"v_mov_b32 v{self.vFWA}, s{sT+6}")
        c(f"v_lshlrev_b32 v{t+12}, 3, v1")
        c(f"s_lshl_b32 s{sT+6}, s{sW}, 12")
        c(f"s_add_u32 s{sT+6}, s{sT+6}, 122880")
        c(f"v_and_b32 v{t}, 15, v1")
        c(f"v_mul_u32_u24 v{t}, 160, v{t}")
        c(f"v_add_u32 v{t}, s{sT+6}, v{t}")
        c(f"v_lshrrev_b32 v{t+1}, 4, v1")
        c(f"v_lshl_add_u32 v{t+2}, v{t+1}, 3, v{t}")
        c(f"v_lshl_add_u32 v{t+1}, v{t+1}, 4, v{t}")
        c(f"v_add_u32 v{t}, s{sT+6}, v{vL16}")
        for j in range(3):
            c(f"v_add_u32 v{t+10}, {64*j}, v1")
            c(f"v_mul_u32_u24 v{t+11}, 6554, v{t+10}")
            c(f"v_lshrrev_b32 v{t+11}, 16, v{t+11}")
            c(f"v_mul_u32_u24 v{t+11}, {1280-160}, v{t+11}")
            c(f"v_lshl_add_u32 v{t+3+j}, v{t+10}, 4, v{t+11}")
        c(f"s_lshl2_add_u32 s{sT}, s{sU}, s{sW}")
        c(f"s_mul_i32 s{sT}, s{sT}, {16*1280}")
        c(f"s_mul_i32 s{sT+1}, s{sNB}, 160")
        c(f"s_add_u32 s{sT}, s{sT}, s{sT+1}")

    def phase5(self):
        c, o = self.c, self.o
        ld = o.get('la', 'sc1')
        vA, NR, vAC, vPB, vSUM, vS0 = self.p5A, self.p5NR, self.p5AC, self.p5PB, self.p5SUM, self.p5S0
        t = 16
        rs = self.vRES
        c("s_barrier")
        self.poll(self.vPOL)
        self.stamp("s4", "main p5")

        def lda(k):
            i, s = divmod(k, 7)
            return [I(f"global_load_dwordx4 {vr(vA+4*(k%NR),4)}, v{self.p5AD+i}, s[{sWS}:{sWS+1}] offset:{(s-3)*1024} {ld}")]
        LA = o.get('p5la', 12)
        qi = o.get('p5n0', 8)
        for k in range(qi):
            c.add(lda(k))
        F = [[] for _ in range(280)]
        add = lambda d, x, n=20: [I(f"v_add_f32 v{d+j}, v{d+j}, v{x+j}") for j in range(n)]
        vXP = self.p5XP

        def put(items, g, per=1, step=1):
            items = list(items)
            while items:
                n = per
                if g % 5 == 0 and g // 5 + LA < 56 or g % 5 == 4:
                    n = per - 1
                F[g] += items[:n]; items = items[n:]; g += step
            return g
        for i in range(1, 8):
            half, r = divmod(i - 1, 4)
            g = 35 * i
            pa = vAC + 20 * ((i - 1) & 1)
            if r == 3:
                A = add(vS0, vPB)
                it = []
                for P in range(3):
                    js = range(4 * P, min(4 * P + 4, 10))
                    it += [x for j in js for x in A[2 * j:2 * j + 2]]
                    it += [I(f"v_cvt_pk_bf16_f32 v{vXP+j}, v{vS0+2*j}, v{vS0+2*j+1}") for j in js]
                    if P < 2:
                        hs = I(f"buffer_store_dwordx4 {vr(vXP+4*P,4)}, v{vL16}, {WSR}, s{sT+5} offen offset:{P*1024} sc1")
                    else:
                        hs = I(f"buffer_store_dwordx2 {vr(vXP+8,2)}, v{t+12}, {WSR}, s{sT+5} offen offset:2048 sc1")
                    it += [hs]
                put(it, g + 3, 2)
                fs = self.sub(self.flag_store if self.PB == 4 else self.flag_store_near, 72)
                fs[0].waits = [hs]
                F[g + o.get('p5f', 52)] += fs
                continue
            last = r == 1
            wr = [I(f"ds_write_b128 v{t+6+r}, {vr(pa+4*tl,4)} offset:{half*15360 + tl*1024}") for tl in range(5)]
            for tl, g1 in enumerate((3, 6, 8, 11, 13) if last else (3, 7, 11, 13, 17)):
                F[g + g1].insert(0, wr[tl])
            gb = g + (17 if last else 22)
            F[gb] += [W(wr[-1]), I("s_barrier")]
            dst = vS0 if i == 1 else vPB
            rd = [I(f"ds_read_b128 {vr(dst+4*tl,4)}, v{t+9} offset:{half*15360 + r*5120 + tl*1024}") for tl in range(5)]
            gn = put(rd, gb + 1, 2 if last else 1)
            if i == 1 or r == 2:
                continue
            A = add(vSUM if half else vS0, vPB)
            A[0].waits = [rd[-1] if not last else rd[2]]
            gn = put(A, gn + (4 if last else 5), 3 if last else 2)
            assert gn <= g + (34 if last else 52), (i, gn - g)
        gl = o.get('p5g', 230)
        F[gl].insert(0, I(f"buffer_load_dword v{self.vFWD}, v{self.vFWA}, {WSR}, s{sFLB} offen sc1"))
        gc = o.get('p5c', 255)
        F[gc] += self.sub(self.flag_check, self.vFWD, self.vFWA, False, 0)
        F[gc + 1].insert(0, I(f"buffer_load_dwordx4 {vr(vXP,4)}, v{vL16}, {WSR}, s{sT+4} offen sc1"))
        F[gc + 2].insert(0, I(f"buffer_load_dwordx4 {vr(vXP+4,4)}, v{vL16}, {WSR}, s{sT+4} offen offset:1024 sc1"))
        F[gc + 3].insert(0, I(f"buffer_load_dwordx2 {vr(vXP+8,2)}, v{t+12}, {WSR}, s{sT+4} offen offset:2048 sc1"))
        for k in range(56):
            i, s = divmod(k, 7)
            ac = {3: vS0, 7: vSUM}.get(i, vAC + 20 * (i & 1))
            for tl in range(5):
                d = vr(ac + 4 * tl, 4)
                L = []
                if tl in (0, 2) and qi < min(k + LA + 1, 56):
                    L = lda(qi); qi += 1
                c.add(L[:-1])
                c(f"v_mfma_f32_16x16x32_bf16 {d}, {self.w2reg(5*s+tl)}, {vr(vA+4*(k%NR),4)}, {0 if s == 0 and i % 4 != 3 else d}")
                c.add(L[-1:])
                c.add(F[5 * k + tl])
            if s in (0, 6):
                self.stamp(f"i{i}s{s}", "p5")
        self.stamp("p5")
        for j in range(10):
            c(f"v_pk_add_f32 {vr(vSUM+2*j,2)}, {vr(vSUM+2*j,2)}, {vr(vPB+2*j,2)}")
        for P in range(3):
            for j in range(4 * P, min(4 * P + 4, 10)):
                c(f"v_lshlrev_b32 v{vS0+2*j}, 16, v{vXP+j}")
                c(f"v_and_b32 v{vS0+2*j+1}, s{sMASK}, v{vXP+j}")
            for j in range(4 * P, min(4 * P + 4, 10)):
                c(f"v_pk_add_f32 {vr(vSUM+2*j,2)}, {vr(vSUM+2*j,2)}, {vr(vS0+2*j,2)}")
            for j in range(4 * P, min(4 * P + 4, 10)):
                c(f"v_cvt_pk_bf16_f32 v{rs+j}, v{vSUM+2*j}, v{vSUM+2*j+1}")
            if P < 2:
                c(f"ds_write_b128 v{t+1}, {vr(rs+4*P,4)} offset:{64*P}")
            else:
                c(f"ds_write_b64 v{t+2}, {vr(rs+8,2)} offset:128")
        for j in range(3):
            c(f"ds_read_b128 {vr(vPB+4*j,4)}, v{t} offset:{j*1024}")
        for j in range(3):
            if j == 2:
                c(f"s_not_b64 exec, s[{sHI}:{sHI+1}]")
            c(f"buffer_store_dwordx4 {vr(vPB+4*j,4)}, v{t+3+j}, s[{sOUT}:{sOUT+3}], s{sT} offen {o.get('ost', '').replace('+', ' ')}")
        c("s_mov_b64 exec, -1")

    def build(self):
        c = self.c
        self.prologue()
        self.phase1()
        self.attention()
        self.phase3()
        self.phase4()
        self.phase5()
        if self.o.get('stamps'):
            c("s_waitcnt vmcnt(0) lgkmcnt(0)")
            self.stamp("end")
            self.dump_stamps()
        if self.o.get('probe'):
            c("s_waitcnt vmcnt(0) lgkmcnt(0)")
            self.stamp("end")
            if 'pmask' in self.o:
                c(f"s_and_b32 s{sT}, s2, {self.o['pmask']}")
                c(f"s_cmp_lg_u32 s{sT}, {self.o['pval']}")
                c("s_cbranch_scc1 Lend")
            if self.o.get('pmin'):
                c(f"s_load_dwordx2 s[{sDBG}:{sDBG+1}], s[0:1], 56")
                c(f"s_not_b32 s{sT}, s{sST}")
                c(f"v_mov_b32 v2, s{sT}")
                c("v_mov_b32 v3, 0")
                c("s_mov_b64 exec, 1")
                c(f"global_atomic_umax v3, v2, s[{sDBG}:{sDBG+1}] sc1")
                c(f"s_sub_u32 s{sST}, s{sST}, 1000")
                c("Lprobe0:")
                c(f"s_memrealtime s[{sTM}:{sTM+1}]")
                c("s_waitcnt lgkmcnt(0)")
                c(f"s_sub_u32 s{sT}, s{sTM}, s{sST}")
                c(f"s_cmp_lt_i32 s{sT}, 0")
                c("s_cbranch_scc1 Lprobe0")
                c(f"global_load_dword v2, v3, s[{sDBG}:{sDBG+1}] sc1")
                c(f"v_readfirstlane_b32 s{sT}, v2")
                c(f"s_not_b32 s{sST}, s{sT}")
                c(f"s_add_u32 s{sST}, s{sST}, 1000")
            c("Lprobe:")
            c(f"s_memrealtime s[{sTM}:{sTM+1}]")
            c("s_waitcnt lgkmcnt(0)")
            c(f"s_sub_u32 s{sT}, s{sTM}, s{sST}")
            c(f"s_cmp_lt_i32 s{sT}, 0")
            c("s_cbranch_scc1 Lprobe")
        c("s_endpgm")
        c.add(self.ool.ins)
        c("Lend:")
        body = finalize(c)
        return f"""; Fused pre-LN sliding-window attention block + SiLU FFN (generated by work/gen.py)
; @launch grid=(256,1,1) block=(256,1,1) lds=163840
.amdgcn_target "amdgcn-amd-amdhsa--gfx950"
.text
.globl {NAME}_kernel
.p2align 8
.type {NAME}_kernel,@function
{NAME}_kernel:
{body}
  s_endpgm
Lcode_end:
.section .rodata,"a"
.p2align 6
.amdhsa_kernel {NAME}_kernel
  .amdhsa_next_free_vgpr 512
  .amdhsa_next_free_sgpr 102
  .amdhsa_accum_offset 256
  .amdhsa_group_segment_fixed_size 0
  .amdhsa_kernarg_size 72
  .amdhsa_user_sgpr_count 2
  .amdhsa_user_sgpr_kernarg_segment_ptr 1
  .amdhsa_system_sgpr_workgroup_id_x 1
.end_amdhsa_kernel
"""


def generate(**opt):
    g = Gen(opt)
    return g.build(), g


if __name__ == "__main__":
    opt = {}
    out = None
    for a in sys.argv[1:]:
        if '=' in a:
            k, v = a.split('=', 1)
            opt[k] = int(v) if v.lstrip('-').isdigit() else v
        else:
            out = a
    asm, g = generate(**opt)
    open(out or f"cdna_kernels/{NAME}.s", "w").write(asm)
    print(len(asm.splitlines()), "lines")
```
